```python
import torch

def _softmax(x, axis=-1):
    return torch.softmax(x, dim=axis)
def _gelu(x):
    return torch.nn.functional.gelu(x, approximate="tanh")
def _silu(x):
    return torch.nn.functional.silu(x)
def _sigmoid(x):
    return torch.sigmoid(x)
def _layernorm(x, axis=-1, eps=1e-5):
    m = x.mean(dim=axis, keepdim=True)
    v = x.var(dim=axis, keepdim=True, unbiased=False)
    return (x - m) / torch.sqrt(v + eps)
def _scatter_add(tgt, idx, src, axis=0):
    return tgt.clone().index_add_(axis, idx, src)
def _segment_sum(src, seg, n):
    out = torch.zeros((n,) + src.shape[1:], dtype=src.dtype)
    return out.index_add_(0, seg, src)
def _pad(x, pw):
    flat = tuple(v for pair in reversed(pw) for v in pair)
    return torch.nn.functional.pad(x, flat)

kernel_name = 'recurrent_scan__sliding_local_dilated__dense_activation_gelu__prompt'

def setup_inputs():

    _w = (lambda a: (lambda t: t.to(torch.bfloat16) if t.is_floating_point() else t)(torch.as_tensor(a)))
    def _A_setup():
        B, S, D = 1, 2048, 640
        return {
            "x": _w((lambda *s: torch.randn(*s, dtype=torch.bfloat16) * 0.05)(B, S, D)),
            "wqkv": _w((lambda *s: torch.randn(*s, dtype=torch.bfloat16) * 0.2)(D, 3 * D)),
            "wo": _w((lambda *s: torch.randn(*s, dtype=torch.bfloat16) * 0.2)(D, D)),
        }
    _A_in = _A_setup()

    def _B_setup():
        B, S, D, F = 1, 2048, 640, 1728
        return {
            "x": _w((lambda *s: torch.randn(*s, dtype=torch.bfloat16) * 0.05)(B, S, D)),
            "w1": _w((lambda *s: torch.randn(*s, dtype=torch.bfloat16) * 1.6)(D, F) * (D ** -0.5)),
            "b1": _w((lambda *s: torch.randn(*s, dtype=torch.bfloat16) * 1.6)(F) * 0.01),
            "w2": _w((lambda *s: torch.randn(*s, dtype=torch.bfloat16) * 0.1)(F, D) * (F ** -0.5)),
            "b2": _w((lambda *s: torch.randn(*s, dtype=torch.bfloat16) * 0.1)(D) * 0.01),
        }
    _B_in = _B_setup()

    return {
        "A_x": _A_in["x"],
        "A_wqkv": _A_in["wqkv"],
        "A_wo": _A_in["wo"],
        "B_x": _B_in["x"],
        "B_w1": _B_in["w1"],
        "B_b1": _B_in["b1"],
        "B_w2": _B_in["w2"],
        "B_b2": _B_in["b2"],
    }

def reference(A_x, A_wqkv, A_wo, B_x, B_w1, B_b1, B_w2, B_b2):
    def _A_ref(x, wqkv, wo):
        B, S, D = x.shape
        H = 32; Dh = D // H
        W, dil = 8, 2
        qkv = (lambda x, *d: x.permute(*d))((x @ wqkv).reshape(B, S, 3, H, Dh), 2, 0, 3, 1, 4)
        q, k, v = qkv[0], qkv[1], qkv[2]
        scale = Dh ** -0.5
        pos = torch.arange(S)
        off = torch.arange(W) * dil
        idx = pos[:, None] - off[None, :]
        mask = idx >= 0
        idx_c = torch.where(mask, idx, 0).reshape(-1)
        kg = k[:, :, idx_c, :].reshape(B, H, S, W, Dh)
        vg = v[:, :, idx_c, :].reshape(B, H, S, W, Dh)
        logits = torch.einsum("bhsd,bhswd->bhsw", q, kg) * scale
        logits = torch.where(mask[None, None, :, :], logits, -1e9)
        attn = _softmax(logits, axis=-1)
        o = torch.einsum("bhsw,bhswd->bhsd", attn, vg)
        return (lambda x, *d: x.permute(*d))(o, 0, 2, 1, 3).reshape(B, S, D) @ wo

    def _B_ref(x, w1, b1, w2, b2):
        h = torch.einsum("bsd,df->bsf", x, w1) + b1
        h = _gelu(h)
        return torch.einsum("bsf,fd->bsd", h, w2) + b2

    x = A_x
    xn = _layernorm(x, axis=-1)
    s = _A_ref(xn, A_wqkv, A_wo)
    g = _silu(_B_ref(xn, B_w1, B_b1, B_w2, B_b2))
    return x + s * g
```

```python
import re

REG_RE = re.compile(r'\b([vas])(\d+)\b|\b([vas])\[(\d+):(\d+)\]|\b(vcc|exec|m0|scc)\b')


def v(i, n=1):
    return f'v{i}' if n == 1 else f'v[{i}:{i + n - 1}]'


def a(i, n=1):
    return f'a{i}' if n == 1 else f'a[{i}:{i + n - 1}]'


def s(i, n=1):
    return f's{i}' if n == 1 else f's[{i}:{i + n - 1}]'


def regs_of(tok):
    out = set()
    for m in REG_RE.finditer(tok):
        if m.group(1):
            out.add((m.group(1), int(m.group(2))))
        elif m.group(3):
            for i in range(int(m.group(4)), int(m.group(5)) + 1):
                out.add((m.group(3), i))
        else:
            out.add((m.group(6), 0))
    return out


def split_ops(rest):
    ops, depth, cur = [], 0, ''
    for ch in rest:
        if ch in '[(':
            depth += 1
        elif ch in '])':
            depth -= 1
        if ch == ',' and depth == 0:
            ops.append(cur.strip())
            cur = ''
        else:
            cur += ch
    if cur.strip():
        ops.append(cur.strip())
    return ops


TRANS = ('v_exp_f32', 'v_log_f32', 'v_rcp_f32', 'v_rsq_f32', 'v_sqrt_f32', 'v_sin_f32', 'v_cos_f32')
NODST = ('buffer_store', 'global_store', 'ds_write', 's_cmp', 's_cbranch', 's_branch', 's_waitcnt', 's_barrier',
         's_nop', 's_sleep', 's_endpgm', 's_setprio', 'buffer_inv', 'buffer_wbl2', 's_bitcmp')


class Ins:
    __slots__ = ('text', 'mn', 'dst', 'src', 'kind', 'passes', 'srcc', 'srcab', 'label', 'ws', 'dpp', 'wide_data')

    def __init__(self, text):
        self.text = text
        self.label = False
        self.passes = 0
        self.srcc = set()
        self.srcab = set()
        self.dpp = False
        self.wide_data = set()
        t = text.split(';')[0].strip()
        if t.endswith(':'):
            self.label = True
            self.mn = ''
            self.dst = set()
            self.src = set()
            self.kind = 'label'
            self.ws = 0
            return
        parts = t.split(None, 1)
        mn = parts[0]
        self.mn = mn
        rest = parts[1] if len(parts) > 1 else ''
        ops = split_ops(rest)
        R = [regs_of(o.split(' ')[0] if i == len(ops) - 1 and not o.startswith('-') else o) for i, o in enumerate(ops)]
        self.ws = 1
        dst, src = set(), set()
        if mn.startswith('v_mfma'):
            self.kind = 'mfma'
            dst = R[0]
            self.srcab = R[1] | R[2]
            self.srcc = R[3]
            src = self.srcab | self.srcc
            if '32x32x16' in mn:
                self.passes = 8
            elif '16x16x32' in mn:
                self.passes = 4
            elif '4x4x4' in mn:
                self.passes = 2
            else:
                raise ValueError(mn)
        elif mn.startswith('v_'):
            self.kind = 'trans' if mn.startswith(TRANS) else 'valu'
            if mn.startswith('v_permlane'):
                dst = R[0] | R[1]
                src = R[0] | R[1]
            elif mn.startswith(('v_add_co', 'v_sub_co', 'v_addc_co', 'v_subb_co')):
                dst = R[0] | R[1]
                for r in R[2:]:
                    src |= r
            else:
                dst = R[0]
                for r in R[1:]:
                    src |= r
                if mn.startswith(('v_fmac', 'v_pk_fmac', 'v_dot2c', 'v_writelane')):
                    src |= R[0]
            if '_dpp' in mn or 'row_' in rest or 'quad_perm' in rest:
                self.dpp = True
                src |= R[0]
        elif mn.startswith('ds_'):
            self.kind = 'ds'
            if mn.startswith('ds_write') or (mn.startswith('ds_add') and 'rtn' not in mn):
                for r in R:
                    src |= r
            else:
                dst = R[0]
                for r in R[1:]:
                    src |= r
        elif mn.startswith(('buffer_', 'global_')):
            self.kind = 'vmem'
            if mn.startswith(('buffer_inv', 'buffer_wbl2')):
                pass
            elif 'store' in mn or re.search(r'\blds\b', rest) or ('atomic' in mn and 'sc0' not in rest):
                for r in R:
                    src |= r
                if re.search(r'\blds\b', rest):
                    src.add(('m0', 0))
                if 'store' in mn and ('x4' in mn or 'x3' in mn):
                    self.wide_data = R[0] if mn.startswith('buffer') else R[1]
            else:
                dst = R[0]
                for r in R[1:]:
                    src |= r
                if 'atomic' in mn:
                    src |= R[0]
        elif mn.startswith(('s_load', 's_memtime', 's_memrealtime', 's_buffer_load')):
            self.kind = 'smem'
            dst = R[0]
            for r in R[1:]:
                src |= r
        elif mn.startswith('s_'):
            self.kind = 'salu'
            if mn == 's_nop':
                self.ws = int(ops[0], 0) + 1
            if mn.startswith(NODST):
                for r in R:
                    src |= r
            else:
                dst = R[0]
                for r in R[1:]:
                    src |= r
                if 'saveexec' in mn:
                    dst = dst | {('exec', 0)}
        else:
            raise ValueError('unknown instruction: ' + text)
        self.dst = dst
        self.src = src


class K:
    def __init__(self):
        self.ins = []
        self.vmq = []
        self.lgq = []
        self.nlabel = 0

    def _emit(self, text):
        self.ins.append(Ins(text))

    def comment(self, t):
        pass

    def label(self, name):
        self._emit(name + ':')

    def newlabel(self, base='L'):
        self.nlabel += 1
        return f'{base}_{self.nlabel}'

    def _wait(self, vm=None, lg=None):
        parts = []
        if vm is not None:
            parts.append(f'vmcnt({min(vm, 63)})')
        if lg is not None:
            parts.append(f'lgkmcnt({min(lg, 15)})')
        if parts:
            self._emit('s_waitcnt ' + ' '.join(parts))

    def _need(self, touched):
        vm = lg = None
        for i in range(len(self.vmq) - 1, -1, -1):
            if self.vmq[i][0] & touched:
                vm = len(self.vmq) - 1 - i
                del self.vmq[:i + 1]
                break
        for i in range(len(self.lgq) - 1, -1, -1):
            if self.lgq[i][0] & touched:
                if any(e[2] for e in self.lgq):
                    lg = 0
                    self.lgq = []
                else:
                    lg = len(self.lgq) - 1 - i
                    del self.lgq[:i + 1]
                break
        self._wait(vm, lg)

    def I(self, text, tag=None):
        ins = Ins(text)
        self._need(ins.src | ins.dst)
        self.ins.append(ins)
        if ins.kind == 'vmem' and not ins.mn.startswith(('buffer_inv', 'buffer_wbl2')):
            self.vmq.append((ins.dst, tag))
        elif ins.kind == 'ds':
            self.lgq.append((ins.dst, tag, False))
        elif ins.kind == 'smem':
            self.lgq.append((ins.dst, tag, True))
        return ins

    def wait_vm_tag(self, tag):
        for i in range(len(self.vmq) - 1, -1, -1):
            if self.vmq[i][1] == tag:
                self._wait(vm=len(self.vmq) - 1 - i)
                del self.vmq[:i + 1]
                return

    def wait_lg_tag(self, tag):
        for i in range(len(self.lgq) - 1, -1, -1):
            if self.lgq[i][1] == tag:
                if any(e[2] for e in self.lgq):
                    self._wait(lg=0)
                    self.lgq = []
                else:
                    self._wait(lg=len(self.lgq) - 1 - i)
                    del self.lgq[:i + 1]
                return

    def wait_all(self, vm=True, lg=True):
        self._wait(0 if vm else None, 0 if lg else None)
        if vm:
            self.vmq = []
        if lg:
            self.lgq = []

    def state(self):
        return (list(self.vmq), list(self.lgq))

    def set_state(self, st):
        self.vmq, self.lgq = list(st[0]), list(st[1])

    def finalize(self):
        out = []
        XDL_RD = {2: 5, 4: 8, 8: 12, 16: 20}
        XDL_C = {2: 4, 4: 6, 8: 10, 16: 18}
        XDL_WAR = {2: 1, 4: 3, 8: 7, 16: 15}
        for ins in self.ins:
            if ins.label:
                out.append(ins)
                continue
            need = 0
            dist = 0
            isvalu = ins.kind in ('valu', 'trans')
            for p in reversed(out):
                if p.label:
                    continue
                if dist >= 20:
                    break
                req = 0
                pv = p.kind in ('valu', 'trans')
                if p.kind == 'mfma':
                    if ins.kind == 'mfma':
                        if p.dst & ins.srcab:
                            req = max(req, XDL_RD[p.passes])
                        if p.dst & ins.srcc:
                            if p.dst == ins.srcc and p.passes == ins.passes:
                                req = max(req, 2 if p.passes == 2 else 0)
                            else:
                                req = max(req, XDL_C[p.passes])
                        elif p.dst & ins.dst:
                            req = max(req, XDL_C[p.passes])
                    elif isvalu or ins.kind in ('vmem', 'ds'):
                        if p.dst & (ins.src | ins.dst):
                            req = max(req, XDL_RD[p.passes])
                        if isvalu and (p.srcc & ins.dst):
                            req = max(req, XDL_WAR[p.passes])
                if pv:
                    pvg = {r for r in p.dst if r[0] in 'va' and len(r[0]) == 1}
                    psg = {r for r in p.dst if r[0] in ('s', 'vcc')}
                    if ins.kind == 'mfma' and (pvg & ins.src):
                        req = max(req, 2)
                    if isvalu:
                        if p.kind == 'trans' and ins.kind != 'trans' and (pvg & ins.src):
                            req = max(req, 1)
                        if p.kind == 'trans' and ins.kind == 'trans' and (pvg & ins.src):
                            req = max(req, 1)
                        if ins.dpp and (pvg & ins.src):
                            req = max(req, 2)
                        if ins.mn.startswith('v_permlane') and (pvg & ins.src):
                            req = max(req, 2)
                        if ins.mn.startswith(('v_readlane', 'v_readfirstlane')) and (pvg & ins.src):
                            req = max(req, 1)
                        if psg & ins.src:
                            req = max(req, 4 if ins.mn.startswith(('v_readlane', 'v_writelane')) else 2)
                        if 'sdwa' in p.mn and (pvg & (ins.src | ins.dst)):
                            req = max(req, 1)
                    if ins.kind == 'vmem' and (psg & ins.src):
                        req = max(req, 5)
                    if ins.kind == 'salu' and (psg & ins.src):
                        req = max(req, 1)
                    if ins.mn.startswith('s_cbranch_vcc') and ('vcc', 0) in psg:
                        req = max(req, 5)
                if p.kind == 'salu' and ('m0', 0) in p.dst and ins.kind == 'vmem' and ('m0', 0) in ins.src:
                    req = max(req, 1)
                if p.wide_data and (p.wide_data & ins.dst):
                    req = max(req, 2)
                need = max(need, req - dist)
                dist += p.ws
            while need > 0:
                n = min(need, 16)
                out.append(Ins(f's_nop {n - 1}'))
                need -= n
            out.append(ins)
        self.out = out
        return out

    def text(self):
        lines = []
        for i in self.finalize():
            lines.append(i.text if i.label else '    ' + i.text)
        return '\n'.join(lines)
```

```python
import sys, struct
from asmlib import *

KNAME = 'recurrent_scan__sliding_local_dilated__dense_activation_gelu__prompt_kernel'
STAMPS = '--stamps' in sys.argv

XN_T = 0
ACT_T = 128 * 20 * 1024
ACT_MB = 74 * 1024
W_T = ACT_T + 128 * ACT_MB
WS_USED = W_T + 74 * 40 * 1024
STAMP_OFF = WS_USED
WS_REC = WS_USED + (256 * 4 * 64 if STAMPS else 0)
OOB = 0x40000000

RROW = 1056
SLOT = 16 * RROW
NSLOT = 8
HALO = NSLOT * SLOT
CNT = HALO + 20 * 1024
RS = 592
LDS_WO = 0
LDS_RED = 100 * 1024
LDS_TOTAL = 163840


def f32(x):
    return '0x%08x' % struct.unpack('<I', struct.pack('<f', x))[0]


S_WG = 2
SRD_X, SRD_B, SRD_WS, SRD_DBG, SRD_OUT, SRD_RT, SRD_B1, SRD_B2 = 4, 8, 12, 16, 20, 24, 28, 56
P_X, P_WQKV, P_WO, P_BX, P_W1, P_B1, P_W2, P_B2, P_OUT, P_DBG, P_WS = 32, 34, 36, 38, 40, 42, 44, 46, 48, 50, 52
S_WAVE, S_MT, S_TYPE, S_IDX, S_FB, S_PITCH, S_KSTR, S_START = 60, 61, 62, 63, 64, 65, 66, 67
S_T0, S_T1, S_T2, S_T3, S_T4, S_T5 = 68, 69, 70, 71, 72, 73
S_M0B, S_SOFF, S_M2, S_NT, S_SPIN = 74, 75, 76, 77, 78
S_C = 32
S_STAMP = 80

V_TID, V_LANE = 0, 1
V_DMA = 2
V_TR0, V_TR1 = 6, 7
V_TRH0, V_TRH1 = 8, 9
V_L16 = 10
V_L4 = 11
V_AOFF = 12
V_MASK = 13
V_POLL = 14
V_X = 15
ACC = 16
HACC = 136
WIN = 148
HX = 180
T = 188

k = K()
I = k.I
nstamp = [0]


def stamp(idx):
    if STAMPS:
        I(f's_memrealtime {s(S_STAMP + 2 * idx, 2)}')


def srd(base, plo, nbytes):
    I(f's_mov_b32 {s(base)}, {s(plo)}')
    I(f's_mov_b32 {s(base + 1)}, {s(plo + 1)}')
    I(f's_mov_b32 {s(base + 2)}, {nbytes}')
    I(f's_mov_b32 {s(base + 3)}, 0x00020000')


def csel(dst, x, y):
    I(f's_mov_b32 {s(dst)}, {y}')
    I(f's_cselect_b32 {s(dst)}, {x}, {s(dst)}')


def poll(maskv, name):
    lab = k.newlabel('L_poll_' + name)
    done = k.newlabel('L_polled_' + name)
    I(f's_mov_b32 {s(S_SPIN)}, 0')
    k.label(lab)
    I(f'buffer_load_dword {v(V_POLL)}, {v(V_L4)}, {s(SRD_DBG, 4)}, 0 offen sc1')
    k.wait_all(vm=True, lg=False)
    I(f'v_and_b32 {v(V_POLL)}, {v(V_POLL)}, {v(maskv)}')
    I(f'v_cmp_ne_u32 vcc, {v(V_POLL)}, {v(maskv)}')
    I(f's_add_u32 {s(S_SPIN)}, {s(S_SPIN)}, 1')
    I(f's_cbranch_vccz {done}')
    I(f's_sleep 1')
    I(f's_cmp_lt_u32 {s(S_SPIN)}, 0x40000')
    I(f's_cbranch_scc1 {lab}')
    k.label(done)


def flag_store(val):
    I(f'v_mov_b32 {v(T)}, {val}')
    I(f'v_mov_b32 {v(T + 1)}, {s(S_FB)}')
    I(f's_mov_b64 exec, 1')
    I(f'buffer_store_byte {v(T)}, {v(T + 1)}, {s(SRD_DBG, 4)}, 0 offen sc1')
    I(f's_mov_b64 exec, -1')


def dma_group(m0_expr_fn, soff_reg, tag):
    m0_expr_fn()
    for j in range(4):
        I(f'buffer_load_dwordx4 {v(V_DMA + j)}, {s(SRD_B, 4)}, {s(soff_reg)} offen offset:{j * RROW} lds', tag=tag)


def bf16r(dst, src):
    I(f'v_cvt_pk_bf16_f32 {v(dst)}, {v(src)}, {v(src)}')
    I(f'v_lshlrev_b32 {v(dst)}, 16, {v(dst)}')


def row16_sum(r):
    for sh in (8, 4, 2, 1):
        I(f'v_add_f32_dpp {v(r)}, {v(r)}, {v(r)} row_ror:{sh} row_mask:0xf bank_mask:0xf')


I(f's_cmp_ge_u32 {s(S_WG)}, 256')
I('s_cbranch_scc1 L_end')
I(f's_load_dwordx16 {s(32, 16)}, s[0:1], 0')
I(f's_load_dwordx4 {s(48, 4)}, s[0:1], 64')
I(f's_load_dwordx2 {s(52, 2)}, s[0:1], 80')
stamp(0)
I(f'v_lshrrev_b32 {v(T)}, 6, v0')
I(f'v_and_b32 {v(V_LANE)}, 63, v0')
I(f'v_readfirstlane_b32 {s(S_WAVE)}, {v(T)}')
I(f's_and_b32 {s(S_T0)}, {s(S_WG)}, 7')
I(f's_lshr_b32 {s(S_T1)}, {s(S_WG)}, 3')
I(f's_and_b32 {s(S_MT)}, {s(S_T0)}, 1')
I(f's_lshl_b32 {s(S_MT)}, {s(S_MT)}, 3')
I(f's_and_b32 {s(S_T2)}, {s(S_T1)}, 7')
I(f's_add_u32 {s(S_MT)}, {s(S_MT)}, {s(S_T2)}')
I(f's_lshr_b32 {s(S_T2)}, {s(S_T1)}, 3')
I(f's_and_b32 {s(S_TYPE)}, {s(S_T2)}, 1')
I(f's_lshr_b32 {s(S_T2)}, {s(S_T2)}, 1')
I(f's_and_b32 {s(S_IDX)}, {s(S_T0)}, 6')
I(f's_add_u32 {s(S_IDX)}, {s(S_IDX)}, {s(S_T2)}')
I(f's_lshl_b32 {s(S_FB)}, {s(S_MT)}, 4')
I(f's_lshl_b32 {s(S_T2)}, {s(S_TYPE)}, 3')
I(f's_add_u32 {s(S_FB)}, {s(S_FB)}, {s(S_T2)}')
I(f's_add_u32 {s(S_FB)}, {s(S_FB)}, {s(S_IDX)}')
I(f's_lshl_b32 {s(S_M2)}, {s(S_T0)}, 2')
I(f's_and_b32 {s(S_T2)}, {s(S_T1)}, 3')
I(f's_add_u32 {s(S_M2)}, {s(S_M2)}, {s(S_T2)}')
I(f's_lshr_b32 {s(S_NT)}, {s(S_T1)}, 2')
I(f's_mul_i32 {s(S_START)}, {s(S_IDX)}, 7')
I(f's_min_u32 {s(S_START)}, {s(S_START)}, 47')
I(f's_cmp_eq_u32 {s(S_TYPE)}, 0')
csel(S_PITCH, 3840, 3456)
I(f's_lshl_b32 {s(S_KSTR)}, {s(S_PITCH)}, 5')
I(f'v_lshlrev_b32 {v(V_L16)}, 4, {v(V_LANE)}')
I(f'v_lshlrev_b32 {v(V_L4)}, 2, {v(V_LANE)}')
I(f'v_mov_b32 {v(T)}, 0')
I(f'v_mov_b32 {v(T + 1)}, {CNT}')
I(f'ds_write_b32 {v(T + 1)}, {v(T)}')
k.wait_all(vm=False, lg=True)
I('s_barrier')
srd(SRD_X, P_X, 2048 * 1280)
srd(SRD_WS, P_WS, WS_REC)
srd(SRD_DBG, P_DBG, 256)
srd(SRD_OUT, P_OUT, 2048 * 1280)
srd(SRD_B1, P_B1, 1728 * 2)
srd(SRD_B2, P_B2, 640 * 2)
I(f's_cmp_eq_u32 {s(S_TYPE)}, 0')
I(f's_cselect_b32 {s(SRD_B)}, {s(P_WQKV)}, {s(P_W1)}')
I(f's_cselect_b32 {s(SRD_B + 1)}, {s(P_WQKV + 1)}, {s(P_W1 + 1)}')
csel(SRD_B + 2, 640 * 3840, 640 * 3456)
I(f's_mov_b32 {s(SRD_B + 3)}, 0x00020000')
I(f's_lshl_b32 {s(S_T0)}, {s(S_WG)}, 1')
I(f's_and_b32 {s(S_T1)}, {s(S_WAVE)}, 1')
I(f's_add_u32 {s(S_T0)}, {s(S_T0)}, {s(S_T1)}')
I(f's_mul_i32 {s(S_T1)}, {s(S_T0)}, 13108')
I(f's_lshr_b32 {s(S_T1)}, {s(S_T1)}, 16')
I(f's_mul_i32 {s(S_T2)}, {s(S_T1)}, 5')
I(f's_sub_u32 {s(S_T2)}, {s(S_T0)}, {s(S_T2)}')
I(f's_cmp_lt_u32 {s(S_T1)}, 20')
I(f's_cselect_b32 {s(SRD_RT)}, {s(P_WO)}, {s(P_W2)}')
I(f's_cselect_b32 {s(SRD_RT + 1)}, {s(P_WO + 1)}, {s(P_W2 + 1)}')
csel(SRD_RT + 2, 640 * 1280, 1728 * 1280)
I(f's_mov_b32 {s(SRD_RT + 3)}, 0x00020000')
assert all((u * 13108) >> 16 == u // 5 for u in range(512))

I(f's_cmp_ge_u32 {s(S_WAVE)}, 2')
I('s_cbranch_scc1 L_pro_dma')

st0 = k.state()
XR = T + 8
XF = ACC
I(f'v_lshrrev_b32 {v(T)}, 4, {v(V_LANE)}')
I(f'v_and_b32 {v(T + 1)}, 15, {v(V_LANE)}')
I(f's_lshl_b32 {s(S_T3)}, {s(S_FB)}, 3')
I(f's_lshl_b32 {s(S_T4)}, {s(S_WAVE)}, 2')
I(f's_add_u32 {s(S_T3)}, {s(S_T3)}, {s(S_T4)}')
I(f'v_add_u32 {v(T)}, {s(S_T3)}, {v(T)}')
I(f'v_mul_u32_u24 {v(T + 2)}, 1280, {v(T)}')
I(f'v_lshl_add_u32 {v(T + 2)}, {v(T + 1)}, 4, {v(T + 2)}')
for i in range(5):
    I(f'buffer_load_dwordx4 {v(XR + 4 * i, 4)}, {v(T + 2)}, {s(SRD_X, 4)}, 0 offen offset:{256 * i}')
I(f'v_lshrrev_b32 {v(T + 3)}, 4, {v(T)}')
I(f'v_mul_u32_u24 {v(T + 3)}, 20480, {v(T + 3)}')
I(f'v_lshrrev_b32 {v(T + 4)}, 2, {v(T + 1)}')
I(f'v_lshl_add_u32 {v(T + 3)}, {v(T + 4)}, 10, {v(T + 3)}')
I(f'v_and_b32 {v(T + 4)}, 15, {v(T)}')
I(f'v_lshl_add_u32 {v(T + 3)}, {v(T + 4)}, 6, {v(T + 3)}')
I(f'v_and_b32 {v(T + 4)}, 3, {v(T + 1)}')
I(f'v_lshl_add_u32 {v(T + 3)}, {v(T + 4)}, 4, {v(T + 3)}')
I(f's_mov_b32 {s(S_T3)}, 0xffff0000')
SUM = T + 4
for i in range(20):
    I(f'v_lshlrev_b32 {v(XF + 2 * i)}, 16, {v(XR + i)}')
    I(f'v_and_b32 {v(XF + 2 * i + 1)}, {s(S_T3)}, {v(XR + i)}')
    if i == 1:
        I(f'v_pk_add_f32 {v(SUM, 2)}, {v(XF, 2)}, {v(XF + 2, 2)}')
    elif i > 1:
        I(f'v_pk_add_f32 {v(SUM, 2)}, {v(SUM, 2)}, {v(XF + 2 * i, 2)}')
I(f'v_add_f32 {v(SUM)}, {v(SUM)}, {v(SUM + 1)}')
row16_sum(SUM)
MEAN = T + 6
I(f'v_mul_f32 {v(MEAN)}, {f32(1.0 / 640)}, {v(SUM)}')
I(f'v_mov_b32 {v(MEAN + 1)}, {v(MEAN)}')
SQ = T + 4
DV = T + 28
for i in range(20):
    d = DV + 2 * (i & 1)
    I(f'v_pk_add_f32 {v(d, 2)}, {v(XF + 2 * i, 2)}, {v(MEAN, 2)} neg_lo:[0,1] neg_hi:[0,1]')
    if i == 0:
        I(f'v_pk_mul_f32 {v(SQ, 2)}, {v(d, 2)}, {v(d, 2)}')
    else:
        I(f'v_pk_fma_f32 {v(SQ, 2)}, {v(d, 2)}, {v(d, 2)}, {v(SQ, 2)}')
I(f'v_add_f32 {v(SQ)}, {v(SQ)}, {v(SQ + 1)}')
row16_sum(SQ)
I(f'v_mul_f32 {v(SQ)}, {f32(1.0 / 640)}, {v(SQ)}')
bf16r(SQ, SQ)
I(f'v_add_f32 {v(SQ)}, {f32(1e-5)}, {v(SQ)}')
bf16r(SQ, SQ)
I(f'v_sqrt_f32 {v(SQ)}, {v(SQ)}')
bf16r(SQ, SQ)
I(f'v_rcp_f32 {v(SQ + 1)}, {v(SQ)}')
I(f'v_fma_f32 {v(SQ)}, -{v(SQ)}, {v(SQ + 1)}, 1.0')
I(f'v_fma_f32 {v(SQ)}, {v(SQ)}, {v(SQ + 1)}, {v(SQ + 1)}')
I(f'v_mov_b32 {v(SQ + 1)}, {v(SQ)}')
bf16r(MEAN, MEAN)
I(f'v_mov_b32 {v(MEAN + 1)}, {v(MEAN)}')
for i in range(20):
    x2 = XF + 2 * i
    I(f'v_pk_add_f32 {v(x2, 2)}, {v(x2, 2)}, {v(MEAN, 2)} neg_lo:[0,1] neg_hi:[0,1]')
    I(f'v_cvt_pk_bf16_f32 {v(XR + i)}, {v(x2)}, {v(x2 + 1)}')
    I(f'v_lshlrev_b32 {v(x2)}, 16, {v(XR + i)}')
    I(f'v_and_b32 {v(x2 + 1)}, {s(S_T3)}, {v(XR + i)}')
    I(f'v_pk_mul_f32 {v(x2, 2)}, {v(x2, 2)}, {v(SQ, 2)}')
    I(f'v_cvt_pk_bf16_f32 {v(XR + i)}, {v(x2)}, {v(x2 + 1)}')
    if i % 4 == 3:
        ii = i // 4
        I(f's_mov_b32 {s(S_T4)}, {XN_T + 4096 * ii}')
        I(f'buffer_store_dwordx4 {v(XR + 4 * ii, 4)}, {v(T + 3)}, {s(SRD_WS, 4)}, {s(S_T4)} offen sc1')
stamp(1)
k.wait_all()
I(f'v_mov_b32 {v(T)}, 1')
I(f'v_mov_b32 {v(T + 1)}, {CNT}')
I('s_mov_b64 exec, 1')
I(f'ds_add_rtn_u32 {v(T + 2)}, {v(T + 1)}, {v(T)}')
I('s_mov_b64 exec, -1')
I(f'v_readfirstlane_b32 {s(S_T3)}, {v(T + 2)}')
I(f's_cmp_eq_u32 {s(S_T3)}, 1')
I('s_cbranch_scc0 L_pro_join')
flag_store(1)
I('s_branch L_pro_join')


def dma_addr_setup():
    c, hf, sg = T, T + 1, T + 2
    I(f'v_and_b32 {v(c)}, 31, {v(V_LANE)}')
    I(f'v_lshrrev_b32 {v(hf)}, 5, {v(V_LANE)}')
    I(f's_cmp_eq_u32 {s(S_TYPE)}, 0')
    I(f's_cselect_b32 {s(S_T3)}, 29, 27')
    I(f's_cselect_b32 {s(S_T4)}, 1120, 0')
    I(f's_mul_i32 {s(S_T5)}, {s(S_IDX)}, 160')
    I(f's_lshl_b32 {s(S_SOFF)}, {s(S_START)}, 6')
    I(f's_cmp_eq_u32 {s(S_TYPE)}, 0')
    I(f's_cselect_b32 {s(S_T5)}, {s(S_T5)}, {s(S_SOFF)}')
    I(f'v_min_u32 {v(c)}, {s(S_T3)}, {v(c)}')
    I(f'v_mul_u32_u24 {v(sg)}, 205, {v(c)}')
    I(f'v_lshrrev_b32 {v(sg)}, 11, {v(sg)}')
    I(f'v_mul_u32_u24 {v(sg)}, {s(S_T4)}, {v(sg)}')
    I(f'v_lshl_add_u32 {v(sg)}, {v(c)}, 4, {v(sg)}')
    I(f'v_add_u32 {v(sg)}, {s(S_T5)}, {v(sg)}')
    I(f's_lshl_b32 {s(S_T3)}, {s(S_PITCH)}, 2')
    I(f'v_mad_u32_u24 {v(V_DMA)}, {v(hf)}, {s(S_T3)}, {v(sg)}')
    I(f's_sub_u32 {s(S_T3)}, {s(S_PITCH)}, {RROW}')
    for j in range(1, 4):
        I(f'v_add_u32 {v(V_DMA + j)}, {s(S_T3)}, {v(V_DMA + j - 1)}')


assert all((c * 205) >> 11 == c // 10 for c in range(32))

k.set_state(st0)
k.label('L_pro_dma')
RT_KS, RT_CQ, RT_A, RT_B, RT_K0, RT_SCR = 32, 33, 34, 35, 36, 37
I(f's_mov_b32 {s(RT_KS)}, {s(S_T1)}')
I(f's_mov_b32 {s(RT_CQ)}, {s(S_T2)}')
I(f's_cmp_lt_u32 {s(RT_KS)}, 20')
csel(RT_A, 8 * 1280, 4 * 1280)
csel(RT_B, 4 * 1280, 16 * 1280)
I(f's_cselect_b32 {s(RT_K0)}, 0, 20')
I(f's_sub_u32 {s(RT_K0)}, {s(RT_KS)}, {s(RT_K0)}')
I(f's_mul_i32 {s(RT_K0)}, {s(RT_K0)}, {32 * 1280}')
I(f's_lshl_b32 {s(S_T3)}, {s(RT_CQ)}, 8')
I(f's_add_u32 {s(RT_K0)}, {s(RT_K0)}, {s(S_T3)}')
I(f's_and_b32 {s(S_T3)}, {s(S_WAVE)}, 1')
I(f's_mul_i32 {s(RT_SCR)}, {s(S_T3)}, {8 * RROW}')
I(f's_add_u32 {s(RT_SCR)}, {s(RT_SCR)}, {7 * SLOT}')
RTV = T + 8
I(f'v_lshrrev_b32 {v(RTV)}, 4, {v(V_LANE)}')
I(f'v_mul_u32_u24 {v(RTV)}, 1280, {v(RTV)}')
I(f'v_and_b32 {v(RTV + 1)}, 15, {v(V_LANE)}')
I(f'v_lshl_add_u32 {v(RTV)}, {v(RTV + 1)}, 4, {v(RTV)}')
for t in range(8):
    hf, g = t >> 2, t & 3
    I(f's_mul_i32 {s(S_T3)}, {s(RT_A)}, {g}')
    I(f's_add_u32 {s(S_T3)}, {s(S_T3)}, {s(RT_K0)}')
    if hf:
        I(f's_add_u32 {s(S_T3)}, {s(S_T3)}, {s(RT_B)}')
    I(f's_add_u32 m0, {s(RT_SCR)}, {1024 * t}')
    I(f'buffer_load_dwordx4 {v(RTV)}, {s(SRD_RT, 4)}, {s(S_T3)} offen lds', tag='rt')
dma_addr_setup()
VW_M0, VW_SO = 38, 40
I(f's_and_b32 {s(S_T3)}, {s(S_WAVE)}, 1')
I(f's_mul_i32 {s(VW_M0)}, {s(S_T3)}, {8 * RROW}')
I(f's_add_u32 {s(VW_M0 + 1)}, {s(VW_M0)}, {4 * RROW}')
I(f's_lshl_b32 {s(S_T4)}, {s(S_PITCH)}, 4')
I(f's_mul_i32 {s(VW_SO)}, {s(S_T3)}, {s(S_T4)}')
I(f's_lshl_b32 {s(S_T4)}, {s(S_PITCH)}, 3')
I(f's_add_u32 {s(VW_SO + 1)}, {s(VW_SO)}, {s(S_T4)}')


def pro_fill(sl):
    for h in range(2):
        dma_group(lambda: I(f's_add_u32 m0, {s(VW_M0 + h)}, {sl * SLOT}'), VW_SO + h, 'ring')
        I(f's_add_u32 {s(VW_SO + h)}, {s(VW_SO + h)}, {s(S_KSTR)}')


for sl in range(6):
    pro_fill(sl)
I(f'v_lshrrev_b32 {v(RTV)}, 2, {v(V_LANE)}')
I(f'v_lshlrev_b32 {v(RTV)}, 8, {v(RTV)}')
I(f'v_and_b32 {v(RTV + 1)}, 3, {v(V_LANE)}')
I(f'v_lshl_add_u32 {v(RTV)}, {v(RTV + 1)}, 3, {v(RTV)}')
I(f'v_add_u32 {v(RTV)}, {s(RT_SCR)}, {v(RTV)}')
I(f's_mul_i32 {s(S_T3)}, {s(RT_KS)}, 40960')
I(f's_lshl_b32 {s(S_T4)}, {s(RT_CQ)}, 13')
I(f's_add_u32 {s(S_T3)}, {s(S_T3)}, {s(S_T4)}')
I(f's_add_u32 {s(S_T3)}, {s(S_T3)}, {W_T}')
I(f's_cmp_lt_u32 {s(RT_KS)}, 74')
I(f's_cselect_b32 {s(S_T3)}, {s(S_T3)}, {OOB}')
I(f's_add_u32 {s(S_T4)}, {s(S_T3)}, 4096')
k.wait_vm_tag('rt')
RF = ACC
for nb in range(8):
    I(f'ds_read_b64_tr_b16 {v(RF + 4 * nb, 2)}, {v(RTV)} offset:{32 * nb}')
    I(f'ds_read_b64_tr_b16 {v(RF + 4 * nb + 2, 2)}, {v(RTV)} offset:{32 * nb + 4096}')
for nb in range(8):
    I(f'buffer_store_dwordx4 {v(RF + 4 * nb, 4)}, {v(V_L16)}, {s(SRD_WS, 4)}, {s(S_T3 if nb < 4 else S_T4)} offen offset:{1024 * (nb & 3)} sc1')
k.wait_all(vm=False, lg=True)
pro_fill(6)
pro_fill(7)
stamp(1)
k.wait_all(vm=False, lg=True)

k.label('L_pro_join')
k.vmq = [(set(), 'unknown')]
k.lgq = []
I('s_nop 4')
dma_addr_setup()
I(f's_mul_i32 {s(S_M0B)}, {s(S_WAVE)}, {4 * RROW}')
I(f's_lshl_b32 {s(S_T3)}, {s(S_PITCH)}, 3')
I(f's_mul_i32 {s(S_SOFF)}, {s(S_WAVE)}, {s(S_T3)}')
I(f's_lshl_b32 {s(S_T3)}, {s(S_KSTR)}, 3')
I(f's_add_u32 {s(S_SOFF)}, {s(S_SOFF)}, {s(S_T3)}')
I(f'v_lshrrev_b32 {v(T)}, 2, {v(V_LANE)}')
I(f'v_mul_u32_u24 {v(V_TR0)}, {RROW}, {v(T)}')
I(f'v_and_b32 {v(T)}, 3, {v(V_LANE)}')
I(f'v_lshl_add_u32 {v(V_TR0)}, {v(T)}, 3, {v(V_TR0)}')
I(f'v_add_u32 {v(V_TR1)}, {4 * SLOT}, {v(V_TR0)}')
S_HB = S_C
I(f's_mul_i32 {s(S_HB)}, {s(S_WAVE)}, 3')
I(f's_min_u32 {s(S_HB)}, {s(S_HB)}, 7')
I(f's_add_u32 {s(S_HB)}, {s(S_HB)}, 5')
I(f's_lshl_b32 {s(S_T3)}, {s(S_HB)}, 5')
I(f'v_add_u32 {v(V_TRH0)}, {s(S_T3)}, {v(V_TR0)}')
I(f'v_add_u32 {v(V_TRH1)}, {s(S_T3)}, {v(V_TR1)}')
I(f'v_and_b32 {v(T)}, 15, {v(V_LANE)}')
I(f'v_lshlrev_b32 {v(V_AOFF)}, 6, {v(T)}')
I(f'v_lshrrev_b32 {v(T)}, 4, {v(V_LANE)}')
I(f'v_lshl_add_u32 {v(V_AOFF)}, {v(T)}, 4, {v(V_AOFF)}')
S_AB = S_C + 1
I(f's_lshl_b32 {s(S_AB)}, {s(S_MT)}, 3')
I(f's_lshl_b32 {s(S_T3)}, {s(S_WAVE)}, 1')
I(f's_add_u32 {s(S_AB)}, {s(S_AB)}, {s(S_T3)}')
S_MB0 = S_C + 2
I(f's_mov_b32 {s(S_MB0)}, {s(S_AB)}')
I(f's_mul_i32 {s(S_AB)}, {s(S_AB)}, 20480')
I(f's_lshl_b32 {s(S_T3)}, {s(S_MT)}, 2')
I(f'v_subrev_u32 {v(T)}, {s(S_T3)}, {v(V_LANE)}')
I(f'v_mov_b32 {v(V_MASK)}, 0')
I(f'v_mov_b32 {v(T + 1)}, 0x01010101')
I(f'v_cmp_gt_u32 vcc, 4, {v(T)}')
I(f'v_cndmask_b32 {v(V_MASK)}, {v(V_MASK)}, {v(T + 1)}, vcc')
I(f's_cmp_eq_u32 {s(S_TYPE)}, 0')
I(f's_cselect_b32 {s(S_T3)}, 0x01010000, 0')
I(f'v_mov_b32 {v(T + 1)}, {s(S_T3)}')
I(f'v_cmp_eq_u32 vcc, -1, {v(T)}')
I(f'v_cndmask_b32 {v(V_MASK)}, {v(V_MASK)}, {v(T + 1)}, vcc')

I(f's_cmp_eq_u32 {s(S_TYPE)}, 1')
I('s_cbranch_scc1 L_ffn')
st_join = k.state()


def load_A():
    for ks in range(20):
        for rb in range(2):
            off = rb * 20480 + ks * 1024
            I(f's_add_u32 {s(S_T3)}, {s(S_AB)}, {XN_T + (off & ~4095)}')
            I(f'buffer_load_dwordx4 {a((ks * 2 + rb) * 4, 4)}, {v(V_AOFF)}, {s(SRD_WS, 4)}, {s(S_T3)} offen offset:{off & 4095} sc1')


def mainloop(ncb, halo, first_c_zero):
    NF = ncb + (3 if halo else 0)
    LA = 6
    items = [(ks, j) for ks in range(20) for j in range(NF)]
    N = len(items)

    def read(n):
        ks, j = items[n]
        sl = ks % NSLOT
        w = WIN + 4 * (n % 8)
        if j < ncb:
            base = V_TR0 if sl < 4 else V_TR1
            off = (sl % 4) * SLOT + 32 * j
        else:
            base = V_TRH0 if sl < 4 else V_TRH1
            off = (sl % 4) * SLOT + 32 * (j - ncb)
        if j == 0:
            if ks >= 2:
                if ks >= 8:
                    k.wait_vm_tag(('dma', ks))
                I('s_barrier')
                kn = ks + 6
                if kn < 20:
                    dma_group(lambda: I(f's_add_u32 m0, {s(S_M0B)}, {(kn % NSLOT) * SLOT}'), S_SOFF, ('dma', kn))
                    I(f's_add_u32 {s(S_SOFF)}, {s(S_SOFF)}, {s(S_KSTR)}')
                if ks == 2:
                    lab = k.newlabel('L_nf')
                    I(f's_cmp_eq_u32 {s(S_WAVE)}, 0')
                    I(f's_cbranch_scc0 {lab}')
                    flag_store(3)
                    k.vmq.pop()
                    k.label(lab)
        I(f'ds_read_b64_tr_b16 {v(w, 2)}, {v(base)} offset:{off}')
        I(f'ds_read_b64_tr_b16 {v(w + 2, 2)}, {v(base)} offset:{off + 512}')
        if halo and j == ncb:
            I(f'ds_read_b128 {v(HX + 4 * (ks & 1), 4)}, {v(V_X)} offset:{ks * 1024}')

    for n in range(min(LA, N)):
        read(n)
    for n in range(N):
        if n + LA < N:
            read(n + LA)
        ks, j = items[n]
        w = WIN + 4 * (n % 8)
        if j < ncb:
            for rb in range(2):
                d = ACC + (j * 2 + rb) * 4
                c = '0' if (ks == 0 and first_c_zero) else v(d, 4)
                I(f'v_mfma_f32_16x16x32_bf16 {v(d, 4)}, {v(w, 4)}, {a((ks * 2 + rb) * 4, 4)}, {c}')
        else:
            d = HACC + (j - ncb) * 4
            c = '0' if ks == 0 else v(d, 4)
            I(f'v_mfma_f32_16x16x32_bf16 {v(d, 4)}, {v(w, 4)}, {v(HX + 4 * (ks & 1), 4)}, {c}')


def publish():
    k.wait_all()
    I('s_barrier')
    lab = k.newlabel('L_np')
    I(f's_cmp_eq_u32 {s(S_WAVE)}, 0')
    I(f's_cbranch_scc0 {lab}')
    flag_store(7)
    k.vmq.pop()
    k.label(lab)


I(f'v_add_u32 {v(V_X)}, {HALO}, {v(V_L16)}')
poll(V_MASK, 'ln')
stamp(2)
I(f's_lshl_b32 {s(S_T3)}, {s(S_MT)}, 3')
I(f's_sub_u32 {s(S_T3)}, {s(S_T3)}, 1')
I(f's_mul_i32 {s(S_T3)}, {s(S_T3)}, 20480')
I(f's_mul_i32 {s(S_T4)}, {s(S_WAVE)}, 5120')
I(f's_add_u32 {s(S_T3)}, {s(S_T3)}, {s(S_T4)}')
I(f's_cmp_eq_u32 {s(S_MT)}, 0')
I(f's_cselect_b32 {s(S_T3)}, {OOB}, {s(S_T3)}')
I(f's_add_u32 {s(S_T5)}, {s(S_T3)}, 4096')
for i in range(5):
    I(f'buffer_load_dwordx4 {v(T + 8 + 4 * i, 4)}, {v(V_AOFF)}, {s(SRD_WS, 4)}, {s(S_T3 if i < 4 else S_T5)} offen offset:{(i & 3) * 1024} sc1')
load_A()
I(f'v_add_u32 {v(T)}, {s(S_T4)}, {v(V_X)}')
for i in range(5):
    I(f'ds_write_b128 {v(T)}, {v(T + 8 + 4 * i, 4)} offset:{i * 1024}')
k.wait_all(vm=False, lg=True)
I('s_barrier')
stamp(3)
mainloop(15, True, True)
stamp(4)
SA = T
SH = T + 5
tm, tg, tn, tq = T + 8, T + 9, T + 10, T + 11
I(f'v_and_b32 {v(tm)}, 15, {v(V_LANE)}')
I(f'v_lshrrev_b32 {v(tg)}, 4, {v(V_LANE)}')
I(f's_lshl_b32 {s(S_T3)}, {s(S_WAVE)}, 5')
I(f's_add_u32 {s(S_T3)}, {s(S_T3)}, 16')
I(f'v_add_u32 {v(tq)}, {s(S_T3)}, {v(tm)}')
I(f'v_mul_u32_u24 {v(tq)}, {RS}, {v(tq)}')
for cb in range(5):
    I(f'v_lshl_add_u32 {v(tn)}, {v(tg)}, 2, {16 * cb}')
    I(f'v_mul_u32_u24 {v(SA + cb)}, 205, {v(tn)}')
    I(f'v_lshrrev_b32 {v(SA + cb)}, 12, {v(SA + cb)}')
    I(f'v_lshl_add_u32 {v(SA + cb)}, {v(SA + cb)}, 2, {v(tn)}')
    I(f'v_lshl_add_u32 {v(SA + cb)}, {v(SA + cb)}, 1, {v(tq)}')
assert all((n * 205) >> 12 == n // 20 for n in range(0, 240, 4))
I(f'v_mul_u32_u24 {v(tq)}, {RS}, {v(tm)}')
for j in range(3):
    I(f's_add_u32 {s(S_T3)}, {s(S_HB)}, {j}')
    I(f's_lshl_b32 {s(S_T3)}, {s(S_T3)}, 4')
    I(f'v_lshl_add_u32 {v(tn)}, {v(tg)}, 2, {s(S_T3)}')
    I(f'v_mul_u32_u24 {v(SH + j)}, 205, {v(tn)}')
    I(f'v_lshrrev_b32 {v(SH + j)}, 12, {v(SH + j)}')
    I(f'v_lshl_add_u32 {v(SH + j)}, {v(SH + j)}, 2, {v(tn)}')
    I(f'v_lshl_add_u32 {v(SH + j)}, {v(SH + j)}, 1, {v(tq)}')
k.wait_all(vm=False, lg=True)
I('s_barrier')
PK = T + 12
n = 0
for cbg in range(15):
    sec, cb = divmod(cbg, 5)
    for rb in range(2):
        d = ACC + (cbg * 2 + rb) * 4
        p = PK + 2 * (n % 4)
        n += 1
        I(f'v_cvt_pk_bf16_f32 {v(p)}, {v(d)}, {v(d + 1)}')
        I(f'v_cvt_pk_bf16_f32 {v(p + 1)}, {v(d + 2)}, {v(d + 3)}')
        I(f'ds_write_b64 {v(SA + cb)}, {v(p, 2)} offset:{sec * 192 + rb * 16 * RS}')
for j in range(3):
    d = HACC + 4 * j
    p = PK + 2 * (n % 4)
    n += 1
    I(f'v_cvt_pk_bf16_f32 {v(p)}, {v(d)}, {v(d + 1)}')
    I(f'v_cvt_pk_bf16_f32 {v(p + 1)}, {v(d + 2)}, {v(d + 3)}')
    I(f'ds_write_b64 {v(SH + j)}, {v(p, 2)}')
VA, VB, VO, K2M0, K2M1 = T, T + 1, T + 2, T + 3, T + 4
t1, t2, t3 = T + 8, T + 9, T + 10
I(f's_mul_i32 {s(S_T3)}, {s(S_WAVE)}, 48')
I(f'v_and_b32 {v(t1)}, 0x38, {v(V_LANE)}')
I(f'v_bfe_u32 {v(t2)}, {v(V_LANE)}, 2, 1')
I(f'v_add_u32 {v(t1)}, {v(t1)}, {v(t2)}')
I(f'v_and_b32 {v(t2)}, 3, {v(V_LANE)}')
I(f'v_lshl_add_u32 {v(t1)}, {v(t2)}, 1, {v(t1)}')
I(f'v_mul_u32_u24 {v(VA)}, {RS}, {v(t1)}')
I(f'v_add_u32 {v(VA)}, {s(S_T3)}, {v(VA)}')
I(f'v_lshrrev_b32 {v(t3)}, 4, {v(t1)}')
I(f'v_mul_u32_u24 {v(VO)}, {ACT_MB}, {v(t3)}')
I(f'v_and_b32 {v(t3)}, 15, {v(t1)}')
I(f'v_lshl_add_u32 {v(VO)}, {v(t3)}, 4, {v(VO)}')
I(f'v_mov_b32 {v(K2M0)}, 0xffff')
I(f'v_cmp_le_u32 vcc, 1, {v(t2)}')
I(f'v_cndmask_b32 {v(K2M0)}, {v(K2M0)}, -1, vcc')
I(f'v_mov_b32 {v(K2M1)}, 0')
I(f'v_mov_b32 {v(t3)}, 0xffff')
I(f'v_cmp_le_u32 vcc, 2, {v(t2)}')
I(f'v_cndmask_b32 {v(K2M1)}, {v(K2M1)}, {v(t3)}, vcc')
I(f'v_cmp_le_u32 vcc, 3, {v(t2)}')
I(f'v_cndmask_b32 {v(K2M1)}, {v(K2M1)}, -1, vcc')
I(f'v_lshrrev_b32 {v(t1)}, 4, {v(V_LANE)}')
I(f'v_lshlrev_b32 {v(t1)}, 4, {v(t1)}')
I(f'v_bfe_u32 {v(t2)}, {v(V_LANE)}, 1, 1')
I(f'v_lshl_add_u32 {v(t1)}, {v(t2)}, 3, {v(t1)}')
I(f'v_and_b32 {v(t2)}, 1, {v(V_LANE)}')
I(f'v_add_u32 {v(t1)}, {v(t1)}, {v(t2)}')
I(f'v_bfe_u32 {v(t2)}, {v(V_LANE)}, 2, 2')
I(f'v_lshl_add_u32 {v(t1)}, {v(t2)}, 1, {v(t1)}')
I(f'v_mul_u32_u24 {v(VB)}, {RS}, {v(t1)}')
I(f'v_add_u32 {v(VB)}, {s(S_T3)}, {v(VB)}')
M1, M2, M3, INV1, INV01, INV02, INV03, SC_HI, SC_SCALE, SC_L2E, S_OB = 36, 38, 40, 42, 44, 46, 48, 50, 52, 54, 35
for reg, pat in ((M1, 0xeeeeeeee), (M2, 0xcccccccc), (M3, 0x88888888)):
    I(f's_mov_b32 {s(reg)}, {hex(pat)}')
    I(f's_mov_b32 {s(reg + 1)}, {hex(pat)}')
I(f's_cmp_eq_u32 {s(S_MT)}, 0')
I(f's_cselect_b32 {s(INV1)}, 0xff, 0')
I(f's_cselect_b32 {s(INV01)}, 0x1111, 0')
I(f's_cselect_b32 {s(INV02)}, 0x3333, 0')
I(f's_cselect_b32 {s(INV03)}, 0x7777, 0')
for reg in (INV1, INV01, INV02, INV03):
    I(f's_mov_b32 {s(reg + 1)}, 0')
I(f's_mov_b32 {s(SC_HI)}, 0xffff0000')
I(f's_mov_b32 {s(SC_SCALE)}, {f32(20 ** -0.5)}')
I(f's_mov_b32 {s(SC_SCALE + 1)}, {f32(20 ** -0.5)}')
I(f's_mov_b32 {s(SC_L2E)}, {f32(1.4426950408889634)}')
I(f's_mul_i32 {s(S_OB)}, {s(S_MT)}, {8 * ACT_MB}')
I(f's_add_u32 {s(S_OB)}, {s(S_OB)}, {ACT_T}')
I(f's_mul_i32 {s(S_T3)}, {s(S_IDX)}, 2560')
I(f's_add_u32 {s(S_OB)}, {s(S_OB)}, {s(S_T3)}')
I(f's_lshr_b32 {s(S_T3)}, {s(S_WAVE)}, 1')
I(f's_mul_i32 {s(S_T3)}, {s(S_T3)}, 1280')
I(f's_add_u32 {s(S_OB)}, {s(S_OB)}, {s(S_T3)}')
k.wait_all(vm=False, lg=True)
I('s_barrier')

NEG = T + 5
I(f'v_mov_b32 {v(NEG)}, {f32(-1e9)}')


def att_task(hf, R):
    Q = R
    Kr = R + 12
    Vr = R + 48
    S_ = R + 12
    return Q, Kr, Vr


TASKR = [16, 102]
for hf in range(2):
    R = TASKR[hf]
    Q, Kr, Vr = R, R + 12, R + 48
    hb = hf * 64 * RS
    I(f'ds_read_b128 {v(Q, 4)}, {v(VA)} offset:{hb + 16 * RS}')
    I(f'ds_read_b128 {v(Q + 4, 4)}, {v(VA)} offset:{hb + 16 * RS + 16}')
    I(f'ds_read_b64 {v(Q + 8, 2)}, {v(VA)} offset:{hb + 16 * RS + 32}')
    for kg in range(3):
        o = hb + kg * 8 * RS + 192
        I(f'ds_read_b128 {v(Kr + 12 * kg, 4)}, {v(VA)} offset:{o}')
        I(f'ds_read_b128 {v(Kr + 12 * kg + 4, 4)}, {v(VA)} offset:{o + 16}')
        I(f'ds_read_b64 {v(Kr + 12 * kg + 8, 2)}, {v(VA)} offset:{o + 32}')
SREG = [T + 12, T + 24]
for hf in range(2):
    R = TASKR[hf]
    Q, Kr, Vr = R, R + 12, R + 48
    Sx = SREG[hf]
    for dc in range(5):
        for kg in range(3):
            c = '0' if dc == 0 else v(Sx + 4 * kg, 4)
            I(f'v_mfma_f32_4x4x4_16b_bf16 {v(Sx + 4 * kg, 4)}, {v(Kr + 12 * kg + 2 * dc, 2)}, {v(Q + 2 * dc, 2)}, {c}')
    hb = hf * 64 * RS
    for kg in range(3):
        for dc in range(5):
            I(f'ds_read_b64_tr_b16 {v(Vr + 2 * (kg * 5 + dc), 2)}, {v(VB)} offset:{hb + kg * 8 * RS + 384 + 8 * dc}')
for hf in range(2):
    R = TASKR[hf]
    Q, Kr, Vr = R, R + 12, R + 48
    Sx = SREG[hf]
    Lg = Sx + 4
    for r, M in ((1, M1), (2, M2), (3, M3)):
        I(f'v_cndmask_b32 {v(Sx + 8 + r)}, {v(Sx + r)}, {v(Sx + 8 + r)}, {s(M, 2)}')
    P = Sx
    for i in range(4):
        I(f'v_cvt_pk_bf16_f32 {v(P + i)}, {v(Lg + 2 * i)}, {v(Lg + 2 * i + 1)}')
    for i in range(4):
        I(f'v_lshlrev_b32 {v(Lg + 2 * i)}, 16, {v(P + i)}')
        I(f'v_and_b32 {v(Lg + 2 * i + 1)}, {s(SC_HI)}, {v(P + i)}')
    for i in range(4):
        I(f'v_pk_mul_f32 {v(Lg + 2 * i, 2)}, {v(Lg + 2 * i, 2)}, {s(SC_SCALE, 2)}')
    for i in range(4):
        I(f'v_cvt_pk_bf16_f32 {v(P + i)}, {v(Lg + 2 * i)}, {v(Lg + 2 * i + 1)}')
    for i in range(4):
        I(f'v_lshlrev_b32 {v(Lg + 2 * i)}, 16, {v(P + i)}')
        I(f'v_and_b32 {v(Lg + 2 * i + 1)}, {s(SC_HI)}, {v(P + i)}')
    if hf == 0:
        for r in range(4):
            I(f'v_cndmask_b32 {v(Lg + r)}, {v(Lg + r)}, {v(NEG)}, {s(INV1, 2)}')
        for r, M in ((1, INV01), (2, INV02), (3, INV03)):
            I(f'v_cndmask_b32 {v(Lg + 4 + r)}, {v(Lg + 4 + r)}, {v(NEG)}, {s(M, 2)}')
    mx, sm = P, P + 1
    I(f'v_max3_f32 {v(mx)}, {v(Lg)}, {v(Lg + 1)}, {v(Lg + 2)}')
    I(f'v_max3_f32 {v(mx)}, {v(mx)}, {v(Lg + 3)}, {v(Lg + 4)}')
    I(f'v_max3_f32 {v(mx)}, {v(mx)}, {v(Lg + 5)}, {v(Lg + 6)}')
    I(f'v_max_f32 {v(mx)}, {v(mx)}, {v(Lg + 7)}')
    for i in range(8):
        I(f'v_sub_f32 {v(Lg + i)}, {v(Lg + i)}, {v(mx)}')
    for i in range(8):
        I(f'v_mul_f32 {v(Lg + i)}, {s(SC_L2E)}, {v(Lg + i)}')
    for i in range(8):
        I(f'v_exp_f32 {v(Lg + i)}, {v(Lg + i)}')
    I(f'v_pk_add_f32 {v(P, 2)}, {v(Lg, 2)}, {v(Lg + 2, 2)}')
    I(f'v_pk_add_f32 {v(P + 2, 2)}, {v(Lg + 4, 2)}, {v(Lg + 6, 2)}')
    I(f'v_pk_add_f32 {v(P, 2)}, {v(P, 2)}, {v(P + 2, 2)}')
    I(f'v_add_f32 {v(P)}, {v(P)}, {v(P + 1)}')
    I(f'v_rcp_f32 {v(P)}, {v(P)}')
    I(f'v_mov_b32 {v(P + 1)}, {v(P)}')
    for i in range(4):
        I(f'v_pk_mul_f32 {v(Lg + 2 * i, 2)}, {v(Lg + 2 * i, 2)}, {v(P, 2)}')
    PB = Kr
    I(f'v_cvt_pk_bf16_f32 {v(PB + 2)}, {v(Lg)}, {v(Lg + 1)}')
    I(f'v_cvt_pk_bf16_f32 {v(PB + 3)}, {v(Lg + 2)}, {v(Lg + 3)}')
    I(f'v_cvt_pk_bf16_f32 {v(PB)}, {v(Lg + 4)}, {v(Lg + 5)}')
    I(f'v_cvt_pk_bf16_f32 {v(PB + 1)}, {v(Lg + 6)}, {v(Lg + 7)}')
    I(f'v_and_b32 {v(PB + 4)}, {v(PB)}, {v(K2M0)}')
    I(f'v_and_b32 {v(PB + 5)}, {v(PB + 1)}, {v(K2M1)}')
    I(f'v_xor_b32 {v(PB)}, {v(PB)}, {v(PB + 4)}')
    I(f'v_xor_b32 {v(PB + 1)}, {v(PB + 1)}, {v(PB + 5)}')
    O = Kr + 8
    for kg in range(3):
        for dc in range(5):
            c = '0' if kg == 0 else v(O + 4 * dc, 4)
            I(f'v_mfma_f32_4x4x4_16b_bf16 {v(O + 4 * dc, 4)}, {v(Vr + 2 * (kg * 5 + dc), 2)}, {v(PB + 2 * kg, 2)}, {c}')
for hf in range(2):
    R = TASKR[hf]
    Q, Kr, Vr = R, R + 12, R + 48
    O = Kr + 8
    OP = Q
    for i in range(10):
        I(f'v_cvt_pk_bf16_f32 {v(OP + i)}, {v(O + 2 * i)}, {v(O + 2 * i + 1)}')
lodd, ldone = k.newlabel('L_oodd'), k.newlabel('L_odone')
I(f's_add_u32 {s(S_T4)}, {s(S_OB)}, {4 * ACT_MB}')
I(f's_bitcmp1_b32 {s(S_WAVE)}, 0')
I(f's_cbranch_scc1 {lodd}')
for hf in range(2):
    OP = TASKR[hf]
    so = s(S_OB if hf == 0 else S_T4)
    I(f'buffer_store_dwordx4 {v(OP, 4)}, {v(VO)}, {s(SRD_WS, 4)}, {so} offen sc1')
    I(f'buffer_store_dwordx4 {v(OP + 4, 4)}, {v(VO)}, {s(SRD_WS, 4)}, {so} offen offset:256 sc1')
    I(f'buffer_store_dwordx2 {v(OP + 8, 2)}, {v(VO)}, {s(SRD_WS, 4)}, {so} offen offset:512 sc1')
I(f's_branch {ldone}')
k.label(lodd)
for hf in range(2):
    OP = TASKR[hf]
    so = s(S_OB if hf == 0 else S_T4)
    I(f'buffer_store_dwordx2 {v(OP, 2)}, {v(VO)}, {s(SRD_WS, 4)}, {so} offen offset:520 sc1')
    I(f'buffer_store_dwordx4 {v(OP + 2, 4)}, {v(VO)}, {s(SRD_WS, 4)}, {so} offen offset:768 sc1')
    I(f'buffer_store_dwordx4 {v(OP + 6, 4)}, {v(VO)}, {s(SRD_WS, 4)}, {so} offen offset:1024 sc1')
k.label(ldone)
stamp(5)
publish()
I('s_branch L_phase2')

k.set_state(st_join)
k.label('L_ffn')
I(f'v_lshrrev_b32 {v(T)}, 4, {v(V_LANE)}')
I(f'v_lshlrev_b32 {v(T)}, 3, {v(T)}')
I(f's_lshl_b32 {s(S_T3)}, {s(S_START)}, 6')
for cb in range(14):
    I(f'buffer_load_dwordx2 {v(T + 8 + 2 * cb, 2)}, {v(T)}, {s(SRD_B1, 4)}, {s(S_T3)} offen offset:{32 * cb}')
I(f's_mov_b32 {s(S_T4)}, 0xffff0000')
for cb in range(14):
    for rb in range(2):
        d = ACC + (cb * 2 + rb) * 4
        for h in range(2):
            I(f'v_lshlrev_b32 {v(d + 2 * h)}, 16, {v(T + 8 + 2 * cb + h)}')
            I(f'v_and_b32 {v(d + 2 * h + 1)}, {s(S_T4)}, {v(T + 8 + 2 * cb + h)}')
poll(V_MASK, 'ln')
stamp(2)
load_A()
I('s_barrier')
stamp(3)
mainloop(14, False, False)
stamp(4)
C0 = -2.0 * 0.7978845608028654 * 1.4426950408889634
C1 = C0 * 0.044715
GC0, GONE = T, T + 2
GS1 = 36
I(f'v_mov_b32 {v(GC0)}, {f32(C0)}')
I(f'v_mov_b32 {v(GC0 + 1)}, {f32(C0)}')
I(f'v_mov_b32 {v(GONE)}, 1.0')
I(f'v_mov_b32 {v(GONE + 1)}, 1.0')
I(f's_mov_b32 {s(GS1)}, {f32(C1)}')
I(f's_mov_b32 {s(GS1 + 1)}, {f32(C1)}')
S_HB2 = 38
I(f's_mul_i32 {s(S_HB2)}, {s(S_MB0)}, {ACT_MB}')
I(f's_lshl_b32 {s(S_T3)}, {s(S_START)}, 10')
I(f's_add_u32 {s(S_HB2)}, {s(S_HB2)}, {s(S_T3)}')
I(f's_add_u32 {s(S_HB2)}, {s(S_HB2)}, {ACT_T + 20 * 1024}')
n = 0
for pr in range(7):
    for rb in range(2):
        tmp = T + 4 + 8 * (n % 2)
        out = T + 20 + 4 * (n % 4)
        n += 1
        xs = [ACC + ((2 * pr + c2) * 2 + rb) * 4 + 2 * h for c2 in range(2) for h in range(2)]
        for i, x in enumerate(xs):
            I(f'v_pk_mul_f32 {v(tmp + 2 * i, 2)}, {v(x, 2)}, {v(x, 2)}')
        for i, x in enumerate(xs):
            I(f'v_pk_fma_f32 {v(tmp + 2 * i, 2)}, {v(tmp + 2 * i, 2)}, {s(GS1, 2)}, {v(GC0, 2)}')
        for i, x in enumerate(xs):
            I(f'v_pk_mul_f32 {v(tmp + 2 * i, 2)}, {v(tmp + 2 * i, 2)}, {v(x, 2)}')
        for i in range(8):
            I(f'v_exp_f32 {v(tmp + i)}, {v(tmp + i)}')
        for i in range(4):
            I(f'v_pk_add_f32 {v(tmp + 2 * i, 2)}, {v(tmp + 2 * i, 2)}, {v(GONE, 2)}')
        for i in range(8):
            I(f'v_rcp_f32 {v(tmp + i)}, {v(tmp + i)}')
        for i, x in enumerate(xs):
            I(f'v_pk_mul_f32 {v(tmp + 2 * i, 2)}, {v(tmp + 2 * i, 2)}, {v(x, 2)}')
        for i in range(4):
            I(f'v_cvt_pk_bf16_f32 {v(out + i)}, {v(tmp + 2 * i)}, {v(tmp + 2 * i + 1)}')
        off = rb * ACT_MB + pr * 1024
        I(f's_add_u32 {s(S_T3)}, {s(S_HB2)}, {off & ~4095}')
        I(f'buffer_store_dwordx4 {v(out, 4)}, {v(V_L16)}, {s(SRD_WS, 4)}, {s(S_T3)} offen offset:{off & 4095} sc1')
stamp(5)
publish()

k.label('L_phase2')
k.vmq = [(set(), 'unknown')]
k.lgq = []
I('s_nop 4')
stamp(6)
YACC = 16
SACC = 96
HW = 116
W2V = 180
XIN = 204
B2V = 214
WOT = 16
T2 = 224
I(f'v_mov_b32 {v(V_MASK)}, 0x02020202')
poll(V_MASK, 'wt')
S_WB, S_KY, S_HBASE, S_LAST, S_OBASE = 32, 33, 34, 35, 36
I(f's_mul_i32 {s(S_WB)}, {s(S_NT)}, 5120')
I(f's_add_u32 {s(S_WB)}, {s(S_WB)}, {W_T}')
I(f's_mul_i32 {s(S_T3)}, {s(S_WAVE)}, {5 * 40960}')
I(f's_add_u32 {s(S_T3)}, {s(S_T3)}, {s(S_WB)}')
for i in range(5):
    for nb in range(5):
        I(f's_add_u32 {s(S_T4)}, {s(S_T3)}, {i * 40960 + (nb // 4) * 4096}')
        I(f'buffer_load_dwordx4 {v(WOT + 4 * (i * 5 + nb), 4)}, {v(V_L16)}, {s(SRD_WS, 4)}, {s(S_T4)} offen offset:{(nb % 4) * 1024} sc1')
I(f's_mul_i32 {s(S_KY)}, {s(S_WAVE)}, 14')
I(f's_min_u32 {s(S_KY)}, {s(S_KY)}, 41')
I(f's_add_u32 {s(S_KY)}, {s(S_KY)}, 20')
I(f's_cmp_ge_u32 {s(S_WAVE)}, 2')
I(f's_cselect_b32 {s(S_LAST)}, {OOB}, 0')
I(f's_mul_i32 {s(S_T3)}, {s(S_KY)}, 40960')
I(f's_add_u32 {s(S_T3)}, {s(S_T3)}, {s(S_WB)}')


def w2reg(st, nb):
    f = st * 5 + nb
    return a(4 * f, 4) if f < 64 else v(W2V + 4 * (f - 64), 4)


for st in range(14):
    for nb in range(5):
        I(f's_add_u32 {s(S_T4)}, {s(S_T3)}, {st * 40960 + (nb // 4) * 4096}')
        if st == 13:
            I(f's_add_u32 {s(S_T4)}, {s(S_T4)}, {s(S_LAST)}')
        I(f'buffer_load_dwordx4 {w2reg(st, nb)}, {v(V_L16)}, {s(SRD_WS, 4)}, {s(S_T4)} offen offset:{(nb % 4) * 1024} sc1')
    if st == 6:
        I(f's_mul_i32 {s(S_T5)}, {s(S_WAVE)}, {25 * 1024}')
        I(f'v_add_u32 {v(T2)}, {s(S_T5)}, {v(V_L16)}')
        for f in range(25):
            I(f'ds_write_b128 {v(T2)}, {v(WOT + 4 * f, 4)} offset:{LDS_WO + f * 1024}')
VXO = T2 + 1
I(f'v_and_b32 {v(T2 + 2)}, 15, {v(V_LANE)}')
I(f's_lshl_b32 {s(S_T3)}, {s(S_M2)}, 6')
I(f's_lshl_b32 {s(S_T4)}, {s(S_WAVE)}, 4')
I(f's_add_u32 {s(S_T3)}, {s(S_T3)}, {s(S_T4)}')
I(f'v_add_u32 {v(T2 + 2)}, {s(S_T3)}, {v(T2 + 2)}')
I(f'v_mul_u32_u24 {v(VXO)}, 1280, {v(T2 + 2)}')
I(f'v_lshrrev_b32 {v(T2 + 2)}, 4, {v(V_LANE)}')
I(f'v_lshlrev_b32 {v(T2 + 2)}, 3, {v(T2 + 2)}')
I(f's_mul_i32 {s(S_T3)}, {s(S_NT)}, 160')
I(f'v_add_u32 {v(T2 + 2)}, {s(S_T3)}, {v(T2 + 2)}')
I(f'v_add_u32 {v(VXO)}, {v(VXO)}, {v(T2 + 2)}')
for nb in range(5):
    I(f'buffer_load_dwordx2 {v(XIN + 2 * nb, 2)}, {v(VXO)}, {s(SRD_X, 4)}, 0 offen offset:{32 * nb}')
    I(f'buffer_load_dwordx2 {v(B2V + 2 * nb, 2)}, {v(T2 + 2)}, {s(SRD_B2, 4)}, 0 offen offset:{32 * nb}')
VM_F, VM_A = T2 + 3, T2 + 4
I(f's_lshr_b32 {s(S_T3)}, {s(S_M2)}, 1')
I(f's_lshl_b32 {s(S_T3)}, {s(S_T3)}, 1')
I(f'v_lshrrev_b32 {v(T2 + 5)}, 1, {v(V_LANE)}')
I(f'v_subrev_u32 {v(T2 + 5)}, {s(S_T3)}, {v(T2 + 5)}')
I(f'v_mov_b32 {v(T2 + 6)}, 0x04040404')
I(f'v_cmp_eq_u32 vcc, 1, {v(T2 + 5)}')
I(f'v_cndmask_b32 {v(VM_F)}, 0, {v(T2 + 6)}, vcc')
I(f'v_cmp_eq_u32 vcc, 0, {v(T2 + 5)}')
I(f'v_cndmask_b32 {v(VM_A)}, 0, {v(T2 + 6)}, vcc')
I(f's_mul_i32 {s(S_HBASE)}, {s(S_M2)}, {4 * ACT_MB}')
I(f's_add_u32 {s(S_HBASE)}, {s(S_HBASE)}, {ACT_T}')
I(f's_mul_i32 {s(S_OBASE)}, {s(S_WAVE)}, {ACT_MB}')
I(f's_add_u32 {s(S_OBASE)}, {s(S_OBASE)}, {s(S_HBASE)}')
I(f's_lshl_b32 {s(S_T3)}, {s(S_KY)}, 10')
I(f's_add_u32 {s(S_HBASE)}, {s(S_HBASE)}, {s(S_T3)}')
poll(VM_F, 'ffn')
stamp(7)


def hload(st):
    for mb in range(4):
        off = mb * ACT_MB + st * 1024
        I(f's_add_u32 {s(S_T4)}, {s(S_HBASE)}, {off & ~4095}')
        if st == 13:
            I(f's_add_u32 {s(S_T4)}, {s(S_T4)}, {s(S_LAST)}')
        I(f'buffer_load_dwordx4 {v(HW + 16 * (st % 4) + 4 * mb, 4)}, {v(V_L16)}, {s(SRD_WS, 4)}, {s(S_T4)} offen offset:{off & 4095} sc1')


k.wait_all(vm=False, lg=True)
for st in range(4):
    hload(st)
for st in range(14):
    for mb in range(4):
        for nb in range(5):
            d = YACC + (mb * 5 + nb) * 4
            c = '0' if st == 0 else v(d, 4)
            I(f'v_mfma_f32_16x16x32_bf16 {v(d, 4)}, {w2reg(st, nb)}, {v(HW + 16 * (st % 4) + 4 * mb, 4)}, {c}')
    if st + 4 < 14:
        hload(st + 4)
stamp(8)
labs = [k.newlabel('L_red') for _ in range(4)]
lend = k.newlabel('L_redend')
stw = k.state()
for w in range(4):
    k.set_state(stw)
    if w:
        k.label(labs[w])
    if w < 3:
        I(f's_cmp_eq_u32 {s(S_WAVE)}, {w}')
        I(f's_cbranch_scc0 {labs[w + 1]}')
    I('s_nop 7')
    for i in range(1, 4):
        mb = (w + i) & 3
        for nb in range(5):
            off = LDS_RED + ((mb * 3 + i - 1) * 5 + nb) * 1024
            I(f'ds_write_b128 {v(T2 + 7)}, {v(YACC + (mb * 5 + nb) * 4, 4)} offset:{off - LDS_RED}')
    for r in range(20):
        I(f'v_mov_b32 {v(HW + r)}, {v(YACC + w * 20 + r)}')
    if w < 3:
        I(f's_branch {lend}')
k.label(lend)
YOWN = HW
poll(VM_A, 'att')
stamp(9)
OF = YACC
k.wait_all(vm=False, lg=True)
for ks in range(20):
    I(f's_add_u32 {s(S_T4)}, {s(S_OBASE)}, {(ks * 1024) & ~4095}')
    I(f'buffer_load_dwordx4 {v(OF + 4 * ks, 4)}, {v(V_L16)}, {s(SRD_WS, 4)}, {s(S_T4)} offen offset:{(ks * 1024) & 4095} sc1')
I('s_barrier')
I(f's_mul_i32 {s(S_T3)}, {s(S_WAVE)}, {15 * 1024}')
I(f'v_add_u32 {v(T2 + 8)}, {s(S_T3)}, {v(T2 + 7)}')
YT = HW + 20
for i in range(3):
    tt = YT + 20 * (i & 1)
    for nb in range(5):
        I(f'ds_read_b128 {v(tt + 4 * nb, 4)}, {v(T2 + 8)} offset:{(i * 5 + nb) * 1024}')
    for r in range(10):
        I(f'v_pk_add_f32 {v(YOWN + 2 * r, 2)}, {v(YOWN + 2 * r, 2)}, {v(tt + 2 * r, 2)}')
S_HI, S_NL2E = 38, 39
I(f's_mov_b32 {s(S_HI)}, 0xffff0000')
I(f's_mov_b32 {s(S_NL2E)}, {f32(-1.4426950408889634)}')
G1 = YT
for r in range(10):
    y = YOWN + 2 * r
    p = G1 + 2 * r
    I(f'v_cvt_pk_bf16_f32 {v(p)}, {v(y)}, {v(y + 1)}')
    I(f'v_lshlrev_b32 {v(y)}, 16, {v(p)}')
    I(f'v_and_b32 {v(y + 1)}, {s(S_HI)}, {v(p)}')
    I(f'v_lshlrev_b32 {v(p)}, 16, {v(B2V + r)}')
    I(f'v_and_b32 {v(p + 1)}, {s(S_HI)}, {v(B2V + r)}')
    I(f'v_pk_add_f32 {v(y, 2)}, {v(y, 2)}, {v(p, 2)}')
    I(f'v_cvt_pk_bf16_f32 {v(p)}, {v(y)}, {v(y + 1)}')
    I(f'v_lshlrev_b32 {v(y)}, 16, {v(p)}')
    I(f'v_and_b32 {v(y + 1)}, {s(S_HI)}, {v(p)}')
    I(f'v_mul_f32 {v(p)}, {s(S_NL2E)}, {v(y)}')
    I(f'v_mul_f32 {v(p + 1)}, {s(S_NL2E)}, {v(y + 1)}')
    I(f'v_exp_f32 {v(p)}, {v(p)}')
    I(f'v_exp_f32 {v(p + 1)}, {v(p + 1)}')
    I(f'v_add_f32 {v(p)}, 1.0, {v(p)}')
    I(f'v_add_f32 {v(p + 1)}, 1.0, {v(p + 1)}')
    I(f'v_rcp_f32 {v(p)}, {v(p)}')
    I(f'v_rcp_f32 {v(p + 1)}, {v(p + 1)}')
    I(f'v_pk_mul_f32 {v(y, 2)}, {v(y, 2)}, {v(p, 2)}')
    I(f'v_cvt_pk_bf16_f32 {v(p)}, {v(y)}, {v(y + 1)}')
    I(f'v_lshlrev_b32 {v(y)}, 16, {v(p)}')
    I(f'v_and_b32 {v(y + 1)}, {s(S_HI)}, {v(p)}')
I(f'v_add_u32 {v(T2 + 8)}, 65536, {v(V_L16)}')
items = [(ks, nb) for ks in range(20) for nb in range(5)]
LA = 10


def woread(n):
    off = LDS_WO + n * 1024
    if off < 65536:
        I(f'ds_read_b128 {a(4 * (n % 16), 4)}, {v(V_L16)} offset:{off}')
    else:
        I(f'ds_read_b128 {a(4 * (n % 16), 4)}, {v(T2 + 8)} offset:{off - 65536}')


for n in range(LA):
    woread(n)
for n, (ks, nb) in enumerate(items):
    if n + LA < 100:
        woread(n + LA)
    d = SACC + 4 * nb
    c = '0' if ks == 0 else v(d, 4)
    I(f'v_mfma_f32_16x16x32_bf16 {v(d, 4)}, {a(4 * (n % 16), 4)}, {v(OF + 4 * ks, 4)}, {c}')
for r in range(10):
    sx = SACC + 2 * r
    y = YOWN + 2 * r
    p = G1 + 2 * r
    I(f'v_cvt_pk_bf16_f32 {v(p)}, {v(sx)}, {v(sx + 1)}')
    I(f'v_lshlrev_b32 {v(sx)}, 16, {v(p)}')
    I(f'v_and_b32 {v(sx + 1)}, {s(S_HI)}, {v(p)}')
    I(f'v_pk_mul_f32 {v(sx, 2)}, {v(sx, 2)}, {v(y, 2)}')
    I(f'v_cvt_pk_bf16_f32 {v(p)}, {v(sx)}, {v(sx + 1)}')
    I(f'v_lshlrev_b32 {v(sx)}, 16, {v(p)}')
    I(f'v_and_b32 {v(sx + 1)}, {s(S_HI)}, {v(p)}')
    I(f'v_lshlrev_b32 {v(y)}, 16, {v(XIN + r)}')
    I(f'v_and_b32 {v(y + 1)}, {s(S_HI)}, {v(XIN + r)}')
    I(f'v_pk_add_f32 {v(sx, 2)}, {v(sx, 2)}, {v(y, 2)}')
    I(f'v_cvt_pk_bf16_f32 {v(XIN + r)}, {v(sx)}, {v(sx + 1)}')
    if r & 1:
        nb = r >> 1
        I(f'buffer_store_dwordx2 {v(XIN + 2 * nb, 2)}, {v(VXO)}, {s(SRD_OUT, 4)}, 0 offen offset:{32 * nb}')
if STAMPS:
    stamp(10)
    k.wait_all()
    I(f's_lshl_b32 {s(S_T3)}, {s(S_WG)}, 8')
    I(f's_lshl_b32 {s(S_T4)}, {s(S_WAVE)}, 6')
    I(f's_add_u32 {s(S_T3)}, {s(S_T3)}, {s(S_T4)}')
    I(f's_add_u32 {s(S_T3)}, {s(S_T3)}, {STAMP_OFF}')
    I(f'v_mov_b32 {v(T2)}, 0')
    I('s_mov_b64 exec, 1')
    for i in range(11):
        I(f'v_mov_b32 {v(T2 + 1)}, {s(S_STAMP + 2 * i)}')
        I(f'buffer_store_dword {v(T2 + 1)}, {v(T2)}, {s(SRD_WS, 4)}, {s(S_T3)} offen offset:{4 * i}')
    I(f'v_mov_b32 {v(T2 + 1)}, {s(S_TYPE)}')
    I(f'buffer_store_dword {v(T2 + 1)}, {v(T2)}, {s(SRD_WS, 4)}, {s(S_T3)} offen offset:60')
k.label('L_end')
I('s_endpgm')

body = k.ins
for i, ins in enumerate(body):
    if ins.label and ins.text == 'L_phase2:':
        body.insert(i + 1, Ins(f'v_add_u32 {v(T2 + 7)}, {LDS_RED}, {v(V_L16)}'))
        break

hdr = open('recurrent_scan__sliding_local_dilated__dense_activation_gelu__prompt.s.ref').read().split('\n')
head = [l for l in hdr if l.startswith(';') and '@launch' not in l and 'Override' not in l and 'grid=ceil' not in l]
print('\n'.join(head))
print(f'; @launch grid=(256,1,1) block=(256,1,1) lds={LDS_TOTAL}')
print(f'''.amdgcn_target "amdgcn-amd-amdhsa--gfx950"
.text
.globl {KNAME}
.p2align 8
.type {KNAME},@function
{KNAME}:''')
print(k.text())
print(f'''.section .rodata,"a"
.p2align 6
.amdhsa_kernel {KNAME}
  .amdhsa_next_free_vgpr 512
  .amdhsa_next_free_sgpr 102
  .amdhsa_accum_offset 256
  .amdhsa_group_segment_fixed_size 0
  .amdhsa_kernarg_size 88
  .amdhsa_user_sgpr_count 2
  .amdhsa_user_sgpr_kernarg_segment_ptr 1
  .amdhsa_system_sgpr_workgroup_id_x 1
  .amdhsa_float_denorm_mode_32 3
.end_amdhsa_kernel''')
```

```python
import sys, struct
from asmlib import *

KNAME = 'recurrent_scan__sliding_local_dilated__dense_activation_gelu__prompt_kernel'
STAMPS = '--stamps' in sys.argv


def opt(name, default):
    for x in sys.argv:
        if x.startswith(f'--{name}='):
            return int(x.split('=')[1])
    return default


SMODE = opt('smode', 0)

XN_T = 0
ACT_T = 128 * 20 * 1024
ACT_MB = 74 * 1024
W_T = ACT_T + 128 * ACT_MB
LNF = W_T + 74 * 40 * 1024
P1F = LNF + 16 * 128
WTF = P1F + 16 * 128
WS_USED = WTF + 1024
STAMP_OFF = WS_USED
WS_REC = WS_USED + (256 * 4 * 64 if STAMPS else 0)
OOB = 0x40000000

RROW = 1056
SLOT = 16 * RROW
NSLOT = 8
HALO = NSLOT * SLOT
CNT = HALO + 20 * 1024
RS = 592
LDS_WO = 0
LDS_RED = 100 * 1024
LDS_TOTAL = 163840


def f32(x):
    return '0x%08x' % struct.unpack('<I', struct.pack('<f', x))[0]


S_WG, S_FOFF = 2, 3
SRD_X, SRD_B, SRD_WS, SRD_DBG, SRD_OUT, SRD_RT, SRD_B1, SRD_B2 = 4, 8, 12, 16, 20, 24, 28, 56
P_X, P_WQKV, P_WO, P_BX, P_W1, P_B1, P_W2, P_B2, P_OUT, P_DBG, P_WS = 32, 34, 36, 38, 40, 42, 44, 46, 48, 50, 52
S_WAVE, S_MT, S_TYPE, S_IDX, S_FB, S_PITCH, S_KSTR, S_START = 60, 61, 62, 63, 64, 65, 66, 67
S_T0, S_T1, S_T2, S_T3, S_T4, S_T5 = 68, 69, 70, 71, 72, 73
S_M0B, S_SOFF, S_M2, S_NT, S_SPIN, S_TAG = 74, 75, 76, 77, 78, 79
S_STAMP = 80
S_W2B, S_LAST = 100, 101
S_HB, S_MB0 = 32, 33
S_AO = 36

V_LANE = 1
V_DMA = 2
V_TR0, V_TR1 = 6, 7
V_TRH0, V_TRH1 = 8, 9
V_L16 = 10
V_L16B = 11
V_PA = 12
V_POLL = 13
V_X = 14
V_PF = 15
ACC = 16
HACC = 136
WIN = 148
HX = 180
T = 188
BIAS = 226
W2V = 228
P4 = 252

k = K()
I = k.I


def stamp(idx, mode=0):
    if STAMPS and (mode == SMODE or mode == -1):
        I(f'{"s_memtime" if "--cyc" in sys.argv else "s_memrealtime"} {s(S_STAMP + 2 * idx, 2)}')


def srd(base, plo, nbytes):
    I(f's_mov_b32 {s(base)}, {s(plo)}')
    I(f's_mov_b32 {s(base + 1)}, {s(plo + 1)}')
    I(f's_mov_b32 {s(base + 2)}, {nbytes}')
    I(f's_mov_b32 {s(base + 3)}, 0x00020000')


def csel(dst, x, y):
    I(f's_mov_b32 {s(dst)}, {y}')
    I(f's_cselect_b32 {s(dst)}, {x}, {s(dst)}')


def chk_issue(addrv, n=1):
    if n == 1:
        I(f'buffer_load_dword {v(V_POLL)}, {v(addrv)}, {s(SRD_WS, 4)}, 0 offen sc1')
    else:
        I(f'buffer_load_dwordx4 {v(P4, 4)}, {v(addrv)}, {s(SRD_WS, 4)}, 0 offen sc1')


def chk_eval(n=1):
    if n == 1:
        I(f'v_cmp_ne_u32 vcc, {s(S_TAG)}, {v(V_POLL)}')
    else:
        for i in range(4):
            I(f'v_xor_b32 {v(P4 + i)}, {s(S_TAG)}, {v(P4 + i)}')
        I(f'v_or3_b32 {v(P4)}, {v(P4)}, {v(P4 + 1)}, {v(P4 + 2)}')
        I(f'v_or_b32 {v(P4)}, {v(P4)}, {v(P4 + 3)}')
        I(f'v_cmp_ne_u32 vcc, 0, {v(P4)}')


def poll(addrv, name, n=1, preissued=False):
    lab = k.newlabel('L_poll_' + name)
    done = k.newlabel('L_polled_' + name)
    if not preissued:
        chk_issue(addrv, n)
    chk_eval(n)
    I(f's_mov_b32 {s(S_SPIN)}, 0')
    I(f's_cbranch_vccz {done}')
    st = k.state()
    k.label(lab)
    I('s_sleep 1')
    chk_issue(addrv, n)
    k.wait_all(vm=True, lg=False)
    chk_eval(n)
    I(f's_add_u32 {s(S_SPIN)}, {s(S_SPIN)}, 1')
    I(f's_cbranch_vccz {done}')
    I(f's_cmp_lt_u32 {s(S_SPIN)}, 0x40000')
    I(f's_cbranch_scc1 {lab}')
    k.label(done)
    k.set_state(st)


def flag_store(base, offs, t0):
    I(f'v_mov_b32 {v(t0)}, {s(S_TAG)}')
    I(f'v_mov_b32 {v(t0 + 1)}, {base}')
    I('s_mov_b64 exec, 1')
    I(f'buffer_store_dword {v(t0)}, {v(t0 + 1)}, {s(SRD_WS, 4)}, {s(offs)} offen sc1')
    I('s_mov_b64 exec, -1')
    k.vmq.pop()


def dma1(j, soff_reg, tag):
    I(f'buffer_load_dwordx4 {v(V_DMA + j)}, {s(SRD_B, 4)}, {s(soff_reg)} offen offset:{j * RROW} lds', tag=tag)


def bf16r(dst, src):
    I(f'v_cvt_pk_bf16_f32 {v(dst)}, {v(src)}, {v(src)}')
    I(f'v_lshlrev_b32 {v(dst)}, 16, {v(dst)}')


def row_sum(r, t1):
    for sh in (4, 8):
        I(f'v_add_f32_dpp {v(r)}, {v(r)}, {v(r)} row_ror:{sh} row_mask:0xf bank_mask:0xf')
    for op in ('v_permlane16_swap_b32', 'v_permlane32_swap_b32'):
        I(f'v_mov_b32 {v(t1)}, {v(r)}')
        I(f'{op} {v(r)}, {v(t1)}')
        I(f'v_add_f32 {v(r)}, {v(r)}, {v(t1)}')


I(f's_cmp_ge_u32 {s(S_WG)}, 256')
I('s_cbranch_scc1 L_end')
I(f's_load_dwordx16 {s(32, 16)}, s[0:1], 0')
I(f's_load_dwordx4 {s(48, 4)}, s[0:1], 64')
I(f's_load_dwordx2 {s(52, 2)}, s[0:1], 80')
stamp(0, -1)
I(f'v_lshrrev_b32 {v(T)}, 6, v0')
I(f'v_and_b32 {v(V_LANE)}, 63, v0')
I(f'v_readfirstlane_b32 {s(S_WAVE)}, {v(T)}')
I(f'v_mov_b32 {v(T + 2)}, 0')
I(f'v_mov_b32 {v(T + 3)}, 0')
I(f'v_mov_b32 {v(T + 1)}, {CNT}')
I(f'ds_write_b64 {v(T + 1)}, {v(T + 2, 2)}')
I(f's_and_b32 {s(S_T0)}, {s(S_WG)}, 7')
I(f's_lshr_b32 {s(S_T1)}, {s(S_WG)}, 3')
I(f's_and_b32 {s(S_MT)}, {s(S_T0)}, 1')
I(f's_lshl_b32 {s(S_MT)}, {s(S_MT)}, 3')
I(f's_and_b32 {s(S_T2)}, {s(S_T1)}, 7')
I(f's_add_u32 {s(S_MT)}, {s(S_MT)}, {s(S_T2)}')
I(f's_lshr_b32 {s(S_T2)}, {s(S_T1)}, 3')
I(f's_and_b32 {s(S_TYPE)}, {s(S_T2)}, 1')
I(f's_lshr_b32 {s(S_T2)}, {s(S_T2)}, 1')
I(f's_and_b32 {s(S_IDX)}, {s(S_T0)}, 6')
I(f's_add_u32 {s(S_IDX)}, {s(S_IDX)}, {s(S_T2)}')
I(f's_lshl_b32 {s(S_FB)}, {s(S_MT)}, 4')
I(f's_lshl_b32 {s(S_T2)}, {s(S_TYPE)}, 3')
I(f's_add_u32 {s(S_FB)}, {s(S_FB)}, {s(S_T2)}')
I(f's_add_u32 {s(S_FB)}, {s(S_FB)}, {s(S_IDX)}')
I(f's_lshl_b32 {s(S_FOFF)}, {s(S_MT)}, 7')
I(f's_and_b32 {s(S_T2)}, {s(S_FB)}, 15')
I(f's_lshl_b32 {s(S_T2)}, {s(S_T2)}, 2')
I(f's_add_u32 {s(S_FOFF)}, {s(S_FOFF)}, {s(S_T2)}')
I(f's_lshl_b32 {s(S_M2)}, {s(S_T0)}, 2')
I(f's_and_b32 {s(S_T2)}, {s(S_T1)}, 3')
I(f's_add_u32 {s(S_M2)}, {s(S_M2)}, {s(S_T2)}')
I(f's_lshr_b32 {s(S_NT)}, {s(S_T1)}, 2')
I(f's_mul_i32 {s(S_START)}, {s(S_IDX)}, 7')
I(f's_min_u32 {s(S_START)}, {s(S_START)}, 47')
I(f's_cmp_eq_u32 {s(S_TYPE)}, 0')
csel(S_PITCH, 3840, 3456)
I(f's_lshl_b32 {s(S_KSTR)}, {s(S_PITCH)}, 5')
I(f'v_lshlrev_b32 {v(V_L16)}, 4, {v(V_LANE)}')
I(f'v_add_u32 {v(V_L16B)}, 4096, {v(V_L16)}')
I(f's_lshl_b32 {s(S_T0)}, {s(S_WG)}, 1')
I(f's_and_b32 {s(S_T1)}, {s(S_WAVE)}, 1')
I(f's_add_u32 {s(S_T0)}, {s(S_T0)}, {s(S_T1)}')
I(f's_mul_i32 {s(S_T1)}, {s(S_T0)}, 13108')
I(f's_lshr_b32 {s(S_T1)}, {s(S_T1)}, 16')
I(f's_mul_i32 {s(S_T2)}, {s(S_T1)}, 5')
I(f's_sub_u32 {s(S_T2)}, {s(S_T0)}, {s(S_T2)}')
assert all((u * 13108) >> 16 == u // 5 for u in range(512))
LR, LP, LXA = T + 4, T + 5, T + 6
I(f'v_and_b32 {v(LR)}, 3, {v(V_LANE)}')
I(f'v_lshrrev_b32 {v(LP)}, 2, {v(V_LANE)}')
I(f's_lshl_b32 {s(S_T3)}, {s(S_FB)}, 3')
I(f's_lshl_b32 {s(S_T4)}, {s(S_WAVE)}, 2')
I(f's_add_u32 {s(S_T3)}, {s(S_T3)}, {s(S_T4)}')
I(f'v_add_u32 {v(LR)}, {s(S_T3)}, {v(LR)}')
I(f'v_mul_u32_u24 {v(LXA)}, 1280, {v(LR)}')
I(f'v_lshl_add_u32 {v(LXA)}, {v(LP)}, 4, {v(LXA)}')
I(f'v_lshlrev_b32 {v(T + 7)}, 3, {v(V_LANE)}')
I(f's_lshl_b32 {s(S_T5)}, {s(S_START)}, 6')
k.wait_all(vm=False, lg=True)
stamp(1, 2)
srd(SRD_X, P_X, 2048 * 1280)
srd(SRD_DBG, P_DBG, 256)
srd(SRD_B1, P_B1, 1728 * 2)
XR = T + 8
TAGV = T + 36
I(f's_cmp_ge_u32 {s(S_WAVE)}, 2')
I('s_cbranch_scc1 L_noxl')
for i in range(5):
    I(f'buffer_load_dwordx4 {v(XR + 4 * i, 4)}, {v(LXA)}, {s(SRD_X, 4)}, 0 offen offset:{256 * i}', tag='x')
I(f'buffer_load_dword {v(TAGV)}, {v(T + 2)}, {s(SRD_DBG, 4)}, 0 offen sc1')
k.label('L_noxl')
I(f'buffer_load_dwordx2 {v(BIAS, 2)}, {v(T + 7)}, {s(SRD_B1, 4)}, {s(S_T5)} offen')
srd(SRD_WS, P_WS, WS_REC)
srd(SRD_OUT, P_OUT, 2048 * 1280)
srd(SRD_B2, P_B2, 640 * 2)
I(f's_cmp_eq_u32 {s(S_TYPE)}, 0')
I(f's_cselect_b32 {s(SRD_B)}, {s(P_WQKV)}, {s(P_W1)}')
I(f's_cselect_b32 {s(SRD_B + 1)}, {s(P_WQKV + 1)}, {s(P_W1 + 1)}')
csel(SRD_B + 2, 640 * 3840, 640 * 3456)
I(f's_mov_b32 {s(SRD_B + 3)}, 0x00020000')
I(f's_cmp_lt_u32 {s(S_T1)}, 20')
I(f's_cselect_b32 {s(SRD_RT)}, {s(P_WO)}, {s(P_W2)}')
I(f's_cselect_b32 {s(SRD_RT + 1)}, {s(P_WO + 1)}, {s(P_W2 + 1)}')
csel(SRD_RT + 2, 640 * 1280, 1728 * 1280)
I(f's_mov_b32 {s(SRD_RT + 3)}, 0x00020000')
I(f's_cmp_lt_u32 {s(S_WG)}, 8')
I('s_cbranch_scc0 L_notag')
I(f's_cmp_eq_u32 {s(S_WAVE)}, 2')
I('s_cbranch_scc0 L_notag')
stt = k.state()
I(f's_memrealtime {s(S_T4, 2)}')
I(f's_or_b32 {s(S_T4)}, {s(S_T4)}, 1')
I(f'v_mov_b32 {v(T + 2)}, {s(S_T4)}')
I('s_mov_b64 exec, 1')
I(f'buffer_atomic_cmpswap {v(T + 2, 2)}, {v(T + 3)}, {s(SRD_DBG, 4)}, 0 offen sc1')
I('s_mov_b64 exec, -1')
k.set_state(stt)
k.label('L_notag')


c, hf, sg = T, T + 1, T + 2
I(f'v_and_b32 {v(c)}, 31, {v(V_LANE)}')
I(f'v_lshrrev_b32 {v(hf)}, 5, {v(V_LANE)}')
S_CB = 34
I(f's_cmp_eq_u32 {s(S_TYPE)}, 0')
I(f's_cselect_b32 {s(S_T3)}, 29, 27')
I(f's_cselect_b32 {s(S_T4)}, 1120, 0')
I(f's_mul_i32 {s(S_CB)}, {s(S_IDX)}, 160')
I(f's_lshl_b32 {s(S_T5)}, {s(S_START)}, 6')
I(f's_cmp_eq_u32 {s(S_TYPE)}, 0')
I(f's_cselect_b32 {s(S_CB)}, {s(S_CB)}, {s(S_T5)}')
I(f'v_min_u32 {v(c)}, {s(S_T3)}, {v(c)}')
I(f'v_mul_u32_u24 {v(sg)}, 205, {v(c)}')
I(f'v_lshrrev_b32 {v(sg)}, 11, {v(sg)}')
I(f'v_mul_u32_u24 {v(sg)}, {s(S_T4)}, {v(sg)}')
I(f'v_lshl_add_u32 {v(sg)}, {v(c)}, 4, {v(sg)}')
I(f'v_add_u32 {v(sg)}, {s(S_CB)}, {v(sg)}')
I(f's_lshl_b32 {s(S_T3)}, {s(S_PITCH)}, 2')
I(f'v_mad_u32_u24 {v(V_DMA)}, {v(hf)}, {s(S_T3)}, {v(sg)}')
I(f's_sub_u32 {s(S_T3)}, {s(S_PITCH)}, {RROW}')
for j in range(1, 4):
    I(f'v_add_u32 {v(V_DMA + j)}, {s(S_T3)}, {v(V_DMA + j - 1)}')
assert all((c_ * 205) >> 11 == c_ // 10 for c_ in range(32))
NPRE = 4
I(f's_mul_i32 {s(S_M0B)}, {s(S_WAVE)}, {4 * RROW}')
I(f's_lshl_b32 {s(S_T3)}, {s(S_PITCH)}, 3')
I(f's_mul_i32 {s(S_SOFF)}, {s(S_WAVE)}, {s(S_T3)}')
I(f's_mul_i32 {s(S_T3)}, {s(S_KSTR)}, {NPRE}')
I(f's_add_u32 {s(S_SOFF)}, {s(S_SOFF)}, {s(S_T3)}')
I(f'v_mul_u32_u24 {v(V_TR0)}, {RROW}, {v(LP)}')
I(f'v_and_b32 {v(T)}, 3, {v(V_LANE)}')
I(f'v_lshl_add_u32 {v(V_TR0)}, {v(T)}, 3, {v(V_TR0)}')
I(f'v_add_u32 {v(V_TR1)}, {4 * SLOT}, {v(V_TR0)}')
I(f's_mul_i32 {s(S_HB)}, {s(S_WAVE)}, 3')
I(f's_min_u32 {s(S_HB)}, {s(S_HB)}, 7')
I(f's_add_u32 {s(S_HB)}, {s(S_HB)}, 5')
I(f's_lshl_b32 {s(S_T3)}, {s(S_HB)}, 5')
I(f'v_add_u32 {v(V_TRH0)}, {s(S_T3)}, {v(V_TR0)}')
I(f'v_add_u32 {v(V_TRH1)}, {s(S_T3)}, {v(V_TR1)}')
I(f'v_add_u32 {v(V_X)}, {HALO}, {v(V_L16)}')
I(f's_lshl_b32 {s(S_MB0)}, {s(S_MT)}, 3')
I(f's_lshl_b32 {s(S_T3)}, {s(S_WAVE)}, 1')
I(f's_add_u32 {s(S_MB0)}, {s(S_MB0)}, {s(S_T3)}')
I(f's_mul_i32 {s(S_AO)}, {s(S_MB0)}, 20480')
for q in range(1, 10):
    I(f's_add_u32 {s(S_AO + q)}, {s(S_AO)}, {XN_T + 4096 * q}')
I(f'v_and_b32 {v(T)}, 15, {v(V_LANE)}')
I(f's_lshl_b32 {s(S_T3)}, {s(S_MT)}, 7')
I(f's_add_u32 {s(S_T3)}, {s(S_T3)}, {LNF}')
I(f'v_lshl_add_u32 {v(V_PA)}, {v(T)}, 2, {s(S_T3)}')
I(f's_cmp_eq_u32 {s(S_TYPE)}, 0')
I(f's_cselect_b32 {s(S_T3)}, {128 - 56}, 0')
I(f's_cmp_eq_u32 {s(S_MT)}, 0')
I(f's_cselect_b32 {s(S_T3)}, 0, {s(S_T3)}')
I(f'v_subrev_u32 {v(T + 1)}, {s(S_T3)}, {v(V_PA)}')
I(f'v_lshrrev_b32 {v(T)}, 1, {v(V_LANE)}')
I(f'v_cmp_eq_u32 vcc, 8, {v(T)}')
I(f'v_cndmask_b32 {v(V_PA)}, {v(V_PA)}, {v(T + 1)}, vcc')
I(f's_mul_i32 {s(S_T3)}, {s(S_WAVE)}, 14')
I(f's_min_u32 {s(S_T3)}, {s(S_T3)}, 41')
I(f's_add_u32 {s(S_T3)}, {s(S_T3)}, 20')
I(f's_mul_i32 {s(S_W2B)}, {s(S_T3)}, 40960')
I(f's_mul_i32 {s(S_T3)}, {s(S_NT)}, 5120')
I(f's_add_u32 {s(S_W2B)}, {s(S_W2B)}, {s(S_T3)}')
I(f's_add_u32 {s(S_W2B)}, {s(S_W2B)}, {W_T}')
I(f's_cmp_ge_u32 {s(S_WAVE)}, 2')
I(f's_cselect_b32 {s(S_LAST)}, {OOB}, 0')
I(f's_lshr_b32 {s(S_T3)}, {s(S_M2)}, 1')
I(f's_lshl_b32 {s(S_T3)}, {s(S_T3)}, 7')
I(f's_add_u32 {s(S_T3)}, {s(S_T3)}, {P1F + 32}')
I(f'v_and_b32 {v(T)}, 7, {v(V_LANE)}')
I(f'v_lshl_add_u32 {v(V_PF)}, {v(T)}, 2, {s(S_T3)}')

I(f's_cmp_ge_u32 {s(S_WAVE)}, 2')
I('s_cbranch_scc1 L_pro_dma')

st0 = k.state()
XF = ACC
SA_ = T + 3
I(f'v_lshrrev_b32 {v(SA_)}, 4, {v(LR)}')
I(f'v_mul_u32_u24 {v(SA_)}, 20480, {v(SA_)}')
I(f'v_lshl_add_u32 {v(SA_)}, {v(LP)}, 8, {v(SA_)}')
I(f'v_and_b32 {v(T)}, 15, {v(LR)}')
I(f'v_lshl_add_u32 {v(SA_)}, {v(T)}, 4, {v(SA_)}')
I(f's_mov_b32 {s(S_T3)}, 0xffff0000')
stamp(2, 2)
k.wait_vm_tag('x')
stamp(3, 2)
I('s_barrier')
SUM = T + 4
for i in range(20):
    I(f'v_lshlrev_b32 {v(XF + 2 * i)}, 16, {v(XR + i)}')
    I(f'v_and_b32 {v(XF + 2 * i + 1)}, {s(S_T3)}, {v(XR + i)}')
    if i == 1:
        I(f'v_pk_add_f32 {v(SUM, 2)}, {v(XF, 2)}, {v(XF + 2, 2)}')
    elif i > 1:
        I(f'v_pk_add_f32 {v(SUM, 2)}, {v(SUM, 2)}, {v(XF + 2 * i, 2)}')
I(f'v_add_f32 {v(SUM)}, {v(SUM)}, {v(SUM + 1)}')
row_sum(SUM, SUM + 1)
MEAN = T + 6
I(f'v_mul_f32 {v(MEAN)}, {f32(1.0 / 640)}, {v(SUM)}')
I(f'v_mov_b32 {v(MEAN + 1)}, {v(MEAN)}')
SQ = T + 4
DV = T + 28
for i in range(20):
    d = DV + 2 * (i & 1)
    I(f'v_pk_add_f32 {v(d, 2)}, {v(XF + 2 * i, 2)}, {v(MEAN, 2)} neg_lo:[0,1] neg_hi:[0,1]')
    if i == 0:
        I(f'v_pk_mul_f32 {v(SQ, 2)}, {v(d, 2)}, {v(d, 2)}')
    else:
        I(f'v_pk_fma_f32 {v(SQ, 2)}, {v(d, 2)}, {v(d, 2)}, {v(SQ, 2)}')
I(f'v_add_f32 {v(SQ)}, {v(SQ)}, {v(SQ + 1)}')
row_sum(SQ, SQ + 1)
I(f'v_mul_f32 {v(SQ)}, {f32(1.0 / 640)}, {v(SQ)}')
bf16r(SQ, SQ)
I(f'v_add_f32 {v(SQ)}, {f32(1e-5)}, {v(SQ)}')
bf16r(SQ, SQ)
I(f'v_sqrt_f32 {v(SQ)}, {v(SQ)}')
bf16r(MEAN, MEAN)
bf16r(SQ, SQ)
I(f'v_rcp_f32 {v(SQ + 1)}, {v(SQ)}')
I(f'v_mov_b32 {v(MEAN + 1)}, {v(MEAN)}')
I(f'v_fma_f32 {v(SQ)}, -{v(SQ)}, {v(SQ + 1)}, 1.0')
I(f'v_fma_f32 {v(SQ)}, {v(SQ)}, {v(SQ + 1)}, {v(SQ + 1)}')
I(f'v_mov_b32 {v(SQ + 1)}, {v(SQ)}')
for i in range(20):
    x2 = XF + 2 * i
    I(f'v_pk_add_f32 {v(x2, 2)}, {v(x2, 2)}, {v(MEAN, 2)} neg_lo:[0,1] neg_hi:[0,1]')
    I(f'v_cvt_pk_bf16_f32 {v(XR + i)}, {v(x2)}, {v(x2 + 1)}')
    I(f'v_lshlrev_b32 {v(x2)}, 16, {v(XR + i)}')
    I(f'v_and_b32 {v(x2 + 1)}, {s(S_T3)}, {v(XR + i)}')
    I(f'v_pk_mul_f32 {v(x2, 2)}, {v(x2, 2)}, {v(SQ, 2)}')
    I(f'v_cvt_pk_bf16_f32 {v(XR + i)}, {v(x2)}, {v(x2 + 1)}')
    if i % 4 == 3:
        ii = i // 4
        I(f's_mov_b32 {s(S_T4)}, {XN_T + 4096 * ii}')
        I(f'buffer_store_dwordx4 {v(XR + 4 * ii, 4)}, {v(SA_)}, {s(SRD_WS, 4)}, {s(S_T4)} offen sc1')
stamp(1)
stamp(4, 2)
I(f'v_readfirstlane_b32 {s(S_TAG)}, {v(TAGV)}')
I(f'v_mov_b32 {v(T + 1)}, 0')
I(f's_mov_b32 {s(S_SPIN)}, 0')
I(f's_cmp_lg_u32 {s(S_TAG)}, 0')
I('s_cbranch_scc1 L_tagok')
k.label('L_tagpoll')
I(f'buffer_load_dword {v(TAGV)}, {v(T + 1)}, {s(SRD_DBG, 4)}, 0 offen sc1')
k.wait_all()
I(f'v_readfirstlane_b32 {s(S_TAG)}, {v(TAGV)}')
I(f's_add_u32 {s(S_SPIN)}, {s(S_SPIN)}, 1')
I(f's_cmp_lg_u32 {s(S_TAG)}, 0')
I('s_cbranch_scc1 L_tagok')
I(f's_cmp_lt_u32 {s(S_SPIN)}, 0x40000')
I('s_cbranch_scc1 L_tagpoll')
k.label('L_tagok')
I(f'v_mov_b32 {v(T + 1)}, {CNT}')
I(f'ds_write_b32 {v(T + 1)}, {v(TAGV)} offset:4')
I(f'v_mov_b32 {v(T)}, 1')
k.wait_all()
stamp(5, 2)
I('s_mov_b64 exec, 1')
I(f'ds_add_rtn_u32 {v(T + 2)}, {v(T + 1)}, {v(T)}')
I('s_mov_b64 exec, -1')
I(f'v_readfirstlane_b32 {s(S_T3)}, {v(T + 2)}')
I(f's_cmp_eq_u32 {s(S_T3)}, 1')
I('s_cbranch_scc0 L_pro_join')
flag_store(LNF, S_FOFF, T)
I('s_branch L_pro_join')

k.set_state(st0)
k.vmq = [(regs_of(v(BIAS, 2)), None)]
k.label('L_pro_dma')
RT_A, RT_B, RT_K0, RT_SCR, VW_M0, VW_SO, S_PFO = 46, 47, 48, 49, 50, 52, 54
I(f's_cmp_lt_u32 {s(S_T1)}, 20')
csel(RT_A, 8 * 1280, 4 * 1280)
csel(RT_B, 4 * 1280, 16 * 1280)
I(f's_cselect_b32 {s(RT_K0)}, 0, 20')
I(f's_sub_u32 {s(RT_K0)}, {s(S_T1)}, {s(RT_K0)}')
I(f's_mul_i32 {s(RT_K0)}, {s(RT_K0)}, {32 * 1280}')
I(f's_lshl_b32 {s(S_T3)}, {s(S_T2)}, 8')
I(f's_add_u32 {s(RT_K0)}, {s(RT_K0)}, {s(S_T3)}')
I(f's_and_b32 {s(S_T3)}, {s(S_WAVE)}, 1')
I(f's_mul_i32 {s(VW_M0)}, {s(S_T3)}, {8 * RROW}')
I(f's_add_u32 {s(RT_SCR)}, {s(VW_M0)}, {7 * SLOT}')
I(f's_add_u32 {s(VW_M0 + 1)}, {s(VW_M0)}, {4 * RROW}')
I(f's_lshl_b32 {s(S_T4)}, {s(S_PITCH)}, 4')
I(f's_mul_i32 {s(VW_SO)}, {s(S_T3)}, {s(S_T4)}')
I(f's_lshl_b32 {s(S_T4)}, {s(S_PITCH)}, 3')
I(f's_add_u32 {s(VW_SO + 1)}, {s(VW_SO)}, {s(S_T4)}')
RTV, RTL, PFV = T + 8, T + 9, T + 10
I(f'v_lshrrev_b32 {v(RTV)}, 4, {v(V_LANE)}')
I(f'v_mul_u32_u24 {v(RTV)}, 1280, {v(RTV)}')
I(f'v_and_b32 {v(T)}, 15, {v(V_LANE)}')
I(f'v_lshl_add_u32 {v(RTV)}, {v(T)}, 4, {v(RTV)}')
I(f'v_lshlrev_b32 {v(RTL)}, 8, {v(LP)}')
I(f'v_and_b32 {v(T)}, 3, {v(V_LANE)}')
I(f'v_lshl_add_u32 {v(RTL)}, {v(T)}, 3, {v(RTL)}')
I(f'v_add_u32 {v(RTL)}, {s(RT_SCR)}, {v(RTL)}')
I(f'v_and_b32 {v(T)}, 7, {v(V_LANE)}')
I(f's_cmp_eq_u32 {s(S_TYPE)}, 0')
I(f's_cselect_b32 {s(S_T4)}, 5, 3')
I(f's_cselect_b32 {s(S_T5)}, {1280 - 256}, 0')
I(f'v_min_u32 {v(T)}, {s(S_T4)}, {v(T)}')
I(f'v_lshrrev_b32 {v(T + 1)}, 1, {v(T)}')
I(f'v_mul_u32_u24 {v(T + 1)}, {s(S_T5)}, {v(T + 1)}')
I(f'v_lshl_add_u32 {v(PFV)}, {v(T)}, 7, {v(T + 1)}')
I(f'v_lshrrev_b32 {v(T)}, 3, {v(V_LANE)}')
I(f'v_mad_u32_u24 {v(PFV)}, {v(T)}, {s(S_PITCH)}, {v(PFV)}')
I(f's_and_b32 {s(S_T4)}, {s(S_MT)}, 7')
I(f's_lshl_b32 {s(S_T4)}, {s(S_T4)}, 1')
I(f's_add_u32 {s(S_T4)}, {s(S_T4)}, {s(S_T3)}')
I(f's_mul_i32 {s(S_T4)}, {s(S_T4)}, 40')
I(f's_mul_i32 {s(S_PFO)}, {s(S_T4)}, {s(S_PITCH)}')
I(f's_add_u32 {s(S_PFO)}, {s(S_PFO)}, {s(S_CB)}')
I(f's_lshl_b32 {s(S_T4)}, {s(S_PITCH)}, 3')
stamp(2, 2)
I('s_barrier')
stamp(3, 2)
for i in range(5):
    I(f'buffer_load_dword {v(T + 12 + i)}, {v(PFV)}, {s(SRD_B, 4)}, {s(S_PFO)} offen', tag='pf')
    I(f's_add_u32 {s(S_PFO)}, {s(S_PFO)}, {s(S_T4)}')
for t in range(8):
    hf_, g = t >> 2, t & 3
    I(f's_mul_i32 {s(S_T3)}, {s(RT_A)}, {g}')
    I(f's_add_u32 {s(S_T3)}, {s(S_T3)}, {s(RT_K0)}')
    if hf_:
        I(f's_add_u32 {s(S_T3)}, {s(S_T3)}, {s(RT_B)}')
    I(f's_add_u32 m0, {s(RT_SCR)}, {1024 * t}')
    I(f'buffer_load_dwordx4 {v(RTV)}, {s(SRD_RT, 4)}, {s(S_T3)} offen lds', tag='rt')
I(f's_mul_i32 {s(S_T3)}, {s(S_T1)}, 40960')
I(f's_lshl_b32 {s(S_T4)}, {s(S_T2)}, 13')
I(f's_add_u32 {s(S_T3)}, {s(S_T3)}, {s(S_T4)}')
I(f's_add_u32 {s(S_T3)}, {s(S_T3)}, {W_T}')
I(f's_cmp_lt_u32 {s(S_T1)}, 74')
I(f's_cselect_b32 {s(S_T3)}, {s(S_T3)}, {OOB}')
k.wait_vm_tag('pf')
stamp(4, 2)
for sl in range(NPRE):
    for h in range(2):
        I(f's_add_u32 m0, {s(VW_M0 + h)}, {sl * SLOT}')
        for j in range(4):
            dma1(j, VW_SO + h, 'ring')
        I(f's_add_u32 {s(VW_SO + h)}, {s(VW_SO + h)}, {s(S_KSTR)}')
    if sl == 1:
        k.wait_vm_tag('rt')
        RF = ACC
        for nb in range(8):
            I(f'ds_read_b64_tr_b16 {v(RF + 4 * nb, 2)}, {v(RTL)} offset:{32 * nb}')
            I(f'ds_read_b64_tr_b16 {v(RF + 4 * nb + 2, 2)}, {v(RTL)} offset:{32 * nb + 4096}')
        for nb in range(8):
            I(f'buffer_store_dwordx4 {v(RF + 4 * nb, 4)}, {v(V_L16 if nb < 4 else V_L16B)}, {s(SRD_WS, 4)}, {s(S_T3)} offen offset:{1024 * (nb & 3)} sc1')
stamp(5, 2)
stamp(1)
k.wait_all(vm=False, lg=True)

k.label('L_pro_join')
k.vmq = [(set(), 'unknown')]
k.lgq = []
I('s_nop 4')
I(f's_cmp_eq_u32 {s(S_TYPE)}, 1')
I('s_cbranch_scc1 L_ffn')
st_join = k.state()


def ln_wait():
    lab = k.newlabel('L_lnw')
    I(f's_cmp_eq_u32 {s(S_WAVE)}, 0')
    I(f's_cbranch_scc0 {lab}')
    stamp(6, 2)
    poll(V_PA, 'ln')
    k.label(lab)
    k.wait_all()
    stamp(7, 2)
    I('s_barrier')
    stamp(8, 2)


def tag_fetch():
    I(f'v_mov_b32 {v(T + 1)}, {CNT}')
    I(f'ds_read_b32 {v(T)}, {v(T + 1)} offset:4')
    I(f'v_readfirstlane_b32 {s(S_TAG)}, {v(T)}')


def load_A(ks, rb):
    I(f'buffer_load_dwordx4 {a((ks * 2 + rb) * 4, 4)}, {v(V_L16)}, {s(SRD_WS, 4)}, {s(S_AO + rb * 5 + ks // 4)} offen offset:{(ks & 3) * 1024} sc1')


W2ORDER = list(range(40, 64)) + list(range(40))


def w2reg(st, nb):
    f = st * 5 + nb
    return a(4 * W2ORDER[f], 4) if f < 64 else v(W2V + 4 * (f - 64), 4)


def w2load(f):
    st, nb = divmod(f, 5)
    if st == 13 and nb == 0:
        I(f's_add_u32 {s(S_W2B)}, {s(S_W2B)}, {s(S_LAST)}')
    I(f'buffer_load_dwordx4 {w2reg(st, nb)}, {v(V_L16 if nb < 4 else V_L16B)}, {s(SRD_WS, 4)}, {s(S_W2B)} offen offset:{(nb & 3) * 1024} sc1')
    if nb == 4:
        I(f's_add_u32 {s(S_W2B)}, {s(S_W2B)}, 40960')


W2_INLOOP = 48


def mainloop(ncb, halo, first_c_zero):
    NF = ncb + (3 if halo else 0)
    LA = 7
    items = [(ks, j) for ks in range(20) for j in range(NF)]
    N = len(items)
    aux = [[] for _ in range(20)]
    for ks in range(8):
        for kk in (2 * ks + 4, 2 * ks + 5):
            for rb in range(2):
                aux[ks].append(lambda kk=kk, rb=rb: load_A(kk, rb))
    for ks in range(20 - NPRE):
        kn = ks + NPRE
        dm = []
        for j in range(4):
            def f(j=j, kn=kn):
                if j == 0:
                    I(f's_add_u32 m0, {s(S_M0B)}, {(kn % NSLOT) * SLOT}')
                dma1(j, S_SOFF, ('dma', kn))
                if j == 3:
                    I(f's_add_u32 {s(S_SOFF)}, {s(S_SOFF)}, {s(S_KSTR)}')
            dm.append(f)
        old = aux[ks]
        mix = []
        for i in range(4):
            mix.append(dm[i])
            if i < len(old):
                mix.append(old[i])
        aux[ks] = mix + old[4:]
    aux[5].append(lambda: chk_issue(V_PA, 4))
    f = 0
    for ks in range(8, 20):
        cnt = 3 if ks < 16 else 6
        for _ in range(cnt):
            assert f < 24 or ks > (f - 24) // 2
            aux[ks].append(lambda f=f: w2load(f))
            f += 1
    assert f == W2_INLOOP

    def rd(n, half):
        ks, j = items[n]
        sl = ks % NSLOT
        w = WIN + 4 * (n % 8)
        if j < ncb:
            base = V_TR0 if sl < 4 else V_TR1
            off = (sl % 4) * SLOT + 32 * j
        else:
            base = V_TRH0 if sl < 4 else V_TRH1
            off = (sl % 4) * SLOT + 32 * (j - ncb)
        if j == 0 and half == 0 and ks >= 2 and ks % 2 == 0:
            if ks + 1 >= NPRE:
                k.wait_vm_tag(('dma', ks + 1))
            I('s_barrier')
            if ks == 2:
                lab = k.newlabel('L_nf')
                I(f's_cmp_eq_u32 {s(S_WAVE)}, 0')
                I(f's_cbranch_scc0 {lab}')
                I(f's_lshl_b32 {s(S_T3)}, {s(S_WG)}, 2')
                flag_store(WTF, S_T3, T)
                k.label(lab)
        I(f'ds_read_b64_tr_b16 {v(w + 2 * half, 2)}, {v(base)} offset:{off + 512 * half}')
        if halo and j == ncb and half == 1:
            I(f'ds_read_b128 {v(HX + 4 * (ks & 1), 4)}, {v(V_X)} offset:{ks * 1024}')

    for n in range(LA):
        rd(n, 0)
        rd(n, 1)
    I(f'v_add_u32 {v(V_PA)}, {WTF}, {v(V_L16)}')
    for n in range(N):
        ks, j = items[n]
        w = WIN + 4 * (n % 8)
        if j == 0:
            pend = list(aux[ks])
            tot = len(pend)
            done = 0
            if ks in (0, 1, 2, 4, 8, 12, 16, 18):
                stamp(1 + (0, 1, 2, 4, 8, 12, 16, 18).index(ks), 1)
            if ks == 8:
                poll(V_PA, 'wt', 4, preissued=True)
        if n % 2 == 0 and n + 1 < N:
            k._need(regs_of(v(WIN + 4 * ((n + 1) % 8), 4)) | regs_of(v(w, 4)))
        if j < ncb:
            for rb in range(2):
                d = ACC + (j * 2 + rb) * 4
                c_ = '0' if (ks == 0 and first_c_zero) else v(d, 4)
                I(f'v_mfma_f32_16x16x32_bf16 {v(d, 4)}, {v(w, 4)}, {a((ks * 2 + rb) * 4, 4)}, {c_}')
                if n + LA < N:
                    rd(n + LA, rb)
        else:
            d = HACC + (j - ncb) * 4
            c_ = '0' if ks == 0 else v(d, 4)
            I(f'v_mfma_f32_16x16x32_bf16 {v(d, 4)}, {v(w, 4)}, {v(HX + 4 * (ks & 1), 4)}, {c_}')
            if n + LA < N:
                rd(n + LA, 0)
                rd(n + LA, 1)
        while done < tot and done * NF <= j * tot + tot - 1 and (n % 2 == 0 or tot > NF // 2):
            pend[done]()
            done += 1
            if tot <= NF:
                break
        if j == NF - 1:
            while done < tot:
                pend[done]()
                done += 1


def publish(t0):
    chk_issue(V_PF)
    k.wait_all()
    I('s_barrier')
    lab = k.newlabel('L_np')
    I(f's_cmp_eq_u32 {s(S_WAVE)}, 0')
    I(f's_cbranch_scc0 {lab}')
    flag_store(P1F, S_FOFF, t0)
    k.label(lab)


I(f's_lshl_b32 {s(S_T3)}, {s(S_MT)}, 3')
I(f's_sub_u32 {s(S_T3)}, {s(S_T3)}, 1')
I(f's_mul_i32 {s(S_T3)}, {s(S_T3)}, 20480')
I(f's_mul_i32 {s(S_T4)}, {s(S_WAVE)}, 5120')
I(f's_add_u32 {s(S_T3)}, {s(S_T3)}, {s(S_T4)}')
I(f's_cmp_eq_u32 {s(S_MT)}, 0')
I(f's_cselect_b32 {s(S_T5)}, {OOB}, {s(S_T3)}')
I(f'v_add_u32 {v(T + 2)}, {s(S_T4)}, {v(V_X)}')
SA = T + 28
SH = T + 33
tm, tg, tn, tq = T + 4, T + 5, T + 6, T + 7
I(f'v_and_b32 {v(tm)}, 15, {v(V_LANE)}')
I(f'v_lshrrev_b32 {v(tg)}, 4, {v(V_LANE)}')
I(f's_lshl_b32 {s(S_T3)}, {s(S_WAVE)}, 5')
I(f's_add_u32 {s(S_T3)}, {s(S_T3)}, 16')
I(f'v_add_u32 {v(tq)}, {s(S_T3)}, {v(tm)}')
I(f'v_mul_u32_u24 {v(tq)}, {RS}, {v(tq)}')
for cb in range(5):
    I(f'v_lshl_add_u32 {v(tn)}, {v(tg)}, 2, {16 * cb}')
    I(f'v_mul_u32_u24 {v(SA + cb)}, 205, {v(tn)}')
    I(f'v_lshrrev_b32 {v(SA + cb)}, 12, {v(SA + cb)}')
    I(f'v_lshl_add_u32 {v(SA + cb)}, {v(SA + cb)}, 2, {v(tn)}')
    I(f'v_lshl_add_u32 {v(SA + cb)}, {v(SA + cb)}, 1, {v(tq)}')
assert all((n * 205) >> 12 == n // 20 for n in range(0, 240, 4))
I(f'v_mul_u32_u24 {v(tq)}, {RS}, {v(tm)}')
for j in range(3):
    I(f's_add_u32 {s(S_T3)}, {s(S_HB)}, {j}')
    I(f's_lshl_b32 {s(S_T3)}, {s(S_T3)}, 4')
    I(f'v_lshl_add_u32 {v(tn)}, {v(tg)}, 2, {s(S_T3)}')
    I(f'v_mul_u32_u24 {v(SH + j)}, 205, {v(tn)}')
    I(f'v_lshrrev_b32 {v(SH + j)}, 12, {v(SH + j)}')
    I(f'v_lshl_add_u32 {v(SH + j)}, {v(SH + j)}, 2, {v(tn)}')
    I(f'v_lshl_add_u32 {v(SH + j)}, {v(SH + j)}, 1, {v(tq)}')
ln_wait()
stamp(2)
for i in range(5):
    I(f'buffer_load_dwordx4 {v(T + 8 + 4 * i, 4)}, {v(V_L16 if i < 4 else V_L16B)}, {s(SRD_WS, 4)}, {s(S_T5)} offen offset:{(i & 3) * 1024} sc1')
for ks in range(4):
    for rb in range(2):
        load_A(ks, rb)
tag_fetch()
for i in range(5):
    I(f'ds_write_b128 {v(T + 2)}, {v(T + 8 + 4 * i, 4)} offset:{i * 1024}')
k.wait_all(vm=False, lg=True)
I('s_barrier')
stamp(3)
mainloop(15, True, True)
stamp(4)
w2rest = list(range(W2_INLOOP, 70))
VA, VB, VO, K2M0, K2M1, NEG = T, T + 1, T + 2, T + 3, 224, 225
t1, t2, t3 = T + 4, T + 5, T + 6
I(f's_mul_i32 {s(S_T3)}, {s(S_WAVE)}, 48')
I(f'v_and_b32 {v(t1)}, 0x38, {v(V_LANE)}')
I(f'v_bfe_u32 {v(t2)}, {v(V_LANE)}, 2, 1')
I(f'v_add_u32 {v(t1)}, {v(t1)}, {v(t2)}')
I(f'v_and_b32 {v(t2)}, 3, {v(V_LANE)}')
I(f'v_lshl_add_u32 {v(t1)}, {v(t2)}, 1, {v(t1)}')
I(f'v_mul_u32_u24 {v(VA)}, {RS}, {v(t1)}')
I(f'v_add_u32 {v(VA)}, {s(S_T3)}, {v(VA)}')
I('s_barrier')
PK = T + 8
n = 0
for cbg in list(range(5, 15)) + list(range(5)):
    sec, cb = divmod(cbg, 5)
    for rb in range(2):
        d = ACC + (cbg * 2 + rb) * 4
        p = PK + 2 * (n % 4)
        n += 1
        I(f'v_cvt_pk_bf16_f32 {v(p)}, {v(d)}, {v(d + 1)}')
        I(f'v_cvt_pk_bf16_f32 {v(p + 1)}, {v(d + 2)}, {v(d + 3)}')
        I(f'ds_write_b64 {v(SA + cb)}, {v(p, 2)} offset:{sec * 192 + rb * 16 * RS}')
        if w2rest and n % 2 == 0:
            w2load(w2rest.pop(0))
for j in range(3):
    d = HACC + 4 * j
    p = PK + 2 * (n % 4)
    n += 1
    I(f'v_cvt_pk_bf16_f32 {v(p)}, {v(d)}, {v(d + 1)}')
    I(f'v_cvt_pk_bf16_f32 {v(p + 1)}, {v(d + 2)}, {v(d + 3)}')
    I(f'ds_write_b64 {v(SH + j)}, {v(p, 2)}')
I(f'v_and_b32 {v(VB)}, 0x30, {v(V_LANE)}')
I(f'v_bfe_u32 {v(t3)}, {v(V_LANE)}, 1, 1')
I(f'v_lshl_add_u32 {v(VB)}, {v(t3)}, 3, {v(VB)}')
I(f'v_and_b32 {v(t3)}, 1, {v(V_LANE)}')
I(f'v_add_u32 {v(VB)}, {v(VB)}, {v(t3)}')
I(f'v_bfe_u32 {v(t3)}, {v(V_LANE)}, 2, 2')
I(f'v_lshl_add_u32 {v(VB)}, {v(t3)}, 1, {v(VB)}')
I(f'v_mul_u32_u24 {v(VB)}, {RS}, {v(VB)}')
I(f'v_add_u32 {v(VB)}, {s(S_T3)}, {v(VB)}')
k.wait_all(vm=False, lg=True)
I('s_barrier')

TASKR = [16, 102]
for hf_ in range(2):
    R = TASKR[hf_]
    Q, Kr, Vr = R, R + 12, R + 48
    hb = hf_ * 64 * RS
    I(f'ds_read_b128 {v(Q, 4)}, {v(VA)} offset:{hb + 16 * RS}')
    I(f'ds_read_b128 {v(Q + 4, 4)}, {v(VA)} offset:{hb + 16 * RS + 16}')
    I(f'ds_read_b64 {v(Q + 8, 2)}, {v(VA)} offset:{hb + 16 * RS + 32}')
    for kg in range(3):
        o = hb + kg * 8 * RS + 192
        I(f'ds_read_b128 {v(Kr + 12 * kg, 4)}, {v(VA)} offset:{o}')
        I(f'ds_read_b128 {v(Kr + 12 * kg + 4, 4)}, {v(VA)} offset:{o + 16}')
        I(f'ds_read_b64 {v(Kr + 12 * kg + 8, 2)}, {v(VA)} offset:{o + 32}')
I(f'v_lshrrev_b32 {v(t3)}, 4, {v(t1)}')
I(f'v_mul_u32_u24 {v(VO)}, {ACT_MB}, {v(t3)}')
I(f'v_and_b32 {v(t3)}, 15, {v(t1)}')
I(f'v_lshl_add_u32 {v(VO)}, {v(t3)}, 4, {v(VO)}')
M1, M2, M3, INV1, INV01, INV02, INV03, SC_HI, SC_SCALE, SC_L2E, S_OB = 36, 38, 40, 42, 44, 46, 48, 50, 52, 54, 35
for reg, pat in ((M1, 0xeeeeeeee), (M2, 0xcccccccc), (M3, 0x88888888)):
    I(f's_mov_b32 {s(reg)}, {hex(pat)}')
    I(f's_mov_b32 {s(reg + 1)}, {hex(pat)}')
I(f'v_mov_b32 {v(t3)}, 0xffff')
I(f'v_cndmask_b32 {v(K2M0)}, {v(t3)}, -1, {s(M1, 2)}')
I(f'v_cndmask_b32 {v(K2M1)}, 0, {v(t3)}, {s(M2, 2)}')
I(f'v_cndmask_b32 {v(K2M1)}, {v(K2M1)}, -1, {s(M3, 2)}')
I(f'v_mov_b32 {v(NEG)}, {f32(-1e9)}')
I(f's_cmp_eq_u32 {s(S_MT)}, 0')
I(f's_cselect_b32 {s(INV1)}, 0xff, 0')
I(f's_cselect_b32 {s(INV01)}, 0x1111, 0')
I(f's_cselect_b32 {s(INV02)}, 0x3333, 0')
I(f's_cselect_b32 {s(INV03)}, 0x7777, 0')
for reg in (INV1, INV01, INV02, INV03):
    I(f's_mov_b32 {s(reg + 1)}, 0')
I(f's_mov_b32 {s(SC_HI)}, 0xffff0000')
I(f's_mov_b32 {s(SC_SCALE)}, {f32(20 ** -0.5)}')
I(f's_mov_b32 {s(SC_SCALE + 1)}, {f32(20 ** -0.5)}')
I(f's_mov_b32 {s(SC_L2E)}, {f32(1.4426950408889634)}')
I(f's_mov_b32 {s(SC_L2E + 1)}, {f32(1.4426950408889634)}')
SREG = [T + 4, T + 16]
for hf_ in range(2):
    R = TASKR[hf_]
    Q, Kr, Vr = R, R + 12, R + 48
    Sx = SREG[hf_]
    hb = hf_ * 64 * RS
    for dc in range(5):
        for kg in range(3):
            c_ = '0' if dc == 0 else v(Sx + 4 * kg, 4)
            I(f'v_mfma_f32_4x4x4_16b_bf16 {v(Sx + 4 * kg, 4)}, {v(Kr + 12 * kg + 2 * dc, 2)}, {v(Q + 2 * dc, 2)}, {c_}')
            I(f'ds_read_b64_tr_b16 {v(Vr + 2 * (kg * 5 + dc), 2)}, {v(VB)} offset:{hb + kg * 8 * RS + 384 + 8 * dc}')
I(f's_mul_i32 {s(S_OB)}, {s(S_MT)}, {8 * ACT_MB}')
I(f's_add_u32 {s(S_OB)}, {s(S_OB)}, {ACT_T}')
I(f's_mul_i32 {s(S_T3)}, {s(S_IDX)}, 2560')
I(f's_add_u32 {s(S_OB)}, {s(S_OB)}, {s(S_T3)}')
I(f's_lshr_b32 {s(S_T3)}, {s(S_WAVE)}, 1')
I(f's_mul_i32 {s(S_T3)}, {s(S_T3)}, 1280')
I(f's_add_u32 {s(S_OB)}, {s(S_OB)}, {s(S_T3)}')
I(f's_add_u32 {s(S_T4)}, {s(S_OB)}, {4 * ACT_MB}')
for hf_ in range(2):
    R = TASKR[hf_]
    Q, Kr, Vr = R, R + 12, R + 48
    Sx = SREG[hf_]
    Lg = Sx + 4
    for r, M in ((1, M1), (2, M2), (3, M3)):
        I(f'v_cndmask_b32 {v(Sx + 8 + r)}, {v(Sx + r)}, {v(Sx + 8 + r)}, {s(M, 2)}')
    P = Sx
    for i in range(4):
        I(f'v_cvt_pk_bf16_f32 {v(P + i)}, {v(Lg + 2 * i)}, {v(Lg + 2 * i + 1)}')
    for i in range(4):
        I(f'v_lshlrev_b32 {v(Lg + 2 * i)}, 16, {v(P + i)}')
        I(f'v_and_b32 {v(Lg + 2 * i + 1)}, {s(SC_HI)}, {v(P + i)}')
    for i in range(4):
        I(f'v_pk_mul_f32 {v(Lg + 2 * i, 2)}, {v(Lg + 2 * i, 2)}, {s(SC_SCALE, 2)}')
    if w2rest:
        w2load(w2rest.pop(0))
    for i in range(4):
        I(f'v_cvt_pk_bf16_f32 {v(P + i)}, {v(Lg + 2 * i)}, {v(Lg + 2 * i + 1)}')
    for i in range(4):
        I(f'v_lshlrev_b32 {v(Lg + 2 * i)}, 16, {v(P + i)}')
        I(f'v_and_b32 {v(Lg + 2 * i + 1)}, {s(SC_HI)}, {v(P + i)}')
    if w2rest:
        w2load(w2rest.pop(0))
    if hf_ == 0:
        for r in range(4):
            I(f'v_cndmask_b32 {v(Lg + r)}, {v(Lg + r)}, {v(NEG)}, {s(INV1, 2)}')
        for r, M in ((1, INV01), (2, INV02), (3, INV03)):
            I(f'v_cndmask_b32 {v(Lg + 4 + r)}, {v(Lg + 4 + r)}, {v(NEG)}, {s(M, 2)}')
    mx = P
    I(f'v_max3_f32 {v(mx)}, {v(Lg)}, {v(Lg + 1)}, {v(Lg + 2)}')
    I(f'v_max3_f32 {v(mx + 1)}, {v(Lg + 3)}, {v(Lg + 4)}, {v(Lg + 5)}')
    I(f'v_max3_f32 {v(mx)}, {v(mx)}, {v(Lg + 6)}, {v(Lg + 7)}')
    I(f'v_max_f32 {v(mx)}, {v(mx)}, {v(mx + 1)}')
    I(f'v_mov_b32 {v(mx + 1)}, {v(mx)}')
    for i in range(4):
        I(f'v_pk_add_f32 {v(Lg + 2 * i, 2)}, {v(Lg + 2 * i, 2)}, {v(mx, 2)} neg_lo:[0,1] neg_hi:[0,1]')
    for i in range(4):
        I(f'v_pk_mul_f32 {v(Lg + 2 * i, 2)}, {v(Lg + 2 * i, 2)}, {s(SC_L2E, 2)}')
    if w2rest:
        w2load(w2rest.pop(0))
    for i in range(8):
        I(f'v_exp_f32 {v(Lg + i)}, {v(Lg + i)}')
    I(f'v_pk_add_f32 {v(P, 2)}, {v(Lg, 2)}, {v(Lg + 2, 2)}')
    I(f'v_pk_add_f32 {v(P + 2, 2)}, {v(Lg + 4, 2)}, {v(Lg + 6, 2)}')
    I(f'v_pk_add_f32 {v(P, 2)}, {v(P, 2)}, {v(P + 2, 2)}')
    I(f'v_add_f32 {v(P)}, {v(P)}, {v(P + 1)}')
    I(f'v_rcp_f32 {v(P)}, {v(P)}')
    if w2rest:
        w2load(w2rest.pop(0))
    I(f'v_mov_b32 {v(P + 1)}, {v(P)}')
    for i in range(4):
        I(f'v_pk_mul_f32 {v(Lg + 2 * i, 2)}, {v(Lg + 2 * i, 2)}, {v(P, 2)}')
    PB = Kr
    I(f'v_cvt_pk_bf16_f32 {v(PB + 2)}, {v(Lg)}, {v(Lg + 1)}')
    I(f'v_cvt_pk_bf16_f32 {v(PB + 3)}, {v(Lg + 2)}, {v(Lg + 3)}')
    I(f'v_cvt_pk_bf16_f32 {v(PB)}, {v(Lg + 4)}, {v(Lg + 5)}')
    I(f'v_cvt_pk_bf16_f32 {v(PB + 1)}, {v(Lg + 6)}, {v(Lg + 7)}')
    I(f'v_and_b32 {v(PB + 4)}, {v(PB)}, {v(K2M0)}')
    I(f'v_and_b32 {v(PB + 5)}, {v(PB + 1)}, {v(K2M1)}')
    I(f'v_xor_b32 {v(PB)}, {v(PB)}, {v(PB + 4)}')
    I(f'v_xor_b32 {v(PB + 1)}, {v(PB + 1)}, {v(PB + 5)}')
    O = Kr + 8
    for kg in (1, 2, 0):
        for dc in range(5):
            c_ = '0' if kg == 1 else v(O + 4 * dc, 4)
            I(f'v_mfma_f32_4x4x4_16b_bf16 {v(O + 4 * dc, 4)}, {v(Vr + 2 * (kg * 5 + dc), 2)}, {v(PB + 2 * kg, 2)}, {c_}')
while w2rest:
    w2load(w2rest.pop(0))
for hf_ in range(2):
    R = TASKR[hf_]
    O = R + 12 + 8
    for i in range(10):
        I(f'v_cvt_pk_bf16_f32 {v(R + i)}, {v(O + 2 * i)}, {v(O + 2 * i + 1)}')
lodd, ldone = k.newlabel('L_oodd'), k.newlabel('L_odone')
I(f's_bitcmp1_b32 {s(S_WAVE)}, 0')
I(f's_cbranch_scc1 {lodd}')
sto = k.state()
for hf_ in range(2):
    OP = TASKR[hf_]
    so = s(S_OB if hf_ == 0 else S_T4)
    I(f'buffer_store_dwordx4 {v(OP, 4)}, {v(VO)}, {s(SRD_WS, 4)}, {so} offen sc1')
    I(f'buffer_store_dwordx4 {v(OP + 4, 4)}, {v(VO)}, {s(SRD_WS, 4)}, {so} offen offset:256 sc1')
    I(f'buffer_store_dwordx2 {v(OP + 8, 2)}, {v(VO)}, {s(SRD_WS, 4)}, {so} offen offset:512 sc1')
I(f's_branch {ldone}')
k.set_state(sto)
k.label(lodd)
for hf_ in range(2):
    OP = TASKR[hf_]
    so = s(S_OB if hf_ == 0 else S_T4)
    I(f'buffer_store_dwordx2 {v(OP, 2)}, {v(VO)}, {s(SRD_WS, 4)}, {so} offen offset:520 sc1')
    I(f'buffer_store_dwordx4 {v(OP + 2, 4)}, {v(VO)}, {s(SRD_WS, 4)}, {so} offen offset:768 sc1')
    I(f'buffer_store_dwordx4 {v(OP + 6, 4)}, {v(VO)}, {s(SRD_WS, 4)}, {so} offen offset:1024 sc1')
k.label(ldone)
stamp(5)
publish(T)
I('s_branch L_phase2')

k.set_state(st_join)
k.label('L_ffn')
I(f's_lshl_b32 {s(S_T3)}, {s(S_WAVE)}, 9')
I(f's_add_u32 {s(S_T3)}, {s(S_T3)}, {HALO}')
I(f'v_lshl_add_u32 {v(T)}, {v(V_LANE)}, 3, {s(S_T3)}')
I(f'ds_write_b64 {v(T)}, {v(BIAS, 2)}')
I(f'v_lshrrev_b32 {v(T)}, 4, {v(V_LANE)}')
I(f'v_lshl_add_u32 {v(T)}, {v(T)}, 3, {s(S_T3)}')
for cb in range(14):
    I(f'ds_read_b64 {v(T + 8 + 2 * cb, 2)}, {v(T)} offset:{32 * cb}')
I(f's_mov_b32 {s(S_T4)}, 0xffff0000')
for cb in range(14):
    for rb in range(2):
        d = ACC + (cb * 2 + rb) * 4
        for h in range(2):
            I(f'v_lshlrev_b32 {v(d + 2 * h)}, 16, {v(T + 8 + 2 * cb + h)}')
            I(f'v_and_b32 {v(d + 2 * h + 1)}, {s(S_T4)}, {v(T + 8 + 2 * cb + h)}')
ln_wait()
stamp(2)
for ks in range(4):
    for rb in range(2):
        load_A(ks, rb)
tag_fetch()
stamp(3)
mainloop(14, False, False)
stamp(4)
w2rest = list(range(W2_INLOOP, 70))
C0 = -2.0 * 0.7978845608028654 * 1.4426950408889634
C1 = C0 * 0.044715
GC0, GONE = T, T + 2
GS1 = 36
I(f'v_mov_b32 {v(GC0)}, {f32(C0)}')
I(f'v_mov_b32 {v(GC0 + 1)}, {f32(C0)}')
I(f'v_mov_b32 {v(GONE)}, 1.0')
I(f'v_mov_b32 {v(GONE + 1)}, 1.0')
I(f's_mov_b32 {s(GS1)}, {f32(C1)}')
I(f's_mov_b32 {s(GS1 + 1)}, {f32(C1)}')
S_HB2 = 38
I(f's_mul_i32 {s(S_HB2)}, {s(S_MB0)}, {ACT_MB}')
I(f's_lshl_b32 {s(S_T3)}, {s(S_START)}, 10')
I(f's_add_u32 {s(S_HB2)}, {s(S_HB2)}, {s(S_T3)}')
I(f's_add_u32 {s(S_HB2)}, {s(S_HB2)}, {ACT_T + 20 * 1024}')
I(f's_add_u32 {s(S_HB2 + 1)}, {s(S_HB2)}, {ACT_MB}')
n = 0
for pr in range(7):
    for rb in range(2):
        tmp = T + 4 + 8 * (n % 2)
        out = T + 20 + 4 * (n % 4)
        n += 1
        xs = [ACC + ((2 * pr + c2) * 2 + rb) * 4 + 2 * h for c2 in range(2) for h in range(2)]
        for i, x in enumerate(xs):
            I(f'v_pk_mul_f32 {v(tmp + 2 * i, 2)}, {v(x, 2)}, {v(x, 2)}')
        for i, x in enumerate(xs):
            I(f'v_pk_fma_f32 {v(tmp + 2 * i, 2)}, {v(tmp + 2 * i, 2)}, {s(GS1, 2)}, {v(GC0, 2)}')
        for i, x in enumerate(xs):
            I(f'v_pk_mul_f32 {v(tmp + 2 * i, 2)}, {v(tmp + 2 * i, 2)}, {v(x, 2)}')
        if w2rest:
            w2load(w2rest.pop(0))
        for i in range(8):
            I(f'v_exp_f32 {v(tmp + i)}, {v(tmp + i)}')
        for i in range(4):
            I(f'v_pk_add_f32 {v(tmp + 2 * i, 2)}, {v(tmp + 2 * i, 2)}, {v(GONE, 2)}')
        if w2rest:
            w2load(w2rest.pop(0))
        for i in range(8):
            I(f'v_rcp_f32 {v(tmp + i)}, {v(tmp + i)}')
        for i, x in enumerate(xs):
            I(f'v_pk_mul_f32 {v(tmp + 2 * i, 2)}, {v(tmp + 2 * i, 2)}, {v(x, 2)}')
        for i in range(4):
            I(f'v_cvt_pk_bf16_f32 {v(out + i)}, {v(tmp + 2 * i)}, {v(tmp + 2 * i + 1)}')
        I(f'buffer_store_dwordx4 {v(out, 4)}, {v(V_L16 if pr < 4 else V_L16B)}, {s(SRD_WS, 4)}, {s(S_HB2 + rb)} offen offset:{(pr & 3) * 1024} sc1')
assert not w2rest
stamp(5)
publish(T)

k.label('L_phase2')
k.vmq = [(set(), 'unknown')]
k.lgq = []
I('s_nop 4')
stamp(6)
YACC = 16
SACC = 96
HW = 116
HWN = 5
XIN = 196
B2V = 206
T2 = 216
S_HO = 32
S_OBASE, S_WOB, S_WOM, S_OOK, S_HI, S_NL2E = 36, 37, 38, 39, 40, 41
I(f's_mul_i32 {s(S_OBASE)}, {s(S_M2)}, {4 * ACT_MB}')
I(f's_add_u32 {s(S_OBASE)}, {s(S_OBASE)}, {ACT_T}')
I(f's_mul_i32 {s(S_T3)}, {s(S_WAVE)}, 14')
I(f's_min_u32 {s(S_T3)}, {s(S_T3)}, 41')
I(f's_add_u32 {s(S_T3)}, {s(S_T3)}, 20')
I(f's_lshl_b32 {s(S_T3)}, {s(S_T3)}, 10')
I(f's_add_u32 {s(S_HO)}, {s(S_OBASE)}, {s(S_T3)}')
for mb in range(1, 4):
    I(f's_add_u32 {s(S_HO + mb)}, {s(S_HO)}, {mb * ACT_MB}')
poll(V_PF, 'ffn', preissued=True)
stamp(7)


def hload(st, mb):
    if st == 13:
        I(f's_add_u32 {s(S_HO + mb)}, {s(S_HO + mb)}, {s(S_LAST)}')
    I(f'buffer_load_dwordx4 {v(HW + 16 * (st % HWN) + 4 * mb, 4)}, {v(V_L16)}, {s(SRD_WS, 4)}, {s(S_HO + mb)} offen offset:{(st & 3) * 1024} sc1')
    if st & 3 == 3:
        I(f's_add_u32 {s(S_HO + mb)}, {s(S_HO + mb)}, 4096')


for st in range(HWN):
    for mb in range(4):
        hload(st, mb)
I(f's_mul_i32 {s(S_T3)}, {s(S_WAVE)}, {ACT_MB}')
I(f's_add_u32 {s(S_OBASE)}, {s(S_OBASE)}, {s(S_T3)}')
I(f's_mul_i32 {s(S_WOB)}, {s(S_WAVE)}, {5 * 40960}')
I(f's_mul_i32 {s(S_T3)}, {s(S_NT)}, 5120')
I(f's_add_u32 {s(S_WOB)}, {s(S_WOB)}, {s(S_T3)}')
I(f's_add_u32 {s(S_WOB)}, {s(S_WOB)}, {W_T}')
I(f's_mul_i32 {s(S_WOM)}, {s(S_WAVE)}, {25 * 1024}')
I(f's_mov_b32 {s(S_HI)}, 0xffff0000')
I(f's_mov_b32 {s(S_NL2E)}, {f32(-1.4426950408889634)}')
VXO, VB2, VPA2, VRED, VRED2, VWO2 = T2, T2 + 1, T2 + 2, T2 + 3, T2 + 4, T2 + 5
I(f'v_and_b32 {v(VB2)}, 15, {v(V_LANE)}')
I(f's_lshl_b32 {s(S_T3)}, {s(S_M2)}, 6')
I(f's_lshl_b32 {s(S_T4)}, {s(S_WAVE)}, 4')
I(f's_add_u32 {s(S_T3)}, {s(S_T3)}, {s(S_T4)}')
I(f'v_add_u32 {v(VB2)}, {s(S_T3)}, {v(VB2)}')
I(f'v_mul_u32_u24 {v(VXO)}, 1280, {v(VB2)}')
I(f'v_lshrrev_b32 {v(VB2)}, 4, {v(V_LANE)}')
I(f's_mul_i32 {s(S_T3)}, {s(S_NT)}, 160')
I(f'v_lshl_add_u32 {v(VB2)}, {v(VB2)}, 3, {s(S_T3)}')
I(f'v_add_u32 {v(VXO)}, {v(VXO)}, {v(VB2)}')
I(f'v_subrev_u32 {v(VPA2)}, 32, {v(V_PF)}')
I(f'v_add_u32 {v(VRED)}, {LDS_RED}, {v(V_L16)}')
I(f's_mul_i32 {s(S_T3)}, {s(S_WAVE)}, {15 * 1024}')
I(f'v_add_u32 {v(VRED2)}, {s(S_T3)}, {v(VRED)}')
I(f'v_add_u32 {v(VWO2)}, 65536, {v(V_L16)}')


def wodma(f):
    i, nb = divmod(f, 5)
    if nb == 0 or nb == 4:
        I(f's_add_u32 m0, {s(S_WOM)}, {LDS_WO + (i * 5 + (4 if nb == 4 else 0)) * 1024}')
    I(f'buffer_load_dwordx4 {v(V_L16 if nb < 4 else V_L16B)}, {s(SRD_WS, 4)}, {s(S_WOB)} offen offset:{(nb & 3) * 1024} sc1 lds')
    if nb == 4:
        I(f's_add_u32 {s(S_WOB)}, {s(S_WOB)}, 40960')


def oreg(ks):
    return a(4 * W2ORDER[ks], 4)


def oloads():
    for ks in range(20):
        if ks % 8 == 0 and ks:
            I(f's_add_u32 {s(S_OBASE)}, {s(S_OBASE)}, 8192')
        I(f'buffer_load_dwordx4 {oreg(ks)}, {v(V_L16 if (ks & 7) < 4 else V_L16B)}, {s(SRD_WS, 4)}, {s(S_OBASE)} offen offset:{(ks & 3) * 1024} sc1')


aux2 = [[] for _ in range(14)]
for st in range(14 - HWN):
    pass
extra = [lambda f=f: wodma(f) for f in range(25)]
for nb in range(5):
    extra.append(lambda nb=nb: I(f'buffer_load_dwordx2 {v(XIN + 2 * nb, 2)}, {v(VXO)}, {s(SRD_X, 4)}, 0 offen offset:{32 * nb}'))
    extra.append(lambda nb=nb: I(f'buffer_load_dwordx2 {v(B2V + 2 * nb, 2)}, {v(VB2)}, {s(SRD_B2, 4)}, 0 offen offset:{32 * nb}'))
for st in range(14):
    if st == 12:
        k.wait_all(vm=True, lg=False)
        chk_eval()
        I(f's_mov_b32 {s(S_OOK)}, 0')
        lab = k.newlabel('L_noo')
        I(f's_cbranch_vccnz {lab}')
        I(f's_mov_b32 {s(S_OOK)}, 1')
        oloads()
        k.vmq = []
        k.label(lab)
    for mb in range(4):
        for nb in range(5):
            d = YACC + (mb * 5 + nb) * 4
            c_ = '0' if st == 0 else v(d, 4)
            I(f'v_mfma_f32_16x16x32_bf16 {v(d, 4)}, {w2reg(st, nb)}, {v(HW + 16 * (st % HWN) + 4 * mb, 4)}, {c_}')
            if nb == 2 and extra and st < 9:
                extra.pop(0)()
        if st + HWN < 14:
            hload(st + HWN, mb)
    if st == 9:
        assert not extra
        chk_issue(VPA2)
stamp(8)
labs = [k.newlabel('L_red') for _ in range(4)]
lend = k.newlabel('L_redend')
stw = k.state()
YOWN = HW
for w in range(4):
    k.set_state(stw)
    if w:
        k.label(labs[w])
    if w < 3:
        I(f's_cmp_eq_u32 {s(S_WAVE)}, {w}')
        I(f's_cbranch_scc0 {labs[w + 1]}')
    I('s_nop 7')
    r = 0
    for i in range(1, 4):
        mb = (w + i) & 3
        for nb in range(5):
            I(f'ds_write_b128 {v(VRED)}, {v(YACC + (mb * 5 + nb) * 4, 4)} offset:{((mb * 3 + i - 1) * 5 + nb) * 1024}')
            for _ in range(2):
                if r < 20:
                    I(f'v_mov_b32 {v(YOWN + r)}, {v(YACC + w * 20 + r)}')
                    r += 1
    if w < 3:
        I(f's_branch {lend}')
k.label(lend)
k.wait_all(vm=False, lg=True)
I('s_barrier')
YT = HW + 20
for i in range(3):
    for nb in range(5):
        I(f'ds_read_b128 {v(YT + 20 * i + 4 * nb, 4)}, {v(VRED2)} offset:{(i * 5 + nb) * 1024}')
for i in range(3):
    for r in range(10):
        I(f'v_pk_add_f32 {v(YOWN + 2 * r, 2)}, {v(YOWN + 2 * r, 2)}, {v(YT + 20 * i + 2 * r, 2)}')
WOW = YACC
LA2 = 12


def woread(n):
    off = LDS_WO + n * 1024
    if off < 65536:
        I(f'ds_read_b128 {v(WOW + 4 * (n % 16), 4)}, {v(V_L16)} offset:{off}')
    else:
        I(f'ds_read_b128 {v(WOW + 4 * (n % 16), 4)}, {v(VWO2)} offset:{off - 65536}')


for n in range(LA2):
    woread(n)
G1 = YT
for half in range(2):
    rr = range(5 * half, 5 * half + 5)
    seq = [
        lambda y, p, r: f'v_cvt_pk_bf16_f32 {v(p)}, {v(y)}, {v(y + 1)}',
        lambda y, p, r: f'v_lshlrev_b32 {v(y)}, 16, {v(p)}',
        lambda y, p, r: f'v_and_b32 {v(y + 1)}, {s(S_HI)}, {v(p)}',
        lambda y, p, r: f'v_lshlrev_b32 {v(p)}, 16, {v(B2V + r)}',
        lambda y, p, r: f'v_and_b32 {v(p + 1)}, {s(S_HI)}, {v(B2V + r)}',
        lambda y, p, r: f'v_pk_add_f32 {v(y, 2)}, {v(y, 2)}, {v(p, 2)}',
        lambda y, p, r: f'v_cvt_pk_bf16_f32 {v(p)}, {v(y)}, {v(y + 1)}',
        lambda y, p, r: f'v_lshlrev_b32 {v(y)}, 16, {v(p)}',
        lambda y, p, r: f'v_and_b32 {v(y + 1)}, {s(S_HI)}, {v(p)}',
        lambda y, p, r: f'v_mul_f32 {v(p)}, {s(S_NL2E)}, {v(y)}',
        lambda y, p, r: f'v_mul_f32 {v(p + 1)}, {s(S_NL2E)}, {v(y + 1)}',
        lambda y, p, r: f'v_exp_f32 {v(p)}, {v(p)}',
        lambda y, p, r: f'v_exp_f32 {v(p + 1)}, {v(p + 1)}',
        lambda y, p, r: f'v_add_f32 {v(p)}, 1.0, {v(p)}',
        lambda y, p, r: f'v_add_f32 {v(p + 1)}, 1.0, {v(p + 1)}',
        lambda y, p, r: f'v_rcp_f32 {v(p)}, {v(p)}',
        lambda y, p, r: f'v_rcp_f32 {v(p + 1)}, {v(p + 1)}',
        lambda y, p, r: f'v_pk_mul_f32 {v(y, 2)}, {v(y, 2)}, {v(p, 2)}',
        lambda y, p, r: f'v_cvt_pk_bf16_f32 {v(p)}, {v(y)}, {v(y + 1)}',
        lambda y, p, r: f'v_lshlrev_b32 {v(y)}, 16, {v(p)}',
        lambda y, p, r: f'v_and_b32 {v(y + 1)}, {s(S_HI)}, {v(p)}',
    ]
    for fn in seq:
        for r in rr:
            I(fn(YOWN + 2 * r, G1 + 2 * r, r))
for r in range(10):
    I(f'v_lshlrev_b32 {v(G1 + 2 * r)}, 16, {v(XIN + r)}')
    I(f'v_and_b32 {v(G1 + 2 * r + 1)}, {s(S_HI)}, {v(XIN + r)}')
lab = k.newlabel('L_haveo')
I(f's_cmp_eq_u32 {s(S_OOK)}, 1')
I(f's_cbranch_scc1 {lab}')
poll(VPA2, 'att')
oloads()
k.label(lab)
stamp(1, 3)
for n in range(100):
    ks, nb = divmod(n, 5)
    d = SACC + 4 * nb
    c_ = '0' if ks == 0 else v(d, 4)
    if n % 2 == 0:
        k._need(regs_of(v(WOW + 4 * (n % 16), 8)))
    I(f'v_mfma_f32_16x16x32_bf16 {v(d, 4)}, {v(WOW + 4 * (n % 16), 4)}, {oreg(ks)}, {c_}')
    if n + LA2 < 100:
        woread(n + LA2)
PT = YT + 20
seq = [
    lambda sx, y, p, r: f'v_cvt_pk_bf16_f32 {v(p)}, {v(sx)}, {v(sx + 1)}',
    lambda sx, y, p, r: f'v_lshlrev_b32 {v(sx)}, 16, {v(p)}',
    lambda sx, y, p, r: f'v_and_b32 {v(sx + 1)}, {s(S_HI)}, {v(p)}',
    lambda sx, y, p, r: f'v_pk_mul_f32 {v(sx, 2)}, {v(sx, 2)}, {v(y, 2)}',
    lambda sx, y, p, r: f'v_cvt_pk_bf16_f32 {v(p)}, {v(sx)}, {v(sx + 1)}',
    lambda sx, y, p, r: f'v_lshlrev_b32 {v(sx)}, 16, {v(p)}',
    lambda sx, y, p, r: f'v_and_b32 {v(sx + 1)}, {s(S_HI)}, {v(p)}',
    lambda sx, y, p, r: f'v_pk_add_f32 {v(sx, 2)}, {v(sx, 2)}, {v(G1 + 2 * r, 2)}',
    lambda sx, y, p, r: f'v_cvt_pk_bf16_f32 {v(XIN + r)}, {v(sx)}, {v(sx + 1)}',
]
for nb in range(5):
    for fn in seq:
        for r in (2 * nb, 2 * nb + 1):
            I(fn(SACC + 2 * r, YOWN + 2 * r, PT + r, r))
    I(f'buffer_store_dwordx2 {v(XIN + 2 * nb, 2)}, {v(VXO)}, {s(SRD_OUT, 4)}, 0 offen offset:{32 * nb}')
if STAMPS:
    stamp(9, -1)
    k.wait_all()
    I(f's_lshl_b32 {s(S_T3)}, {s(S_WG)}, 8')
    I(f's_lshl_b32 {s(S_T4)}, {s(S_WAVE)}, 6')
    I(f's_add_u32 {s(S_T3)}, {s(S_T3)}, {s(S_T4)}')
    I(f's_add_u32 {s(S_T3)}, {s(S_T3)}, {STAMP_OFF}')
    I(f'v_mov_b32 {v(T2)}, 0')
    I('s_mov_b64 exec, 1')
    for i in range(10):
        I(f'v_mov_b32 {v(T2 + 1)}, {s(S_STAMP + 2 * i)}')
        I(f'buffer_store_dword {v(T2 + 1)}, {v(T2)}, {s(SRD_WS, 4)}, {s(S_T3)} offen offset:{4 * i}')
    I(f'v_mov_b32 {v(T2 + 1)}, {s(S_OOK)}')
    I(f'buffer_store_dword {v(T2 + 1)}, {v(T2)}, {s(SRD_WS, 4)}, {s(S_T3)} offen offset:56')
    I(f'v_mov_b32 {v(T2 + 1)}, {s(S_TYPE)}')
    I(f'buffer_store_dword {v(T2 + 1)}, {v(T2)}, {s(SRD_WS, 4)}, {s(S_T3)} offen offset:60')
k.label('L_end')
I('s_endpgm')

hdr = open('recurrent_scan__sliding_local_dilated__dense_activation_gelu__prompt.s.ref').read().split('\n')
head = [l for l in hdr if l.startswith(';') and '@launch' not in l and 'Override' not in l and 'grid=ceil' not in l]
print('\n'.join(head))
print(f'; @launch grid=(256,1,1) block=(256,1,1) lds={LDS_TOTAL}')
print(f'''.amdgcn_target "amdgcn-amd-amdhsa--gfx950"
.text
.globl {KNAME}
.p2align 8
.type {KNAME},@function
{KNAME}:''')
print(k.text())
print(f'''.section .rodata,"a"
.p2align 6
.amdhsa_kernel {KNAME}
  .amdhsa_next_free_vgpr 512
  .amdhsa_next_free_sgpr 102
  .amdhsa_accum_offset 256
  .amdhsa_group_segment_fixed_size 0
  .amdhsa_kernarg_size 88
  .amdhsa_user_sgpr_count 2
  .amdhsa_user_sgpr_kernarg_segment_ptr 1
  .amdhsa_system_sgpr_workgroup_id_x 1
  .amdhsa_float_denorm_mode_32 3
.end_amdhsa_kernel''')
```

```python
import sys, struct
from asmlib import *

KNAME = 'recurrent_scan__sliding_local_dilated__dense_activation_gelu__prompt_kernel'
STAMPS = '--stamps' in sys.argv


def opt(name, default):
    for x in sys.argv:
        if x.startswith(f'--{name}='):
            return int(x.split('=')[1])
    return default


SMODE = opt('smode', 0)

XN_T = 0
ACT_T = 128 * 20 * 1024
ACT_MB = 74 * 1024
W_T = ACT_T + 128 * ACT_MB
LNF = W_T + 74 * 40 * 1024
P1F = LNF + 16 * 128
WTF = P1F + 16 * 128
WS_USED = WTF + 1024
STAMP_OFF = WS_USED
WS_REC = WS_USED + (256 * 4 * 64 if STAMPS else 0)
OOB = 0x40000000

RROW = 1056
SLOT = 16 * RROW
NSLOT = 8
HALO = NSLOT * SLOT
CNT = HALO + 20 * 1024
RS = 592
LDS_WO = 0
LDS_RED = 100 * 1024
LDS_TOTAL = 163840


def f32(x):
    return '0x%08x' % struct.unpack('<I', struct.pack('<f', x))[0]


S_WG, S_FOFF = 2, 3
SRD_X, SRD_B, SRD_WS, SRD_DBG, SRD_OUT, SRD_RT, SRD_B1, SRD_B2 = 4, 8, 12, 16, 20, 24, 28, 56
P_X, P_WQKV, P_WO, P_BX, P_W1, P_B1, P_W2, P_B2, P_OUT, P_DBG, P_WS = 32, 34, 36, 38, 40, 42, 44, 46, 48, 50, 52
S_WAVE, S_MT, S_TYPE, S_IDX, S_FB, S_PITCH, S_KSTR, S_START = 60, 61, 62, 63, 64, 65, 66, 67
S_T0, S_T1, S_T2, S_T3, S_T4, S_T5 = 68, 69, 70, 71, 72, 73
S_M0B, S_SOFF, S_M2, S_NT, S_SPIN, S_TAG = 74, 75, 76, 77, 78, 79
S_STAMP = 80
S_W2B, S_LAST = 100, 101
S_HB, S_MB0 = 32, 33
S_AO = 36

V_LANE = 1
V_DMA = 2
V_TR0, V_TR1 = 6, 7
V_TRH0, V_TRH1 = 8, 9
V_L16 = 10
V_L16B = 11
V_PA = 12
V_POLL = 13
V_X = 14
V_PF = 15
ACC = 16
HACC = 136
WIN = 148
HX = 180
T = 188
BIAS = 226
W2V = 228
P4 = 252

k = K()
I = k.I


def stamp(idx, mode=0):
    if STAMPS and (mode == SMODE or mode == -1):
        I(f'{"s_memtime" if "--cyc" in sys.argv else "s_memrealtime"} {s(S_STAMP + 2 * idx, 2)}')


def srd(base, plo, nbytes):
    I(f's_mov_b32 {s(base)}, {s(plo)}')
    I(f's_mov_b32 {s(base + 1)}, {s(plo + 1)}')
    I(f's_mov_b32 {s(base + 2)}, {nbytes}')
    I(f's_mov_b32 {s(base + 3)}, 0x00020000')


def csel(dst, x, y):
    I(f's_mov_b32 {s(dst)}, {y}')
    I(f's_cselect_b32 {s(dst)}, {x}, {s(dst)}')


def chk_issue(addrv, n=1):
    if n == 1:
        I(f'buffer_load_dword {v(V_POLL)}, {v(addrv)}, {s(SRD_WS, 4)}, 0 offen sc1')
    else:
        I(f'buffer_load_dwordx4 {v(P4, 4)}, {v(addrv)}, {s(SRD_WS, 4)}, 0 offen sc1')


def chk_eval(n=1):
    if n == 1:
        I(f'v_cmp_ne_u32 vcc, {s(S_TAG)}, {v(V_POLL)}')
    else:
        for i in range(4):
            I(f'v_xor_b32 {v(P4 + i)}, {s(S_TAG)}, {v(P4 + i)}')
        I(f'v_or3_b32 {v(P4)}, {v(P4)}, {v(P4 + 1)}, {v(P4 + 2)}')
        I(f'v_or_b32 {v(P4)}, {v(P4)}, {v(P4 + 3)}')
        I(f'v_cmp_ne_u32 vcc, 0, {v(P4)}')


def poll(addrv, name, n=1, preissued=False):
    lab = k.newlabel('L_poll_' + name)
    done = k.newlabel('L_polled_' + name)
    if not preissued:
        chk_issue(addrv, n)
    chk_eval(n)
    I(f's_mov_b32 {s(S_SPIN)}, 0')
    I(f's_cbranch_vccz {done}')
    st = k.state()
    k.label(lab)
    I('s_sleep 1')
    chk_issue(addrv, n)
    k.wait_all(vm=True, lg=False)
    chk_eval(n)
    I(f's_add_u32 {s(S_SPIN)}, {s(S_SPIN)}, 1')
    I(f's_cbranch_vccz {done}')
    I(f's_cmp_lt_u32 {s(S_SPIN)}, 0x40000')
    I(f's_cbranch_scc1 {lab}')
    k.label(done)
    k.set_state(st)


def flag_store(base, offs, t0):
    I(f'v_mov_b32 {v(t0)}, {s(S_TAG)}')
    I(f'v_mov_b32 {v(t0 + 1)}, {base}')
    I('s_mov_b64 exec, 1')
    I(f'buffer_store_dword {v(t0)}, {v(t0 + 1)}, {s(SRD_WS, 4)}, {s(offs)} offen sc1')
    I('s_mov_b64 exec, -1')
    k.vmq.pop()


def dma1(j, soff_reg, tag):
    I(f'buffer_load_dwordx4 {v(V_DMA + j)}, {s(SRD_B, 4)}, {s(soff_reg)} offen offset:{j * RROW} lds', tag=tag)


def bf16r(dst, src):
    I(f'v_cvt_pk_bf16_f32 {v(dst)}, {v(src)}, {v(src)}')
    I(f'v_lshlrev_b32 {v(dst)}, 16, {v(dst)}')


def row_sum(r, t1):
    for sh in (4, 8):
        I(f'v_add_f32_dpp {v(r)}, {v(r)}, {v(r)} row_ror:{sh} row_mask:0xf bank_mask:0xf')
    for op in ('v_permlane16_swap_b32', 'v_permlane32_swap_b32'):
        I(f'v_mov_b32 {v(t1)}, {v(r)}')
        I(f'{op} {v(r)}, {v(t1)}')
        I(f'v_add_f32 {v(r)}, {v(r)}, {v(t1)}')


I(f's_cmp_ge_u32 {s(S_WG)}, 256')
I('s_cbranch_scc1 L_end')
I(f's_load_dwordx16 {s(32, 16)}, s[0:1], 0')
I(f's_load_dwordx4 {s(48, 4)}, s[0:1], 64')
I(f's_load_dwordx2 {s(52, 2)}, s[0:1], 80')
stamp(0, -1)
I(f'v_lshrrev_b32 {v(T)}, 6, v0')
I(f'v_and_b32 {v(V_LANE)}, 63, v0')
I(f'v_readfirstlane_b32 {s(S_WAVE)}, {v(T)}')
I(f'v_mov_b32 {v(T + 2)}, 0')
I(f'v_mov_b32 {v(T + 3)}, 0')
I(f'v_mov_b32 {v(T + 1)}, {CNT}')
I(f'ds_write_b64 {v(T + 1)}, {v(T + 2, 2)}')
I(f's_and_b32 {s(S_T0)}, {s(S_WG)}, 7')
I(f's_lshr_b32 {s(S_T1)}, {s(S_WG)}, 3')
I(f's_and_b32 {s(S_MT)}, {s(S_T0)}, 1')
I(f's_lshl_b32 {s(S_MT)}, {s(S_MT)}, 3')
I(f's_and_b32 {s(S_T2)}, {s(S_T1)}, 7')
I(f's_add_u32 {s(S_MT)}, {s(S_MT)}, {s(S_T2)}')
I(f's_lshr_b32 {s(S_T2)}, {s(S_T1)}, 3')
I(f's_and_b32 {s(S_TYPE)}, {s(S_T2)}, 1')
I(f's_lshr_b32 {s(S_T2)}, {s(S_T2)}, 1')
I(f's_and_b32 {s(S_IDX)}, {s(S_T0)}, 6')
I(f's_add_u32 {s(S_IDX)}, {s(S_IDX)}, {s(S_T2)}')
I(f's_lshl_b32 {s(S_FB)}, {s(S_MT)}, 4')
I(f's_lshl_b32 {s(S_T2)}, {s(S_TYPE)}, 3')
I(f's_add_u32 {s(S_FB)}, {s(S_FB)}, {s(S_T2)}')
I(f's_add_u32 {s(S_FB)}, {s(S_FB)}, {s(S_IDX)}')
I(f's_lshl_b32 {s(S_FOFF)}, {s(S_MT)}, 7')
I(f's_and_b32 {s(S_T2)}, {s(S_FB)}, 15')
I(f's_lshl_b32 {s(S_T2)}, {s(S_T2)}, 2')
I(f's_add_u32 {s(S_FOFF)}, {s(S_FOFF)}, {s(S_T2)}')
I(f's_lshl_b32 {s(S_M2)}, {s(S_T0)}, 2')
I(f's_and_b32 {s(S_T2)}, {s(S_T1)}, 3')
I(f's_add_u32 {s(S_M2)}, {s(S_M2)}, {s(S_T2)}')
I(f's_lshr_b32 {s(S_NT)}, {s(S_T1)}, 2')
I(f's_mul_i32 {s(S_START)}, {s(S_IDX)}, 7')
I(f's_min_u32 {s(S_START)}, {s(S_START)}, 47')
I(f's_cmp_eq_u32 {s(S_TYPE)}, 0')
csel(S_PITCH, 3840, 3456)
I(f's_lshl_b32 {s(S_KSTR)}, {s(S_PITCH)}, 5')
I(f'v_lshlrev_b32 {v(V_L16)}, 4, {v(V_LANE)}')
I(f'v_add_u32 {v(V_L16B)}, 4096, {v(V_L16)}')
I(f's_lshl_b32 {s(S_T0)}, {s(S_WG)}, 1')
I(f's_and_b32 {s(S_T1)}, {s(S_WAVE)}, 1')
I(f's_add_u32 {s(S_T0)}, {s(S_T0)}, {s(S_T1)}')
I(f's_mul_i32 {s(S_T1)}, {s(S_T0)}, 13108')
I(f's_lshr_b32 {s(S_T1)}, {s(S_T1)}, 16')
I(f's_mul_i32 {s(S_T2)}, {s(S_T1)}, 5')
I(f's_sub_u32 {s(S_T2)}, {s(S_T0)}, {s(S_T2)}')
assert all((u * 13108) >> 16 == u // 5 for u in range(512))
LR, LP, LXA = T + 4, T + 5, T + 6
I(f'v_and_b32 {v(LR)}, 3, {v(V_LANE)}')
I(f'v_lshrrev_b32 {v(LP)}, 2, {v(V_LANE)}')
I(f's_lshl_b32 {s(S_T3)}, {s(S_FB)}, 3')
I(f's_lshl_b32 {s(S_T4)}, {s(S_WAVE)}, 2')
I(f's_add_u32 {s(S_T3)}, {s(S_T3)}, {s(S_T4)}')
I(f'v_add_u32 {v(LR)}, {s(S_T3)}, {v(LR)}')
I(f'v_mul_u32_u24 {v(LXA)}, 1280, {v(LR)}')
I(f'v_lshl_add_u32 {v(LXA)}, {v(LP)}, 4, {v(LXA)}')
I(f'v_lshlrev_b32 {v(T + 7)}, 3, {v(V_LANE)}')
I(f's_lshl_b32 {s(S_T5)}, {s(S_START)}, 6')
k.wait_all(vm=False, lg=True)
stamp(1, 2)
srd(SRD_X, P_X, 2048 * 1280)
srd(SRD_DBG, P_DBG, 256)
srd(SRD_B1, P_B1, 1728 * 2)
XR = T + 8
TAGV = T + 36
I(f's_cmp_ge_u32 {s(S_WAVE)}, 2')
I('s_cbranch_scc1 L_noxl')
for i in range(5):
    I(f'buffer_load_dwordx4 {v(XR + 4 * i, 4)}, {v(LXA)}, {s(SRD_X, 4)}, 0 offen offset:{256 * i}', tag='x')
I(f'buffer_load_dword {v(TAGV)}, {v(T + 2)}, {s(SRD_DBG, 4)}, 0 offen sc1')
k.label('L_noxl')
I(f'buffer_load_dwordx2 {v(BIAS, 2)}, {v(T + 7)}, {s(SRD_B1, 4)}, {s(S_T5)} offen')
srd(SRD_WS, P_WS, WS_REC)
srd(SRD_OUT, P_OUT, 2048 * 1280)
srd(SRD_B2, P_B2, 640 * 2)
I(f's_cmp_eq_u32 {s(S_TYPE)}, 0')
I(f's_cselect_b32 {s(SRD_B)}, {s(P_WQKV)}, {s(P_W1)}')
I(f's_cselect_b32 {s(SRD_B + 1)}, {s(P_WQKV + 1)}, {s(P_W1 + 1)}')
csel(SRD_B + 2, 640 * 3840, 640 * 3456)
I(f's_mov_b32 {s(SRD_B + 3)}, 0x00020000')
I(f's_cmp_lt_u32 {s(S_T1)}, 20')
I(f's_cselect_b32 {s(SRD_RT)}, {s(P_WO)}, {s(P_W2)}')
I(f's_cselect_b32 {s(SRD_RT + 1)}, {s(P_WO + 1)}, {s(P_W2 + 1)}')
csel(SRD_RT + 2, 640 * 1280, 1728 * 1280)
I(f's_mov_b32 {s(SRD_RT + 3)}, 0x00020000')
I(f's_cmp_lt_u32 {s(S_WG)}, 8')
I('s_cbranch_scc0 L_notag')
I(f's_cmp_eq_u32 {s(S_WAVE)}, 2')
I('s_cbranch_scc0 L_notag')
stt = k.state()
I(f's_memrealtime {s(S_T4, 2)}')
I(f's_or_b32 {s(S_T4)}, {s(S_T4)}, 1')
I(f'v_mov_b32 {v(T + 2)}, {s(S_T4)}')
I('s_mov_b64 exec, 1')
I(f'buffer_atomic_cmpswap {v(T + 2, 2)}, {v(T + 3)}, {s(SRD_DBG, 4)}, 0 offen sc1')
I('s_mov_b64 exec, -1')
k.set_state(stt)
k.label('L_notag')


c, hf, sg = T, T + 1, T + 2
I(f'v_and_b32 {v(c)}, 31, {v(V_LANE)}')
I(f'v_lshrrev_b32 {v(hf)}, 5, {v(V_LANE)}')
S_CB = 34
I(f's_cmp_eq_u32 {s(S_TYPE)}, 0')
I(f's_cselect_b32 {s(S_T3)}, 29, 27')
I(f's_cselect_b32 {s(S_T4)}, 1120, 0')
I(f's_mul_i32 {s(S_CB)}, {s(S_IDX)}, 160')
I(f's_lshl_b32 {s(S_T5)}, {s(S_START)}, 6')
I(f's_cmp_eq_u32 {s(S_TYPE)}, 0')
I(f's_cselect_b32 {s(S_CB)}, {s(S_CB)}, {s(S_T5)}')
I(f'v_min_u32 {v(c)}, {s(S_T3)}, {v(c)}')
I(f'v_mul_u32_u24 {v(sg)}, 205, {v(c)}')
I(f'v_lshrrev_b32 {v(sg)}, 11, {v(sg)}')
I(f'v_mul_u32_u24 {v(sg)}, {s(S_T4)}, {v(sg)}')
I(f'v_lshl_add_u32 {v(sg)}, {v(c)}, 4, {v(sg)}')
I(f'v_add_u32 {v(sg)}, {s(S_CB)}, {v(sg)}')
I(f's_lshl_b32 {s(S_T3)}, {s(S_PITCH)}, 2')
I(f'v_mad_u32_u24 {v(V_DMA)}, {v(hf)}, {s(S_T3)}, {v(sg)}')
I(f's_sub_u32 {s(S_T3)}, {s(S_PITCH)}, {RROW}')
for j in range(1, 4):
    I(f'v_add_u32 {v(V_DMA + j)}, {s(S_T3)}, {v(V_DMA + j - 1)}')
assert all((c_ * 205) >> 11 == c_ // 10 for c_ in range(32))
NPRE = 4
I(f's_mul_i32 {s(S_M0B)}, {s(S_WAVE)}, {4 * RROW}')
I(f's_lshl_b32 {s(S_T3)}, {s(S_PITCH)}, 3')
I(f's_mul_i32 {s(S_SOFF)}, {s(S_WAVE)}, {s(S_T3)}')
I(f's_mul_i32 {s(S_T3)}, {s(S_KSTR)}, {NPRE}')
I(f's_add_u32 {s(S_SOFF)}, {s(S_SOFF)}, {s(S_T3)}')
I(f'v_mul_u32_u24 {v(V_TR0)}, {RROW}, {v(LP)}')
I(f'v_and_b32 {v(T)}, 3, {v(V_LANE)}')
I(f'v_lshl_add_u32 {v(V_TR0)}, {v(T)}, 3, {v(V_TR0)}')
I(f'v_add_u32 {v(V_TR1)}, {4 * SLOT}, {v(V_TR0)}')
I(f's_mul_i32 {s(S_HB)}, {s(S_WAVE)}, 3')
I(f's_min_u32 {s(S_HB)}, {s(S_HB)}, 7')
I(f's_add_u32 {s(S_HB)}, {s(S_HB)}, 5')
I(f's_lshl_b32 {s(S_T3)}, {s(S_HB)}, 5')
I(f'v_add_u32 {v(V_TRH0)}, {s(S_T3)}, {v(V_TR0)}')
I(f'v_add_u32 {v(V_TRH1)}, {s(S_T3)}, {v(V_TR1)}')
I(f'v_add_u32 {v(V_X)}, {HALO}, {v(V_L16)}')
I(f's_lshl_b32 {s(S_MB0)}, {s(S_MT)}, 3')
I(f's_lshl_b32 {s(S_T3)}, {s(S_WAVE)}, 1')
I(f's_add_u32 {s(S_MB0)}, {s(S_MB0)}, {s(S_T3)}')
I(f's_mul_i32 {s(S_AO)}, {s(S_MB0)}, 20480')
for q in range(1, 10):
    I(f's_add_u32 {s(S_AO + q)}, {s(S_AO)}, {XN_T + 4096 * q}')
I(f'v_and_b32 {v(T)}, 15, {v(V_LANE)}')
I(f's_lshl_b32 {s(S_T3)}, {s(S_MT)}, 7')
I(f's_add_u32 {s(S_T3)}, {s(S_T3)}, {LNF}')
I(f'v_lshl_add_u32 {v(V_PA)}, {v(T)}, 2, {s(S_T3)}')
I(f's_cmp_eq_u32 {s(S_TYPE)}, 0')
I(f's_cselect_b32 {s(S_T3)}, {128 - 56}, 0')
I(f's_cmp_eq_u32 {s(S_MT)}, 0')
I(f's_cselect_b32 {s(S_T3)}, 0, {s(S_T3)}')
I(f'v_subrev_u32 {v(T + 1)}, {s(S_T3)}, {v(V_PA)}')
I(f'v_lshrrev_b32 {v(T)}, 1, {v(V_LANE)}')
I(f'v_cmp_eq_u32 vcc, 8, {v(T)}')
I(f'v_cndmask_b32 {v(V_PA)}, {v(V_PA)}, {v(T + 1)}, vcc')
I(f's_mul_i32 {s(S_T3)}, {s(S_WAVE)}, 14')
I(f's_min_u32 {s(S_T3)}, {s(S_T3)}, 41')
I(f's_add_u32 {s(S_T3)}, {s(S_T3)}, 20')
I(f's_mul_i32 {s(S_W2B)}, {s(S_T3)}, 40960')
I(f's_mul_i32 {s(S_T3)}, {s(S_NT)}, 5120')
I(f's_add_u32 {s(S_W2B)}, {s(S_W2B)}, {s(S_T3)}')
I(f's_add_u32 {s(S_W2B)}, {s(S_W2B)}, {W_T}')
I(f's_cmp_ge_u32 {s(S_WAVE)}, 2')
I(f's_cselect_b32 {s(S_LAST)}, {OOB}, 0')
I(f's_lshr_b32 {s(S_T3)}, {s(S_M2)}, 1')
I(f's_lshl_b32 {s(S_T3)}, {s(S_T3)}, 7')
I(f's_add_u32 {s(S_T3)}, {s(S_T3)}, {P1F + 32}')
I(f'v_and_b32 {v(T)}, 7, {v(V_LANE)}')
I(f'v_lshl_add_u32 {v(V_PF)}, {v(T)}, 2, {s(S_T3)}')

I(f's_cmp_ge_u32 {s(S_WAVE)}, 2')
I('s_cbranch_scc1 L_pro_dma')

st0 = k.state()
XF = ACC
SA_ = T + 3
I(f'v_lshrrev_b32 {v(SA_)}, 4, {v(LR)}')
I(f'v_mul_u32_u24 {v(SA_)}, 20480, {v(SA_)}')
I(f'v_lshl_add_u32 {v(SA_)}, {v(LP)}, 8, {v(SA_)}')
I(f'v_and_b32 {v(T)}, 15, {v(LR)}')
I(f'v_lshl_add_u32 {v(SA_)}, {v(T)}, 4, {v(SA_)}')
I(f's_mov_b32 {s(S_T3)}, 0xffff0000')
stamp(2, 2)
k.wait_vm_tag('x')
stamp(3, 2)
I('s_barrier')
SUM = T + 4
for i in range(20):
    I(f'v_lshlrev_b32 {v(XF + 2 * i)}, 16, {v(XR + i)}')
    I(f'v_and_b32 {v(XF + 2 * i + 1)}, {s(S_T3)}, {v(XR + i)}')
    if i == 1:
        I(f'v_pk_add_f32 {v(SUM, 2)}, {v(XF, 2)}, {v(XF + 2, 2)}')
    elif i > 1:
        I(f'v_pk_add_f32 {v(SUM, 2)}, {v(SUM, 2)}, {v(XF + 2 * i, 2)}')
I(f'v_add_f32 {v(SUM)}, {v(SUM)}, {v(SUM + 1)}')
row_sum(SUM, SUM + 1)
MEAN = T + 6
I(f'v_mul_f32 {v(MEAN)}, {f32(1.0 / 640)}, {v(SUM)}')
I(f'v_mov_b32 {v(MEAN + 1)}, {v(MEAN)}')
SQ = T + 4
DV = T + 28
for i in range(20):
    d = DV + 2 * (i & 1)
    I(f'v_pk_add_f32 {v(d, 2)}, {v(XF + 2 * i, 2)}, {v(MEAN, 2)} neg_lo:[0,1] neg_hi:[0,1]')
    if i == 0:
        I(f'v_pk_mul_f32 {v(SQ, 2)}, {v(d, 2)}, {v(d, 2)}')
    else:
        I(f'v_pk_fma_f32 {v(SQ, 2)}, {v(d, 2)}, {v(d, 2)}, {v(SQ, 2)}')
I(f'v_add_f32 {v(SQ)}, {v(SQ)}, {v(SQ + 1)}')
row_sum(SQ, SQ + 1)
I(f'v_mul_f32 {v(SQ)}, {f32(1.0 / 640)}, {v(SQ)}')
bf16r(SQ, SQ)
I(f'v_add_f32 {v(SQ)}, {f32(1e-5)}, {v(SQ)}')
bf16r(SQ, SQ)
I(f'v_sqrt_f32 {v(SQ)}, {v(SQ)}')
bf16r(MEAN, MEAN)
bf16r(SQ, SQ)
I(f'v_rcp_f32 {v(SQ + 1)}, {v(SQ)}')
I(f'v_mov_b32 {v(MEAN + 1)}, {v(MEAN)}')
I(f'v_fma_f32 {v(SQ)}, -{v(SQ)}, {v(SQ + 1)}, 1.0')
I(f'v_fma_f32 {v(SQ)}, {v(SQ)}, {v(SQ + 1)}, {v(SQ + 1)}')
I(f'v_mov_b32 {v(SQ + 1)}, {v(SQ)}')
for i in range(20):
    x2 = XF + 2 * i
    I(f'v_pk_add_f32 {v(x2, 2)}, {v(x2, 2)}, {v(MEAN, 2)} neg_lo:[0,1] neg_hi:[0,1]')
    I(f'v_cvt_pk_bf16_f32 {v(XR + i)}, {v(x2)}, {v(x2 + 1)}')
    I(f'v_lshlrev_b32 {v(x2)}, 16, {v(XR + i)}')
    I(f'v_and_b32 {v(x2 + 1)}, {s(S_T3)}, {v(XR + i)}')
    I(f'v_pk_mul_f32 {v(x2, 2)}, {v(x2, 2)}, {v(SQ, 2)}')
    I(f'v_cvt_pk_bf16_f32 {v(XR + i)}, {v(x2)}, {v(x2 + 1)}')
    if i % 4 == 3:
        ii = i // 4
        I(f's_mov_b32 {s(S_T4)}, {XN_T + 4096 * ii}')
        I(f'buffer_store_dwordx4 {v(XR + 4 * ii, 4)}, {v(SA_)}, {s(SRD_WS, 4)}, {s(S_T4)} offen sc1')
stamp(1)
stamp(4, 2)
I(f'v_readfirstlane_b32 {s(S_TAG)}, {v(TAGV)}')
I(f'v_mov_b32 {v(T + 1)}, 0')
I(f's_mov_b32 {s(S_SPIN)}, 0')
I(f's_cmp_lg_u32 {s(S_TAG)}, 0')
I('s_cbranch_scc1 L_tagok')
k.label('L_tagpoll')
I(f'buffer_load_dword {v(TAGV)}, {v(T + 1)}, {s(SRD_DBG, 4)}, 0 offen sc1')
k.wait_all()
I(f'v_readfirstlane_b32 {s(S_TAG)}, {v(TAGV)}')
I(f's_add_u32 {s(S_SPIN)}, {s(S_SPIN)}, 1')
I(f's_cmp_lg_u32 {s(S_TAG)}, 0')
I('s_cbranch_scc1 L_tagok')
I(f's_cmp_lt_u32 {s(S_SPIN)}, 0x40000')
I('s_cbranch_scc1 L_tagpoll')
k.label('L_tagok')
I(f'v_mov_b32 {v(T + 1)}, {CNT}')
I(f'ds_write_b32 {v(T + 1)}, {v(TAGV)} offset:4')
I(f'v_mov_b32 {v(T)}, 1')
k.wait_all()
stamp(5, 2)
I('s_mov_b64 exec, 1')
I(f'ds_add_rtn_u32 {v(T + 2)}, {v(T + 1)}, {v(T)}')
I('s_mov_b64 exec, -1')
I(f'v_readfirstlane_b32 {s(S_T3)}, {v(T + 2)}')
I(f's_cmp_eq_u32 {s(S_T3)}, 1')
I('s_cbranch_scc0 L_pro_join')
flag_store(LNF, S_FOFF, T)
I('s_branch L_pro_join')

k.set_state(st0)
k.vmq = [(regs_of(v(BIAS, 2)), None)]
k.label('L_pro_dma')
RT_A, RT_B, RT_K0, RT_SCR, VW_M0, VW_SO, S_PFO = 46, 47, 48, 49, 50, 52, 54
I(f's_cmp_lt_u32 {s(S_T1)}, 20')
csel(RT_A, 8 * 1280, 4 * 1280)
csel(RT_B, 4 * 1280, 16 * 1280)
I(f's_cselect_b32 {s(RT_K0)}, 0, 20')
I(f's_sub_u32 {s(RT_K0)}, {s(S_T1)}, {s(RT_K0)}')
I(f's_mul_i32 {s(RT_K0)}, {s(RT_K0)}, {32 * 1280}')
I(f's_lshl_b32 {s(S_T3)}, {s(S_T2)}, 8')
I(f's_add_u32 {s(RT_K0)}, {s(RT_K0)}, {s(S_T3)}')
I(f's_and_b32 {s(S_T3)}, {s(S_WAVE)}, 1')
I(f's_mul_i32 {s(VW_M0)}, {s(S_T3)}, {8 * RROW}')
I(f's_add_u32 {s(RT_SCR)}, {s(VW_M0)}, {7 * SLOT}')
I(f's_add_u32 {s(VW_M0 + 1)}, {s(VW_M0)}, {4 * RROW}')
I(f's_lshl_b32 {s(S_T4)}, {s(S_PITCH)}, 4')
I(f's_mul_i32 {s(VW_SO)}, {s(S_T3)}, {s(S_T4)}')
I(f's_lshl_b32 {s(S_T4)}, {s(S_PITCH)}, 3')
I(f's_add_u32 {s(VW_SO + 1)}, {s(VW_SO)}, {s(S_T4)}')
RTV, RTL, PFV = T + 8, T + 9, T + 10
I(f'v_lshrrev_b32 {v(RTV)}, 4, {v(V_LANE)}')
I(f'v_mul_u32_u24 {v(RTV)}, 1280, {v(RTV)}')
I(f'v_and_b32 {v(T)}, 15, {v(V_LANE)}')
I(f'v_lshl_add_u32 {v(RTV)}, {v(T)}, 4, {v(RTV)}')
I(f'v_lshlrev_b32 {v(RTL)}, 8, {v(LP)}')
I(f'v_and_b32 {v(T)}, 3, {v(V_LANE)}')
I(f'v_lshl_add_u32 {v(RTL)}, {v(T)}, 3, {v(RTL)}')
I(f'v_add_u32 {v(RTL)}, {s(RT_SCR)}, {v(RTL)}')
I(f'v_and_b32 {v(T)}, 7, {v(V_LANE)}')
I(f's_cmp_eq_u32 {s(S_TYPE)}, 0')
I(f's_cselect_b32 {s(S_T4)}, 5, 3')
I(f's_cselect_b32 {s(S_T5)}, {1280 - 256}, 0')
I(f'v_min_u32 {v(T)}, {s(S_T4)}, {v(T)}')
I(f'v_lshrrev_b32 {v(T + 1)}, 1, {v(T)}')
I(f'v_mul_u32_u24 {v(T + 1)}, {s(S_T5)}, {v(T + 1)}')
I(f'v_lshl_add_u32 {v(PFV)}, {v(T)}, 7, {v(T + 1)}')
I(f'v_lshrrev_b32 {v(T)}, 3, {v(V_LANE)}')
I(f'v_mad_u32_u24 {v(PFV)}, {v(T)}, {s(S_PITCH)}, {v(PFV)}')
I(f's_and_b32 {s(S_T4)}, {s(S_MT)}, 7')
I(f's_lshl_b32 {s(S_T4)}, {s(S_T4)}, 1')
I(f's_add_u32 {s(S_T4)}, {s(S_T4)}, {s(S_T3)}')
I(f's_mul_i32 {s(S_T4)}, {s(S_T4)}, 40')
I(f's_mul_i32 {s(S_PFO)}, {s(S_T4)}, {s(S_PITCH)}')
I(f's_add_u32 {s(S_PFO)}, {s(S_PFO)}, {s(S_CB)}')
I(f's_lshl_b32 {s(S_T4)}, {s(S_PITCH)}, 3')
stamp(2, 2)
I('s_barrier')
stamp(3, 2)
for i in range(5):
    I(f'buffer_load_dword {v(T + 12 + i)}, {v(PFV)}, {s(SRD_B, 4)}, {s(S_PFO)} offen', tag='pf')
    I(f's_add_u32 {s(S_PFO)}, {s(S_PFO)}, {s(S_T4)}')
for t in range(8):
    hf_, g = t >> 2, t & 3
    I(f's_mul_i32 {s(S_T3)}, {s(RT_A)}, {g}')
    I(f's_add_u32 {s(S_T3)}, {s(S_T3)}, {s(RT_K0)}')
    if hf_:
        I(f's_add_u32 {s(S_T3)}, {s(S_T3)}, {s(RT_B)}')
    I(f's_add_u32 m0, {s(RT_SCR)}, {1024 * t}')
    I(f'buffer_load_dwordx4 {v(RTV)}, {s(SRD_RT, 4)}, {s(S_T3)} offen lds', tag='rt')
I(f's_mul_i32 {s(S_T3)}, {s(S_T1)}, 40960')
I(f's_lshl_b32 {s(S_T4)}, {s(S_T2)}, 13')
I(f's_add_u32 {s(S_T3)}, {s(S_T3)}, {s(S_T4)}')
I(f's_add_u32 {s(S_T3)}, {s(S_T3)}, {W_T}')
I(f's_cmp_lt_u32 {s(S_T1)}, 74')
I(f's_cselect_b32 {s(S_T3)}, {s(S_T3)}, {OOB}')
k.wait_vm_tag('pf')
stamp(4, 2)
for sl in range(NPRE):
    for h in range(2):
        I(f's_add_u32 m0, {s(VW_M0 + h)}, {sl * SLOT}')
        for j in range(4):
            dma1(j, VW_SO + h, 'ring')
        I(f's_add_u32 {s(VW_SO + h)}, {s(VW_SO + h)}, {s(S_KSTR)}')
    if sl == 1:
        k.wait_vm_tag('rt')
        RF = ACC
        for nb in range(8):
            I(f'ds_read_b64_tr_b16 {v(RF + 4 * nb, 2)}, {v(RTL)} offset:{32 * nb}')
            I(f'ds_read_b64_tr_b16 {v(RF + 4 * nb + 2, 2)}, {v(RTL)} offset:{32 * nb + 4096}')
        for nb in range(8):
            I(f'buffer_store_dwordx4 {v(RF + 4 * nb, 4)}, {v(V_L16 if nb < 4 else V_L16B)}, {s(SRD_WS, 4)}, {s(S_T3)} offen offset:{1024 * (nb & 3)} sc1')
stamp(5, 2)
stamp(1)
k.wait_all(vm=False, lg=True)

k.label('L_pro_join')
k.vmq = [(set(), 'unknown')]
k.lgq = []
I('s_nop 4')
I(f's_cmp_eq_u32 {s(S_TYPE)}, 1')
I('s_cbranch_scc1 L_ffn')
st_join = k.state()


def ln_wait():
    lab = k.newlabel('L_lnw')
    I(f's_cmp_eq_u32 {s(S_WAVE)}, 0')
    I(f's_cbranch_scc0 {lab}')
    stamp(6, 2)
    poll(V_PA, 'ln')
    k.label(lab)
    k.wait_all()
    stamp(7, 2)
    I('s_barrier')
    stamp(8, 2)


def tag_fetch():
    I(f'v_mov_b32 {v(T + 1)}, {CNT}')
    I(f'ds_read_b32 {v(T)}, {v(T + 1)} offset:4')
    I(f'v_readfirstlane_b32 {s(S_TAG)}, {v(T)}')


def load_A(ks, rb):
    I(f'buffer_load_dwordx4 {a((ks * 2 + rb) * 4, 4)}, {v(V_L16)}, {s(SRD_WS, 4)}, {s(S_AO + rb * 5 + ks // 4)} offen offset:{(ks & 3) * 1024} sc1')


W2ORDER = list(range(40, 64)) + list(range(40))


def w2reg(st, nb):
    f = st * 5 + nb
    return a(4 * W2ORDER[f], 4) if f < 64 else v(W2V + 4 * (f - 64), 4)


def w2load(f):
    st, nb = divmod(f, 5)
    if st == 13 and nb == 0:
        I(f's_add_u32 {s(S_W2B)}, {s(S_W2B)}, {s(S_LAST)}')
    I(f'buffer_load_dwordx4 {w2reg(st, nb)}, {v(V_L16 if nb < 4 else V_L16B)}, {s(SRD_WS, 4)}, {s(S_W2B)} offen offset:{(nb & 3) * 1024} sc1')
    if nb == 4:
        I(f's_add_u32 {s(S_W2B)}, {s(S_W2B)}, 40960')


W2_INLOOP = 48


def mainloop(ncb, halo, first_c_zero):
    NF = ncb + (3 if halo else 0)
    LA = 7
    items = [(ks, j) for ks in range(20) for j in range(NF)]
    N = len(items)
    aux = [[] for _ in range(20)]
    for ks in range(8):
        for kk in (2 * ks + 4, 2 * ks + 5):
            for rb in range(2):
                aux[ks].append(lambda kk=kk, rb=rb: load_A(kk, rb))
    for ks in range(20 - NPRE):
        kn = ks + NPRE
        dm = []
        for j in range(4):
            def f(j=j, kn=kn):
                if j == 0:
                    I(f's_add_u32 m0, {s(S_M0B)}, {(kn % NSLOT) * SLOT}')
                dma1(j, S_SOFF, ('dma', kn))
                if j == 3:
                    I(f's_add_u32 {s(S_SOFF)}, {s(S_SOFF)}, {s(S_KSTR)}')
            dm.append(f)
        old = aux[ks]
        mix = []
        for i in range(4):
            mix.append(dm[i])
            if i < len(old):
                mix.append(old[i])
        aux[ks] = mix + old[4:]
    aux[5].append(lambda: chk_issue(V_PA, 4))
    f = 0
    for ks in range(8, 20):
        cnt = 3 if ks < 16 else 6
        for _ in range(cnt):
            assert f < 24 or ks > (f - 24) // 2
            aux[ks].append(lambda f=f: w2load(f))
            f += 1
    assert f == W2_INLOOP

    def rd(n, half):
        ks, j = items[n]
        sl = ks % NSLOT
        w = WIN + 4 * (n % 8)
        if j < ncb:
            base = V_TR0 if sl < 4 else V_TR1
            off = (sl % 4) * SLOT + 32 * j
        else:
            base = V_TRH0 if sl < 4 else V_TRH1
            off = (sl % 4) * SLOT + 32 * (j - ncb)
        if j == 0 and half == 0 and ks >= 2 and ks % 2 == 0:
            if ks + 1 >= NPRE:
                k.wait_vm_tag(('dma', ks + 1))
            I('s_barrier')
            if ks == 2:
                lab = k.newlabel('L_nf')
                I(f's_cmp_eq_u32 {s(S_WAVE)}, 0')
                I(f's_cbranch_scc0 {lab}')
                I(f's_lshl_b32 {s(S_T3)}, {s(S_WG)}, 2')
                flag_store(WTF, S_T3, T)
                k.label(lab)
        I(f'ds_read_b64_tr_b16 {v(w + 2 * half, 2)}, {v(base)} offset:{off + 512 * half}')
        if halo and j == ncb and half == 1:
            I(f'ds_read_b128 {v(HX + 4 * (ks & 1), 4)}, {v(V_X)} offset:{ks * 1024}')

    for n in range(LA):
        rd(n, 0)
        rd(n, 1)
    I(f'v_add_u32 {v(V_PA)}, {WTF}, {v(V_L16)}')
    for n in range(N):
        ks, j = items[n]
        w = WIN + 4 * (n % 8)
        if j == 0:
            pend = list(aux[ks])
            tot = len(pend)
            done = 0
            if ks in (0, 1, 2, 4, 8, 12, 16, 18):
                stamp(1 + (0, 1, 2, 4, 8, 12, 16, 18).index(ks), 1)
            if ks == 8:
                poll(V_PA, 'wt', 4, preissued=True)
        if n % 2 == 0 and n + 1 < N:
            k._need(regs_of(v(WIN + 4 * ((n + 1) % 8), 4)) | regs_of(v(w, 4)))
        if j < ncb:
            for rb in range(2):
                d = ACC + (j * 2 + rb) * 4
                c_ = '0' if (ks == 0 and first_c_zero) else v(d, 4)
                I(f'v_mfma_f32_16x16x32_bf16 {v(d, 4)}, {v(w, 4)}, {a((ks * 2 + rb) * 4, 4)}, {c_}')
                if n + LA < N:
                    rd(n + LA, rb)
        else:
            d = HACC + (j - ncb) * 4
            c_ = '0' if ks == 0 else v(d, 4)
            I(f'v_mfma_f32_16x16x32_bf16 {v(d, 4)}, {v(w, 4)}, {v(HX + 4 * (ks & 1), 4)}, {c_}')
            if n + LA < N:
                rd(n + LA, 0)
                rd(n + LA, 1)
        while done < tot and done * NF <= j * tot + tot - 1 and (n % 2 == 0 or tot > NF // 2):
            pend[done]()
            done += 1
            if tot <= NF:
                break
        if j == NF - 1:
            while done < tot:
                pend[done]()
                done += 1


def publish(t0):
    chk_issue(V_PF)
    k.wait_all()
    I('s_barrier')
    lab = k.newlabel('L_np')
    I(f's_cmp_eq_u32 {s(S_WAVE)}, 0')
    I(f's_cbranch_scc0 {lab}')
    flag_store(P1F, S_FOFF, t0)
    k.label(lab)


I(f's_lshl_b32 {s(S_T3)}, {s(S_MT)}, 3')
I(f's_sub_u32 {s(S_T3)}, {s(S_T3)}, 1')
I(f's_mul_i32 {s(S_T3)}, {s(S_T3)}, 20480')
I(f's_mul_i32 {s(S_T4)}, {s(S_WAVE)}, 5120')
I(f's_add_u32 {s(S_T3)}, {s(S_T3)}, {s(S_T4)}')
I(f's_cmp_eq_u32 {s(S_MT)}, 0')
I(f's_cselect_b32 {s(S_T5)}, {OOB}, {s(S_T3)}')
I(f'v_add_u32 {v(T + 2)}, {s(S_T4)}, {v(V_X)}')
SA = T + 28
SH = T + 33
tm, tg, tn, tq = T + 4, T + 5, T + 6, T + 7
I(f'v_and_b32 {v(tm)}, 15, {v(V_LANE)}')
I(f'v_lshrrev_b32 {v(tg)}, 4, {v(V_LANE)}')
I(f's_lshl_b32 {s(S_T3)}, {s(S_WAVE)}, 5')
I(f's_add_u32 {s(S_T3)}, {s(S_T3)}, 16')
I(f'v_add_u32 {v(tq)}, {s(S_T3)}, {v(tm)}')
I(f'v_mul_u32_u24 {v(tq)}, {RS}, {v(tq)}')
for cb in range(5):
    I(f'v_lshl_add_u32 {v(tn)}, {v(tg)}, 2, {16 * cb}')
    I(f'v_mul_u32_u24 {v(SA + cb)}, 205, {v(tn)}')
    I(f'v_lshrrev_b32 {v(SA + cb)}, 12, {v(SA + cb)}')
    I(f'v_lshl_add_u32 {v(SA + cb)}, {v(SA + cb)}, 2, {v(tn)}')
    I(f'v_lshl_add_u32 {v(SA + cb)}, {v(SA + cb)}, 1, {v(tq)}')
assert all((n * 205) >> 12 == n // 20 for n in range(0, 240, 4))
I(f'v_mul_u32_u24 {v(tq)}, {RS}, {v(tm)}')
for j in range(3):
    I(f's_add_u32 {s(S_T3)}, {s(S_HB)}, {j}')
    I(f's_lshl_b32 {s(S_T3)}, {s(S_T3)}, 4')
    I(f'v_lshl_add_u32 {v(tn)}, {v(tg)}, 2, {s(S_T3)}')
    I(f'v_mul_u32_u24 {v(SH + j)}, 205, {v(tn)}')
    I(f'v_lshrrev_b32 {v(SH + j)}, 12, {v(SH + j)}')
    I(f'v_lshl_add_u32 {v(SH + j)}, {v(SH + j)}, 2, {v(tn)}')
    I(f'v_lshl_add_u32 {v(SH + j)}, {v(SH + j)}, 1, {v(tq)}')
ln_wait()
stamp(2)
for i in range(5):
    I(f'buffer_load_dwordx4 {v(T + 8 + 4 * i, 4)}, {v(V_L16 if i < 4 else V_L16B)}, {s(SRD_WS, 4)}, {s(S_T5)} offen offset:{(i & 3) * 1024} sc1')
for ks in range(4):
    for rb in range(2):
        load_A(ks, rb)
tag_fetch()
for i in range(5):
    I(f'ds_write_b128 {v(T + 2)}, {v(T + 8 + 4 * i, 4)} offset:{i * 1024}')
k.wait_all(vm=False, lg=True)
I('s_barrier')
stamp(3)
mainloop(15, True, True)
stamp(4)
w2rest = list(range(W2_INLOOP, 70))
VA, VB, VO, K2M0, K2M1, NEG = T, T + 1, T + 2, T + 3, 224, 225
t1, t2, t3 = T + 4, T + 5, T + 6
I(f's_mul_i32 {s(S_T3)}, {s(S_WAVE)}, 48')
I(f'v_and_b32 {v(t1)}, 0x38, {v(V_LANE)}')
I(f'v_bfe_u32 {v(t2)}, {v(V_LANE)}, 2, 1')
I(f'v_add_u32 {v(t1)}, {v(t1)}, {v(t2)}')
I(f'v_and_b32 {v(t2)}, 3, {v(V_LANE)}')
I(f'v_lshl_add_u32 {v(t1)}, {v(t2)}, 1, {v(t1)}')
I(f'v_mul_u32_u24 {v(VA)}, {RS}, {v(t1)}')
I(f'v_add_u32 {v(VA)}, {s(S_T3)}, {v(VA)}')
I('s_barrier')
PK = T + 8
n = 0
for cbg in list(range(5, 15)) + list(range(5)):
    sec, cb = divmod(cbg, 5)
    for rb in range(2):
        d = ACC + (cbg * 2 + rb) * 4
        p = PK + 2 * (n % 4)
        n += 1
        I(f'v_cvt_pk_bf16_f32 {v(p)}, {v(d)}, {v(d + 1)}')
        I(f'v_cvt_pk_bf16_f32 {v(p + 1)}, {v(d + 2)}, {v(d + 3)}')
        I(f'ds_write_b64 {v(SA + cb)}, {v(p, 2)} offset:{sec * 192 + rb * 16 * RS}')
        if w2rest and n % 2 == 0:
            w2load(w2rest.pop(0))
for j in range(3):
    d = HACC + 4 * j
    p = PK + 2 * (n % 4)
    n += 1
    I(f'v_cvt_pk_bf16_f32 {v(p)}, {v(d)}, {v(d + 1)}')
    I(f'v_cvt_pk_bf16_f32 {v(p + 1)}, {v(d + 2)}, {v(d + 3)}')
    I(f'ds_write_b64 {v(SH + j)}, {v(p, 2)}')
I(f'v_and_b32 {v(VB)}, 0x30, {v(V_LANE)}')
I(f'v_bfe_u32 {v(t3)}, {v(V_LANE)}, 1, 1')
I(f'v_lshl_add_u32 {v(VB)}, {v(t3)}, 3, {v(VB)}')
I(f'v_and_b32 {v(t3)}, 1, {v(V_LANE)}')
I(f'v_add_u32 {v(VB)}, {v(VB)}, {v(t3)}')
I(f'v_bfe_u32 {v(t3)}, {v(V_LANE)}, 2, 2')
I(f'v_lshl_add_u32 {v(VB)}, {v(t3)}, 1, {v(VB)}')
I(f'v_mul_u32_u24 {v(VB)}, {RS}, {v(VB)}')
I(f'v_add_u32 {v(VB)}, {s(S_T3)}, {v(VB)}')
k.wait_all(vm=False, lg=True)
I('s_barrier')

TASKR = [16, 102]
for hf_ in range(2):
    R = TASKR[hf_]
    Q, Kr, Vr = R, R + 12, R + 48
    hb = hf_ * 64 * RS
    I(f'ds_read_b128 {v(Q, 4)}, {v(VA)} offset:{hb + 16 * RS}')
    I(f'ds_read_b128 {v(Q + 4, 4)}, {v(VA)} offset:{hb + 16 * RS + 16}')
    I(f'ds_read_b64 {v(Q + 8, 2)}, {v(VA)} offset:{hb + 16 * RS + 32}')
    for kg in range(3):
        o = hb + kg * 8 * RS + 192
        I(f'ds_read_b128 {v(Kr + 12 * kg, 4)}, {v(VA)} offset:{o}')
        I(f'ds_read_b128 {v(Kr + 12 * kg + 4, 4)}, {v(VA)} offset:{o + 16}')
        I(f'ds_read_b64 {v(Kr + 12 * kg + 8, 2)}, {v(VA)} offset:{o + 32}')
I(f'v_lshrrev_b32 {v(t3)}, 4, {v(t1)}')
I(f'v_mul_u32_u24 {v(VO)}, {ACT_MB}, {v(t3)}')
I(f'v_and_b32 {v(t3)}, 15, {v(t1)}')
I(f'v_lshl_add_u32 {v(VO)}, {v(t3)}, 4, {v(VO)}')
M1, M2, M3, INV1, INV01, INV02, INV03, SC_HI, SC_SCALE, SC_L2E, S_OB = 36, 38, 40, 42, 44, 46, 48, 50, 52, 54, 35
for reg, pat in ((M1, 0xeeeeeeee), (M2, 0xcccccccc), (M3, 0x88888888)):
    I(f's_mov_b32 {s(reg)}, {hex(pat)}')
    I(f's_mov_b32 {s(reg + 1)}, {hex(pat)}')
I(f'v_mov_b32 {v(t3)}, 0xffff')
I(f'v_cndmask_b32 {v(K2M0)}, {v(t3)}, -1, {s(M1, 2)}')
I(f'v_cndmask_b32 {v(K2M1)}, 0, {v(t3)}, {s(M2, 2)}')
I(f'v_cndmask_b32 {v(K2M1)}, {v(K2M1)}, -1, {s(M3, 2)}')
I(f'v_mov_b32 {v(NEG)}, {f32(-1e9)}')
I(f's_cmp_eq_u32 {s(S_MT)}, 0')
I(f's_cselect_b32 {s(INV1)}, 0xff, 0')
I(f's_cselect_b32 {s(INV01)}, 0x1111, 0')
I(f's_cselect_b32 {s(INV02)}, 0x3333, 0')
I(f's_cselect_b32 {s(INV03)}, 0x7777, 0')
for reg in (INV1, INV01, INV02, INV03):
    I(f's_mov_b32 {s(reg + 1)}, 0')
I(f's_mov_b32 {s(SC_HI)}, 0xffff0000')
I(f's_mov_b32 {s(SC_SCALE)}, {f32(20 ** -0.5)}')
I(f's_mov_b32 {s(SC_SCALE + 1)}, {f32(20 ** -0.5)}')
I(f's_mov_b32 {s(SC_L2E)}, {f32(1.4426950408889634)}')
I(f's_mov_b32 {s(SC_L2E + 1)}, {f32(1.4426950408889634)}')
SREG = [T + 4, T + 16]
for hf_ in range(2):
    R = TASKR[hf_]
    Q, Kr, Vr = R, R + 12, R + 48
    Sx = SREG[hf_]
    hb = hf_ * 64 * RS
    for dc in range(5):
        for kg in range(3):
            c_ = '0' if dc == 0 else v(Sx + 4 * kg, 4)
            I(f'v_mfma_f32_4x4x4_16b_bf16 {v(Sx + 4 * kg, 4)}, {v(Kr + 12 * kg + 2 * dc, 2)}, {v(Q + 2 * dc, 2)}, {c_}')
            I(f'ds_read_b64_tr_b16 {v(Vr + 2 * (kg * 5 + dc), 2)}, {v(VB)} offset:{hb + kg * 8 * RS + 384 + 8 * dc}')
I(f's_mul_i32 {s(S_OB)}, {s(S_MT)}, {8 * ACT_MB}')
I(f's_add_u32 {s(S_OB)}, {s(S_OB)}, {ACT_T}')
I(f's_mul_i32 {s(S_T3)}, {s(S_IDX)}, 2560')
I(f's_add_u32 {s(S_OB)}, {s(S_OB)}, {s(S_T3)}')
I(f's_lshr_b32 {s(S_T3)}, {s(S_WAVE)}, 1')
I(f's_mul_i32 {s(S_T3)}, {s(S_T3)}, 1280')
I(f's_add_u32 {s(S_OB)}, {s(S_OB)}, {s(S_T3)}')
I(f's_add_u32 {s(S_T4)}, {s(S_OB)}, {4 * ACT_MB}')
for hf_ in range(2):
    R = TASKR[hf_]
    Q, Kr, Vr = R, R + 12, R + 48
    Sx = SREG[hf_]
    Lg = Sx + 4
    for r, M in ((1, M1), (2, M2), (3, M3)):
        I(f'v_cndmask_b32 {v(Sx + 8 + r)}, {v(Sx + r)}, {v(Sx + 8 + r)}, {s(M, 2)}')
    P = Sx
    for i in range(4):
        I(f'v_cvt_pk_bf16_f32 {v(P + i)}, {v(Lg + 2 * i)}, {v(Lg + 2 * i + 1)}')
    for i in range(4):
        I(f'v_lshlrev_b32 {v(Lg + 2 * i)}, 16, {v(P + i)}')
        I(f'v_and_b32 {v(Lg + 2 * i + 1)}, {s(SC_HI)}, {v(P + i)}')
    for i in range(4):
        I(f'v_pk_mul_f32 {v(Lg + 2 * i, 2)}, {v(Lg + 2 * i, 2)}, {s(SC_SCALE, 2)}')
    if w2rest:
        w2load(w2rest.pop(0))
    for i in range(4):
        I(f'v_cvt_pk_bf16_f32 {v(P + i)}, {v(Lg + 2 * i)}, {v(Lg + 2 * i + 1)}')
    for i in range(4):
        I(f'v_lshlrev_b32 {v(Lg + 2 * i)}, 16, {v(P + i)}')
        I(f'v_and_b32 {v(Lg + 2 * i + 1)}, {s(SC_HI)}, {v(P + i)}')
    if w2rest:
        w2load(w2rest.pop(0))
    if hf_ == 0:
        for r in range(4):
            I(f'v_cndmask_b32 {v(Lg + r)}, {v(Lg + r)}, {v(NEG)}, {s(INV1, 2)}')
        for r, M in ((1, INV01), (2, INV02), (3, INV03)):
            I(f'v_cndmask_b32 {v(Lg + 4 + r)}, {v(Lg + 4 + r)}, {v(NEG)}, {s(M, 2)}')
    mx = P
    I(f'v_max3_f32 {v(mx)}, {v(Lg)}, {v(Lg + 1)}, {v(Lg + 2)}')
    I(f'v_max3_f32 {v(mx + 1)}, {v(Lg + 3)}, {v(Lg + 4)}, {v(Lg + 5)}')
    I(f'v_max3_f32 {v(mx)}, {v(mx)}, {v(Lg + 6)}, {v(Lg + 7)}')
    I(f'v_max_f32 {v(mx)}, {v(mx)}, {v(mx + 1)}')
    I(f'v_mov_b32 {v(mx + 1)}, {v(mx)}')
    for i in range(4):
        I(f'v_pk_add_f32 {v(Lg + 2 * i, 2)}, {v(Lg + 2 * i, 2)}, {v(mx, 2)} neg_lo:[0,1] neg_hi:[0,1]')
    for i in range(4):
        I(f'v_pk_mul_f32 {v(Lg + 2 * i, 2)}, {v(Lg + 2 * i, 2)}, {s(SC_L2E, 2)}')
    if w2rest:
        w2load(w2rest.pop(0))
    for i in range(8):
        I(f'v_exp_f32 {v(Lg + i)}, {v(Lg + i)}')
    I(f'v_pk_add_f32 {v(P, 2)}, {v(Lg, 2)}, {v(Lg + 2, 2)}')
    I(f'v_pk_add_f32 {v(P + 2, 2)}, {v(Lg + 4, 2)}, {v(Lg + 6, 2)}')
    I(f'v_pk_add_f32 {v(P, 2)}, {v(P, 2)}, {v(P + 2, 2)}')
    I(f'v_add_f32 {v(P)}, {v(P)}, {v(P + 1)}')
    I(f'v_rcp_f32 {v(P)}, {v(P)}')
    if w2rest:
        w2load(w2rest.pop(0))
    I(f'v_mov_b32 {v(P + 1)}, {v(P)}')
    for i in range(4):
        I(f'v_pk_mul_f32 {v(Lg + 2 * i, 2)}, {v(Lg + 2 * i, 2)}, {v(P, 2)}')
    PB = Kr
    I(f'v_cvt_pk_bf16_f32 {v(PB + 2)}, {v(Lg)}, {v(Lg + 1)}')
    I(f'v_cvt_pk_bf16_f32 {v(PB + 3)}, {v(Lg + 2)}, {v(Lg + 3)}')
    I(f'v_cvt_pk_bf16_f32 {v(PB)}, {v(Lg + 4)}, {v(Lg + 5)}')
    I(f'v_cvt_pk_bf16_f32 {v(PB + 1)}, {v(Lg + 6)}, {v(Lg + 7)}')
    I(f'v_and_b32 {v(PB + 4)}, {v(PB)}, {v(K2M0)}')
    I(f'v_and_b32 {v(PB + 5)}, {v(PB + 1)}, {v(K2M1)}')
    I(f'v_xor_b32 {v(PB)}, {v(PB)}, {v(PB + 4)}')
    I(f'v_xor_b32 {v(PB + 1)}, {v(PB + 1)}, {v(PB + 5)}')
    O = Kr + 8
    for kg in (1, 2, 0):
        for dc in range(5):
            c_ = '0' if kg == 1 else v(O + 4 * dc, 4)
            I(f'v_mfma_f32_4x4x4_16b_bf16 {v(O + 4 * dc, 4)}, {v(Vr + 2 * (kg * 5 + dc), 2)}, {v(PB + 2 * kg, 2)}, {c_}')
while w2rest:
    w2load(w2rest.pop(0))
for hf_ in range(2):
    R = TASKR[hf_]
    O = R + 12 + 8
    for i in range(10):
        I(f'v_cvt_pk_bf16_f32 {v(R + i)}, {v(O + 2 * i)}, {v(O + 2 * i + 1)}')
lodd, ldone = k.newlabel('L_oodd'), k.newlabel('L_odone')
I(f's_bitcmp1_b32 {s(S_WAVE)}, 0')
I(f's_cbranch_scc1 {lodd}')
sto = k.state()
for hf_ in range(2):
    OP = TASKR[hf_]
    so = s(S_OB if hf_ == 0 else S_T4)
    I(f'buffer_store_dwordx4 {v(OP, 4)}, {v(VO)}, {s(SRD_WS, 4)}, {so} offen sc1')
    I(f'buffer_store_dwordx4 {v(OP + 4, 4)}, {v(VO)}, {s(SRD_WS, 4)}, {so} offen offset:256 sc1')
    I(f'buffer_store_dwordx2 {v(OP + 8, 2)}, {v(VO)}, {s(SRD_WS, 4)}, {so} offen offset:512 sc1')
I(f's_branch {ldone}')
k.set_state(sto)
k.label(lodd)
for hf_ in range(2):
    OP = TASKR[hf_]
    so = s(S_OB if hf_ == 0 else S_T4)
    I(f'buffer_store_dwordx2 {v(OP, 2)}, {v(VO)}, {s(SRD_WS, 4)}, {so} offen offset:520 sc1')
    I(f'buffer_store_dwordx4 {v(OP + 2, 4)}, {v(VO)}, {s(SRD_WS, 4)}, {so} offen offset:768 sc1')
    I(f'buffer_store_dwordx4 {v(OP + 6, 4)}, {v(VO)}, {s(SRD_WS, 4)}, {so} offen offset:1024 sc1')
k.label(ldone)
stamp(5)
publish(T)
I('s_branch L_phase2')

k.set_state(st_join)
k.label('L_ffn')
I(f's_lshl_b32 {s(S_T3)}, {s(S_WAVE)}, 9')
I(f's_add_u32 {s(S_T3)}, {s(S_T3)}, {HALO}')
I(f'v_lshl_add_u32 {v(T)}, {v(V_LANE)}, 3, {s(S_T3)}')
I(f'ds_write_b64 {v(T)}, {v(BIAS, 2)}')
I(f'v_lshrrev_b32 {v(T)}, 4, {v(V_LANE)}')
I(f'v_lshl_add_u32 {v(T)}, {v(T)}, 3, {s(S_T3)}')
for cb in range(14):
    I(f'ds_read_b64 {v(T + 8 + 2 * cb, 2)}, {v(T)} offset:{32 * cb}')
I(f's_mov_b32 {s(S_T4)}, 0xffff0000')
for cb in range(14):
    for rb in range(2):
        d = ACC + (cb * 2 + rb) * 4
        for h in range(2):
            I(f'v_lshlrev_b32 {v(d + 2 * h)}, 16, {v(T + 8 + 2 * cb + h)}')
            I(f'v_and_b32 {v(d + 2 * h + 1)}, {s(S_T4)}, {v(T + 8 + 2 * cb + h)}')
ln_wait()
stamp(2)
for ks in range(4):
    for rb in range(2):
        load_A(ks, rb)
tag_fetch()
stamp(3)
mainloop(14, False, False)
stamp(4)
w2rest = list(range(W2_INLOOP, 70))
C0 = -2.0 * 0.7978845608028654 * 1.4426950408889634
C1 = C0 * 0.044715
GC0, GONE = T, T + 2
GS1 = 36
I(f'v_mov_b32 {v(GC0)}, {f32(C0)}')
I(f'v_mov_b32 {v(GC0 + 1)}, {f32(C0)}')
I(f'v_mov_b32 {v(GONE)}, 1.0')
I(f'v_mov_b32 {v(GONE + 1)}, 1.0')
I(f's_mov_b32 {s(GS1)}, {f32(C1)}')
I(f's_mov_b32 {s(GS1 + 1)}, {f32(C1)}')
S_HB2 = 38
I(f's_mul_i32 {s(S_HB2)}, {s(S_MB0)}, {ACT_MB}')
I(f's_lshl_b32 {s(S_T3)}, {s(S_START)}, 10')
I(f's_add_u32 {s(S_HB2)}, {s(S_HB2)}, {s(S_T3)}')
I(f's_add_u32 {s(S_HB2)}, {s(S_HB2)}, {ACT_T + 20 * 1024}')
I(f's_add_u32 {s(S_HB2 + 1)}, {s(S_HB2)}, {ACT_MB}')
n = 0
for pr in range(7):
    for rb in range(2):
        tmp = T + 4 + 8 * (n % 2)
        out = T + 20 + 4 * (n % 4)
        n += 1
        xs = [ACC + ((2 * pr + c2) * 2 + rb) * 4 + 2 * h for c2 in range(2) for h in range(2)]
        for i, x in enumerate(xs):
            I(f'v_pk_mul_f32 {v(tmp + 2 * i, 2)}, {v(x, 2)}, {v(x, 2)}')
        for i, x in enumerate(xs):
            I(f'v_pk_fma_f32 {v(tmp + 2 * i, 2)}, {v(tmp + 2 * i, 2)}, {s(GS1, 2)}, {v(GC0, 2)}')
        for i, x in enumerate(xs):
            I(f'v_pk_mul_f32 {v(tmp + 2 * i, 2)}, {v(tmp + 2 * i, 2)}, {v(x, 2)}')
        if w2rest:
            w2load(w2rest.pop(0))
        for i in range(8):
            I(f'v_exp_f32 {v(tmp + i)}, {v(tmp + i)}')
        for i in range(4):
            I(f'v_pk_add_f32 {v(tmp + 2 * i, 2)}, {v(tmp + 2 * i, 2)}, {v(GONE, 2)}')
        if w2rest:
            w2load(w2rest.pop(0))
        for i in range(8):
            I(f'v_rcp_f32 {v(tmp + i)}, {v(tmp + i)}')
        for i, x in enumerate(xs):
            I(f'v_pk_mul_f32 {v(tmp + 2 * i, 2)}, {v(tmp + 2 * i, 2)}, {v(x, 2)}')
        for i in range(4):
            I(f'v_cvt_pk_bf16_f32 {v(out + i)}, {v(tmp + 2 * i)}, {v(tmp + 2 * i + 1)}')
        I(f'buffer_store_dwordx4 {v(out, 4)}, {v(V_L16 if pr < 4 else V_L16B)}, {s(SRD_WS, 4)}, {s(S_HB2 + rb)} offen offset:{(pr & 3) * 1024} sc1')
assert not w2rest
stamp(5)
publish(T)

k.label('L_phase2')
k.vmq = [(set(), 'unknown')]
k.lgq = []
I('s_nop 4')
stamp(6)
YACC = 16
SACC = 96
HW = 116
HWN = 5
XIN = 196
B2V = 206
T2 = 216
S_HO = 32
S_OBASE, S_WOB, S_WOM, S_OOK, S_HI, S_NL2E = 36, 37, 38, 39, 40, 41
I(f's_mul_i32 {s(S_OBASE)}, {s(S_M2)}, {4 * ACT_MB}')
I(f's_add_u32 {s(S_OBASE)}, {s(S_OBASE)}, {ACT_T}')
I(f's_mul_i32 {s(S_T3)}, {s(S_WAVE)}, 14')
I(f's_min_u32 {s(S_T3)}, {s(S_T3)}, 41')
I(f's_add_u32 {s(S_T3)}, {s(S_T3)}, 20')
I(f's_lshl_b32 {s(S_T3)}, {s(S_T3)}, 10')
I(f's_add_u32 {s(S_HO)}, {s(S_OBASE)}, {s(S_T3)}')
for mb in range(1, 4):
    I(f's_add_u32 {s(S_HO + mb)}, {s(S_HO)}, {mb * ACT_MB}')
poll(V_PF, 'ffn', preissued=True)
stamp(7)


def hload(st, mb):
    if st == 13:
        I(f's_add_u32 {s(S_HO + mb)}, {s(S_HO + mb)}, {s(S_LAST)}')
    I(f'buffer_load_dwordx4 {v(HW + 16 * (st % HWN) + 4 * mb, 4)}, {v(V_L16)}, {s(SRD_WS, 4)}, {s(S_HO + mb)} offen offset:{(st & 3) * 1024} sc1')
    if st & 3 == 3:
        I(f's_add_u32 {s(S_HO + mb)}, {s(S_HO + mb)}, 4096')


for st in range(HWN):
    for mb in range(4):
        hload(st, mb)
I(f's_mul_i32 {s(S_T3)}, {s(S_WAVE)}, {ACT_MB}')
I(f's_add_u32 {s(S_OBASE)}, {s(S_OBASE)}, {s(S_T3)}')
I(f's_mul_i32 {s(S_WOB)}, {s(S_WAVE)}, {5 * 40960}')
I(f's_mul_i32 {s(S_T3)}, {s(S_NT)}, 5120')
I(f's_add_u32 {s(S_WOB)}, {s(S_WOB)}, {s(S_T3)}')
I(f's_add_u32 {s(S_WOB)}, {s(S_WOB)}, {W_T}')
I(f's_mul_i32 {s(S_WOM)}, {s(S_WAVE)}, {25 * 1024}')
I(f's_mov_b32 {s(S_HI)}, 0xffff0000')
I(f's_mov_b32 {s(S_NL2E)}, {f32(-1.4426950408889634)}')
VXO, VB2, VPA2, VRED, VRED2, VWO2 = T2, T2 + 1, T2 + 2, T2 + 3, T2 + 4, T2 + 5
I(f'v_and_b32 {v(VB2)}, 15, {v(V_LANE)}')
I(f's_lshl_b32 {s(S_T3)}, {s(S_M2)}, 6')
I(f's_lshl_b32 {s(S_T4)}, {s(S_WAVE)}, 4')
I(f's_add_u32 {s(S_T3)}, {s(S_T3)}, {s(S_T4)}')
I(f'v_add_u32 {v(VB2)}, {s(S_T3)}, {v(VB2)}')
I(f'v_mul_u32_u24 {v(VXO)}, 1280, {v(VB2)}')
I(f'v_lshrrev_b32 {v(VB2)}, 4, {v(V_LANE)}')
I(f's_mul_i32 {s(S_T3)}, {s(S_NT)}, 160')
I(f'v_lshl_add_u32 {v(VB2)}, {v(VB2)}, 3, {s(S_T3)}')
I(f'v_add_u32 {v(VXO)}, {v(VXO)}, {v(VB2)}')
I(f'v_subrev_u32 {v(VPA2)}, 32, {v(V_PF)}')
I(f'v_add_u32 {v(VRED)}, {LDS_RED}, {v(V_L16)}')
I(f's_mul_i32 {s(S_T3)}, {s(S_WAVE)}, {15 * 1024}')
I(f'v_add_u32 {v(VRED2)}, {s(S_T3)}, {v(VRED)}')
I(f'v_add_u32 {v(VWO2)}, 65536, {v(V_L16)}')


def wodma(f):
    i, nb = divmod(f, 5)
    if nb == 0 or nb == 4:
        I(f's_add_u32 m0, {s(S_WOM)}, {LDS_WO + (i * 5 + (4 if nb == 4 else 0)) * 1024}')
    I(f'buffer_load_dwordx4 {v(V_L16 if nb < 4 else V_L16B)}, {s(SRD_WS, 4)}, {s(S_WOB)} offen offset:{(nb & 3) * 1024} sc1 lds')
    if nb == 4:
        I(f's_add_u32 {s(S_WOB)}, {s(S_WOB)}, 40960')


def oreg(ks):
    return a(4 * W2ORDER[ks], 4)


def oloads():
    for ks in range(20):
        if ks % 8 == 0 and ks:
            I(f's_add_u32 {s(S_OBASE)}, {s(S_OBASE)}, 8192')
        I(f'buffer_load_dwordx4 {oreg(ks)}, {v(V_L16 if (ks & 7) < 4 else V_L16B)}, {s(SRD_WS, 4)}, {s(S_OBASE)} offen offset:{(ks & 3) * 1024} sc1')


aux2 = [[] for _ in range(14)]
for st in range(14 - HWN):
    pass
extra = [lambda f=f: wodma(f) for f in range(25)]
for nb in range(5):
    extra.append(lambda nb=nb: I(f'buffer_load_dwordx2 {v(XIN + 2 * nb, 2)}, {v(VXO)}, {s(SRD_X, 4)}, 0 offen offset:{32 * nb}'))
    extra.append(lambda nb=nb: I(f'buffer_load_dwordx2 {v(B2V + 2 * nb, 2)}, {v(VB2)}, {s(SRD_B2, 4)}, 0 offen offset:{32 * nb}'))
for st in range(14):
    if st == 12:
        k.wait_all(vm=True, lg=False)
        chk_eval()
        I(f's_mov_b32 {s(S_OOK)}, 0')
        lab = k.newlabel('L_noo')
        I(f's_cbranch_vccnz {lab}')
        I(f's_mov_b32 {s(S_OOK)}, 1')
        oloads()
        k.vmq = []
        k.label(lab)
    for mb in range(4):
        for nb in range(5):
            d = YACC + (mb * 5 + nb) * 4
            c_ = '0' if st == 0 else v(d, 4)
            I(f'v_mfma_f32_16x16x32_bf16 {v(d, 4)}, {w2reg(st, nb)}, {v(HW + 16 * (st % HWN) + 4 * mb, 4)}, {c_}')
            if nb == 2 and extra and st < 9:
                extra.pop(0)()
        if st + HWN < 14:
            hload(st + HWN, mb)
    if st == 9:
        assert not extra
        chk_issue(VPA2)
stamp(8)
labs = [k.newlabel('L_red') for _ in range(4)]
lend = k.newlabel('L_redend')
stw = k.state()
YOWN = HW
for w in range(4):
    k.set_state(stw)
    if w:
        k.label(labs[w])
    if w < 3:
        I(f's_cmp_eq_u32 {s(S_WAVE)}, {w}')
        I(f's_cbranch_scc0 {labs[w + 1]}')
    I('s_nop 7')
    r = 0
    for i in range(1, 4):
        mb = (w + i) & 3
        for nb in range(5):
            I(f'ds_write_b128 {v(VRED)}, {v(YACC + (mb * 5 + nb) * 4, 4)} offset:{((mb * 3 + i - 1) * 5 + nb) * 1024}')
            for _ in range(2):
                if r < 20:
                    I(f'v_mov_b32 {v(YOWN + r)}, {v(YACC + w * 20 + r)}')
                    r += 1
    if w < 3:
        I(f's_branch {lend}')
k.label(lend)
k.wait_all(vm=False, lg=True)
I('s_barrier')
YT = HW + 20
for i in range(3):
    for nb in range(5):
        I(f'ds_read_b128 {v(YT + 20 * i + 4 * nb, 4)}, {v(VRED2)} offset:{(i * 5 + nb) * 1024}')
for i in range(3):
    for r in range(10):
        I(f'v_pk_add_f32 {v(YOWN + 2 * r, 2)}, {v(YOWN + 2 * r, 2)}, {v(YT + 20 * i + 2 * r, 2)}')
WOW = YACC
LA2 = 12


def woread(n):
    off = LDS_WO + n * 1024
    if off < 65536:
        I(f'ds_read_b128 {v(WOW + 4 * (n % 16), 4)}, {v(V_L16)} offset:{off}')
    else:
        I(f'ds_read_b128 {v(WOW + 4 * (n % 16), 4)}, {v(VWO2)} offset:{off - 65536}')


for n in range(LA2):
    woread(n)
G1 = YT
for half in range(2):
    rr = range(5 * half, 5 * half + 5)
    seq = [
        lambda y, p, r: f'v_cvt_pk_bf16_f32 {v(p)}, {v(y)}, {v(y + 1)}',
        lambda y, p, r: f'v_lshlrev_b32 {v(y)}, 16, {v(p)}',
        lambda y, p, r: f'v_and_b32 {v(y + 1)}, {s(S_HI)}, {v(p)}',
        lambda y, p, r: f'v_lshlrev_b32 {v(p)}, 16, {v(B2V + r)}',
        lambda y, p, r: f'v_and_b32 {v(p + 1)}, {s(S_HI)}, {v(B2V + r)}',
        lambda y, p, r: f'v_pk_add_f32 {v(y, 2)}, {v(y, 2)}, {v(p, 2)}',
        lambda y, p, r: f'v_cvt_pk_bf16_f32 {v(p)}, {v(y)}, {v(y + 1)}',
        lambda y, p, r: f'v_lshlrev_b32 {v(y)}, 16, {v(p)}',
        lambda y, p, r: f'v_and_b32 {v(y + 1)}, {s(S_HI)}, {v(p)}',
        lambda y, p, r: f'v_mul_f32 {v(p)}, {s(S_NL2E)}, {v(y)}',
        lambda y, p, r: f'v_mul_f32 {v(p + 1)}, {s(S_NL2E)}, {v(y + 1)}',
        lambda y, p, r: f'v_exp_f32 {v(p)}, {v(p)}',
        lambda y, p, r: f'v_exp_f32 {v(p + 1)}, {v(p + 1)}',
        lambda y, p, r: f'v_add_f32 {v(p)}, 1.0, {v(p)}',
        lambda y, p, r: f'v_add_f32 {v(p + 1)}, 1.0, {v(p + 1)}',
        lambda y, p, r: f'v_rcp_f32 {v(p)}, {v(p)}',
        lambda y, p, r: f'v_rcp_f32 {v(p + 1)}, {v(p + 1)}',
        lambda y, p, r: f'v_pk_mul_f32 {v(y, 2)}, {v(y, 2)}, {v(p, 2)}',
        lambda y, p, r: f'v_cvt_pk_bf16_f32 {v(p)}, {v(y)}, {v(y + 1)}',
        lambda y, p, r: f'v_lshlrev_b32 {v(y)}, 16, {v(p)}',
        lambda y, p, r: f'v_and_b32 {v(y + 1)}, {s(S_HI)}, {v(p)}',
    ]
    for fn in seq:
        for r in rr:
            I(fn(YOWN + 2 * r, G1 + 2 * r, r))
for r in range(10):
    I(f'v_lshlrev_b32 {v(G1 + 2 * r)}, 16, {v(XIN + r)}')
    I(f'v_and_b32 {v(G1 + 2 * r + 1)}, {s(S_HI)}, {v(XIN + r)}')
lab = k.newlabel('L_haveo')
I(f's_cmp_eq_u32 {s(S_OOK)}, 1')
I(f's_cbranch_scc1 {lab}')
poll(VPA2, 'att')
oloads()
k.label(lab)
stamp(1, 3)
for n in range(100):
    ks, nb = divmod(n, 5)
    d = SACC + 4 * nb
    c_ = '0' if ks == 0 else v(d, 4)
    if n % 2 == 0:
        k._need(regs_of(v(WOW + 4 * (n % 16), 8)))
    I(f'v_mfma_f32_16x16x32_bf16 {v(d, 4)}, {v(WOW + 4 * (n % 16), 4)}, {oreg(ks)}, {c_}')
    if n + LA2 < 100:
        woread(n + LA2)
PT = YT + 20
seq = [
    lambda sx, y, p, r: f'v_cvt_pk_bf16_f32 {v(p)}, {v(sx)}, {v(sx + 1)}',
    lambda sx, y, p, r: f'v_lshlrev_b32 {v(sx)}, 16, {v(p)}',
    lambda sx, y, p, r: f'v_and_b32 {v(sx + 1)}, {s(S_HI)}, {v(p)}',
    lambda sx, y, p, r: f'v_pk_mul_f32 {v(sx, 2)}, {v(sx, 2)}, {v(y, 2)}',
    lambda sx, y, p, r: f'v_cvt_pk_bf16_f32 {v(p)}, {v(sx)}, {v(sx + 1)}',
    lambda sx, y, p, r: f'v_lshlrev_b32 {v(sx)}, 16, {v(p)}',
    lambda sx, y, p, r: f'v_and_b32 {v(sx + 1)}, {s(S_HI)}, {v(p)}',
    lambda sx, y, p, r: f'v_pk_add_f32 {v(sx, 2)}, {v(sx, 2)}, {v(G1 + 2 * r, 2)}',
    lambda sx, y, p, r: f'v_cvt_pk_bf16_f32 {v(XIN + r)}, {v(sx)}, {v(sx + 1)}',
]
for nb in range(5):
    for fn in seq:
        for r in (2 * nb, 2 * nb + 1):
            I(fn(SACC + 2 * r, YOWN + 2 * r, PT + r, r))
    I(f'buffer_store_dwordx2 {v(XIN + 2 * nb, 2)}, {v(VXO)}, {s(SRD_OUT, 4)}, 0 offen offset:{32 * nb}')
if STAMPS:
    stamp(9, -1)
    k.wait_all()
    I(f's_lshl_b32 {s(S_T3)}, {s(S_WG)}, 8')
    I(f's_lshl_b32 {s(S_T4)}, {s(S_WAVE)}, 6')
    I(f's_add_u32 {s(S_T3)}, {s(S_T3)}, {s(S_T4)}')
    I(f's_add_u32 {s(S_T3)}, {s(S_T3)}, {STAMP_OFF}')
    I(f'v_mov_b32 {v(T2)}, 0')
    I('s_mov_b64 exec, 1')
    for i in range(10):
        I(f'v_mov_b32 {v(T2 + 1)}, {s(S_STAMP + 2 * i)}')
        I(f'buffer_store_dword {v(T2 + 1)}, {v(T2)}, {s(SRD_WS, 4)}, {s(S_T3)} offen offset:{4 * i}')
    I(f'v_mov_b32 {v(T2 + 1)}, {s(S_OOK)}')
    I(f'buffer_store_dword {v(T2 + 1)}, {v(T2)}, {s(SRD_WS, 4)}, {s(S_T3)} offen offset:56')
    I(f'v_mov_b32 {v(T2 + 1)}, {s(S_TYPE)}')
    I(f'buffer_store_dword {v(T2 + 1)}, {v(T2)}, {s(SRD_WS, 4)}, {s(S_T3)} offen offset:60')
if '--dbg' in sys.argv:
    for i in range(10):
        I(f's_sub_u32 {s(S_T4)}, {s(S_STAMP + 2 * i)}, {s(S_TAG)}')
        I(f's_add_u32 {s(S_T4)}, {s(S_T4)}, 1000')
        I(f'v_mov_b32 {v(T2 + 1)}, {s(S_T4)}')
        I(f'buffer_atomic_umax {v(T2 + 1)}, {v(T2)}, {s(SRD_DBG, 4)}, 0 offen offset:{4 + 4 * i} sc1')
k.label('L_end')
I('s_endpgm')

hdr = open('recurrent_scan__sliding_local_dilated__dense_activation_gelu__prompt.s.ref').read().split('\n')
head = [l for l in hdr if l.startswith(';') and '@launch' not in l and 'Override' not in l and 'grid=ceil' not in l]
print('\n'.join(head))
print(f'; @launch grid=(256,1,1) block=(256,1,1) lds={LDS_TOTAL}')
print(f'''.amdgcn_target "amdgcn-amd-amdhsa--gfx950"
.text
.globl {KNAME}
.p2align 8
.type {KNAME},@function
{KNAME}:''')
print(k.text())
print(f'''.section .rodata,"a"
.p2align 6
.amdhsa_kernel {KNAME}
  .amdhsa_next_free_vgpr 512
  .amdhsa_next_free_sgpr 102
  .amdhsa_accum_offset 256
  .amdhsa_group_segment_fixed_size 0
  .amdhsa_kernarg_size 88
  .amdhsa_user_sgpr_count 2
  .amdhsa_user_sgpr_kernarg_segment_ptr 1
  .amdhsa_system_sgpr_workgroup_id_x 1
  .amdhsa_float_denorm_mode_32 3
.end_amdhsa_kernel''')
```

```python
import sys, struct
from asmlib import *

KNAME = 'recurrent_scan__sliding_local_dilated__dense_activation_gelu__prompt_kernel'
STAMPS = '--stamps' in sys.argv


def opt(name, default):
    for x in sys.argv:
        if x.startswith(f'--{name}='):
            return int(x.split('=')[1])
    return default


SMODE = opt('smode', 0)

XN_T = 0
ACT_T = 128 * 20 * 1024
ACT_MB = 74 * 1024
W_T = ACT_T + 128 * ACT_MB
LNF = W_T + 74 * 40 * 1024
P1F = LNF + 16 * 128
WTF = P1F + 16 * 128
WS_USED = WTF + 1024
STAMP_OFF = WS_USED
WS_REC = WS_USED + (256 * 4 * 64 if STAMPS else 0)
OOB = 0x40000000

RROW = 1056
SLOT = 16 * RROW
NSLOT = 8
HALO = NSLOT * SLOT
CNT = HALO + 20 * 1024
RS = 592
LDS_WO = 0
LDS_RED = 100 * 1024
LDS_TOTAL = 163840


def f32(x):
    return '0x%08x' % struct.unpack('<I', struct.pack('<f', x))[0]


S_WG, S_FOFF = 2, 3
SRD_X, SRD_B, SRD_WS, SRD_DBG, SRD_OUT, SRD_RT, SRD_B1, SRD_B2 = 4, 8, 12, 16, 20, 24, 28, 56
P_X, P_WQKV, P_WO, P_BX, P_W1, P_B1, P_W2, P_B2, P_OUT, P_DBG, P_WS = 32, 34, 36, 38, 40, 42, 44, 46, 48, 50, 52
S_WAVE, S_MT, S_TYPE, S_IDX, S_FB, S_PITCH, S_KSTR, S_START = 60, 61, 62, 63, 64, 65, 66, 67
S_T0, S_T1, S_T2, S_T3, S_T4, S_T5 = 68, 69, 70, 71, 72, 73
S_M0B, S_SOFF, S_M2, S_NT, S_SPIN, S_TAG = 74, 75, 76, 77, 78, 79
S_STAMP = 80
S_W2B, S_LAST = 100, 101
S_HB, S_MB0 = 32, 33
S_AO = 36

V_LANE = 1
V_DMA = 2
V_TR0, V_TR1 = 6, 7
V_TRH0, V_TRH1 = 8, 9
V_L16 = 10
V_L16B = 11
V_PA = 12
V_POLL = 13
V_X = 14
V_PF = 15
ACC = 16
HACC = 136
WIN = 148
HX = 180
T = 188
BIAS = 226
W2V = 228
P4 = 252

k = K()
I = k.I


def stamp(idx, mode=0):
    if STAMPS and (mode == SMODE or mode == -1):
        I(f'{"s_memtime" if "--cyc" in sys.argv else "s_memrealtime"} {s(S_STAMP + 2 * idx, 2)}')


def srd(base, plo, nbytes):
    I(f's_mov_b32 {s(base)}, {s(plo)}')
    I(f's_mov_b32 {s(base + 1)}, {s(plo + 1)}')
    I(f's_mov_b32 {s(base + 2)}, {nbytes}')
    I(f's_mov_b32 {s(base + 3)}, 0x00020000')


def csel(dst, x, y):
    I(f's_mov_b32 {s(dst)}, {y}')
    I(f's_cselect_b32 {s(dst)}, {x}, {s(dst)}')


def chk_issue(addrv, n=1):
    if n == 1:
        I(f'buffer_load_dword {v(V_POLL)}, {v(addrv)}, {s(SRD_WS, 4)}, 0 offen sc1')
    else:
        I(f'buffer_load_dwordx4 {v(P4, 4)}, {v(addrv)}, {s(SRD_WS, 4)}, 0 offen sc1')


def chk_eval(n=1):
    if n == 1:
        I(f'v_cmp_ne_u32 vcc, {s(S_TAG)}, {v(V_POLL)}')
    else:
        for i in range(4):
            I(f'v_xor_b32 {v(P4 + i)}, {s(S_TAG)}, {v(P4 + i)}')
        I(f'v_or3_b32 {v(P4)}, {v(P4)}, {v(P4 + 1)}, {v(P4 + 2)}')
        I(f'v_or_b32 {v(P4)}, {v(P4)}, {v(P4 + 3)}')
        I(f'v_cmp_ne_u32 vcc, 0, {v(P4)}')


def poll(addrv, name, n=1, preissued=False):
    lab = k.newlabel('L_poll_' + name)
    done = k.newlabel('L_polled_' + name)
    if not preissued:
        chk_issue(addrv, n)
    chk_eval(n)
    I(f's_mov_b32 {s(S_SPIN)}, 0')
    I(f's_cbranch_vccz {done}')
    st = k.state()
    k.label(lab)
    I('s_sleep 1')
    chk_issue(addrv, n)
    k.wait_all(vm=True, lg=False)
    chk_eval(n)
    I(f's_add_u32 {s(S_SPIN)}, {s(S_SPIN)}, 1')
    I(f's_cbranch_vccz {done}')
    I(f's_cmp_lt_u32 {s(S_SPIN)}, 0x40000')
    I(f's_cbranch_scc1 {lab}')
    k.label(done)
    k.set_state(st)


def flag_store(base, offs, t0):
    I(f'v_mov_b32 {v(t0)}, {s(S_TAG)}')
    I(f'v_mov_b32 {v(t0 + 1)}, {base}')
    I('s_mov_b64 exec, 1')
    I(f'buffer_store_dword {v(t0)}, {v(t0 + 1)}, {s(SRD_WS, 4)}, {s(offs)} offen sc1')
    I('s_mov_b64 exec, -1')
    k.vmq.pop()


def dma1(j, soff_reg, tag):
    I(f'buffer_load_dwordx4 {v(V_DMA + j)}, {s(SRD_B, 4)}, {s(soff_reg)} offen offset:{j * RROW} lds', tag=tag)


def bf16r(dst, src):
    I(f'v_cvt_pk_bf16_f32 {v(dst)}, {v(src)}, {v(src)}')
    I(f'v_lshlrev_b32 {v(dst)}, 16, {v(dst)}')


def row_sum(r, t1):
    for sh in (4, 8):
        I(f'v_add_f32_dpp {v(r)}, {v(r)}, {v(r)} row_ror:{sh} row_mask:0xf bank_mask:0xf')
    for op in ('v_permlane16_swap_b32', 'v_permlane32_swap_b32'):
        I(f'v_mov_b32 {v(t1)}, {v(r)}')
        I(f'{op} {v(r)}, {v(t1)}')
        I(f'v_add_f32 {v(r)}, {v(r)}, {v(t1)}')


I(f's_cmp_ge_u32 {s(S_WG)}, 256')
I('s_cbranch_scc1 L_end')
I(f's_load_dwordx16 {s(32, 16)}, s[0:1], 0')
I(f's_load_dwordx4 {s(48, 4)}, s[0:1], 64')
I(f's_load_dwordx2 {s(52, 2)}, s[0:1], 80')
stamp(0, -1)
I(f'v_lshrrev_b32 {v(T)}, 6, v0')
I(f'v_and_b32 {v(V_LANE)}, 63, v0')
I(f'v_readfirstlane_b32 {s(S_WAVE)}, {v(T)}')
I(f'v_mov_b32 {v(T + 2)}, 0')
I(f'v_mov_b32 {v(T + 3)}, 0')
I(f'v_mov_b32 {v(T + 1)}, {CNT}')
I(f'ds_write_b64 {v(T + 1)}, {v(T + 2, 2)}')
I(f's_and_b32 {s(S_T0)}, {s(S_WG)}, 7')
I(f's_lshr_b32 {s(S_T1)}, {s(S_WG)}, 3')
I(f's_and_b32 {s(S_MT)}, {s(S_T0)}, 1')
I(f's_lshl_b32 {s(S_MT)}, {s(S_MT)}, 3')
I(f's_and_b32 {s(S_T2)}, {s(S_T1)}, 7')
I(f's_add_u32 {s(S_MT)}, {s(S_MT)}, {s(S_T2)}')
I(f's_lshr_b32 {s(S_T2)}, {s(S_T1)}, 3')
I(f's_and_b32 {s(S_TYPE)}, {s(S_T2)}, 1')
I(f's_lshr_b32 {s(S_T2)}, {s(S_T2)}, 1')
I(f's_and_b32 {s(S_IDX)}, {s(S_T0)}, 6')
I(f's_add_u32 {s(S_IDX)}, {s(S_IDX)}, {s(S_T2)}')
I(f's_lshl_b32 {s(S_FB)}, {s(S_MT)}, 4')
I(f's_lshl_b32 {s(S_T2)}, {s(S_TYPE)}, 3')
I(f's_add_u32 {s(S_FB)}, {s(S_FB)}, {s(S_T2)}')
I(f's_add_u32 {s(S_FB)}, {s(S_FB)}, {s(S_IDX)}')
I(f's_lshl_b32 {s(S_FOFF)}, {s(S_MT)}, 7')
I(f's_and_b32 {s(S_T2)}, {s(S_FB)}, 15')
I(f's_lshl_b32 {s(S_T2)}, {s(S_T2)}, 2')
I(f's_add_u32 {s(S_FOFF)}, {s(S_FOFF)}, {s(S_T2)}')
I(f's_lshl_b32 {s(S_M2)}, {s(S_T0)}, 2')
I(f's_and_b32 {s(S_T2)}, {s(S_T1)}, 3')
I(f's_add_u32 {s(S_M2)}, {s(S_M2)}, {s(S_T2)}')
I(f's_lshr_b32 {s(S_NT)}, {s(S_T1)}, 2')
I(f's_mul_i32 {s(S_START)}, {s(S_IDX)}, 7')
I(f's_min_u32 {s(S_START)}, {s(S_START)}, 47')
I(f's_cmp_eq_u32 {s(S_TYPE)}, 0')
csel(S_PITCH, 3840, 3456)
I(f's_lshl_b32 {s(S_KSTR)}, {s(S_PITCH)}, 5')
I(f'v_lshlrev_b32 {v(V_L16)}, 4, {v(V_LANE)}')
I(f'v_add_u32 {v(V_L16B)}, 4096, {v(V_L16)}')
I(f's_lshl_b32 {s(S_T0)}, {s(S_WG)}, 1')
I(f's_and_b32 {s(S_T1)}, {s(S_WAVE)}, 1')
I(f's_add_u32 {s(S_T0)}, {s(S_T0)}, {s(S_T1)}')
I(f's_mul_i32 {s(S_T1)}, {s(S_T0)}, 13108')
I(f's_lshr_b32 {s(S_T1)}, {s(S_T1)}, 16')
I(f's_mul_i32 {s(S_T2)}, {s(S_T1)}, 5')
I(f's_sub_u32 {s(S_T2)}, {s(S_T0)}, {s(S_T2)}')
assert all((u * 13108) >> 16 == u // 5 for u in range(512))
LR, LP, LXA = T + 4, T + 5, T + 6
I(f'v_and_b32 {v(LR)}, 3, {v(V_LANE)}')
I(f'v_lshrrev_b32 {v(LP)}, 2, {v(V_LANE)}')
I(f's_lshl_b32 {s(S_T3)}, {s(S_FB)}, 3')
I(f's_lshl_b32 {s(S_T4)}, {s(S_WAVE)}, 2')
I(f's_add_u32 {s(S_T3)}, {s(S_T3)}, {s(S_T4)}')
I(f'v_add_u32 {v(LR)}, {s(S_T3)}, {v(LR)}')
I(f'v_mul_u32_u24 {v(LXA)}, 1280, {v(LR)}')
I(f'v_lshl_add_u32 {v(LXA)}, {v(LP)}, 4, {v(LXA)}')
I(f'v_lshlrev_b32 {v(T + 7)}, 3, {v(V_LANE)}')
I(f's_lshl_b32 {s(S_T5)}, {s(S_START)}, 6')
k.wait_all(vm=False, lg=True)
stamp(1, 2)
srd(SRD_X, P_X, 2048 * 1280)
srd(SRD_DBG, P_DBG, 256)
srd(SRD_B1, P_B1, 1728 * 2)
XR = T + 8
TAGV = T + 36
I(f's_cmp_ge_u32 {s(S_WAVE)}, 2')
I('s_cbranch_scc1 L_noxl')
for i in range(5):
    I(f'buffer_load_dwordx4 {v(XR + 4 * i, 4)}, {v(LXA)}, {s(SRD_X, 4)}, 0 offen offset:{256 * i}', tag='x')
I(f'buffer_load_dword {v(TAGV)}, {v(T + 2)}, {s(SRD_DBG, 4)}, 0 offen sc1')
k.label('L_noxl')
I(f'buffer_load_dwordx2 {v(BIAS, 2)}, {v(T + 7)}, {s(SRD_B1, 4)}, {s(S_T5)} offen')
srd(SRD_WS, P_WS, WS_REC)
srd(SRD_OUT, P_OUT, 2048 * 1280)
srd(SRD_B2, P_B2, 640 * 2)
I(f's_cmp_eq_u32 {s(S_TYPE)}, 0')
I(f's_cselect_b32 {s(SRD_B)}, {s(P_WQKV)}, {s(P_W1)}')
I(f's_cselect_b32 {s(SRD_B + 1)}, {s(P_WQKV + 1)}, {s(P_W1 + 1)}')
csel(SRD_B + 2, 640 * 3840, 640 * 3456)
I(f's_mov_b32 {s(SRD_B + 3)}, 0x00020000')
I(f's_cmp_lt_u32 {s(S_T1)}, 20')
I(f's_cselect_b32 {s(SRD_RT)}, {s(P_WO)}, {s(P_W2)}')
I(f's_cselect_b32 {s(SRD_RT + 1)}, {s(P_WO + 1)}, {s(P_W2 + 1)}')
csel(SRD_RT + 2, 640 * 1280, 1728 * 1280)
I(f's_mov_b32 {s(SRD_RT + 3)}, 0x00020000')
I(f's_cmp_lt_u32 {s(S_WG)}, 8')
I('s_cbranch_scc0 L_notag')
I(f's_cmp_eq_u32 {s(S_WAVE)}, 2')
I('s_cbranch_scc0 L_notag')
stt = k.state()
I(f's_memrealtime {s(S_T4, 2)}')
I(f's_or_b32 {s(S_T4)}, {s(S_T4)}, 1')
I(f'v_mov_b32 {v(T + 2)}, {s(S_T4)}')
I('s_mov_b64 exec, 1')
I(f'buffer_atomic_cmpswap {v(T + 2, 2)}, {v(T + 3)}, {s(SRD_DBG, 4)}, 0 offen sc1')
I('s_mov_b64 exec, -1')
k.set_state(stt)
k.label('L_notag')


c, hf, sg = T, T + 1, T + 2
I(f'v_and_b32 {v(c)}, 31, {v(V_LANE)}')
I(f'v_lshrrev_b32 {v(hf)}, 5, {v(V_LANE)}')
S_CB = 34
I(f's_cmp_eq_u32 {s(S_TYPE)}, 0')
I(f's_cselect_b32 {s(S_T3)}, 29, 27')
I(f's_cselect_b32 {s(S_T4)}, 1120, 0')
I(f's_mul_i32 {s(S_CB)}, {s(S_IDX)}, 160')
I(f's_lshl_b32 {s(S_T5)}, {s(S_START)}, 6')
I(f's_cmp_eq_u32 {s(S_TYPE)}, 0')
I(f's_cselect_b32 {s(S_CB)}, {s(S_CB)}, {s(S_T5)}')
I(f'v_min_u32 {v(c)}, {s(S_T3)}, {v(c)}')
I(f'v_mul_u32_u24 {v(sg)}, 205, {v(c)}')
I(f'v_lshrrev_b32 {v(sg)}, 11, {v(sg)}')
I(f'v_mul_u32_u24 {v(sg)}, {s(S_T4)}, {v(sg)}')
I(f'v_lshl_add_u32 {v(sg)}, {v(c)}, 4, {v(sg)}')
I(f'v_add_u32 {v(sg)}, {s(S_CB)}, {v(sg)}')
I(f's_lshl_b32 {s(S_T3)}, {s(S_PITCH)}, 2')
I(f'v_mad_u32_u24 {v(V_DMA)}, {v(hf)}, {s(S_T3)}, {v(sg)}')
I(f's_sub_u32 {s(S_T3)}, {s(S_PITCH)}, {RROW}')
for j in range(1, 4):
    I(f'v_add_u32 {v(V_DMA + j)}, {s(S_T3)}, {v(V_DMA + j - 1)}')
assert all((c_ * 205) >> 11 == c_ // 10 for c_ in range(32))
NPRE = 4
I(f's_mul_i32 {s(S_M0B)}, {s(S_WAVE)}, {4 * RROW}')
I(f's_lshl_b32 {s(S_T3)}, {s(S_PITCH)}, 3')
I(f's_mul_i32 {s(S_SOFF)}, {s(S_WAVE)}, {s(S_T3)}')
I(f's_mul_i32 {s(S_T3)}, {s(S_KSTR)}, {NPRE}')
I(f's_add_u32 {s(S_SOFF)}, {s(S_SOFF)}, {s(S_T3)}')
I(f'v_mul_u32_u24 {v(V_TR0)}, {RROW}, {v(LP)}')
I(f'v_and_b32 {v(T)}, 3, {v(V_LANE)}')
I(f'v_lshl_add_u32 {v(V_TR0)}, {v(T)}, 3, {v(V_TR0)}')
I(f'v_add_u32 {v(V_TR1)}, {4 * SLOT}, {v(V_TR0)}')
I(f's_mul_i32 {s(S_HB)}, {s(S_WAVE)}, 3')
I(f's_min_u32 {s(S_HB)}, {s(S_HB)}, 7')
I(f's_add_u32 {s(S_HB)}, {s(S_HB)}, 5')
I(f's_lshl_b32 {s(S_T3)}, {s(S_HB)}, 5')
I(f'v_add_u32 {v(V_TRH0)}, {s(S_T3)}, {v(V_TR0)}')
I(f'v_add_u32 {v(V_TRH1)}, {s(S_T3)}, {v(V_TR1)}')
I(f'v_add_u32 {v(V_X)}, {HALO}, {v(V_L16)}')
I(f's_lshl_b32 {s(S_MB0)}, {s(S_MT)}, 3')
I(f's_lshl_b32 {s(S_T3)}, {s(S_WAVE)}, 1')
I(f's_add_u32 {s(S_MB0)}, {s(S_MB0)}, {s(S_T3)}')
I(f's_mul_i32 {s(S_AO)}, {s(S_MB0)}, 20480')
for q in range(1, 10):
    I(f's_add_u32 {s(S_AO + q)}, {s(S_AO)}, {XN_T + 4096 * q}')
I(f'v_and_b32 {v(T)}, 15, {v(V_LANE)}')
I(f's_lshl_b32 {s(S_T3)}, {s(S_MT)}, 7')
I(f's_add_u32 {s(S_T3)}, {s(S_T3)}, {LNF}')
I(f'v_lshl_add_u32 {v(V_PA)}, {v(T)}, 2, {s(S_T3)}')
I(f's_cmp_eq_u32 {s(S_TYPE)}, 0')
I(f's_cselect_b32 {s(S_T3)}, {128 - 56}, 0')
I(f's_cmp_eq_u32 {s(S_MT)}, 0')
I(f's_cselect_b32 {s(S_T3)}, 0, {s(S_T3)}')
I(f'v_subrev_u32 {v(T + 1)}, {s(S_T3)}, {v(V_PA)}')
I(f'v_lshrrev_b32 {v(T)}, 1, {v(V_LANE)}')
I(f'v_cmp_eq_u32 vcc, 8, {v(T)}')
I(f'v_cndmask_b32 {v(V_PA)}, {v(V_PA)}, {v(T + 1)}, vcc')
I(f's_mul_i32 {s(S_T3)}, {s(S_WAVE)}, 14')
I(f's_min_u32 {s(S_T3)}, {s(S_T3)}, 41')
I(f's_add_u32 {s(S_T3)}, {s(S_T3)}, 20')
I(f's_mul_i32 {s(S_W2B)}, {s(S_T3)}, 40960')
I(f's_mul_i32 {s(S_T3)}, {s(S_NT)}, 5120')
I(f's_add_u32 {s(S_W2B)}, {s(S_W2B)}, {s(S_T3)}')
I(f's_add_u32 {s(S_W2B)}, {s(S_W2B)}, {W_T}')
I(f's_cmp_ge_u32 {s(S_WAVE)}, 2')
I(f's_cselect_b32 {s(S_LAST)}, {OOB}, 0')
I(f's_lshr_b32 {s(S_T3)}, {s(S_M2)}, 1')
I(f's_lshl_b32 {s(S_T3)}, {s(S_T3)}, 7')
I(f's_add_u32 {s(S_T3)}, {s(S_T3)}, {P1F + 32}')
I(f'v_and_b32 {v(T)}, 7, {v(V_LANE)}')
I(f'v_lshl_add_u32 {v(V_PF)}, {v(T)}, 2, {s(S_T3)}')

I(f's_cmp_ge_u32 {s(S_WAVE)}, 2')
I('s_cbranch_scc1 L_pro_dma')

st0 = k.state()
XF = ACC
SA_ = T + 3
I(f'v_lshrrev_b32 {v(SA_)}, 4, {v(LR)}')
I(f'v_mul_u32_u24 {v(SA_)}, 20480, {v(SA_)}')
I(f'v_lshl_add_u32 {v(SA_)}, {v(LP)}, 8, {v(SA_)}')
I(f'v_and_b32 {v(T)}, 15, {v(LR)}')
I(f'v_lshl_add_u32 {v(SA_)}, {v(T)}, 4, {v(SA_)}')
I(f's_mov_b32 {s(S_T3)}, 0xffff0000')
stamp(2, 2)
k.wait_vm_tag('x')
stamp(3, 2)
I('s_barrier')
SUM = T + 4
for i in range(20):
    I(f'v_lshlrev_b32 {v(XF + 2 * i)}, 16, {v(XR + i)}')
    I(f'v_and_b32 {v(XF + 2 * i + 1)}, {s(S_T3)}, {v(XR + i)}')
    if i == 1:
        I(f'v_pk_add_f32 {v(SUM, 2)}, {v(XF, 2)}, {v(XF + 2, 2)}')
    elif i > 1:
        I(f'v_pk_add_f32 {v(SUM, 2)}, {v(SUM, 2)}, {v(XF + 2 * i, 2)}')
I(f'v_add_f32 {v(SUM)}, {v(SUM)}, {v(SUM + 1)}')
row_sum(SUM, SUM + 1)
MEAN = T + 6
I(f'v_mul_f32 {v(MEAN)}, {f32(1.0 / 640)}, {v(SUM)}')
I(f'v_mov_b32 {v(MEAN + 1)}, {v(MEAN)}')
SQ = T + 4
DV = T + 28
for i in range(20):
    d = DV + 2 * (i & 1)
    I(f'v_pk_add_f32 {v(d, 2)}, {v(XF + 2 * i, 2)}, {v(MEAN, 2)} neg_lo:[0,1] neg_hi:[0,1]')
    if i == 0:
        I(f'v_pk_mul_f32 {v(SQ, 2)}, {v(d, 2)}, {v(d, 2)}')
    else:
        I(f'v_pk_fma_f32 {v(SQ, 2)}, {v(d, 2)}, {v(d, 2)}, {v(SQ, 2)}')
I(f'v_add_f32 {v(SQ)}, {v(SQ)}, {v(SQ + 1)}')
row_sum(SQ, SQ + 1)
I(f'v_mul_f32 {v(SQ)}, {f32(1.0 / 640)}, {v(SQ)}')
bf16r(SQ, SQ)
I(f'v_add_f32 {v(SQ)}, {f32(1e-5)}, {v(SQ)}')
bf16r(SQ, SQ)
I(f'v_sqrt_f32 {v(SQ)}, {v(SQ)}')
bf16r(MEAN, MEAN)
bf16r(SQ, SQ)
I(f'v_rcp_f32 {v(SQ + 1)}, {v(SQ)}')
I(f'v_mov_b32 {v(MEAN + 1)}, {v(MEAN)}')
I(f'v_fma_f32 {v(SQ)}, -{v(SQ)}, {v(SQ + 1)}, 1.0')
I(f'v_fma_f32 {v(SQ)}, {v(SQ)}, {v(SQ + 1)}, {v(SQ + 1)}')
I(f'v_mov_b32 {v(SQ + 1)}, {v(SQ)}')
for i in range(20):
    x2 = XF + 2 * i
    I(f'v_pk_add_f32 {v(x2, 2)}, {v(x2, 2)}, {v(MEAN, 2)} neg_lo:[0,1] neg_hi:[0,1]')
    I(f'v_cvt_pk_bf16_f32 {v(XR + i)}, {v(x2)}, {v(x2 + 1)}')
    I(f'v_lshlrev_b32 {v(x2)}, 16, {v(XR + i)}')
    I(f'v_and_b32 {v(x2 + 1)}, {s(S_T3)}, {v(XR + i)}')
    I(f'v_pk_mul_f32 {v(x2, 2)}, {v(x2, 2)}, {v(SQ, 2)}')
    I(f'v_cvt_pk_bf16_f32 {v(XR + i)}, {v(x2)}, {v(x2 + 1)}')
    if i % 4 == 3:
        ii = i // 4
        I(f's_mov_b32 {s(S_T4)}, {XN_T + 4096 * ii}')
        I(f'buffer_store_dwordx4 {v(XR + 4 * ii, 4)}, {v(SA_)}, {s(SRD_WS, 4)}, {s(S_T4)} offen sc1')
stamp(1)
stamp(4, 2)
I(f'v_readfirstlane_b32 {s(S_TAG)}, {v(TAGV)}')
I(f'v_mov_b32 {v(T + 1)}, 0')
I(f's_mov_b32 {s(S_SPIN)}, 0')
I(f's_cmp_lg_u32 {s(S_TAG)}, 0')
I('s_cbranch_scc1 L_tagok')
k.label('L_tagpoll')
I(f'buffer_load_dword {v(TAGV)}, {v(T + 1)}, {s(SRD_DBG, 4)}, 0 offen sc1')
k.wait_all()
I(f'v_readfirstlane_b32 {s(S_TAG)}, {v(TAGV)}')
I(f's_add_u32 {s(S_SPIN)}, {s(S_SPIN)}, 1')
I(f's_cmp_lg_u32 {s(S_TAG)}, 0')
I('s_cbranch_scc1 L_tagok')
I(f's_cmp_lt_u32 {s(S_SPIN)}, 0x40000')
I('s_cbranch_scc1 L_tagpoll')
k.label('L_tagok')
I(f'v_mov_b32 {v(T + 1)}, {CNT}')
I(f'ds_write_b32 {v(T + 1)}, {v(TAGV)} offset:4')
I(f'v_mov_b32 {v(T)}, 1')
k.wait_all()
stamp(5, 2)
I('s_mov_b64 exec, 1')
I(f'ds_add_rtn_u32 {v(T + 2)}, {v(T + 1)}, {v(T)}')
I('s_mov_b64 exec, -1')
I(f'v_readfirstlane_b32 {s(S_T3)}, {v(T + 2)}')
I(f's_cmp_eq_u32 {s(S_T3)}, 1')
I('s_cbranch_scc0 L_pro_join')
flag_store(LNF, S_FOFF, T)
I('s_branch L_pro_join')

k.set_state(st0)
k.vmq = [(regs_of(v(BIAS, 2)), None)]
k.label('L_pro_dma')
RT_A, RT_B, RT_K0, RT_SCR, VW_M0, VW_SO, S_PFO = 46, 47, 48, 49, 50, 52, 54
I(f's_cmp_lt_u32 {s(S_T1)}, 20')
csel(RT_A, 8 * 1280, 4 * 1280)
csel(RT_B, 4 * 1280, 16 * 1280)
I(f's_cselect_b32 {s(RT_K0)}, 0, 20')
I(f's_sub_u32 {s(RT_K0)}, {s(S_T1)}, {s(RT_K0)}')
I(f's_mul_i32 {s(RT_K0)}, {s(RT_K0)}, {32 * 1280}')
I(f's_lshl_b32 {s(S_T3)}, {s(S_T2)}, 8')
I(f's_add_u32 {s(RT_K0)}, {s(RT_K0)}, {s(S_T3)}')
I(f's_and_b32 {s(S_T3)}, {s(S_WAVE)}, 1')
I(f's_mul_i32 {s(VW_M0)}, {s(S_T3)}, {8 * RROW}')
I(f's_add_u32 {s(RT_SCR)}, {s(VW_M0)}, {7 * SLOT}')
I(f's_add_u32 {s(VW_M0 + 1)}, {s(VW_M0)}, {4 * RROW}')
I(f's_lshl_b32 {s(S_T4)}, {s(S_PITCH)}, 4')
I(f's_mul_i32 {s(VW_SO)}, {s(S_T3)}, {s(S_T4)}')
I(f's_lshl_b32 {s(S_T4)}, {s(S_PITCH)}, 3')
I(f's_add_u32 {s(VW_SO + 1)}, {s(VW_SO)}, {s(S_T4)}')
RTV, RTL, PFV = T + 8, T + 9, T + 10
I(f'v_lshrrev_b32 {v(RTV)}, 4, {v(V_LANE)}')
I(f'v_mul_u32_u24 {v(RTV)}, 1280, {v(RTV)}')
I(f'v_and_b32 {v(T)}, 15, {v(V_LANE)}')
I(f'v_lshl_add_u32 {v(RTV)}, {v(T)}, 4, {v(RTV)}')
I(f'v_lshlrev_b32 {v(RTL)}, 8, {v(LP)}')
I(f'v_and_b32 {v(T)}, 3, {v(V_LANE)}')
I(f'v_lshl_add_u32 {v(RTL)}, {v(T)}, 3, {v(RTL)}')
I(f'v_add_u32 {v(RTL)}, {s(RT_SCR)}, {v(RTL)}')
I(f'v_and_b32 {v(T)}, 7, {v(V_LANE)}')
I(f's_cmp_eq_u32 {s(S_TYPE)}, 0')
I(f's_cselect_b32 {s(S_T4)}, 5, 3')
I(f's_cselect_b32 {s(S_T5)}, {1280 - 256}, 0')
I(f'v_min_u32 {v(T)}, {s(S_T4)}, {v(T)}')
I(f'v_lshrrev_b32 {v(T + 1)}, 1, {v(T)}')
I(f'v_mul_u32_u24 {v(T + 1)}, {s(S_T5)}, {v(T + 1)}')
I(f'v_lshl_add_u32 {v(PFV)}, {v(T)}, 7, {v(T + 1)}')
I(f'v_lshrrev_b32 {v(T)}, 3, {v(V_LANE)}')
I(f'v_mad_u32_u24 {v(PFV)}, {v(T)}, {s(S_PITCH)}, {v(PFV)}')
I(f's_and_b32 {s(S_T4)}, {s(S_MT)}, 7')
I(f's_lshl_b32 {s(S_T4)}, {s(S_T4)}, 1')
I(f's_add_u32 {s(S_T4)}, {s(S_T4)}, {s(S_T3)}')
I(f's_mul_i32 {s(S_T4)}, {s(S_T4)}, 40')
I(f's_mul_i32 {s(S_PFO)}, {s(S_T4)}, {s(S_PITCH)}')
I(f's_add_u32 {s(S_PFO)}, {s(S_PFO)}, {s(S_CB)}')
I(f's_lshl_b32 {s(S_T4)}, {s(S_PITCH)}, 3')
stamp(2, 2)
I('s_barrier')
stamp(3, 2)
for i in range(5):
    I(f'buffer_load_dword {v(T + 12 + i)}, {v(PFV)}, {s(SRD_B, 4)}, {s(S_PFO)} offen', tag='pf')
    I(f's_add_u32 {s(S_PFO)}, {s(S_PFO)}, {s(S_T4)}')
for t in range(8):
    hf_, g = t >> 2, t & 3
    I(f's_mul_i32 {s(S_T3)}, {s(RT_A)}, {g}')
    I(f's_add_u32 {s(S_T3)}, {s(S_T3)}, {s(RT_K0)}')
    if hf_:
        I(f's_add_u32 {s(S_T3)}, {s(S_T3)}, {s(RT_B)}')
    I(f's_add_u32 m0, {s(RT_SCR)}, {1024 * t}')
    I(f'buffer_load_dwordx4 {v(RTV)}, {s(SRD_RT, 4)}, {s(S_T3)} offen lds', tag='rt')
I(f's_mul_i32 {s(S_T3)}, {s(S_T1)}, 40960')
I(f's_lshl_b32 {s(S_T4)}, {s(S_T2)}, 13')
I(f's_add_u32 {s(S_T3)}, {s(S_T3)}, {s(S_T4)}')
I(f's_add_u32 {s(S_T3)}, {s(S_T3)}, {W_T}')
I(f's_cmp_lt_u32 {s(S_T1)}, 74')
I(f's_cselect_b32 {s(S_T3)}, {s(S_T3)}, {OOB}')
k.wait_vm_tag('pf')
stamp(4, 2)
for sl in range(NPRE):
    for h in range(2):
        I(f's_add_u32 m0, {s(VW_M0 + h)}, {sl * SLOT}')
        for j in range(4):
            dma1(j, VW_SO + h, 'ring')
        I(f's_add_u32 {s(VW_SO + h)}, {s(VW_SO + h)}, {s(S_KSTR)}')
    if sl == 1:
        k.wait_vm_tag('rt')
        RF = ACC
        for nb in range(8):
            I(f'ds_read_b64_tr_b16 {v(RF + 4 * nb, 2)}, {v(RTL)} offset:{32 * nb}')
            I(f'ds_read_b64_tr_b16 {v(RF + 4 * nb + 2, 2)}, {v(RTL)} offset:{32 * nb + 4096}')
        for nb in range(8):
            I(f'buffer_store_dwordx4 {v(RF + 4 * nb, 4)}, {v(V_L16 if nb < 4 else V_L16B)}, {s(SRD_WS, 4)}, {s(S_T3)} offen offset:{1024 * (nb & 3)} sc1')
stamp(5, 2)
stamp(1)
k.wait_all(vm=False, lg=True)

k.label('L_pro_join')
k.vmq = [(set(), 'unknown')]
k.lgq = []
I('s_nop 4')
I(f's_cmp_eq_u32 {s(S_TYPE)}, 1')
I('s_cbranch_scc1 L_ffn')
st_join = k.state()


def ln_wait():
    lab = k.newlabel('L_lnw')
    I(f's_cmp_eq_u32 {s(S_WAVE)}, 0')
    I(f's_cbranch_scc0 {lab}')
    stamp(6, 2)
    poll(V_PA, 'ln')
    k.label(lab)
    k.wait_all()
    stamp(7, 2)
    I('s_barrier')
    stamp(8, 2)


def tag_fetch():
    I(f'v_mov_b32 {v(T + 1)}, {CNT}')
    I(f'ds_read_b32 {v(T)}, {v(T + 1)} offset:4')
    I(f'v_readfirstlane_b32 {s(S_TAG)}, {v(T)}')


def load_A(ks, rb):
    I(f'buffer_load_dwordx4 {a((ks * 2 + rb) * 4, 4)}, {v(V_L16)}, {s(SRD_WS, 4)}, {s(S_AO + rb * 5 + ks // 4)} offen offset:{(ks & 3) * 1024} sc1')


W2ORDER = list(range(40, 64)) + list(range(40))


def w2reg(st, nb):
    f = st * 5 + nb
    return a(4 * W2ORDER[f], 4) if f < 64 else v(W2V + 4 * (f - 64), 4)


def w2load(f):
    st, nb = divmod(f, 5)
    if st == 13 and nb == 0:
        I(f's_add_u32 {s(S_W2B)}, {s(S_W2B)}, {s(S_LAST)}')
    I(f'buffer_load_dwordx4 {w2reg(st, nb)}, {v(V_L16 if nb < 4 else V_L16B)}, {s(SRD_WS, 4)}, {s(S_W2B)} offen offset:{(nb & 3) * 1024} sc1')
    if nb == 4:
        I(f's_add_u32 {s(S_W2B)}, {s(S_W2B)}, 40960')


W2_INLOOP = 48


def mainloop(ncb, halo, first_c_zero):
    NF = ncb + (3 if halo else 0)
    LA = 7
    items = [(ks, j) for ks in range(20) for j in range(NF)]
    N = len(items)
    aux = [[] for _ in range(20)]
    for ks in range(8):
        for kk in (2 * ks + 4, 2 * ks + 5):
            for rb in range(2):
                aux[ks].append(lambda kk=kk, rb=rb: load_A(kk, rb))
    for ks in range(20 - NPRE):
        kn = ks + NPRE
        dm = []
        for j in range(4):
            def f(j=j, kn=kn):
                if j == 0:
                    I(f's_add_u32 m0, {s(S_M0B)}, {(kn % NSLOT) * SLOT}')
                dma1(j, S_SOFF, ('dma', kn))
                if j == 3:
                    I(f's_add_u32 {s(S_SOFF)}, {s(S_SOFF)}, {s(S_KSTR)}')
            dm.append(f)
        old = aux[ks]
        mix = []
        for i in range(4):
            mix.append(dm[i])
            if i < len(old):
                mix.append(old[i])
        aux[ks] = mix + old[4:]
    aux[5].append(lambda: chk_issue(V_PA, 4))
    f = 0
    for ks in range(8, 20):
        cnt = 3 if ks < 16 else 6
        for _ in range(cnt):
            assert f < 24 or ks > (f - 24) // 2
            aux[ks].append(lambda f=f: w2load(f))
            f += 1
    assert f == W2_INLOOP

    def rd(n, half):
        ks, j = items[n]
        sl = ks % NSLOT
        w = WIN + 4 * (n % 8)
        if j < ncb:
            base = V_TR0 if sl < 4 else V_TR1
            off = (sl % 4) * SLOT + 32 * j
        else:
            base = V_TRH0 if sl < 4 else V_TRH1
            off = (sl % 4) * SLOT + 32 * (j - ncb)
        if j == 0 and half == 0 and ks >= 2 and ks % 2 == 0:
            if ks + 1 >= NPRE:
                k.wait_vm_tag(('dma', ks + 1))
            I('s_barrier')
            if ks == 2:
                lab = k.newlabel('L_nf')
                I(f's_cmp_eq_u32 {s(S_WAVE)}, 0')
                I(f's_cbranch_scc0 {lab}')
                I(f's_lshl_b32 {s(S_T3)}, {s(S_WG)}, 2')
                flag_store(WTF, S_T3, T)
                k.label(lab)
        I(f'ds_read_b64_tr_b16 {v(w + 2 * half, 2)}, {v(base)} offset:{off + 512 * half}')
        if halo and j == ncb and half == 1:
            I(f'ds_read_b128 {v(HX + 4 * (ks & 1), 4)}, {v(V_X)} offset:{ks * 1024}')

    for n in range(LA):
        rd(n, 0)
        rd(n, 1)
    I(f'v_add_u32 {v(V_PA)}, {WTF}, {v(V_L16)}')
    for n in range(N):
        ks, j = items[n]
        w = WIN + 4 * (n % 8)
        if j == 0:
            pend = list(aux[ks])
            tot = len(pend)
            done = 0
            if ks in (0, 1, 2, 4, 8, 12, 16, 18):
                stamp(1 + (0, 1, 2, 4, 8, 12, 16, 18).index(ks), 1)
            if ks == 8:
                poll(V_PA, 'wt', 4, preissued=True)
        if n % 2 == 0 and n + 1 < N:
            k._need(regs_of(v(WIN + 4 * ((n + 1) % 8), 4)) | regs_of(v(w, 4)))
        if j < ncb:
            for rb in range(2):
                d = ACC + (j * 2 + rb) * 4
                c_ = '0' if (ks == 0 and first_c_zero) else v(d, 4)
                I(f'v_mfma_f32_16x16x32_bf16 {v(d, 4)}, {v(w, 4)}, {a((ks * 2 + rb) * 4, 4)}, {c_}')
                if n + LA < N:
                    rd(n + LA, rb)
        else:
            d = HACC + (j - ncb) * 4
            c_ = '0' if ks == 0 else v(d, 4)
            I(f'v_mfma_f32_16x16x32_bf16 {v(d, 4)}, {v(w, 4)}, {v(HX + 4 * (ks & 1), 4)}, {c_}')
            if n + LA < N:
                rd(n + LA, 0)
                rd(n + LA, 1)
        while done < tot and done * NF <= j * tot + tot - 1 and (n % 2 == 0 or tot > NF // 2):
            pend[done]()
            done += 1
            if tot <= NF:
                break
        if j == NF - 1:
            while done < tot:
                pend[done]()
                done += 1


def publish(t0):
    chk_issue(V_PF)
    k.wait_all()
    I('s_barrier')
    lab = k.newlabel('L_np')
    I(f's_cmp_eq_u32 {s(S_WAVE)}, 0')
    I(f's_cbranch_scc0 {lab}')
    flag_store(P1F, S_FOFF, t0)
    k.label(lab)


I(f's_lshl_b32 {s(S_T3)}, {s(S_MT)}, 3')
I(f's_sub_u32 {s(S_T3)}, {s(S_T3)}, 1')
I(f's_mul_i32 {s(S_T3)}, {s(S_T3)}, 20480')
I(f's_mul_i32 {s(S_T4)}, {s(S_WAVE)}, 5120')
I(f's_add_u32 {s(S_T3)}, {s(S_T3)}, {s(S_T4)}')
I(f's_cmp_eq_u32 {s(S_MT)}, 0')
I(f's_cselect_b32 {s(S_T5)}, {OOB}, {s(S_T3)}')
I(f'v_add_u32 {v(T + 2)}, {s(S_T4)}, {v(V_X)}')
SA = T + 28
SH = T + 33
tm, tg, tn, tq = T + 4, T + 5, T + 6, T + 7
I(f'v_and_b32 {v(tm)}, 15, {v(V_LANE)}')
I(f'v_lshrrev_b32 {v(tg)}, 4, {v(V_LANE)}')
I(f's_lshl_b32 {s(S_T3)}, {s(S_WAVE)}, 5')
I(f's_add_u32 {s(S_T3)}, {s(S_T3)}, 16')
I(f'v_add_u32 {v(tq)}, {s(S_T3)}, {v(tm)}')
I(f'v_mul_u32_u24 {v(tq)}, {RS}, {v(tq)}')
for cb in range(5):
    I(f'v_lshl_add_u32 {v(tn)}, {v(tg)}, 2, {16 * cb}')
    I(f'v_mul_u32_u24 {v(SA + cb)}, 205, {v(tn)}')
    I(f'v_lshrrev_b32 {v(SA + cb)}, 12, {v(SA + cb)}')
    I(f'v_lshl_add_u32 {v(SA + cb)}, {v(SA + cb)}, 2, {v(tn)}')
    I(f'v_lshl_add_u32 {v(SA + cb)}, {v(SA + cb)}, 1, {v(tq)}')
assert all((n * 205) >> 12 == n // 20 for n in range(0, 240, 4))
I(f'v_mul_u32_u24 {v(tq)}, {RS}, {v(tm)}')
for j in range(3):
    I(f's_add_u32 {s(S_T3)}, {s(S_HB)}, {j}')
    I(f's_lshl_b32 {s(S_T3)}, {s(S_T3)}, 4')
    I(f'v_lshl_add_u32 {v(tn)}, {v(tg)}, 2, {s(S_T3)}')
    I(f'v_mul_u32_u24 {v(SH + j)}, 205, {v(tn)}')
    I(f'v_lshrrev_b32 {v(SH + j)}, 12, {v(SH + j)}')
    I(f'v_lshl_add_u32 {v(SH + j)}, {v(SH + j)}, 2, {v(tn)}')
    I(f'v_lshl_add_u32 {v(SH + j)}, {v(SH + j)}, 1, {v(tq)}')
ln_wait()
stamp(2)
for i in range(5):
    I(f'buffer_load_dwordx4 {v(T + 8 + 4 * i, 4)}, {v(V_L16 if i < 4 else V_L16B)}, {s(SRD_WS, 4)}, {s(S_T5)} offen offset:{(i & 3) * 1024} sc1')
for ks in range(4):
    for rb in range(2):
        load_A(ks, rb)
tag_fetch()
for i in range(5):
    I(f'ds_write_b128 {v(T + 2)}, {v(T + 8 + 4 * i, 4)} offset:{i * 1024}')
k.wait_all(vm=False, lg=True)
I('s_barrier')
stamp(3)
mainloop(15, True, True)
stamp(4)
w2rest = list(range(W2_INLOOP, 70))
VA, VB, VO, K2M0, K2M1, NEG = T, T + 1, T + 2, T + 3, 224, 225
t1, t2, t3 = T + 4, T + 5, T + 6
I(f's_mul_i32 {s(S_T3)}, {s(S_WAVE)}, 48')
I(f'v_and_b32 {v(t1)}, 0x38, {v(V_LANE)}')
I(f'v_bfe_u32 {v(t2)}, {v(V_LANE)}, 2, 1')
I(f'v_add_u32 {v(t1)}, {v(t1)}, {v(t2)}')
I(f'v_and_b32 {v(t2)}, 3, {v(V_LANE)}')
I(f'v_lshl_add_u32 {v(t1)}, {v(t2)}, 1, {v(t1)}')
I(f'v_mul_u32_u24 {v(VA)}, {RS}, {v(t1)}')
I(f'v_add_u32 {v(VA)}, {s(S_T3)}, {v(VA)}')
I('s_barrier')
PK = T + 8
n = 0
for cbg in list(range(5, 15)) + list(range(5)):
    sec, cb = divmod(cbg, 5)
    for rb in range(2):
        d = ACC + (cbg * 2 + rb) * 4
        p = PK + 2 * (n % 4)
        n += 1
        I(f'v_cvt_pk_bf16_f32 {v(p)}, {v(d)}, {v(d + 1)}')
        I(f'v_cvt_pk_bf16_f32 {v(p + 1)}, {v(d + 2)}, {v(d + 3)}')
        I(f'ds_write_b64 {v(SA + cb)}, {v(p, 2)} offset:{sec * 192 + rb * 16 * RS}')
        if w2rest and n % 2 == 0:
            w2load(w2rest.pop(0))
for j in range(3):
    d = HACC + 4 * j
    p = PK + 2 * (n % 4)
    n += 1
    I(f'v_cvt_pk_bf16_f32 {v(p)}, {v(d)}, {v(d + 1)}')
    I(f'v_cvt_pk_bf16_f32 {v(p + 1)}, {v(d + 2)}, {v(d + 3)}')
    I(f'ds_write_b64 {v(SH + j)}, {v(p, 2)}')
I(f'v_and_b32 {v(VB)}, 0x30, {v(V_LANE)}')
I(f'v_bfe_u32 {v(t3)}, {v(V_LANE)}, 1, 1')
I(f'v_lshl_add_u32 {v(VB)}, {v(t3)}, 3, {v(VB)}')
I(f'v_and_b32 {v(t3)}, 1, {v(V_LANE)}')
I(f'v_add_u32 {v(VB)}, {v(VB)}, {v(t3)}')
I(f'v_bfe_u32 {v(t3)}, {v(V_LANE)}, 2, 2')
I(f'v_lshl_add_u32 {v(VB)}, {v(t3)}, 1, {v(VB)}')
I(f'v_mul_u32_u24 {v(VB)}, {RS}, {v(VB)}')
I(f'v_add_u32 {v(VB)}, {s(S_T3)}, {v(VB)}')
k.wait_all(vm=False, lg=True)
I('s_barrier')

TASKR = [16, 102]
for hf_ in range(2):
    R = TASKR[hf_]
    Q, Kr, Vr = R, R + 12, R + 48
    hb = hf_ * 64 * RS
    I(f'ds_read_b128 {v(Q, 4)}, {v(VA)} offset:{hb + 16 * RS}')
    I(f'ds_read_b128 {v(Q + 4, 4)}, {v(VA)} offset:{hb + 16 * RS + 16}')
    I(f'ds_read_b64 {v(Q + 8, 2)}, {v(VA)} offset:{hb + 16 * RS + 32}')
    for kg in range(3):
        o = hb + kg * 8 * RS + 192
        I(f'ds_read_b128 {v(Kr + 12 * kg, 4)}, {v(VA)} offset:{o}')
        I(f'ds_read_b128 {v(Kr + 12 * kg + 4, 4)}, {v(VA)} offset:{o + 16}')
        I(f'ds_read_b64 {v(Kr + 12 * kg + 8, 2)}, {v(VA)} offset:{o + 32}')
I(f'v_lshrrev_b32 {v(t3)}, 4, {v(t1)}')
I(f'v_mul_u32_u24 {v(VO)}, {ACT_MB}, {v(t3)}')
I(f'v_and_b32 {v(t3)}, 15, {v(t1)}')
I(f'v_lshl_add_u32 {v(VO)}, {v(t3)}, 4, {v(VO)}')
M1, M2, M3, INV1, INV01, INV02, INV03, SC_HI, SC_SCALE, SC_L2E, S_OB = 36, 38, 40, 42, 44, 46, 48, 50, 52, 54, 35
for reg, pat in ((M1, 0xeeeeeeee), (M2, 0xcccccccc), (M3, 0x88888888)):
    I(f's_mov_b32 {s(reg)}, {hex(pat)}')
    I(f's_mov_b32 {s(reg + 1)}, {hex(pat)}')
I(f'v_mov_b32 {v(t3)}, 0xffff')
I(f'v_cndmask_b32 {v(K2M0)}, {v(t3)}, -1, {s(M1, 2)}')
I(f'v_cndmask_b32 {v(K2M1)}, 0, {v(t3)}, {s(M2, 2)}')
I(f'v_cndmask_b32 {v(K2M1)}, {v(K2M1)}, -1, {s(M3, 2)}')
I(f'v_mov_b32 {v(NEG)}, {f32(-1e9)}')
I(f's_cmp_eq_u32 {s(S_MT)}, 0')
I(f's_cselect_b32 {s(INV1)}, 0xff, 0')
I(f's_cselect_b32 {s(INV01)}, 0x1111, 0')
I(f's_cselect_b32 {s(INV02)}, 0x3333, 0')
I(f's_cselect_b32 {s(INV03)}, 0x7777, 0')
for reg in (INV1, INV01, INV02, INV03):
    I(f's_mov_b32 {s(reg + 1)}, 0')
I(f's_mov_b32 {s(SC_HI)}, 0xffff0000')
I(f's_mov_b32 {s(SC_SCALE)}, {f32(20 ** -0.5)}')
I(f's_mov_b32 {s(SC_SCALE + 1)}, {f32(20 ** -0.5)}')
I(f's_mov_b32 {s(SC_L2E)}, {f32(1.4426950408889634)}')
I(f's_mov_b32 {s(SC_L2E + 1)}, {f32(1.4426950408889634)}')
SREG = [T + 4, T + 16]
for hf_ in range(2):
    R = TASKR[hf_]
    Q, Kr, Vr = R, R + 12, R + 48
    Sx = SREG[hf_]
    hb = hf_ * 64 * RS
    for dc in range(5):
        for kg in range(3):
            c_ = '0' if dc == 0 else v(Sx + 4 * kg, 4)
            I(f'v_mfma_f32_4x4x4_16b_bf16 {v(Sx + 4 * kg, 4)}, {v(Kr + 12 * kg + 2 * dc, 2)}, {v(Q + 2 * dc, 2)}, {c_}')
            I(f'ds_read_b64_tr_b16 {v(Vr + 2 * (kg * 5 + dc), 2)}, {v(VB)} offset:{hb + kg * 8 * RS + 384 + 8 * dc}')
I(f's_mul_i32 {s(S_OB)}, {s(S_MT)}, {8 * ACT_MB}')
I(f's_add_u32 {s(S_OB)}, {s(S_OB)}, {ACT_T}')
I(f's_mul_i32 {s(S_T3)}, {s(S_IDX)}, 2560')
I(f's_add_u32 {s(S_OB)}, {s(S_OB)}, {s(S_T3)}')
I(f's_lshr_b32 {s(S_T3)}, {s(S_WAVE)}, 1')
I(f's_mul_i32 {s(S_T3)}, {s(S_T3)}, 1280')
I(f's_add_u32 {s(S_OB)}, {s(S_OB)}, {s(S_T3)}')
I(f's_add_u32 {s(S_T4)}, {s(S_OB)}, {4 * ACT_MB}')
for hf_ in range(2):
    R = TASKR[hf_]
    Q, Kr, Vr = R, R + 12, R + 48
    Sx = SREG[hf_]
    Lg = Sx + 4
    for r, M in ((1, M1), (2, M2), (3, M3)):
        I(f'v_cndmask_b32 {v(Sx + 8 + r)}, {v(Sx + r)}, {v(Sx + 8 + r)}, {s(M, 2)}')
    P = Sx
    for i in range(4):
        I(f'v_cvt_pk_bf16_f32 {v(P + i)}, {v(Lg + 2 * i)}, {v(Lg + 2 * i + 1)}')
    for i in range(4):
        I(f'v_lshlrev_b32 {v(Lg + 2 * i)}, 16, {v(P + i)}')
        I(f'v_and_b32 {v(Lg + 2 * i + 1)}, {s(SC_HI)}, {v(P + i)}')
    for i in range(4):
        I(f'v_pk_mul_f32 {v(Lg + 2 * i, 2)}, {v(Lg + 2 * i, 2)}, {s(SC_SCALE, 2)}')
    if w2rest:
        w2load(w2rest.pop(0))
    for i in range(4):
        I(f'v_cvt_pk_bf16_f32 {v(P + i)}, {v(Lg + 2 * i)}, {v(Lg + 2 * i + 1)}')
    for i in range(4):
        I(f'v_lshlrev_b32 {v(Lg + 2 * i)}, 16, {v(P + i)}')
        I(f'v_and_b32 {v(Lg + 2 * i + 1)}, {s(SC_HI)}, {v(P + i)}')
    if w2rest:
        w2load(w2rest.pop(0))
    if hf_ == 0:
        for r in range(4):
            I(f'v_cndmask_b32 {v(Lg + r)}, {v(Lg + r)}, {v(NEG)}, {s(INV1, 2)}')
        for r, M in ((1, INV01), (2, INV02), (3, INV03)):
            I(f'v_cndmask_b32 {v(Lg + 4 + r)}, {v(Lg + 4 + r)}, {v(NEG)}, {s(M, 2)}')
    mx = P
    I(f'v_max3_f32 {v(mx)}, {v(Lg)}, {v(Lg + 1)}, {v(Lg + 2)}')
    I(f'v_max3_f32 {v(mx + 1)}, {v(Lg + 3)}, {v(Lg + 4)}, {v(Lg + 5)}')
    I(f'v_max3_f32 {v(mx)}, {v(mx)}, {v(Lg + 6)}, {v(Lg + 7)}')
    I(f'v_max_f32 {v(mx)}, {v(mx)}, {v(mx + 1)}')
    I(f'v_mov_b32 {v(mx + 1)}, {v(mx)}')
    for i in range(4):
        I(f'v_pk_add_f32 {v(Lg + 2 * i, 2)}, {v(Lg + 2 * i, 2)}, {v(mx, 2)} neg_lo:[0,1] neg_hi:[0,1]')
    for i in range(4):
        I(f'v_pk_mul_f32 {v(Lg + 2 * i, 2)}, {v(Lg + 2 * i, 2)}, {s(SC_L2E, 2)}')
    if w2rest:
        w2load(w2rest.pop(0))
    for i in range(8):
        I(f'v_exp_f32 {v(Lg + i)}, {v(Lg + i)}')
    I(f'v_pk_add_f32 {v(P, 2)}, {v(Lg, 2)}, {v(Lg + 2, 2)}')
    I(f'v_pk_add_f32 {v(P + 2, 2)}, {v(Lg + 4, 2)}, {v(Lg + 6, 2)}')
    I(f'v_pk_add_f32 {v(P, 2)}, {v(P, 2)}, {v(P + 2, 2)}')
    I(f'v_add_f32 {v(P)}, {v(P)}, {v(P + 1)}')
    I(f'v_rcp_f32 {v(P)}, {v(P)}')
    if w2rest:
        w2load(w2rest.pop(0))
    I(f'v_mov_b32 {v(P + 1)}, {v(P)}')
    for i in range(4):
        I(f'v_pk_mul_f32 {v(Lg + 2 * i, 2)}, {v(Lg + 2 * i, 2)}, {v(P, 2)}')
    PB = Kr
    I(f'v_cvt_pk_bf16_f32 {v(PB + 2)}, {v(Lg)}, {v(Lg + 1)}')
    I(f'v_cvt_pk_bf16_f32 {v(PB + 3)}, {v(Lg + 2)}, {v(Lg + 3)}')
    I(f'v_cvt_pk_bf16_f32 {v(PB)}, {v(Lg + 4)}, {v(Lg + 5)}')
    I(f'v_cvt_pk_bf16_f32 {v(PB + 1)}, {v(Lg + 6)}, {v(Lg + 7)}')
    I(f'v_and_b32 {v(PB + 4)}, {v(PB)}, {v(K2M0)}')
    I(f'v_and_b32 {v(PB + 5)}, {v(PB + 1)}, {v(K2M1)}')
    I(f'v_xor_b32 {v(PB)}, {v(PB)}, {v(PB + 4)}')
    I(f'v_xor_b32 {v(PB + 1)}, {v(PB + 1)}, {v(PB + 5)}')
    O = Kr + 8
    for kg in (1, 2, 0):
        for dc in range(5):
            c_ = '0' if kg == 1 else v(O + 4 * dc, 4)
            I(f'v_mfma_f32_4x4x4_16b_bf16 {v(O + 4 * dc, 4)}, {v(Vr + 2 * (kg * 5 + dc), 2)}, {v(PB + 2 * kg, 2)}, {c_}')
while w2rest:
    w2load(w2rest.pop(0))
for hf_ in range(2):
    R = TASKR[hf_]
    O = R + 12 + 8
    for i in range(10):
        I(f'v_cvt_pk_bf16_f32 {v(R + i)}, {v(O + 2 * i)}, {v(O + 2 * i + 1)}')
lodd, ldone = k.newlabel('L_oodd'), k.newlabel('L_odone')
I(f's_bitcmp1_b32 {s(S_WAVE)}, 0')
I(f's_cbranch_scc1 {lodd}')
sto = k.state()
for hf_ in range(2):
    OP = TASKR[hf_]
    so = s(S_OB if hf_ == 0 else S_T4)
    I(f'buffer_store_dwordx4 {v(OP, 4)}, {v(VO)}, {s(SRD_WS, 4)}, {so} offen sc1')
    I(f'buffer_store_dwordx4 {v(OP + 4, 4)}, {v(VO)}, {s(SRD_WS, 4)}, {so} offen offset:256 sc1')
    I(f'buffer_store_dwordx2 {v(OP + 8, 2)}, {v(VO)}, {s(SRD_WS, 4)}, {so} offen offset:512 sc1')
I(f's_branch {ldone}')
k.set_state(sto)
k.label(lodd)
for hf_ in range(2):
    OP = TASKR[hf_]
    so = s(S_OB if hf_ == 0 else S_T4)
    I(f'buffer_store_dwordx2 {v(OP, 2)}, {v(VO)}, {s(SRD_WS, 4)}, {so} offen offset:520 sc1')
    I(f'buffer_store_dwordx4 {v(OP + 2, 4)}, {v(VO)}, {s(SRD_WS, 4)}, {so} offen offset:768 sc1')
    I(f'buffer_store_dwordx4 {v(OP + 6, 4)}, {v(VO)}, {s(SRD_WS, 4)}, {so} offen offset:1024 sc1')
k.label(ldone)
stamp(5)
publish(T)
I('s_branch L_phase2')

k.set_state(st_join)
k.label('L_ffn')
I(f's_lshl_b32 {s(S_T3)}, {s(S_WAVE)}, 9')
I(f's_add_u32 {s(S_T3)}, {s(S_T3)}, {HALO}')
I(f'v_lshl_add_u32 {v(T)}, {v(V_LANE)}, 3, {s(S_T3)}')
I(f'ds_write_b64 {v(T)}, {v(BIAS, 2)}')
I(f'v_lshrrev_b32 {v(T)}, 4, {v(V_LANE)}')
I(f'v_lshl_add_u32 {v(T)}, {v(T)}, 3, {s(S_T3)}')
for cb in range(14):
    I(f'ds_read_b64 {v(T + 8 + 2 * cb, 2)}, {v(T)} offset:{32 * cb}')
I(f's_mov_b32 {s(S_T4)}, 0xffff0000')
for cb in range(14):
    for rb in range(2):
        d = ACC + (cb * 2 + rb) * 4
        for h in range(2):
            I(f'v_lshlrev_b32 {v(d + 2 * h)}, 16, {v(T + 8 + 2 * cb + h)}')
            I(f'v_and_b32 {v(d + 2 * h + 1)}, {s(S_T4)}, {v(T + 8 + 2 * cb + h)}')
ln_wait()
stamp(2)
for ks in range(4):
    for rb in range(2):
        load_A(ks, rb)
tag_fetch()
stamp(3)
mainloop(14, False, False)
stamp(4)
w2rest = list(range(W2_INLOOP, 70))
C0 = -2.0 * 0.7978845608028654 * 1.4426950408889634
C1 = C0 * 0.044715
GC0, GONE = T, T + 2
GS1 = 36
I(f'v_mov_b32 {v(GC0)}, {f32(C0)}')
I(f'v_mov_b32 {v(GC0 + 1)}, {f32(C0)}')
I(f'v_mov_b32 {v(GONE)}, 1.0')
I(f'v_mov_b32 {v(GONE + 1)}, 1.0')
I(f's_mov_b32 {s(GS1)}, {f32(C1)}')
I(f's_mov_b32 {s(GS1 + 1)}, {f32(C1)}')
S_HB2 = 38
I(f's_mul_i32 {s(S_HB2)}, {s(S_MB0)}, {ACT_MB}')
I(f's_lshl_b32 {s(S_T3)}, {s(S_START)}, 10')
I(f's_add_u32 {s(S_HB2)}, {s(S_HB2)}, {s(S_T3)}')
I(f's_add_u32 {s(S_HB2)}, {s(S_HB2)}, {ACT_T + 20 * 1024}')
I(f's_add_u32 {s(S_HB2 + 1)}, {s(S_HB2)}, {ACT_MB}')
n = 0
for pr in range(7):
    for rb in range(2):
        tmp = T + 4 + 8 * (n % 2)
        out = T + 20 + 4 * (n % 4)
        n += 1
        xs = [ACC + ((2 * pr + c2) * 2 + rb) * 4 + 2 * h for c2 in range(2) for h in range(2)]
        for i, x in enumerate(xs):
            I(f'v_pk_mul_f32 {v(tmp + 2 * i, 2)}, {v(x, 2)}, {v(x, 2)}')
        for i, x in enumerate(xs):
            I(f'v_pk_fma_f32 {v(tmp + 2 * i, 2)}, {v(tmp + 2 * i, 2)}, {s(GS1, 2)}, {v(GC0, 2)}')
        for i, x in enumerate(xs):
            I(f'v_pk_mul_f32 {v(tmp + 2 * i, 2)}, {v(tmp + 2 * i, 2)}, {v(x, 2)}')
        if w2rest:
            w2load(w2rest.pop(0))
        for i in range(8):
            I(f'v_exp_f32 {v(tmp + i)}, {v(tmp + i)}')
        for i in range(4):
            I(f'v_pk_add_f32 {v(tmp + 2 * i, 2)}, {v(tmp + 2 * i, 2)}, {v(GONE, 2)}')
        if w2rest:
            w2load(w2rest.pop(0))
        for i in range(8):
            I(f'v_rcp_f32 {v(tmp + i)}, {v(tmp + i)}')
        for i, x in enumerate(xs):
            I(f'v_pk_mul_f32 {v(tmp + 2 * i, 2)}, {v(tmp + 2 * i, 2)}, {v(x, 2)}')
        for i in range(4):
            I(f'v_cvt_pk_bf16_f32 {v(out + i)}, {v(tmp + 2 * i)}, {v(tmp + 2 * i + 1)}')
        I(f'buffer_store_dwordx4 {v(out, 4)}, {v(V_L16 if pr < 4 else V_L16B)}, {s(SRD_WS, 4)}, {s(S_HB2 + rb)} offen offset:{(pr & 3) * 1024} sc1')
assert not w2rest
stamp(5)
publish(T)

k.label('L_phase2')
k.vmq = [(set(), 'unknown')]
k.lgq = []
I('s_nop 4')
stamp(6)
YACC = 16
SACC = 96
HW = 116
HWN = 5
XIN = 196
B2V = 206
T2 = 216
S_HO = 32
S_OBASE, S_WOB, S_WOM, S_OOK, S_HI, S_NL2E = 36, 37, 38, 39, 40, 41
I(f's_mul_i32 {s(S_OBASE)}, {s(S_M2)}, {4 * ACT_MB}')
I(f's_add_u32 {s(S_OBASE)}, {s(S_OBASE)}, {ACT_T}')
I(f's_mul_i32 {s(S_T3)}, {s(S_WAVE)}, 14')
I(f's_min_u32 {s(S_T3)}, {s(S_T3)}, 41')
I(f's_add_u32 {s(S_T3)}, {s(S_T3)}, 20')
I(f's_lshl_b32 {s(S_T3)}, {s(S_T3)}, 10')
I(f's_add_u32 {s(S_HO)}, {s(S_OBASE)}, {s(S_T3)}')
for mb in range(1, 4):
    I(f's_add_u32 {s(S_HO + mb)}, {s(S_HO)}, {mb * ACT_MB}')
poll(V_PF, 'ffn', preissued=True)
stamp(7)


def hload(st, mb):
    if st == 13:
        I(f's_add_u32 {s(S_HO + mb)}, {s(S_HO + mb)}, {s(S_LAST)}')
    I(f'buffer_load_dwordx4 {v(HW + 16 * (st % HWN) + 4 * mb, 4)}, {v(V_L16)}, {s(SRD_WS, 4)}, {s(S_HO + mb)} offen offset:{(st & 3) * 1024} sc1')
    if st & 3 == 3:
        I(f's_add_u32 {s(S_HO + mb)}, {s(S_HO + mb)}, 4096')


for st in range(HWN):
    for mb in range(4):
        hload(st, mb)
I(f's_mul_i32 {s(S_T3)}, {s(S_WAVE)}, {ACT_MB}')
I(f's_add_u32 {s(S_OBASE)}, {s(S_OBASE)}, {s(S_T3)}')
I(f's_mul_i32 {s(S_WOB)}, {s(S_WAVE)}, {5 * 40960}')
I(f's_mul_i32 {s(S_T3)}, {s(S_NT)}, 5120')
I(f's_add_u32 {s(S_WOB)}, {s(S_WOB)}, {s(S_T3)}')
I(f's_add_u32 {s(S_WOB)}, {s(S_WOB)}, {W_T}')
I(f's_mul_i32 {s(S_WOM)}, {s(S_WAVE)}, {25 * 1024}')
I(f's_mov_b32 {s(S_HI)}, 0xffff0000')
I(f's_mov_b32 {s(S_NL2E)}, {f32(-1.4426950408889634)}')
VXO, VB2, VPA2, VRED, VRED2, VWO2 = T2, T2 + 1, T2 + 2, T2 + 3, T2 + 4, T2 + 5
I(f'v_and_b32 {v(VB2)}, 15, {v(V_LANE)}')
I(f's_lshl_b32 {s(S_T3)}, {s(S_M2)}, 6')
I(f's_lshl_b32 {s(S_T4)}, {s(S_WAVE)}, 4')
I(f's_add_u32 {s(S_T3)}, {s(S_T3)}, {s(S_T4)}')
I(f'v_add_u32 {v(VB2)}, {s(S_T3)}, {v(VB2)}')
I(f'v_mul_u32_u24 {v(VXO)}, 1280, {v(VB2)}')
I(f'v_lshrrev_b32 {v(VB2)}, 4, {v(V_LANE)}')
I(f's_mul_i32 {s(S_T3)}, {s(S_NT)}, 160')
I(f'v_lshl_add_u32 {v(VB2)}, {v(VB2)}, 3, {s(S_T3)}')
I(f'v_add_u32 {v(VXO)}, {v(VXO)}, {v(VB2)}')
I(f'v_subrev_u32 {v(VPA2)}, 32, {v(V_PF)}')
I(f'v_add_u32 {v(VRED)}, {LDS_RED}, {v(V_L16)}')
I(f's_mul_i32 {s(S_T3)}, {s(S_WAVE)}, {15 * 1024}')
I(f'v_add_u32 {v(VRED2)}, {s(S_T3)}, {v(VRED)}')
I(f'v_add_u32 {v(VWO2)}, 65536, {v(V_L16)}')


def wodma(f):
    i, nb = divmod(f, 5)
    if nb == 0 or nb == 4:
        I(f's_add_u32 m0, {s(S_WOM)}, {LDS_WO + (i * 5 + (4 if nb == 4 else 0)) * 1024}')
    I(f'buffer_load_dwordx4 {v(V_L16 if nb < 4 else V_L16B)}, {s(SRD_WS, 4)}, {s(S_WOB)} offen offset:{(nb & 3) * 1024} sc1 lds')
    if nb == 4:
        I(f's_add_u32 {s(S_WOB)}, {s(S_WOB)}, 40960')


def oreg(ks):
    return a(4 * W2ORDER[ks], 4)


def oloads():
    for ks in range(20):
        if ks % 8 == 0 and ks:
            I(f's_add_u32 {s(S_OBASE)}, {s(S_OBASE)}, 8192')
        I(f'buffer_load_dwordx4 {oreg(ks)}, {v(V_L16 if (ks & 7) < 4 else V_L16B)}, {s(SRD_WS, 4)}, {s(S_OBASE)} offen offset:{(ks & 3) * 1024} sc1')


aux2 = [[] for _ in range(14)]
for st in range(14 - HWN):
    pass
extra = [lambda f=f: wodma(f) for f in range(25)]
for nb in range(5):
    extra.append(lambda nb=nb: I(f'buffer_load_dwordx2 {v(XIN + 2 * nb, 2)}, {v(VXO)}, {s(SRD_X, 4)}, 0 offen offset:{32 * nb}'))
    extra.append(lambda nb=nb: I(f'buffer_load_dwordx2 {v(B2V + 2 * nb, 2)}, {v(VB2)}, {s(SRD_B2, 4)}, 0 offen offset:{32 * nb}'))
for st in range(14):
    if st == 12:
        k.wait_all(vm=True, lg=False)
        chk_eval()
        I(f's_mov_b32 {s(S_OOK)}, 0')
        lab = k.newlabel('L_noo')
        I(f's_cbranch_vccnz {lab}')
        I(f's_mov_b32 {s(S_OOK)}, 1')
        oloads()
        k.vmq = []
        k.label(lab)
    for mb in range(4):
        for nb in range(5):
            d = YACC + (mb * 5 + nb) * 4
            c_ = '0' if st == 0 else v(d, 4)
            I(f'v_mfma_f32_16x16x32_bf16 {v(d, 4)}, {w2reg(st, nb)}, {v(HW + 16 * (st % HWN) + 4 * mb, 4)}, {c_}')
            if nb == 2 and extra and st < 9:
                extra.pop(0)()
        if st + HWN < 14:
            hload(st + HWN, mb)
    if st == 9:
        assert not extra
        chk_issue(VPA2)
stamp(8)
labs = [k.newlabel('L_red') for _ in range(4)]
lend = k.newlabel('L_redend')
stw = k.state()
YOWN = HW
for w in range(4):
    k.set_state(stw)
    if w:
        k.label(labs[w])
    if w < 3:
        I(f's_cmp_eq_u32 {s(S_WAVE)}, {w}')
        I(f's_cbranch_scc0 {labs[w + 1]}')
    I('s_nop 7')
    r = 0
    for i in range(1, 4):
        mb = (w + i) & 3
        for nb in range(5):
            I(f'ds_write_b128 {v(VRED)}, {v(YACC + (mb * 5 + nb) * 4, 4)} offset:{((mb * 3 + i - 1) * 5 + nb) * 1024}')
            for _ in range(2):
                if r < 20:
                    I(f'v_mov_b32 {v(YOWN + r)}, {v(YACC + w * 20 + r)}')
                    r += 1
    if w < 3:
        I(f's_branch {lend}')
k.label(lend)
k.wait_all(vm=False, lg=True)
I('s_barrier')
YT = HW + 20
for i in range(3):
    for nb in range(5):
        I(f'ds_read_b128 {v(YT + 20 * i + 4 * nb, 4)}, {v(VRED2)} offset:{(i * 5 + nb) * 1024}')
for i in range(3):
    for r in range(10):
        I(f'v_pk_add_f32 {v(YOWN + 2 * r, 2)}, {v(YOWN + 2 * r, 2)}, {v(YT + 20 * i + 2 * r, 2)}')
WOW = YACC
LA2 = 12


def woread(n):
    off = LDS_WO + n * 1024
    if off < 65536:
        I(f'ds_read_b128 {v(WOW + 4 * (n % 16), 4)}, {v(V_L16)} offset:{off}')
    else:
        I(f'ds_read_b128 {v(WOW + 4 * (n % 16), 4)}, {v(VWO2)} offset:{off - 65536}')


for n in range(LA2):
    woread(n)
G1 = YT
for half in range(2):
    rr = range(5 * half, 5 * half + 5)
    seq = [
        lambda y, p, r: f'v_cvt_pk_bf16_f32 {v(p)}, {v(y)}, {v(y + 1)}',
        lambda y, p, r: f'v_lshlrev_b32 {v(y)}, 16, {v(p)}',
        lambda y, p, r: f'v_and_b32 {v(y + 1)}, {s(S_HI)}, {v(p)}',
        lambda y, p, r: f'v_lshlrev_b32 {v(p)}, 16, {v(B2V + r)}',
        lambda y, p, r: f'v_and_b32 {v(p + 1)}, {s(S_HI)}, {v(B2V + r)}',
        lambda y, p, r: f'v_pk_add_f32 {v(y, 2)}, {v(y, 2)}, {v(p, 2)}',
        lambda y, p, r: f'v_cvt_pk_bf16_f32 {v(p)}, {v(y)}, {v(y + 1)}',
        lambda y, p, r: f'v_lshlrev_b32 {v(y)}, 16, {v(p)}',
        lambda y, p, r: f'v_and_b32 {v(y + 1)}, {s(S_HI)}, {v(p)}',
        lambda y, p, r: f'v_mul_f32 {v(p)}, {s(S_NL2E)}, {v(y)}',
        lambda y, p, r: f'v_mul_f32 {v(p + 1)}, {s(S_NL2E)}, {v(y + 1)}',
        lambda y, p, r: f'v_exp_f32 {v(p)}, {v(p)}',
        lambda y, p, r: f'v_exp_f32 {v(p + 1)}, {v(p + 1)}',
        lambda y, p, r: f'v_add_f32 {v(p)}, 1.0, {v(p)}',
        lambda y, p, r: f'v_add_f32 {v(p + 1)}, 1.0, {v(p + 1)}',
        lambda y, p, r: f'v_rcp_f32 {v(p)}, {v(p)}',
        lambda y, p, r: f'v_rcp_f32 {v(p + 1)}, {v(p + 1)}',
        lambda y, p, r: f'v_pk_mul_f32 {v(y, 2)}, {v(y, 2)}, {v(p, 2)}',
        lambda y, p, r: f'v_cvt_pk_bf16_f32 {v(p)}, {v(y)}, {v(y + 1)}',
        lambda y, p, r: f'v_lshlrev_b32 {v(y)}, 16, {v(p)}',
        lambda y, p, r: f'v_and_b32 {v(y + 1)}, {s(S_HI)}, {v(p)}',
    ]
    for fn in seq:
        for r in rr:
            I(fn(YOWN + 2 * r, G1 + 2 * r, r))
for r in range(10):
    I(f'v_lshlrev_b32 {v(G1 + 2 * r)}, 16, {v(XIN + r)}')
    I(f'v_and_b32 {v(G1 + 2 * r + 1)}, {s(S_HI)}, {v(XIN + r)}')
lab = k.newlabel('L_haveo')
I(f's_cmp_eq_u32 {s(S_OOK)}, 1')
I(f's_cbranch_scc1 {lab}')
poll(VPA2, 'att')
oloads()
k.label(lab)
stamp(1, 3)
for n in range(100):
    ks, nb = divmod(n, 5)
    d = SACC + 4 * nb
    c_ = '0' if ks == 0 else v(d, 4)
    if n % 2 == 0:
        k._need(regs_of(v(WOW + 4 * (n % 16), 8)))
    I(f'v_mfma_f32_16x16x32_bf16 {v(d, 4)}, {v(WOW + 4 * (n % 16), 4)}, {oreg(ks)}, {c_}')
    if n + LA2 < 100:
        woread(n + LA2)
PT = YT + 20
seq = [
    lambda sx, y, p, r: f'v_cvt_pk_bf16_f32 {v(p)}, {v(sx)}, {v(sx + 1)}',
    lambda sx, y, p, r: f'v_lshlrev_b32 {v(sx)}, 16, {v(p)}',
    lambda sx, y, p, r: f'v_and_b32 {v(sx + 1)}, {s(S_HI)}, {v(p)}',
    lambda sx, y, p, r: f'v_pk_mul_f32 {v(sx, 2)}, {v(sx, 2)}, {v(y, 2)}',
    lambda sx, y, p, r: f'v_cvt_pk_bf16_f32 {v(p)}, {v(sx)}, {v(sx + 1)}',
    lambda sx, y, p, r: f'v_lshlrev_b32 {v(sx)}, 16, {v(p)}',
    lambda sx, y, p, r: f'v_and_b32 {v(sx + 1)}, {s(S_HI)}, {v(p)}',
    lambda sx, y, p, r: f'v_pk_add_f32 {v(sx, 2)}, {v(sx, 2)}, {v(G1 + 2 * r, 2)}',
    lambda sx, y, p, r: f'v_cvt_pk_bf16_f32 {v(XIN + r)}, {v(sx)}, {v(sx + 1)}',
]
for nb in range(5):
    for fn in seq:
        for r in (2 * nb, 2 * nb + 1):
            I(fn(SACC + 2 * r, YOWN + 2 * r, PT + r, r))
    I(f'buffer_store_dwordx2 {v(XIN + 2 * nb, 2)}, {v(VXO)}, {s(SRD_OUT, 4)}, 0 offen offset:{32 * nb}')
if STAMPS:
    stamp(9, -1)
    k.wait_all()
    I(f's_lshl_b32 {s(S_T3)}, {s(S_WG)}, 8')
    I(f's_lshl_b32 {s(S_T4)}, {s(S_WAVE)}, 6')
    I(f's_add_u32 {s(S_T3)}, {s(S_T3)}, {s(S_T4)}')
    I(f's_add_u32 {s(S_T3)}, {s(S_T3)}, {STAMP_OFF}')
    I(f'v_mov_b32 {v(T2)}, 0')
    I('s_mov_b64 exec, 1')
    for i in range(10):
        I(f'v_mov_b32 {v(T2 + 1)}, {s(S_STAMP + 2 * i)}')
        I(f'buffer_store_dword {v(T2 + 1)}, {v(T2)}, {s(SRD_WS, 4)}, {s(S_T3)} offen offset:{4 * i}')
    I(f'v_mov_b32 {v(T2 + 1)}, {s(S_OOK)}')
    I(f'buffer_store_dword {v(T2 + 1)}, {v(T2)}, {s(SRD_WS, 4)}, {s(S_T3)} offen offset:56')
    I(f'v_mov_b32 {v(T2 + 1)}, {s(S_TYPE)}')
    I(f'buffer_store_dword {v(T2 + 1)}, {v(T2)}, {s(SRD_WS, 4)}, {s(S_T3)} offen offset:60')
if '--dbg' in sys.argv:
    for i in range(10):
        I(f's_sub_u32 {s(S_T4)}, {s(S_STAMP + 2 * i)}, {s(S_TAG)}')
        I(f's_add_u32 {s(S_T4)}, {s(S_T4)}, 1000')
        I(f'v_mov_b32 {v(T2 + 1)}, {s(S_T4)}')
        I(f'buffer_atomic_umax {v(T2 + 1)}, {v(T2)}, {s(SRD_DBG, 4)}, 0 offen offset:{4 + 4 * i} sc1')
if '--padx' in sys.argv:
    for i in range(2048):
        I(f'v_add3_u32 {v(16 + i % 8)}, {v(16 + i % 8)}, v2, v3')
if '--pady' in sys.argv:
    I(f's_mov_b32 {s(S_T3)}, 0')
    k.label('L_pady')
    for i in range(64):
        I(f'v_add3_u32 {v(16 + i % 8)}, {v(16 + i % 8)}, v2, v3')
    I(f's_add_u32 {s(S_T3)}, {s(S_T3)}, 1')
    I(f's_cmp_lt_u32 {s(S_T3)}, 32')
    I('s_cbranch_scc1 L_pady')
k.label('L_end')
I('s_endpgm')

hdr = open('recurrent_scan__sliding_local_dilated__dense_activation_gelu__prompt.s.ref').read().split('\n')
head = [l for l in hdr if l.startswith(';') and '@launch' not in l and 'Override' not in l and 'grid=ceil' not in l]
print('\n'.join(head))
print(f'; @launch grid=(256,1,1) block=(256,1,1) lds={LDS_TOTAL}')
print(f'''.amdgcn_target "amdgcn-amd-amdhsa--gfx950"
.text
.globl {KNAME}
.p2align 8
.type {KNAME},@function
{KNAME}:''')
print(k.text())
print(f'''.section .rodata,"a"
.p2align 6
.amdhsa_kernel {KNAME}
  .amdhsa_next_free_vgpr 512
  .amdhsa_next_free_sgpr 102
  .amdhsa_accum_offset 256
  .amdhsa_group_segment_fixed_size 0
  .amdhsa_kernarg_size 88
  .amdhsa_user_sgpr_count 2
  .amdhsa_user_sgpr_kernarg_segment_ptr 1
  .amdhsa_system_sgpr_workgroup_id_x 1
  .amdhsa_float_denorm_mode_32 3
.end_amdhsa_kernel''')
```

```python
import sys, struct
from asmlib import *

KNAME = 'recurrent_scan__sliding_local_dilated__dense_activation_gelu__prompt_kernel'
STAMPS = '--stamps' in sys.argv


def opt(name, default):
    for x in sys.argv:
        if x.startswith(f'--{name}='):
            return int(x.split('=')[1])
    return default


SMODE = opt('smode', 0)

XN_T = 0
ACT_T = 128 * 20 * 1024
ACT_MB = 74 * 1024
W_T = ACT_T + 128 * ACT_MB
LNF = W_T + 74 * 40 * 1024
P1F = LNF + 16 * 128
WTF = P1F + 16 * 128
WS_USED = WTF + 1024
STAMP_OFF = WS_USED
WS_REC = WS_USED + (256 * 4 * 64 if STAMPS else 0)
OOB = 0x40000000

RROW = 1056
SLOT = 16 * RROW
NSLOT = 8
HALO = NSLOT * SLOT
CNT = HALO + 20 * 1024
RS = 592
LDS_WO = 0
LDS_RED = 100 * 1024
LDS_TOTAL = 163840


def f32(x):
    return '0x%08x' % struct.unpack('<I', struct.pack('<f', x))[0]


S_WG, S_FOFF = 2, 3
SRD_X, SRD_B, SRD_WS, SRD_DBG, SRD_OUT, SRD_RT, SRD_B1, SRD_B2 = 4, 8, 12, 16, 20, 24, 28, 56
P_X, P_WQKV, P_WO, P_BX, P_W1, P_B1, P_W2, P_B2, P_OUT, P_DBG, P_WS = 32, 34, 36, 38, 40, 42, 44, 46, 48, 50, 52
S_WAVE, S_MT, S_TYPE, S_IDX, S_FB, S_PITCH, S_KSTR, S_START = 60, 61, 62, 63, 64, 65, 66, 67
S_T0, S_T1, S_T2, S_T3, S_T4, S_T5 = 68, 69, 70, 71, 72, 73
S_M0B, S_SOFF, S_M2, S_NT, S_SPIN, S_TAG = 74, 75, 76, 77, 78, 79
S_STAMP = 80
S_W2B, S_LAST = 100, 101
S_HB, S_MB0 = 32, 33
S_AO = 36

V_LANE = 1
V_DMA = 2
V_TR0, V_TR1 = 6, 7
V_TRH0, V_TRH1 = 8, 9
V_L16 = 10
V_L16B = 11
V_PA = 12
V_POLL = 13
V_X = 14
V_PF = 15
ACC = 16
HACC = 136
WIN = 148
HX = 180
T = 188
BIAS = 226
W2V = 228
P4 = 252

k = K()
I = k.I


def stamp(idx, mode=0):
    if STAMPS and (mode == SMODE or mode == -1):
        I(f'{"s_memtime" if "--cyc" in sys.argv else "s_memrealtime"} {s(S_STAMP + 2 * idx, 2)}')


def srd(base, plo, nbytes):
    I(f's_mov_b32 {s(base)}, {s(plo)}')
    I(f's_mov_b32 {s(base + 1)}, {s(plo + 1)}')
    I(f's_mov_b32 {s(base + 2)}, {nbytes}')
    I(f's_mov_b32 {s(base + 3)}, 0x00020000')


def csel(dst, x, y):
    I(f's_mov_b32 {s(dst)}, {y}')
    I(f's_cselect_b32 {s(dst)}, {x}, {s(dst)}')


def chk_issue(addrv, n=1):
    if n == 1:
        I(f'buffer_load_dword {v(V_POLL)}, {v(addrv)}, {s(SRD_WS, 4)}, 0 offen sc1')
    else:
        I(f'buffer_load_dwordx4 {v(P4, 4)}, {v(addrv)}, {s(SRD_WS, 4)}, 0 offen sc1')


def chk_eval(n=1):
    if n == 1:
        I(f'v_cmp_ne_u32 vcc, {s(S_TAG)}, {v(V_POLL)}')
    else:
        for i in range(4):
            I(f'v_xor_b32 {v(P4 + i)}, {s(S_TAG)}, {v(P4 + i)}')
        I(f'v_or3_b32 {v(P4)}, {v(P4)}, {v(P4 + 1)}, {v(P4 + 2)}')
        I(f'v_or_b32 {v(P4)}, {v(P4)}, {v(P4 + 3)}')
        I(f'v_cmp_ne_u32 vcc, 0, {v(P4)}')


def poll(addrv, name, n=1, preissued=False):
    lab = k.newlabel('L_poll_' + name)
    done = k.newlabel('L_polled_' + name)
    if not preissued:
        chk_issue(addrv, n)
    chk_eval(n)
    I(f's_mov_b32 {s(S_SPIN)}, 0')
    I(f's_cbranch_vccz {done}')
    st = k.state()
    k.label(lab)
    I('s_sleep 1')
    chk_issue(addrv, n)
    k.wait_all(vm=True, lg=False)
    chk_eval(n)
    I(f's_add_u32 {s(S_SPIN)}, {s(S_SPIN)}, 1')
    I(f's_cbranch_vccz {done}')
    I(f's_cmp_lt_u32 {s(S_SPIN)}, 0x40000')
    I(f's_cbranch_scc1 {lab}')
    k.label(done)
    k.set_state(st)


def flag_store(base, offs, t0):
    I(f'v_mov_b32 {v(t0)}, {s(S_TAG)}')
    I(f'v_mov_b32 {v(t0 + 1)}, {base}')
    I('s_mov_b64 exec, 1')
    I(f'buffer_store_dword {v(t0)}, {v(t0 + 1)}, {s(SRD_WS, 4)}, {s(offs)} offen sc1')
    I('s_mov_b64 exec, -1')
    k.vmq.pop()


def dma1(j, soff_reg, tag):
    I(f'buffer_load_dwordx4 {v(V_DMA + j)}, {s(SRD_B, 4)}, {s(soff_reg)} offen offset:{j * RROW} lds', tag=tag)


def bf16r(dst, src):
    I(f'v_cvt_pk_bf16_f32 {v(dst)}, {v(src)}, {v(src)}')
    I(f'v_lshlrev_b32 {v(dst)}, 16, {v(dst)}')


def row_sum(r, t1):
    for sh in (4, 8):
        I(f'v_add_f32_dpp {v(r)}, {v(r)}, {v(r)} row_ror:{sh} row_mask:0xf bank_mask:0xf')
    for op in ('v_permlane16_swap_b32', 'v_permlane32_swap_b32'):
        I(f'v_mov_b32 {v(t1)}, {v(r)}')
        I(f'{op} {v(r)}, {v(t1)}')
        I(f'v_add_f32 {v(r)}, {v(r)}, {v(t1)}')


I(f's_cmp_ge_u32 {s(S_WG)}, 256')
I('s_cbranch_scc1 L_end')
I(f's_load_dwordx16 {s(32, 16)}, s[0:1], 0')
I(f's_load_dwordx4 {s(48, 4)}, s[0:1], 64')
I(f's_load_dwordx2 {s(52, 2)}, s[0:1], 80')
stamp(0, -1)
I(f'v_lshrrev_b32 {v(T)}, 6, v0')
I(f'v_and_b32 {v(V_LANE)}, 63, v0')
I(f'v_readfirstlane_b32 {s(S_WAVE)}, {v(T)}')
if '--nocpf' not in sys.argv:
    I(f's_getpc_b64 {s(S_T4, 2)}')
    k.label('L_pc')
    I(f's_lshr_b32 {s(S_T0)}, {s(S_WG)}, 3')
    I(f's_and_b32 {s(S_T0)}, {s(S_T0)}, 3')
    I(f's_lshl_b32 {s(S_T0)}, {s(S_T0)}, 15')
    I(f'v_lshl_add_u32 {v(T + 1)}, v0, 7, {s(S_T0)}')
    I(f'v_min_u32 {v(T + 1)}, L_end-L_pc, {v(T + 1)}')
    I(f'global_load_dword {v(P4)}, {v(T + 1)}, {s(S_T4, 2)}')
    k.vmq.pop()
I(f'v_mov_b32 {v(T + 2)}, 0')
I(f'v_mov_b32 {v(T + 3)}, 0')
I(f'v_mov_b32 {v(T + 1)}, {CNT}')
I(f'ds_write_b64 {v(T + 1)}, {v(T + 2, 2)}')
I(f's_and_b32 {s(S_T0)}, {s(S_WG)}, 7')
I(f's_lshr_b32 {s(S_T1)}, {s(S_WG)}, 3')
I(f's_and_b32 {s(S_MT)}, {s(S_T0)}, 1')
I(f's_lshl_b32 {s(S_MT)}, {s(S_MT)}, 3')
I(f's_and_b32 {s(S_T2)}, {s(S_T1)}, 7')
I(f's_add_u32 {s(S_MT)}, {s(S_MT)}, {s(S_T2)}')
I(f's_lshr_b32 {s(S_T2)}, {s(S_T1)}, 3')
I(f's_and_b32 {s(S_TYPE)}, {s(S_T2)}, 1')
I(f's_lshr_b32 {s(S_T2)}, {s(S_T2)}, 1')
I(f's_and_b32 {s(S_IDX)}, {s(S_T0)}, 6')
I(f's_add_u32 {s(S_IDX)}, {s(S_IDX)}, {s(S_T2)}')
I(f's_lshl_b32 {s(S_FB)}, {s(S_MT)}, 4')
I(f's_lshl_b32 {s(S_T2)}, {s(S_TYPE)}, 3')
I(f's_add_u32 {s(S_FB)}, {s(S_FB)}, {s(S_T2)}')
I(f's_add_u32 {s(S_FB)}, {s(S_FB)}, {s(S_IDX)}')
I(f's_lshl_b32 {s(S_FOFF)}, {s(S_MT)}, 7')
I(f's_and_b32 {s(S_T2)}, {s(S_FB)}, 15')
I(f's_lshl_b32 {s(S_T2)}, {s(S_T2)}, 2')
I(f's_add_u32 {s(S_FOFF)}, {s(S_FOFF)}, {s(S_T2)}')
I(f's_lshl_b32 {s(S_M2)}, {s(S_T0)}, 2')
I(f's_and_b32 {s(S_T2)}, {s(S_T1)}, 3')
I(f's_add_u32 {s(S_M2)}, {s(S_M2)}, {s(S_T2)}')
I(f's_lshr_b32 {s(S_NT)}, {s(S_T1)}, 2')
I(f's_mul_i32 {s(S_START)}, {s(S_IDX)}, 7')
I(f's_min_u32 {s(S_START)}, {s(S_START)}, 47')
I(f's_cmp_eq_u32 {s(S_TYPE)}, 0')
csel(S_PITCH, 3840, 3456)
I(f's_lshl_b32 {s(S_KSTR)}, {s(S_PITCH)}, 5')
I(f'v_lshlrev_b32 {v(V_L16)}, 4, {v(V_LANE)}')
I(f'v_add_u32 {v(V_L16B)}, 4096, {v(V_L16)}')
I(f's_lshl_b32 {s(S_T0)}, {s(S_WG)}, 1')
I(f's_and_b32 {s(S_T1)}, {s(S_WAVE)}, 1')
I(f's_add_u32 {s(S_T0)}, {s(S_T0)}, {s(S_T1)}')
I(f's_mul_i32 {s(S_T1)}, {s(S_T0)}, 13108')
I(f's_lshr_b32 {s(S_T1)}, {s(S_T1)}, 16')
I(f's_mul_i32 {s(S_T2)}, {s(S_T1)}, 5')
I(f's_sub_u32 {s(S_T2)}, {s(S_T0)}, {s(S_T2)}')
assert all((u * 13108) >> 16 == u // 5 for u in range(512))
LR, LP, LXA = T + 4, T + 5, T + 6
I(f'v_and_b32 {v(LR)}, 3, {v(V_LANE)}')
I(f'v_lshrrev_b32 {v(LP)}, 2, {v(V_LANE)}')
I(f's_lshl_b32 {s(S_T3)}, {s(S_FB)}, 3')
I(f's_lshl_b32 {s(S_T4)}, {s(S_WAVE)}, 2')
I(f's_add_u32 {s(S_T3)}, {s(S_T3)}, {s(S_T4)}')
I(f'v_add_u32 {v(LR)}, {s(S_T3)}, {v(LR)}')
I(f'v_mul_u32_u24 {v(LXA)}, 1280, {v(LR)}')
I(f'v_lshl_add_u32 {v(LXA)}, {v(LP)}, 4, {v(LXA)}')
I(f'v_lshlrev_b32 {v(T + 7)}, 3, {v(V_LANE)}')
I(f's_lshl_b32 {s(S_T5)}, {s(S_START)}, 6')
k.wait_all(vm=False, lg=True)
stamp(1, 2)
srd(SRD_X, P_X, 2048 * 1280)
srd(SRD_DBG, P_DBG, 256)
srd(SRD_B1, P_B1, 1728 * 2)
XR = T + 8
TAGV = T + 36
I(f's_cmp_ge_u32 {s(S_WAVE)}, 2')
I('s_cbranch_scc1 L_noxl')
for i in range(5):
    I(f'buffer_load_dwordx4 {v(XR + 4 * i, 4)}, {v(LXA)}, {s(SRD_X, 4)}, 0 offen offset:{256 * i}', tag='x')
I(f'buffer_load_dword {v(TAGV)}, {v(T + 2)}, {s(SRD_DBG, 4)}, 0 offen sc1')
k.label('L_noxl')
I(f'buffer_load_dwordx2 {v(BIAS, 2)}, {v(T + 7)}, {s(SRD_B1, 4)}, {s(S_T5)} offen')
srd(SRD_WS, P_WS, WS_REC)
srd(SRD_OUT, P_OUT, 2048 * 1280)
srd(SRD_B2, P_B2, 640 * 2)
I(f's_cmp_eq_u32 {s(S_TYPE)}, 0')
I(f's_cselect_b32 {s(SRD_B)}, {s(P_WQKV)}, {s(P_W1)}')
I(f's_cselect_b32 {s(SRD_B + 1)}, {s(P_WQKV + 1)}, {s(P_W1 + 1)}')
csel(SRD_B + 2, 640 * 3840, 640 * 3456)
I(f's_mov_b32 {s(SRD_B + 3)}, 0x00020000')
I(f's_cmp_lt_u32 {s(S_T1)}, 20')
I(f's_cselect_b32 {s(SRD_RT)}, {s(P_WO)}, {s(P_W2)}')
I(f's_cselect_b32 {s(SRD_RT + 1)}, {s(P_WO + 1)}, {s(P_W2 + 1)}')
csel(SRD_RT + 2, 640 * 1280, 1728 * 1280)
I(f's_mov_b32 {s(SRD_RT + 3)}, 0x00020000')
I(f's_cmp_lt_u32 {s(S_WG)}, 8')
I('s_cbranch_scc0 L_notag')
I(f's_cmp_eq_u32 {s(S_WAVE)}, 2')
I('s_cbranch_scc0 L_notag')
stt = k.state()
I(f's_memrealtime {s(S_T4, 2)}')
I(f's_or_b32 {s(S_T4)}, {s(S_T4)}, 1')
I(f'v_mov_b32 {v(T + 2)}, {s(S_T4)}')
I('s_mov_b64 exec, 1')
I(f'buffer_atomic_cmpswap {v(T + 2, 2)}, {v(T + 3)}, {s(SRD_DBG, 4)}, 0 offen sc1')
I('s_mov_b64 exec, -1')
k.set_state(stt)
k.label('L_notag')


c, hf, sg = T, T + 1, T + 2
I(f'v_and_b32 {v(c)}, 31, {v(V_LANE)}')
I(f'v_lshrrev_b32 {v(hf)}, 5, {v(V_LANE)}')
S_CB = 34
I(f's_cmp_eq_u32 {s(S_TYPE)}, 0')
I(f's_cselect_b32 {s(S_T3)}, 29, 27')
I(f's_cselect_b32 {s(S_T4)}, 1120, 0')
I(f's_mul_i32 {s(S_CB)}, {s(S_IDX)}, 160')
I(f's_lshl_b32 {s(S_T5)}, {s(S_START)}, 6')
I(f's_cmp_eq_u32 {s(S_TYPE)}, 0')
I(f's_cselect_b32 {s(S_CB)}, {s(S_CB)}, {s(S_T5)}')
I(f'v_min_u32 {v(c)}, {s(S_T3)}, {v(c)}')
I(f'v_mul_u32_u24 {v(sg)}, 205, {v(c)}')
I(f'v_lshrrev_b32 {v(sg)}, 11, {v(sg)}')
I(f'v_mul_u32_u24 {v(sg)}, {s(S_T4)}, {v(sg)}')
I(f'v_lshl_add_u32 {v(sg)}, {v(c)}, 4, {v(sg)}')
I(f'v_add_u32 {v(sg)}, {s(S_CB)}, {v(sg)}')
I(f's_lshl_b32 {s(S_T3)}, {s(S_PITCH)}, 2')
I(f'v_mad_u32_u24 {v(V_DMA)}, {v(hf)}, {s(S_T3)}, {v(sg)}')
I(f's_sub_u32 {s(S_T3)}, {s(S_PITCH)}, {RROW}')
for j in range(1, 4):
    I(f'v_add_u32 {v(V_DMA + j)}, {s(S_T3)}, {v(V_DMA + j - 1)}')
assert all((c_ * 205) >> 11 == c_ // 10 for c_ in range(32))
NPRE = 4
I(f's_mul_i32 {s(S_M0B)}, {s(S_WAVE)}, {4 * RROW}')
I(f's_lshl_b32 {s(S_T3)}, {s(S_PITCH)}, 3')
I(f's_mul_i32 {s(S_SOFF)}, {s(S_WAVE)}, {s(S_T3)}')
I(f's_mul_i32 {s(S_T3)}, {s(S_KSTR)}, {NPRE}')
I(f's_add_u32 {s(S_SOFF)}, {s(S_SOFF)}, {s(S_T3)}')
I(f'v_mul_u32_u24 {v(V_TR0)}, {RROW}, {v(LP)}')
I(f'v_and_b32 {v(T)}, 3, {v(V_LANE)}')
I(f'v_lshl_add_u32 {v(V_TR0)}, {v(T)}, 3, {v(V_TR0)}')
I(f'v_add_u32 {v(V_TR1)}, {4 * SLOT}, {v(V_TR0)}')
I(f's_mul_i32 {s(S_HB)}, {s(S_WAVE)}, 3')
I(f's_min_u32 {s(S_HB)}, {s(S_HB)}, 7')
I(f's_add_u32 {s(S_HB)}, {s(S_HB)}, 5')
I(f's_lshl_b32 {s(S_T3)}, {s(S_HB)}, 5')
I(f'v_add_u32 {v(V_TRH0)}, {s(S_T3)}, {v(V_TR0)}')
I(f'v_add_u32 {v(V_TRH1)}, {s(S_T3)}, {v(V_TR1)}')
I(f'v_add_u32 {v(V_X)}, {HALO}, {v(V_L16)}')
I(f's_lshl_b32 {s(S_MB0)}, {s(S_MT)}, 3')
I(f's_lshl_b32 {s(S_T3)}, {s(S_WAVE)}, 1')
I(f's_add_u32 {s(S_MB0)}, {s(S_MB0)}, {s(S_T3)}')
I(f's_mul_i32 {s(S_AO)}, {s(S_MB0)}, 20480')
for q in range(1, 10):
    I(f's_add_u32 {s(S_AO + q)}, {s(S_AO)}, {XN_T + 4096 * q}')
I(f'v_and_b32 {v(T)}, 15, {v(V_LANE)}')
I(f's_lshl_b32 {s(S_T3)}, {s(S_MT)}, 7')
I(f's_add_u32 {s(S_T3)}, {s(S_T3)}, {LNF}')
I(f'v_lshl_add_u32 {v(V_PA)}, {v(T)}, 2, {s(S_T3)}')
I(f's_cmp_eq_u32 {s(S_TYPE)}, 0')
I(f's_cselect_b32 {s(S_T3)}, {128 - 56}, 0')
I(f's_cmp_eq_u32 {s(S_MT)}, 0')
I(f's_cselect_b32 {s(S_T3)}, 0, {s(S_T3)}')
I(f'v_subrev_u32 {v(T + 1)}, {s(S_T3)}, {v(V_PA)}')
I(f'v_lshrrev_b32 {v(T)}, 1, {v(V_LANE)}')
I(f'v_cmp_eq_u32 vcc, 8, {v(T)}')
I(f'v_cndmask_b32 {v(V_PA)}, {v(V_PA)}, {v(T + 1)}, vcc')
I(f's_mul_i32 {s(S_T3)}, {s(S_WAVE)}, 14')
I(f's_min_u32 {s(S_T3)}, {s(S_T3)}, 41')
I(f's_add_u32 {s(S_T3)}, {s(S_T3)}, 20')
I(f's_mul_i32 {s(S_W2B)}, {s(S_T3)}, 40960')
I(f's_mul_i32 {s(S_T3)}, {s(S_NT)}, 5120')
I(f's_add_u32 {s(S_W2B)}, {s(S_W2B)}, {s(S_T3)}')
I(f's_add_u32 {s(S_W2B)}, {s(S_W2B)}, {W_T}')
I(f's_cmp_ge_u32 {s(S_WAVE)}, 2')
I(f's_cselect_b32 {s(S_LAST)}, {OOB}, 0')
I(f's_lshr_b32 {s(S_T3)}, {s(S_M2)}, 1')
I(f's_lshl_b32 {s(S_T3)}, {s(S_T3)}, 7')
I(f's_add_u32 {s(S_T3)}, {s(S_T3)}, {P1F + 32}')
I(f'v_and_b32 {v(T)}, 7, {v(V_LANE)}')
I(f'v_lshl_add_u32 {v(V_PF)}, {v(T)}, 2, {s(S_T3)}')

I(f's_cmp_ge_u32 {s(S_WAVE)}, 2')
I('s_cbranch_scc1 L_pro_dma')

st0 = k.state()
XF = ACC
SA_ = T + 3
I(f'v_lshrrev_b32 {v(SA_)}, 4, {v(LR)}')
I(f'v_mul_u32_u24 {v(SA_)}, 20480, {v(SA_)}')
I(f'v_lshl_add_u32 {v(SA_)}, {v(LP)}, 8, {v(SA_)}')
I(f'v_and_b32 {v(T)}, 15, {v(LR)}')
I(f'v_lshl_add_u32 {v(SA_)}, {v(T)}, 4, {v(SA_)}')
I(f's_mov_b32 {s(S_T3)}, 0xffff0000')
stamp(2, 2)
k.wait_vm_tag('x')
stamp(3, 2)
I('s_barrier')
SUM = T + 4
for i in range(20):
    I(f'v_lshlrev_b32 {v(XF + 2 * i)}, 16, {v(XR + i)}')
    I(f'v_and_b32 {v(XF + 2 * i + 1)}, {s(S_T3)}, {v(XR + i)}')
    if i == 1:
        I(f'v_pk_add_f32 {v(SUM, 2)}, {v(XF, 2)}, {v(XF + 2, 2)}')
    elif i > 1:
        I(f'v_pk_add_f32 {v(SUM, 2)}, {v(SUM, 2)}, {v(XF + 2 * i, 2)}')
I(f'v_add_f32 {v(SUM)}, {v(SUM)}, {v(SUM + 1)}')
row_sum(SUM, SUM + 1)
MEAN = T + 6
I(f'v_mul_f32 {v(MEAN)}, {f32(1.0 / 640)}, {v(SUM)}')
I(f'v_mov_b32 {v(MEAN + 1)}, {v(MEAN)}')
SQ = T + 4
DV = T + 28
for i in range(20):
    d = DV + 2 * (i & 1)
    I(f'v_pk_add_f32 {v(d, 2)}, {v(XF + 2 * i, 2)}, {v(MEAN, 2)} neg_lo:[0,1] neg_hi:[0,1]')
    if i == 0:
        I(f'v_pk_mul_f32 {v(SQ, 2)}, {v(d, 2)}, {v(d, 2)}')
    else:
        I(f'v_pk_fma_f32 {v(SQ, 2)}, {v(d, 2)}, {v(d, 2)}, {v(SQ, 2)}')
I(f'v_add_f32 {v(SQ)}, {v(SQ)}, {v(SQ + 1)}')
row_sum(SQ, SQ + 1)
I(f'v_mul_f32 {v(SQ)}, {f32(1.0 / 640)}, {v(SQ)}')
bf16r(SQ, SQ)
I(f'v_add_f32 {v(SQ)}, {f32(1e-5)}, {v(SQ)}')
bf16r(SQ, SQ)
I(f'v_sqrt_f32 {v(SQ)}, {v(SQ)}')
bf16r(MEAN, MEAN)
bf16r(SQ, SQ)
I(f'v_rcp_f32 {v(SQ + 1)}, {v(SQ)}')
I(f'v_mov_b32 {v(MEAN + 1)}, {v(MEAN)}')
I(f'v_fma_f32 {v(SQ)}, -{v(SQ)}, {v(SQ + 1)}, 1.0')
I(f'v_fma_f32 {v(SQ)}, {v(SQ)}, {v(SQ + 1)}, {v(SQ + 1)}')
I(f'v_mov_b32 {v(SQ + 1)}, {v(SQ)}')
for i in range(20):
    x2 = XF + 2 * i
    I(f'v_pk_add_f32 {v(x2, 2)}, {v(x2, 2)}, {v(MEAN, 2)} neg_lo:[0,1] neg_hi:[0,1]')
    I(f'v_cvt_pk_bf16_f32 {v(XR + i)}, {v(x2)}, {v(x2 + 1)}')
    I(f'v_lshlrev_b32 {v(x2)}, 16, {v(XR + i)}')
    I(f'v_and_b32 {v(x2 + 1)}, {s(S_T3)}, {v(XR + i)}')
    I(f'v_pk_mul_f32 {v(x2, 2)}, {v(x2, 2)}, {v(SQ, 2)}')
    I(f'v_cvt_pk_bf16_f32 {v(XR + i)}, {v(x2)}, {v(x2 + 1)}')
    if i % 4 == 3:
        ii = i // 4
        I(f's_mov_b32 {s(S_T4)}, {XN_T + 4096 * ii}')
        I(f'buffer_store_dwordx4 {v(XR + 4 * ii, 4)}, {v(SA_)}, {s(SRD_WS, 4)}, {s(S_T4)} offen sc1')
stamp(1)
stamp(4, 2)
I(f'v_readfirstlane_b32 {s(S_TAG)}, {v(TAGV)}')
I(f'v_mov_b32 {v(T + 1)}, 0')
I(f's_mov_b32 {s(S_SPIN)}, 0')
I(f's_cmp_lg_u32 {s(S_TAG)}, 0')
I('s_cbranch_scc1 L_tagok')
k.label('L_tagpoll')
I(f'buffer_load_dword {v(TAGV)}, {v(T + 1)}, {s(SRD_DBG, 4)}, 0 offen sc1')
k.wait_all()
I(f'v_readfirstlane_b32 {s(S_TAG)}, {v(TAGV)}')
I(f's_add_u32 {s(S_SPIN)}, {s(S_SPIN)}, 1')
I(f's_cmp_lg_u32 {s(S_TAG)}, 0')
I('s_cbranch_scc1 L_tagok')
I(f's_cmp_lt_u32 {s(S_SPIN)}, 0x40000')
I('s_cbranch_scc1 L_tagpoll')
k.label('L_tagok')
I(f'v_mov_b32 {v(T + 1)}, {CNT}')
I(f'ds_write_b32 {v(T + 1)}, {v(TAGV)} offset:4')
I(f'v_mov_b32 {v(T)}, 1')
k.wait_all()
stamp(5, 2)
I('s_mov_b64 exec, 1')
I(f'ds_add_rtn_u32 {v(T + 2)}, {v(T + 1)}, {v(T)}')
I('s_mov_b64 exec, -1')
I(f'v_readfirstlane_b32 {s(S_T3)}, {v(T + 2)}')
I(f's_cmp_eq_u32 {s(S_T3)}, 1')
I('s_cbranch_scc0 L_pro_join')
flag_store(LNF, S_FOFF, T)
I('s_branch L_pro_join')

k.set_state(st0)
k.vmq = [(regs_of(v(BIAS, 2)), None)]
k.label('L_pro_dma')
RT_A, RT_B, RT_K0, RT_SCR, VW_M0, VW_SO, S_PFO = 46, 47, 48, 49, 50, 52, 54
I(f's_cmp_lt_u32 {s(S_T1)}, 20')
csel(RT_A, 8 * 1280, 4 * 1280)
csel(RT_B, 4 * 1280, 16 * 1280)
I(f's_cselect_b32 {s(RT_K0)}, 0, 20')
I(f's_sub_u32 {s(RT_K0)}, {s(S_T1)}, {s(RT_K0)}')
I(f's_mul_i32 {s(RT_K0)}, {s(RT_K0)}, {32 * 1280}')
I(f's_lshl_b32 {s(S_T3)}, {s(S_T2)}, 8')
I(f's_add_u32 {s(RT_K0)}, {s(RT_K0)}, {s(S_T3)}')
I(f's_and_b32 {s(S_T3)}, {s(S_WAVE)}, 1')
I(f's_mul_i32 {s(VW_M0)}, {s(S_T3)}, {8 * RROW}')
I(f's_add_u32 {s(RT_SCR)}, {s(VW_M0)}, {7 * SLOT}')
I(f's_add_u32 {s(VW_M0 + 1)}, {s(VW_M0)}, {4 * RROW}')
I(f's_lshl_b32 {s(S_T4)}, {s(S_PITCH)}, 4')
I(f's_mul_i32 {s(VW_SO)}, {s(S_T3)}, {s(S_T4)}')
I(f's_lshl_b32 {s(S_T4)}, {s(S_PITCH)}, 3')
I(f's_add_u32 {s(VW_SO + 1)}, {s(VW_SO)}, {s(S_T4)}')
RTV, RTL, PFV = T + 8, T + 9, T + 10
I(f'v_lshrrev_b32 {v(RTV)}, 4, {v(V_LANE)}')
I(f'v_mul_u32_u24 {v(RTV)}, 1280, {v(RTV)}')
I(f'v_and_b32 {v(T)}, 15, {v(V_LANE)}')
I(f'v_lshl_add_u32 {v(RTV)}, {v(T)}, 4, {v(RTV)}')
I(f'v_lshlrev_b32 {v(RTL)}, 8, {v(LP)}')
I(f'v_and_b32 {v(T)}, 3, {v(V_LANE)}')
I(f'v_lshl_add_u32 {v(RTL)}, {v(T)}, 3, {v(RTL)}')
I(f'v_add_u32 {v(RTL)}, {s(RT_SCR)}, {v(RTL)}')
I(f'v_and_b32 {v(T)}, 7, {v(V_LANE)}')
I(f's_cmp_eq_u32 {s(S_TYPE)}, 0')
I(f's_cselect_b32 {s(S_T4)}, 5, 3')
I(f's_cselect_b32 {s(S_T5)}, {1280 - 256}, 0')
I(f'v_min_u32 {v(T)}, {s(S_T4)}, {v(T)}')
I(f'v_lshrrev_b32 {v(T + 1)}, 1, {v(T)}')
I(f'v_mul_u32_u24 {v(T + 1)}, {s(S_T5)}, {v(T + 1)}')
I(f'v_lshl_add_u32 {v(PFV)}, {v(T)}, 7, {v(T + 1)}')
I(f'v_lshrrev_b32 {v(T)}, 3, {v(V_LANE)}')
I(f'v_mad_u32_u24 {v(PFV)}, {v(T)}, {s(S_PITCH)}, {v(PFV)}')
I(f's_and_b32 {s(S_T4)}, {s(S_MT)}, 7')
I(f's_lshl_b32 {s(S_T4)}, {s(S_T4)}, 1')
I(f's_add_u32 {s(S_T4)}, {s(S_T4)}, {s(S_T3)}')
I(f's_mul_i32 {s(S_T4)}, {s(S_T4)}, 40')
I(f's_mul_i32 {s(S_PFO)}, {s(S_T4)}, {s(S_PITCH)}')
I(f's_add_u32 {s(S_PFO)}, {s(S_PFO)}, {s(S_CB)}')
I(f's_lshl_b32 {s(S_T4)}, {s(S_PITCH)}, 3')
stamp(2, 2)
I('s_barrier')
stamp(3, 2)
for i in range(5):
    I(f'buffer_load_dword {v(T + 12 + i)}, {v(PFV)}, {s(SRD_B, 4)}, {s(S_PFO)} offen', tag='pf')
    I(f's_add_u32 {s(S_PFO)}, {s(S_PFO)}, {s(S_T4)}')
for t in range(8):
    hf_, g = t >> 2, t & 3
    I(f's_mul_i32 {s(S_T3)}, {s(RT_A)}, {g}')
    I(f's_add_u32 {s(S_T3)}, {s(S_T3)}, {s(RT_K0)}')
    if hf_:
        I(f's_add_u32 {s(S_T3)}, {s(S_T3)}, {s(RT_B)}')
    I(f's_add_u32 m0, {s(RT_SCR)}, {1024 * t}')
    I(f'buffer_load_dwordx4 {v(RTV)}, {s(SRD_RT, 4)}, {s(S_T3)} offen lds', tag='rt')
I(f's_mul_i32 {s(S_T3)}, {s(S_T1)}, 40960')
I(f's_lshl_b32 {s(S_T4)}, {s(S_T2)}, 13')
I(f's_add_u32 {s(S_T3)}, {s(S_T3)}, {s(S_T4)}')
I(f's_add_u32 {s(S_T3)}, {s(S_T3)}, {W_T}')
I(f's_cmp_lt_u32 {s(S_T1)}, 74')
I(f's_cselect_b32 {s(S_T3)}, {s(S_T3)}, {OOB}')
k.wait_vm_tag('pf')
stamp(4, 2)
for sl in range(NPRE):
    for h in range(2):
        I(f's_add_u32 m0, {s(VW_M0 + h)}, {sl * SLOT}')
        for j in range(4):
            dma1(j, VW_SO + h, 'ring')
        I(f's_add_u32 {s(VW_SO + h)}, {s(VW_SO + h)}, {s(S_KSTR)}')
    if sl == 1:
        k.wait_vm_tag('rt')
        RF = ACC
        for nb in range(8):
            I(f'ds_read_b64_tr_b16 {v(RF + 4 * nb, 2)}, {v(RTL)} offset:{32 * nb}')
            I(f'ds_read_b64_tr_b16 {v(RF + 4 * nb + 2, 2)}, {v(RTL)} offset:{32 * nb + 4096}')
        for nb in range(8):
            I(f'buffer_store_dwordx4 {v(RF + 4 * nb, 4)}, {v(V_L16 if nb < 4 else V_L16B)}, {s(SRD_WS, 4)}, {s(S_T3)} offen offset:{1024 * (nb & 3)} sc1')
stamp(5, 2)
stamp(1)
k.wait_all(vm=False, lg=True)

k.label('L_pro_join')
k.vmq = [(set(), 'unknown')]
k.lgq = []
I('s_nop 4')
I(f's_cmp_eq_u32 {s(S_TYPE)}, 1')
I('s_cbranch_scc1 L_ffn')
st_join = k.state()


def ln_wait():
    lab = k.newlabel('L_lnw')
    I(f's_cmp_eq_u32 {s(S_WAVE)}, 0')
    I(f's_cbranch_scc0 {lab}')
    stamp(6, 2)
    poll(V_PA, 'ln')
    k.label(lab)
    k.wait_all()
    stamp(7, 2)
    I('s_barrier')
    stamp(8, 2)


def tag_fetch():
    I(f'v_mov_b32 {v(T + 1)}, {CNT}')
    I(f'ds_read_b32 {v(T)}, {v(T + 1)} offset:4')
    I(f'v_readfirstlane_b32 {s(S_TAG)}, {v(T)}')


def load_A(ks, rb):
    I(f'buffer_load_dwordx4 {a((ks * 2 + rb) * 4, 4)}, {v(V_L16)}, {s(SRD_WS, 4)}, {s(S_AO + rb * 5 + ks // 4)} offen offset:{(ks & 3) * 1024} sc1')


W2ORDER = list(range(40, 64)) + list(range(40))


def w2reg(st, nb):
    f = st * 5 + nb
    return a(4 * W2ORDER[f], 4) if f < 64 else v(W2V + 4 * (f - 64), 4)


def w2load(f):
    st, nb = divmod(f, 5)
    if st == 13 and nb == 0:
        I(f's_add_u32 {s(S_W2B)}, {s(S_W2B)}, {s(S_LAST)}')
    I(f'buffer_load_dwordx4 {w2reg(st, nb)}, {v(V_L16 if nb < 4 else V_L16B)}, {s(SRD_WS, 4)}, {s(S_W2B)} offen offset:{(nb & 3) * 1024} sc1')
    if nb == 4:
        I(f's_add_u32 {s(S_W2B)}, {s(S_W2B)}, 40960')


W2_INLOOP = 48


def mainloop(ncb, halo, first_c_zero):
    NF = ncb + (3 if halo else 0)
    LA = 7
    items = [(ks, j) for ks in range(20) for j in range(NF)]
    N = len(items)
    aux = [[] for _ in range(20)]
    for ks in range(8):
        for kk in (2 * ks + 4, 2 * ks + 5):
            for rb in range(2):
                aux[ks].append(lambda kk=kk, rb=rb: load_A(kk, rb))
    for ks in range(20 - NPRE):
        kn = ks + NPRE
        dm = []
        for j in range(4):
            def f(j=j, kn=kn):
                if j == 0:
                    I(f's_add_u32 m0, {s(S_M0B)}, {(kn % NSLOT) * SLOT}')
                dma1(j, S_SOFF, ('dma', kn))
                if j == 3:
                    I(f's_add_u32 {s(S_SOFF)}, {s(S_SOFF)}, {s(S_KSTR)}')
            dm.append(f)
        old = aux[ks]
        mix = []
        for i in range(4):
            mix.append(dm[i])
            if i < len(old):
                mix.append(old[i])
        aux[ks] = mix + old[4:]
    aux[5].append(lambda: chk_issue(V_PA, 4))
    f = 0
    for ks in range(8, 20):
        cnt = 3 if ks < 16 else 6
        for _ in range(cnt):
            assert f < 24 or ks > (f - 24) // 2
            aux[ks].append(lambda f=f: w2load(f))
            f += 1
    assert f == W2_INLOOP

    def rd(n, half):
        ks, j = items[n]
        sl = ks % NSLOT
        w = WIN + 4 * (n % 8)
        if j < ncb:
            base = V_TR0 if sl < 4 else V_TR1
            off = (sl % 4) * SLOT + 32 * j
        else:
            base = V_TRH0 if sl < 4 else V_TRH1
            off = (sl % 4) * SLOT + 32 * (j - ncb)
        if j == 0 and half == 0 and ks >= 2 and ks % 2 == 0:
            if ks + 1 >= NPRE:
                k.wait_vm_tag(('dma', ks + 1))
            I('s_barrier')
            if ks == 2:
                lab = k.newlabel('L_nf')
                I(f's_cmp_eq_u32 {s(S_WAVE)}, 0')
                I(f's_cbranch_scc0 {lab}')
                I(f's_lshl_b32 {s(S_T3)}, {s(S_WG)}, 2')
                flag_store(WTF, S_T3, T)
                k.label(lab)
        I(f'ds_read_b64_tr_b16 {v(w + 2 * half, 2)}, {v(base)} offset:{off + 512 * half}')
        if halo and j == ncb and half == 1:
            I(f'ds_read_b128 {v(HX + 4 * (ks & 1), 4)}, {v(V_X)} offset:{ks * 1024}')

    for n in range(LA):
        rd(n, 0)
        rd(n, 1)
    I(f'v_add_u32 {v(V_PA)}, {WTF}, {v(V_L16)}')
    for n in range(N):
        ks, j = items[n]
        w = WIN + 4 * (n % 8)
        if j == 0:
            pend = list(aux[ks])
            tot = len(pend)
            done = 0
            if ks in (0, 1, 2, 4, 8, 12, 16, 18):
                stamp(1 + (0, 1, 2, 4, 8, 12, 16, 18).index(ks), 1)
            if ks == 8:
                poll(V_PA, 'wt', 4, preissued=True)
        if n % 2 == 0 and n + 1 < N:
            k._need(regs_of(v(WIN + 4 * ((n + 1) % 8), 4)) | regs_of(v(w, 4)))
        if j < ncb:
            for rb in range(2):
                d = ACC + (j * 2 + rb) * 4
                c_ = '0' if (ks == 0 and first_c_zero) else v(d, 4)
                I(f'v_mfma_f32_16x16x32_bf16 {v(d, 4)}, {v(w, 4)}, {a((ks * 2 + rb) * 4, 4)}, {c_}')
                if n + LA < N:
                    rd(n + LA, rb)
        else:
            d = HACC + (j - ncb) * 4
            c_ = '0' if ks == 0 else v(d, 4)
            I(f'v_mfma_f32_16x16x32_bf16 {v(d, 4)}, {v(w, 4)}, {v(HX + 4 * (ks & 1), 4)}, {c_}')
            if n + LA < N:
                rd(n + LA, 0)
                rd(n + LA, 1)
        while done < tot and done * NF <= j * tot + tot - 1 and (n % 2 == 0 or tot > NF // 2):
            pend[done]()
            done += 1
            if tot <= NF:
                break
        if j == NF - 1:
            while done < tot:
                pend[done]()
                done += 1


def publish(t0):
    chk_issue(V_PF)
    k.wait_all()
    I('s_barrier')
    lab = k.newlabel('L_np')
    I(f's_cmp_eq_u32 {s(S_WAVE)}, 0')
    I(f's_cbranch_scc0 {lab}')
    flag_store(P1F, S_FOFF, t0)
    k.label(lab)


I(f's_lshl_b32 {s(S_T3)}, {s(S_MT)}, 3')
I(f's_sub_u32 {s(S_T3)}, {s(S_T3)}, 1')
I(f's_mul_i32 {s(S_T3)}, {s(S_T3)}, 20480')
I(f's_mul_i32 {s(S_T4)}, {s(S_WAVE)}, 5120')
I(f's_add_u32 {s(S_T3)}, {s(S_T3)}, {s(S_T4)}')
I(f's_cmp_eq_u32 {s(S_MT)}, 0')
I(f's_cselect_b32 {s(S_T5)}, {OOB}, {s(S_T3)}')
I(f'v_add_u32 {v(T + 2)}, {s(S_T4)}, {v(V_X)}')
SA = T + 28
SH = T + 33
tm, tg, tn, tq = T + 4, T + 5, T + 6, T + 7
I(f'v_and_b32 {v(tm)}, 15, {v(V_LANE)}')
I(f'v_lshrrev_b32 {v(tg)}, 4, {v(V_LANE)}')
I(f's_lshl_b32 {s(S_T3)}, {s(S_WAVE)}, 5')
I(f's_add_u32 {s(S_T3)}, {s(S_T3)}, 16')
I(f'v_add_u32 {v(tq)}, {s(S_T3)}, {v(tm)}')
I(f'v_mul_u32_u24 {v(tq)}, {RS}, {v(tq)}')
for cb in range(5):
    I(f'v_lshl_add_u32 {v(tn)}, {v(tg)}, 2, {16 * cb}')
    I(f'v_mul_u32_u24 {v(SA + cb)}, 205, {v(tn)}')
    I(f'v_lshrrev_b32 {v(SA + cb)}, 12, {v(SA + cb)}')
    I(f'v_lshl_add_u32 {v(SA + cb)}, {v(SA + cb)}, 2, {v(tn)}')
    I(f'v_lshl_add_u32 {v(SA + cb)}, {v(SA + cb)}, 1, {v(tq)}')
assert all((n * 205) >> 12 == n // 20 for n in range(0, 240, 4))
I(f'v_mul_u32_u24 {v(tq)}, {RS}, {v(tm)}')
for j in range(3):
    I(f's_add_u32 {s(S_T3)}, {s(S_HB)}, {j}')
    I(f's_lshl_b32 {s(S_T3)}, {s(S_T3)}, 4')
    I(f'v_lshl_add_u32 {v(tn)}, {v(tg)}, 2, {s(S_T3)}')
    I(f'v_mul_u32_u24 {v(SH + j)}, 205, {v(tn)}')
    I(f'v_lshrrev_b32 {v(SH + j)}, 12, {v(SH + j)}')
    I(f'v_lshl_add_u32 {v(SH + j)}, {v(SH + j)}, 2, {v(tn)}')
    I(f'v_lshl_add_u32 {v(SH + j)}, {v(SH + j)}, 1, {v(tq)}')
ln_wait()
stamp(2)
for i in range(5):
    I(f'buffer_load_dwordx4 {v(T + 8 + 4 * i, 4)}, {v(V_L16 if i < 4 else V_L16B)}, {s(SRD_WS, 4)}, {s(S_T5)} offen offset:{(i & 3) * 1024} sc1')
for ks in range(4):
    for rb in range(2):
        load_A(ks, rb)
tag_fetch()
for i in range(5):
    I(f'ds_write_b128 {v(T + 2)}, {v(T + 8 + 4 * i, 4)} offset:{i * 1024}')
k.wait_all(vm=False, lg=True)
I('s_barrier')
stamp(3)
mainloop(15, True, True)
stamp(4)
w2rest = list(range(W2_INLOOP, 70))
VA, VB, VO, K2M0, K2M1, NEG = T, T + 1, T + 2, T + 3, 224, 225
t1, t2, t3 = T + 4, T + 5, T + 6
I(f's_mul_i32 {s(S_T3)}, {s(S_WAVE)}, 48')
I(f'v_and_b32 {v(t1)}, 0x38, {v(V_LANE)}')
I(f'v_bfe_u32 {v(t2)}, {v(V_LANE)}, 2, 1')
I(f'v_add_u32 {v(t1)}, {v(t1)}, {v(t2)}')
I(f'v_and_b32 {v(t2)}, 3, {v(V_LANE)}')
I(f'v_lshl_add_u32 {v(t1)}, {v(t2)}, 1, {v(t1)}')
I(f'v_mul_u32_u24 {v(VA)}, {RS}, {v(t1)}')
I(f'v_add_u32 {v(VA)}, {s(S_T3)}, {v(VA)}')
I('s_barrier')
PK = T + 8
n = 0
for cbg in list(range(5, 15)) + list(range(5)):
    sec, cb = divmod(cbg, 5)
    for rb in range(2):
        d = ACC + (cbg * 2 + rb) * 4
        p = PK + 2 * (n % 4)
        n += 1
        I(f'v_cvt_pk_bf16_f32 {v(p)}, {v(d)}, {v(d + 1)}')
        I(f'v_cvt_pk_bf16_f32 {v(p + 1)}, {v(d + 2)}, {v(d + 3)}')
        I(f'ds_write_b64 {v(SA + cb)}, {v(p, 2)} offset:{sec * 192 + rb * 16 * RS}')
        if w2rest and n % 2 == 0:
            w2load(w2rest.pop(0))
for j in range(3):
    d = HACC + 4 * j
    p = PK + 2 * (n % 4)
    n += 1
    I(f'v_cvt_pk_bf16_f32 {v(p)}, {v(d)}, {v(d + 1)}')
    I(f'v_cvt_pk_bf16_f32 {v(p + 1)}, {v(d + 2)}, {v(d + 3)}')
    I(f'ds_write_b64 {v(SH + j)}, {v(p, 2)}')
I(f'v_and_b32 {v(VB)}, 0x30, {v(V_LANE)}')
I(f'v_bfe_u32 {v(t3)}, {v(V_LANE)}, 1, 1')
I(f'v_lshl_add_u32 {v(VB)}, {v(t3)}, 3, {v(VB)}')
I(f'v_and_b32 {v(t3)}, 1, {v(V_LANE)}')
I(f'v_add_u32 {v(VB)}, {v(VB)}, {v(t3)}')
I(f'v_bfe_u32 {v(t3)}, {v(V_LANE)}, 2, 2')
I(f'v_lshl_add_u32 {v(VB)}, {v(t3)}, 1, {v(VB)}')
I(f'v_mul_u32_u24 {v(VB)}, {RS}, {v(VB)}')
I(f'v_add_u32 {v(VB)}, {s(S_T3)}, {v(VB)}')
k.wait_all(vm=False, lg=True)
I('s_barrier')

TASKR = [16, 102]
for hf_ in range(2):
    R = TASKR[hf_]
    Q, Kr, Vr = R, R + 12, R + 48
    hb = hf_ * 64 * RS
    I(f'ds_read_b128 {v(Q, 4)}, {v(VA)} offset:{hb + 16 * RS}')
    I(f'ds_read_b128 {v(Q + 4, 4)}, {v(VA)} offset:{hb + 16 * RS + 16}')
    I(f'ds_read_b64 {v(Q + 8, 2)}, {v(VA)} offset:{hb + 16 * RS + 32}')
    for kg in range(3):
        o = hb + kg * 8 * RS + 192
        I(f'ds_read_b128 {v(Kr + 12 * kg, 4)}, {v(VA)} offset:{o}')
        I(f'ds_read_b128 {v(Kr + 12 * kg + 4, 4)}, {v(VA)} offset:{o + 16}')
        I(f'ds_read_b64 {v(Kr + 12 * kg + 8, 2)}, {v(VA)} offset:{o + 32}')
I(f'v_lshrrev_b32 {v(t3)}, 4, {v(t1)}')
I(f'v_mul_u32_u24 {v(VO)}, {ACT_MB}, {v(t3)}')
I(f'v_and_b32 {v(t3)}, 15, {v(t1)}')
I(f'v_lshl_add_u32 {v(VO)}, {v(t3)}, 4, {v(VO)}')
M1, M2, M3, INV1, INV01, INV02, INV03, SC_HI, SC_SCALE, SC_L2E, S_OB = 36, 38, 40, 42, 44, 46, 48, 50, 52, 54, 35
for reg, pat in ((M1, 0xeeeeeeee), (M2, 0xcccccccc), (M3, 0x88888888)):
    I(f's_mov_b32 {s(reg)}, {hex(pat)}')
    I(f's_mov_b32 {s(reg + 1)}, {hex(pat)}')
I(f'v_mov_b32 {v(t3)}, 0xffff')
I(f'v_cndmask_b32 {v(K2M0)}, {v(t3)}, -1, {s(M1, 2)}')
I(f'v_cndmask_b32 {v(K2M1)}, 0, {v(t3)}, {s(M2, 2)}')
I(f'v_cndmask_b32 {v(K2M1)}, {v(K2M1)}, -1, {s(M3, 2)}')
I(f'v_mov_b32 {v(NEG)}, {f32(-1e9)}')
I(f's_cmp_eq_u32 {s(S_MT)}, 0')
I(f's_cselect_b32 {s(INV1)}, 0xff, 0')
I(f's_cselect_b32 {s(INV01)}, 0x1111, 0')
I(f's_cselect_b32 {s(INV02)}, 0x3333, 0')
I(f's_cselect_b32 {s(INV03)}, 0x7777, 0')
for reg in (INV1, INV01, INV02, INV03):
    I(f's_mov_b32 {s(reg + 1)}, 0')
I(f's_mov_b32 {s(SC_HI)}, 0xffff0000')
I(f's_mov_b32 {s(SC_SCALE)}, {f32(20 ** -0.5)}')
I(f's_mov_b32 {s(SC_SCALE + 1)}, {f32(20 ** -0.5)}')
I(f's_mov_b32 {s(SC_L2E)}, {f32(1.4426950408889634)}')
I(f's_mov_b32 {s(SC_L2E + 1)}, {f32(1.4426950408889634)}')
SREG = [T + 4, T + 16]
for hf_ in range(2):
    R = TASKR[hf_]
    Q, Kr, Vr = R, R + 12, R + 48
    Sx = SREG[hf_]
    hb = hf_ * 64 * RS
    for dc in range(5):
        for kg in range(3):
            c_ = '0' if dc == 0 else v(Sx + 4 * kg, 4)
            I(f'v_mfma_f32_4x4x4_16b_bf16 {v(Sx + 4 * kg, 4)}, {v(Kr + 12 * kg + 2 * dc, 2)}, {v(Q + 2 * dc, 2)}, {c_}')
            I(f'ds_read_b64_tr_b16 {v(Vr + 2 * (kg * 5 + dc), 2)}, {v(VB)} offset:{hb + kg * 8 * RS + 384 + 8 * dc}')
I(f's_mul_i32 {s(S_OB)}, {s(S_MT)}, {8 * ACT_MB}')
I(f's_add_u32 {s(S_OB)}, {s(S_OB)}, {ACT_T}')
I(f's_mul_i32 {s(S_T3)}, {s(S_IDX)}, 2560')
I(f's_add_u32 {s(S_OB)}, {s(S_OB)}, {s(S_T3)}')
I(f's_lshr_b32 {s(S_T3)}, {s(S_WAVE)}, 1')
I(f's_mul_i32 {s(S_T3)}, {s(S_T3)}, 1280')
I(f's_add_u32 {s(S_OB)}, {s(S_OB)}, {s(S_T3)}')
I(f's_add_u32 {s(S_T4)}, {s(S_OB)}, {4 * ACT_MB}')
for hf_ in range(2):
    R = TASKR[hf_]
    Q, Kr, Vr = R, R + 12, R + 48
    Sx = SREG[hf_]
    Lg = Sx + 4
    for r, M in ((1, M1), (2, M2), (3, M3)):
        I(f'v_cndmask_b32 {v(Sx + 8 + r)}, {v(Sx + r)}, {v(Sx + 8 + r)}, {s(M, 2)}')
    P = Sx
    for i in range(4):
        I(f'v_cvt_pk_bf16_f32 {v(P + i)}, {v(Lg + 2 * i)}, {v(Lg + 2 * i + 1)}')
    for i in range(4):
        I(f'v_lshlrev_b32 {v(Lg + 2 * i)}, 16, {v(P + i)}')
        I(f'v_and_b32 {v(Lg + 2 * i + 1)}, {s(SC_HI)}, {v(P + i)}')
    for i in range(4):
        I(f'v_pk_mul_f32 {v(Lg + 2 * i, 2)}, {v(Lg + 2 * i, 2)}, {s(SC_SCALE, 2)}')
    if w2rest:
        w2load(w2rest.pop(0))
    for i in range(4):
        I(f'v_cvt_pk_bf16_f32 {v(P + i)}, {v(Lg + 2 * i)}, {v(Lg + 2 * i + 1)}')
    for i in range(4):
        I(f'v_lshlrev_b32 {v(Lg + 2 * i)}, 16, {v(P + i)}')
        I(f'v_and_b32 {v(Lg + 2 * i + 1)}, {s(SC_HI)}, {v(P + i)}')
    if w2rest:
        w2load(w2rest.pop(0))
    if hf_ == 0:
        for r in range(4):
            I(f'v_cndmask_b32 {v(Lg + r)}, {v(Lg + r)}, {v(NEG)}, {s(INV1, 2)}')
        for r, M in ((1, INV01), (2, INV02), (3, INV03)):
            I(f'v_cndmask_b32 {v(Lg + 4 + r)}, {v(Lg + 4 + r)}, {v(NEG)}, {s(M, 2)}')
    mx = P
    I(f'v_max3_f32 {v(mx)}, {v(Lg)}, {v(Lg + 1)}, {v(Lg + 2)}')
    I(f'v_max3_f32 {v(mx + 1)}, {v(Lg + 3)}, {v(Lg + 4)}, {v(Lg + 5)}')
    I(f'v_max3_f32 {v(mx)}, {v(mx)}, {v(Lg + 6)}, {v(Lg + 7)}')
    I(f'v_max_f32 {v(mx)}, {v(mx)}, {v(mx + 1)}')
    I(f'v_mov_b32 {v(mx + 1)}, {v(mx)}')
    for i in range(4):
        I(f'v_pk_add_f32 {v(Lg + 2 * i, 2)}, {v(Lg + 2 * i, 2)}, {v(mx, 2)} neg_lo:[0,1] neg_hi:[0,1]')
    for i in range(4):
        I(f'v_pk_mul_f32 {v(Lg + 2 * i, 2)}, {v(Lg + 2 * i, 2)}, {s(SC_L2E, 2)}')
    if w2rest:
        w2load(w2rest.pop(0))
    for i in range(8):
        I(f'v_exp_f32 {v(Lg + i)}, {v(Lg + i)}')
    I(f'v_pk_add_f32 {v(P, 2)}, {v(Lg, 2)}, {v(Lg + 2, 2)}')
    I(f'v_pk_add_f32 {v(P + 2, 2)}, {v(Lg + 4, 2)}, {v(Lg + 6, 2)}')
    I(f'v_pk_add_f32 {v(P, 2)}, {v(P, 2)}, {v(P + 2, 2)}')
    I(f'v_add_f32 {v(P)}, {v(P)}, {v(P + 1)}')
    I(f'v_rcp_f32 {v(P)}, {v(P)}')
    if w2rest:
        w2load(w2rest.pop(0))
    I(f'v_mov_b32 {v(P + 1)}, {v(P)}')
    for i in range(4):
        I(f'v_pk_mul_f32 {v(Lg + 2 * i, 2)}, {v(Lg + 2 * i, 2)}, {v(P, 2)}')
    PB = Kr
    I(f'v_cvt_pk_bf16_f32 {v(PB + 2)}, {v(Lg)}, {v(Lg + 1)}')
    I(f'v_cvt_pk_bf16_f32 {v(PB + 3)}, {v(Lg + 2)}, {v(Lg + 3)}')
    I(f'v_cvt_pk_bf16_f32 {v(PB)}, {v(Lg + 4)}, {v(Lg + 5)}')
    I(f'v_cvt_pk_bf16_f32 {v(PB + 1)}, {v(Lg + 6)}, {v(Lg + 7)}')
    I(f'v_and_b32 {v(PB + 4)}, {v(PB)}, {v(K2M0)}')
    I(f'v_and_b32 {v(PB + 5)}, {v(PB + 1)}, {v(K2M1)}')
    I(f'v_xor_b32 {v(PB)}, {v(PB)}, {v(PB + 4)}')
    I(f'v_xor_b32 {v(PB + 1)}, {v(PB + 1)}, {v(PB + 5)}')
    O = Kr + 8
    for kg in (1, 2, 0):
        for dc in range(5):
            c_ = '0' if kg == 1 else v(O + 4 * dc, 4)
            I(f'v_mfma_f32_4x4x4_16b_bf16 {v(O + 4 * dc, 4)}, {v(Vr + 2 * (kg * 5 + dc), 2)}, {v(PB + 2 * kg, 2)}, {c_}')
while w2rest:
    w2load(w2rest.pop(0))
for hf_ in range(2):
    R = TASKR[hf_]
    O = R + 12 + 8
    for i in range(10):
        I(f'v_cvt_pk_bf16_f32 {v(R + i)}, {v(O + 2 * i)}, {v(O + 2 * i + 1)}')
lodd, ldone = k.newlabel('L_oodd'), k.newlabel('L_odone')
I(f's_bitcmp1_b32 {s(S_WAVE)}, 0')
I(f's_cbranch_scc1 {lodd}')
sto = k.state()
for hf_ in range(2):
    OP = TASKR[hf_]
    so = s(S_OB if hf_ == 0 else S_T4)
    I(f'buffer_store_dwordx4 {v(OP, 4)}, {v(VO)}, {s(SRD_WS, 4)}, {so} offen sc1')
    I(f'buffer_store_dwordx4 {v(OP + 4, 4)}, {v(VO)}, {s(SRD_WS, 4)}, {so} offen offset:256 sc1')
    I(f'buffer_store_dwordx2 {v(OP + 8, 2)}, {v(VO)}, {s(SRD_WS, 4)}, {so} offen offset:512 sc1')
I(f's_branch {ldone}')
k.set_state(sto)
k.label(lodd)
for hf_ in range(2):
    OP = TASKR[hf_]
    so = s(S_OB if hf_ == 0 else S_T4)
    I(f'buffer_store_dwordx2 {v(OP, 2)}, {v(VO)}, {s(SRD_WS, 4)}, {so} offen offset:520 sc1')
    I(f'buffer_store_dwordx4 {v(OP + 2, 4)}, {v(VO)}, {s(SRD_WS, 4)}, {so} offen offset:768 sc1')
    I(f'buffer_store_dwordx4 {v(OP + 6, 4)}, {v(VO)}, {s(SRD_WS, 4)}, {so} offen offset:1024 sc1')
k.label(ldone)
stamp(5)
publish(T)
I('s_branch L_phase2')

k.set_state(st_join)
k.label('L_ffn')
I(f's_lshl_b32 {s(S_T3)}, {s(S_WAVE)}, 9')
I(f's_add_u32 {s(S_T3)}, {s(S_T3)}, {HALO}')
I(f'v_lshl_add_u32 {v(T)}, {v(V_LANE)}, 3, {s(S_T3)}')
I(f'ds_write_b64 {v(T)}, {v(BIAS, 2)}')
I(f'v_lshrrev_b32 {v(T)}, 4, {v(V_LANE)}')
I(f'v_lshl_add_u32 {v(T)}, {v(T)}, 3, {s(S_T3)}')
for cb in range(14):
    I(f'ds_read_b64 {v(T + 8 + 2 * cb, 2)}, {v(T)} offset:{32 * cb}')
I(f's_mov_b32 {s(S_T4)}, 0xffff0000')
for cb in range(14):
    for rb in range(2):
        d = ACC + (cb * 2 + rb) * 4
        for h in range(2):
            I(f'v_lshlrev_b32 {v(d + 2 * h)}, 16, {v(T + 8 + 2 * cb + h)}')
            I(f'v_and_b32 {v(d + 2 * h + 1)}, {s(S_T4)}, {v(T + 8 + 2 * cb + h)}')
ln_wait()
stamp(2)
for ks in range(4):
    for rb in range(2):
        load_A(ks, rb)
tag_fetch()
stamp(3)
mainloop(14, False, False)
stamp(4)
w2rest = list(range(W2_INLOOP, 70))
C0 = -2.0 * 0.7978845608028654 * 1.4426950408889634
C1 = C0 * 0.044715
GC0, GONE = T, T + 2
GS1 = 36
I(f'v_mov_b32 {v(GC0)}, {f32(C0)}')
I(f'v_mov_b32 {v(GC0 + 1)}, {f32(C0)}')
I(f'v_mov_b32 {v(GONE)}, 1.0')
I(f'v_mov_b32 {v(GONE + 1)}, 1.0')
I(f's_mov_b32 {s(GS1)}, {f32(C1)}')
I(f's_mov_b32 {s(GS1 + 1)}, {f32(C1)}')
S_HB2 = 38
I(f's_mul_i32 {s(S_HB2)}, {s(S_MB0)}, {ACT_MB}')
I(f's_lshl_b32 {s(S_T3)}, {s(S_START)}, 10')
I(f's_add_u32 {s(S_HB2)}, {s(S_HB2)}, {s(S_T3)}')
I(f's_add_u32 {s(S_HB2)}, {s(S_HB2)}, {ACT_T + 20 * 1024}')
I(f's_add_u32 {s(S_HB2 + 1)}, {s(S_HB2)}, {ACT_MB}')
n = 0
for pr in range(7):
    for rb in range(2):
        tmp = T + 4 + 8 * (n % 2)
        out = T + 20 + 4 * (n % 4)
        n += 1
        xs = [ACC + ((2 * pr + c2) * 2 + rb) * 4 + 2 * h for c2 in range(2) for h in range(2)]
        for i, x in enumerate(xs):
            I(f'v_pk_mul_f32 {v(tmp + 2 * i, 2)}, {v(x, 2)}, {v(x, 2)}')
        for i, x in enumerate(xs):
            I(f'v_pk_fma_f32 {v(tmp + 2 * i, 2)}, {v(tmp + 2 * i, 2)}, {s(GS1, 2)}, {v(GC0, 2)}')
        for i, x in enumerate(xs):
            I(f'v_pk_mul_f32 {v(tmp + 2 * i, 2)}, {v(tmp + 2 * i, 2)}, {v(x, 2)}')
        if w2rest:
            w2load(w2rest.pop(0))
        for i in range(8):
            I(f'v_exp_f32 {v(tmp + i)}, {v(tmp + i)}')
        for i in range(4):
            I(f'v_pk_add_f32 {v(tmp + 2 * i, 2)}, {v(tmp + 2 * i, 2)}, {v(GONE, 2)}')
        if w2rest:
            w2load(w2rest.pop(0))
        for i in range(8):
            I(f'v_rcp_f32 {v(tmp + i)}, {v(tmp + i)}')
        for i, x in enumerate(xs):
            I(f'v_pk_mul_f32 {v(tmp + 2 * i, 2)}, {v(tmp + 2 * i, 2)}, {v(x, 2)}')
        for i in range(4):
            I(f'v_cvt_pk_bf16_f32 {v(out + i)}, {v(tmp + 2 * i)}, {v(tmp + 2 * i + 1)}')
        I(f'buffer_store_dwordx4 {v(out, 4)}, {v(V_L16 if pr < 4 else V_L16B)}, {s(SRD_WS, 4)}, {s(S_HB2 + rb)} offen offset:{(pr & 3) * 1024} sc1')
assert not w2rest
stamp(5)
publish(T)

k.label('L_phase2')
k.vmq = [(set(), 'unknown')]
k.lgq = []
I('s_nop 4')
stamp(6)
YACC = 16
SACC = 96
HW = 116
HWN = 5
XIN = 196
B2V = 206
T2 = 216
S_HO = 32
S_OBASE, S_WOB, S_WOM, S_OOK, S_HI, S_NL2E = 36, 37, 38, 39, 40, 41
I(f's_mul_i32 {s(S_OBASE)}, {s(S_M2)}, {4 * ACT_MB}')
I(f's_add_u32 {s(S_OBASE)}, {s(S_OBASE)}, {ACT_T}')
I(f's_mul_i32 {s(S_T3)}, {s(S_WAVE)}, 14')
I(f's_min_u32 {s(S_T3)}, {s(S_T3)}, 41')
I(f's_add_u32 {s(S_T3)}, {s(S_T3)}, 20')
I(f's_lshl_b32 {s(S_T3)}, {s(S_T3)}, 10')
I(f's_add_u32 {s(S_HO)}, {s(S_OBASE)}, {s(S_T3)}')
for mb in range(1, 4):
    I(f's_add_u32 {s(S_HO + mb)}, {s(S_HO)}, {mb * ACT_MB}')
poll(V_PF, 'ffn', preissued=True)
stamp(7)


def hload(st, mb):
    if st == 13:
        I(f's_add_u32 {s(S_HO + mb)}, {s(S_HO + mb)}, {s(S_LAST)}')
    I(f'buffer_load_dwordx4 {v(HW + 16 * (st % HWN) + 4 * mb, 4)}, {v(V_L16)}, {s(SRD_WS, 4)}, {s(S_HO + mb)} offen offset:{(st & 3) * 1024} sc1')
    if st & 3 == 3:
        I(f's_add_u32 {s(S_HO + mb)}, {s(S_HO + mb)}, 4096')


for st in range(HWN):
    for mb in range(4):
        hload(st, mb)
I(f's_mul_i32 {s(S_T3)}, {s(S_WAVE)}, {ACT_MB}')
I(f's_add_u32 {s(S_OBASE)}, {s(S_OBASE)}, {s(S_T3)}')
I(f's_mul_i32 {s(S_WOB)}, {s(S_WAVE)}, {5 * 40960}')
I(f's_mul_i32 {s(S_T3)}, {s(S_NT)}, 5120')
I(f's_add_u32 {s(S_WOB)}, {s(S_WOB)}, {s(S_T3)}')
I(f's_add_u32 {s(S_WOB)}, {s(S_WOB)}, {W_T}')
I(f's_mul_i32 {s(S_WOM)}, {s(S_WAVE)}, {25 * 1024}')
I(f's_mov_b32 {s(S_HI)}, 0xffff0000')
I(f's_mov_b32 {s(S_NL2E)}, {f32(-1.4426950408889634)}')
VXO, VB2, VPA2, VRED, VRED2, VWO2 = T2, T2 + 1, T2 + 2, T2 + 3, T2 + 4, T2 + 5
I(f'v_and_b32 {v(VB2)}, 15, {v(V_LANE)}')
I(f's_lshl_b32 {s(S_T3)}, {s(S_M2)}, 6')
I(f's_lshl_b32 {s(S_T4)}, {s(S_WAVE)}, 4')
I(f's_add_u32 {s(S_T3)}, {s(S_T3)}, {s(S_T4)}')
I(f'v_add_u32 {v(VB2)}, {s(S_T3)}, {v(VB2)}')
I(f'v_mul_u32_u24 {v(VXO)}, 1280, {v(VB2)}')
I(f'v_lshrrev_b32 {v(VB2)}, 4, {v(V_LANE)}')
I(f's_mul_i32 {s(S_T3)}, {s(S_NT)}, 160')
I(f'v_lshl_add_u32 {v(VB2)}, {v(VB2)}, 3, {s(S_T3)}')
I(f'v_add_u32 {v(VXO)}, {v(VXO)}, {v(VB2)}')
I(f'v_subrev_u32 {v(VPA2)}, 32, {v(V_PF)}')
I(f'v_add_u32 {v(VRED)}, {LDS_RED}, {v(V_L16)}')
I(f's_mul_i32 {s(S_T3)}, {s(S_WAVE)}, {15 * 1024}')
I(f'v_add_u32 {v(VRED2)}, {s(S_T3)}, {v(VRED)}')
I(f'v_add_u32 {v(VWO2)}, 65536, {v(V_L16)}')


def wodma(f):
    i, nb = divmod(f, 5)
    if nb == 0 or nb == 4:
        I(f's_add_u32 m0, {s(S_WOM)}, {LDS_WO + (i * 5 + (4 if nb == 4 else 0)) * 1024}')
    I(f'buffer_load_dwordx4 {v(V_L16 if nb < 4 else V_L16B)}, {s(SRD_WS, 4)}, {s(S_WOB)} offen offset:{(nb & 3) * 1024} sc1 lds')
    if nb == 4:
        I(f's_add_u32 {s(S_WOB)}, {s(S_WOB)}, 40960')


def oreg(ks):
    return a(4 * W2ORDER[ks], 4)


def oloads():
    for ks in range(20):
        if ks % 8 == 0 and ks:
            I(f's_add_u32 {s(S_OBASE)}, {s(S_OBASE)}, 8192')
        I(f'buffer_load_dwordx4 {oreg(ks)}, {v(V_L16 if (ks & 7) < 4 else V_L16B)}, {s(SRD_WS, 4)}, {s(S_OBASE)} offen offset:{(ks & 3) * 1024} sc1')


aux2 = [[] for _ in range(14)]
for st in range(14 - HWN):
    pass
extra = [lambda f=f: wodma(f) for f in range(25)]
for nb in range(5):
    extra.append(lambda nb=nb: I(f'buffer_load_dwordx2 {v(XIN + 2 * nb, 2)}, {v(VXO)}, {s(SRD_X, 4)}, 0 offen offset:{32 * nb}'))
    extra.append(lambda nb=nb: I(f'buffer_load_dwordx2 {v(B2V + 2 * nb, 2)}, {v(VB2)}, {s(SRD_B2, 4)}, 0 offen offset:{32 * nb}'))
for st in range(14):
    if st == 12:
        k.wait_all(vm=True, lg=False)
        chk_eval()
        I(f's_mov_b32 {s(S_OOK)}, 0')
        lab = k.newlabel('L_noo')
        I(f's_cbranch_vccnz {lab}')
        I(f's_mov_b32 {s(S_OOK)}, 1')
        oloads()
        k.vmq = []
        k.label(lab)
    for mb in range(4):
        for nb in range(5):
            d = YACC + (mb * 5 + nb) * 4
            c_ = '0' if st == 0 else v(d, 4)
            I(f'v_mfma_f32_16x16x32_bf16 {v(d, 4)}, {w2reg(st, nb)}, {v(HW + 16 * (st % HWN) + 4 * mb, 4)}, {c_}')
            if nb == 2 and extra and st < 9:
                extra.pop(0)()
        if st + HWN < 14:
            hload(st + HWN, mb)
    if st == 9:
        assert not extra
        chk_issue(VPA2)
stamp(8)
labs = [k.newlabel('L_red') for _ in range(4)]
lend = k.newlabel('L_redend')
stw = k.state()
YOWN = HW
for w in range(4):
    k.set_state(stw)
    if w:
        k.label(labs[w])
    if w < 3:
        I(f's_cmp_eq_u32 {s(S_WAVE)}, {w}')
        I(f's_cbranch_scc0 {labs[w + 1]}')
    I('s_nop 7')
    r = 0
    for i in range(1, 4):
        mb = (w + i) & 3
        for nb in range(5):
            I(f'ds_write_b128 {v(VRED)}, {v(YACC + (mb * 5 + nb) * 4, 4)} offset:{((mb * 3 + i - 1) * 5 + nb) * 1024}')
            for _ in range(2):
                if r < 20:
                    I(f'v_mov_b32 {v(YOWN + r)}, {v(YACC + w * 20 + r)}')
                    r += 1
    if w < 3:
        I(f's_branch {lend}')
k.label(lend)
k.wait_all(vm=False, lg=True)
I('s_barrier')
YT = HW + 20
for i in range(3):
    for nb in range(5):
        I(f'ds_read_b128 {v(YT + 20 * i + 4 * nb, 4)}, {v(VRED2)} offset:{(i * 5 + nb) * 1024}')
for i in range(3):
    for r in range(10):
        I(f'v_pk_add_f32 {v(YOWN + 2 * r, 2)}, {v(YOWN + 2 * r, 2)}, {v(YT + 20 * i + 2 * r, 2)}')
WOW = YACC
LA2 = 12


def woread(n):
    off = LDS_WO + n * 1024
    if off < 65536:
        I(f'ds_read_b128 {v(WOW + 4 * (n % 16), 4)}, {v(V_L16)} offset:{off}')
    else:
        I(f'ds_read_b128 {v(WOW + 4 * (n % 16), 4)}, {v(VWO2)} offset:{off - 65536}')


for n in range(LA2):
    woread(n)
G1 = YT
for half in range(2):
    rr = range(5 * half, 5 * half + 5)
    seq = [
        lambda y, p, r: f'v_cvt_pk_bf16_f32 {v(p)}, {v(y)}, {v(y + 1)}',
        lambda y, p, r: f'v_lshlrev_b32 {v(y)}, 16, {v(p)}',
        lambda y, p, r: f'v_and_b32 {v(y + 1)}, {s(S_HI)}, {v(p)}',
        lambda y, p, r: f'v_lshlrev_b32 {v(p)}, 16, {v(B2V + r)}',
        lambda y, p, r: f'v_and_b32 {v(p + 1)}, {s(S_HI)}, {v(B2V + r)}',
        lambda y, p, r: f'v_pk_add_f32 {v(y, 2)}, {v(y, 2)}, {v(p, 2)}',
        lambda y, p, r: f'v_cvt_pk_bf16_f32 {v(p)}, {v(y)}, {v(y + 1)}',
        lambda y, p, r: f'v_lshlrev_b32 {v(y)}, 16, {v(p)}',
        lambda y, p, r: f'v_and_b32 {v(y + 1)}, {s(S_HI)}, {v(p)}',
        lambda y, p, r: f'v_mul_f32 {v(p)}, {s(S_NL2E)}, {v(y)}',
        lambda y, p, r: f'v_mul_f32 {v(p + 1)}, {s(S_NL2E)}, {v(y + 1)}',
        lambda y, p, r: f'v_exp_f32 {v(p)}, {v(p)}',
        lambda y, p, r: f'v_exp_f32 {v(p + 1)}, {v(p + 1)}',
        lambda y, p, r: f'v_add_f32 {v(p)}, 1.0, {v(p)}',
        lambda y, p, r: f'v_add_f32 {v(p + 1)}, 1.0, {v(p + 1)}',
        lambda y, p, r: f'v_rcp_f32 {v(p)}, {v(p)}',
        lambda y, p, r: f'v_rcp_f32 {v(p + 1)}, {v(p + 1)}',
        lambda y, p, r: f'v_pk_mul_f32 {v(y, 2)}, {v(y, 2)}, {v(p, 2)}',
        lambda y, p, r: f'v_cvt_pk_bf16_f32 {v(p)}, {v(y)}, {v(y + 1)}',
        lambda y, p, r: f'v_lshlrev_b32 {v(y)}, 16, {v(p)}',
        lambda y, p, r: f'v_and_b32 {v(y + 1)}, {s(S_HI)}, {v(p)}',
    ]
    for fn in seq:
        for r in rr:
            I(fn(YOWN + 2 * r, G1 + 2 * r, r))
for r in range(10):
    I(f'v_lshlrev_b32 {v(G1 + 2 * r)}, 16, {v(XIN + r)}')
    I(f'v_and_b32 {v(G1 + 2 * r + 1)}, {s(S_HI)}, {v(XIN + r)}')
lab = k.newlabel('L_haveo')
I(f's_cmp_eq_u32 {s(S_OOK)}, 1')
I(f's_cbranch_scc1 {lab}')
poll(VPA2, 'att')
oloads()
k.label(lab)
stamp(1, 3)
for n in range(100):
    ks, nb = divmod(n, 5)
    d = SACC + 4 * nb
    c_ = '0' if ks == 0 else v(d, 4)
    if n % 2 == 0:
        k._need(regs_of(v(WOW + 4 * (n % 16), 8)))
    I(f'v_mfma_f32_16x16x32_bf16 {v(d, 4)}, {v(WOW + 4 * (n % 16), 4)}, {oreg(ks)}, {c_}')
    if n + LA2 < 100:
        woread(n + LA2)
PT = YT + 20
seq = [
    lambda sx, y, p, r: f'v_cvt_pk_bf16_f32 {v(p)}, {v(sx)}, {v(sx + 1)}',
    lambda sx, y, p, r: f'v_lshlrev_b32 {v(sx)}, 16, {v(p)}',
    lambda sx, y, p, r: f'v_and_b32 {v(sx + 1)}, {s(S_HI)}, {v(p)}',
    lambda sx, y, p, r: f'v_pk_mul_f32 {v(sx, 2)}, {v(sx, 2)}, {v(y, 2)}',
    lambda sx, y, p, r: f'v_cvt_pk_bf16_f32 {v(p)}, {v(sx)}, {v(sx + 1)}',
    lambda sx, y, p, r: f'v_lshlrev_b32 {v(sx)}, 16, {v(p)}',
    lambda sx, y, p, r: f'v_and_b32 {v(sx + 1)}, {s(S_HI)}, {v(p)}',
    lambda sx, y, p, r: f'v_pk_add_f32 {v(sx, 2)}, {v(sx, 2)}, {v(G1 + 2 * r, 2)}',
    lambda sx, y, p, r: f'v_cvt_pk_bf16_f32 {v(XIN + r)}, {v(sx)}, {v(sx + 1)}',
]
for nb in range(5):
    for fn in seq:
        for r in (2 * nb, 2 * nb + 1):
            I(fn(SACC + 2 * r, YOWN + 2 * r, PT + r, r))
    I(f'buffer_store_dwordx2 {v(XIN + 2 * nb, 2)}, {v(VXO)}, {s(SRD_OUT, 4)}, 0 offen offset:{32 * nb}')
if STAMPS:
    stamp(9, -1)
    k.wait_all()
    I(f's_lshl_b32 {s(S_T3)}, {s(S_WG)}, 8')
    I(f's_lshl_b32 {s(S_T4)}, {s(S_WAVE)}, 6')
    I(f's_add_u32 {s(S_T3)}, {s(S_T3)}, {s(S_T4)}')
    I(f's_add_u32 {s(S_T3)}, {s(S_T3)}, {STAMP_OFF}')
    I(f'v_mov_b32 {v(T2)}, 0')
    I('s_mov_b64 exec, 1')
    for i in range(10):
        I(f'v_mov_b32 {v(T2 + 1)}, {s(S_STAMP + 2 * i)}')
        I(f'buffer_store_dword {v(T2 + 1)}, {v(T2)}, {s(SRD_WS, 4)}, {s(S_T3)} offen offset:{4 * i}')
    I(f'v_mov_b32 {v(T2 + 1)}, {s(S_OOK)}')
    I(f'buffer_store_dword {v(T2 + 1)}, {v(T2)}, {s(SRD_WS, 4)}, {s(S_T3)} offen offset:56')
    I(f'v_mov_b32 {v(T2 + 1)}, {s(S_TYPE)}')
    I(f'buffer_store_dword {v(T2 + 1)}, {v(T2)}, {s(SRD_WS, 4)}, {s(S_T3)} offen offset:60')
if '--dbg' in sys.argv:
    for i in range(10):
        I(f's_sub_u32 {s(S_T4)}, {s(S_STAMP + 2 * i)}, {s(S_TAG)}')
        I(f's_add_u32 {s(S_T4)}, {s(S_T4)}, 1000')
        I(f'v_mov_b32 {v(T2 + 1)}, {s(S_T4)}')
        I(f'buffer_atomic_umax {v(T2 + 1)}, {v(T2)}, {s(SRD_DBG, 4)}, 0 offen offset:{4 + 4 * i} sc1')
if '--padx' in sys.argv:
    for i in range(2048):
        I(f'v_add3_u32 {v(16 + i % 8)}, {v(16 + i % 8)}, v2, v3')
if '--pady' in sys.argv:
    I(f's_mov_b32 {s(S_T3)}, 0')
    k.label('L_pady')
    for i in range(64):
        I(f'v_add3_u32 {v(16 + i % 8)}, {v(16 + i % 8)}, v2, v3')
    I(f's_add_u32 {s(S_T3)}, {s(S_T3)}, 1')
    I(f's_cmp_lt_u32 {s(S_T3)}, 32')
    I('s_cbranch_scc1 L_pady')
k.label('L_end')
I('s_endpgm')

hdr = open('recurrent_scan__sliding_local_dilated__dense_activation_gelu__prompt.s.ref').read().split('\n')
head = [l for l in hdr if l.startswith(';') and '@launch' not in l and 'Override' not in l and 'grid=ceil' not in l]
print('\n'.join(head))
print(f'; @launch grid=(256,1,1) block=(256,1,1) lds={LDS_TOTAL}')
print(f'''.amdgcn_target "amdgcn-amd-amdhsa--gfx950"
.text
.globl {KNAME}
.p2align 8
.type {KNAME},@function
{KNAME}:''')
print(k.text())
print(f'''.section .rodata,"a"
.p2align 6
.amdhsa_kernel {KNAME}
  .amdhsa_next_free_vgpr 512
  .amdhsa_next_free_sgpr 102
  .amdhsa_accum_offset 256
  .amdhsa_group_segment_fixed_size 0
  .amdhsa_kernarg_size 88
  .amdhsa_user_sgpr_count 2
  .amdhsa_user_sgpr_kernarg_segment_ptr 1
  .amdhsa_system_sgpr_workgroup_id_x 1
  .amdhsa_float_denorm_mode_32 3
.end_amdhsa_kernel''')
```

```python
import sys, struct
from asmlib import *

KNAME = 'recurrent_scan__sliding_local_dilated__dense_activation_gelu__prompt_kernel'
STAMPS = '--stamps' in sys.argv


def opt(name, default):
    for x in sys.argv:
        if x.startswith(f'--{name}='):
            return int(x.split('=')[1])
    return default


SMODE = opt('smode', 0)

XN_T = 0
ACT_T = 128 * 20 * 1024
ACT_MB = 74 * 1024
W_T = ACT_T + 128 * ACT_MB
LNF = W_T + 74 * 40 * 1024
P1F = LNF + 16 * 128
WTF = P1F + 16 * 128
WS_USED = WTF + 1024
STAMP_OFF = WS_USED
WS_REC = WS_USED + (256 * 4 * 64 if STAMPS else 0)
OOB = 0x40000000

RROW = 1056
SLOT = 16 * RROW
NSLOT = 8
HALO = NSLOT * SLOT
CNT = HALO + 20 * 1024
RS = 592
LDS_RED = 0
LDS_WO = 60 * 1024
LDS_TOTAL = 163840


def f32(x):
    return '0x%08x' % struct.unpack('<I', struct.pack('<f', x))[0]


S_WG, S_FOFF = 2, 3
SRD_X, SRD_B, SRD_WS, SRD_DBG, SRD_OUT, SRD_RT, SRD_B1, SRD_B2 = 4, 8, 12, 16, 20, 24, 28, 56
P_X, P_WQKV, P_WO, P_BX, P_W1, P_B1, P_W2, P_B2, P_OUT, P_DBG, P_WS = 32, 34, 36, 38, 40, 42, 44, 46, 48, 50, 52
S_WAVE, S_MT, S_TYPE, S_IDX, S_FB, S_PITCH, S_KSTR, S_START = 60, 61, 62, 63, 64, 65, 66, 67
S_T0, S_T1, S_T2, S_T3, S_T4, S_T5 = 68, 69, 70, 71, 72, 73
S_M0B, S_SOFF, S_M2, S_NT, S_SPIN, S_TAG = 74, 75, 76, 77, 78, 79
S_STAMP = 80
S_W2A, S_W2B = 100, 101
S_WOB, S_WOM, S_LAST = 16, 17, 18
S_HB, S_MB0 = 32, 33
S_AO = 36

V_LANE = 1
V_DMA = 2
V_TR0, V_TR1 = 6, 7
V_TRH0, V_TRH1 = 8, 9
V_L16 = 10
V_L16B = 11
V_PA = 12
V_POLL = 13
V_X = 14
V_PF = 15
ACC = 16
HACC = 136
WIN = 148
HX = 180
T = 188
BIAS = 226
W2V = 228
P4 = 252

k = K()
I = k.I


def stamp(idx, mode=0):
    if STAMPS and (mode == SMODE or mode == -1):
        I(f'{"s_memtime" if "--cyc" in sys.argv else "s_memrealtime"} {s(S_STAMP + 2 * idx, 2)}')


def srd(base, plo, nbytes):
    I(f's_mov_b32 {s(base)}, {s(plo)}')
    I(f's_mov_b32 {s(base + 1)}, {s(plo + 1)}')
    I(f's_mov_b32 {s(base + 2)}, {nbytes}')
    I(f's_mov_b32 {s(base + 3)}, 0x00020000')


def csel(dst, x, y):
    I(f's_mov_b32 {s(dst)}, {y}')
    I(f's_cselect_b32 {s(dst)}, {x}, {s(dst)}')


def chk_issue(addrv, n=1):
    if n == 1:
        I(f'buffer_load_dword {v(V_POLL)}, {v(addrv)}, {s(SRD_WS, 4)}, 0 offen sc1')
    else:
        I(f'buffer_load_dwordx4 {v(P4, 4)}, {v(addrv)}, {s(SRD_WS, 4)}, 0 offen sc1')


def chk_eval(n=1):
    if n == 1:
        I(f'v_cmp_ne_u32 vcc, {s(S_TAG)}, {v(V_POLL)}')
    else:
        for i in range(4):
            I(f'v_xor_b32 {v(P4 + i)}, {s(S_TAG)}, {v(P4 + i)}')
        I(f'v_or3_b32 {v(P4)}, {v(P4)}, {v(P4 + 1)}, {v(P4 + 2)}')
        I(f'v_or_b32 {v(P4)}, {v(P4)}, {v(P4 + 3)}')
        I(f'v_cmp_ne_u32 vcc, 0, {v(P4)}')


def poll(addrv, name, n=1, preissued=False):
    lab = k.newlabel('L_poll_' + name)
    done = k.newlabel('L_polled_' + name)
    if not preissued:
        chk_issue(addrv, n)
    chk_eval(n)
    I(f's_mov_b32 {s(S_SPIN)}, 0')
    I(f's_cbranch_vccz {done}')
    st = k.state()
    k.label(lab)
    I('s_sleep 1')
    chk_issue(addrv, n)
    k.wait_all(vm=True, lg=False)
    chk_eval(n)
    I(f's_add_u32 {s(S_SPIN)}, {s(S_SPIN)}, 1')
    I(f's_cbranch_vccz {done}')
    I(f's_cmp_lt_u32 {s(S_SPIN)}, 0x40000')
    I(f's_cbranch_scc1 {lab}')
    k.label(done)
    k.set_state(st)


def flag_store(base, offs, t0):
    I(f'v_mov_b32 {v(t0)}, {s(S_TAG)}')
    I(f'v_mov_b32 {v(t0 + 1)}, {base}')
    I('s_mov_b64 exec, 1')
    I(f'buffer_store_dword {v(t0)}, {v(t0 + 1)}, {s(SRD_WS, 4)}, {s(offs)} offen sc1')
    I('s_mov_b64 exec, -1')
    k.vmq.pop()


def dma1(j, soff_reg, tag):
    I(f'buffer_load_dwordx4 {v(V_DMA + j)}, {s(SRD_B, 4)}, {s(soff_reg)} offen offset:{j * RROW} lds', tag=tag)


def bf16r(dst, src):
    I(f'v_cvt_pk_bf16_f32 {v(dst)}, {v(src)}, {v(src)}')
    I(f'v_lshlrev_b32 {v(dst)}, 16, {v(dst)}')


def row_sum(r, t1):
    for sh in (4, 8):
        I(f'v_add_f32_dpp {v(r)}, {v(r)}, {v(r)} row_ror:{sh} row_mask:0xf bank_mask:0xf')
    for op in ('v_permlane16_swap_b32', 'v_permlane32_swap_b32'):
        I(f'v_mov_b32 {v(t1)}, {v(r)}')
        I(f'{op} {v(r)}, {v(t1)}')
        I(f'v_add_f32 {v(r)}, {v(r)}, {v(t1)}')


I(f's_cmp_ge_u32 {s(S_WG)}, 256')
I('s_cbranch_scc1 L_end')
I(f's_load_dwordx16 {s(32, 16)}, s[0:1], 0')
I(f's_load_dwordx4 {s(48, 4)}, s[0:1], 64')
I(f's_load_dwordx2 {s(52, 2)}, s[0:1], 80')
stamp(0, -1)
I(f'v_lshrrev_b32 {v(T)}, 6, v0')
I(f'v_and_b32 {v(V_LANE)}, 63, v0')
I(f'v_readfirstlane_b32 {s(S_WAVE)}, {v(T)}')
I(f'v_mov_b32 {v(T + 2)}, 0')
I(f'v_mov_b32 {v(T + 3)}, 0')
I(f'v_mov_b32 {v(T + 1)}, {CNT}')
I(f'ds_write_b64 {v(T + 1)}, {v(T + 2, 2)}')
I(f's_cmp_lt_u32 {s(S_WAVE)}, 2')
I('s_cbranch_scc1 L_nocp')
CPV = T + 35
I(f's_getpc_b64 {s(S_TAG - 1, 2)}')
k.label('L_pc')
I(f's_lshr_b32 {s(S_T3)}, {s(S_WG)}, 2')
I(f's_and_b32 {s(S_T3)}, {s(S_T3)}, 6')
I(f's_and_b32 {s(S_T4)}, {s(S_WAVE)}, 1')
I(f's_add_u32 {s(S_T3)}, {s(S_T3)}, {s(S_T4)}')
I(f's_lshl_b32 {s(S_T3)}, {s(S_T3)}, 13')
I(f'v_lshl_add_u32 {v(CPV)}, {v(V_LANE)}, 7, {s(S_T3)}')
I(f'v_min_u32 {v(CPV)}, L_end-L_pc, {v(CPV)}')
I(f'global_load_dword {v(T + 17)}, {v(CPV)}, {s(S_TAG - 1, 2)}')
k.vmq.pop()
k.label('L_nocp')
I(f's_and_b32 {s(S_T0)}, {s(S_WG)}, 7')
I(f's_lshr_b32 {s(S_T1)}, {s(S_WG)}, 3')
I(f's_and_b32 {s(S_MT)}, {s(S_T0)}, 1')
I(f's_lshl_b32 {s(S_MT)}, {s(S_MT)}, 3')
I(f's_and_b32 {s(S_T2)}, {s(S_T1)}, 7')
I(f's_add_u32 {s(S_MT)}, {s(S_MT)}, {s(S_T2)}')
I(f's_lshr_b32 {s(S_T2)}, {s(S_T1)}, 3')
I(f's_and_b32 {s(S_TYPE)}, {s(S_T2)}, 1')
I(f's_lshr_b32 {s(S_T2)}, {s(S_T2)}, 1')
I(f's_and_b32 {s(S_IDX)}, {s(S_T0)}, 6')
I(f's_add_u32 {s(S_IDX)}, {s(S_IDX)}, {s(S_T2)}')
I(f's_lshl_b32 {s(S_FB)}, {s(S_MT)}, 4')
I(f's_lshl_b32 {s(S_T2)}, {s(S_TYPE)}, 3')
I(f's_add_u32 {s(S_FB)}, {s(S_FB)}, {s(S_T2)}')
I(f's_add_u32 {s(S_FB)}, {s(S_FB)}, {s(S_IDX)}')
I(f's_cmp_eq_u32 {s(S_TYPE)}, 0')
csel(S_PITCH, 3840, 3456)
LR, LP, LXA = T + 4, T + 5, T + 6
I(f'v_and_b32 {v(LR)}, 3, {v(V_LANE)}')
I(f'v_lshrrev_b32 {v(LP)}, 2, {v(V_LANE)}')
I(f's_lshl_b32 {s(S_T3)}, {s(S_FB)}, 3')
I(f's_lshl_b32 {s(S_T4)}, {s(S_WAVE)}, 2')
I(f's_add_u32 {s(S_T3)}, {s(S_T3)}, {s(S_T4)}')
I(f'v_add_u32 {v(LR)}, {s(S_T3)}, {v(LR)}')
I(f'v_mul_u32_u24 {v(LXA)}, 1280, {v(LR)}')
I(f'v_lshl_add_u32 {v(LXA)}, {v(LP)}, 4, {v(LXA)}')
PFL = 0
I(f'v_and_b32 {v(T + 32)}, 15, {v(V_LANE)}')
I(f's_cmp_eq_u32 {s(S_TYPE)}, 0')
I(f's_cselect_b32 {s(S_T3)}, 8, 6')
I(f's_cselect_b32 {s(S_T4)}, {1280 - 384}, 0')
csel(S_M0B, 160, 448)
I(f'v_min_u32 {v(T + 32)}, {s(S_T3)}, {v(T + 32)}')
I(f'v_mul_u32_u24 {v(T + 33)}, 11, {v(T + 32)}')
I(f'v_lshrrev_b32 {v(T + 33)}, 5, {v(T + 33)}')
I(f'v_mul_u32_u24 {v(T + 33)}, {s(S_T4)}, {v(T + 33)}')
I(f'v_lshl_add_u32 {v(PFL)}, {v(T + 32)}, 7, {v(T + 33)}')
I(f'v_lshrrev_b32 {v(T + 32)}, 4, {v(V_LANE)}')
I(f'v_mad_u32_u24 {v(PFL)}, {v(T + 32)}, {s(S_PITCH)}, {v(PFL)}')
I(f's_and_b32 {s(S_T3)}, {s(S_IDX)}, 6')
I(f's_mul_i32 {s(S_M0B)}, {s(S_M0B)}, {s(S_T3)}')
I(f'v_add_u32 {v(PFL)}, {s(S_M0B)}, {v(PFL)}')
I(f's_and_b32 {s(S_KSTR)}, {s(S_MT)}, 7')
I(f's_lshl_b32 {s(S_KSTR)}, {s(S_KSTR)}, 1')
I(f's_and_b32 {s(S_T4)}, {s(S_IDX)}, 1')
I(f's_add_u32 {s(S_KSTR)}, {s(S_KSTR)}, {s(S_T4)}')
assert all((x * 11) >> 5 == x // 3 for x in range(9))
k.wait_all(vm=False, lg=True)
stamp(1, 2)
I('s_barrier')
srd(SRD_X, P_X, 2048 * 1280)
srd(SRD_DBG, P_DBG, 256)
XR = T + 8
TAGV = T + 36
I(f's_cmp_ge_u32 {s(S_WAVE)}, 2')
I('s_cbranch_scc1 L_pf')

for i in range(5):
    I(f'buffer_load_dwordx4 {v(XR + 4 * i, 4)}, {v(LXA)}, {s(SRD_X, 4)}, 0 offen offset:{256 * i}', tag='x')
I(f'buffer_load_dword {v(TAGV)}, {v(T + 2)}, {s(SRD_DBG, 4)}, 0 offen sc1')
srd(SRD_WS, P_WS, WS_REC)
I(f's_lshl_b32 {s(S_FOFF)}, {s(S_MT)}, 7')
I(f's_and_b32 {s(S_T2)}, {s(S_FB)}, 15')
I(f's_lshl_b32 {s(S_T2)}, {s(S_T2)}, 2')
I(f's_add_u32 {s(S_FOFF)}, {s(S_FOFF)}, {s(S_T2)}')
XF = ACC
SA_ = T + 3
I(f'v_lshrrev_b32 {v(SA_)}, 4, {v(LR)}')
I(f'v_mul_u32_u24 {v(SA_)}, 20480, {v(SA_)}')
I(f'v_lshl_add_u32 {v(SA_)}, {v(LP)}, 8, {v(SA_)}')
I(f'v_and_b32 {v(T)}, 15, {v(LR)}')
I(f'v_lshl_add_u32 {v(SA_)}, {v(T)}, 4, {v(SA_)}')
I(f's_mov_b32 {s(S_T3)}, 0xffff0000')
stamp(2, 2)
if STAMPS and SMODE == 2:
    k.wait_vm_tag('x')
stamp(3, 2)
SUM = T + 4
for i in range(20):
    I(f'v_lshlrev_b32 {v(XF + 2 * i)}, 16, {v(XR + i)}')
    I(f'v_and_b32 {v(XF + 2 * i + 1)}, {s(S_T3)}, {v(XR + i)}')
    if i == 1:
        I(f'v_pk_add_f32 {v(SUM, 2)}, {v(XF, 2)}, {v(XF + 2, 2)}')
    elif i > 1:
        I(f'v_pk_add_f32 {v(SUM, 2)}, {v(SUM, 2)}, {v(XF + 2 * i, 2)}')
I(f'v_add_f32 {v(SUM)}, {v(SUM)}, {v(SUM + 1)}')
row_sum(SUM, SUM + 1)
MEAN = T + 6
I(f'v_mul_f32 {v(MEAN)}, {f32(1.0 / 640)}, {v(SUM)}')
I(f'v_mov_b32 {v(MEAN + 1)}, {v(MEAN)}')
SQ = T + 4
DV = T + 28
for i in range(20):
    d = DV + 2 * (i & 1)
    I(f'v_pk_add_f32 {v(d, 2)}, {v(XF + 2 * i, 2)}, {v(MEAN, 2)} neg_lo:[0,1] neg_hi:[0,1]')
    if i == 0:
        I(f'v_pk_mul_f32 {v(SQ, 2)}, {v(d, 2)}, {v(d, 2)}')
    else:
        I(f'v_pk_fma_f32 {v(SQ, 2)}, {v(d, 2)}, {v(d, 2)}, {v(SQ, 2)}')
I(f'v_add_f32 {v(SQ)}, {v(SQ)}, {v(SQ + 1)}')
row_sum(SQ, SQ + 1)
I(f'v_mul_f32 {v(SQ)}, {f32(1.0 / 640)}, {v(SQ)}')
bf16r(SQ, SQ)
I(f'v_add_f32 {v(SQ)}, {f32(1e-5)}, {v(SQ)}')
bf16r(SQ, SQ)
I(f'v_sqrt_f32 {v(SQ)}, {v(SQ)}')
bf16r(MEAN, MEAN)
bf16r(SQ, SQ)
I(f'v_rcp_f32 {v(SQ + 1)}, {v(SQ)}')
I(f'v_mov_b32 {v(MEAN + 1)}, {v(MEAN)}')
I(f'v_fma_f32 {v(SQ)}, -{v(SQ)}, {v(SQ + 1)}, 1.0')
I(f'v_fma_f32 {v(SQ)}, {v(SQ)}, {v(SQ + 1)}, {v(SQ + 1)}')
I(f'v_mov_b32 {v(SQ + 1)}, {v(SQ)}')
for i in range(20):
    x2 = XF + 2 * i
    I(f'v_pk_add_f32 {v(x2, 2)}, {v(x2, 2)}, {v(MEAN, 2)} neg_lo:[0,1] neg_hi:[0,1]')
    I(f'v_cvt_pk_bf16_f32 {v(XR + i)}, {v(x2)}, {v(x2 + 1)}')
    I(f'v_lshlrev_b32 {v(x2)}, 16, {v(XR + i)}')
    I(f'v_and_b32 {v(x2 + 1)}, {s(S_T3)}, {v(XR + i)}')
    I(f'v_pk_mul_f32 {v(x2, 2)}, {v(x2, 2)}, {v(SQ, 2)}')
    I(f'v_cvt_pk_bf16_f32 {v(XR + i)}, {v(x2)}, {v(x2 + 1)}')
    if i % 4 == 3:
        ii = i // 4
        I(f's_mov_b32 {s(S_T4)}, {XN_T + 4096 * ii}')
        I(f'buffer_store_dwordx4 {v(XR + 4 * ii, 4)}, {v(SA_)}, {s(SRD_WS, 4)}, {s(S_T4)} offen sc1')
stamp(1)
stamp(4, 2)
I(f'v_readfirstlane_b32 {s(S_TAG)}, {v(TAGV)}')
I(f'v_mov_b32 {v(T + 1)}, 0')
I(f's_mov_b32 {s(S_SPIN)}, 0')
I(f's_cmp_lg_u32 {s(S_TAG)}, 0')
I('s_cbranch_scc1 L_tagok')
k.label('L_tagpoll')
I(f'buffer_load_dword {v(TAGV)}, {v(T + 1)}, {s(SRD_DBG, 4)}, 0 offen sc1')
k.wait_all()
I(f'v_readfirstlane_b32 {s(S_TAG)}, {v(TAGV)}')
I(f's_add_u32 {s(S_SPIN)}, {s(S_SPIN)}, 1')
I(f's_cmp_lg_u32 {s(S_TAG)}, 0')
I('s_cbranch_scc1 L_tagok')
I(f's_cmp_lt_u32 {s(S_SPIN)}, 0x40000')
I('s_cbranch_scc1 L_tagpoll')
k.label('L_tagok')
I(f'v_mov_b32 {v(T + 1)}, {CNT}')
I(f'ds_write_b32 {v(T + 1)}, {v(TAGV)} offset:4')
I(f'v_mov_b32 {v(T)}, 1')
k.wait_all()
stamp(5, 2)
I('s_mov_b64 exec, 1')
I(f'ds_add_rtn_u32 {v(T + 2)}, {v(T + 1)}, {v(T)}')
I('s_mov_b64 exec, -1')
I(f'v_readfirstlane_b32 {s(S_T3)}, {v(T + 2)}')
I(f's_cmp_eq_u32 {s(S_T3)}, 1')
I('s_cbranch_scc0 L_common')
flag_store(LNF, S_FOFF, T)
I('s_branch L_common')

k.vmq = []
k.lgq = []
k.label('L_pf')
I(f's_cmp_lt_u32 {s(S_WG)}, 8')
I('s_cbranch_scc0 L_notag')
I(f's_cmp_eq_u32 {s(S_WAVE)}, 2')
I('s_cbranch_scc0 L_notag')
I(f's_memrealtime {s(S_T4, 2)}')
I(f's_or_b32 {s(S_T4)}, {s(S_T4)}, 1')
I(f'v_mov_b32 {v(T + 2)}, {s(S_T4)}')
I('s_mov_b64 exec, 1')
I(f'buffer_atomic_cmpswap {v(T + 2, 2)}, {v(T + 3)}, {s(SRD_DBG, 4)}, 0 offen sc1')
I('s_mov_b64 exec, -1')
k.label('L_notag')


def srd_b():
    I(f's_cmp_eq_u32 {s(S_TYPE)}, 0')
    I(f's_cselect_b32 {s(SRD_B)}, {s(P_WQKV)}, {s(P_W1)}')
    I(f's_cselect_b32 {s(SRD_B + 1)}, {s(P_WQKV + 1)}, {s(P_W1 + 1)}')
    csel(SRD_B + 2, 640 * 3840, 640 * 3456)
    I(f's_mov_b32 {s(SRD_B + 3)}, 0x00020000')


srd_b()
I(f's_lshl_b32 {s(S_T3)}, {s(S_KSTR)}, 1')
I(f's_and_b32 {s(S_T4)}, {s(S_WAVE)}, 1')
I(f's_add_u32 {s(S_T3)}, {s(S_T3)}, {s(S_T4)}')
I(f's_lshl_b32 {s(S_T4)}, {s(S_PITCH)}, 2')
I(f's_mul_i32 {s(S_SOFF)}, {s(S_T3)}, {s(S_T4)}')
I(f's_lshl_b32 {s(S_T4)}, {s(S_PITCH)}, 7')
I(f'buffer_load_dword {v(T + 12)}, {v(PFL)}, {s(SRD_B, 4)}, {s(S_SOFF)} offen')
I(f's_add_u32 {s(S_SOFF)}, {s(S_SOFF)}, {s(S_T4)}')
I(f'buffer_load_dword {v(T + 13)}, {v(PFL)}, {s(SRD_B, 4)}, {s(S_SOFF)} offen')

k.label('L_common')
k.vmq = [(set(), 'unknown')]
k.lgq = []
I('s_nop 4')
I(f's_lshl_b32 {s(S_FOFF)}, {s(S_MT)}, 7')
I(f's_and_b32 {s(S_T2)}, {s(S_FB)}, 15')
I(f's_lshl_b32 {s(S_T2)}, {s(S_T2)}, 2')
I(f's_add_u32 {s(S_FOFF)}, {s(S_FOFF)}, {s(S_T2)}')
I(f's_lshl_b32 {s(S_M2)}, {s(S_T0)}, 2')
I(f's_and_b32 {s(S_T2)}, {s(S_T1)}, 3')
I(f's_add_u32 {s(S_M2)}, {s(S_M2)}, {s(S_T2)}')
I(f's_lshr_b32 {s(S_NT)}, {s(S_T1)}, 2')
I(f's_mul_i32 {s(S_START)}, {s(S_IDX)}, 7')
I(f's_min_u32 {s(S_START)}, {s(S_START)}, 47')
I(f's_lshl_b32 {s(S_T3)}, {s(S_KSTR)}, 2')
I(f's_add_u32 {s(S_T3)}, {s(S_T3)}, {s(S_WAVE)}')
I(f's_add_u32 {s(S_T3)}, {s(S_T3)}, 64')
I(f's_lshl_b32 {s(S_T4)}, {s(S_PITCH)}, 2')
I(f's_mul_i32 {s(S_T3)}, {s(S_T3)}, {s(S_T4)}')
I(f'v_add_u32 {v(PFL)}, {s(S_T3)}, {v(PFL)}')
I(f's_lshl_b32 {s(S_KSTR)}, {s(S_PITCH)}, 5')
I(f'v_lshlrev_b32 {v(V_L16)}, 4, {v(V_LANE)}')
I(f'v_add_u32 {v(V_L16B)}, 4096, {v(V_L16)}')
srd(SRD_B1, P_B1, 1728 * 2)
I(f'v_lshlrev_b32 {v(T + 7)}, 3, {v(V_LANE)}')
I(f's_lshl_b32 {s(S_T5)}, {s(S_START)}, 6')
I(f'buffer_load_dwordx2 {v(BIAS, 2)}, {v(T + 7)}, {s(SRD_B1, 4)}, {s(S_T5)} offen', tag='pf')
I(f's_lshl_b32 {s(S_T0)}, {s(S_WG)}, 1')
I(f's_and_b32 {s(S_T1)}, {s(S_WAVE)}, 1')
I(f's_add_u32 {s(S_T0)}, {s(S_T0)}, {s(S_T1)}')
I(f's_mul_i32 {s(S_T1)}, {s(S_T0)}, 13108')
I(f's_lshr_b32 {s(S_T1)}, {s(S_T1)}, 16')
I(f's_mul_i32 {s(S_T2)}, {s(S_T1)}, 5')
I(f's_sub_u32 {s(S_T2)}, {s(S_T0)}, {s(S_T2)}')
assert all((u * 13108) >> 16 == u // 5 for u in range(512))
srd(SRD_WS, P_WS, WS_REC)
srd(SRD_OUT, P_OUT, 2048 * 1280)
srd(SRD_B2, P_B2, 640 * 2)
srd_b()
I(f's_cmp_lt_u32 {s(S_T1)}, 20')
I(f's_cselect_b32 {s(SRD_RT)}, {s(P_WO)}, {s(P_W2)}')
I(f's_cselect_b32 {s(SRD_RT + 1)}, {s(P_WO + 1)}, {s(P_W2 + 1)}')
csel(SRD_RT + 2, 640 * 1280, 1728 * 1280)
I(f's_mov_b32 {s(SRD_RT + 3)}, 0x00020000')
c, hf, sg = T, T + 1, T + 2
I(f'v_and_b32 {v(c)}, 31, {v(V_LANE)}')
I(f'v_lshrrev_b32 {v(hf)}, 5, {v(V_LANE)}')
S_CB = 34
I(f's_cmp_eq_u32 {s(S_TYPE)}, 0')
I(f's_cselect_b32 {s(S_T3)}, 29, 27')
I(f's_cselect_b32 {s(S_T4)}, 1120, 0')
I(f's_mul_i32 {s(S_CB)}, {s(S_IDX)}, 160')
I(f's_lshl_b32 {s(S_T5)}, {s(S_START)}, 6')
I(f's_cmp_eq_u32 {s(S_TYPE)}, 0')
I(f's_cselect_b32 {s(S_CB)}, {s(S_CB)}, {s(S_T5)}')
I(f'v_min_u32 {v(c)}, {s(S_T3)}, {v(c)}')
I(f'v_mul_u32_u24 {v(sg)}, 205, {v(c)}')
I(f'v_lshrrev_b32 {v(sg)}, 11, {v(sg)}')
I(f'v_mul_u32_u24 {v(sg)}, {s(S_T4)}, {v(sg)}')
I(f'v_lshl_add_u32 {v(sg)}, {v(c)}, 4, {v(sg)}')
I(f'v_add_u32 {v(sg)}, {s(S_CB)}, {v(sg)}')
I(f's_lshl_b32 {s(S_T3)}, {s(S_PITCH)}, 2')
I(f'v_mad_u32_u24 {v(V_DMA)}, {v(hf)}, {s(S_T3)}, {v(sg)}')
I(f's_sub_u32 {s(S_T3)}, {s(S_PITCH)}, {RROW}')
for j in range(1, 4):
    I(f'v_add_u32 {v(V_DMA + j)}, {s(S_T3)}, {v(V_DMA + j - 1)}')
assert all((c_ * 205) >> 11 == c_ // 10 for c_ in range(32))
NPRE = opt('npre', 6)
I(f's_mul_i32 {s(S_M0B)}, {s(S_WAVE)}, {4 * RROW}')
I(f's_lshl_b32 {s(S_T3)}, {s(S_PITCH)}, 3')
I(f's_mul_i32 {s(S_SOFF)}, {s(S_WAVE)}, {s(S_T3)}')
I(f's_mul_i32 {s(S_T3)}, {s(S_KSTR)}, {NPRE}')
I(f's_add_u32 {s(S_SOFF)}, {s(S_SOFF)}, {s(S_T3)}')
I(f'v_lshrrev_b32 {v(LP)}, 2, {v(V_LANE)}')
I(f'v_mul_u32_u24 {v(V_TR0)}, {RROW}, {v(LP)}')
I(f'v_and_b32 {v(T)}, 3, {v(V_LANE)}')
I(f'v_lshl_add_u32 {v(V_TR0)}, {v(T)}, 3, {v(V_TR0)}')
I(f'v_add_u32 {v(V_TR1)}, {4 * SLOT}, {v(V_TR0)}')
I(f's_mul_i32 {s(S_HB)}, {s(S_WAVE)}, 3')
I(f's_min_u32 {s(S_HB)}, {s(S_HB)}, 7')
I(f's_add_u32 {s(S_HB)}, {s(S_HB)}, 5')
I(f's_lshl_b32 {s(S_T3)}, {s(S_HB)}, 5')
I(f'v_add_u32 {v(V_TRH0)}, {s(S_T3)}, {v(V_TR0)}')
I(f'v_add_u32 {v(V_TRH1)}, {s(S_T3)}, {v(V_TR1)}')
I(f'v_add_u32 {v(V_X)}, {HALO}, {v(V_L16)}')
I(f's_lshl_b32 {s(S_MB0)}, {s(S_MT)}, 3')
I(f's_lshl_b32 {s(S_T3)}, {s(S_WAVE)}, 1')
I(f's_add_u32 {s(S_MB0)}, {s(S_MB0)}, {s(S_T3)}')
I(f's_mul_i32 {s(S_AO)}, {s(S_MB0)}, 20480')
for q in range(1, 10):
    I(f's_add_u32 {s(S_AO + q)}, {s(S_AO)}, {XN_T + 4096 * q}')
I(f'v_and_b32 {v(T)}, 15, {v(V_LANE)}')
I(f's_lshl_b32 {s(S_T3)}, {s(S_MT)}, 7')
I(f's_add_u32 {s(S_T3)}, {s(S_T3)}, {LNF}')
I(f'v_lshl_add_u32 {v(V_PA)}, {v(T)}, 2, {s(S_T3)}')
I(f's_cmp_eq_u32 {s(S_TYPE)}, 0')
I(f's_cselect_b32 {s(S_T3)}, {128 - 56}, 0')
I(f's_cmp_eq_u32 {s(S_MT)}, 0')
I(f's_cselect_b32 {s(S_T3)}, 0, {s(S_T3)}')
I(f'v_subrev_u32 {v(T + 1)}, {s(S_T3)}, {v(V_PA)}')
I(f'v_lshrrev_b32 {v(T)}, 1, {v(V_LANE)}')
I(f'v_cmp_eq_u32 vcc, 8, {v(T)}')
I(f'v_cndmask_b32 {v(V_PA)}, {v(V_PA)}, {v(T + 1)}, vcc')
I(f's_mul_i32 {s(S_T3)}, {s(S_WAVE)}, 14')
I(f's_add_u32 {s(S_T4)}, {s(S_T3)}, 7')
I(f's_min_u32 {s(S_T4)}, {s(S_T4)}, 47')
I(f's_mul_i32 {s(S_T5)}, {s(S_NT)}, 5120')
I(f's_add_u32 {s(S_T5)}, {s(S_T5)}, {W_T + 20 * 40960}')
I(f's_mul_i32 {s(S_W2A)}, {s(S_T3)}, 40960')
I(f's_add_u32 {s(S_W2A)}, {s(S_W2A)}, {s(S_T5)}')
I(f's_mul_i32 {s(S_W2B)}, {s(S_T4)}, 40960')
I(f's_add_u32 {s(S_W2B)}, {s(S_W2B)}, {s(S_T5)}')
I(f's_lshr_b32 {s(S_T3)}, {s(S_M2)}, 1')
I(f's_lshl_b32 {s(S_T3)}, {s(S_T3)}, 7')
I(f's_lshl_b32 {s(S_T4)}, {s(S_WAVE)}, 3')
I(f's_add_u32 {s(S_T3)}, {s(S_T3)}, {s(S_T4)}')
I(f's_add_u32 {s(S_T3)}, {s(S_T3)}, {P1F + 32 + 64}')
I(f'v_and_b32 {v(T)}, 1, {v(V_LANE)}')
I(f'v_lshl_add_u32 {v(V_PF)}, {v(T)}, 2, {s(S_T3)}')

I(f's_cmp_lt_u32 {s(S_WAVE)}, 2')
I('s_cbranch_scc1 L_pro_join')

RT_A, RT_B, RT_K0, RT_SCR, VW_M0, VW_SO = 46, 47, 48, 49, 50, 52
I(f's_cmp_lt_u32 {s(S_T1)}, 20')
csel(RT_A, 8 * 1280, 4 * 1280)
csel(RT_B, 4 * 1280, 16 * 1280)
I(f's_cselect_b32 {s(RT_K0)}, 0, 20')
I(f's_sub_u32 {s(RT_K0)}, {s(S_T1)}, {s(RT_K0)}')
I(f's_mul_i32 {s(RT_K0)}, {s(RT_K0)}, {32 * 1280}')
I(f's_lshl_b32 {s(S_T3)}, {s(S_T2)}, 8')
I(f's_add_u32 {s(RT_K0)}, {s(RT_K0)}, {s(S_T3)}')
I(f's_and_b32 {s(S_T3)}, {s(S_WAVE)}, 1')
I(f's_mul_i32 {s(VW_M0)}, {s(S_T3)}, {8 * RROW}')
I(f's_add_u32 {s(RT_SCR)}, {s(VW_M0)}, {7 * SLOT}')
I(f's_add_u32 {s(VW_M0 + 1)}, {s(VW_M0)}, {4 * RROW}')
I(f's_lshl_b32 {s(S_T4)}, {s(S_PITCH)}, 4')
I(f's_mul_i32 {s(VW_SO)}, {s(S_T3)}, {s(S_T4)}')
I(f's_lshl_b32 {s(S_T4)}, {s(S_PITCH)}, 3')
I(f's_add_u32 {s(VW_SO + 1)}, {s(VW_SO)}, {s(S_T4)}')
RTV, RTL = T + 8, T + 9
I(f'v_lshrrev_b32 {v(RTV)}, 4, {v(V_LANE)}')
I(f'v_mul_u32_u24 {v(RTV)}, 1280, {v(RTV)}')
I(f'v_and_b32 {v(T)}, 15, {v(V_LANE)}')
I(f'v_lshl_add_u32 {v(RTV)}, {v(T)}, 4, {v(RTV)}')
I(f'v_lshlrev_b32 {v(RTL)}, 8, {v(LP)}')
I(f'v_and_b32 {v(T)}, 3, {v(V_LANE)}')
I(f'v_lshl_add_u32 {v(RTL)}, {v(T)}, 3, {v(RTL)}')
I(f'v_add_u32 {v(RTL)}, {s(RT_SCR)}, {v(RTL)}')
stamp(2, 2)
for t in range(0 if '--nort' in sys.argv else 8):
    hf_, g = t >> 2, t & 3
    I(f's_mul_i32 {s(S_T3)}, {s(RT_A)}, {g}')
    I(f's_add_u32 {s(S_T3)}, {s(S_T3)}, {s(RT_K0)}')
    if hf_:
        I(f's_add_u32 {s(S_T3)}, {s(S_T3)}, {s(RT_B)}')
    I(f's_add_u32 m0, {s(RT_SCR)}, {1024 * t}')
    I(f'buffer_load_dwordx4 {v(RTV)}, {s(SRD_RT, 4)}, {s(S_T3)} offen lds', tag='rt')
I(f's_mul_i32 {s(S_T3)}, {s(S_T1)}, 40960')
I(f's_lshl_b32 {s(S_T4)}, {s(S_T2)}, 13')
I(f's_add_u32 {s(S_T3)}, {s(S_T3)}, {s(S_T4)}')
I(f's_add_u32 {s(S_T3)}, {s(S_T3)}, {W_T}')
I(f's_cmp_lt_u32 {s(S_T1)}, 74')
I(f's_cselect_b32 {s(S_T3)}, {s(S_T3)}, {OOB}')
k.wait_vm_tag('pf')
stamp(3, 2)
for sl in range(NPRE):
    for h in range(2):
        I(f's_add_u32 m0, {s(VW_M0 + h)}, {sl * SLOT}')
        for j in range(4):
            dma1(j, VW_SO + h, ('ring', sl))
        I(f's_add_u32 {s(VW_SO + h)}, {s(VW_SO + h)}, {s(S_KSTR)}')
    if sl >= 1:
        k.wait_vm_tag(('ring', sl - 1))
    if sl == min(1, NPRE - 1) and '--nort' not in sys.argv:
        stamp(4, 2)
        k.wait_vm_tag('rt')
        RF = ACC
        for nb in range(8):
            I(f'ds_read_b64_tr_b16 {v(RF + 4 * nb, 2)}, {v(RTL)} offset:{32 * nb}')
            I(f'ds_read_b64_tr_b16 {v(RF + 4 * nb + 2, 2)}, {v(RTL)} offset:{32 * nb + 4096}')
        for nb in range(8):
            I(f'buffer_store_dwordx4 {v(RF + 4 * nb, 4)}, {v(V_L16 if nb < 4 else V_L16B)}, {s(SRD_WS, 4)}, {s(S_T3)} offen offset:{1024 * (nb & 3)} sc1')
stamp(5, 2)
stamp(1)
k.wait_all(vm=False, lg=True)

k.label('L_pro_join')
k.vmq = [(set(), 'unknown')]
k.lgq = []
I('s_nop 4')
I(f's_mul_i32 {s(S_WOB)}, {s(S_WAVE)}, 40960')
I(f's_mul_i32 {s(S_T3)}, {s(S_NT)}, 5120')
I(f's_add_u32 {s(S_WOB)}, {s(S_WOB)}, {s(S_T3)}')
I(f's_add_u32 {s(S_WOB)}, {s(S_WOB)}, {W_T}')
I(f's_mul_i32 {s(S_WOM)}, {s(S_WAVE)}, {5 * 1024}')
WPF0, WPF1 = 224, 225
I(f'v_mul_u32_u24 {v(T)}, 205, {v(V_LANE)}')
I(f'v_lshrrev_b32 {v(T)}, 11, {v(T)}')
I(f'v_min_u32 {v(T)}, 5, {v(T)}')
I(f'v_mul_u32_u24 {v(T + 1)}, 10, {v(T)}')
I(f'v_sub_u32 {v(T + 1)}, {v(V_LANE)}, {v(T + 1)}')
I(f'v_min_u32 {v(T + 1)}, 9, {v(T + 1)}')
I(f's_and_b32 {s(S_T3)}, {s(S_M2)}, 3')
I(f's_mul_i32 {s(S_T3)}, {s(S_T3)}, 1280')
I(f'v_lshl_add_u32 {v(T + 1)}, {v(T + 1)}, 7, {s(S_T3)}')
I(f's_mov_b32 {s(S_T4)}, 40960')
I(f'v_mad_u32_u24 {v(WPF0)}, {v(T)}, {s(S_T4)}, {v(T + 1)}')
I(f's_add_u32 {s(S_T3)}, {s(S_W2A)}, {4 * 40960}')
I(f's_add_u32 {s(S_T4)}, {s(S_W2B)}, {1 * 40960}')
I(f'v_mov_b32 {v(T + 2)}, {s(S_T3)}')
I(f'v_mov_b32 {v(T + 3)}, {s(S_T4)}')
I(f'v_cmp_lt_u32 vcc, 2, {v(T)}')
I(f'v_cndmask_b32 {v(T + 2)}, {v(T + 2)}, {v(T + 3)}, vcc')
I(f'v_add_u32 {v(WPF0)}, {v(WPF0)}, {v(T + 2)}')
I(f'v_min_u32 {v(T)}, 4, {v(T)}')
I(f's_mov_b32 {s(S_T4)}, {4 * 40960}')
I(f'v_mad_u32_u24 {v(WPF1)}, {v(T)}, {s(S_T4)}, {v(T + 1)}')
I(f'v_add_u32 {v(WPF1)}, {s(S_WOB)}, {v(WPF1)}')
assert all((x * 205) >> 11 == x // 10 for x in range(64))
I(f's_cmp_eq_u32 {s(S_WAVE)}, 3')
I(f's_cselect_b32 {s(S_LAST)}, {OOB}, 0')
I(f's_cmp_eq_u32 {s(S_TYPE)}, 1')
I('s_cbranch_scc1 L_ffn')
st_join = k.state()


def ln_wait():
    lab = k.newlabel('L_lnw')
    I(f's_cmp_eq_u32 {s(S_WAVE)}, 0')
    I(f's_cbranch_scc0 {lab}')
    stamp(6, 2)
    poll(V_PA, 'ln')
    k.label(lab)
    k.wait_all()
    stamp(7, 2)
    I('s_barrier')
    stamp(8, 2)


def wt_flag():
    I(f's_lshl_b32 {s(S_T3)}, {s(S_WG)}, 2')
    I(f's_add_u32 {s(S_T3)}, {s(S_T3)}, {WTF}')
    I(f's_cmp_eq_u32 {s(S_WAVE)}, 1')
    I(f's_cselect_b32 {s(S_T3)}, {s(S_T3)}, {OOB}')
    I(f'v_mov_b32 {v(T)}, {s(S_TAG)}')
    I(f'v_lshlrev_b32 {v(T + 1)}, 24, {v(V_LANE)}')
    I(f'buffer_store_dword {v(T)}, {v(T + 1)}, {s(SRD_WS, 4)}, {s(S_T3)} offen sc1')


def tag_fetch():
    I(f'v_mov_b32 {v(T + 1)}, {CNT}')
    I(f'ds_read_b32 {v(T)}, {v(T + 1)} offset:4')
    I(f'v_readfirstlane_b32 {s(S_TAG)}, {v(T)}')


AWN = 6


def areg(ks, rb):
    return a(((ks % AWN) * 2 + rb) * 4, 4)


def load_A(ks, rb):
    I(f'buffer_load_dwordx4 {areg(ks, rb)}, {v(V_L16)}, {s(SRD_WS, 4)}, {s(S_AO + rb * 5 + ks // 4)} offen offset:{(ks & 3) * 1024} sc1')


W2ORDER = list(range(2 * AWN, 64)) + list(range(2 * AWN))
YSTEP = [(0, p) for p in range(4)] + [(1, p) for p in range(4)] + [(0, p) for p in range(4, 7)] + [(1, p) for p in range(4, 7)]


def w2reg(st, nb):
    f = st * 5 + nb
    return a(4 * W2ORDER[f], 4) if f < 64 else v(W2V + 4 * (f - 64), 4)


def w2load(f):
    st, nb = divmod(f, 5)
    ab, p = YSTEP[st]
    sb = S_W2B if ab else S_W2A
    if (ab, p) == (0, 5) and nb == 0:
        I(f's_add_u32 {s(sb)}, {s(sb)}, {s(S_LAST)}')
    I(f'buffer_load_dwordx4 {w2reg(st, nb)}, {v(V_L16 if nb < 4 else V_L16B)}, {s(SRD_WS, 4)}, {s(sb)} offen offset:{(nb & 3) * 1024} sc1')
    if nb == 4:
        I(f's_add_u32 {s(sb)}, {s(sb)}, 40960')


def wodma(i, nb):
    if nb == 0:
        I(f's_add_u32 {s(S_T5)}, {s(S_WOB)}, {i * 4 * 40960}')
    if nb == 0 or nb == 4:
        I(f's_add_u32 m0, {s(S_WOM)}, {LDS_WO + (i * 20 + (4 if nb == 4 else 0)) * 1024}')
    I(f'buffer_load_dwordx4 {v(V_L16 if nb < 4 else V_L16B)}, {s(SRD_WS, 4)}, {s(S_T5)} offen offset:{(nb & 3) * 1024} sc1 lds')


def mainloop(ncb, halo, first_c_zero, w2rate):
    NF = ncb + (3 if halo else 0)
    LA = 7
    items = [(ks, j) for ks in range(20) for j in range(NF)]
    N = len(items)
    aux = [[] for _ in range(20)]
    for ks in range(16):
        kn = ks + 4
        al = [lambda kn=kn, rb=rb: load_A(kn, rb) for rb in range(2)]
        dm = []
        if kn >= NPRE:
            for j in range(4):
                def f(j=j, kn=kn):
                    if j == 0:
                        I(f's_add_u32 m0, {s(S_M0B)}, {(kn % NSLOT) * SLOT}')
                    dma1(j, S_SOFF, ('dma', kn))
                    if j == 3:
                        I(f's_add_u32 {s(S_SOFF)}, {s(S_SOFF)}, {s(S_KSTR)}')
                dm.append(f)
        aux[ks] = dm[:2] + al[:1] + dm[2:] + al[1:]
    WTK = opt('wtk', 9)
    aux[WTK - 3].append(lambda: chk_issue(V_PA, 4))
    aux[0].append(lambda: I(f'buffer_load_dword {v(T + 3)}, {v(PFL)}, {s(SRD_B, 4)}, 0 offen'))

    def pf2b():
        I(f's_lshl_b32 {s(S_T3)}, {s(S_PITCH)}, 8')
        I(f'buffer_load_dword {v(T + 4)}, {v(PFL)}, {s(SRD_B, 4)}, {s(S_T3)} offen')
    aux[1].append(pf2b)
    if '--nowpf' not in sys.argv:
      aux[WTK + 1].append(lambda: I(f'buffer_load_dword {v(T + 5)}, {v(WPF0)}, {s(SRD_WS, 4)}, 0 offen sc1'))
      aux[WTK + 3].append(lambda: I(f'buffer_load_dword {v(T + 6)}, {v(WPF1)}, {s(SRD_WS, 4)}, 0 offen sc1'))
    f = 0
    for ks in range(WTK, 20):
        cnt = w2rate[0] if ks < 16 else w2rate[1]
        for _ in range(cnt):
            if f < 64 - 2 * AWN:
                aux[ks].append(lambda f=f: w2load(f))
                f += 1
    w2done = f

    def rd(n, half):
        ks, j = items[n]
        sl = ks % NSLOT
        w = WIN + 4 * (n % 8)
        if j < ncb:
            base = V_TR0 if sl < 4 else V_TR1
            off = (sl % 4) * SLOT + 32 * j
        else:
            base = V_TRH0 if sl < 4 else V_TRH1
            off = (sl % 4) * SLOT + 32 * (j - ncb)
        if j == 0 and half == 0 and ks >= 2 and ks % 2 == 0:
            if ks + 1 >= NPRE:
                k.wait_vm_tag(('dma', ks + 1))
            I('s_barrier')
        I(f'ds_read_b64_tr_b16 {v(w + 2 * half, 2)}, {v(base)} offset:{off + 512 * half}')
        if halo and j == ncb and half == 1:
            I(f'ds_read_b128 {v(HX + 4 * (ks & 1), 4)}, {v(V_X)} offset:{ks * 1024}')

    for n in range(LA):
        rd(n, 0)
        rd(n, 1)
    I(f'v_add_u32 {v(V_PA)}, {WTF}, {v(V_L16)}')
    for n in range(N):
        ks, j = items[n]
        w = WIN + 4 * (n % 8)
        if j == 0:
            pend = list(aux[ks])
            tot = len(pend)
            done = 0
            if ks in (0, 1, 2, 4, 8, 12, 16, 18):
                stamp(1 + (0, 1, 2, 4, 8, 12, 16, 18).index(ks), 1)
            if ks == WTK:
                poll(V_PA, 'wt', 4, preissued=True)
        if n % 2 == 0 and n + 1 < N:
            k._need(regs_of(v(WIN + 4 * ((n + 1) % 8), 4)) | regs_of(v(w, 4)))
        if j < ncb:
            for rb in range(2):
                d = ACC + (j * 2 + rb) * 4
                c_ = '0' if (ks == 0 and first_c_zero) else v(d, 4)
                I(f'v_mfma_f32_16x16x32_bf16 {v(d, 4)}, {v(w, 4)}, {areg(ks, rb)}, {c_}')
                if n + LA < N:
                    rd(n + LA, rb)
        else:
            d = HACC + (j - ncb) * 4
            c_ = '0' if ks == 0 else v(d, 4)
            I(f'v_mfma_f32_16x16x32_bf16 {v(d, 4)}, {v(w, 4)}, {v(HX + 4 * (ks & 1), 4)}, {c_}')
            if n + LA < N:
                rd(n + LA, 0)
                rd(n + LA, 1)
        while done < tot and done * NF <= j * tot + tot - 1 and (n % 2 == 0 or tot > NF // 2):
            pend[done]()
            done += 1
            if tot <= NF:
                break
        if j == NF - 1:
            while done < tot:
                pend[done]()
                done += 1
    return w2done


YACC = 16
SACC = 96
HW = 116
HWN = 5
XIN = 196
B2V = 206
T2 = 216
S_HO = 24
S_EARLY = 19


def h_scalars():
    I(f's_mul_i32 {s(S_T3)}, {s(S_M2)}, {4 * ACT_MB}')
    I(f's_add_u32 {s(S_T3)}, {s(S_T3)}, {ACT_T + 20 * 1024}')
    I(f's_mul_i32 {s(S_T4)}, {s(S_WAVE)}, 14')
    I(f's_add_u32 {s(S_T5)}, {s(S_T4)}, 7')
    I(f's_min_u32 {s(S_T5)}, {s(S_T5)}, 47')
    for ab, r in ((0, S_T4), (1, S_T5)):
        I(f's_lshl_b32 {s(r)}, {s(r)}, 10')
        I(f's_add_u32 {s(S_HO + 4 * ab)}, {s(S_T3)}, {s(r)}')
        for mb in range(1, 4):
            I(f's_add_u32 {s(S_HO + 4 * ab + mb)}, {s(S_HO + 4 * ab)}, {mb * ACT_MB}')


def hload(st, mb):
    ab, p = YSTEP[st]
    so = S_HO + 4 * ab + mb
    if (ab, p) == (0, 5):
        I(f's_add_u32 {s(so)}, {s(so)}, {s(S_LAST)}')
    I(f'buffer_load_dwordx4 {v(HW + 16 * (st % HWN) + 4 * mb, 4)}, {v(V_L16 if p < 4 else V_L16B)}, {s(SRD_WS, 4)}, {s(so)} offen offset:{(p & 3) * 1024} sc1')


def first_hloads():
    for st in range(HWN):
        for mb in range(4):
            hload(st, mb)


def publish():
    late, j1 = k.newlabel('L_late'), k.newlabel('L_pj')
    chk_eval()
    stamp(6, 4)
    I(f's_mov_b32 {s(S_EARLY)}, 0')
    I(f's_cbranch_vccnz {late}')
    I(f's_mov_b32 {s(S_EARLY)}, 1')
    first_hloads()
    stamp(7, 4)
    k._wait(vm=4 * HWN)
    I(f's_branch {j1}')
    k.label(late)
    k._wait(vm=0)
    k.label(j1)
    stamp(8, 4)
    k.wait_all(vm=False, lg=True)
    I('s_barrier')
    lab = k.newlabel('L_np')
    I(f's_cmp_eq_u32 {s(S_WAVE)}, 0')
    I(f's_cbranch_scc0 {lab}')
    flag_store(P1F, S_FOFF, T2)
    k.label(lab)


I(f's_lshl_b32 {s(S_T3)}, {s(S_MT)}, 3')
I(f's_sub_u32 {s(S_T3)}, {s(S_T3)}, 1')
I(f's_mul_i32 {s(S_T3)}, {s(S_T3)}, 20480')
I(f's_mul_i32 {s(S_T4)}, {s(S_WAVE)}, 5120')
I(f's_add_u32 {s(S_T3)}, {s(S_T3)}, {s(S_T4)}')
I(f's_cmp_eq_u32 {s(S_MT)}, 0')
I(f's_cselect_b32 {s(S_T5)}, {OOB}, {s(S_T3)}')
I(f'v_add_u32 {v(T + 2)}, {s(S_T4)}, {v(V_X)}')
SA = T + 28
SH = T + 33
tm, tg, tn, tq = T + 4, T + 5, T + 6, T + 7
I(f'v_and_b32 {v(tm)}, 15, {v(V_LANE)}')
I(f'v_lshrrev_b32 {v(tg)}, 4, {v(V_LANE)}')
I(f's_lshl_b32 {s(S_T3)}, {s(S_WAVE)}, 5')
I(f's_add_u32 {s(S_T3)}, {s(S_T3)}, 16')
I(f'v_add_u32 {v(tq)}, {s(S_T3)}, {v(tm)}')
I(f'v_mul_u32_u24 {v(tq)}, {RS}, {v(tq)}')
for cb in range(5):
    I(f'v_lshl_add_u32 {v(tn)}, {v(tg)}, 2, {16 * cb}')
    I(f'v_mul_u32_u24 {v(SA + cb)}, 205, {v(tn)}')
    I(f'v_lshrrev_b32 {v(SA + cb)}, 12, {v(SA + cb)}')
    I(f'v_lshl_add_u32 {v(SA + cb)}, {v(SA + cb)}, 2, {v(tn)}')
    I(f'v_lshl_add_u32 {v(SA + cb)}, {v(SA + cb)}, 1, {v(tq)}')
assert all((n * 205) >> 12 == n // 20 for n in range(0, 240, 4))
I(f'v_mul_u32_u24 {v(tq)}, {RS}, {v(tm)}')
for j in range(3):
    I(f's_add_u32 {s(S_T3)}, {s(S_HB)}, {j}')
    I(f's_lshl_b32 {s(S_T3)}, {s(S_T3)}, 4')
    I(f'v_lshl_add_u32 {v(tn)}, {v(tg)}, 2, {s(S_T3)}')
    I(f'v_mul_u32_u24 {v(SH + j)}, 205, {v(tn)}')
    I(f'v_lshrrev_b32 {v(SH + j)}, 12, {v(SH + j)}')
    I(f'v_lshl_add_u32 {v(SH + j)}, {v(SH + j)}, 2, {v(tn)}')
    I(f'v_lshl_add_u32 {v(SH + j)}, {v(SH + j)}, 1, {v(tq)}')
I(f's_mov_b32 {s(S_T2)}, {s(S_T5)}')
h_scalars()
ln_wait()
stamp(2)
for i in range(5):
    I(f'buffer_load_dwordx4 {v(T + 8 + 4 * i, 4)}, {v(V_L16 if i < 4 else V_L16B)}, {s(SRD_WS, 4)}, {s(S_T2)} offen offset:{(i & 3) * 1024} sc1')
for ks in range(4):
    for rb in range(2):
        load_A(ks, rb)
wt_flag()
tag_fetch()
for i in range(5):
    I(f'ds_write_b128 {v(T + 2)}, {v(T + 8 + 4 * i, 4)} offset:{i * 1024}')
k.wait_all(vm=False, lg=True)
I('s_barrier')
stamp(3)
w2done = mainloop(15, True, True, (opt('ra0', 2), opt('ra1', 8)))
stamp(4)
stamp(1, 4)
w2rest = [lambda f=f: w2load(f) for f in range(w2done, 70)] + [lambda i=i, nb=nb: wodma(i, nb) for i in (2, 3, 4) for nb in range(5)]
VA, VB, VO, K2M0, K2M1, NEG = T, T + 1, T + 2, T + 3, 224, 225
t1, t2, t3 = T + 4, T + 5, T + 6
I(f's_mul_i32 {s(S_T3)}, {s(S_WAVE)}, 48')
I(f'v_and_b32 {v(t1)}, 0x38, {v(V_LANE)}')
I(f'v_bfe_u32 {v(t2)}, {v(V_LANE)}, 2, 1')
I(f'v_add_u32 {v(t1)}, {v(t1)}, {v(t2)}')
I(f'v_and_b32 {v(t2)}, 3, {v(V_LANE)}')
I(f'v_lshl_add_u32 {v(t1)}, {v(t2)}, 1, {v(t1)}')
I(f'v_mul_u32_u24 {v(VA)}, {RS}, {v(t1)}')
I(f'v_add_u32 {v(VA)}, {s(S_T3)}, {v(VA)}')
I('s_barrier')
PK = T + 8
n = 0
for cbg in list(range(5, 15)) + list(range(5)):
    sec, cb = divmod(cbg, 5)
    for rb in range(2):
        d = ACC + (cbg * 2 + rb) * 4
        p = PK + 2 * (n % 4)
        n += 1
        I(f'v_cvt_pk_bf16_f32 {v(p)}, {v(d)}, {v(d + 1)}')
        I(f'v_cvt_pk_bf16_f32 {v(p + 1)}, {v(d + 2)}, {v(d + 3)}')
        I(f'ds_write_b64 {v(SA + cb)}, {v(p, 2)} offset:{sec * 192 + rb * 16 * RS}')
        if w2rest:
            w2rest.pop(0)()
for j in range(3):
    d = HACC + 4 * j
    p = PK + 2 * (n % 4)
    n += 1
    I(f'v_cvt_pk_bf16_f32 {v(p)}, {v(d)}, {v(d + 1)}')
    I(f'v_cvt_pk_bf16_f32 {v(p + 1)}, {v(d + 2)}, {v(d + 3)}')
    I(f'ds_write_b64 {v(SH + j)}, {v(p, 2)}')
I(f'v_and_b32 {v(VB)}, 0x30, {v(V_LANE)}')
I(f'v_bfe_u32 {v(t3)}, {v(V_LANE)}, 1, 1')
I(f'v_lshl_add_u32 {v(VB)}, {v(t3)}, 3, {v(VB)}')
I(f'v_and_b32 {v(t3)}, 1, {v(V_LANE)}')
I(f'v_add_u32 {v(VB)}, {v(VB)}, {v(t3)}')
I(f'v_bfe_u32 {v(t3)}, {v(V_LANE)}, 2, 2')
I(f'v_lshl_add_u32 {v(VB)}, {v(t3)}, 1, {v(VB)}')
I(f'v_mul_u32_u24 {v(VB)}, {RS}, {v(VB)}')
I(f'v_add_u32 {v(VB)}, {s(S_T3)}, {v(VB)}')
stamp(2, 4)
k.wait_all(vm=False, lg=True)
I('s_barrier')
stamp(3, 4)

TASKR = [16, 102]
for hf_ in range(2):
    R = TASKR[hf_]
    Q, Kr, Vr = R, R + 12, R + 48
    hb = hf_ * 64 * RS
    I(f'ds_read_b128 {v(Q, 4)}, {v(VA)} offset:{hb + 16 * RS}')
    I(f'ds_read_b128 {v(Q + 4, 4)}, {v(VA)} offset:{hb + 16 * RS + 16}')
    I(f'ds_read_b64 {v(Q + 8, 2)}, {v(VA)} offset:{hb + 16 * RS + 32}')
    for kg in range(3):
        o = hb + kg * 8 * RS + 192
        I(f'ds_read_b128 {v(Kr + 12 * kg, 4)}, {v(VA)} offset:{o}')
        I(f'ds_read_b128 {v(Kr + 12 * kg + 4, 4)}, {v(VA)} offset:{o + 16}')
        I(f'ds_read_b64 {v(Kr + 12 * kg + 8, 2)}, {v(VA)} offset:{o + 32}')
I(f'v_lshrrev_b32 {v(t3)}, 4, {v(t1)}')
I(f'v_mul_u32_u24 {v(VO)}, {ACT_MB}, {v(t3)}')
I(f'v_and_b32 {v(t3)}, 15, {v(t1)}')
I(f'v_lshl_add_u32 {v(VO)}, {v(t3)}, 4, {v(VO)}')
M1, M2, M3, INV1, INV01, INV02, INV03, SC_HI, SC_SCALE, SC_L2E, S_OB = 36, 38, 40, 42, 44, 46, 48, 50, 52, 54, 35
for reg, pat in ((M1, 0xeeeeeeee), (M2, 0xcccccccc), (M3, 0x88888888)):
    I(f's_mov_b32 {s(reg)}, {hex(pat)}')
    I(f's_mov_b32 {s(reg + 1)}, {hex(pat)}')
I(f'v_mov_b32 {v(t3)}, 0xffff')
I(f'v_cndmask_b32 {v(K2M0)}, {v(t3)}, -1, {s(M1, 2)}')
I(f'v_cndmask_b32 {v(K2M1)}, 0, {v(t3)}, {s(M2, 2)}')
I(f'v_cndmask_b32 {v(K2M1)}, {v(K2M1)}, -1, {s(M3, 2)}')
I(f'v_mov_b32 {v(NEG)}, {f32(-1e9)}')
I(f's_cmp_eq_u32 {s(S_MT)}, 0')
I(f's_cselect_b32 {s(INV1)}, 0xff, 0')
I(f's_cselect_b32 {s(INV01)}, 0x1111, 0')
I(f's_cselect_b32 {s(INV02)}, 0x3333, 0')
I(f's_cselect_b32 {s(INV03)}, 0x7777, 0')
for reg in (INV1, INV01, INV02, INV03):
    I(f's_mov_b32 {s(reg + 1)}, 0')
I(f's_mov_b32 {s(SC_HI)}, 0xffff0000')
I(f's_mov_b32 {s(SC_SCALE)}, {f32(20 ** -0.5)}')
I(f's_mov_b32 {s(SC_SCALE + 1)}, {f32(20 ** -0.5)}')
I(f's_mov_b32 {s(SC_L2E)}, {f32(1.4426950408889634)}')
I(f's_mov_b32 {s(SC_L2E + 1)}, {f32(1.4426950408889634)}')
SREG = [T + 4, T + 16]
for hf_ in range(2):
    R = TASKR[hf_]
    Q, Kr, Vr = R, R + 12, R + 48
    Sx = SREG[hf_]
    hb = hf_ * 64 * RS
    for dc in range(5):
        for kg in range(3):
            c_ = '0' if dc == 0 else v(Sx + 4 * kg, 4)
            I(f'v_mfma_f32_4x4x4_16b_bf16 {v(Sx + 4 * kg, 4)}, {v(Kr + 12 * kg + 2 * dc, 2)}, {v(Q + 2 * dc, 2)}, {c_}')
            I(f'ds_read_b64_tr_b16 {v(Vr + 2 * (kg * 5 + dc), 2)}, {v(VB)} offset:{hb + kg * 8 * RS + 384 + 8 * dc}')
stamp(4, 4)
I(f's_mul_i32 {s(S_OB)}, {s(S_MT)}, {8 * ACT_MB}')
I(f's_add_u32 {s(S_OB)}, {s(S_OB)}, {ACT_T}')
I(f's_mul_i32 {s(S_T3)}, {s(S_IDX)}, 2560')
I(f's_add_u32 {s(S_OB)}, {s(S_OB)}, {s(S_T3)}')
I(f's_lshr_b32 {s(S_T3)}, {s(S_WAVE)}, 1')
I(f's_mul_i32 {s(S_T3)}, {s(S_T3)}, 1280')
I(f's_add_u32 {s(S_OB)}, {s(S_OB)}, {s(S_T3)}')
I(f's_add_u32 {s(S_T4)}, {s(S_OB)}, {4 * ACT_MB}')
for hf_ in range(2):
    R = TASKR[hf_]
    Q, Kr, Vr = R, R + 12, R + 48
    Sx = SREG[hf_]
    Lg = Sx + 4
    for r, M in ((1, M1), (2, M2), (3, M3)):
        I(f'v_cndmask_b32 {v(Sx + 8 + r)}, {v(Sx + r)}, {v(Sx + 8 + r)}, {s(M, 2)}')
    P = Sx
    for i in range(4):
        I(f'v_cvt_pk_bf16_f32 {v(P + i)}, {v(Lg + 2 * i)}, {v(Lg + 2 * i + 1)}')
    for i in range(4):
        I(f'v_lshlrev_b32 {v(Lg + 2 * i)}, 16, {v(P + i)}')
        I(f'v_and_b32 {v(Lg + 2 * i + 1)}, {s(SC_HI)}, {v(P + i)}')
    for i in range(4):
        I(f'v_pk_mul_f32 {v(Lg + 2 * i, 2)}, {v(Lg + 2 * i, 2)}, {s(SC_SCALE, 2)}')
    if w2rest:
        w2rest.pop(0)()
    for i in range(4):
        I(f'v_cvt_pk_bf16_f32 {v(P + i)}, {v(Lg + 2 * i)}, {v(Lg + 2 * i + 1)}')
    for i in range(4):
        I(f'v_lshlrev_b32 {v(Lg + 2 * i)}, 16, {v(P + i)}')
        I(f'v_and_b32 {v(Lg + 2 * i + 1)}, {s(SC_HI)}, {v(P + i)}')
    if w2rest:
        w2rest.pop(0)()
    if hf_ == 0:
        for r in range(4):
            I(f'v_cndmask_b32 {v(Lg + r)}, {v(Lg + r)}, {v(NEG)}, {s(INV1, 2)}')
        for r, M in ((1, INV01), (2, INV02), (3, INV03)):
            I(f'v_cndmask_b32 {v(Lg + 4 + r)}, {v(Lg + 4 + r)}, {v(NEG)}, {s(M, 2)}')
    mx = P
    I(f'v_max3_f32 {v(mx)}, {v(Lg)}, {v(Lg + 1)}, {v(Lg + 2)}')
    I(f'v_max3_f32 {v(mx + 1)}, {v(Lg + 3)}, {v(Lg + 4)}, {v(Lg + 5)}')
    I(f'v_max3_f32 {v(mx)}, {v(mx)}, {v(Lg + 6)}, {v(Lg + 7)}')
    I(f'v_max_f32 {v(mx)}, {v(mx)}, {v(mx + 1)}')
    I(f'v_mov_b32 {v(mx + 1)}, {v(mx)}')
    for i in range(4):
        I(f'v_pk_add_f32 {v(Lg + 2 * i, 2)}, {v(Lg + 2 * i, 2)}, {v(mx, 2)} neg_lo:[0,1] neg_hi:[0,1]')
    for i in range(4):
        I(f'v_pk_mul_f32 {v(Lg + 2 * i, 2)}, {v(Lg + 2 * i, 2)}, {s(SC_L2E, 2)}')
    if w2rest:
        w2rest.pop(0)()
    for i in range(8):
        I(f'v_exp_f32 {v(Lg + i)}, {v(Lg + i)}')
    I(f'v_pk_add_f32 {v(P, 2)}, {v(Lg, 2)}, {v(Lg + 2, 2)}')
    I(f'v_pk_add_f32 {v(P + 2, 2)}, {v(Lg + 4, 2)}, {v(Lg + 6, 2)}')
    I(f'v_pk_add_f32 {v(P, 2)}, {v(P, 2)}, {v(P + 2, 2)}')
    I(f'v_add_f32 {v(P)}, {v(P)}, {v(P + 1)}')
    I(f'v_rcp_f32 {v(P)}, {v(P)}')
    if w2rest:
        w2rest.pop(0)()
    I(f'v_mov_b32 {v(P + 1)}, {v(P)}')
    for i in range(4):
        I(f'v_pk_mul_f32 {v(Lg + 2 * i, 2)}, {v(Lg + 2 * i, 2)}, {v(P, 2)}')
    PB = Kr
    I(f'v_cvt_pk_bf16_f32 {v(PB + 2)}, {v(Lg)}, {v(Lg + 1)}')
    I(f'v_cvt_pk_bf16_f32 {v(PB + 3)}, {v(Lg + 2)}, {v(Lg + 3)}')
    I(f'v_cvt_pk_bf16_f32 {v(PB)}, {v(Lg + 4)}, {v(Lg + 5)}')
    I(f'v_cvt_pk_bf16_f32 {v(PB + 1)}, {v(Lg + 6)}, {v(Lg + 7)}')
    I(f'v_and_b32 {v(PB + 4)}, {v(PB)}, {v(K2M0)}')
    I(f'v_and_b32 {v(PB + 5)}, {v(PB + 1)}, {v(K2M1)}')
    I(f'v_xor_b32 {v(PB)}, {v(PB)}, {v(PB + 4)}')
    I(f'v_xor_b32 {v(PB + 1)}, {v(PB + 1)}, {v(PB + 5)}')
    O = Kr + 8
    for kg in (1, 2, 0):
        for dc in range(5):
            c_ = '0' if kg == 1 else v(O + 4 * dc, 4)
            I(f'v_mfma_f32_4x4x4_16b_bf16 {v(O + 4 * dc, 4)}, {v(Vr + 2 * (kg * 5 + dc), 2)}, {v(PB + 2 * kg, 2)}, {c_}')
while w2rest:
    w2rest.pop(0)()
chk_issue(V_PF)
stamp(5, 4)
for hf_ in range(2):
    R = TASKR[hf_]
    O = R + 12 + 8
    for i in range(10):
        I(f'v_cvt_pk_bf16_f32 {v(R + i)}, {v(O + 2 * i)}, {v(O + 2 * i + 1)}')
lodd, ldone = k.newlabel('L_oodd'), k.newlabel('L_odone')
I(f's_bitcmp1_b32 {s(S_WAVE)}, 0')
I(f's_cbranch_scc1 {lodd}')
sto = k.state()
for hf_ in range(2):
    OP = TASKR[hf_]
    so = s(S_OB if hf_ == 0 else S_T4)
    I(f'buffer_store_dwordx4 {v(OP, 4)}, {v(VO)}, {s(SRD_WS, 4)}, {so} offen sc1')
    I(f'buffer_store_dwordx4 {v(OP + 4, 4)}, {v(VO)}, {s(SRD_WS, 4)}, {so} offen offset:256 sc1')
    I(f'buffer_store_dwordx2 {v(OP + 8, 2)}, {v(VO)}, {s(SRD_WS, 4)}, {so} offen offset:512 sc1')
I(f's_branch {ldone}')
k.set_state(sto)
k.label(lodd)
for hf_ in range(2):
    OP = TASKR[hf_]
    so = s(S_OB if hf_ == 0 else S_T4)
    I(f'buffer_store_dwordx2 {v(OP, 2)}, {v(VO)}, {s(SRD_WS, 4)}, {so} offen offset:520 sc1')
    I(f'buffer_store_dwordx4 {v(OP + 2, 4)}, {v(VO)}, {s(SRD_WS, 4)}, {so} offen offset:768 sc1')
    I(f'buffer_store_dwordx4 {v(OP + 6, 4)}, {v(VO)}, {s(SRD_WS, 4)}, {so} offen offset:1024 sc1')
k.label(ldone)
stamp(5)
publish()
I('s_branch L_phase2')

k.set_state(st_join)
k.label('L_ffn')
h_scalars()
ln_wait()
stamp(2)
for ks in range(4):
    for rb in range(2):
        load_A(ks, rb)
wt_flag()
tag_fetch()
I(f's_lshl_b32 {s(S_T3)}, {s(S_WAVE)}, 9')
I(f's_add_u32 {s(S_T3)}, {s(S_T3)}, {HALO}')
I(f'v_lshl_add_u32 {v(T)}, {v(V_LANE)}, 3, {s(S_T3)}')
I(f'ds_write_b64 {v(T)}, {v(BIAS, 2)}')
I(f'v_lshrrev_b32 {v(T)}, 4, {v(V_LANE)}')
I(f'v_lshl_add_u32 {v(T)}, {v(T)}, 3, {s(S_T3)}')
for cb in range(14):
    I(f'ds_read_b64 {v(T + 8 + 2 * cb, 2)}, {v(T)} offset:{32 * cb}')
I(f's_mov_b32 {s(S_T4)}, 0xffff0000')
for cb in range(14):
    for rb in range(2):
        d = ACC + (cb * 2 + rb) * 4
        for h in range(2):
            I(f'v_lshlrev_b32 {v(d + 2 * h)}, 16, {v(T + 8 + 2 * cb + h)}')
            I(f'v_and_b32 {v(d + 2 * h + 1)}, {s(S_T4)}, {v(T + 8 + 2 * cb + h)}')
stamp(3)
w2done = mainloop(14, False, False, (opt('rf0', 3), opt('rf1', 6)))
stamp(4)
stamp(1, 4)
I('s_barrier')
w2rest = [lambda f=f: w2load(f) for f in range(w2done, 70)] + [lambda i=i, nb=nb: wodma(i, nb) for i in (2, 3, 4) for nb in range(5)]
C0 = -2.0 * 0.7978845608028654 * 1.4426950408889634
C1 = C0 * 0.044715
GC0, GONE = T, T + 2
GS1 = 36
I(f'v_mov_b32 {v(GC0)}, {f32(C0)}')
I(f'v_mov_b32 {v(GC0 + 1)}, {f32(C0)}')
I(f'v_mov_b32 {v(GONE)}, 1.0')
I(f'v_mov_b32 {v(GONE + 1)}, 1.0')
I(f's_mov_b32 {s(GS1)}, {f32(C1)}')
I(f's_mov_b32 {s(GS1 + 1)}, {f32(C1)}')
S_HB2 = 38
I(f's_mul_i32 {s(S_HB2)}, {s(S_MB0)}, {ACT_MB}')
I(f's_lshl_b32 {s(S_T3)}, {s(S_START)}, 10')
I(f's_add_u32 {s(S_HB2)}, {s(S_HB2)}, {s(S_T3)}')
I(f's_add_u32 {s(S_HB2)}, {s(S_HB2)}, {ACT_T + 20 * 1024}')
I(f's_add_u32 {s(S_HB2 + 1)}, {s(S_HB2)}, {ACT_MB}')
n = 0
for pr in range(7):
    for rb in range(2):
        tmp = T + 4 + 8 * (n % 2)
        out = T + 20 + 4 * (n % 4)
        n += 1
        xs = [ACC + ((2 * pr + c2) * 2 + rb) * 4 + 2 * h for c2 in range(2) for h in range(2)]
        for i, x in enumerate(xs):
            I(f'v_pk_mul_f32 {v(tmp + 2 * i, 2)}, {v(x, 2)}, {v(x, 2)}')
        for i, x in enumerate(xs):
            I(f'v_pk_fma_f32 {v(tmp + 2 * i, 2)}, {v(tmp + 2 * i, 2)}, {s(GS1, 2)}, {v(GC0, 2)}')
        for i, x in enumerate(xs):
            I(f'v_pk_mul_f32 {v(tmp + 2 * i, 2)}, {v(tmp + 2 * i, 2)}, {v(x, 2)}')
        if w2rest:
            w2rest.pop(0)()
        for i in range(8):
            I(f'v_exp_f32 {v(tmp + i)}, {v(tmp + i)}')
        for i in range(4):
            I(f'v_pk_add_f32 {v(tmp + 2 * i, 2)}, {v(tmp + 2 * i, 2)}, {v(GONE, 2)}')
        if w2rest:
            w2rest.pop(0)()
        for i in range(8):
            I(f'v_rcp_f32 {v(tmp + i)}, {v(tmp + i)}')
        for i, x in enumerate(xs):
            I(f'v_pk_mul_f32 {v(tmp + 2 * i, 2)}, {v(tmp + 2 * i, 2)}, {v(x, 2)}')
        if w2rest:
            w2rest.pop(0)()
        for i in range(4):
            I(f'v_cvt_pk_bf16_f32 {v(out + i)}, {v(tmp + 2 * i)}, {v(tmp + 2 * i + 1)}')
        I(f'buffer_store_dwordx4 {v(out, 4)}, {v(V_L16 if pr < 4 else V_L16B)}, {s(SRD_WS, 4)}, {s(S_HB2 + rb)} offen offset:{(pr & 3) * 1024} sc1', tag=('h', pr))
        if rb == 1 and pr in (1, 3):
            stamp(2 + pr // 2, 4)
        if pr == 5 and rb == 0:
            stamp(4, 4)
            k.wait_vm_tag(('h', 3))
            I('s_barrier')
            lab = k.newlabel('L_nh')
            I(f's_cmp_eq_u32 {s(S_WAVE)}, 0')
            I(f's_cbranch_scc0 {lab}')
            flag_store(P1F + 64, S_FOFF, 224)
            k.label(lab)
            stamp(5, 4)
        if pr == 6 and rb == 0:
            while w2rest:
                w2rest.pop(0)()
            chk_issue(V_PF)
stamp(5)
publish()

k.label('L_phase2')
k.vmq = []
k.lgq = []
stamp(6)
lab = k.newlabel('L_haveh')
I(f's_cmp_eq_u32 {s(S_EARLY)}, 1')
I(f's_cbranch_scc1 {lab}')
poll(V_PF, 'ffn')
first_hloads()
k.label(lab)
stamp(7)
S_OBASE, S_OOK, S_HI, S_NL2E = 36, 39, 40, 41
I(f's_lshl_b32 {s(S_T3)}, {s(S_M2)}, 2')
I(f's_add_u32 {s(S_T3)}, {s(S_T3)}, {s(S_WAVE)}')
I(f's_mul_i32 {s(S_OBASE)}, {s(S_T3)}, {ACT_MB}')
I(f's_add_u32 {s(S_OBASE)}, {s(S_OBASE)}, {ACT_T}')
I(f's_mov_b32 {s(S_HI)}, 0xffff0000')
I(f's_mov_b32 {s(S_NL2E)}, {f32(-1.4426950408889634)}')
VXO, VB2, VPA2, VRED2, VWO1, VWO2 = T2 + 2, T2 + 3, T2 + 4, T2 + 5, T2 + 6, T2 + 7
I(f'v_and_b32 {v(VB2)}, 15, {v(V_LANE)}')
I(f's_lshl_b32 {s(S_T3)}, {s(S_T3)}, 4')
I(f'v_add_u32 {v(VB2)}, {s(S_T3)}, {v(VB2)}')
I(f'v_mul_u32_u24 {v(VXO)}, 1280, {v(VB2)}')
I(f'v_lshrrev_b32 {v(VB2)}, 4, {v(V_LANE)}')
I(f's_mul_i32 {s(S_T3)}, {s(S_NT)}, 160')
I(f'v_lshl_add_u32 {v(VB2)}, {v(VB2)}, 3, {s(S_T3)}')
I(f'v_add_u32 {v(VXO)}, {v(VXO)}, {v(VB2)}')
I(f'v_subrev_u32 {v(V_PF)}, 64, {v(V_PF)}')
I(f's_lshr_b32 {s(S_T3)}, {s(S_M2)}, 1')
I(f's_lshl_b32 {s(S_T3)}, {s(S_T3)}, 7')
I(f's_add_u32 {s(S_T3)}, {s(S_T3)}, {P1F}')
I(f'v_and_b32 {v(VPA2)}, 7, {v(V_LANE)}')
I(f'v_lshl_add_u32 {v(VPA2)}, {v(VPA2)}, 2, {s(S_T3)}')
I(f's_mul_i32 {s(S_T3)}, {s(S_WAVE)}, {15 * 1024}')
I(f'v_add_u32 {v(VRED2)}, {s(S_T3)}, {v(V_L16)}')
I(f'v_add_u32 {v(VWO1)}, {LDS_WO}, {v(V_L16)}')
I(f'v_add_u32 {v(VWO2)}, {LDS_WO + 65536}, {v(V_L16)}')


def oreg(ks):
    return a(4 * W2ORDER[ks], 4)


def oload(ks):
    if ks % 8 == 0 and ks:
        I(f's_add_u32 {s(S_OBASE)}, {s(S_OBASE)}, 8192')
    I(f'buffer_load_dwordx4 {oreg(ks)}, {v(V_L16 if (ks & 7) < 4 else V_L16B)}, {s(SRD_WS, 4)}, {s(S_OBASE)} offen offset:{(ks & 3) * 1024} sc1')


extra = {st: [] for st in range(14)}
extra[1] = [lambda: chk_issue(V_PF)]
wl = [lambda i=i, nb=nb: wodma(i, nb) for i in (0, 1) for nb in range(5)]
for st in range(3, 8):
    extra[st] = wl[2 * (st - 3):2 * (st - 3) + 2]
extra[7].append(lambda: chk_issue(VPA2))
late = [lambda ks=ks: oload(ks) for ks in range(8)]
for nb in range(5):
    late.append(lambda nb=nb: I(f'buffer_load_dwordx2 {v(B2V + 2 * nb, 2)}, {v(VB2)}, {s(SRD_B2, 4)}, 0 offen offset:{32 * nb}'))
late += [lambda ks=ks: oload(ks) for ks in range(8, 20)]
for nb in range(5):
    late.append(lambda nb=nb: I(f'buffer_load_dwordx2 {v(XIN + 2 * nb, 2)}, {v(VXO)}, {s(SRD_X, 4)}, 0 offen offset:{32 * nb}'))
for i, st in enumerate(range(9, 13)):
    extra[st] = late[8 * i:8 * i + 8]
I(f's_mov_b32 {s(S_OOK)}, 1')
for st in range(13):
    if st in (0, 1, 3, 5, 8, 12):
        stamp(1 + (0, 1, 3, 5, 8, 12).index(st), 3)
    if st == 8 - HWN:
        poll(V_PF, 'ffn2', preissued=True)
    if st == 9:
        poll(VPA2, 'att', preissued=True)
    for mb in range(4):
        for nb in range(5):
            d = YACC + (mb * 5 + nb) * 4
            c_ = '0' if st == 0 else v(d, 4)
            I(f'v_mfma_f32_16x16x32_bf16 {v(d, 4)}, {w2reg(st, nb)}, {v(HW + 16 * (st % HWN) + 4 * mb, 4)}, {c_}')
            if nb in (1, 3) and extra[st] and (nb == 1 or st >= 9):
                extra[st].pop(0)()
        if st + HWN < 14:
            hload(st + HWN, mb)
    assert not extra[st]
labs = [k.newlabel('L_red') for _ in range(4)]
lend = k.newlabel('L_redend')
k._need(regs_of(v(HW + 16 * (13 % HWN), 16)))
stw = k.state()
YOWN = HW
for w in range(4):
    k.set_state(stw)
    if w:
        k.label(labs[w])
    if w < 3:
        I(f's_cmp_eq_u32 {s(S_WAVE)}, {w}')
        I(f's_cbranch_scc0 {labs[w + 1]}')
    wr = []
    for i in (1, 2, 3, 0):
        mb = (w + i) & 3
        for nb in range(5):
            d = YACC + (mb * 5 + nb) * 4
            dd = d if i else YOWN + 4 * nb
            I(f'v_mfma_f32_16x16x32_bf16 {v(dd, 4)}, {w2reg(13, nb)}, {v(HW + 16 * (13 % HWN) + 4 * mb, 4)}, {v(d, 4)}')
            if len(wr) >= 4:
                I(wr.pop(0))
            if i:
                wr.append(f'ds_write_b128 {v(V_L16)}, {v(d, 4)} offset:{LDS_RED + ((mb * 3 + i - 1) * 5 + nb) * 1024}')
            elif wr and len(wr) < 4:
                I(wr.pop(0))
    while wr:
        I(wr.pop(0))
    if w < 3:
        I(f's_branch {lend}')
k.label(lend)
stamp(8)
stamp(7, 3)
k.wait_all(vm=False, lg=True)
I('s_barrier')
YT = HW + 20
for i in range(3):
    for nb in range(5):
        I(f'ds_read_b128 {v(YT + 20 * i + 4 * nb, 4)}, {v(VRED2)} offset:{LDS_RED + (i * 5 + nb) * 1024}')
WOW = YACC
LA2 = 12


def woread(n):
    off = n * 1024
    if off < 65536:
        I(f'ds_read_b128 {v(WOW + 4 * (n % 16), 4)}, {v(VWO1)} offset:{off}')
    else:
        I(f'ds_read_b128 {v(WOW + 4 * (n % 16), 4)}, {v(VWO2)} offset:{off - 65536}')


for n in range(LA2):
    woread(n)
G1 = YT
valu = []
for i in range(3):
    for r in range(20):
        valu.append(f'v_add_f32 {v(YOWN + r)}, {v(YOWN + r)}, {v(YT + 20 * i + r)}')
seq = [
    lambda y, p, r: f'v_cvt_pk_bf16_f32 {v(p)}, {v(y)}, {v(y + 1)}',
    lambda y, p, r: f'v_lshlrev_b32 {v(y)}, 16, {v(p)}',
    lambda y, p, r: f'v_and_b32 {v(y + 1)}, {s(S_HI)}, {v(p)}',
    lambda y, p, r: f'v_lshlrev_b32 {v(p)}, 16, {v(B2V + r)}',
    lambda y, p, r: f'v_and_b32 {v(p + 1)}, {s(S_HI)}, {v(B2V + r)}',
    lambda y, p, r: f'v_add_f32 {v(y)}, {v(y)}, {v(p)}',
    lambda y, p, r: f'v_add_f32 {v(y + 1)}, {v(y + 1)}, {v(p + 1)}',
    lambda y, p, r: f'v_cvt_pk_bf16_f32 {v(p)}, {v(y)}, {v(y + 1)}',
    lambda y, p, r: f'v_lshlrev_b32 {v(y)}, 16, {v(p)}',
    lambda y, p, r: f'v_and_b32 {v(y + 1)}, {s(S_HI)}, {v(p)}',
    lambda y, p, r: f'v_mul_f32 {v(p)}, {s(S_NL2E)}, {v(y)}',
    lambda y, p, r: f'v_mul_f32 {v(p + 1)}, {s(S_NL2E)}, {v(y + 1)}',
    lambda y, p, r: f'v_exp_f32 {v(p)}, {v(p)}',
    lambda y, p, r: f'v_exp_f32 {v(p + 1)}, {v(p + 1)}',
    lambda y, p, r: f'v_add_f32 {v(p)}, 1.0, {v(p)}',
    lambda y, p, r: f'v_add_f32 {v(p + 1)}, 1.0, {v(p + 1)}',
    lambda y, p, r: f'v_rcp_f32 {v(p)}, {v(p)}',
    lambda y, p, r: f'v_rcp_f32 {v(p + 1)}, {v(p + 1)}',
    lambda y, p, r: f'v_mul_f32 {v(y)}, {v(y)}, {v(p)}',
    lambda y, p, r: f'v_mul_f32 {v(y + 1)}, {v(y + 1)}, {v(p + 1)}',
    lambda y, p, r: f'v_cvt_pk_bf16_f32 {v(p)}, {v(y)}, {v(y + 1)}',
    lambda y, p, r: f'v_lshlrev_b32 {v(y)}, 16, {v(p)}',
    lambda y, p, r: f'v_and_b32 {v(y + 1)}, {s(S_HI)}, {v(p)}',
    lambda y, p, r: f'v_lshlrev_b32 {v(p)}, 16, {v(XIN + r)}',
    lambda y, p, r: f'v_and_b32 {v(p + 1)}, {s(S_HI)}, {v(XIN + r)}',
]
for fn in seq:
    for r in range(10):
        valu.append(fn(YOWN + 2 * r, G1 + 2 * r, r))
nv = len(valu)
stamp(8, 3)
vi = 0
for n in range(100):
    ks, nb = divmod(n, 5)
    d = SACC + 4 * nb
    c_ = '0' if ks == 0 else v(d, 4)
    if n % 2 == 0:
        k._need(regs_of(v(WOW + 4 * (n % 16), 8)))
    I(f'v_mfma_f32_16x16x32_bf16 {v(d, 4)}, {v(WOW + 4 * (n % 16), 4)}, {oreg(ks)}, {c_}')
    if n + LA2 < 100:
        woread(n + LA2)
    while vi < nv and vi * 100 < (n + 1) * nv:
        I(valu[vi])
        vi += 1
PT = YT + 20
seq = [
    lambda sx, y, p, r: f'v_cvt_pk_bf16_f32 {v(p)}, {v(sx)}, {v(sx + 1)}',
    lambda sx, y, p, r: f'v_lshlrev_b32 {v(sx)}, 16, {v(p)}',
    lambda sx, y, p, r: f'v_and_b32 {v(sx + 1)}, {s(S_HI)}, {v(p)}',
    lambda sx, y, p, r: f'v_mul_f32 {v(sx)}, {v(sx)}, {v(y)}',
    lambda sx, y, p, r: f'v_mul_f32 {v(sx + 1)}, {v(sx + 1)}, {v(y + 1)}',
    lambda sx, y, p, r: f'v_cvt_pk_bf16_f32 {v(p)}, {v(sx)}, {v(sx + 1)}',
    lambda sx, y, p, r: f'v_lshlrev_b32 {v(sx)}, 16, {v(p)}',
    lambda sx, y, p, r: f'v_and_b32 {v(sx + 1)}, {s(S_HI)}, {v(p)}',
    lambda sx, y, p, r: f'v_add_f32 {v(sx)}, {v(sx)}, {v(G1 + 2 * r)}',
    lambda sx, y, p, r: f'v_add_f32 {v(sx + 1)}, {v(sx + 1)}, {v(G1 + 2 * r + 1)}',
    lambda sx, y, p, r: f'v_cvt_pk_bf16_f32 {v(XIN + r)}, {v(sx)}, {v(sx + 1)}',
]
for nb in range(5):
    for fn in seq:
        for r in (2 * nb, 2 * nb + 1):
            I(fn(SACC + 2 * r, YOWN + 2 * r, PT + r, r))
    I(f'buffer_store_dwordx2 {v(XIN + 2 * nb, 2)}, {v(VXO)}, {s(SRD_OUT, 4)}, 0 offen offset:{32 * nb}')
if STAMPS:
    stamp(9, -1)
    k.wait_all()
    I(f's_lshl_b32 {s(S_T3)}, {s(S_WG)}, 8')
    I(f's_lshl_b32 {s(S_T4)}, {s(S_WAVE)}, 6')
    I(f's_add_u32 {s(S_T3)}, {s(S_T3)}, {s(S_T4)}')
    I(f's_add_u32 {s(S_T3)}, {s(S_T3)}, {STAMP_OFF}')
    I(f'v_mov_b32 {v(T2)}, 0')
    I('s_mov_b64 exec, 1')
    for i in range(10):
        I(f'v_mov_b32 {v(T2 + 1)}, {s(S_STAMP + 2 * i)}')
        I(f'buffer_store_dword {v(T2 + 1)}, {v(T2)}, {s(SRD_WS, 4)}, {s(S_T3)} offen offset:{4 * i}')
    I(f'v_mov_b32 {v(T2 + 1)}, {s(S_EARLY)}')
    I(f'buffer_store_dword {v(T2 + 1)}, {v(T2)}, {s(SRD_WS, 4)}, {s(S_T3)} offen offset:52')
    I(f'v_mov_b32 {v(T2 + 1)}, {s(S_OOK)}')
    I(f'buffer_store_dword {v(T2 + 1)}, {v(T2)}, {s(SRD_WS, 4)}, {s(S_T3)} offen offset:56')
    I(f'v_mov_b32 {v(T2 + 1)}, {s(S_TYPE)}')
    I(f'buffer_store_dword {v(T2 + 1)}, {v(T2)}, {s(SRD_WS, 4)}, {s(S_T3)} offen offset:60')
if '--padx' in sys.argv:
    for i in range(2048):
        I(f'v_add3_u32 {v(16 + i % 8)}, {v(16 + i % 8)}, v2, v3')
if '--pady' in sys.argv:
    I(f's_mov_b32 {s(S_T3)}, 0')
    k.label('L_pady')
    for i in range(64):
        I(f'v_add3_u32 {v(16 + i % 8)}, {v(16 + i % 8)}, v2, v3')
    I(f's_add_u32 {s(S_T3)}, {s(S_T3)}, 1')
    I(f's_cmp_lt_u32 {s(S_T3)}, 32')
    I('s_cbranch_scc1 L_pady')
k.label('L_end')
I('s_endpgm')

hdr = open('recurrent_scan__sliding_local_dilated__dense_activation_gelu__prompt.s.ref').read().split('\n')
head = [l for l in hdr if l.startswith(';') and '@launch' not in l and 'Override' not in l and 'grid=ceil' not in l]
print('\n'.join(head))
print(f'; @launch grid=(256,1,1) block=(256,1,1) lds={LDS_TOTAL}')
print(f'''.amdgcn_target "amdgcn-amd-amdhsa--gfx950"
.text
.globl {KNAME}
.p2align 8
.type {KNAME},@function
{KNAME}:''')
print(k.text())
print(f'''.section .rodata,"a"
.p2align 6
.amdhsa_kernel {KNAME}
  .amdhsa_next_free_vgpr 512
  .amdhsa_next_free_sgpr 102
  .amdhsa_accum_offset 256
  .amdhsa_group_segment_fixed_size 0
  .amdhsa_kernarg_size 88
  .amdhsa_user_sgpr_count 2
  .amdhsa_user_sgpr_kernarg_segment_ptr 1
  .amdhsa_system_sgpr_workgroup_id_x 1
  .amdhsa_float_denorm_mode_32 3
.end_amdhsa_kernel''')
```

```python
import sys, struct
from asmlib import *

KNAME = 'recurrent_scan__sliding_local_dilated__dense_activation_gelu__prompt_kernel'
STAMPS = '--stamps' in sys.argv


def opt(name, default):
    for x in sys.argv:
        if x.startswith(f'--{name}='):
            return int(x.split('=')[1])
    return default


SMODE = opt('smode', 0)

XN_T = 0
ACT_T = 128 * 20 * 1024
ACT_MB = 74 * 1024
W_T = ACT_T + 128 * ACT_MB
LNF = W_T + 74 * 40 * 1024
P1F = LNF + 16 * 128
WTF = P1F + 16 * 128
WS_USED = WTF + 1024
STAMP_OFF = WS_USED
WS_REC = WS_USED + (256 * 4 * 64 if STAMPS else 0)
OOB = 0x40000000

RROW = 1056
SLOT = 16 * RROW
NSLOT = 8
HALO = NSLOT * SLOT
CNT = HALO + 20 * 1024
RS = 592
LDS_RED = 0
LDS_WO = 60 * 1024
LDS_TOTAL = 163840


def f32(x):
    return '0x%08x' % struct.unpack('<I', struct.pack('<f', x))[0]


S_WG, S_FOFF = 2, 3
SRD_X, SRD_B, SRD_WS, SRD_DBG, SRD_OUT, SRD_RT, SRD_B1, SRD_B2 = 4, 8, 12, 16, 20, 24, 28, 56
P_X, P_WQKV, P_WO, P_BX, P_W1, P_B1, P_W2, P_B2, P_OUT, P_DBG, P_WS = 32, 34, 36, 38, 40, 42, 44, 46, 48, 50, 52
S_WAVE, S_MT, S_TYPE, S_IDX, S_FB, S_PITCH, S_KSTR, S_START = 60, 61, 62, 63, 64, 65, 66, 67
S_T0, S_T1, S_T2, S_T3, S_T4, S_T5 = 68, 69, 70, 71, 72, 73
S_M0B, S_SOFF, S_M2, S_NT, S_SPIN, S_TAG = 74, 75, 76, 77, 78, 79
S_STAMP = 80
S_W2A, S_W2B = 100, 101
S_WOB, S_WOM, S_LAST = 16, 17, 18
S_HB, S_MB0 = 32, 33
S_AO = 36

V_LANE = 1
V_DMA = 2
V_TR0, V_TR1 = 6, 7
V_TRH0, V_TRH1 = 8, 9
V_L16 = 10
V_L16B = 11
V_PA = 12
V_POLL = 13
V_X = 14
V_PF = 15
ACC = 16
HACC = 136
WIN = 148
HX = 180
T = 188
BIAS = 226
W2V = 228
P4 = 252

k = K()
I = k.I


def stamp(idx, mode=0):
    if STAMPS and (mode == SMODE or mode == -1):
        I(f'{"s_memtime" if "--cyc" in sys.argv else "s_memrealtime"} {s(S_STAMP + 2 * idx, 2)}')


def srd(base, plo, nbytes):
    I(f's_mov_b32 {s(base)}, {s(plo)}')
    I(f's_mov_b32 {s(base + 1)}, {s(plo + 1)}')
    I(f's_mov_b32 {s(base + 2)}, {nbytes}')
    I(f's_mov_b32 {s(base + 3)}, 0x00020000')


def csel(dst, x, y):
    I(f's_mov_b32 {s(dst)}, {y}')
    I(f's_cselect_b32 {s(dst)}, {x}, {s(dst)}')


def chk_issue(addrv, n=1):
    if n == 1:
        I(f'buffer_load_dword {v(V_POLL)}, {v(addrv)}, {s(SRD_WS, 4)}, 0 offen sc1')
    else:
        I(f'buffer_load_dwordx4 {v(P4, 4)}, {v(addrv)}, {s(SRD_WS, 4)}, 0 offen sc1')


def chk_eval(n=1):
    if n == 1:
        I(f'v_cmp_ne_u32 vcc, {s(S_TAG)}, {v(V_POLL)}')
    else:
        for i in range(4):
            I(f'v_xor_b32 {v(P4 + i)}, {s(S_TAG)}, {v(P4 + i)}')
        I(f'v_or3_b32 {v(P4)}, {v(P4)}, {v(P4 + 1)}, {v(P4 + 2)}')
        I(f'v_or_b32 {v(P4)}, {v(P4)}, {v(P4 + 3)}')
        I(f'v_cmp_ne_u32 vcc, 0, {v(P4)}')


def poll(addrv, name, n=1, preissued=False):
    lab = k.newlabel('L_poll_' + name)
    done = k.newlabel('L_polled_' + name)
    if not preissued:
        chk_issue(addrv, n)
    chk_eval(n)
    I(f's_mov_b32 {s(S_SPIN)}, 0')
    I(f's_cbranch_vccz {done}')
    st = k.state()
    k.label(lab)
    I('s_sleep 1')
    chk_issue(addrv, n)
    k.wait_all(vm=True, lg=False)
    chk_eval(n)
    I(f's_add_u32 {s(S_SPIN)}, {s(S_SPIN)}, 1')
    I(f's_cbranch_vccz {done}')
    I(f's_cmp_lt_u32 {s(S_SPIN)}, 0x40000')
    I(f's_cbranch_scc1 {lab}')
    k.label(done)
    k.set_state(st)


def flag_store(base, offs, t0):
    I(f'v_mov_b32 {v(t0)}, {s(S_TAG)}')
    I(f'v_mov_b32 {v(t0 + 1)}, {base}')
    I('s_mov_b64 exec, 1')
    I(f'buffer_store_dword {v(t0)}, {v(t0 + 1)}, {s(SRD_WS, 4)}, {s(offs)} offen sc1')
    I('s_mov_b64 exec, -1')
    k.vmq.pop()


def dma1(j, soff_reg, tag):
    I(f'buffer_load_dwordx4 {v(V_DMA + j)}, {s(SRD_B, 4)}, {s(soff_reg)} offen offset:{j * RROW} lds', tag=tag)


def bf16r(dst, src):
    I(f'v_cvt_pk_bf16_f32 {v(dst)}, {v(src)}, {v(src)}')
    I(f'v_lshlrev_b32 {v(dst)}, 16, {v(dst)}')


def row_sum(r, t1):
    for sh in (4, 8):
        I(f'v_add_f32_dpp {v(r)}, {v(r)}, {v(r)} row_ror:{sh} row_mask:0xf bank_mask:0xf')
    for op in ('v_permlane16_swap_b32', 'v_permlane32_swap_b32'):
        I(f'v_mov_b32 {v(t1)}, {v(r)}')
        I(f'{op} {v(r)}, {v(t1)}')
        I(f'v_add_f32 {v(r)}, {v(r)}, {v(t1)}')


I(f's_cmp_ge_u32 {s(S_WG)}, 256')
I('s_cbranch_scc1 L_end')
I(f's_load_dwordx16 {s(32, 16)}, s[0:1], 0')
I(f's_load_dwordx4 {s(48, 4)}, s[0:1], 64')
I(f's_load_dwordx2 {s(52, 2)}, s[0:1], 80')
stamp(0, -1)
I(f'v_lshrrev_b32 {v(T)}, 6, v0')
I(f'v_and_b32 {v(V_LANE)}, 63, v0')
I(f'v_readfirstlane_b32 {s(S_WAVE)}, {v(T)}')
I(f'v_mov_b32 {v(T + 2)}, 0')
I(f'v_mov_b32 {v(T + 3)}, 0')
I(f'v_mov_b32 {v(T + 1)}, {CNT}')
I(f'ds_write_b64 {v(T + 1)}, {v(T + 2, 2)}')
I(f's_cmp_lt_u32 {s(S_WAVE)}, 2')
I('s_cbranch_scc1 L_nocp')
CPV = T + 35
I(f's_getpc_b64 {s(S_TAG - 1, 2)}')
k.label('L_pc')
I(f's_lshr_b32 {s(S_T3)}, {s(S_WG)}, 2')
I(f's_and_b32 {s(S_T3)}, {s(S_T3)}, 6')
I(f's_and_b32 {s(S_T4)}, {s(S_WAVE)}, 1')
I(f's_add_u32 {s(S_T3)}, {s(S_T3)}, {s(S_T4)}')
I(f's_lshl_b32 {s(S_T3)}, {s(S_T3)}, 13')
I(f'v_lshl_add_u32 {v(CPV)}, {v(V_LANE)}, 7, {s(S_T3)}')
I(f'v_min_u32 {v(CPV)}, L_end-L_pc, {v(CPV)}')
I(f'global_load_dword {v(T + 17)}, {v(CPV)}, {s(S_TAG - 1, 2)}')
k.vmq.pop()
k.label('L_nocp')
I(f's_and_b32 {s(S_T0)}, {s(S_WG)}, 7')
I(f's_lshr_b32 {s(S_T1)}, {s(S_WG)}, 3')
I(f's_and_b32 {s(S_MT)}, {s(S_T0)}, 1')
I(f's_lshl_b32 {s(S_MT)}, {s(S_MT)}, 3')
I(f's_and_b32 {s(S_T2)}, {s(S_T1)}, 7')
I(f's_add_u32 {s(S_MT)}, {s(S_MT)}, {s(S_T2)}')
I(f's_lshr_b32 {s(S_T2)}, {s(S_T1)}, 3')
I(f's_and_b32 {s(S_TYPE)}, {s(S_T2)}, 1')
I(f's_lshr_b32 {s(S_T2)}, {s(S_T2)}, 1')
I(f's_and_b32 {s(S_IDX)}, {s(S_T0)}, 6')
I(f's_add_u32 {s(S_IDX)}, {s(S_IDX)}, {s(S_T2)}')
I(f's_lshl_b32 {s(S_FB)}, {s(S_MT)}, 4')
I(f's_lshl_b32 {s(S_T2)}, {s(S_TYPE)}, 3')
I(f's_add_u32 {s(S_FB)}, {s(S_FB)}, {s(S_T2)}')
I(f's_add_u32 {s(S_FB)}, {s(S_FB)}, {s(S_IDX)}')
I(f's_cmp_eq_u32 {s(S_TYPE)}, 0')
csel(S_PITCH, 3840, 3456)
LR, LP, LXA = T + 4, T + 5, T + 6
I(f'v_and_b32 {v(LR)}, 3, {v(V_LANE)}')
I(f'v_lshrrev_b32 {v(LP)}, 2, {v(V_LANE)}')
I(f's_lshl_b32 {s(S_T3)}, {s(S_FB)}, 3')
I(f's_lshl_b32 {s(S_T4)}, {s(S_WAVE)}, 2')
I(f's_add_u32 {s(S_T3)}, {s(S_T3)}, {s(S_T4)}')
I(f'v_add_u32 {v(LR)}, {s(S_T3)}, {v(LR)}')
I(f'v_mul_u32_u24 {v(LXA)}, 1280, {v(LR)}')
I(f'v_lshl_add_u32 {v(LXA)}, {v(LP)}, 4, {v(LXA)}')
PFL = 0
I(f'v_and_b32 {v(T + 32)}, 15, {v(V_LANE)}')
I(f's_cmp_eq_u32 {s(S_TYPE)}, 0')
I(f's_cselect_b32 {s(S_T3)}, 8, 6')
I(f's_cselect_b32 {s(S_T4)}, {1280 - 384}, 0')
csel(S_M0B, 160, 448)
I(f'v_min_u32 {v(T + 32)}, {s(S_T3)}, {v(T + 32)}')
I(f'v_mul_u32_u24 {v(T + 33)}, 11, {v(T + 32)}')
I(f'v_lshrrev_b32 {v(T + 33)}, 5, {v(T + 33)}')
I(f'v_mul_u32_u24 {v(T + 33)}, {s(S_T4)}, {v(T + 33)}')
I(f'v_lshl_add_u32 {v(PFL)}, {v(T + 32)}, 7, {v(T + 33)}')
I(f'v_lshrrev_b32 {v(T + 32)}, 4, {v(V_LANE)}')
I(f'v_mad_u32_u24 {v(PFL)}, {v(T + 32)}, {s(S_PITCH)}, {v(PFL)}')
I(f's_and_b32 {s(S_T3)}, {s(S_IDX)}, 6')
I(f's_mul_i32 {s(S_M0B)}, {s(S_M0B)}, {s(S_T3)}')
I(f'v_add_u32 {v(PFL)}, {s(S_M0B)}, {v(PFL)}')
I(f's_and_b32 {s(S_KSTR)}, {s(S_MT)}, 7')
I(f's_lshl_b32 {s(S_KSTR)}, {s(S_KSTR)}, 1')
I(f's_and_b32 {s(S_T4)}, {s(S_IDX)}, 1')
I(f's_add_u32 {s(S_KSTR)}, {s(S_KSTR)}, {s(S_T4)}')
assert all((x * 11) >> 5 == x // 3 for x in range(9))
k.wait_all(vm=False, lg=True)
stamp(1, 2)
I('s_barrier')
srd(SRD_X, P_X, 2048 * 1280)
srd(SRD_DBG, P_DBG, 256)
XR = T + 8
TAGV = T + 36
I(f's_cmp_ge_u32 {s(S_WAVE)}, 2')
I('s_cbranch_scc1 L_pf')

for i in range(5):
    I(f'buffer_load_dwordx4 {v(XR + 4 * i, 4)}, {v(LXA)}, {s(SRD_X, 4)}, 0 offen offset:{256 * i}', tag='x')
I(f'buffer_load_dword {v(TAGV)}, {v(T + 2)}, {s(SRD_DBG, 4)}, 0 offen sc1')
srd(SRD_WS, P_WS, WS_REC)
I(f's_lshl_b32 {s(S_FOFF)}, {s(S_MT)}, 7')
I(f's_and_b32 {s(S_T2)}, {s(S_FB)}, 15')
I(f's_lshl_b32 {s(S_T2)}, {s(S_T2)}, 2')
I(f's_add_u32 {s(S_FOFF)}, {s(S_FOFF)}, {s(S_T2)}')
XF = ACC
SA_ = T + 3
I(f'v_lshrrev_b32 {v(SA_)}, 4, {v(LR)}')
I(f'v_mul_u32_u24 {v(SA_)}, 20480, {v(SA_)}')
I(f'v_lshl_add_u32 {v(SA_)}, {v(LP)}, 8, {v(SA_)}')
I(f'v_and_b32 {v(T)}, 15, {v(LR)}')
I(f'v_lshl_add_u32 {v(SA_)}, {v(T)}, 4, {v(SA_)}')
I(f's_mov_b32 {s(S_T3)}, 0xffff0000')
stamp(2, 2)
if STAMPS and SMODE == 2:
    k.wait_vm_tag('x')
stamp(3, 2)
SUM = T + 4
for i in range(20):
    I(f'v_lshlrev_b32 {v(XF + 2 * i)}, 16, {v(XR + i)}')
    I(f'v_and_b32 {v(XF + 2 * i + 1)}, {s(S_T3)}, {v(XR + i)}')
    if i == 1:
        I(f'v_pk_add_f32 {v(SUM, 2)}, {v(XF, 2)}, {v(XF + 2, 2)}')
    elif i > 1:
        I(f'v_pk_add_f32 {v(SUM, 2)}, {v(SUM, 2)}, {v(XF + 2 * i, 2)}')
I(f'v_add_f32 {v(SUM)}, {v(SUM)}, {v(SUM + 1)}')
row_sum(SUM, SUM + 1)
MEAN = T + 6
I(f'v_mul_f32 {v(MEAN)}, {f32(1.0 / 640)}, {v(SUM)}')
I(f'v_mov_b32 {v(MEAN + 1)}, {v(MEAN)}')
SQ = T + 4
DV = T + 28
for i in range(20):
    d = DV + 2 * (i & 1)
    I(f'v_pk_add_f32 {v(d, 2)}, {v(XF + 2 * i, 2)}, {v(MEAN, 2)} neg_lo:[0,1] neg_hi:[0,1]')
    if i == 0:
        I(f'v_pk_mul_f32 {v(SQ, 2)}, {v(d, 2)}, {v(d, 2)}')
    else:
        I(f'v_pk_fma_f32 {v(SQ, 2)}, {v(d, 2)}, {v(d, 2)}, {v(SQ, 2)}')
I(f'v_add_f32 {v(SQ)}, {v(SQ)}, {v(SQ + 1)}')
row_sum(SQ, SQ + 1)
I(f'v_mul_f32 {v(SQ)}, {f32(1.0 / 640)}, {v(SQ)}')
bf16r(SQ, SQ)
I(f'v_add_f32 {v(SQ)}, {f32(1e-5)}, {v(SQ)}')
bf16r(SQ, SQ)
I(f'v_sqrt_f32 {v(SQ)}, {v(SQ)}')
bf16r(MEAN, MEAN)
bf16r(SQ, SQ)
I(f'v_rcp_f32 {v(SQ + 1)}, {v(SQ)}')
I(f'v_mov_b32 {v(MEAN + 1)}, {v(MEAN)}')
I(f'v_fma_f32 {v(SQ)}, -{v(SQ)}, {v(SQ + 1)}, 1.0')
I(f'v_fma_f32 {v(SQ)}, {v(SQ)}, {v(SQ + 1)}, {v(SQ + 1)}')
I(f'v_mov_b32 {v(SQ + 1)}, {v(SQ)}')
for i in range(20):
    x2 = XF + 2 * i
    I(f'v_pk_add_f32 {v(x2, 2)}, {v(x2, 2)}, {v(MEAN, 2)} neg_lo:[0,1] neg_hi:[0,1]')
    I(f'v_cvt_pk_bf16_f32 {v(XR + i)}, {v(x2)}, {v(x2 + 1)}')
    I(f'v_lshlrev_b32 {v(x2)}, 16, {v(XR + i)}')
    I(f'v_and_b32 {v(x2 + 1)}, {s(S_T3)}, {v(XR + i)}')
    I(f'v_pk_mul_f32 {v(x2, 2)}, {v(x2, 2)}, {v(SQ, 2)}')
    I(f'v_cvt_pk_bf16_f32 {v(XR + i)}, {v(x2)}, {v(x2 + 1)}')
    if i % 4 == 3:
        ii = i // 4
        I(f's_mov_b32 {s(S_T4)}, {XN_T + 4096 * ii}')
        I(f'buffer_store_dwordx4 {v(XR + 4 * ii, 4)}, {v(SA_)}, {s(SRD_WS, 4)}, {s(S_T4)} offen sc1')
stamp(1)
stamp(4, 2)
I(f'v_readfirstlane_b32 {s(S_TAG)}, {v(TAGV)}')
I(f'v_mov_b32 {v(T + 1)}, 0')
I(f's_mov_b32 {s(S_SPIN)}, 0')
I(f's_cmp_lg_u32 {s(S_TAG)}, 0')
I('s_cbranch_scc1 L_tagok')
k.label('L_tagpoll')
I(f'buffer_load_dword {v(TAGV)}, {v(T + 1)}, {s(SRD_DBG, 4)}, 0 offen sc1')
k.wait_all()
I(f'v_readfirstlane_b32 {s(S_TAG)}, {v(TAGV)}')
I(f's_add_u32 {s(S_SPIN)}, {s(S_SPIN)}, 1')
I(f's_cmp_lg_u32 {s(S_TAG)}, 0')
I('s_cbranch_scc1 L_tagok')
I(f's_cmp_lt_u32 {s(S_SPIN)}, 0x40000')
I('s_cbranch_scc1 L_tagpoll')
k.label('L_tagok')
I(f'v_mov_b32 {v(T + 1)}, {CNT}')
I(f'ds_write_b32 {v(T + 1)}, {v(TAGV)} offset:4')
I(f'v_mov_b32 {v(T)}, 1')
k.wait_all()
stamp(5, 2)
I('s_mov_b64 exec, 1')
I(f'ds_add_rtn_u32 {v(T + 2)}, {v(T + 1)}, {v(T)}')
I('s_mov_b64 exec, -1')
I(f'v_readfirstlane_b32 {s(S_T3)}, {v(T + 2)}')
I(f's_cmp_eq_u32 {s(S_T3)}, 1')
I('s_cbranch_scc0 L_common')
flag_store(LNF, S_FOFF, T)
I('s_branch L_common')

k.vmq = []
k.lgq = []
k.label('L_pf')
I(f's_cmp_lt_u32 {s(S_WG)}, 8')
I('s_cbranch_scc0 L_notag')
I(f's_cmp_eq_u32 {s(S_WAVE)}, 2')
I('s_cbranch_scc0 L_notag')
I(f's_memrealtime {s(S_T4, 2)}')
I(f's_or_b32 {s(S_T4)}, {s(S_T4)}, 1')
I(f'v_mov_b32 {v(T + 2)}, {s(S_T4)}')
I('s_mov_b64 exec, 1')
I(f'buffer_atomic_cmpswap {v(T + 2, 2)}, {v(T + 3)}, {s(SRD_DBG, 4)}, 0 offen sc1')
I('s_mov_b64 exec, -1')
k.label('L_notag')


def srd_b():
    I(f's_cmp_eq_u32 {s(S_TYPE)}, 0')
    I(f's_cselect_b32 {s(SRD_B)}, {s(P_WQKV)}, {s(P_W1)}')
    I(f's_cselect_b32 {s(SRD_B + 1)}, {s(P_WQKV + 1)}, {s(P_W1 + 1)}')
    csel(SRD_B + 2, 640 * 3840, 640 * 3456)
    I(f's_mov_b32 {s(SRD_B + 3)}, 0x00020000')


srd_b()
I(f's_lshl_b32 {s(S_T3)}, {s(S_KSTR)}, 1')
I(f's_and_b32 {s(S_T4)}, {s(S_WAVE)}, 1')
I(f's_add_u32 {s(S_T3)}, {s(S_T3)}, {s(S_T4)}')
I(f's_lshl_b32 {s(S_T4)}, {s(S_PITCH)}, 2')
I(f's_mul_i32 {s(S_SOFF)}, {s(S_T3)}, {s(S_T4)}')
I(f's_lshl_b32 {s(S_T4)}, {s(S_PITCH)}, 7')
I(f'buffer_load_dword {v(T + 12)}, {v(PFL)}, {s(SRD_B, 4)}, {s(S_SOFF)} offen')
I(f's_add_u32 {s(S_SOFF)}, {s(S_SOFF)}, {s(S_T4)}')
I(f'buffer_load_dword {v(T + 13)}, {v(PFL)}, {s(SRD_B, 4)}, {s(S_SOFF)} offen')

k.label('L_common')
k.vmq = [(set(), 'unknown')]
k.lgq = []
I('s_nop 4')
I(f's_lshl_b32 {s(S_FOFF)}, {s(S_MT)}, 7')
I(f's_and_b32 {s(S_T2)}, {s(S_FB)}, 15')
I(f's_lshl_b32 {s(S_T2)}, {s(S_T2)}, 2')
I(f's_add_u32 {s(S_FOFF)}, {s(S_FOFF)}, {s(S_T2)}')
I(f's_lshl_b32 {s(S_M2)}, {s(S_T0)}, 2')
I(f's_and_b32 {s(S_T2)}, {s(S_T1)}, 3')
I(f's_add_u32 {s(S_M2)}, {s(S_M2)}, {s(S_T2)}')
I(f's_lshr_b32 {s(S_NT)}, {s(S_T1)}, 2')
I(f's_mul_i32 {s(S_START)}, {s(S_IDX)}, 7')
I(f's_min_u32 {s(S_START)}, {s(S_START)}, 47')
I(f's_lshl_b32 {s(S_T3)}, {s(S_KSTR)}, 2')
I(f's_add_u32 {s(S_T3)}, {s(S_T3)}, {s(S_WAVE)}')
I(f's_add_u32 {s(S_T3)}, {s(S_T3)}, 64')
I(f's_lshl_b32 {s(S_T4)}, {s(S_PITCH)}, 2')
I(f's_mul_i32 {s(S_T3)}, {s(S_T3)}, {s(S_T4)}')
I(f'v_add_u32 {v(PFL)}, {s(S_T3)}, {v(PFL)}')
I(f's_lshl_b32 {s(S_KSTR)}, {s(S_PITCH)}, 5')
I(f'v_lshlrev_b32 {v(V_L16)}, 4, {v(V_LANE)}')
I(f'v_add_u32 {v(V_L16B)}, 4096, {v(V_L16)}')
srd(SRD_B1, P_B1, 1728 * 2)
I(f'v_lshlrev_b32 {v(T + 7)}, 3, {v(V_LANE)}')
I(f's_lshl_b32 {s(S_T5)}, {s(S_START)}, 6')
I(f'buffer_load_dwordx2 {v(BIAS, 2)}, {v(T + 7)}, {s(SRD_B1, 4)}, {s(S_T5)} offen', tag='pf')
I(f's_lshl_b32 {s(S_T0)}, {s(S_WG)}, 1')
I(f's_and_b32 {s(S_T1)}, {s(S_WAVE)}, 1')
I(f's_add_u32 {s(S_T0)}, {s(S_T0)}, {s(S_T1)}')
I(f's_mul_i32 {s(S_T1)}, {s(S_T0)}, 13108')
I(f's_lshr_b32 {s(S_T1)}, {s(S_T1)}, 16')
I(f's_mul_i32 {s(S_T2)}, {s(S_T1)}, 5')
I(f's_sub_u32 {s(S_T2)}, {s(S_T0)}, {s(S_T2)}')
assert all((u * 13108) >> 16 == u // 5 for u in range(512))
srd(SRD_WS, P_WS, WS_REC)
srd(SRD_OUT, P_OUT, 2048 * 1280)
srd(SRD_B2, P_B2, 640 * 2)
srd_b()
I(f's_cmp_lt_u32 {s(S_T1)}, 20')
I(f's_cselect_b32 {s(SRD_RT)}, {s(P_WO)}, {s(P_W2)}')
I(f's_cselect_b32 {s(SRD_RT + 1)}, {s(P_WO + 1)}, {s(P_W2 + 1)}')
csel(SRD_RT + 2, 640 * 1280, 1728 * 1280)
I(f's_mov_b32 {s(SRD_RT + 3)}, 0x00020000')
c, hf, sg = T, T + 1, T + 2
I(f'v_and_b32 {v(c)}, 31, {v(V_LANE)}')
I(f'v_lshrrev_b32 {v(hf)}, 5, {v(V_LANE)}')
S_CB = 34
I(f's_cmp_eq_u32 {s(S_TYPE)}, 0')
I(f's_cselect_b32 {s(S_T3)}, 29, 27')
I(f's_cselect_b32 {s(S_T4)}, 1120, 0')
I(f's_mul_i32 {s(S_CB)}, {s(S_IDX)}, 160')
I(f's_lshl_b32 {s(S_T5)}, {s(S_START)}, 6')
I(f's_cmp_eq_u32 {s(S_TYPE)}, 0')
I(f's_cselect_b32 {s(S_CB)}, {s(S_CB)}, {s(S_T5)}')
I(f'v_min_u32 {v(c)}, {s(S_T3)}, {v(c)}')
I(f'v_mul_u32_u24 {v(sg)}, 205, {v(c)}')
I(f'v_lshrrev_b32 {v(sg)}, 11, {v(sg)}')
I(f'v_mul_u32_u24 {v(sg)}, {s(S_T4)}, {v(sg)}')
I(f'v_lshl_add_u32 {v(sg)}, {v(c)}, 4, {v(sg)}')
I(f'v_add_u32 {v(sg)}, {s(S_CB)}, {v(sg)}')
I(f's_lshl_b32 {s(S_T3)}, {s(S_PITCH)}, 2')
I(f'v_mad_u32_u24 {v(V_DMA)}, {v(hf)}, {s(S_T3)}, {v(sg)}')
I(f's_sub_u32 {s(S_T3)}, {s(S_PITCH)}, {RROW}')
for j in range(1, 4):
    I(f'v_add_u32 {v(V_DMA + j)}, {s(S_T3)}, {v(V_DMA + j - 1)}')
assert all((c_ * 205) >> 11 == c_ // 10 for c_ in range(32))
NPRE = opt('npre', 6)
I(f's_mul_i32 {s(S_M0B)}, {s(S_WAVE)}, {4 * RROW}')
I(f's_lshl_b32 {s(S_T3)}, {s(S_PITCH)}, 3')
I(f's_mul_i32 {s(S_SOFF)}, {s(S_WAVE)}, {s(S_T3)}')
I(f's_mul_i32 {s(S_T3)}, {s(S_KSTR)}, {NPRE}')
I(f's_add_u32 {s(S_SOFF)}, {s(S_SOFF)}, {s(S_T3)}')
I(f'v_lshrrev_b32 {v(LP)}, 2, {v(V_LANE)}')
I(f'v_mul_u32_u24 {v(V_TR0)}, {RROW}, {v(LP)}')
I(f'v_and_b32 {v(T)}, 3, {v(V_LANE)}')
I(f'v_lshl_add_u32 {v(V_TR0)}, {v(T)}, 3, {v(V_TR0)}')
I(f'v_add_u32 {v(V_TR1)}, {4 * SLOT}, {v(V_TR0)}')
I(f's_mul_i32 {s(S_HB)}, {s(S_WAVE)}, 3')
I(f's_min_u32 {s(S_HB)}, {s(S_HB)}, 7')
I(f's_add_u32 {s(S_HB)}, {s(S_HB)}, 5')
I(f's_lshl_b32 {s(S_T3)}, {s(S_HB)}, 5')
I(f'v_add_u32 {v(V_TRH0)}, {s(S_T3)}, {v(V_TR0)}')
I(f'v_add_u32 {v(V_TRH1)}, {s(S_T3)}, {v(V_TR1)}')
I(f'v_add_u32 {v(V_X)}, {HALO}, {v(V_L16)}')
I(f's_lshl_b32 {s(S_MB0)}, {s(S_MT)}, 3')
I(f's_lshl_b32 {s(S_T3)}, {s(S_WAVE)}, 1')
I(f's_add_u32 {s(S_MB0)}, {s(S_MB0)}, {s(S_T3)}')
I(f's_mul_i32 {s(S_AO)}, {s(S_MB0)}, 20480')
for q in range(1, 10):
    I(f's_add_u32 {s(S_AO + q)}, {s(S_AO)}, {XN_T + 4096 * q}')
I(f'v_and_b32 {v(T)}, 15, {v(V_LANE)}')
I(f's_lshl_b32 {s(S_T3)}, {s(S_MT)}, 7')
I(f's_add_u32 {s(S_T3)}, {s(S_T3)}, {LNF}')
I(f'v_lshl_add_u32 {v(V_PA)}, {v(T)}, 2, {s(S_T3)}')
I(f's_cmp_eq_u32 {s(S_TYPE)}, 0')
I(f's_cselect_b32 {s(S_T3)}, {128 - 56}, 0')
I(f's_cmp_eq_u32 {s(S_MT)}, 0')
I(f's_cselect_b32 {s(S_T3)}, 0, {s(S_T3)}')
I(f'v_subrev_u32 {v(T + 1)}, {s(S_T3)}, {v(V_PA)}')
I(f'v_lshrrev_b32 {v(T)}, 1, {v(V_LANE)}')
I(f'v_cmp_eq_u32 vcc, 8, {v(T)}')
I(f'v_cndmask_b32 {v(V_PA)}, {v(V_PA)}, {v(T + 1)}, vcc')
I(f's_mul_i32 {s(S_T3)}, {s(S_WAVE)}, 14')
I(f's_add_u32 {s(S_T4)}, {s(S_T3)}, 7')
I(f's_min_u32 {s(S_T4)}, {s(S_T4)}, 47')
I(f's_mul_i32 {s(S_T5)}, {s(S_NT)}, 5120')
I(f's_add_u32 {s(S_T5)}, {s(S_T5)}, {W_T + 20 * 40960}')
I(f's_mul_i32 {s(S_W2A)}, {s(S_T3)}, 40960')
I(f's_add_u32 {s(S_W2A)}, {s(S_W2A)}, {s(S_T5)}')
I(f's_mul_i32 {s(S_W2B)}, {s(S_T4)}, 40960')
I(f's_add_u32 {s(S_W2B)}, {s(S_W2B)}, {s(S_T5)}')
I(f's_lshr_b32 {s(S_T3)}, {s(S_M2)}, 1')
I(f's_lshl_b32 {s(S_T3)}, {s(S_T3)}, 7')
I(f's_lshl_b32 {s(S_T4)}, {s(S_WAVE)}, 3')
I(f's_add_u32 {s(S_T3)}, {s(S_T3)}, {s(S_T4)}')
I(f's_add_u32 {s(S_T3)}, {s(S_T3)}, {P1F + 32 + 64}')
I(f'v_and_b32 {v(T)}, 1, {v(V_LANE)}')
I(f'v_lshl_add_u32 {v(V_PF)}, {v(T)}, 2, {s(S_T3)}')

I(f's_cmp_lt_u32 {s(S_WAVE)}, 2')
I('s_cbranch_scc1 L_pro_join')

RT_A, RT_B, RT_K0, RT_SCR, VW_M0, VW_SO = 46, 47, 48, 49, 50, 52
I(f's_cmp_lt_u32 {s(S_T1)}, 20')
csel(RT_A, 8 * 1280, 4 * 1280)
csel(RT_B, 4 * 1280, 16 * 1280)
I(f's_cselect_b32 {s(RT_K0)}, 0, 20')
I(f's_sub_u32 {s(RT_K0)}, {s(S_T1)}, {s(RT_K0)}')
I(f's_mul_i32 {s(RT_K0)}, {s(RT_K0)}, {32 * 1280}')
I(f's_lshl_b32 {s(S_T3)}, {s(S_T2)}, 8')
I(f's_add_u32 {s(RT_K0)}, {s(RT_K0)}, {s(S_T3)}')
I(f's_and_b32 {s(S_T3)}, {s(S_WAVE)}, 1')
I(f's_mul_i32 {s(VW_M0)}, {s(S_T3)}, {8 * RROW}')
I(f's_add_u32 {s(RT_SCR)}, {s(VW_M0)}, {7 * SLOT}')
I(f's_add_u32 {s(VW_M0 + 1)}, {s(VW_M0)}, {4 * RROW}')
I(f's_lshl_b32 {s(S_T4)}, {s(S_PITCH)}, 4')
I(f's_mul_i32 {s(VW_SO)}, {s(S_T3)}, {s(S_T4)}')
I(f's_lshl_b32 {s(S_T4)}, {s(S_PITCH)}, 3')
I(f's_add_u32 {s(VW_SO + 1)}, {s(VW_SO)}, {s(S_T4)}')
RTV, RTL = T + 8, T + 9
I(f'v_lshrrev_b32 {v(RTV)}, 4, {v(V_LANE)}')
I(f'v_mul_u32_u24 {v(RTV)}, 1280, {v(RTV)}')
I(f'v_and_b32 {v(T)}, 15, {v(V_LANE)}')
I(f'v_lshl_add_u32 {v(RTV)}, {v(T)}, 4, {v(RTV)}')
I(f'v_lshlrev_b32 {v(RTL)}, 8, {v(LP)}')
I(f'v_and_b32 {v(T)}, 3, {v(V_LANE)}')
I(f'v_lshl_add_u32 {v(RTL)}, {v(T)}, 3, {v(RTL)}')
I(f'v_add_u32 {v(RTL)}, {s(RT_SCR)}, {v(RTL)}')
stamp(2, 2)
for t in range(0 if '--nort' in sys.argv else 8):
    hf_, g = t >> 2, t & 3
    I(f's_mul_i32 {s(S_T3)}, {s(RT_A)}, {g}')
    I(f's_add_u32 {s(S_T3)}, {s(S_T3)}, {s(RT_K0)}')
    if hf_:
        I(f's_add_u32 {s(S_T3)}, {s(S_T3)}, {s(RT_B)}')
    I(f's_add_u32 m0, {s(RT_SCR)}, {1024 * t}')
    I(f'buffer_load_dwordx4 {v(RTV)}, {s(SRD_RT, 4)}, {s(S_T3)} offen lds', tag='rt')
I(f's_mul_i32 {s(S_T3)}, {s(S_T1)}, 40960')
I(f's_lshl_b32 {s(S_T4)}, {s(S_T2)}, 13')
I(f's_add_u32 {s(S_T3)}, {s(S_T3)}, {s(S_T4)}')
I(f's_add_u32 {s(S_T3)}, {s(S_T3)}, {W_T}')
I(f's_cmp_lt_u32 {s(S_T1)}, 74')
I(f's_cselect_b32 {s(S_T3)}, {s(S_T3)}, {OOB}')
k.wait_vm_tag('pf')
stamp(3, 2)
for sl in range(NPRE):
    for h in range(2):
        I(f's_add_u32 m0, {s(VW_M0 + h)}, {sl * SLOT}')
        for j in range(4):
            dma1(j, VW_SO + h, ('ring', sl))
        I(f's_add_u32 {s(VW_SO + h)}, {s(VW_SO + h)}, {s(S_KSTR)}')
    if sl >= 1:
        k.wait_vm_tag(('ring', sl - 1))
    if sl == min(1, NPRE - 1) and '--nort' not in sys.argv:
        stamp(4, 2)
        k.wait_vm_tag('rt')
        RF = ACC
        for nb in range(8):
            I(f'ds_read_b64_tr_b16 {v(RF + 4 * nb, 2)}, {v(RTL)} offset:{32 * nb}')
            I(f'ds_read_b64_tr_b16 {v(RF + 4 * nb + 2, 2)}, {v(RTL)} offset:{32 * nb + 4096}')
        for nb in range(8):
            I(f'buffer_store_dwordx4 {v(RF + 4 * nb, 4)}, {v(V_L16 if nb < 4 else V_L16B)}, {s(SRD_WS, 4)}, {s(S_T3)} offen offset:{1024 * (nb & 3)} sc1')
stamp(5, 2)
stamp(1)
k.wait_all(vm=False, lg=True)

k.label('L_pro_join')
k.vmq = [(set(), 'unknown')]
k.lgq = []
I('s_nop 4')
I(f's_mul_i32 {s(S_WOB)}, {s(S_WAVE)}, 40960')
I(f's_mul_i32 {s(S_T3)}, {s(S_NT)}, 5120')
I(f's_add_u32 {s(S_WOB)}, {s(S_WOB)}, {s(S_T3)}')
I(f's_add_u32 {s(S_WOB)}, {s(S_WOB)}, {W_T}')
I(f's_mul_i32 {s(S_WOM)}, {s(S_WAVE)}, {5 * 1024}')
WPF0, WPF1 = 224, 225
I(f'v_mul_u32_u24 {v(T)}, 205, {v(V_LANE)}')
I(f'v_lshrrev_b32 {v(T)}, 11, {v(T)}')
I(f'v_min_u32 {v(T)}, 5, {v(T)}')
I(f'v_mul_u32_u24 {v(T + 1)}, 10, {v(T)}')
I(f'v_sub_u32 {v(T + 1)}, {v(V_LANE)}, {v(T + 1)}')
I(f'v_min_u32 {v(T + 1)}, 9, {v(T + 1)}')
I(f's_and_b32 {s(S_T3)}, {s(S_M2)}, 3')
I(f's_mul_i32 {s(S_T3)}, {s(S_T3)}, 1280')
I(f'v_lshl_add_u32 {v(T + 1)}, {v(T + 1)}, 7, {s(S_T3)}')
I(f's_mov_b32 {s(S_T4)}, 40960')
I(f'v_mad_u32_u24 {v(WPF0)}, {v(T)}, {s(S_T4)}, {v(T + 1)}')
I(f's_add_u32 {s(S_T3)}, {s(S_W2A)}, {4 * 40960}')
I(f's_add_u32 {s(S_T4)}, {s(S_W2B)}, {1 * 40960}')
I(f'v_mov_b32 {v(T + 2)}, {s(S_T3)}')
I(f'v_mov_b32 {v(T + 3)}, {s(S_T4)}')
I(f'v_cmp_lt_u32 vcc, 2, {v(T)}')
I(f'v_cndmask_b32 {v(T + 2)}, {v(T + 2)}, {v(T + 3)}, vcc')
I(f'v_add_u32 {v(WPF0)}, {v(WPF0)}, {v(T + 2)}')
I(f'v_min_u32 {v(T)}, 4, {v(T)}')
I(f's_mov_b32 {s(S_T4)}, {4 * 40960}')
I(f'v_mad_u32_u24 {v(WPF1)}, {v(T)}, {s(S_T4)}, {v(T + 1)}')
I(f'v_add_u32 {v(WPF1)}, {s(S_WOB)}, {v(WPF1)}')
assert all((x * 205) >> 11 == x // 10 for x in range(64))
I(f's_cmp_eq_u32 {s(S_WAVE)}, 3')
I(f's_cselect_b32 {s(S_LAST)}, {OOB}, 0')
I(f's_cmp_eq_u32 {s(S_TYPE)}, 1')
I('s_cbranch_scc1 L_ffn')
st_join = k.state()


def ln_wait():
    lab = k.newlabel('L_lnw')
    I(f's_cmp_eq_u32 {s(S_WAVE)}, 0')
    I(f's_cbranch_scc0 {lab}')
    stamp(6, 2)
    poll(V_PA, 'ln')
    k.label(lab)
    k.wait_all()
    stamp(7, 2)
    I('s_barrier')
    stamp(8, 2)


def wt_flag():
    I(f's_lshl_b32 {s(S_T3)}, {s(S_WG)}, 2')
    I(f's_add_u32 {s(S_T3)}, {s(S_T3)}, {WTF}')
    I(f's_cmp_eq_u32 {s(S_WAVE)}, 1')
    I(f's_cselect_b32 {s(S_T3)}, {s(S_T3)}, {OOB}')
    I(f'v_mov_b32 {v(T)}, {s(S_TAG)}')
    I(f'v_lshlrev_b32 {v(T + 1)}, 24, {v(V_LANE)}')
    I(f'buffer_store_dword {v(T)}, {v(T + 1)}, {s(SRD_WS, 4)}, {s(S_T3)} offen sc1')


def tag_fetch():
    I(f'v_mov_b32 {v(T + 1)}, {CNT}')
    I(f'ds_read_b32 {v(T)}, {v(T + 1)} offset:4')
    I(f'v_readfirstlane_b32 {s(S_TAG)}, {v(T)}')


AWN = 6


def areg(ks, rb):
    return a(((ks % AWN) * 2 + rb) * 4, 4)


def load_A(ks, rb):
    I(f'buffer_load_dwordx4 {areg(ks, rb)}, {v(V_L16)}, {s(SRD_WS, 4)}, {s(S_AO + rb * 5 + ks // 4)} offen offset:{(ks & 3) * 1024} sc1')


W2ORDER = list(range(2 * AWN, 64)) + list(range(2 * AWN))
YSTEP = [(0, p) for p in range(4)] + [(1, p) for p in range(4)] + [(0, p) for p in range(4, 7)] + [(1, p) for p in range(4, 7)]


def w2reg(st, nb):
    f = st * 5 + nb
    return a(4 * W2ORDER[f], 4) if f < 64 else v(W2V + 4 * (f - 64), 4)


def w2load(f):
    st, nb = divmod(f, 5)
    ab, p = YSTEP[st]
    sb = S_W2B if ab else S_W2A
    if (ab, p) == (0, 5) and nb == 0:
        I(f's_add_u32 {s(sb)}, {s(sb)}, {s(S_LAST)}')
    I(f'buffer_load_dwordx4 {w2reg(st, nb)}, {v(V_L16 if nb < 4 else V_L16B)}, {s(SRD_WS, 4)}, {s(sb)} offen offset:{(nb & 3) * 1024} sc1')
    if nb == 4:
        I(f's_add_u32 {s(sb)}, {s(sb)}, 40960')


def wodma(i, nb):
    if nb == 0:
        I(f's_add_u32 {s(S_T5)}, {s(S_WOB)}, {i * 4 * 40960}')
    if nb == 0 or nb == 4:
        I(f's_add_u32 m0, {s(S_WOM)}, {LDS_WO + (i * 20 + (4 if nb == 4 else 0)) * 1024}')
    I(f'buffer_load_dwordx4 {v(V_L16 if nb < 4 else V_L16B)}, {s(SRD_WS, 4)}, {s(S_T5)} offen offset:{(nb & 3) * 1024} sc1 lds')


def mainloop(ncb, halo, first_c_zero, w2rate):
    NF = ncb + (3 if halo else 0)
    LA = 7
    items = [(ks, j) for ks in range(20) for j in range(NF)]
    N = len(items)
    aux = [[] for _ in range(20)]
    for ks in range(16):
        kn = ks + 4
        al = [lambda kn=kn, rb=rb: load_A(kn, rb) for rb in range(2)]
        dm = []
        if kn >= NPRE:
            for j in range(4):
                def f(j=j, kn=kn):
                    if j == 0:
                        I(f's_add_u32 m0, {s(S_M0B)}, {(kn % NSLOT) * SLOT}')
                    dma1(j, S_SOFF, ('dma', kn))
                    if j == 3:
                        I(f's_add_u32 {s(S_SOFF)}, {s(S_SOFF)}, {s(S_KSTR)}')
                dm.append(f)
        aux[ks] = dm[:2] + al[:1] + dm[2:] + al[1:]
    WTK = opt('wtk', 9)
    aux[WTK - 3].append(lambda: chk_issue(V_PA, 4))
    aux[0].append(lambda: I(f'buffer_load_dword {v(T + 3)}, {v(PFL)}, {s(SRD_B, 4)}, 0 offen'))

    def pf2b():
        I(f's_lshl_b32 {s(S_T3)}, {s(S_PITCH)}, 8')
        I(f'buffer_load_dword {v(T + 4)}, {v(PFL)}, {s(SRD_B, 4)}, {s(S_T3)} offen')
    aux[1].append(pf2b)
    if '--nowpf' not in sys.argv:
      aux[WTK + 1].append(lambda: I(f'buffer_load_dword {v(T + 5)}, {v(WPF0)}, {s(SRD_WS, 4)}, 0 offen sc1'))
      aux[WTK + 3].append(lambda: I(f'buffer_load_dword {v(T + 6)}, {v(WPF1)}, {s(SRD_WS, 4)}, 0 offen sc1'))
    f = 0
    for ks in range(WTK, 20):
        cnt = w2rate[0] if ks < 16 else w2rate[1]
        for _ in range(cnt):
            if f < 64 - 2 * AWN:
                aux[ks].append(lambda f=f: w2load(f))
                f += 1
    w2done = f

    def rd(n, half):
        ks, j = items[n]
        sl = ks % NSLOT
        w = WIN + 4 * (n % 8)
        if j < ncb:
            base = V_TR0 if sl < 4 else V_TR1
            off = (sl % 4) * SLOT + 32 * j
        else:
            base = V_TRH0 if sl < 4 else V_TRH1
            off = (sl % 4) * SLOT + 32 * (j - ncb)
        if j == 0 and half == 0 and ks >= 2 and ks % 2 == 0:
            if ks + 1 >= NPRE:
                k.wait_vm_tag(('dma', ks + 1))
            I('s_barrier')
        I(f'ds_read_b64_tr_b16 {v(w + 2 * half, 2)}, {v(base)} offset:{off + 512 * half}')
        if halo and j == ncb and half == 1:
            I(f'ds_read_b128 {v(HX + 4 * (ks & 1), 4)}, {v(V_X)} offset:{ks * 1024}')

    for n in range(LA):
        rd(n, 0)
        rd(n, 1)
    I(f'v_add_u32 {v(V_PA)}, {WTF}, {v(V_L16)}')
    for n in range(N):
        ks, j = items[n]
        w = WIN + 4 * (n % 8)
        if j == 0:
            pend = list(aux[ks])
            tot = len(pend)
            done = 0
            if ks in (0, 1, 2, 4, 8, 12, 16, 18):
                stamp(1 + (0, 1, 2, 4, 8, 12, 16, 18).index(ks), 1)
            if ks == WTK:
                poll(V_PA, 'wt', 4, preissued=True)
        if n % 2 == 0 and n + 1 < N:
            k._need(regs_of(v(WIN + 4 * ((n + 1) % 8), 4)) | regs_of(v(w, 4)))
        if j < ncb:
            for rb in range(2):
                d = ACC + (j * 2 + rb) * 4
                c_ = '0' if (ks == 0 and first_c_zero) else v(d, 4)
                I(f'v_mfma_f32_16x16x32_bf16 {v(d, 4)}, {v(w, 4)}, {areg(ks, rb)}, {c_}')
                if n + LA < N:
                    rd(n + LA, rb)
        else:
            d = HACC + (j - ncb) * 4
            c_ = '0' if ks == 0 else v(d, 4)
            I(f'v_mfma_f32_16x16x32_bf16 {v(d, 4)}, {v(w, 4)}, {v(HX + 4 * (ks & 1), 4)}, {c_}')
            if n + LA < N:
                rd(n + LA, 0)
                rd(n + LA, 1)
        while done < tot and done * NF <= j * tot + tot - 1 and (n % 2 == 0 or tot > NF // 2):
            pend[done]()
            done += 1
            if tot <= NF:
                break
        if j == NF - 1:
            while done < tot:
                pend[done]()
                done += 1
    return w2done


YACC = 16
SACC = 96
HW = 116
HWN = 5
XIN = 196
B2V = 206
T2 = 216
S_HO = 24
S_EARLY = 19


def h_scalars():
    I(f's_mul_i32 {s(S_T3)}, {s(S_M2)}, {4 * ACT_MB}')
    I(f's_add_u32 {s(S_T3)}, {s(S_T3)}, {ACT_T + 20 * 1024}')
    I(f's_mul_i32 {s(S_T4)}, {s(S_WAVE)}, 14')
    I(f's_add_u32 {s(S_T5)}, {s(S_T4)}, 7')
    I(f's_min_u32 {s(S_T5)}, {s(S_T5)}, 47')
    for ab, r in ((0, S_T4), (1, S_T5)):
        I(f's_lshl_b32 {s(r)}, {s(r)}, 10')
        I(f's_add_u32 {s(S_HO + 4 * ab)}, {s(S_T3)}, {s(r)}')
        for mb in range(1, 4):
            I(f's_add_u32 {s(S_HO + 4 * ab + mb)}, {s(S_HO + 4 * ab)}, {mb * ACT_MB}')


def hload(st, mb):
    ab, p = YSTEP[st]
    so = S_HO + 4 * ab + mb
    if (ab, p) == (0, 5):
        I(f's_add_u32 {s(so)}, {s(so)}, {s(S_LAST)}')
    I(f'buffer_load_dwordx4 {v(HW + 16 * (st % HWN) + 4 * mb, 4)}, {v(V_L16 if p < 4 else V_L16B)}, {s(SRD_WS, 4)}, {s(so)} offen offset:{(p & 3) * 1024} sc1')


def first_hloads():
    for st in range(HWN):
        for mb in range(4):
            hload(st, mb)


def publish():
    late, j1 = k.newlabel('L_late'), k.newlabel('L_pj')
    chk_eval()
    stamp(6, 4)
    I(f's_mov_b32 {s(S_EARLY)}, 0')
    I(f's_cbranch_vccnz {late}')
    I(f's_mov_b32 {s(S_EARLY)}, 1')
    first_hloads()
    stamp(7, 4)
    k._wait(vm=4 * HWN)
    I(f's_branch {j1}')
    k.label(late)
    k._wait(vm=0)
    k.label(j1)
    stamp(8, 4)
    k.wait_all(vm=False, lg=True)
    I('s_barrier')
    lab = k.newlabel('L_np')
    I(f's_cmp_eq_u32 {s(S_WAVE)}, 0')
    I(f's_cbranch_scc0 {lab}')
    flag_store(P1F, S_FOFF, T2)
    k.label(lab)


I(f's_lshl_b32 {s(S_T3)}, {s(S_MT)}, 3')
I(f's_sub_u32 {s(S_T3)}, {s(S_T3)}, 1')
I(f's_mul_i32 {s(S_T3)}, {s(S_T3)}, 20480')
I(f's_mul_i32 {s(S_T4)}, {s(S_WAVE)}, 5120')
I(f's_add_u32 {s(S_T3)}, {s(S_T3)}, {s(S_T4)}')
I(f's_cmp_eq_u32 {s(S_MT)}, 0')
I(f's_cselect_b32 {s(S_T5)}, {OOB}, {s(S_T3)}')
I(f'v_add_u32 {v(T + 2)}, {s(S_T4)}, {v(V_X)}')
SA = T + 28
SH = T + 33
tm, tg, tn, tq = T + 4, T + 5, T + 6, T + 7
I(f'v_and_b32 {v(tm)}, 15, {v(V_LANE)}')
I(f'v_lshrrev_b32 {v(tg)}, 4, {v(V_LANE)}')
I(f's_lshl_b32 {s(S_T3)}, {s(S_WAVE)}, 5')
I(f's_add_u32 {s(S_T3)}, {s(S_T3)}, 16')
I(f'v_add_u32 {v(tq)}, {s(S_T3)}, {v(tm)}')
I(f'v_mul_u32_u24 {v(tq)}, {RS}, {v(tq)}')
for cb in range(5):
    I(f'v_lshl_add_u32 {v(tn)}, {v(tg)}, 2, {16 * cb}')
    I(f'v_mul_u32_u24 {v(SA + cb)}, 205, {v(tn)}')
    I(f'v_lshrrev_b32 {v(SA + cb)}, 12, {v(SA + cb)}')
    I(f'v_lshl_add_u32 {v(SA + cb)}, {v(SA + cb)}, 2, {v(tn)}')
    I(f'v_lshl_add_u32 {v(SA + cb)}, {v(SA + cb)}, 1, {v(tq)}')
assert all((n * 205) >> 12 == n // 20 for n in range(0, 240, 4))
I(f'v_mul_u32_u24 {v(tq)}, {RS}, {v(tm)}')
for j in range(3):
    I(f's_add_u32 {s(S_T3)}, {s(S_HB)}, {j}')
    I(f's_lshl_b32 {s(S_T3)}, {s(S_T3)}, 4')
    I(f'v_lshl_add_u32 {v(tn)}, {v(tg)}, 2, {s(S_T3)}')
    I(f'v_mul_u32_u24 {v(SH + j)}, 205, {v(tn)}')
    I(f'v_lshrrev_b32 {v(SH + j)}, 12, {v(SH + j)}')
    I(f'v_lshl_add_u32 {v(SH + j)}, {v(SH + j)}, 2, {v(tn)}')
    I(f'v_lshl_add_u32 {v(SH + j)}, {v(SH + j)}, 1, {v(tq)}')
I(f's_mov_b32 {s(S_T2)}, {s(S_T5)}')
h_scalars()
ln_wait()
stamp(2)
for i in range(5):
    I(f'buffer_load_dwordx4 {v(T + 8 + 4 * i, 4)}, {v(V_L16 if i < 4 else V_L16B)}, {s(SRD_WS, 4)}, {s(S_T2)} offen offset:{(i & 3) * 1024} sc1')
for ks in range(4):
    for rb in range(2):
        load_A(ks, rb)
wt_flag()
tag_fetch()
for i in range(5):
    I(f'ds_write_b128 {v(T + 2)}, {v(T + 8 + 4 * i, 4)} offset:{i * 1024}')
k.wait_all(vm=False, lg=True)
I('s_barrier')
stamp(3)
w2done = mainloop(15, True, True, (opt('ra0', 2), opt('ra1', 8)))
stamp(4)
stamp(1, 4)
w2rest = [lambda f=f: w2load(f) for f in range(w2done, 70)] + [lambda i=i, nb=nb: wodma(i, nb) for i in (2, 3, 4) for nb in range(5)]
VA, VB, VO, K2M0, K2M1, NEG = T, T + 1, T + 2, T + 3, 224, 225
t1, t2, t3 = T + 4, T + 5, T + 6
I(f's_mul_i32 {s(S_T3)}, {s(S_WAVE)}, 48')
I(f'v_and_b32 {v(t1)}, 0x38, {v(V_LANE)}')
I(f'v_bfe_u32 {v(t2)}, {v(V_LANE)}, 2, 1')
I(f'v_add_u32 {v(t1)}, {v(t1)}, {v(t2)}')
I(f'v_and_b32 {v(t2)}, 3, {v(V_LANE)}')
I(f'v_lshl_add_u32 {v(t1)}, {v(t2)}, 1, {v(t1)}')
I(f'v_mul_u32_u24 {v(VA)}, {RS}, {v(t1)}')
I(f'v_add_u32 {v(VA)}, {s(S_T3)}, {v(VA)}')
I('s_barrier')
PK = T + 8
n = 0
for cbg in list(range(5, 15)) + list(range(5)):
    sec, cb = divmod(cbg, 5)
    for rb in range(2):
        d = ACC + (cbg * 2 + rb) * 4
        p = PK + 2 * (n % 4)
        n += 1
        I(f'v_cvt_pk_bf16_f32 {v(p)}, {v(d)}, {v(d + 1)}')
        I(f'v_cvt_pk_bf16_f32 {v(p + 1)}, {v(d + 2)}, {v(d + 3)}')
        I(f'ds_write_b64 {v(SA + cb)}, {v(p, 2)} offset:{sec * 192 + rb * 16 * RS}')
        if w2rest:
            w2rest.pop(0)()
for j in range(3):
    d = HACC + 4 * j
    p = PK + 2 * (n % 4)
    n += 1
    I(f'v_cvt_pk_bf16_f32 {v(p)}, {v(d)}, {v(d + 1)}')
    I(f'v_cvt_pk_bf16_f32 {v(p + 1)}, {v(d + 2)}, {v(d + 3)}')
    I(f'ds_write_b64 {v(SH + j)}, {v(p, 2)}')
I(f'v_and_b32 {v(VB)}, 0x30, {v(V_LANE)}')
I(f'v_bfe_u32 {v(t3)}, {v(V_LANE)}, 1, 1')
I(f'v_lshl_add_u32 {v(VB)}, {v(t3)}, 3, {v(VB)}')
I(f'v_and_b32 {v(t3)}, 1, {v(V_LANE)}')
I(f'v_add_u32 {v(VB)}, {v(VB)}, {v(t3)}')
I(f'v_bfe_u32 {v(t3)}, {v(V_LANE)}, 2, 2')
I(f'v_lshl_add_u32 {v(VB)}, {v(t3)}, 1, {v(VB)}')
I(f'v_mul_u32_u24 {v(VB)}, {RS}, {v(VB)}')
I(f'v_add_u32 {v(VB)}, {s(S_T3)}, {v(VB)}')
stamp(2, 4)
k.wait_all(vm=False, lg=True)
I('s_barrier')
stamp(3, 4)

TASKR = [16, 102]
for hf_ in range(2):
    R = TASKR[hf_]
    Q, Kr, Vr = R, R + 12, R + 48
    hb = hf_ * 64 * RS
    I(f'ds_read_b128 {v(Q, 4)}, {v(VA)} offset:{hb + 16 * RS}')
    I(f'ds_read_b128 {v(Q + 4, 4)}, {v(VA)} offset:{hb + 16 * RS + 16}')
    I(f'ds_read_b64 {v(Q + 8, 2)}, {v(VA)} offset:{hb + 16 * RS + 32}')
    for kg in range(3):
        o = hb + kg * 8 * RS + 192
        I(f'ds_read_b128 {v(Kr + 12 * kg, 4)}, {v(VA)} offset:{o}')
        I(f'ds_read_b128 {v(Kr + 12 * kg + 4, 4)}, {v(VA)} offset:{o + 16}')
        I(f'ds_read_b64 {v(Kr + 12 * kg + 8, 2)}, {v(VA)} offset:{o + 32}')
I(f'v_lshrrev_b32 {v(t3)}, 4, {v(t1)}')
I(f'v_mul_u32_u24 {v(VO)}, {ACT_MB}, {v(t3)}')
I(f'v_and_b32 {v(t3)}, 15, {v(t1)}')
I(f'v_lshl_add_u32 {v(VO)}, {v(t3)}, 4, {v(VO)}')
M1, M2, M3, INV1, INV01, INV02, INV03, SC_HI, SC_SCALE, SC_L2E, S_OB = 36, 38, 40, 42, 44, 46, 48, 50, 52, 54, 35
for reg, pat in ((M1, 0xeeeeeeee), (M2, 0xcccccccc), (M3, 0x88888888)):
    I(f's_mov_b32 {s(reg)}, {hex(pat)}')
    I(f's_mov_b32 {s(reg + 1)}, {hex(pat)}')
I(f'v_mov_b32 {v(t3)}, 0xffff')
I(f'v_cndmask_b32 {v(K2M0)}, {v(t3)}, -1, {s(M1, 2)}')
I(f'v_cndmask_b32 {v(K2M1)}, 0, {v(t3)}, {s(M2, 2)}')
I(f'v_cndmask_b32 {v(K2M1)}, {v(K2M1)}, -1, {s(M3, 2)}')
I(f'v_mov_b32 {v(NEG)}, {f32(-1e9)}')
I(f's_cmp_eq_u32 {s(S_MT)}, 0')
I(f's_cselect_b32 {s(INV1)}, 0xff, 0')
I(f's_cselect_b32 {s(INV01)}, 0x1111, 0')
I(f's_cselect_b32 {s(INV02)}, 0x3333, 0')
I(f's_cselect_b32 {s(INV03)}, 0x7777, 0')
for reg in (INV1, INV01, INV02, INV03):
    I(f's_mov_b32 {s(reg + 1)}, 0')
I(f's_mov_b32 {s(SC_HI)}, 0xffff0000')
I(f's_mov_b32 {s(SC_SCALE)}, {f32(20 ** -0.5)}')
I(f's_mov_b32 {s(SC_SCALE + 1)}, {f32(20 ** -0.5)}')
I(f's_mov_b32 {s(SC_L2E)}, {f32(1.4426950408889634)}')
I(f's_mov_b32 {s(SC_L2E + 1)}, {f32(1.4426950408889634)}')
SREG = [T + 4, T + 16]
for hf_ in range(2):
    R = TASKR[hf_]
    Q, Kr, Vr = R, R + 12, R + 48
    Sx = SREG[hf_]
    hb = hf_ * 64 * RS
    for dc in range(5):
        for kg in range(3):
            c_ = '0' if dc == 0 else v(Sx + 4 * kg, 4)
            I(f'v_mfma_f32_4x4x4_16b_bf16 {v(Sx + 4 * kg, 4)}, {v(Kr + 12 * kg + 2 * dc, 2)}, {v(Q + 2 * dc, 2)}, {c_}')
            I(f'ds_read_b64_tr_b16 {v(Vr + 2 * (kg * 5 + dc), 2)}, {v(VB)} offset:{hb + kg * 8 * RS + 384 + 8 * dc}')
stamp(4, 4)
I(f's_mul_i32 {s(S_OB)}, {s(S_MT)}, {8 * ACT_MB}')
I(f's_add_u32 {s(S_OB)}, {s(S_OB)}, {ACT_T}')
I(f's_mul_i32 {s(S_T3)}, {s(S_IDX)}, 2560')
I(f's_add_u32 {s(S_OB)}, {s(S_OB)}, {s(S_T3)}')
I(f's_lshr_b32 {s(S_T3)}, {s(S_WAVE)}, 1')
I(f's_mul_i32 {s(S_T3)}, {s(S_T3)}, 1280')
I(f's_add_u32 {s(S_OB)}, {s(S_OB)}, {s(S_T3)}')
I(f's_add_u32 {s(S_T4)}, {s(S_OB)}, {4 * ACT_MB}')
for hf_ in range(2):
    R = TASKR[hf_]
    Q, Kr, Vr = R, R + 12, R + 48
    Sx = SREG[hf_]
    Lg = Sx + 4
    for r, M in ((1, M1), (2, M2), (3, M3)):
        I(f'v_cndmask_b32 {v(Sx + 8 + r)}, {v(Sx + r)}, {v(Sx + 8 + r)}, {s(M, 2)}')
    P = Sx
    for i in range(4):
        I(f'v_cvt_pk_bf16_f32 {v(P + i)}, {v(Lg + 2 * i)}, {v(Lg + 2 * i + 1)}')
    for i in range(4):
        I(f'v_lshlrev_b32 {v(Lg + 2 * i)}, 16, {v(P + i)}')
        I(f'v_and_b32 {v(Lg + 2 * i + 1)}, {s(SC_HI)}, {v(P + i)}')
    for i in range(4):
        I(f'v_pk_mul_f32 {v(Lg + 2 * i, 2)}, {v(Lg + 2 * i, 2)}, {s(SC_SCALE, 2)}')
    if w2rest:
        w2rest.pop(0)()
    for i in range(4):
        I(f'v_cvt_pk_bf16_f32 {v(P + i)}, {v(Lg + 2 * i)}, {v(Lg + 2 * i + 1)}')
    for i in range(4):
        I(f'v_lshlrev_b32 {v(Lg + 2 * i)}, 16, {v(P + i)}')
        I(f'v_and_b32 {v(Lg + 2 * i + 1)}, {s(SC_HI)}, {v(P + i)}')
    if w2rest:
        w2rest.pop(0)()
    if hf_ == 0:
        for r in range(4):
            I(f'v_cndmask_b32 {v(Lg + r)}, {v(Lg + r)}, {v(NEG)}, {s(INV1, 2)}')
        for r, M in ((1, INV01), (2, INV02), (3, INV03)):
            I(f'v_cndmask_b32 {v(Lg + 4 + r)}, {v(Lg + 4 + r)}, {v(NEG)}, {s(M, 2)}')
    mx = P
    I(f'v_max3_f32 {v(mx)}, {v(Lg)}, {v(Lg + 1)}, {v(Lg + 2)}')
    I(f'v_max3_f32 {v(mx + 1)}, {v(Lg + 3)}, {v(Lg + 4)}, {v(Lg + 5)}')
    I(f'v_max3_f32 {v(mx)}, {v(mx)}, {v(Lg + 6)}, {v(Lg + 7)}')
    I(f'v_max_f32 {v(mx)}, {v(mx)}, {v(mx + 1)}')
    I(f'v_mov_b32 {v(mx + 1)}, {v(mx)}')
    for i in range(4):
        I(f'v_pk_add_f32 {v(Lg + 2 * i, 2)}, {v(Lg + 2 * i, 2)}, {v(mx, 2)} neg_lo:[0,1] neg_hi:[0,1]')
    for i in range(4):
        I(f'v_pk_mul_f32 {v(Lg + 2 * i, 2)}, {v(Lg + 2 * i, 2)}, {s(SC_L2E, 2)}')
    if w2rest:
        w2rest.pop(0)()
    for i in range(8):
        I(f'v_exp_f32 {v(Lg + i)}, {v(Lg + i)}')
    I(f'v_pk_add_f32 {v(P, 2)}, {v(Lg, 2)}, {v(Lg + 2, 2)}')
    I(f'v_pk_add_f32 {v(P + 2, 2)}, {v(Lg + 4, 2)}, {v(Lg + 6, 2)}')
    I(f'v_pk_add_f32 {v(P, 2)}, {v(P, 2)}, {v(P + 2, 2)}')
    I(f'v_add_f32 {v(P)}, {v(P)}, {v(P + 1)}')
    I(f'v_rcp_f32 {v(P)}, {v(P)}')
    if w2rest:
        w2rest.pop(0)()
    I(f'v_mov_b32 {v(P + 1)}, {v(P)}')
    for i in range(4):
        I(f'v_pk_mul_f32 {v(Lg + 2 * i, 2)}, {v(Lg + 2 * i, 2)}, {v(P, 2)}')
    PB = Kr
    I(f'v_cvt_pk_bf16_f32 {v(PB + 2)}, {v(Lg)}, {v(Lg + 1)}')
    I(f'v_cvt_pk_bf16_f32 {v(PB + 3)}, {v(Lg + 2)}, {v(Lg + 3)}')
    I(f'v_cvt_pk_bf16_f32 {v(PB)}, {v(Lg + 4)}, {v(Lg + 5)}')
    I(f'v_cvt_pk_bf16_f32 {v(PB + 1)}, {v(Lg + 6)}, {v(Lg + 7)}')
    I(f'v_and_b32 {v(PB + 4)}, {v(PB)}, {v(K2M0)}')
    I(f'v_and_b32 {v(PB + 5)}, {v(PB + 1)}, {v(K2M1)}')
    I(f'v_xor_b32 {v(PB)}, {v(PB)}, {v(PB + 4)}')
    I(f'v_xor_b32 {v(PB + 1)}, {v(PB + 1)}, {v(PB + 5)}')
    O = Kr + 8
    for kg in (1, 2, 0):
        for dc in range(5):
            c_ = '0' if kg == 1 else v(O + 4 * dc, 4)
            I(f'v_mfma_f32_4x4x4_16b_bf16 {v(O + 4 * dc, 4)}, {v(Vr + 2 * (kg * 5 + dc), 2)}, {v(PB + 2 * kg, 2)}, {c_}')
while w2rest:
    w2rest.pop(0)()
chk_issue(V_PF)
stamp(5, 4)
for hf_ in range(2):
    R = TASKR[hf_]
    O = R + 12 + 8
    for i in range(10):
        I(f'v_cvt_pk_bf16_f32 {v(R + i)}, {v(O + 2 * i)}, {v(O + 2 * i + 1)}')
lodd, ldone = k.newlabel('L_oodd'), k.newlabel('L_odone')
I(f's_bitcmp1_b32 {s(S_WAVE)}, 0')
I(f's_cbranch_scc1 {lodd}')
sto = k.state()
for hf_ in range(2):
    OP = TASKR[hf_]
    so = s(S_OB if hf_ == 0 else S_T4)
    I(f'buffer_store_dwordx4 {v(OP, 4)}, {v(VO)}, {s(SRD_WS, 4)}, {so} offen sc1')
    I(f'buffer_store_dwordx4 {v(OP + 4, 4)}, {v(VO)}, {s(SRD_WS, 4)}, {so} offen offset:256 sc1')
    I(f'buffer_store_dwordx2 {v(OP + 8, 2)}, {v(VO)}, {s(SRD_WS, 4)}, {so} offen offset:512 sc1')
I(f's_branch {ldone}')
k.set_state(sto)
k.label(lodd)
for hf_ in range(2):
    OP = TASKR[hf_]
    so = s(S_OB if hf_ == 0 else S_T4)
    I(f'buffer_store_dwordx2 {v(OP, 2)}, {v(VO)}, {s(SRD_WS, 4)}, {so} offen offset:520 sc1')
    I(f'buffer_store_dwordx4 {v(OP + 2, 4)}, {v(VO)}, {s(SRD_WS, 4)}, {so} offen offset:768 sc1')
    I(f'buffer_store_dwordx4 {v(OP + 6, 4)}, {v(VO)}, {s(SRD_WS, 4)}, {so} offen offset:1024 sc1')
k.label(ldone)
stamp(5)
publish()
I('s_branch L_phase2')

k.set_state(st_join)
k.label('L_ffn')
h_scalars()
ln_wait()
stamp(2)
for ks in range(4):
    for rb in range(2):
        load_A(ks, rb)
wt_flag()
tag_fetch()
I(f's_lshl_b32 {s(S_T3)}, {s(S_WAVE)}, 9')
I(f's_add_u32 {s(S_T3)}, {s(S_T3)}, {HALO}')
I(f'v_lshl_add_u32 {v(T)}, {v(V_LANE)}, 3, {s(S_T3)}')
I(f'ds_write_b64 {v(T)}, {v(BIAS, 2)}')
I(f'v_lshrrev_b32 {v(T)}, 4, {v(V_LANE)}')
I(f'v_lshl_add_u32 {v(T)}, {v(T)}, 3, {s(S_T3)}')
for cb in range(14):
    I(f'ds_read_b64 {v(T + 8 + 2 * cb, 2)}, {v(T)} offset:{32 * cb}')
I(f's_mov_b32 {s(S_T4)}, 0xffff0000')
for cb in range(14):
    for rb in range(2):
        d = ACC + (cb * 2 + rb) * 4
        for h in range(2):
            I(f'v_lshlrev_b32 {v(d + 2 * h)}, 16, {v(T + 8 + 2 * cb + h)}')
            I(f'v_and_b32 {v(d + 2 * h + 1)}, {s(S_T4)}, {v(T + 8 + 2 * cb + h)}')
stamp(3)
w2done = mainloop(14, False, False, (opt('rf0', 3), opt('rf1', 6)))
stamp(4)
stamp(1, 4)
I('s_barrier')
w2rest = [lambda f=f: w2load(f) for f in range(w2done, 70)] + [lambda i=i, nb=nb: wodma(i, nb) for i in (2, 3, 4) for nb in range(5)]
C0 = -2.0 * 0.7978845608028654 * 1.4426950408889634
C1 = C0 * 0.044715
GC0, GONE = T, T + 2
GS1 = 36
I(f'v_mov_b32 {v(GC0)}, {f32(C0)}')
I(f'v_mov_b32 {v(GC0 + 1)}, {f32(C0)}')
I(f'v_mov_b32 {v(GONE)}, 1.0')
I(f'v_mov_b32 {v(GONE + 1)}, 1.0')
I(f's_mov_b32 {s(GS1)}, {f32(C1)}')
I(f's_mov_b32 {s(GS1 + 1)}, {f32(C1)}')
S_HB2 = 38
I(f's_mul_i32 {s(S_HB2)}, {s(S_MB0)}, {ACT_MB}')
I(f's_lshl_b32 {s(S_T3)}, {s(S_START)}, 10')
I(f's_add_u32 {s(S_HB2)}, {s(S_HB2)}, {s(S_T3)}')
I(f's_add_u32 {s(S_HB2)}, {s(S_HB2)}, {ACT_T + 20 * 1024}')
I(f's_add_u32 {s(S_HB2 + 1)}, {s(S_HB2)}, {ACT_MB}')
n = 0
for pr in range(7):
    for rb in range(2):
        tmp = T + 4 + 8 * (n % 2)
        out = T + 20 + 4 * (n % 4)
        n += 1
        xs = [ACC + ((2 * pr + c2) * 2 + rb) * 4 + 2 * h for c2 in range(2) for h in range(2)]
        for i, x in enumerate(xs):
            I(f'v_pk_mul_f32 {v(tmp + 2 * i, 2)}, {v(x, 2)}, {v(x, 2)}')
        for i, x in enumerate(xs):
            I(f'v_pk_fma_f32 {v(tmp + 2 * i, 2)}, {v(tmp + 2 * i, 2)}, {s(GS1, 2)}, {v(GC0, 2)}')
        for i, x in enumerate(xs):
            I(f'v_pk_mul_f32 {v(tmp + 2 * i, 2)}, {v(tmp + 2 * i, 2)}, {v(x, 2)}')
        if w2rest:
            w2rest.pop(0)()
        for i in range(8):
            I(f'v_exp_f32 {v(tmp + i)}, {v(tmp + i)}')
        for i in range(4):
            I(f'v_pk_add_f32 {v(tmp + 2 * i, 2)}, {v(tmp + 2 * i, 2)}, {v(GONE, 2)}')
        if w2rest:
            w2rest.pop(0)()
        for i in range(8):
            I(f'v_rcp_f32 {v(tmp + i)}, {v(tmp + i)}')
        for i, x in enumerate(xs):
            I(f'v_pk_mul_f32 {v(tmp + 2 * i, 2)}, {v(tmp + 2 * i, 2)}, {v(x, 2)}')
        if w2rest:
            w2rest.pop(0)()
        for i in range(4):
            I(f'v_cvt_pk_bf16_f32 {v(out + i)}, {v(tmp + 2 * i)}, {v(tmp + 2 * i + 1)}')
        I(f'buffer_store_dwordx4 {v(out, 4)}, {v(V_L16 if pr < 4 else V_L16B)}, {s(SRD_WS, 4)}, {s(S_HB2 + rb)} offen offset:{(pr & 3) * 1024} sc1', tag=('h', pr))
        if rb == 1 and pr in (1, 3):
            stamp(2 + pr // 2, 4)
        if pr == 5 and rb == 0:
            stamp(4, 4)
            k.wait_vm_tag(('h', 3))
            I('s_barrier')
            lab = k.newlabel('L_nh')
            I(f's_cmp_eq_u32 {s(S_WAVE)}, 0')
            I(f's_cbranch_scc0 {lab}')
            flag_store(P1F + 64, S_FOFF, 224)
            k.label(lab)
            stamp(5, 4)
        if pr == 6 and rb == 0:
            while w2rest:
                w2rest.pop(0)()
            chk_issue(V_PF)
stamp(5)
publish()

k.label('L_phase2')
k.vmq = []
k.lgq = []
stamp(6)
lab = k.newlabel('L_haveh')
I(f's_cmp_eq_u32 {s(S_EARLY)}, 1')
I(f's_cbranch_scc1 {lab}')
poll(V_PF, 'ffn')
first_hloads()
k.label(lab)
stamp(7)
S_OBASE, S_OOK, S_HI, S_NL2E = 36, 39, 40, 41
I(f's_lshl_b32 {s(S_T3)}, {s(S_M2)}, 2')
I(f's_add_u32 {s(S_T3)}, {s(S_T3)}, {s(S_WAVE)}')
I(f's_mul_i32 {s(S_OBASE)}, {s(S_T3)}, {ACT_MB}')
I(f's_add_u32 {s(S_OBASE)}, {s(S_OBASE)}, {ACT_T}')
I(f's_mov_b32 {s(S_HI)}, 0xffff0000')
I(f's_mov_b32 {s(S_NL2E)}, {f32(-1.4426950408889634)}')
VXO, VB2, VPA2, VRED2, VWO1, VWO2 = T2 + 2, T2 + 3, T2 + 4, T2 + 5, T2 + 6, T2 + 7
I(f'v_and_b32 {v(VB2)}, 15, {v(V_LANE)}')
I(f's_lshl_b32 {s(S_T3)}, {s(S_T3)}, 4')
I(f'v_add_u32 {v(VB2)}, {s(S_T3)}, {v(VB2)}')
I(f'v_mul_u32_u24 {v(VXO)}, 1280, {v(VB2)}')
I(f'v_lshrrev_b32 {v(VB2)}, 4, {v(V_LANE)}')
I(f's_mul_i32 {s(S_T3)}, {s(S_NT)}, 160')
I(f'v_lshl_add_u32 {v(VB2)}, {v(VB2)}, 3, {s(S_T3)}')
I(f'v_add_u32 {v(VXO)}, {v(VXO)}, {v(VB2)}')
I(f'v_subrev_u32 {v(V_PF)}, 64, {v(V_PF)}')
I(f's_lshr_b32 {s(S_T3)}, {s(S_M2)}, 1')
I(f's_lshl_b32 {s(S_T3)}, {s(S_T3)}, 7')
I(f's_add_u32 {s(S_T3)}, {s(S_T3)}, {P1F}')
I(f'v_and_b32 {v(VPA2)}, 7, {v(V_LANE)}')
I(f'v_lshl_add_u32 {v(VPA2)}, {v(VPA2)}, 2, {s(S_T3)}')
I(f's_mul_i32 {s(S_T3)}, {s(S_WAVE)}, {15 * 1024}')
I(f'v_add_u32 {v(VRED2)}, {s(S_T3)}, {v(V_L16)}')
I(f'v_add_u32 {v(VWO1)}, {LDS_WO}, {v(V_L16)}')
I(f'v_add_u32 {v(VWO2)}, {LDS_WO + 65536}, {v(V_L16)}')


def oreg(ks):
    return a(4 * W2ORDER[ks], 4)


def oload(ks):
    if ks % 8 == 0 and ks:
        I(f's_add_u32 {s(S_OBASE)}, {s(S_OBASE)}, 8192')
    I(f'buffer_load_dwordx4 {oreg(ks)}, {v(V_L16 if (ks & 7) < 4 else V_L16B)}, {s(SRD_WS, 4)}, {s(S_OBASE)} offen offset:{(ks & 3) * 1024} sc1')


extra = {st: [] for st in range(14)}
extra[1] = [lambda: chk_issue(V_PF)]
wl = [lambda i=i, nb=nb: wodma(i, nb) for i in (0, 1) for nb in range(5)]
for st in range(3, 8):
    extra[st] = wl[2 * (st - 3):2 * (st - 3) + 2]
extra[7].append(lambda: chk_issue(VPA2))
late = [lambda ks=ks: oload(ks) for ks in range(8)]
for nb in range(5):
    late.append(lambda nb=nb: I(f'buffer_load_dwordx2 {v(B2V + 2 * nb, 2)}, {v(VB2)}, {s(SRD_B2, 4)}, 0 offen offset:{32 * nb}'))
late += [lambda ks=ks: oload(ks) for ks in range(8, 20)]
for nb in range(5):
    late.append(lambda nb=nb: I(f'buffer_load_dwordx2 {v(XIN + 2 * nb, 2)}, {v(VXO)}, {s(SRD_X, 4)}, 0 offen offset:{32 * nb}'))
for i, st in enumerate(range(9, 13)):
    extra[st] = late[8 * i:8 * i + 8]
I(f's_mov_b32 {s(S_OOK)}, 1')
for st in range(13):
    if st in (0, 1, 3, 5, 8, 12):
        stamp(1 + (0, 1, 3, 5, 8, 12).index(st), 3)
    if st == 8 - HWN:
        poll(V_PF, 'ffn2', preissued=True)
    if st == 9:
        poll(VPA2, 'att', preissued=True)
    for mb in range(4):
        for nb in range(5):
            d = YACC + (mb * 5 + nb) * 4
            c_ = '0' if st == 0 else v(d, 4)
            I(f'v_mfma_f32_16x16x32_bf16 {v(d, 4)}, {w2reg(st, nb)}, {v(HW + 16 * (st % HWN) + 4 * mb, 4)}, {c_}')
            if nb in (1, 3) and extra[st] and (nb == 1 or st >= 9):
                extra[st].pop(0)()
        if st + HWN < 14:
            hload(st + HWN, mb)
    assert not extra[st]
labs = [k.newlabel('L_red') for _ in range(4)]
lend = k.newlabel('L_redend')
k._need(regs_of(v(HW + 16 * (13 % HWN), 16)))
stw = k.state()
YOWN = HW
for w in range(4):
    k.set_state(stw)
    if w:
        k.label(labs[w])
    if w < 3:
        I(f's_cmp_eq_u32 {s(S_WAVE)}, {w}')
        I(f's_cbranch_scc0 {labs[w + 1]}')
    wr = []
    for i in (1, 2, 3, 0):
        mb = (w + i) & 3
        for nb in range(5):
            d = YACC + (mb * 5 + nb) * 4
            dd = d if i else YOWN + 4 * nb
            I(f'v_mfma_f32_16x16x32_bf16 {v(dd, 4)}, {w2reg(13, nb)}, {v(HW + 16 * (13 % HWN) + 4 * mb, 4)}, {v(d, 4)}')
            if len(wr) >= 4:
                I(wr.pop(0))
            if i:
                wr.append(f'ds_write_b128 {v(V_L16)}, {v(d, 4)} offset:{LDS_RED + ((mb * 3 + i - 1) * 5 + nb) * 1024}')
            elif wr and len(wr) < 4:
                I(wr.pop(0))
    while wr:
        I(wr.pop(0))
    if w < 3:
        I(f's_branch {lend}')
k.label(lend)
stamp(8)
stamp(7, 3)
k.wait_all(vm=False, lg=True)
I('s_barrier')
YT = HW + 20
for i in range(3):
    for nb in range(5):
        I(f'ds_read_b128 {v(YT + 20 * i + 4 * nb, 4)}, {v(VRED2)} offset:{LDS_RED + (i * 5 + nb) * 1024}')
WOW = YACC
LA2 = 12


def woread(n):
    off = n * 1024
    if off < 65536:
        I(f'ds_read_b128 {v(WOW + 4 * (n % 16), 4)}, {v(VWO1)} offset:{off}')
    else:
        I(f'ds_read_b128 {v(WOW + 4 * (n % 16), 4)}, {v(VWO2)} offset:{off - 65536}')


for n in range(LA2):
    woread(n)
G1 = YT
valu = []
for i in range(3):
    for r in range(20):
        valu.append(f'v_add_f32 {v(YOWN + r)}, {v(YOWN + r)}, {v(YT + 20 * i + r)}')
seq = [
    lambda y, p, r: f'v_cvt_pk_bf16_f32 {v(p)}, {v(y)}, {v(y + 1)}',
    lambda y, p, r: f'v_lshlrev_b32 {v(y)}, 16, {v(p)}',
    lambda y, p, r: f'v_and_b32 {v(y + 1)}, {s(S_HI)}, {v(p)}',
    lambda y, p, r: f'v_lshlrev_b32 {v(p)}, 16, {v(B2V + r)}',
    lambda y, p, r: f'v_and_b32 {v(p + 1)}, {s(S_HI)}, {v(B2V + r)}',
    lambda y, p, r: f'v_add_f32 {v(y)}, {v(y)}, {v(p)}',
    lambda y, p, r: f'v_add_f32 {v(y + 1)}, {v(y + 1)}, {v(p + 1)}',
    lambda y, p, r: f'v_cvt_pk_bf16_f32 {v(p)}, {v(y)}, {v(y + 1)}',
    lambda y, p, r: f'v_lshlrev_b32 {v(y)}, 16, {v(p)}',
    lambda y, p, r: f'v_and_b32 {v(y + 1)}, {s(S_HI)}, {v(p)}',
    lambda y, p, r: f'v_mul_f32 {v(p)}, {s(S_NL2E)}, {v(y)}',
    lambda y, p, r: f'v_mul_f32 {v(p + 1)}, {s(S_NL2E)}, {v(y + 1)}',
    lambda y, p, r: f'v_exp_f32 {v(p)}, {v(p)}',
    lambda y, p, r: f'v_exp_f32 {v(p + 1)}, {v(p + 1)}',
    lambda y, p, r: f'v_add_f32 {v(p)}, 1.0, {v(p)}',
    lambda y, p, r: f'v_add_f32 {v(p + 1)}, 1.0, {v(p + 1)}',
    lambda y, p, r: f'v_rcp_f32 {v(p)}, {v(p)}',
    lambda y, p, r: f'v_rcp_f32 {v(p + 1)}, {v(p + 1)}',
    lambda y, p, r: f'v_mul_f32 {v(y)}, {v(y)}, {v(p)}',
    lambda y, p, r: f'v_mul_f32 {v(y + 1)}, {v(y + 1)}, {v(p + 1)}',
    lambda y, p, r: f'v_cvt_pk_bf16_f32 {v(p)}, {v(y)}, {v(y + 1)}',
    lambda y, p, r: f'v_lshlrev_b32 {v(y)}, 16, {v(p)}',
    lambda y, p, r: f'v_and_b32 {v(y + 1)}, {s(S_HI)}, {v(p)}',
    lambda y, p, r: f'v_lshlrev_b32 {v(p)}, 16, {v(XIN + r)}',
    lambda y, p, r: f'v_and_b32 {v(p + 1)}, {s(S_HI)}, {v(XIN + r)}',
]
for fn in seq:
    for r in range(10):
        valu.append(fn(YOWN + 2 * r, G1 + 2 * r, r))
nv = len(valu)
stamp(8, 3)
vi = 0
for n in range(100):
    ks, nb = divmod(n, 5)
    d = SACC + 4 * nb
    c_ = '0' if ks == 0 else v(d, 4)
    if n % 2 == 0:
        k._need(regs_of(v(WOW + 4 * (n % 16), 8)))
    I(f'v_mfma_f32_16x16x32_bf16 {v(d, 4)}, {v(WOW + 4 * (n % 16), 4)}, {oreg(ks)}, {c_}')
    if n + LA2 < 100:
        woread(n + LA2)
    while vi < nv and vi * 100 < (n + 1) * nv:
        I(valu[vi])
        vi += 1
PT = YT + 20
seq = [
    lambda sx, y, p, r: f'v_cvt_pk_bf16_f32 {v(p)}, {v(sx)}, {v(sx + 1)}',
    lambda sx, y, p, r: f'v_lshlrev_b32 {v(sx)}, 16, {v(p)}',
    lambda sx, y, p, r: f'v_and_b32 {v(sx + 1)}, {s(S_HI)}, {v(p)}',
    lambda sx, y, p, r: f'v_mul_f32 {v(sx)}, {v(sx)}, {v(y)}',
    lambda sx, y, p, r: f'v_mul_f32 {v(sx + 1)}, {v(sx + 1)}, {v(y + 1)}',
    lambda sx, y, p, r: f'v_cvt_pk_bf16_f32 {v(p)}, {v(sx)}, {v(sx + 1)}',
    lambda sx, y, p, r: f'v_lshlrev_b32 {v(sx)}, 16, {v(p)}',
    lambda sx, y, p, r: f'v_and_b32 {v(sx + 1)}, {s(S_HI)}, {v(p)}',
    lambda sx, y, p, r: f'v_add_f32 {v(sx)}, {v(sx)}, {v(G1 + 2 * r)}',
    lambda sx, y, p, r: f'v_add_f32 {v(sx + 1)}, {v(sx + 1)}, {v(G1 + 2 * r + 1)}',
    lambda sx, y, p, r: f'v_cvt_pk_bf16_f32 {v(XIN + r)}, {v(sx)}, {v(sx + 1)}',
]
for nb in range(5):
    for fn in seq:
        for r in (2 * nb, 2 * nb + 1):
            I(fn(SACC + 2 * r, YOWN + 2 * r, PT + r, r))
    I(f'buffer_store_dwordx2 {v(XIN + 2 * nb, 2)}, {v(VXO)}, {s(SRD_OUT, 4)}, 0 offen offset:{32 * nb}')
ECHO = opt('echo', -1)
if ECHO >= 0:
    stamp(9, -1)
    k.wait_all()
    I(f's_sub_u32 {s(S_T3)}, {s(S_STAMP + 2 * ECHO)}, {s(S_STAMP)}')
    I(f's_min_u32 {s(S_T3)}, {s(S_T3)}, 10000')
    k.label('L_echo')
    I(f's_memrealtime {s(S_T4, 2)}')
    k.wait_all()
    I(f's_sub_u32 {s(S_T4)}, {s(S_T4)}, {s(S_STAMP + 18)}')
    I(f's_cmp_lt_u32 {s(S_T4)}, {s(S_T3)}')
    I('s_cbranch_scc1 L_echo')
elif STAMPS:
    stamp(9, -1)
    k.wait_all()
    I(f's_lshl_b32 {s(S_T3)}, {s(S_WG)}, 8')
    I(f's_lshl_b32 {s(S_T4)}, {s(S_WAVE)}, 6')
    I(f's_add_u32 {s(S_T3)}, {s(S_T3)}, {s(S_T4)}')
    I(f's_add_u32 {s(S_T3)}, {s(S_T3)}, {STAMP_OFF}')
    I(f'v_mov_b32 {v(T2)}, 0')
    I('s_mov_b64 exec, 1')
    for i in range(10):
        I(f'v_mov_b32 {v(T2 + 1)}, {s(S_STAMP + 2 * i)}')
        I(f'buffer_store_dword {v(T2 + 1)}, {v(T2)}, {s(SRD_WS, 4)}, {s(S_T3)} offen offset:{4 * i}')
    I(f'v_mov_b32 {v(T2 + 1)}, {s(S_EARLY)}')
    I(f'buffer_store_dword {v(T2 + 1)}, {v(T2)}, {s(SRD_WS, 4)}, {s(S_T3)} offen offset:52')
    I(f'v_mov_b32 {v(T2 + 1)}, {s(S_OOK)}')
    I(f'buffer_store_dword {v(T2 + 1)}, {v(T2)}, {s(SRD_WS, 4)}, {s(S_T3)} offen offset:56')
    I(f'v_mov_b32 {v(T2 + 1)}, {s(S_TYPE)}')
    I(f'buffer_store_dword {v(T2 + 1)}, {v(T2)}, {s(SRD_WS, 4)}, {s(S_T3)} offen offset:60')
if '--padx' in sys.argv:
    for i in range(2048):
        I(f'v_add3_u32 {v(16 + i % 8)}, {v(16 + i % 8)}, v2, v3')
if '--pady' in sys.argv:
    I(f's_mov_b32 {s(S_T3)}, 0')
    k.label('L_pady')
    for i in range(64):
        I(f'v_add3_u32 {v(16 + i % 8)}, {v(16 + i % 8)}, v2, v3')
    I(f's_add_u32 {s(S_T3)}, {s(S_T3)}, 1')
    I(f's_cmp_lt_u32 {s(S_T3)}, 32')
    I('s_cbranch_scc1 L_pady')
k.label('L_end')
I('s_endpgm')

hdr = open('recurrent_scan__sliding_local_dilated__dense_activation_gelu__prompt.s.ref').read().split('\n')
head = [l for l in hdr if l.startswith(';') and '@launch' not in l and 'Override' not in l and 'grid=ceil' not in l]
print('\n'.join(head))
print(f'; @launch grid=(256,1,1) block=(256,1,1) lds={LDS_TOTAL}')
print(f'''.amdgcn_target "amdgcn-amd-amdhsa--gfx950"
.text
.globl {KNAME}
.p2align 8
.type {KNAME},@function
{KNAME}:''')
print(k.text())
print(f'''.section .rodata,"a"
.p2align 6
.amdhsa_kernel {KNAME}
  .amdhsa_next_free_vgpr 512
  .amdhsa_next_free_sgpr 102
  .amdhsa_accum_offset 256
  .amdhsa_group_segment_fixed_size 0
  .amdhsa_kernarg_size 88
  .amdhsa_user_sgpr_count 2
  .amdhsa_user_sgpr_kernarg_segment_ptr 1
  .amdhsa_system_sgpr_workgroup_id_x 1
  .amdhsa_float_denorm_mode_32 3
.end_amdhsa_kernel''')
```

```python
import sys, struct
from asmlib import *

KNAME = 'recurrent_scan__sliding_local_dilated__dense_activation_gelu__prompt_kernel'
STAMPS = '--stamps' in sys.argv


def opt(name, default):
    for x in sys.argv:
        if x.startswith(f'--{name}='):
            return int(x.split('=')[1])
    return default


SMODE = opt('smode', 0)

XN_T = 0
ACT_T = 128 * 20 * 1024
ACT_MB = 74 * 1024
W_T = ACT_T + 128 * ACT_MB
LNF = W_T + 74 * 40 * 1024
P1F = LNF + 16 * 128
WTF = P1F + 16 * 128
WS_USED = WTF + 1024
STAMP_OFF = WS_USED
WS_REC = WS_USED + (256 * 4 * 64 if STAMPS else 0)
OOB = 0x40000000

RROW = 1056
SLOT = 16 * RROW
NSLOT = 8
HALO = NSLOT * SLOT
CNT = HALO + 20 * 1024
RS = 592
LDS_RED = 0
LDS_WO = 60 * 1024
LDS_TOTAL = 163840


def f32(x):
    return '0x%08x' % struct.unpack('<I', struct.pack('<f', x))[0]


S_WG, S_FOFF = 2, 3
SRD_X, SRD_B, SRD_WS, SRD_DBG, SRD_OUT, SRD_RT, SRD_B1, SRD_B2 = 4, 8, 12, 16, 20, 24, 28, 56
P_X, P_WQKV, P_WO, P_BX, P_W1, P_B1, P_W2, P_B2, P_OUT, P_DBG, P_WS = 32, 34, 36, 38, 40, 42, 44, 46, 48, 50, 52
S_WAVE, S_MT, S_TYPE, S_IDX, S_FB, S_PITCH, S_KSTR, S_START = 60, 61, 62, 63, 64, 65, 66, 67
S_T0, S_T1, S_T2, S_T3, S_T4, S_T5 = 68, 69, 70, 71, 72, 73
S_M0B, S_SOFF, S_M2, S_NT, S_SPIN, S_TAG = 74, 75, 76, 77, 78, 79
S_STAMP = 80
S_W2A, S_W2B = 100, 101
S_WOB, S_WOM, S_LAST = 16, 17, 18
S_HB, S_MB0 = 32, 33
S_AO = 36

V_LANE = 1
V_DMA = 2
V_TR0, V_TR1 = 6, 7
V_TRH0, V_TRH1 = 8, 9
V_L16 = 10
V_L16B = 11
V_PA = 12
V_POLL = 13
V_X = 14
V_PF = 15
ACC = 16
HACC = 136
WIN = 148
HX = 180
T = 188
BIAS = 226
W2V = 228
P4 = 252

k = K()
I = k.I


def stamp(idx, mode=0):
    if STAMPS and (mode == SMODE or mode == -1):
        I(f'{"s_memtime" if "--cyc" in sys.argv else "s_memrealtime"} {s(S_STAMP + 2 * idx, 2)}')


def srd(base, plo, nbytes):
    I(f's_mov_b32 {s(base)}, {s(plo)}')
    I(f's_mov_b32 {s(base + 1)}, {s(plo + 1)}')
    I(f's_mov_b32 {s(base + 2)}, {nbytes}')
    I(f's_mov_b32 {s(base + 3)}, 0x00020000')


def csel(dst, x, y):
    I(f's_mov_b32 {s(dst)}, {y}')
    I(f's_cselect_b32 {s(dst)}, {x}, {s(dst)}')


def chk_issue(addrv, n=1):
    if n == 1:
        I(f'buffer_load_dword {v(V_POLL)}, {v(addrv)}, {s(SRD_WS, 4)}, 0 offen sc1')
    else:
        I(f'buffer_load_dwordx4 {v(P4, 4)}, {v(addrv)}, {s(SRD_WS, 4)}, 0 offen sc1')


def chk_eval(n=1):
    if n == 1:
        I(f'v_cmp_ne_u32 vcc, {s(S_TAG)}, {v(V_POLL)}')
    else:
        for i in range(4):
            I(f'v_xor_b32 {v(P4 + i)}, {s(S_TAG)}, {v(P4 + i)}')
        I(f'v_or3_b32 {v(P4)}, {v(P4)}, {v(P4 + 1)}, {v(P4 + 2)}')
        I(f'v_or_b32 {v(P4)}, {v(P4)}, {v(P4 + 3)}')
        I(f'v_cmp_ne_u32 vcc, 0, {v(P4)}')


def poll(addrv, name, n=1, preissued=False):
    lab = k.newlabel('L_poll_' + name)
    done = k.newlabel('L_polled_' + name)
    if not preissued:
        chk_issue(addrv, n)
    chk_eval(n)
    I(f's_mov_b32 {s(S_SPIN)}, 0')
    I(f's_cbranch_vccz {done}')
    st = k.state()
    k.label(lab)
    I('s_sleep 1')
    chk_issue(addrv, n)
    k.wait_all(vm=True, lg=False)
    chk_eval(n)
    I(f's_add_u32 {s(S_SPIN)}, {s(S_SPIN)}, 1')
    I(f's_cbranch_vccz {done}')
    I(f's_cmp_lt_u32 {s(S_SPIN)}, 0x40000')
    I(f's_cbranch_scc1 {lab}')
    k.label(done)
    k.set_state(st)


def flag_store(base, offs, t0):
    I(f'v_mov_b32 {v(t0)}, {s(S_TAG)}')
    I(f'v_mov_b32 {v(t0 + 1)}, {base}')
    I('s_mov_b64 exec, 1')
    I(f'buffer_store_dword {v(t0)}, {v(t0 + 1)}, {s(SRD_WS, 4)}, {s(offs)} offen sc1')
    I('s_mov_b64 exec, -1')
    k.vmq.pop()


def dma1(j, soff_reg, tag):
    I(f'buffer_load_dwordx4 {v(V_DMA + j)}, {s(SRD_B, 4)}, {s(soff_reg)} offen offset:{j * RROW} lds', tag=tag)


def bf16r(dst, src):
    I(f'v_cvt_pk_bf16_f32 {v(dst)}, {v(src)}, {v(src)}')
    I(f'v_lshlrev_b32 {v(dst)}, 16, {v(dst)}')


def row_sum(r, t1):
    for sh in (4, 8):
        I(f'v_add_f32_dpp {v(r)}, {v(r)}, {v(r)} row_ror:{sh} row_mask:0xf bank_mask:0xf')
    for op in ('v_permlane16_swap_b32', 'v_permlane32_swap_b32'):
        I(f'v_mov_b32 {v(t1)}, {v(r)}')
        I(f'{op} {v(r)}, {v(t1)}')
        I(f'v_add_f32 {v(r)}, {v(r)}, {v(t1)}')


I(f's_cmp_ge_u32 {s(S_WG)}, 256')
I('s_cbranch_scc1 L_end')
I(f's_load_dwordx16 {s(32, 16)}, s[0:1], 0')
I(f's_load_dwordx4 {s(48, 4)}, s[0:1], 64')
I(f's_load_dwordx2 {s(52, 2)}, s[0:1], 80')
stamp(0, -1)
I(f'v_lshrrev_b32 {v(T)}, 6, v0')
I(f'v_and_b32 {v(V_LANE)}, 63, v0')
I(f'v_readfirstlane_b32 {s(S_WAVE)}, {v(T)}')
I(f'v_mov_b32 {v(T + 2)}, 0')
I(f'v_mov_b32 {v(T + 3)}, 0')
I(f'v_mov_b32 {v(T + 1)}, {CNT}')
I(f'ds_write_b64 {v(T + 1)}, {v(T + 2, 2)}')
I(f's_cmp_lt_u32 {s(S_WAVE)}, 2')
I('s_cbranch_scc1 L_nocp')
CPV = T + 35
I(f's_getpc_b64 {s(S_TAG - 1, 2)}')
k.label('L_pc')
I(f's_lshr_b32 {s(S_T3)}, {s(S_WG)}, 2')
I(f's_and_b32 {s(S_T3)}, {s(S_T3)}, 6')
I(f's_and_b32 {s(S_T4)}, {s(S_WAVE)}, 1')
I(f's_add_u32 {s(S_T3)}, {s(S_T3)}, {s(S_T4)}')
I(f's_lshl_b32 {s(S_T3)}, {s(S_T3)}, 13')
I(f'v_lshl_add_u32 {v(CPV)}, {v(V_LANE)}, 7, {s(S_T3)}')
I(f'v_min_u32 {v(CPV)}, L_end-L_pc, {v(CPV)}')
I(f'global_load_dword {v(T + 17)}, {v(CPV)}, {s(S_TAG - 1, 2)}')
k.vmq.pop()
k.label('L_nocp')
I(f's_and_b32 {s(S_T0)}, {s(S_WG)}, 7')
I(f's_lshr_b32 {s(S_T1)}, {s(S_WG)}, 3')
I(f's_and_b32 {s(S_MT)}, {s(S_T0)}, 1')
I(f's_lshl_b32 {s(S_MT)}, {s(S_MT)}, 3')
I(f's_and_b32 {s(S_T2)}, {s(S_T1)}, 7')
I(f's_add_u32 {s(S_MT)}, {s(S_MT)}, {s(S_T2)}')
I(f's_lshr_b32 {s(S_T2)}, {s(S_T1)}, 3')
I(f's_and_b32 {s(S_TYPE)}, {s(S_T2)}, 1')
I(f's_lshr_b32 {s(S_T2)}, {s(S_T2)}, 1')
I(f's_and_b32 {s(S_IDX)}, {s(S_T0)}, 6')
I(f's_add_u32 {s(S_IDX)}, {s(S_IDX)}, {s(S_T2)}')
I(f's_lshl_b32 {s(S_FB)}, {s(S_MT)}, 4')
I(f's_lshl_b32 {s(S_T2)}, {s(S_TYPE)}, 3')
I(f's_add_u32 {s(S_FB)}, {s(S_FB)}, {s(S_T2)}')
I(f's_add_u32 {s(S_FB)}, {s(S_FB)}, {s(S_IDX)}')
I(f's_cmp_eq_u32 {s(S_TYPE)}, 0')
csel(S_PITCH, 3840, 3456)
LR, LP, LXA = T + 4, T + 5, T + 6
I(f'v_and_b32 {v(LR)}, 3, {v(V_LANE)}')
I(f'v_lshrrev_b32 {v(LP)}, 2, {v(V_LANE)}')
I(f's_lshl_b32 {s(S_T3)}, {s(S_FB)}, 3')
I(f's_lshl_b32 {s(S_T4)}, {s(S_WAVE)}, 2')
I(f's_add_u32 {s(S_T3)}, {s(S_T3)}, {s(S_T4)}')
I(f'v_add_u32 {v(LR)}, {s(S_T3)}, {v(LR)}')
I(f'v_mul_u32_u24 {v(LXA)}, 1280, {v(LR)}')
I(f'v_lshl_add_u32 {v(LXA)}, {v(LP)}, 4, {v(LXA)}')
PFL = 0
I(f'v_and_b32 {v(T + 32)}, 15, {v(V_LANE)}')
I(f's_cmp_eq_u32 {s(S_TYPE)}, 0')
I(f's_cselect_b32 {s(S_T3)}, 8, 6')
I(f's_cselect_b32 {s(S_T4)}, {1280 - 384}, 0')
csel(S_M0B, 160, 448)
I(f'v_min_u32 {v(T + 32)}, {s(S_T3)}, {v(T + 32)}')
I(f'v_mul_u32_u24 {v(T + 33)}, 11, {v(T + 32)}')
I(f'v_lshrrev_b32 {v(T + 33)}, 5, {v(T + 33)}')
I(f'v_mul_u32_u24 {v(T + 33)}, {s(S_T4)}, {v(T + 33)}')
I(f'v_lshl_add_u32 {v(PFL)}, {v(T + 32)}, 7, {v(T + 33)}')
I(f'v_lshrrev_b32 {v(T + 32)}, 4, {v(V_LANE)}')
I(f'v_mad_u32_u24 {v(PFL)}, {v(T + 32)}, {s(S_PITCH)}, {v(PFL)}')
I(f's_and_b32 {s(S_T3)}, {s(S_IDX)}, 6')
I(f's_mul_i32 {s(S_M0B)}, {s(S_M0B)}, {s(S_T3)}')
I(f'v_add_u32 {v(PFL)}, {s(S_M0B)}, {v(PFL)}')
I(f's_and_b32 {s(S_KSTR)}, {s(S_MT)}, 7')
I(f's_lshl_b32 {s(S_KSTR)}, {s(S_KSTR)}, 1')
I(f's_and_b32 {s(S_T4)}, {s(S_IDX)}, 1')
I(f's_add_u32 {s(S_KSTR)}, {s(S_KSTR)}, {s(S_T4)}')
assert all((x * 11) >> 5 == x // 3 for x in range(9))
k.wait_all(vm=False, lg=True)
stamp(1, 2)
I('s_barrier')
srd(SRD_X, P_X, 2048 * 1280)
srd(SRD_DBG, P_DBG, 256)
XR = T + 8
TAGV = T + 36
I(f's_cmp_ge_u32 {s(S_WAVE)}, 2')
I('s_cbranch_scc1 L_pf')

for i in range(5):
    I(f'buffer_load_dwordx4 {v(XR + 4 * i, 4)}, {v(LXA)}, {s(SRD_X, 4)}, 0 offen offset:{256 * i}', tag='x')
I(f'buffer_load_dword {v(TAGV)}, {v(T + 2)}, {s(SRD_DBG, 4)}, 0 offen sc1')
srd(SRD_WS, P_WS, WS_REC)
I(f's_lshl_b32 {s(S_FOFF)}, {s(S_MT)}, 7')
I(f's_and_b32 {s(S_T2)}, {s(S_FB)}, 15')
I(f's_lshl_b32 {s(S_T2)}, {s(S_T2)}, 2')
I(f's_add_u32 {s(S_FOFF)}, {s(S_FOFF)}, {s(S_T2)}')
XF = ACC
SA_ = T + 3
I(f'v_lshrrev_b32 {v(SA_)}, 4, {v(LR)}')
I(f'v_mul_u32_u24 {v(SA_)}, 20480, {v(SA_)}')
I(f'v_lshl_add_u32 {v(SA_)}, {v(LP)}, 8, {v(SA_)}')
I(f'v_and_b32 {v(T)}, 15, {v(LR)}')
I(f'v_lshl_add_u32 {v(SA_)}, {v(T)}, 4, {v(SA_)}')
I(f's_mov_b32 {s(S_T3)}, 0xffff0000')
stamp(2, 2)
if STAMPS and SMODE == 2:
    k.wait_vm_tag('x')
stamp(3, 2)
SUM = T + 4
for i in range(20):
    I(f'v_lshlrev_b32 {v(XF + 2 * i)}, 16, {v(XR + i)}')
    I(f'v_and_b32 {v(XF + 2 * i + 1)}, {s(S_T3)}, {v(XR + i)}')
    if i == 1:
        I(f'v_pk_add_f32 {v(SUM, 2)}, {v(XF, 2)}, {v(XF + 2, 2)}')
    elif i > 1:
        I(f'v_pk_add_f32 {v(SUM, 2)}, {v(SUM, 2)}, {v(XF + 2 * i, 2)}')
I(f'v_add_f32 {v(SUM)}, {v(SUM)}, {v(SUM + 1)}')
row_sum(SUM, SUM + 1)
MEAN = T + 6
I(f'v_mul_f32 {v(MEAN)}, {f32(1.0 / 640)}, {v(SUM)}')
I(f'v_mov_b32 {v(MEAN + 1)}, {v(MEAN)}')
SQ = T + 4
DV = T + 28
for i in range(20):
    d = DV + 2 * (i & 1)
    I(f'v_pk_add_f32 {v(d, 2)}, {v(XF + 2 * i, 2)}, {v(MEAN, 2)} neg_lo:[0,1] neg_hi:[0,1]')
    if i == 0:
        I(f'v_pk_mul_f32 {v(SQ, 2)}, {v(d, 2)}, {v(d, 2)}')
    else:
        I(f'v_pk_fma_f32 {v(SQ, 2)}, {v(d, 2)}, {v(d, 2)}, {v(SQ, 2)}')
I(f'v_add_f32 {v(SQ)}, {v(SQ)}, {v(SQ + 1)}')
row_sum(SQ, SQ + 1)
I(f'v_mul_f32 {v(SQ)}, {f32(1.0 / 640)}, {v(SQ)}')
bf16r(SQ, SQ)
I(f'v_add_f32 {v(SQ)}, {f32(1e-5)}, {v(SQ)}')
bf16r(SQ, SQ)
I(f'v_sqrt_f32 {v(SQ)}, {v(SQ)}')
bf16r(MEAN, MEAN)
bf16r(SQ, SQ)
I(f'v_rcp_f32 {v(SQ + 1)}, {v(SQ)}')
I(f'v_mov_b32 {v(MEAN + 1)}, {v(MEAN)}')
I(f'v_fma_f32 {v(SQ)}, -{v(SQ)}, {v(SQ + 1)}, 1.0')
I(f'v_fma_f32 {v(SQ)}, {v(SQ)}, {v(SQ + 1)}, {v(SQ + 1)}')
I(f'v_mov_b32 {v(SQ + 1)}, {v(SQ)}')
for i in range(20):
    x2 = XF + 2 * i
    I(f'v_pk_add_f32 {v(x2, 2)}, {v(x2, 2)}, {v(MEAN, 2)} neg_lo:[0,1] neg_hi:[0,1]')
    I(f'v_cvt_pk_bf16_f32 {v(XR + i)}, {v(x2)}, {v(x2 + 1)}')
    I(f'v_lshlrev_b32 {v(x2)}, 16, {v(XR + i)}')
    I(f'v_and_b32 {v(x2 + 1)}, {s(S_T3)}, {v(XR + i)}')
    I(f'v_pk_mul_f32 {v(x2, 2)}, {v(x2, 2)}, {v(SQ, 2)}')
    I(f'v_cvt_pk_bf16_f32 {v(XR + i)}, {v(x2)}, {v(x2 + 1)}')
    if i % 4 == 3:
        ii = i // 4
        I(f's_mov_b32 {s(S_T4)}, {XN_T + 4096 * ii}')
        I(f'buffer_store_dwordx4 {v(XR + 4 * ii, 4)}, {v(SA_)}, {s(SRD_WS, 4)}, {s(S_T4)} offen sc1')
stamp(1)
stamp(4, 2)
I(f'v_readfirstlane_b32 {s(S_TAG)}, {v(TAGV)}')
I(f'v_mov_b32 {v(T + 1)}, 0')
I(f's_mov_b32 {s(S_SPIN)}, 0')
I(f's_cmp_lg_u32 {s(S_TAG)}, 0')
I('s_cbranch_scc1 L_tagok')
k.label('L_tagpoll')
I(f'buffer_load_dword {v(TAGV)}, {v(T + 1)}, {s(SRD_DBG, 4)}, 0 offen sc1')
k.wait_all()
I(f'v_readfirstlane_b32 {s(S_TAG)}, {v(TAGV)}')
I(f's_add_u32 {s(S_SPIN)}, {s(S_SPIN)}, 1')
I(f's_cmp_lg_u32 {s(S_TAG)}, 0')
I('s_cbranch_scc1 L_tagok')
I(f's_cmp_lt_u32 {s(S_SPIN)}, 0x40000')
I('s_cbranch_scc1 L_tagpoll')
k.label('L_tagok')
I(f'v_mov_b32 {v(T + 1)}, {CNT}')
I(f'ds_write_b32 {v(T + 1)}, {v(TAGV)} offset:4')
I(f'v_mov_b32 {v(T)}, 1')
k.wait_all()
stamp(5, 2)
I('s_mov_b64 exec, 1')
I(f'ds_add_rtn_u32 {v(T + 2)}, {v(T + 1)}, {v(T)}')
I('s_mov_b64 exec, -1')
I(f'v_readfirstlane_b32 {s(S_T3)}, {v(T + 2)}')
I(f's_cmp_eq_u32 {s(S_T3)}, 1')
I('s_cbranch_scc0 L_common')
flag_store(LNF, S_FOFF, T)
I('s_branch L_common')

k.vmq = []
k.lgq = []
k.label('L_pf')
I(f's_cmp_lt_u32 {s(S_WG)}, 8')
I('s_cbranch_scc0 L_notag')
I(f's_cmp_eq_u32 {s(S_WAVE)}, 2')
I('s_cbranch_scc0 L_notag')
I(f's_memrealtime {s(S_T4, 2)}')
I(f's_or_b32 {s(S_T4)}, {s(S_T4)}, 1')
I(f'v_mov_b32 {v(T + 2)}, {s(S_T4)}')
I('s_mov_b64 exec, 1')
I(f'buffer_atomic_cmpswap {v(T + 2, 2)}, {v(T + 3)}, {s(SRD_DBG, 4)}, 0 offen sc1')
I('s_mov_b64 exec, -1')
k.label('L_notag')


def srd_b():
    I(f's_cmp_eq_u32 {s(S_TYPE)}, 0')
    I(f's_cselect_b32 {s(SRD_B)}, {s(P_WQKV)}, {s(P_W1)}')
    I(f's_cselect_b32 {s(SRD_B + 1)}, {s(P_WQKV + 1)}, {s(P_W1 + 1)}')
    csel(SRD_B + 2, 640 * 3840, 640 * 3456)
    I(f's_mov_b32 {s(SRD_B + 3)}, 0x00020000')


srd_b()
I(f's_lshl_b32 {s(S_T3)}, {s(S_KSTR)}, 1')
I(f's_and_b32 {s(S_T4)}, {s(S_WAVE)}, 1')
I(f's_add_u32 {s(S_T3)}, {s(S_T3)}, {s(S_T4)}')
I(f's_lshl_b32 {s(S_T4)}, {s(S_PITCH)}, 2')
I(f's_mul_i32 {s(S_SOFF)}, {s(S_T3)}, {s(S_T4)}')
I(f's_lshl_b32 {s(S_T4)}, {s(S_PITCH)}, 7')
I(f'buffer_load_dword {v(T + 12)}, {v(PFL)}, {s(SRD_B, 4)}, {s(S_SOFF)} offen')
I(f's_add_u32 {s(S_SOFF)}, {s(S_SOFF)}, {s(S_T4)}')
I(f'buffer_load_dword {v(T + 13)}, {v(PFL)}, {s(SRD_B, 4)}, {s(S_SOFF)} offen')

k.label('L_common')
k.vmq = [(set(), 'unknown')]
k.lgq = []
I('s_nop 4')
I(f's_lshl_b32 {s(S_FOFF)}, {s(S_MT)}, 7')
I(f's_and_b32 {s(S_T2)}, {s(S_FB)}, 15')
I(f's_lshl_b32 {s(S_T2)}, {s(S_T2)}, 2')
I(f's_add_u32 {s(S_FOFF)}, {s(S_FOFF)}, {s(S_T2)}')
if '--map84' in sys.argv:
    I(f's_lshr_b32 {s(S_M2)}, {s(S_T0)}, 1')
    I(f's_lshl_b32 {s(S_M2)}, {s(S_M2)}, 3')
    I(f's_and_b32 {s(S_T2)}, {s(S_T1)}, 7')
    I(f's_add_u32 {s(S_M2)}, {s(S_M2)}, {s(S_T2)}')
    I(f's_and_b32 {s(S_NT)}, {s(S_T0)}, 1')
    I(f's_lshl_b32 {s(S_NT)}, {s(S_NT)}, 2')
    I(f's_lshr_b32 {s(S_T2)}, {s(S_T1)}, 3')
    I(f's_add_u32 {s(S_NT)}, {s(S_NT)}, {s(S_T2)}')
else:
    I(f's_lshl_b32 {s(S_M2)}, {s(S_T0)}, 2')
    I(f's_and_b32 {s(S_T2)}, {s(S_T1)}, 3')
    I(f's_add_u32 {s(S_M2)}, {s(S_M2)}, {s(S_T2)}')
    I(f's_lshr_b32 {s(S_NT)}, {s(S_T1)}, 2')
I(f's_mul_i32 {s(S_START)}, {s(S_IDX)}, 7')
I(f's_min_u32 {s(S_START)}, {s(S_START)}, 47')
I(f's_lshl_b32 {s(S_T3)}, {s(S_KSTR)}, 2')
I(f's_add_u32 {s(S_T3)}, {s(S_T3)}, {s(S_WAVE)}')
I(f's_add_u32 {s(S_T3)}, {s(S_T3)}, 64')
I(f's_lshl_b32 {s(S_T4)}, {s(S_PITCH)}, 2')
I(f's_mul_i32 {s(S_T3)}, {s(S_T3)}, {s(S_T4)}')
I(f'v_add_u32 {v(PFL)}, {s(S_T3)}, {v(PFL)}')
I(f's_lshl_b32 {s(S_KSTR)}, {s(S_PITCH)}, 5')
I(f'v_lshlrev_b32 {v(V_L16)}, 4, {v(V_LANE)}')
I(f'v_add_u32 {v(V_L16B)}, 4096, {v(V_L16)}')
srd(SRD_B1, P_B1, 1728 * 2)
I(f'v_lshlrev_b32 {v(T + 7)}, 3, {v(V_LANE)}')
I(f's_lshl_b32 {s(S_T5)}, {s(S_START)}, 6')
I(f'buffer_load_dwordx2 {v(BIAS, 2)}, {v(T + 7)}, {s(SRD_B1, 4)}, {s(S_T5)} offen', tag='pf')
I(f's_lshl_b32 {s(S_T0)}, {s(S_WG)}, 1')
I(f's_and_b32 {s(S_T1)}, {s(S_WAVE)}, 1')
I(f's_add_u32 {s(S_T0)}, {s(S_T0)}, {s(S_T1)}')
I(f's_mul_i32 {s(S_T1)}, {s(S_T0)}, 13108')
I(f's_lshr_b32 {s(S_T1)}, {s(S_T1)}, 16')
I(f's_mul_i32 {s(S_T2)}, {s(S_T1)}, 5')
I(f's_sub_u32 {s(S_T2)}, {s(S_T0)}, {s(S_T2)}')
assert all((u * 13108) >> 16 == u // 5 for u in range(512))
srd(SRD_WS, P_WS, WS_REC)
srd(SRD_OUT, P_OUT, 2048 * 1280)
srd(SRD_B2, P_B2, 640 * 2)
srd_b()
I(f's_cmp_lt_u32 {s(S_T1)}, 20')
I(f's_cselect_b32 {s(SRD_RT)}, {s(P_WO)}, {s(P_W2)}')
I(f's_cselect_b32 {s(SRD_RT + 1)}, {s(P_WO + 1)}, {s(P_W2 + 1)}')
csel(SRD_RT + 2, 640 * 1280, 1728 * 1280)
I(f's_mov_b32 {s(SRD_RT + 3)}, 0x00020000')
c, hf, sg = T, T + 1, T + 2
I(f'v_and_b32 {v(c)}, 31, {v(V_LANE)}')
I(f'v_lshrrev_b32 {v(hf)}, 5, {v(V_LANE)}')
S_CB = 34
I(f's_cmp_eq_u32 {s(S_TYPE)}, 0')
I(f's_cselect_b32 {s(S_T3)}, 29, 27')
I(f's_cselect_b32 {s(S_T4)}, {0 if "--contig" in sys.argv else 1120}, 0')
I(f's_mul_i32 {s(S_CB)}, {s(S_IDX)}, {384 if "--contig" in sys.argv else 160}')
I(f's_lshl_b32 {s(S_T5)}, {s(S_START)}, 6')
I(f's_cmp_eq_u32 {s(S_TYPE)}, 0')
I(f's_cselect_b32 {s(S_CB)}, {s(S_CB)}, {s(S_T5)}')
I(f'v_min_u32 {v(c)}, {s(S_T3)}, {v(c)}')
I(f'v_mul_u32_u24 {v(sg)}, 205, {v(c)}')
I(f'v_lshrrev_b32 {v(sg)}, 11, {v(sg)}')
I(f'v_mul_u32_u24 {v(sg)}, {s(S_T4)}, {v(sg)}')
I(f'v_lshl_add_u32 {v(sg)}, {v(c)}, 4, {v(sg)}')
I(f'v_add_u32 {v(sg)}, {s(S_CB)}, {v(sg)}')
I(f's_lshl_b32 {s(S_T3)}, {s(S_PITCH)}, 2')
I(f'v_mad_u32_u24 {v(V_DMA)}, {v(hf)}, {s(S_T3)}, {v(sg)}')
I(f's_sub_u32 {s(S_T3)}, {s(S_PITCH)}, {RROW}')
for j in range(1, 4):
    I(f'v_add_u32 {v(V_DMA + j)}, {s(S_T3)}, {v(V_DMA + j - 1)}')
assert all((c_ * 205) >> 11 == c_ // 10 for c_ in range(32))
NPRE = opt('npre', 6)
I(f's_mul_i32 {s(S_M0B)}, {s(S_WAVE)}, {4 * RROW}')
I(f's_lshl_b32 {s(S_T3)}, {s(S_PITCH)}, 3')
I(f's_mul_i32 {s(S_SOFF)}, {s(S_WAVE)}, {s(S_T3)}')
I(f's_mul_i32 {s(S_T3)}, {s(S_KSTR)}, {NPRE}')
I(f's_add_u32 {s(S_SOFF)}, {s(S_SOFF)}, {s(S_T3)}')
if '--noD' in sys.argv:
    I(f's_mov_b32 {s(S_SOFF)}, {OOB // 2}')
I(f'v_lshrrev_b32 {v(LP)}, 2, {v(V_LANE)}')
I(f'v_mul_u32_u24 {v(V_TR0)}, {RROW}, {v(LP)}')
I(f'v_and_b32 {v(T)}, 3, {v(V_LANE)}')
I(f'v_lshl_add_u32 {v(V_TR0)}, {v(T)}, 3, {v(V_TR0)}')
I(f'v_add_u32 {v(V_TR1)}, {4 * SLOT}, {v(V_TR0)}')
I(f's_mul_i32 {s(S_HB)}, {s(S_WAVE)}, 3')
I(f's_min_u32 {s(S_HB)}, {s(S_HB)}, 7')
I(f's_add_u32 {s(S_HB)}, {s(S_HB)}, 5')
I(f's_lshl_b32 {s(S_T3)}, {s(S_HB)}, 5')
I(f'v_add_u32 {v(V_TRH0)}, {s(S_T3)}, {v(V_TR0)}')
I(f'v_add_u32 {v(V_TRH1)}, {s(S_T3)}, {v(V_TR1)}')
I(f'v_add_u32 {v(V_X)}, {HALO}, {v(V_L16)}')
I(f's_lshl_b32 {s(S_MB0)}, {s(S_MT)}, 3')
I(f's_lshl_b32 {s(S_T3)}, {s(S_WAVE)}, 1')
I(f's_add_u32 {s(S_MB0)}, {s(S_MB0)}, {s(S_T3)}')
I(f's_mul_i32 {s(S_AO)}, {s(S_MB0)}, 20480')
if '--noA' in sys.argv:
    I(f's_mov_b32 {s(S_AO)}, {OOB // 2}')
for q in range(1, 10):
    I(f's_add_u32 {s(S_AO + q)}, {s(S_AO)}, {XN_T + 4096 * q}')
I(f'v_and_b32 {v(T)}, 15, {v(V_LANE)}')
I(f's_lshl_b32 {s(S_T3)}, {s(S_MT)}, 7')
I(f's_add_u32 {s(S_T3)}, {s(S_T3)}, {LNF}')
I(f'v_lshl_add_u32 {v(V_PA)}, {v(T)}, 2, {s(S_T3)}')
I(f's_cmp_eq_u32 {s(S_TYPE)}, 0')
I(f's_cselect_b32 {s(S_T3)}, {128 - 56}, 0')
I(f's_cmp_eq_u32 {s(S_MT)}, 0')
I(f's_cselect_b32 {s(S_T3)}, 0, {s(S_T3)}')
I(f'v_subrev_u32 {v(T + 1)}, {s(S_T3)}, {v(V_PA)}')
I(f'v_lshrrev_b32 {v(T)}, 1, {v(V_LANE)}')
I(f'v_cmp_eq_u32 vcc, 8, {v(T)}')
I(f'v_cndmask_b32 {v(V_PA)}, {v(V_PA)}, {v(T + 1)}, vcc')
I(f's_mul_i32 {s(S_T3)}, {s(S_WAVE)}, 14')
I(f's_add_u32 {s(S_T4)}, {s(S_T3)}, 7')
I(f's_min_u32 {s(S_T4)}, {s(S_T4)}, 47')
I(f's_mul_i32 {s(S_T5)}, {s(S_NT)}, 5120')
I(f's_add_u32 {s(S_T5)}, {s(S_T5)}, {W_T + 20 * 40960}')
I(f's_mul_i32 {s(S_W2A)}, {s(S_T3)}, 40960')
I(f's_add_u32 {s(S_W2A)}, {s(S_W2A)}, {s(S_T5)}')
I(f's_mul_i32 {s(S_W2B)}, {s(S_T4)}, 40960')
I(f's_add_u32 {s(S_W2B)}, {s(S_W2B)}, {s(S_T5)}')
I(f's_lshr_b32 {s(S_T3)}, {s(S_M2)}, 1')
I(f's_lshl_b32 {s(S_T3)}, {s(S_T3)}, 7')
I(f's_lshl_b32 {s(S_T4)}, {s(S_WAVE)}, 3')
I(f's_add_u32 {s(S_T3)}, {s(S_T3)}, {s(S_T4)}')
I(f's_add_u32 {s(S_T3)}, {s(S_T3)}, {P1F + 32 + 64}')
I(f'v_and_b32 {v(T)}, 1, {v(V_LANE)}')
I(f'v_lshl_add_u32 {v(V_PF)}, {v(T)}, 2, {s(S_T3)}')

I(f's_cmp_lt_u32 {s(S_WAVE)}, 2')
I('s_cbranch_scc1 L_pro_join')

RT_A, RT_B, RT_K0, RT_SCR, VW_M0, VW_SO = 46, 47, 48, 49, 50, 52
I(f's_cmp_lt_u32 {s(S_T1)}, 20')
csel(RT_A, 8 * 1280, 4 * 1280)
csel(RT_B, 4 * 1280, 16 * 1280)
I(f's_cselect_b32 {s(RT_K0)}, 0, 20')
I(f's_sub_u32 {s(RT_K0)}, {s(S_T1)}, {s(RT_K0)}')
I(f's_mul_i32 {s(RT_K0)}, {s(RT_K0)}, {32 * 1280}')
I(f's_lshl_b32 {s(S_T3)}, {s(S_T2)}, 8')
I(f's_add_u32 {s(RT_K0)}, {s(RT_K0)}, {s(S_T3)}')
I(f's_and_b32 {s(S_T3)}, {s(S_WAVE)}, 1')
I(f's_mul_i32 {s(VW_M0)}, {s(S_T3)}, {8 * RROW}')
I(f's_add_u32 {s(RT_SCR)}, {s(VW_M0)}, {7 * SLOT}')
I(f's_add_u32 {s(VW_M0 + 1)}, {s(VW_M0)}, {4 * RROW}')
I(f's_lshl_b32 {s(S_T4)}, {s(S_PITCH)}, 4')
I(f's_mul_i32 {s(VW_SO)}, {s(S_T3)}, {s(S_T4)}')
I(f's_lshl_b32 {s(S_T4)}, {s(S_PITCH)}, 3')
I(f's_add_u32 {s(VW_SO + 1)}, {s(VW_SO)}, {s(S_T4)}')
RTV, RTL = T + 8, T + 9
I(f'v_lshrrev_b32 {v(RTV)}, 4, {v(V_LANE)}')
I(f'v_mul_u32_u24 {v(RTV)}, 1280, {v(RTV)}')
I(f'v_and_b32 {v(T)}, 15, {v(V_LANE)}')
I(f'v_lshl_add_u32 {v(RTV)}, {v(T)}, 4, {v(RTV)}')
I(f'v_lshlrev_b32 {v(RTL)}, 8, {v(LP)}')
I(f'v_and_b32 {v(T)}, 3, {v(V_LANE)}')
I(f'v_lshl_add_u32 {v(RTL)}, {v(T)}, 3, {v(RTL)}')
I(f'v_add_u32 {v(RTL)}, {s(RT_SCR)}, {v(RTL)}')
stamp(2, 2)
for t in range(0 if '--nort' in sys.argv else 8):
    hf_, g = t >> 2, t & 3
    I(f's_mul_i32 {s(S_T3)}, {s(RT_A)}, {g}')
    I(f's_add_u32 {s(S_T3)}, {s(S_T3)}, {s(RT_K0)}')
    if hf_:
        I(f's_add_u32 {s(S_T3)}, {s(S_T3)}, {s(RT_B)}')
    I(f's_add_u32 m0, {s(RT_SCR)}, {1024 * t}')
    I(f'buffer_load_dwordx4 {v(RTV)}, {s(SRD_RT, 4)}, {s(S_T3)} offen lds', tag='rt')
I(f's_mul_i32 {s(S_T3)}, {s(S_T1)}, 40960')
I(f's_lshl_b32 {s(S_T4)}, {s(S_T2)}, 13')
I(f's_add_u32 {s(S_T3)}, {s(S_T3)}, {s(S_T4)}')
I(f's_add_u32 {s(S_T3)}, {s(S_T3)}, {W_T}')
I(f's_cmp_lt_u32 {s(S_T1)}, 74')
I(f's_cselect_b32 {s(S_T3)}, {s(S_T3)}, {OOB}')
k.wait_vm_tag('pf')
stamp(3, 2)
for sl in range(NPRE):
    for h in range(2):
        I(f's_add_u32 m0, {s(VW_M0 + h)}, {sl * SLOT}')
        for j in range(4):
            dma1(j, VW_SO + h, ('ring', sl))
        I(f's_add_u32 {s(VW_SO + h)}, {s(VW_SO + h)}, {s(S_KSTR)}')
    if sl >= 1:
        k.wait_vm_tag(('ring', sl - 1))
    if sl == min(1, NPRE - 1) and '--nort' not in sys.argv:
        stamp(4, 2)
        k.wait_vm_tag('rt')
        RF = ACC
        for nb in range(8):
            I(f'ds_read_b64_tr_b16 {v(RF + 4 * nb, 2)}, {v(RTL)} offset:{32 * nb}')
            I(f'ds_read_b64_tr_b16 {v(RF + 4 * nb + 2, 2)}, {v(RTL)} offset:{32 * nb + 4096}')
        for nb in range(8):
            I(f'buffer_store_dwordx4 {v(RF + 4 * nb, 4)}, {v(V_L16 if nb < 4 else V_L16B)}, {s(SRD_WS, 4)}, {s(S_T3)} offen offset:{1024 * (nb & 3)} sc1')
stamp(5, 2)
stamp(1)
k.wait_all(vm=False, lg=True)

k.label('L_pro_join')
k.vmq = [(set(), 'unknown')]
k.lgq = []
I('s_nop 4')
I(f's_mul_i32 {s(S_WOB)}, {s(S_WAVE)}, 40960')
I(f's_mul_i32 {s(S_T3)}, {s(S_NT)}, 5120')
I(f's_add_u32 {s(S_WOB)}, {s(S_WOB)}, {s(S_T3)}')
I(f's_add_u32 {s(S_WOB)}, {s(S_WOB)}, {W_T}')
I(f's_mul_i32 {s(S_WOM)}, {s(S_WAVE)}, {5 * 1024}')
WPF0, WPF1 = 224, 225
I(f'v_mul_u32_u24 {v(T)}, 205, {v(V_LANE)}')
I(f'v_lshrrev_b32 {v(T)}, 11, {v(T)}')
I(f'v_min_u32 {v(T)}, 5, {v(T)}')
I(f'v_mul_u32_u24 {v(T + 1)}, 10, {v(T)}')
I(f'v_sub_u32 {v(T + 1)}, {v(V_LANE)}, {v(T + 1)}')
I(f'v_min_u32 {v(T + 1)}, 9, {v(T + 1)}')
I(f's_and_b32 {s(S_T3)}, {s(S_M2)}, 3')
I(f's_mul_i32 {s(S_T3)}, {s(S_T3)}, 1280')
I(f'v_lshl_add_u32 {v(T + 1)}, {v(T + 1)}, 7, {s(S_T3)}')
I(f's_mov_b32 {s(S_T4)}, 40960')
I(f'v_mad_u32_u24 {v(WPF0)}, {v(T)}, {s(S_T4)}, {v(T + 1)}')
I(f's_add_u32 {s(S_T3)}, {s(S_W2A)}, {4 * 40960}')
I(f's_add_u32 {s(S_T4)}, {s(S_W2B)}, {1 * 40960}')
I(f'v_mov_b32 {v(T + 2)}, {s(S_T3)}')
I(f'v_mov_b32 {v(T + 3)}, {s(S_T4)}')
I(f'v_cmp_lt_u32 vcc, 2, {v(T)}')
I(f'v_cndmask_b32 {v(T + 2)}, {v(T + 2)}, {v(T + 3)}, vcc')
I(f'v_add_u32 {v(WPF0)}, {v(WPF0)}, {v(T + 2)}')
I(f'v_min_u32 {v(T)}, 4, {v(T)}')
I(f's_mov_b32 {s(S_T4)}, {4 * 40960}')
I(f'v_mad_u32_u24 {v(WPF1)}, {v(T)}, {s(S_T4)}, {v(T + 1)}')
I(f'v_add_u32 {v(WPF1)}, {s(S_WOB)}, {v(WPF1)}')
assert all((x * 205) >> 11 == x // 10 for x in range(64))
if '--noW' in sys.argv:
    for r_ in (S_W2A, S_W2B, S_WOB):
        I(f's_mov_b32 {s(r_)}, {OOB // 2}')
I(f's_cmp_eq_u32 {s(S_WAVE)}, 3')
I(f's_cselect_b32 {s(S_LAST)}, {OOB}, 0')
I(f's_cmp_eq_u32 {s(S_TYPE)}, 1')
I('s_cbranch_scc1 L_ffn')
st_join = k.state()


def ln_wait():
    lab = k.newlabel('L_lnw')
    I(f's_cmp_eq_u32 {s(S_WAVE)}, 0')
    I(f's_cbranch_scc0 {lab}')
    stamp(6, 2)
    poll(V_PA, 'ln')
    k.label(lab)
    k.wait_all()
    stamp(7, 2)
    I('s_barrier')
    stamp(8, 2)


def wt_flag():
    I(f's_lshl_b32 {s(S_T3)}, {s(S_WG)}, 2')
    I(f's_add_u32 {s(S_T3)}, {s(S_T3)}, {WTF}')
    I(f's_cmp_eq_u32 {s(S_WAVE)}, 1')
    I(f's_cselect_b32 {s(S_T3)}, {s(S_T3)}, {OOB}')
    I(f'v_mov_b32 {v(T)}, {s(S_TAG)}')
    I(f'v_lshlrev_b32 {v(T + 1)}, 24, {v(V_LANE)}')
    I(f'buffer_store_dword {v(T)}, {v(T + 1)}, {s(SRD_WS, 4)}, {s(S_T3)} offen sc1')


def tag_fetch():
    I(f'v_mov_b32 {v(T + 1)}, {CNT}')
    I(f'ds_read_b32 {v(T)}, {v(T + 1)} offset:4')
    I(f'v_readfirstlane_b32 {s(S_TAG)}, {v(T)}')


AWN = 6


def areg(ks, rb):
    return a(((ks % AWN) * 2 + rb) * 4, 4)


def load_A(ks, rb):
    I(f'buffer_load_dwordx4 {areg(ks, rb)}, {v(V_L16)}, {s(SRD_WS, 4)}, {s(S_AO + rb * 5 + ks // 4)} offen offset:{(ks & 3) * 1024} sc1')


W2ORDER = list(range(2 * AWN, 64)) + list(range(2 * AWN))
YSTEP = [(0, p) for p in range(4)] + [(1, p) for p in range(4)] + [(0, p) for p in range(4, 7)] + [(1, p) for p in range(4, 7)]


def w2reg(st, nb):
    f = st * 5 + nb
    return a(4 * W2ORDER[f], 4) if f < 64 else v(W2V + 4 * (f - 64), 4)


def w2load(f):
    st, nb = divmod(f, 5)
    ab, p = YSTEP[st]
    sb = S_W2B if ab else S_W2A
    if (ab, p) == (0, 5) and nb == 0:
        I(f's_add_u32 {s(sb)}, {s(sb)}, {s(S_LAST)}')
    I(f'buffer_load_dwordx4 {w2reg(st, nb)}, {v(V_L16 if nb < 4 else V_L16B)}, {s(SRD_WS, 4)}, {s(sb)} offen offset:{(nb & 3) * 1024} sc1')
    if nb == 4:
        I(f's_add_u32 {s(sb)}, {s(sb)}, 40960')


def wodma(i, nb):
    if nb == 0:
        I(f's_add_u32 {s(S_T5)}, {s(S_WOB)}, {i * 4 * 40960}')
    if nb == 0 or nb == 4:
        I(f's_add_u32 m0, {s(S_WOM)}, {LDS_WO + (i * 20 + (4 if nb == 4 else 0)) * 1024}')
    I(f'buffer_load_dwordx4 {v(V_L16 if nb < 4 else V_L16B)}, {s(SRD_WS, 4)}, {s(S_T5)} offen offset:{(nb & 3) * 1024} sc1 lds')


def mainloop(ncb, halo, first_c_zero, w2rate):
    NF = ncb + (3 if halo else 0)
    LA = 7
    items = [(ks, j) for ks in range(20) for j in range(NF)]
    N = len(items)
    aux = [[] for _ in range(20)]
    for ks in range(16):
        kn = ks + 4
        al = [lambda kn=kn, rb=rb: load_A(kn, rb) for rb in range(2)]
        dm = []
        if kn >= NPRE:
            for j in range(4):
                def f(j=j, kn=kn):
                    if j == 0:
                        I(f's_add_u32 m0, {s(S_M0B)}, {(kn % NSLOT) * SLOT}')
                    dma1(j, S_SOFF, ('dma', kn))
                    if j == 3:
                        I(f's_add_u32 {s(S_SOFF)}, {s(S_SOFF)}, {s(S_KSTR)}')
                dm.append(f)
        aux[ks] = dm[:2] + al[:1] + dm[2:] + al[1:]
    WTK = opt('wtk', 9)
    aux[WTK - 3].append(lambda: chk_issue(V_PA, 4))
    aux[0].append(lambda: I(f'buffer_load_dword {v(T + 3)}, {v(PFL)}, {s(SRD_B, 4)}, 0 offen'))

    def pf2b():
        I(f's_lshl_b32 {s(S_T3)}, {s(S_PITCH)}, 8')
        I(f'buffer_load_dword {v(T + 4)}, {v(PFL)}, {s(SRD_B, 4)}, {s(S_T3)} offen')
    aux[1].append(pf2b)
    if '--nowpf' not in sys.argv:
      aux[WTK + 1].append(lambda: I(f'buffer_load_dword {v(T + 5)}, {v(WPF0)}, {s(SRD_WS, 4)}, 0 offen sc1'))
      aux[WTK + 3].append(lambda: I(f'buffer_load_dword {v(T + 6)}, {v(WPF1)}, {s(SRD_WS, 4)}, 0 offen sc1'))
    f = 0
    for ks in range(WTK, 20):
        cnt = w2rate[0] if ks < 16 else w2rate[1]
        for _ in range(cnt):
            if f < 64 - 2 * AWN:
                aux[ks].append(lambda f=f: w2load(f))
                f += 1
    w2done = f

    def rd(n, half):
        ks, j = items[n]
        sl = ks % NSLOT
        w = WIN + 4 * (n % 8)
        if j < ncb:
            base = V_TR0 if sl < 4 else V_TR1
            off = (sl % 4) * SLOT + 32 * j
        else:
            base = V_TRH0 if sl < 4 else V_TRH1
            off = (sl % 4) * SLOT + 32 * (j - ncb)
        if j == 0 and half == 0 and ks >= 2 and ks % 2 == 0:
            if ks + 1 >= NPRE:
                k.wait_vm_tag(('dma', ks + 1))
            I('s_barrier')
        I(f'ds_read_b64_tr_b16 {v(w + 2 * half, 2)}, {v(base)} offset:{off + 512 * half}')
        if halo and j == ncb and half == 1:
            I(f'ds_read_b128 {v(HX + 4 * (ks & 1), 4)}, {v(V_X)} offset:{ks * 1024}')

    for n in range(LA):
        rd(n, 0)
        rd(n, 1)
    I(f'v_add_u32 {v(V_PA)}, {WTF}, {v(V_L16)}')
    for n in range(N):
        ks, j = items[n]
        w = WIN + 4 * (n % 8)
        if j == 0:
            pend = list(aux[ks])
            tot = len(pend)
            done = 0
            if ks in (0, 1, 2, 4, 8, 12, 16, 18):
                stamp(1 + (0, 1, 2, 4, 8, 12, 16, 18).index(ks), 1)
            if ks == WTK:
                poll(V_PA, 'wt', 4, preissued=True)
        if n % 2 == 0 and n + 1 < N:
            k._need(regs_of(v(WIN + 4 * ((n + 1) % 8), 4)) | regs_of(v(w, 4)))
        if j < ncb:
            for rb in range(2):
                d = ACC + (j * 2 + rb) * 4
                c_ = '0' if (ks == 0 and first_c_zero) else v(d, 4)
                I(f'v_mfma_f32_16x16x32_bf16 {v(d, 4)}, {v(w, 4)}, {areg(ks, rb)}, {c_}')
                if n + LA < N:
                    rd(n + LA, rb)
        else:
            d = HACC + (j - ncb) * 4
            c_ = '0' if ks == 0 else v(d, 4)
            I(f'v_mfma_f32_16x16x32_bf16 {v(d, 4)}, {v(w, 4)}, {v(HX + 4 * (ks & 1), 4)}, {c_}')
            if n + LA < N:
                rd(n + LA, 0)
                rd(n + LA, 1)
        while done < tot and done * NF <= j * tot + tot - 1 and (n % 2 == 0 or tot > NF // 2):
            pend[done]()
            done += 1
            if tot <= NF:
                break
        if j == NF - 1:
            while done < tot:
                pend[done]()
                done += 1
    return w2done


YACC = 16
SACC = 96
HW = 116
HWN = 5
XIN = 196
B2V = 206
T2 = 216
S_HO = 24
S_EARLY = 19


def h_scalars():
    I(f's_mul_i32 {s(S_T3)}, {s(S_M2)}, {4 * ACT_MB}')
    I(f's_add_u32 {s(S_T3)}, {s(S_T3)}, {ACT_T + 20 * 1024 + (OOB // 2 if "--noH" in sys.argv else 0)}')
    I(f's_mul_i32 {s(S_T4)}, {s(S_WAVE)}, 14')
    I(f's_add_u32 {s(S_T5)}, {s(S_T4)}, 7')
    I(f's_min_u32 {s(S_T5)}, {s(S_T5)}, 47')
    for ab, r in ((0, S_T4), (1, S_T5)):
        I(f's_lshl_b32 {s(r)}, {s(r)}, 10')
        I(f's_add_u32 {s(S_HO + 4 * ab)}, {s(S_T3)}, {s(r)}')
        for mb in range(1, 4):
            I(f's_add_u32 {s(S_HO + 4 * ab + mb)}, {s(S_HO + 4 * ab)}, {mb * ACT_MB}')


def hload(st, mb):
    ab, p = YSTEP[st]
    so = S_HO + 4 * ab + mb
    if (ab, p) == (0, 5):
        I(f's_add_u32 {s(so)}, {s(so)}, {s(S_LAST)}')
    I(f'buffer_load_dwordx4 {v(HW + 16 * (st % HWN) + 4 * mb, 4)}, {v(V_L16 if p < 4 else V_L16B)}, {s(SRD_WS, 4)}, {s(so)} offen offset:{(p & 3) * 1024} sc1')


def first_hloads():
    for st in range(HWN):
        for mb in range(4):
            hload(st, mb)


def publish():
    late, j1 = k.newlabel('L_late'), k.newlabel('L_pj')
    chk_eval()
    stamp(6, 4)
    I(f's_mov_b32 {s(S_EARLY)}, 0')
    I(f's_cbranch_vccnz {late}')
    I(f's_mov_b32 {s(S_EARLY)}, 1')
    first_hloads()
    stamp(7, 4)
    k._wait(vm=4 * HWN)
    I(f's_branch {j1}')
    k.label(late)
    k._wait(vm=0)
    k.label(j1)
    stamp(8, 4)
    k.wait_all(vm=False, lg=True)
    I('s_barrier')
    lab = k.newlabel('L_np')
    I(f's_cmp_eq_u32 {s(S_WAVE)}, 0')
    I(f's_cbranch_scc0 {lab}')
    flag_store(P1F, S_FOFF, T2)
    k.label(lab)


I(f's_lshl_b32 {s(S_T3)}, {s(S_MT)}, 3')
I(f's_sub_u32 {s(S_T3)}, {s(S_T3)}, 1')
I(f's_mul_i32 {s(S_T3)}, {s(S_T3)}, 20480')
I(f's_mul_i32 {s(S_T4)}, {s(S_WAVE)}, 5120')
I(f's_add_u32 {s(S_T3)}, {s(S_T3)}, {s(S_T4)}')
I(f's_cmp_eq_u32 {s(S_MT)}, 0')
I(f's_cselect_b32 {s(S_T5)}, {OOB}, {s(S_T3)}')
I(f'v_add_u32 {v(T + 2)}, {s(S_T4)}, {v(V_X)}')
SA = T + 28
SH = T + 33
tm, tg, tn, tq = T + 4, T + 5, T + 6, T + 7
I(f'v_and_b32 {v(tm)}, 15, {v(V_LANE)}')
I(f'v_lshrrev_b32 {v(tg)}, 4, {v(V_LANE)}')
I(f's_lshl_b32 {s(S_T3)}, {s(S_WAVE)}, 5')
I(f's_add_u32 {s(S_T3)}, {s(S_T3)}, 16')
I(f'v_add_u32 {v(tq)}, {s(S_T3)}, {v(tm)}')
I(f'v_mul_u32_u24 {v(tq)}, {RS}, {v(tq)}')
for cb in range(5):
    I(f'v_lshl_add_u32 {v(tn)}, {v(tg)}, 2, {16 * cb}')
    I(f'v_mul_u32_u24 {v(SA + cb)}, 205, {v(tn)}')
    I(f'v_lshrrev_b32 {v(SA + cb)}, 12, {v(SA + cb)}')
    I(f'v_lshl_add_u32 {v(SA + cb)}, {v(SA + cb)}, 2, {v(tn)}')
    I(f'v_lshl_add_u32 {v(SA + cb)}, {v(SA + cb)}, 1, {v(tq)}')
assert all((n * 205) >> 12 == n // 20 for n in range(0, 240, 4))
I(f'v_mul_u32_u24 {v(tq)}, {RS}, {v(tm)}')
for j in range(3):
    I(f's_add_u32 {s(S_T3)}, {s(S_HB)}, {j}')
    I(f's_lshl_b32 {s(S_T3)}, {s(S_T3)}, 4')
    I(f'v_lshl_add_u32 {v(tn)}, {v(tg)}, 2, {s(S_T3)}')
    I(f'v_mul_u32_u24 {v(SH + j)}, 205, {v(tn)}')
    I(f'v_lshrrev_b32 {v(SH + j)}, 12, {v(SH + j)}')
    I(f'v_lshl_add_u32 {v(SH + j)}, {v(SH + j)}, 2, {v(tn)}')
    I(f'v_lshl_add_u32 {v(SH + j)}, {v(SH + j)}, 1, {v(tq)}')
I(f's_mov_b32 {s(S_T2)}, {s(S_T5)}')
h_scalars()
ln_wait()
stamp(2)
for i in range(5):
    I(f'buffer_load_dwordx4 {v(T + 8 + 4 * i, 4)}, {v(V_L16 if i < 4 else V_L16B)}, {s(SRD_WS, 4)}, {s(S_T2)} offen offset:{(i & 3) * 1024} sc1')
for ks in range(4):
    for rb in range(2):
        load_A(ks, rb)
wt_flag()
tag_fetch()
for i in range(5):
    I(f'ds_write_b128 {v(T + 2)}, {v(T + 8 + 4 * i, 4)} offset:{i * 1024}')
k.wait_all(vm=False, lg=True)
I('s_barrier')
stamp(3)
w2done = mainloop(15, True, True, (opt('ra0', 2), opt('ra1', 8)))
stamp(4)
stamp(1, 4)
w2rest = [lambda f=f: w2load(f) for f in range(w2done, 70)] + [lambda i=i, nb=nb: wodma(i, nb) for i in (2, 3, 4) for nb in range(5)]
VA, VB, VO, K2M0, K2M1, NEG = T, T + 1, T + 2, T + 3, 224, 225
t1, t2, t3 = T + 4, T + 5, T + 6
I(f's_mul_i32 {s(S_T3)}, {s(S_WAVE)}, 48')
I(f'v_and_b32 {v(t1)}, 0x38, {v(V_LANE)}')
I(f'v_bfe_u32 {v(t2)}, {v(V_LANE)}, 2, 1')
I(f'v_add_u32 {v(t1)}, {v(t1)}, {v(t2)}')
I(f'v_and_b32 {v(t2)}, 3, {v(V_LANE)}')
I(f'v_lshl_add_u32 {v(t1)}, {v(t2)}, 1, {v(t1)}')
I(f'v_mul_u32_u24 {v(VA)}, {RS}, {v(t1)}')
I(f'v_add_u32 {v(VA)}, {s(S_T3)}, {v(VA)}')
I('s_barrier')
PK = T + 8
n = 0
for cbg in list(range(5, 15)) + list(range(5)):
    sec, cb = divmod(cbg, 5)
    for rb in range(2):
        d = ACC + (cbg * 2 + rb) * 4
        p = PK + 2 * (n % 4)
        n += 1
        I(f'v_cvt_pk_bf16_f32 {v(p)}, {v(d)}, {v(d + 1)}')
        I(f'v_cvt_pk_bf16_f32 {v(p + 1)}, {v(d + 2)}, {v(d + 3)}')
        I(f'ds_write_b64 {v(SA + cb)}, {v(p, 2)} offset:{sec * 192 + rb * 16 * RS}')
        if w2rest:
            w2rest.pop(0)()
for j in range(3):
    d = HACC + 4 * j
    p = PK + 2 * (n % 4)
    n += 1
    I(f'v_cvt_pk_bf16_f32 {v(p)}, {v(d)}, {v(d + 1)}')
    I(f'v_cvt_pk_bf16_f32 {v(p + 1)}, {v(d + 2)}, {v(d + 3)}')
    I(f'ds_write_b64 {v(SH + j)}, {v(p, 2)}')
I(f'v_and_b32 {v(VB)}, 0x30, {v(V_LANE)}')
I(f'v_bfe_u32 {v(t3)}, {v(V_LANE)}, 1, 1')
I(f'v_lshl_add_u32 {v(VB)}, {v(t3)}, 3, {v(VB)}')
I(f'v_and_b32 {v(t3)}, 1, {v(V_LANE)}')
I(f'v_add_u32 {v(VB)}, {v(VB)}, {v(t3)}')
I(f'v_bfe_u32 {v(t3)}, {v(V_LANE)}, 2, 2')
I(f'v_lshl_add_u32 {v(VB)}, {v(t3)}, 1, {v(VB)}')
I(f'v_mul_u32_u24 {v(VB)}, {RS}, {v(VB)}')
I(f'v_add_u32 {v(VB)}, {s(S_T3)}, {v(VB)}')
stamp(2, 4)
k.wait_all(vm=False, lg=True)
I('s_barrier')
stamp(3, 4)

TASKR = [16, 102]
for hf_ in range(2):
    R = TASKR[hf_]
    Q, Kr, Vr = R, R + 12, R + 48
    hb = hf_ * 64 * RS
    I(f'ds_read_b128 {v(Q, 4)}, {v(VA)} offset:{hb + 16 * RS}')
    I(f'ds_read_b128 {v(Q + 4, 4)}, {v(VA)} offset:{hb + 16 * RS + 16}')
    I(f'ds_read_b64 {v(Q + 8, 2)}, {v(VA)} offset:{hb + 16 * RS + 32}')
    for kg in range(3):
        o = hb + kg * 8 * RS + 192
        I(f'ds_read_b128 {v(Kr + 12 * kg, 4)}, {v(VA)} offset:{o}')
        I(f'ds_read_b128 {v(Kr + 12 * kg + 4, 4)}, {v(VA)} offset:{o + 16}')
        I(f'ds_read_b64 {v(Kr + 12 * kg + 8, 2)}, {v(VA)} offset:{o + 32}')
I(f'v_lshrrev_b32 {v(t3)}, 4, {v(t1)}')
I(f'v_mul_u32_u24 {v(VO)}, {ACT_MB}, {v(t3)}')
I(f'v_and_b32 {v(t3)}, 15, {v(t1)}')
I(f'v_lshl_add_u32 {v(VO)}, {v(t3)}, 4, {v(VO)}')
M1, M2, M3, INV1, INV01, INV02, INV03, SC_HI, SC_SCALE, SC_L2E, S_OB = 36, 38, 40, 42, 44, 46, 48, 50, 52, 54, 35
for reg, pat in ((M1, 0xeeeeeeee), (M2, 0xcccccccc), (M3, 0x88888888)):
    I(f's_mov_b32 {s(reg)}, {hex(pat)}')
    I(f's_mov_b32 {s(reg + 1)}, {hex(pat)}')
I(f'v_mov_b32 {v(t3)}, 0xffff')
I(f'v_cndmask_b32 {v(K2M0)}, {v(t3)}, -1, {s(M1, 2)}')
I(f'v_cndmask_b32 {v(K2M1)}, 0, {v(t3)}, {s(M2, 2)}')
I(f'v_cndmask_b32 {v(K2M1)}, {v(K2M1)}, -1, {s(M3, 2)}')
I(f'v_mov_b32 {v(NEG)}, {f32(-1e9)}')
I(f's_cmp_eq_u32 {s(S_MT)}, 0')
I(f's_cselect_b32 {s(INV1)}, 0xff, 0')
I(f's_cselect_b32 {s(INV01)}, 0x1111, 0')
I(f's_cselect_b32 {s(INV02)}, 0x3333, 0')
I(f's_cselect_b32 {s(INV03)}, 0x7777, 0')
for reg in (INV1, INV01, INV02, INV03):
    I(f's_mov_b32 {s(reg + 1)}, 0')
I(f's_mov_b32 {s(SC_HI)}, 0xffff0000')
I(f's_mov_b32 {s(SC_SCALE)}, {f32(20 ** -0.5)}')
I(f's_mov_b32 {s(SC_SCALE + 1)}, {f32(20 ** -0.5)}')
I(f's_mov_b32 {s(SC_L2E)}, {f32(1.4426950408889634)}')
I(f's_mov_b32 {s(SC_L2E + 1)}, {f32(1.4426950408889634)}')
SREG = [T + 4, T + 16]
for hf_ in range(2):
    R = TASKR[hf_]
    Q, Kr, Vr = R, R + 12, R + 48
    Sx = SREG[hf_]
    hb = hf_ * 64 * RS
    for dc in range(5):
        for kg in range(3):
            c_ = '0' if dc == 0 else v(Sx + 4 * kg, 4)
            I(f'v_mfma_f32_4x4x4_16b_bf16 {v(Sx + 4 * kg, 4)}, {v(Kr + 12 * kg + 2 * dc, 2)}, {v(Q + 2 * dc, 2)}, {c_}')
            I(f'ds_read_b64_tr_b16 {v(Vr + 2 * (kg * 5 + dc), 2)}, {v(VB)} offset:{hb + kg * 8 * RS + 384 + 8 * dc}')
stamp(4, 4)
I(f's_mul_i32 {s(S_OB)}, {s(S_MT)}, {8 * ACT_MB}')
I(f's_add_u32 {s(S_OB)}, {s(S_OB)}, {ACT_T}')
I(f's_mul_i32 {s(S_T3)}, {s(S_IDX)}, 2560')
I(f's_add_u32 {s(S_OB)}, {s(S_OB)}, {s(S_T3)}')
I(f's_lshr_b32 {s(S_T3)}, {s(S_WAVE)}, 1')
I(f's_mul_i32 {s(S_T3)}, {s(S_T3)}, 1280')
I(f's_add_u32 {s(S_OB)}, {s(S_OB)}, {s(S_T3)}')
I(f's_add_u32 {s(S_T4)}, {s(S_OB)}, {4 * ACT_MB}')
for hf_ in range(2):
    R = TASKR[hf_]
    Q, Kr, Vr = R, R + 12, R + 48
    Sx = SREG[hf_]
    Lg = Sx + 4
    for r, M in ((1, M1), (2, M2), (3, M3)):
        I(f'v_cndmask_b32 {v(Sx + 8 + r)}, {v(Sx + r)}, {v(Sx + 8 + r)}, {s(M, 2)}')
    P = Sx
    for i in range(4):
        I(f'v_cvt_pk_bf16_f32 {v(P + i)}, {v(Lg + 2 * i)}, {v(Lg + 2 * i + 1)}')
    for i in range(4):
        I(f'v_lshlrev_b32 {v(Lg + 2 * i)}, 16, {v(P + i)}')
        I(f'v_and_b32 {v(Lg + 2 * i + 1)}, {s(SC_HI)}, {v(P + i)}')
    for i in range(4):
        I(f'v_pk_mul_f32 {v(Lg + 2 * i, 2)}, {v(Lg + 2 * i, 2)}, {s(SC_SCALE, 2)}')
    if w2rest:
        w2rest.pop(0)()
    for i in range(4):
        I(f'v_cvt_pk_bf16_f32 {v(P + i)}, {v(Lg + 2 * i)}, {v(Lg + 2 * i + 1)}')
    for i in range(4):
        I(f'v_lshlrev_b32 {v(Lg + 2 * i)}, 16, {v(P + i)}')
        I(f'v_and_b32 {v(Lg + 2 * i + 1)}, {s(SC_HI)}, {v(P + i)}')
    if w2rest:
        w2rest.pop(0)()
    if hf_ == 0:
        for r in range(4):
            I(f'v_cndmask_b32 {v(Lg + r)}, {v(Lg + r)}, {v(NEG)}, {s(INV1, 2)}')
        for r, M in ((1, INV01), (2, INV02), (3, INV03)):
            I(f'v_cndmask_b32 {v(Lg + 4 + r)}, {v(Lg + 4 + r)}, {v(NEG)}, {s(M, 2)}')
    mx = P
    I(f'v_max3_f32 {v(mx)}, {v(Lg)}, {v(Lg + 1)}, {v(Lg + 2)}')
    I(f'v_max3_f32 {v(mx + 1)}, {v(Lg + 3)}, {v(Lg + 4)}, {v(Lg + 5)}')
    I(f'v_max3_f32 {v(mx)}, {v(mx)}, {v(Lg + 6)}, {v(Lg + 7)}')
    I(f'v_max_f32 {v(mx)}, {v(mx)}, {v(mx + 1)}')
    I(f'v_mov_b32 {v(mx + 1)}, {v(mx)}')
    for i in range(4):
        I(f'v_pk_add_f32 {v(Lg + 2 * i, 2)}, {v(Lg + 2 * i, 2)}, {v(mx, 2)} neg_lo:[0,1] neg_hi:[0,1]')
    for i in range(4):
        I(f'v_pk_mul_f32 {v(Lg + 2 * i, 2)}, {v(Lg + 2 * i, 2)}, {s(SC_L2E, 2)}')
    if w2rest:
        w2rest.pop(0)()
    for i in range(8):
        I(f'v_exp_f32 {v(Lg + i)}, {v(Lg + i)}')
    I(f'v_pk_add_f32 {v(P, 2)}, {v(Lg, 2)}, {v(Lg + 2, 2)}')
    I(f'v_pk_add_f32 {v(P + 2, 2)}, {v(Lg + 4, 2)}, {v(Lg + 6, 2)}')
    I(f'v_pk_add_f32 {v(P, 2)}, {v(P, 2)}, {v(P + 2, 2)}')
    I(f'v_add_f32 {v(P)}, {v(P)}, {v(P + 1)}')
    I(f'v_rcp_f32 {v(P)}, {v(P)}')
    if w2rest:
        w2rest.pop(0)()
    I(f'v_mov_b32 {v(P + 1)}, {v(P)}')
    for i in range(4):
        I(f'v_pk_mul_f32 {v(Lg + 2 * i, 2)}, {v(Lg + 2 * i, 2)}, {v(P, 2)}')
    PB = Kr
    I(f'v_cvt_pk_bf16_f32 {v(PB + 2)}, {v(Lg)}, {v(Lg + 1)}')
    I(f'v_cvt_pk_bf16_f32 {v(PB + 3)}, {v(Lg + 2)}, {v(Lg + 3)}')
    I(f'v_cvt_pk_bf16_f32 {v(PB)}, {v(Lg + 4)}, {v(Lg + 5)}')
    I(f'v_cvt_pk_bf16_f32 {v(PB + 1)}, {v(Lg + 6)}, {v(Lg + 7)}')
    I(f'v_and_b32 {v(PB + 4)}, {v(PB)}, {v(K2M0)}')
    I(f'v_and_b32 {v(PB + 5)}, {v(PB + 1)}, {v(K2M1)}')
    I(f'v_xor_b32 {v(PB)}, {v(PB)}, {v(PB + 4)}')
    I(f'v_xor_b32 {v(PB + 1)}, {v(PB + 1)}, {v(PB + 5)}')
    O = Kr + 8
    for kg in (1, 2, 0):
        for dc in range(5):
            c_ = '0' if kg == 1 else v(O + 4 * dc, 4)
            I(f'v_mfma_f32_4x4x4_16b_bf16 {v(O + 4 * dc, 4)}, {v(Vr + 2 * (kg * 5 + dc), 2)}, {v(PB + 2 * kg, 2)}, {c_}')
while w2rest:
    w2rest.pop(0)()
chk_issue(V_PF)
stamp(5, 4)
for hf_ in range(2):
    R = TASKR[hf_]
    O = R + 12 + 8
    for i in range(10):
        I(f'v_cvt_pk_bf16_f32 {v(R + i)}, {v(O + 2 * i)}, {v(O + 2 * i + 1)}')
lodd, ldone = k.newlabel('L_oodd'), k.newlabel('L_odone')
I(f's_bitcmp1_b32 {s(S_WAVE)}, 0')
I(f's_cbranch_scc1 {lodd}')
sto = k.state()
for hf_ in range(2):
    OP = TASKR[hf_]
    so = s(S_OB if hf_ == 0 else S_T4)
    I(f'buffer_store_dwordx4 {v(OP, 4)}, {v(VO)}, {s(SRD_WS, 4)}, {so} offen sc1')
    I(f'buffer_store_dwordx4 {v(OP + 4, 4)}, {v(VO)}, {s(SRD_WS, 4)}, {so} offen offset:256 sc1')
    I(f'buffer_store_dwordx2 {v(OP + 8, 2)}, {v(VO)}, {s(SRD_WS, 4)}, {so} offen offset:512 sc1')
I(f's_branch {ldone}')
k.set_state(sto)
k.label(lodd)
for hf_ in range(2):
    OP = TASKR[hf_]
    so = s(S_OB if hf_ == 0 else S_T4)
    I(f'buffer_store_dwordx2 {v(OP, 2)}, {v(VO)}, {s(SRD_WS, 4)}, {so} offen offset:520 sc1')
    I(f'buffer_store_dwordx4 {v(OP + 2, 4)}, {v(VO)}, {s(SRD_WS, 4)}, {so} offen offset:768 sc1')
    I(f'buffer_store_dwordx4 {v(OP + 6, 4)}, {v(VO)}, {s(SRD_WS, 4)}, {so} offen offset:1024 sc1')
k.label(ldone)
stamp(5)
publish()
I('s_branch L_phase2')

k.set_state(st_join)
k.label('L_ffn')
h_scalars()
ln_wait()
stamp(2)
for ks in range(4):
    for rb in range(2):
        load_A(ks, rb)
wt_flag()
tag_fetch()
I(f's_lshl_b32 {s(S_T3)}, {s(S_WAVE)}, 9')
I(f's_add_u32 {s(S_T3)}, {s(S_T3)}, {HALO}')
I(f'v_lshl_add_u32 {v(T)}, {v(V_LANE)}, 3, {s(S_T3)}')
I(f'ds_write_b64 {v(T)}, {v(BIAS, 2)}')
I(f'v_lshrrev_b32 {v(T)}, 4, {v(V_LANE)}')
I(f'v_lshl_add_u32 {v(T)}, {v(T)}, 3, {s(S_T3)}')
for cb in range(14):
    I(f'ds_read_b64 {v(T + 8 + 2 * cb, 2)}, {v(T)} offset:{32 * cb}')
I(f's_mov_b32 {s(S_T4)}, 0xffff0000')
for cb in range(14):
    for rb in range(2):
        d = ACC + (cb * 2 + rb) * 4
        for h in range(2):
            I(f'v_lshlrev_b32 {v(d + 2 * h)}, 16, {v(T + 8 + 2 * cb + h)}')
            I(f'v_and_b32 {v(d + 2 * h + 1)}, {s(S_T4)}, {v(T + 8 + 2 * cb + h)}')
stamp(3)
w2done = mainloop(14, False, False, (opt('rf0', 3), opt('rf1', 6)))
stamp(4)
stamp(1, 4)
I('s_barrier')
w2rest = [lambda f=f: w2load(f) for f in range(w2done, 70)] + [lambda i=i, nb=nb: wodma(i, nb) for i in (2, 3, 4) for nb in range(5)]
C0 = -2.0 * 0.7978845608028654 * 1.4426950408889634
C1 = C0 * 0.044715
GC0, GONE = T, T + 2
GS1 = 36
I(f'v_mov_b32 {v(GC0)}, {f32(C0)}')
I(f'v_mov_b32 {v(GC0 + 1)}, {f32(C0)}')
I(f'v_mov_b32 {v(GONE)}, 1.0')
I(f'v_mov_b32 {v(GONE + 1)}, 1.0')
I(f's_mov_b32 {s(GS1)}, {f32(C1)}')
I(f's_mov_b32 {s(GS1 + 1)}, {f32(C1)}')
S_HB2 = 38
I(f's_mul_i32 {s(S_HB2)}, {s(S_MB0)}, {ACT_MB}')
I(f's_lshl_b32 {s(S_T3)}, {s(S_START)}, 10')
I(f's_add_u32 {s(S_HB2)}, {s(S_HB2)}, {s(S_T3)}')
I(f's_add_u32 {s(S_HB2)}, {s(S_HB2)}, {ACT_T + 20 * 1024}')
I(f's_add_u32 {s(S_HB2 + 1)}, {s(S_HB2)}, {ACT_MB}')
n = 0
for pr in range(7):
    for rb in range(2):
        tmp = T + 4 + 8 * (n % 2)
        out = T + 20 + 4 * (n % 4)
        n += 1
        xs = [ACC + ((2 * pr + c2) * 2 + rb) * 4 + 2 * h for c2 in range(2) for h in range(2)]
        for i, x in enumerate(xs):
            I(f'v_pk_mul_f32 {v(tmp + 2 * i, 2)}, {v(x, 2)}, {v(x, 2)}')
        for i, x in enumerate(xs):
            I(f'v_pk_fma_f32 {v(tmp + 2 * i, 2)}, {v(tmp + 2 * i, 2)}, {s(GS1, 2)}, {v(GC0, 2)}')
        for i, x in enumerate(xs):
            I(f'v_pk_mul_f32 {v(tmp + 2 * i, 2)}, {v(tmp + 2 * i, 2)}, {v(x, 2)}')
        if w2rest:
            w2rest.pop(0)()
        for i in range(8):
            I(f'v_exp_f32 {v(tmp + i)}, {v(tmp + i)}')
        for i in range(4):
            I(f'v_pk_add_f32 {v(tmp + 2 * i, 2)}, {v(tmp + 2 * i, 2)}, {v(GONE, 2)}')
        if w2rest:
            w2rest.pop(0)()
        for i in range(8):
            I(f'v_rcp_f32 {v(tmp + i)}, {v(tmp + i)}')
        for i, x in enumerate(xs):
            I(f'v_pk_mul_f32 {v(tmp + 2 * i, 2)}, {v(tmp + 2 * i, 2)}, {v(x, 2)}')
        if w2rest:
            w2rest.pop(0)()
        for i in range(4):
            I(f'v_cvt_pk_bf16_f32 {v(out + i)}, {v(tmp + 2 * i)}, {v(tmp + 2 * i + 1)}')
        I(f'buffer_store_dwordx4 {v(out, 4)}, {v(V_L16 if pr < 4 else V_L16B)}, {s(SRD_WS, 4)}, {s(S_HB2 + rb)} offen offset:{(pr & 3) * 1024} sc1', tag=('h', pr))
        if rb == 1 and pr in (1, 3):
            stamp(2 + pr // 2, 4)
        if pr == 5 and rb == 0:
            stamp(4, 4)
            k.wait_vm_tag(('h', 3))
            I('s_barrier')
            lab = k.newlabel('L_nh')
            I(f's_cmp_eq_u32 {s(S_WAVE)}, 0')
            I(f's_cbranch_scc0 {lab}')
            flag_store(P1F + 64, S_FOFF, 224)
            k.label(lab)
            stamp(5, 4)
        if pr == 6 and rb == 0:
            while w2rest:
                w2rest.pop(0)()
            chk_issue(V_PF)
stamp(5)
publish()

k.label('L_phase2')
k.vmq = []
k.lgq = []
stamp(6)
lab = k.newlabel('L_haveh')
I(f's_cmp_eq_u32 {s(S_EARLY)}, 1')
I(f's_cbranch_scc1 {lab}')
poll(V_PF, 'ffn')
first_hloads()
k.label(lab)
stamp(7)
S_OBASE, S_OOK, S_HI, S_NL2E = 36, 39, 40, 41
I(f's_lshl_b32 {s(S_T3)}, {s(S_M2)}, 2')
I(f's_add_u32 {s(S_T3)}, {s(S_T3)}, {s(S_WAVE)}')
I(f's_mul_i32 {s(S_OBASE)}, {s(S_T3)}, {ACT_MB}')
I(f's_add_u32 {s(S_OBASE)}, {s(S_OBASE)}, {ACT_T + (OOB // 2 if "--noH" in sys.argv else 0)}')
I(f's_mov_b32 {s(S_HI)}, 0xffff0000')
I(f's_mov_b32 {s(S_NL2E)}, {f32(-1.4426950408889634)}')
VXO, VB2, VPA2, VRED2, VWO1, VWO2 = T2 + 2, T2 + 3, T2 + 4, T2 + 5, T2 + 6, T2 + 7
I(f'v_and_b32 {v(VB2)}, 15, {v(V_LANE)}')
I(f's_lshl_b32 {s(S_T3)}, {s(S_T3)}, 4')
I(f'v_add_u32 {v(VB2)}, {s(S_T3)}, {v(VB2)}')
I(f'v_mul_u32_u24 {v(VXO)}, 1280, {v(VB2)}')
I(f'v_lshrrev_b32 {v(VB2)}, 4, {v(V_LANE)}')
I(f's_mul_i32 {s(S_T3)}, {s(S_NT)}, 160')
I(f'v_lshl_add_u32 {v(VB2)}, {v(VB2)}, 3, {s(S_T3)}')
I(f'v_add_u32 {v(VXO)}, {v(VXO)}, {v(VB2)}')
I(f'v_subrev_u32 {v(V_PF)}, 64, {v(V_PF)}')
I(f's_lshr_b32 {s(S_T3)}, {s(S_M2)}, 1')
I(f's_lshl_b32 {s(S_T3)}, {s(S_T3)}, 7')
I(f's_add_u32 {s(S_T3)}, {s(S_T3)}, {P1F}')
I(f'v_and_b32 {v(VPA2)}, 7, {v(V_LANE)}')
I(f'v_lshl_add_u32 {v(VPA2)}, {v(VPA2)}, 2, {s(S_T3)}')
I(f's_mul_i32 {s(S_T3)}, {s(S_WAVE)}, {15 * 1024}')
I(f'v_add_u32 {v(VRED2)}, {s(S_T3)}, {v(V_L16)}')
I(f'v_add_u32 {v(VWO1)}, {LDS_WO}, {v(V_L16)}')
I(f'v_add_u32 {v(VWO2)}, {LDS_WO + 65536}, {v(V_L16)}')


def oreg(ks):
    return a(4 * W2ORDER[ks], 4)


def oload(ks):
    if ks % 8 == 0 and ks:
        I(f's_add_u32 {s(S_OBASE)}, {s(S_OBASE)}, 8192')
    I(f'buffer_load_dwordx4 {oreg(ks)}, {v(V_L16 if (ks & 7) < 4 else V_L16B)}, {s(SRD_WS, 4)}, {s(S_OBASE)} offen offset:{(ks & 3) * 1024} sc1')


extra = {st: [] for st in range(14)}
extra[1] = [lambda: chk_issue(V_PF)]
wl = [lambda i=i, nb=nb: wodma(i, nb) for i in (0, 1) for nb in range(5)]
for st in range(3, 8):
    extra[st] = wl[2 * (st - 3):2 * (st - 3) + 2]
extra[7].append(lambda: chk_issue(VPA2))
late = [lambda ks=ks: oload(ks) for ks in range(8)]
for nb in range(5):
    late.append(lambda nb=nb: I(f'buffer_load_dwordx2 {v(B2V + 2 * nb, 2)}, {v(VB2)}, {s(SRD_B2, 4)}, 0 offen offset:{32 * nb}'))
late += [lambda ks=ks: oload(ks) for ks in range(8, 20)]
for nb in range(5):
    late.append(lambda nb=nb: I(f'buffer_load_dwordx2 {v(XIN + 2 * nb, 2)}, {v(VXO)}, {s(SRD_X, 4)}, 0 offen offset:{32 * nb}'))
for i, st in enumerate(range(9, 13)):
    extra[st] = late[8 * i:8 * i + 8]
I(f's_mov_b32 {s(S_OOK)}, 1')
for st in range(13):
    if st in (0, 1, 3, 5, 8, 12):
        stamp(1 + (0, 1, 3, 5, 8, 12).index(st), 3)
    if st == 8 - HWN:
        poll(V_PF, 'ffn2', preissued=True)
    if st == 9:
        poll(VPA2, 'att', preissued=True)
    for mb in range(4):
        for nb in range(5):
            d = YACC + (mb * 5 + nb) * 4
            c_ = '0' if st == 0 else v(d, 4)
            I(f'v_mfma_f32_16x16x32_bf16 {v(d, 4)}, {w2reg(st, nb)}, {v(HW + 16 * (st % HWN) + 4 * mb, 4)}, {c_}')
            if nb in (1, 3) and extra[st] and (nb == 1 or st >= 9):
                extra[st].pop(0)()
        if st + HWN < 14:
            hload(st + HWN, mb)
    assert not extra[st]
labs = [k.newlabel('L_red') for _ in range(4)]
lend = k.newlabel('L_redend')
k._need(regs_of(v(HW + 16 * (13 % HWN), 16)))
stw = k.state()
YOWN = HW
for w in range(4):
    k.set_state(stw)
    if w:
        k.label(labs[w])
    if w < 3:
        I(f's_cmp_eq_u32 {s(S_WAVE)}, {w}')
        I(f's_cbranch_scc0 {labs[w + 1]}')
    wr = []
    for i in (1, 2, 3, 0):
        mb = (w + i) & 3
        for nb in range(5):
            d = YACC + (mb * 5 + nb) * 4
            dd = d if i else YOWN + 4 * nb
            I(f'v_mfma_f32_16x16x32_bf16 {v(dd, 4)}, {w2reg(13, nb)}, {v(HW + 16 * (13 % HWN) + 4 * mb, 4)}, {v(d, 4)}')
            if len(wr) >= 4:
                I(wr.pop(0))
            if i:
                wr.append(f'ds_write_b128 {v(V_L16)}, {v(d, 4)} offset:{LDS_RED + ((mb * 3 + i - 1) * 5 + nb) * 1024}')
            elif wr and len(wr) < 4:
                I(wr.pop(0))
    while wr:
        I(wr.pop(0))
    if w < 3:
        I(f's_branch {lend}')
k.label(lend)
stamp(8)
stamp(7, 3)
k.wait_all(vm=False, lg=True)
I('s_barrier')
YT = HW + 20
for i in range(3):
    for nb in range(5):
        I(f'ds_read_b128 {v(YT + 20 * i + 4 * nb, 4)}, {v(VRED2)} offset:{LDS_RED + (i * 5 + nb) * 1024}')
WOW = YACC
LA2 = 12


def woread(n):
    off = n * 1024
    if off < 65536:
        I(f'ds_read_b128 {v(WOW + 4 * (n % 16), 4)}, {v(VWO1)} offset:{off}')
    else:
        I(f'ds_read_b128 {v(WOW + 4 * (n % 16), 4)}, {v(VWO2)} offset:{off - 65536}')


for n in range(LA2):
    woread(n)
G1 = YT
valu = []
for i in range(3):
    for r in range(20):
        valu.append(f'v_add_f32 {v(YOWN + r)}, {v(YOWN + r)}, {v(YT + 20 * i + r)}')
seq = [
    lambda y, p, r: f'v_cvt_pk_bf16_f32 {v(p)}, {v(y)}, {v(y + 1)}',
    lambda y, p, r: f'v_lshlrev_b32 {v(y)}, 16, {v(p)}',
    lambda y, p, r: f'v_and_b32 {v(y + 1)}, {s(S_HI)}, {v(p)}',
    lambda y, p, r: f'v_lshlrev_b32 {v(p)}, 16, {v(B2V + r)}',
    lambda y, p, r: f'v_and_b32 {v(p + 1)}, {s(S_HI)}, {v(B2V + r)}',
    lambda y, p, r: f'v_add_f32 {v(y)}, {v(y)}, {v(p)}',
    lambda y, p, r: f'v_add_f32 {v(y + 1)}, {v(y + 1)}, {v(p + 1)}',
    lambda y, p, r: f'v_cvt_pk_bf16_f32 {v(p)}, {v(y)}, {v(y + 1)}',
    lambda y, p, r: f'v_lshlrev_b32 {v(y)}, 16, {v(p)}',
    lambda y, p, r: f'v_and_b32 {v(y + 1)}, {s(S_HI)}, {v(p)}',
    lambda y, p, r: f'v_mul_f32 {v(p)}, {s(S_NL2E)}, {v(y)}',
    lambda y, p, r: f'v_mul_f32 {v(p + 1)}, {s(S_NL2E)}, {v(y + 1)}',
    lambda y, p, r: f'v_exp_f32 {v(p)}, {v(p)}',
    lambda y, p, r: f'v_exp_f32 {v(p + 1)}, {v(p + 1)}',
    lambda y, p, r: f'v_add_f32 {v(p)}, 1.0, {v(p)}',
    lambda y, p, r: f'v_add_f32 {v(p + 1)}, 1.0, {v(p + 1)}',
    lambda y, p, r: f'v_rcp_f32 {v(p)}, {v(p)}',
    lambda y, p, r: f'v_rcp_f32 {v(p + 1)}, {v(p + 1)}',
    lambda y, p, r: f'v_mul_f32 {v(y)}, {v(y)}, {v(p)}',
    lambda y, p, r: f'v_mul_f32 {v(y + 1)}, {v(y + 1)}, {v(p + 1)}',
    lambda y, p, r: f'v_cvt_pk_bf16_f32 {v(p)}, {v(y)}, {v(y + 1)}',
    lambda y, p, r: f'v_lshlrev_b32 {v(y)}, 16, {v(p)}',
    lambda y, p, r: f'v_and_b32 {v(y + 1)}, {s(S_HI)}, {v(p)}',
    lambda y, p, r: f'v_lshlrev_b32 {v(p)}, 16, {v(XIN + r)}',
    lambda y, p, r: f'v_and_b32 {v(p + 1)}, {s(S_HI)}, {v(XIN + r)}',
]
for fn in seq:
    for r in range(10):
        valu.append(fn(YOWN + 2 * r, G1 + 2 * r, r))
nv = len(valu)
stamp(8, 3)
vi = 0
for n in range(100):
    ks, nb = divmod(n, 5)
    d = SACC + 4 * nb
    c_ = '0' if ks == 0 else v(d, 4)
    if n % 2 == 0:
        k._need(regs_of(v(WOW + 4 * (n % 16), 8)))
    I(f'v_mfma_f32_16x16x32_bf16 {v(d, 4)}, {v(WOW + 4 * (n % 16), 4)}, {oreg(ks)}, {c_}')
    if n + LA2 < 100:
        woread(n + LA2)
    while vi < nv and vi * 100 < (n + 1) * nv:
        I(valu[vi])
        vi += 1
PT = YT + 20
seq = [
    lambda sx, y, p, r: f'v_cvt_pk_bf16_f32 {v(p)}, {v(sx)}, {v(sx + 1)}',
    lambda sx, y, p, r: f'v_lshlrev_b32 {v(sx)}, 16, {v(p)}',
    lambda sx, y, p, r: f'v_and_b32 {v(sx + 1)}, {s(S_HI)}, {v(p)}',
    lambda sx, y, p, r: f'v_mul_f32 {v(sx)}, {v(sx)}, {v(y)}',
    lambda sx, y, p, r: f'v_mul_f32 {v(sx + 1)}, {v(sx + 1)}, {v(y + 1)}',
    lambda sx, y, p, r: f'v_cvt_pk_bf16_f32 {v(p)}, {v(sx)}, {v(sx + 1)}',
    lambda sx, y, p, r: f'v_lshlrev_b32 {v(sx)}, 16, {v(p)}',
    lambda sx, y, p, r: f'v_and_b32 {v(sx + 1)}, {s(S_HI)}, {v(p)}',
    lambda sx, y, p, r: f'v_add_f32 {v(sx)}, {v(sx)}, {v(G1 + 2 * r)}',
    lambda sx, y, p, r: f'v_add_f32 {v(sx + 1)}, {v(sx + 1)}, {v(G1 + 2 * r + 1)}',
    lambda sx, y, p, r: f'v_cvt_pk_bf16_f32 {v(XIN + r)}, {v(sx)}, {v(sx + 1)}',
]
for nb in range(5):
    for fn in seq:
        for r in (2 * nb, 2 * nb + 1):
            I(fn(SACC + 2 * r, YOWN + 2 * r, PT + r, r))
    I(f'buffer_store_dwordx2 {v(XIN + 2 * nb, 2)}, {v(VXO)}, {s(SRD_OUT, 4)}, 0 offen offset:{32 * nb}' + (' sc1' if '--outsc1' in sys.argv else '') + (' nt' if '--outnt' in sys.argv else ''))
ECHO = opt('echo', -1)
if ECHO >= 0:
    stamp(9, -1)
    k.wait_all()
    I(f's_sub_u32 {s(S_T3)}, {s(S_STAMP + 2 * ECHO)}, {s(S_STAMP)}')
    I(f's_min_u32 {s(S_T3)}, {s(S_T3)}, 10000')
    k.label('L_echo')
    I(f's_memrealtime {s(S_T4, 2)}')
    k.wait_all()
    I(f's_sub_u32 {s(S_T4)}, {s(S_T4)}, {s(S_STAMP + 18)}')
    I(f's_cmp_lt_u32 {s(S_T4)}, {s(S_T3)}')
    I('s_cbranch_scc1 L_echo')
elif STAMPS:
    stamp(9, -1)
    k.wait_all()
    I(f's_lshl_b32 {s(S_T3)}, {s(S_WG)}, 8')
    I(f's_lshl_b32 {s(S_T4)}, {s(S_WAVE)}, 6')
    I(f's_add_u32 {s(S_T3)}, {s(S_T3)}, {s(S_T4)}')
    I(f's_add_u32 {s(S_T3)}, {s(S_T3)}, {STAMP_OFF}')
    I(f'v_mov_b32 {v(T2)}, 0')
    I('s_mov_b64 exec, 1')
    for i in range(10):
        I(f'v_mov_b32 {v(T2 + 1)}, {s(S_STAMP + 2 * i)}')
        I(f'buffer_store_dword {v(T2 + 1)}, {v(T2)}, {s(SRD_WS, 4)}, {s(S_T3)} offen offset:{4 * i}')
    I(f'v_mov_b32 {v(T2 + 1)}, {s(S_EARLY)}')
    I(f'buffer_store_dword {v(T2 + 1)}, {v(T2)}, {s(SRD_WS, 4)}, {s(S_T3)} offen offset:52')
    I(f'v_mov_b32 {v(T2 + 1)}, {s(S_OOK)}')
    I(f'buffer_store_dword {v(T2 + 1)}, {v(T2)}, {s(SRD_WS, 4)}, {s(S_T3)} offen offset:56')
    I(f'v_mov_b32 {v(T2 + 1)}, {s(S_TYPE)}')
    I(f'buffer_store_dword {v(T2 + 1)}, {v(T2)}, {s(SRD_WS, 4)}, {s(S_T3)} offen offset:60')
if '--padx' in sys.argv:
    for i in range(2048):
        I(f'v_add3_u32 {v(16 + i % 8)}, {v(16 + i % 8)}, v2, v3')
if '--pady' in sys.argv:
    I(f's_mov_b32 {s(S_T3)}, 0')
    k.label('L_pady')
    for i in range(64):
        I(f'v_add3_u32 {v(16 + i % 8)}, {v(16 + i % 8)}, v2, v3')
    I(f's_add_u32 {s(S_T3)}, {s(S_T3)}, 1')
    I(f's_cmp_lt_u32 {s(S_T3)}, 32')
    I('s_cbranch_scc1 L_pady')
k.label('L_end')
I('s_endpgm')

hdr = open('recurrent_scan__sliding_local_dilated__dense_activation_gelu__prompt.s.ref').read().split('\n')
head = [l for l in hdr if l.startswith(';') and '@launch' not in l and 'Override' not in l and 'grid=ceil' not in l]
print('\n'.join(head))
print(f'; @launch grid=(256,1,1) block=(256,1,1) lds={LDS_TOTAL}')
print(f'''.amdgcn_target "amdgcn-amd-amdhsa--gfx950"
.text
.globl {KNAME}
.p2align 8
.type {KNAME},@function
{KNAME}:''')
print(k.text())
print(f'''.section .rodata,"a"
.p2align 6
.amdhsa_kernel {KNAME}
  .amdhsa_next_free_vgpr 512
  .amdhsa_next_free_sgpr 102
  .amdhsa_accum_offset 256
  .amdhsa_group_segment_fixed_size 0
  .amdhsa_kernarg_size 88
  .amdhsa_user_sgpr_count 2
  .amdhsa_user_sgpr_kernarg_segment_ptr 1
  .amdhsa_system_sgpr_workgroup_id_x 1
  .amdhsa_float_denorm_mode_32 3
.end_amdhsa_kernel''')
```

```python
import re

REG_RE = re.compile(r'\b([vas])(\d+)\b|\b([vas])\[(\d+):(\d+)\]|\b(vcc|exec|m0|scc)\b')


def v(i, n=1):
    return f'v{i}' if n == 1 else f'v[{i}:{i + n - 1}]'


def a(i, n=1):
    return f'a{i}' if n == 1 else f'a[{i}:{i + n - 1}]'


def s(i, n=1):
    return f's{i}' if n == 1 else f's[{i}:{i + n - 1}]'


def regs_of(tok):
    out = set()
    for m in REG_RE.finditer(tok):
        if m.group(1):
            out.add((m.group(1), int(m.group(2))))
        elif m.group(3):
            for i in range(int(m.group(4)), int(m.group(5)) + 1):
                out.add((m.group(3), i))
        else:
            out.add((m.group(6), 0))
    return out


def split_ops(rest):
    ops, depth, cur = [], 0, ''
    for ch in rest:
        if ch in '[(':
            depth += 1
        elif ch in '])':
            depth -= 1
        if ch == ',' and depth == 0:
            ops.append(cur.strip())
            cur = ''
        else:
            cur += ch
    if cur.strip():
        ops.append(cur.strip())
    return ops


TRANS = ('v_exp_f32', 'v_log_f32', 'v_rcp_f32', 'v_rsq_f32', 'v_sqrt_f32', 'v_sin_f32', 'v_cos_f32')
NODST = ('buffer_store', 'global_store', 'ds_write', 's_cmp', 's_cbranch', 's_branch', 's_waitcnt', 's_barrier',
         's_nop', 's_sleep', 's_endpgm', 's_setprio', 'buffer_inv', 'buffer_wbl2', 's_bitcmp')


class Ins:
    __slots__ = ('text', 'mn', 'dst', 'src', 'kind', 'passes', 'srcc', 'srcab', 'label', 'ws', 'dpp', 'wide_data')

    def __init__(self, text):
        self.text = text
        self.label = False
        self.passes = 0
        self.srcc = set()
        self.srcab = set()
        self.dpp = False
        self.wide_data = set()
        t = text.split(';')[0].strip()
        if t.endswith(':'):
            self.label = True
            self.mn = ''
            self.dst = set()
            self.src = set()
            self.kind = 'label'
            self.ws = 0
            return
        parts = t.split(None, 1)
        mn = parts[0]
        self.mn = mn
        rest = parts[1] if len(parts) > 1 else ''
        ops = split_ops(rest)
        R = [regs_of(o.split(' ')[0] if i == len(ops) - 1 and not o.startswith('-') else o) for i, o in enumerate(ops)]
        self.ws = 1
        dst, src = set(), set()
        if mn.startswith('v_mfma'):
            self.kind = 'mfma'
            dst = R[0]
            self.srcab = R[1] | R[2]
            self.srcc = R[3]
            src = self.srcab | self.srcc
            if '32x32x16' in mn:
                self.passes = 8
            elif '16x16x32' in mn:
                self.passes = 4
            elif '4x4x4' in mn:
                self.passes = 2
            else:
                raise ValueError(mn)
        elif mn.startswith('v_'):
            self.kind = 'trans' if mn.startswith(TRANS) else 'valu'
            if mn.startswith('v_permlane'):
                dst = R[0] | R[1]
                src = R[0] | R[1]
            elif mn.startswith(('v_add_co', 'v_sub_co', 'v_addc_co', 'v_subb_co')):
                dst = R[0] | R[1]
                for r in R[2:]:
                    src |= r
            else:
                dst = R[0]
                for r in R[1:]:
                    src |= r
                if mn.startswith(('v_fmac', 'v_pk_fmac', 'v_dot2c', 'v_writelane')):
                    src |= R[0]
            if '_dpp' in mn or 'row_' in rest or 'quad_perm' in rest:
                self.dpp = True
                src |= R[0]
        elif mn.startswith('ds_'):
            self.kind = 'ds'
            if mn.startswith('ds_write') or (mn.startswith('ds_add') and 'rtn' not in mn):
                for r in R:
                    src |= r
            else:
                dst = R[0]
                for r in R[1:]:
                    src |= r
        elif mn.startswith(('buffer_', 'global_')):
            self.kind = 'vmem'
            if mn.startswith(('buffer_inv', 'buffer_wbl2')):
                pass
            elif 'store' in mn or re.search(r'\blds\b', rest) or ('atomic' in mn and 'sc0' not in rest):
                for r in R:
                    src |= r
                if re.search(r'\blds\b', rest):
                    src.add(('m0', 0))
                if 'store' in mn and ('x4' in mn or 'x3' in mn):
                    self.wide_data = R[0] if mn.startswith('buffer') else R[1]
            else:
                dst = R[0]
                for r in R[1:]:
                    src |= r
                if 'atomic' in mn:
                    src |= R[0]
        elif mn.startswith(('s_load', 's_memtime', 's_memrealtime', 's_buffer_load')):
            self.kind = 'smem'
            dst = R[0]
            for r in R[1:]:
                src |= r
        elif mn.startswith('s_'):
            self.kind = 'salu'
            if mn == 's_nop':
                self.ws = int(ops[0], 0) + 1
            if mn.startswith(NODST):
                for r in R:
                    src |= r
            else:
                dst = R[0]
                for r in R[1:]:
                    src |= r
                if 'saveexec' in mn:
                    dst = dst | {('exec', 0)}
        else:
            raise ValueError('unknown instruction: ' + text)
        self.dst = dst
        self.src = src


class K:
    def __init__(self):
        self.ins = []
        self.vmq = []
        self.lgq = []
        self.nlabel = 0
        self.rec = None
        self.seen_tags = set()

    def _emit(self, text):
        self.ins.append(Ins(text))

    def comment(self, t):
        pass

    def label(self, name):
        self._emit(name + ':')

    def newlabel(self, base='L'):
        self.nlabel += 1
        return f'{base}_{self.nlabel}'

    def _wait(self, vm=None, lg=None):
        parts = []
        if vm is not None:
            parts.append(f'vmcnt({min(vm, 63)})')
        if lg is not None:
            parts.append(f'lgkmcnt({min(lg, 15)})')
        if parts:
            self._emit('s_waitcnt ' + ' '.join(parts))

    def _need(self, touched):
        vm = lg = None
        for i in range(len(self.vmq) - 1, -1, -1):
            if self.vmq[i][0] & touched:
                vm = len(self.vmq) - 1 - i
                del self.vmq[:i + 1]
                break
        for i in range(len(self.lgq) - 1, -1, -1):
            if self.lgq[i][0] & touched:
                if any(e[2] for e in self.lgq):
                    lg = 0
                    self.lgq = []
                else:
                    lg = len(self.lgq) - 1 - i
                    del self.lgq[:i + 1]
                break
        self._wait(vm, lg)

    def record(self, fn):
        self.rec = []
        fn()
        r, self.rec = self.rec, None
        return r

    def play(self, e):
        if e[0] == 'WAITTAG':
            self.wait_vm_tag(e[1])
        else:
            self.I(e[0], e[1])

    def I(self, text, tag=None):
        if self.rec is not None:
            self.rec.append((text, tag))
            return None
        self.seen_tags.add(tag)
        ins = Ins(text)
        self._need(ins.src | ins.dst)
        self.ins.append(ins)
        if ins.kind == 'vmem' and not ins.mn.startswith(('buffer_inv', 'buffer_wbl2')):
            self.vmq.append((ins.dst, tag))
        elif ins.kind == 'ds':
            self.lgq.append((ins.dst, tag, False))
        elif ins.kind == 'smem':
            self.lgq.append((ins.dst, tag, True))
        return ins

    def wait_vm_tag(self, tag):
        if self.rec is not None:
            self.rec.append(('WAITTAG', tag))
            return
        for i in range(len(self.vmq) - 1, -1, -1):
            if self.vmq[i][1] == tag:
                self._wait(vm=len(self.vmq) - 1 - i)
                del self.vmq[:i + 1]
                return

    def wait_lg_tag(self, tag):
        for i in range(len(self.lgq) - 1, -1, -1):
            if self.lgq[i][1] == tag:
                if any(e[2] for e in self.lgq):
                    self._wait(lg=0)
                    self.lgq = []
                else:
                    self._wait(lg=len(self.lgq) - 1 - i)
                    del self.lgq[:i + 1]
                return

    def wait_all(self, vm=True, lg=True):
        self._wait(0 if vm else None, 0 if lg else None)
        if vm:
            self.vmq = []
        if lg:
            self.lgq = []

    def state(self):
        return (list(self.vmq), list(self.lgq))

    def set_state(self, st):
        self.vmq, self.lgq = list(st[0]), list(st[1])

    def finalize(self):
        out = []
        XDL_RD = {2: 5, 4: 8, 8: 12, 16: 20}
        XDL_C = {2: 4, 4: 6, 8: 10, 16: 18}
        XDL_WAR = {2: 1, 4: 3, 8: 7, 16: 15}
        for ins in self.ins:
            if ins.label:
                out.append(ins)
                continue
            need = 0
            dist = 0
            isvalu = ins.kind in ('valu', 'trans')
            for p in reversed(out):
                if p.label:
                    continue
                if dist >= 20:
                    break
                req = 0
                pv = p.kind in ('valu', 'trans')
                if p.kind == 'mfma':
                    if ins.kind == 'mfma':
                        if p.dst & ins.srcab:
                            req = max(req, XDL_RD[p.passes])
                        if p.dst & ins.srcc:
                            if p.dst == ins.srcc and p.passes == ins.passes:
                                req = max(req, 2 if p.passes == 2 else 0)
                            else:
                                req = max(req, XDL_C[p.passes])
                        elif p.dst & ins.dst:
                            req = max(req, XDL_C[p.passes])
                    elif isvalu or ins.kind in ('vmem', 'ds'):
                        if p.dst & (ins.src | ins.dst):
                            req = max(req, XDL_RD[p.passes])
                        if isvalu and (p.srcc & ins.dst):
                            req = max(req, XDL_WAR[p.passes])
                if pv:
                    pvg = {r for r in p.dst if r[0] in 'va' and len(r[0]) == 1}
                    psg = {r for r in p.dst if r[0] in ('s', 'vcc')}
                    if ins.kind == 'mfma' and (pvg & ins.src):
                        req = max(req, 2)
                    if isvalu:
                        if p.kind == 'trans' and ins.kind != 'trans' and (pvg & ins.src):
                            req = max(req, 1)
                        if p.kind == 'trans' and ins.kind == 'trans' and (pvg & ins.src):
                            req = max(req, 1)
                        if ins.dpp and (pvg & ins.src):
                            req = max(req, 2)
                        if ins.mn.startswith('v_permlane') and (pvg & ins.src):
                            req = max(req, 2)
                        if ins.mn.startswith(('v_readlane', 'v_readfirstlane')) and (pvg & ins.src):
                            req = max(req, 1)
                        if psg & ins.src:
                            req = max(req, 4 if ins.mn.startswith(('v_readlane', 'v_writelane')) else 2)
                        if 'sdwa' in p.mn and (pvg & (ins.src | ins.dst)):
                            req = max(req, 1)
                    if ins.kind == 'vmem' and (psg & ins.src):
                        req = max(req, 5)
                    if ins.kind == 'salu' and (psg & ins.src):
                        req = max(req, 1)
                    if ins.mn.startswith('s_cbranch_vcc') and ('vcc', 0) in psg:
                        req = max(req, 5)
                if p.kind == 'salu' and ('m0', 0) in p.dst and ins.kind == 'vmem' and ('m0', 0) in ins.src:
                    req = max(req, 1)
                if p.wide_data and (p.wide_data & ins.dst):
                    req = max(req, 2)
                need = max(need, req - dist)
                dist += p.ws
            while need > 0:
                n = min(need, 16)
                out.append(Ins(f's_nop {n - 1}'))
                need -= n
            out.append(ins)
        self.out = out
        return out

    def text(self):
        lines = []
        for i in self.finalize():
            lines.append(i.text if i.label else '    ' + i.text)
        return '\n'.join(lines)
```

```python
import sys, struct
from asmlib import *

KNAME = 'recurrent_scan__sliding_local_dilated__dense_activation_gelu__prompt_kernel'
STAMPS = '--stamps' in sys.argv


def opt(name, default):
    for x in sys.argv:
        if x.startswith(f'--{name}='):
            return int(x.split('=')[1])
    return default


SMODE = opt('smode', 0)

XN_T = 0
ACT_T = 128 * 20 * 1024
ACT_MB = 74 * 1024
W_T = ACT_T + 128 * ACT_MB
FS = opt('fs', 7)
LNF = W_T + 74 * 40 * 1024
P1F = LNF + (256 << FS)
P1H = P1F + (256 << FS)
WTF = P1H + (256 << FS)
WS_USED = LNF + (1024 << 7)
STAMP_OFF = WS_USED
WS_REC = WS_USED + (256 * 4 * 64 if STAMPS else 0)
OOB = 0x40000000

RROW = 1056
SLOT = 16 * RROW
NSLOT = 8
HALO = NSLOT * SLOT
CNT = HALO + 20 * 1024
RS = 592
LDS_RED = 0
LDS_WO = 60 * 1024
LDS_TOTAL = 163840


def f32(x):
    return '0x%08x' % struct.unpack('<I', struct.pack('<f', x))[0]


S_WG, S_FOFF = 2, 3
SRD_X, SRD_B, SRD_WS, SRD_DBG, SRD_OUT, SRD_RT, SRD_B1, SRD_B2 = 4, 8, 12, 16, 20, 24, 28, 56
P_X, P_WQKV, P_WO, P_BX, P_W1, P_B1, P_W2, P_B2, P_OUT, P_DBG, P_WS = 32, 34, 36, 38, 40, 42, 44, 46, 48, 50, 52
S_WAVE, S_MT, S_TYPE, S_IDX, S_FB, S_PITCH, S_KSTR, S_START = 60, 61, 62, 63, 64, 65, 66, 67
S_T0, S_T1, S_T2, S_T3, S_T4, S_T5 = 68, 69, 70, 71, 72, 73
S_M0B, S_SOFF, S_M2, S_NT, S_SPIN, S_TAG = 74, 75, 76, 77, 78, 79
S_STAMP = 80
S_W2A, S_W2B = 100, 101
S_WOB, S_WOM, S_LAST = 16, 17, 18
S_HB, S_MB0 = 32, 33
S_AO = 36

V_LANE = 1
V_DMA = 2
V_TR0, V_TR1 = 6, 7
V_TRH0, V_TRH1 = 8, 9
V_L16 = 10
V_L16B = 11
V_PA = 12
V_POLL = 13
V_X = 14
V_PF = 15
ACC = 16
HACC = 136
WIN = 148
HX = 180
T = 188
BIAS = 226
W2V = 228
P4 = 252

k = K()
I = k.I


def stamp(idx, mode=0):
    if STAMPS and (mode == SMODE or mode == -1):
        I(f'{"s_memtime" if "--cyc" in sys.argv else "s_memrealtime"} {s(S_STAMP + 2 * idx, 2)}')


def srd(base, plo, nbytes):
    I(f's_mov_b32 {s(base)}, {s(plo)}')
    I(f's_mov_b32 {s(base + 1)}, {s(plo + 1)}')
    I(f's_mov_b32 {s(base + 2)}, {nbytes}')
    I(f's_mov_b32 {s(base + 3)}, 0x00020000')


def csel(dst, x, y):
    I(f's_mov_b32 {s(dst)}, {y}')
    I(f's_cselect_b32 {s(dst)}, {x}, {s(dst)}')


def chk_issue(addrv, n=1):
    if n == 1:
        I(f'buffer_load_dword {v(V_POLL)}, {v(addrv)}, {s(SRD_WS, 4)}, 0 offen sc1')
    else:
        for i in range(4):
            I(f's_mov_b32 {s(S_T0)}, {(64 * i) << FS}')
            I(f'buffer_load_dword {v(P4 + i)}, {v(addrv)}, {s(SRD_WS, 4)}, {s(S_T0)} offen sc1')


def chk_eval(n=1):
    if n == 1:
        I(f'v_cmp_ne_u32 vcc, {s(S_TAG)}, {v(V_POLL)}')
    else:
        for i in range(4):
            I(f'v_xor_b32 {v(P4 + i)}, {s(S_TAG)}, {v(P4 + i)}')
        I(f'v_or3_b32 {v(P4)}, {v(P4)}, {v(P4 + 1)}, {v(P4 + 2)}')
        I(f'v_or_b32 {v(P4)}, {v(P4)}, {v(P4 + 3)}')
        I(f'v_cmp_ne_u32 vcc, 0, {v(P4)}')


def poll(addrv, name, n=1, preissued=False, sleep=1):
    lab = k.newlabel('L_poll_' + name)
    done = k.newlabel('L_polled_' + name)
    if not preissued:
        chk_issue(addrv, n)
    chk_eval(n)
    I(f's_mov_b32 {s(S_SPIN)}, 0')
    I(f's_cbranch_vccz {done}')
    st = k.state()
    k.label(lab)
    I(f's_sleep {sleep}')
    chk_issue(addrv, n)
    k.wait_all(vm=True, lg=False)
    chk_eval(n)
    I(f's_add_u32 {s(S_SPIN)}, {s(S_SPIN)}, 1')
    I(f's_cbranch_vccz {done}')
    I(f's_cmp_lt_u32 {s(S_SPIN)}, 0x40000')
    I(f's_cbranch_scc1 {lab}')
    k.label(done)
    k.set_state(st)


def flag_store(base, offs, t0):
    I(f'v_mov_b32 {v(t0)}, {s(S_TAG)}')
    I(f'v_mov_b32 {v(t0 + 1)}, {base}')
    I('s_mov_b64 exec, 1')
    I(f'buffer_store_dword {v(t0)}, {v(t0 + 1)}, {s(SRD_WS, 4)}, {s(offs)} offen sc1')
    I('s_mov_b64 exec, -1')
    k.vmq.pop()


def dma1(j, soff_reg, tag):
    I(f'buffer_load_dwordx4 {v(V_DMA + j)}, {s(SRD_B, 4)}, {s(soff_reg)} offen offset:{j * RROW} lds', tag=tag)


def bf16r(dst, src):
    I(f'v_cvt_pk_bf16_f32 {v(dst)}, {v(src)}, {v(src)}')
    I(f'v_lshlrev_b32 {v(dst)}, 16, {v(dst)}')


def row_sum(r, t1):
    for sh in (4, 8):
        I(f'v_add_f32_dpp {v(r)}, {v(r)}, {v(r)} row_ror:{sh} row_mask:0xf bank_mask:0xf')
    for op in ('v_permlane16_swap_b32', 'v_permlane32_swap_b32'):
        I(f'v_mov_b32 {v(t1)}, {v(r)}')
        I(f'{op} {v(r)}, {v(t1)}')
        I(f'v_add_f32 {v(r)}, {v(r)}, {v(t1)}')


I(f's_cmp_ge_u32 {s(S_WG)}, 256')
I('s_cbranch_scc1 L_end')
I(f's_load_dwordx16 {s(32, 16)}, s[0:1], 0')
I(f's_load_dwordx4 {s(48, 4)}, s[0:1], 64')
I(f's_load_dwordx2 {s(52, 2)}, s[0:1], 80')
stamp(0, -1)
I(f'v_lshrrev_b32 {v(T)}, 6, v0')
I(f'v_and_b32 {v(V_LANE)}, 63, v0')
I(f'v_readfirstlane_b32 {s(S_WAVE)}, {v(T)}')
I(f'v_mov_b32 {v(T + 2)}, 0')
I(f'v_mov_b32 {v(T + 3)}, 0')
I(f'v_mov_b32 {v(T + 1)}, {CNT}')
I(f'ds_write_b64 {v(T + 1)}, {v(T + 2, 2)}')
I(f'ds_write_b64 {v(T + 1)}, {v(T + 2, 2)} offset:8')
I(f's_cmp_lt_u32 {s(S_WAVE)}, 2')
I('s_cbranch_scc1 L_nocp')
CPV = T + 35
I(f's_getpc_b64 {s(S_TAG - 1, 2)}')
k.label('L_pc')
I(f's_lshr_b32 {s(S_T3)}, {s(S_WG)}, 2')
I(f's_and_b32 {s(S_T3)}, {s(S_T3)}, 6')
I(f's_and_b32 {s(S_T4)}, {s(S_WAVE)}, 1')
I(f's_add_u32 {s(S_T3)}, {s(S_T3)}, {s(S_T4)}')
I(f's_lshl_b32 {s(S_T3)}, {s(S_T3)}, 13')
I(f'v_lshl_add_u32 {v(CPV)}, {v(V_LANE)}, 7, {s(S_T3)}')
I(f'v_min_u32 {v(CPV)}, L_end-L_pc, {v(CPV)}')
I(f'global_load_dword {v(T + 17)}, {v(CPV)}, {s(S_TAG - 1, 2)}')
k.vmq.pop()
k.label('L_nocp')
I(f's_and_b32 {s(S_T0)}, {s(S_WG)}, 7')
I(f's_lshr_b32 {s(S_T1)}, {s(S_WG)}, 3')
I(f's_and_b32 {s(S_MT)}, {s(S_T0)}, 1')
I(f's_lshl_b32 {s(S_MT)}, {s(S_MT)}, 3')
I(f's_and_b32 {s(S_T2)}, {s(S_T1)}, 7')
I(f's_add_u32 {s(S_MT)}, {s(S_MT)}, {s(S_T2)}')
I(f's_lshr_b32 {s(S_T2)}, {s(S_T1)}, 3')
I(f's_and_b32 {s(S_TYPE)}, {s(S_T2)}, 1')
I(f's_lshr_b32 {s(S_T2)}, {s(S_T2)}, 1')
I(f's_and_b32 {s(S_IDX)}, {s(S_T0)}, 6')
I(f's_add_u32 {s(S_IDX)}, {s(S_IDX)}, {s(S_T2)}')
I(f's_lshl_b32 {s(S_FB)}, {s(S_MT)}, 4')
I(f's_lshl_b32 {s(S_T2)}, {s(S_TYPE)}, 3')
I(f's_add_u32 {s(S_FB)}, {s(S_FB)}, {s(S_T2)}')
I(f's_add_u32 {s(S_FB)}, {s(S_FB)}, {s(S_IDX)}')
I(f's_cmp_eq_u32 {s(S_TYPE)}, 0')
csel(S_PITCH, 3840, 3456)
LR, LP, LXA = T + 4, T + 5, T + 6
I(f'v_and_b32 {v(LR)}, 3, {v(V_LANE)}')
I(f'v_lshrrev_b32 {v(LP)}, 2, {v(V_LANE)}')
I(f's_lshl_b32 {s(S_T3)}, {s(S_FB)}, 3')
I(f's_lshl_b32 {s(S_T4)}, {s(S_WAVE)}, 2')
I(f's_add_u32 {s(S_T3)}, {s(S_T3)}, {s(S_T4)}')
I(f'v_add_u32 {v(LR)}, {s(S_T3)}, {v(LR)}')
I(f'v_mul_u32_u24 {v(LXA)}, 1280, {v(LR)}')
I(f'v_lshl_add_u32 {v(LXA)}, {v(LP)}, 4, {v(LXA)}')
PFL = 0
I(f'v_and_b32 {v(T + 32)}, 15, {v(V_LANE)}')
I(f's_cmp_eq_u32 {s(S_TYPE)}, 0')
I(f's_cselect_b32 {s(S_T3)}, 8, 6')
I(f's_cselect_b32 {s(S_T4)}, {1280 - 384}, 0')
csel(S_M0B, 160, 448)
I(f'v_min_u32 {v(T + 32)}, {s(S_T3)}, {v(T + 32)}')
I(f'v_mul_u32_u24 {v(T + 33)}, 11, {v(T + 32)}')
I(f'v_lshrrev_b32 {v(T + 33)}, 5, {v(T + 33)}')
I(f'v_mul_u32_u24 {v(T + 33)}, {s(S_T4)}, {v(T + 33)}')
I(f'v_lshl_add_u32 {v(PFL)}, {v(T + 32)}, 7, {v(T + 33)}')
I(f'v_lshrrev_b32 {v(T + 32)}, 4, {v(V_LANE)}')
I(f'v_mad_u32_u24 {v(PFL)}, {v(T + 32)}, {s(S_PITCH)}, {v(PFL)}')
I(f's_and_b32 {s(S_T3)}, {s(S_IDX)}, 6')
I(f's_mul_i32 {s(S_M0B)}, {s(S_M0B)}, {s(S_T3)}')
I(f'v_add_u32 {v(PFL)}, {s(S_M0B)}, {v(PFL)}')
I(f's_and_b32 {s(S_KSTR)}, {s(S_MT)}, 7')
I(f's_lshl_b32 {s(S_KSTR)}, {s(S_KSTR)}, 1')
I(f's_and_b32 {s(S_T4)}, {s(S_IDX)}, 1')
I(f's_add_u32 {s(S_KSTR)}, {s(S_KSTR)}, {s(S_T4)}')
assert all((x * 11) >> 5 == x // 3 for x in range(9))
k.wait_all(vm=False, lg=True)
stamp(1, 2)
I('s_barrier')
srd(SRD_X, P_X, 2048 * 1280)
srd(SRD_DBG, P_DBG, 256)
XR = T + 8
TAGV = T + 36
I(f's_cmp_ge_u32 {s(S_WAVE)}, 2')
I('s_cbranch_scc1 L_pf')

for i in range(5):
    I(f'buffer_load_dwordx4 {v(XR + 4 * i, 4)}, {v(LXA)}, {s(SRD_X, 4)}, 0 offen offset:{256 * i}', tag='x')
I(f'buffer_load_dword {v(TAGV)}, {v(T + 2)}, {s(SRD_DBG, 4)}, 0 offen sc1')
srd(SRD_WS, P_WS, WS_REC)
I(f's_lshl_b32 {s(S_FOFF)}, {s(S_FB)}, {FS}')
XF = ACC
SA_ = T + 3
I(f'v_lshrrev_b32 {v(SA_)}, 4, {v(LR)}')
I(f'v_mul_u32_u24 {v(SA_)}, 20480, {v(SA_)}')
I(f'v_lshrrev_b32 {v(T)}, 4, {v(V_LANE)}')
I(f'v_lshl_add_u32 {v(SA_)}, {v(T)}, 10, {v(SA_)}')
I(f'v_bfe_u32 {v(T)}, {v(LR)}, 2, 2')
I(f'v_lshl_add_u32 {v(SA_)}, {v(T)}, 8, {v(SA_)}')
I(f'v_and_b32 {v(T)}, 15, {v(V_LANE)}')
I(f'v_lshl_add_u32 {v(SA_)}, {v(T)}, 4, {v(SA_)}')
I(f's_mov_b32 {s(S_T3)}, 0xffff0000')
stamp(2, 2)
if STAMPS and SMODE == 2:
    k.wait_vm_tag('x')
stamp(3, 2)
SUM = T + 4
for i in range(20):
    I(f'v_lshlrev_b32 {v(XF + 2 * i)}, 16, {v(XR + i)}')
    I(f'v_and_b32 {v(XF + 2 * i + 1)}, {s(S_T3)}, {v(XR + i)}')
    if i == 1:
        I(f'v_pk_add_f32 {v(SUM, 2)}, {v(XF, 2)}, {v(XF + 2, 2)}')
    elif i > 1:
        I(f'v_pk_add_f32 {v(SUM, 2)}, {v(SUM, 2)}, {v(XF + 2 * i, 2)}')
I(f'v_add_f32 {v(SUM)}, {v(SUM)}, {v(SUM + 1)}')
row_sum(SUM, SUM + 1)
MEAN = T + 6
I(f'v_mul_f32 {v(MEAN)}, {f32(1.0 / 640)}, {v(SUM)}')
I(f'v_mov_b32 {v(MEAN + 1)}, {v(MEAN)}')
SQ = T + 4
DV = T + 28
for i in range(20):
    d = DV + 2 * (i & 1)
    I(f'v_pk_add_f32 {v(d, 2)}, {v(XF + 2 * i, 2)}, {v(MEAN, 2)} neg_lo:[0,1] neg_hi:[0,1]')
    if i == 0:
        I(f'v_pk_mul_f32 {v(SQ, 2)}, {v(d, 2)}, {v(d, 2)}')
    else:
        I(f'v_pk_fma_f32 {v(SQ, 2)}, {v(d, 2)}, {v(d, 2)}, {v(SQ, 2)}')
I(f'v_add_f32 {v(SQ)}, {v(SQ)}, {v(SQ + 1)}')
row_sum(SQ, SQ + 1)
I(f'v_mul_f32 {v(SQ)}, {f32(1.0 / 640)}, {v(SQ)}')
bf16r(SQ, SQ)
I(f'v_add_f32 {v(SQ)}, {f32(1e-5)}, {v(SQ)}')
bf16r(SQ, SQ)
I(f'v_sqrt_f32 {v(SQ)}, {v(SQ)}')
bf16r(MEAN, MEAN)
bf16r(SQ, SQ)
I(f'v_rcp_f32 {v(SQ + 1)}, {v(SQ)}')
I(f'v_mov_b32 {v(MEAN + 1)}, {v(MEAN)}')
I(f'v_fma_f32 {v(SQ)}, -{v(SQ)}, {v(SQ + 1)}, 1.0')
I(f'v_fma_f32 {v(SQ)}, {v(SQ)}, {v(SQ + 1)}, {v(SQ + 1)}')
I(f'v_mov_b32 {v(SQ + 1)}, {v(SQ)}')
for i in range(20):
    x2 = XF + 2 * i
    I(f'v_pk_add_f32 {v(x2, 2)}, {v(x2, 2)}, {v(MEAN, 2)} neg_lo:[0,1] neg_hi:[0,1]')
    I(f'v_cvt_pk_bf16_f32 {v(XR + i)}, {v(x2)}, {v(x2 + 1)}')
    I(f'v_lshlrev_b32 {v(x2)}, 16, {v(XR + i)}')
    I(f'v_and_b32 {v(x2 + 1)}, {s(S_T3)}, {v(XR + i)}')
    I(f'v_pk_mul_f32 {v(x2, 2)}, {v(x2, 2)}, {v(SQ, 2)}')
    I(f'v_cvt_pk_bf16_f32 {v(XR + i)}, {v(x2)}, {v(x2 + 1)}')
    if i % 4 == 3:
        ii = i // 4
        I(f's_mov_b32 {s(S_T4)}, {XN_T + 4096 * ii}')
        I(f'buffer_store_dwordx4 {v(XR + 4 * ii, 4)}, {v(SA_)}, {s(SRD_WS, 4)}, {s(S_T4)} offen sc1')
stamp(1)
stamp(4, 2)
if opt('gate', 1) == 2:
    I(f'v_mov_b32 {v(T + 1)}, {CNT}')
    I(f'v_mov_b32 {v(T)}, 1')
    I('s_mov_b64 exec, 1')
    I(f'ds_add_u32 {v(T + 1)}, {v(T)} offset:8')
    I('s_mov_b64 exec, -1')
I(f'v_readfirstlane_b32 {s(S_TAG)}, {v(TAGV)}')
I(f'v_mov_b32 {v(T + 1)}, 0')
I(f's_mov_b32 {s(S_SPIN)}, 0')
I(f's_cmp_lg_u32 {s(S_TAG)}, 0')
I('s_cbranch_scc1 L_tagok')
k.label('L_tagpoll')
I(f'buffer_load_dword {v(TAGV)}, {v(T + 1)}, {s(SRD_DBG, 4)}, 0 offen sc1')
k.wait_all()
I(f'v_readfirstlane_b32 {s(S_TAG)}, {v(TAGV)}')
I(f's_add_u32 {s(S_SPIN)}, {s(S_SPIN)}, 1')
I(f's_cmp_lg_u32 {s(S_TAG)}, 0')
I('s_cbranch_scc1 L_tagok')
I(f's_cmp_lt_u32 {s(S_SPIN)}, 0x40000')
I('s_cbranch_scc1 L_tagpoll')
k.label('L_tagok')
I(f'v_mov_b32 {v(T + 1)}, {CNT}')
I(f'ds_write_b32 {v(T + 1)}, {v(TAGV)} offset:4')
I(f'v_mov_b32 {v(T)}, 1')
k.wait_all()
stamp(5, 2)
I('s_mov_b64 exec, 1')
I(f'ds_add_rtn_u32 {v(T + 2)}, {v(T + 1)}, {v(T)}')
I('s_mov_b64 exec, -1')
I(f'v_readfirstlane_b32 {s(S_T3)}, {v(T + 2)}')
I(f's_cmp_eq_u32 {s(S_T3)}, 1')
I('s_cbranch_scc0 L_common')
flag_store(LNF, S_FOFF, T)
I('s_branch L_common')

k.vmq = []
k.lgq = []
k.label('L_pf')
I(f's_cmp_lt_u32 {s(S_WG)}, 8')
I('s_cbranch_scc0 L_notag')
I(f's_cmp_eq_u32 {s(S_WAVE)}, 2')
I('s_cbranch_scc0 L_notag')
I(f's_memrealtime {s(S_T4, 2)}')
I(f's_or_b32 {s(S_T4)}, {s(S_T4)}, 1')
I(f'v_mov_b32 {v(T + 2)}, {s(S_T4)}')
I('s_mov_b64 exec, 1')
I(f'buffer_atomic_cmpswap {v(T + 2, 2)}, {v(T + 3)}, {s(SRD_DBG, 4)}, 0 offen sc1')
I('s_mov_b64 exec, -1')
k.label('L_notag')


def srd_b():
    I(f's_cmp_eq_u32 {s(S_TYPE)}, 0')
    I(f's_cselect_b32 {s(SRD_B)}, {s(P_WQKV)}, {s(P_W1)}')
    I(f's_cselect_b32 {s(SRD_B + 1)}, {s(P_WQKV + 1)}, {s(P_W1 + 1)}')
    csel(SRD_B + 2, 640 * 3840, 640 * 3456)
    I(f's_mov_b32 {s(SRD_B + 3)}, 0x00020000')


srd_b()
I(f's_lshl_b32 {s(S_T3)}, {s(S_KSTR)}, 1')
I(f's_and_b32 {s(S_T4)}, {s(S_WAVE)}, 1')
I(f's_add_u32 {s(S_T3)}, {s(S_T3)}, {s(S_T4)}')
I(f's_lshl_b32 {s(S_T4)}, {s(S_PITCH)}, 2')
I(f's_mul_i32 {s(S_SOFF)}, {s(S_T3)}, {s(S_T4)}')
I(f's_lshl_b32 {s(S_T4)}, {s(S_PITCH)}, 7')
I(f'buffer_load_dword {v(T + 12)}, {v(PFL)}, {s(SRD_B, 4)}, {s(S_SOFF)} offen')
I(f's_add_u32 {s(S_SOFF)}, {s(S_SOFF)}, {s(S_T4)}')
I(f'buffer_load_dword {v(T + 13)}, {v(PFL)}, {s(SRD_B, 4)}, {s(S_SOFF)} offen')

k.label('L_common')
k.vmq = [(set(), 'unknown')]
k.lgq = []
I('s_nop 4')
I(f's_lshl_b32 {s(S_FOFF)}, {s(S_FB)}, {FS}')
if '--map84' in sys.argv:
    I(f's_lshr_b32 {s(S_M2)}, {s(S_T0)}, 1')
    I(f's_lshl_b32 {s(S_M2)}, {s(S_M2)}, 3')
    I(f's_and_b32 {s(S_T2)}, {s(S_T1)}, 7')
    I(f's_add_u32 {s(S_M2)}, {s(S_M2)}, {s(S_T2)}')
    I(f's_and_b32 {s(S_NT)}, {s(S_T0)}, 1')
    I(f's_lshl_b32 {s(S_NT)}, {s(S_NT)}, 2')
    I(f's_lshr_b32 {s(S_T2)}, {s(S_T1)}, 3')
    I(f's_add_u32 {s(S_NT)}, {s(S_NT)}, {s(S_T2)}')
else:
    I(f's_lshl_b32 {s(S_M2)}, {s(S_T0)}, 2')
    I(f's_and_b32 {s(S_T2)}, {s(S_T1)}, 3')
    I(f's_add_u32 {s(S_M2)}, {s(S_M2)}, {s(S_T2)}')
    I(f's_lshr_b32 {s(S_NT)}, {s(S_T1)}, 2')
I(f's_mul_i32 {s(S_START)}, {s(S_IDX)}, 7')
I(f's_min_u32 {s(S_START)}, {s(S_START)}, 47')
I(f's_lshl_b32 {s(S_T3)}, {s(S_KSTR)}, 2')
I(f's_add_u32 {s(S_T3)}, {s(S_T3)}, {s(S_WAVE)}')
I(f's_add_u32 {s(S_T3)}, {s(S_T3)}, 64')
I(f's_lshl_b32 {s(S_T4)}, {s(S_PITCH)}, 2')
I(f's_mul_i32 {s(S_T3)}, {s(S_T3)}, {s(S_T4)}')
I(f'v_add_u32 {v(PFL)}, {s(S_T3)}, {v(PFL)}')
I(f's_lshl_b32 {s(S_KSTR)}, {s(S_PITCH)}, 5')
I(f'v_lshlrev_b32 {v(V_L16)}, 4, {v(V_LANE)}')
I(f'v_add_u32 {v(V_L16B)}, 4096, {v(V_L16)}')
srd(SRD_B1, P_B1, 1728 * 2)
I(f'v_lshlrev_b32 {v(T + 7)}, 3, {v(V_LANE)}')
I(f's_lshl_b32 {s(S_T5)}, {s(S_START)}, 6')
I(f'buffer_load_dwordx2 {v(BIAS, 2)}, {v(T + 7)}, {s(SRD_B1, 4)}, {s(S_T5)} offen', tag='pf')
I(f's_lshl_b32 {s(S_T0)}, {s(S_WG)}, 1')
I(f's_and_b32 {s(S_T1)}, {s(S_WAVE)}, 1')
I(f's_add_u32 {s(S_T0)}, {s(S_T0)}, {s(S_T1)}')
I(f's_mul_i32 {s(S_T1)}, {s(S_T0)}, 13108')
I(f's_lshr_b32 {s(S_T1)}, {s(S_T1)}, 16')
I(f's_mul_i32 {s(S_T2)}, {s(S_T1)}, 5')
I(f's_sub_u32 {s(S_T2)}, {s(S_T0)}, {s(S_T2)}')
assert all((u * 13108) >> 16 == u // 5 for u in range(512))
srd(SRD_WS, P_WS, WS_REC)
srd(SRD_OUT, P_OUT, 2048 * 1280)
srd(SRD_B2, P_B2, 640 * 2)
srd_b()
I(f's_cmp_lt_u32 {s(S_T1)}, 20')
I(f's_cselect_b32 {s(SRD_RT)}, {s(P_WO)}, {s(P_W2)}')
I(f's_cselect_b32 {s(SRD_RT + 1)}, {s(P_WO + 1)}, {s(P_W2 + 1)}')
csel(SRD_RT + 2, 640 * 1280, 1728 * 1280)
I(f's_mov_b32 {s(SRD_RT + 3)}, 0x00020000')
c, hf, sg = T, T + 1, T + 2
I(f'v_and_b32 {v(c)}, 31, {v(V_LANE)}')
I(f'v_lshrrev_b32 {v(hf)}, 5, {v(V_LANE)}')
S_CB = 34
I(f's_cmp_eq_u32 {s(S_TYPE)}, 0')
I(f's_cselect_b32 {s(S_T3)}, 29, 27')
I(f's_cselect_b32 {s(S_T4)}, 1120, 0')
I(f's_mul_i32 {s(S_CB)}, {s(S_IDX)}, 160')
I(f's_lshl_b32 {s(S_T5)}, {s(S_START)}, 6')
I(f's_cmp_eq_u32 {s(S_TYPE)}, 0')
I(f's_cselect_b32 {s(S_CB)}, {s(S_CB)}, {s(S_T5)}')
I(f'v_min_u32 {v(c)}, {s(S_T3)}, {v(c)}')
I(f'v_mul_u32_u24 {v(sg)}, 205, {v(c)}')
I(f'v_lshrrev_b32 {v(sg)}, 11, {v(sg)}')
I(f'v_mul_u32_u24 {v(sg)}, {s(S_T4)}, {v(sg)}')
I(f'v_lshl_add_u32 {v(sg)}, {v(c)}, 4, {v(sg)}')
I(f'v_add_u32 {v(sg)}, {s(S_CB)}, {v(sg)}')
I(f's_lshl_b32 {s(S_T3)}, {s(S_PITCH)}, 2')
I(f'v_mad_u32_u24 {v(V_DMA)}, {v(hf)}, {s(S_T3)}, {v(sg)}')
I(f's_sub_u32 {s(S_T3)}, {s(S_PITCH)}, {RROW}')
for j in range(1, 4):
    I(f'v_add_u32 {v(V_DMA + j)}, {s(S_T3)}, {v(V_DMA + j - 1)}')
assert all((c_ * 205) >> 11 == c_ // 10 for c_ in range(32))
NPRE = opt('npre', 4)
I(f's_mul_i32 {s(S_M0B)}, {s(S_WAVE)}, {4 * RROW}')
I(f's_lshl_b32 {s(S_T3)}, {s(S_PITCH)}, 3')
I(f's_mul_i32 {s(S_SOFF)}, {s(S_WAVE)}, {s(S_T3)}')
I(f's_mul_i32 {s(S_T3)}, {s(S_KSTR)}, {NPRE}')
I(f's_add_u32 {s(S_SOFF)}, {s(S_SOFF)}, {s(S_T3)}')
if '--noD' in sys.argv:
    I(f's_mov_b32 {s(S_SOFF)}, {OOB // 2}')
I(f'v_lshrrev_b32 {v(LP)}, 2, {v(V_LANE)}')
I(f'v_mul_u32_u24 {v(V_TR0)}, {RROW}, {v(LP)}')
I(f'v_and_b32 {v(T)}, 3, {v(V_LANE)}')
I(f'v_lshl_add_u32 {v(V_TR0)}, {v(T)}, 3, {v(V_TR0)}')
I(f'v_add_u32 {v(V_TR1)}, {4 * SLOT}, {v(V_TR0)}')
I(f's_mul_i32 {s(S_HB)}, {s(S_WAVE)}, 3')
I(f's_min_u32 {s(S_HB)}, {s(S_HB)}, 7')
I(f's_add_u32 {s(S_HB)}, {s(S_HB)}, 5')
I(f's_lshl_b32 {s(S_T3)}, {s(S_HB)}, 5')
I(f'v_add_u32 {v(V_TRH0)}, {s(S_T3)}, {v(V_TR0)}')
I(f'v_add_u32 {v(V_TRH1)}, {s(S_T3)}, {v(V_TR1)}')
I(f'v_add_u32 {v(V_X)}, {HALO}, {v(V_L16)}')
V_AO = 250
I(f'v_bfe_u32 {v(T)}, {v(V_LANE)}, 2, 2')
I(f'v_lshlrev_b32 {v(V_AO)}, 8, {v(T)}')
I(f'v_lshrrev_b32 {v(T)}, 4, {v(V_LANE)}')
I(f'v_lshl_add_u32 {v(V_AO)}, {v(T)}, 6, {v(V_AO)}')
I(f'v_and_b32 {v(T)}, 3, {v(V_LANE)}')
I(f'v_lshl_add_u32 {v(V_AO)}, {v(T)}, 4, {v(V_AO)}')
I(f'v_add_u32 {v(V_AO + 1)}, 4096, {v(V_AO)}')
I(f's_lshl_b32 {s(S_MB0)}, {s(S_MT)}, 3')
I(f's_lshl_b32 {s(S_T3)}, {s(S_WAVE)}, 1')
I(f's_add_u32 {s(S_MB0)}, {s(S_MB0)}, {s(S_T3)}')
I(f's_mul_i32 {s(S_AO)}, {s(S_MB0)}, 20480')
if '--noA' in sys.argv:
    I(f's_mov_b32 {s(S_AO)}, {OOB // 2}')
for q in range(1, 10):
    I(f's_add_u32 {s(S_AO + q)}, {s(S_AO)}, {XN_T + 4096 * q}')
I(f'v_and_b32 {v(T)}, 15, {v(V_LANE)}')
I(f's_lshl_b32 {s(S_T3)}, {s(S_MT)}, {4 + FS}')
I(f's_add_u32 {s(S_T3)}, {s(S_T3)}, {LNF}')
I(f'v_lshl_add_u32 {v(V_PA)}, {v(T)}, {FS}, {s(S_T3)}')
I(f's_cmp_eq_u32 {s(S_TYPE)}, 0')
I(f's_cselect_b32 {s(S_T3)}, {2 << FS}, 0')
I(f's_cmp_eq_u32 {s(S_MT)}, 0')
I(f's_cselect_b32 {s(S_T3)}, 0, {s(S_T3)}')
I(f'v_subrev_u32 {v(T + 1)}, {s(S_T3)}, {v(V_PA)}')
I(f'v_lshrrev_b32 {v(T)}, 1, {v(V_LANE)}')
I(f'v_cmp_eq_u32 vcc, 8, {v(T)}')
I(f'v_cndmask_b32 {v(V_PA)}, {v(V_PA)}, {v(T + 1)}, vcc')
I(f's_mul_i32 {s(S_T3)}, {s(S_WAVE)}, 14')
I(f's_add_u32 {s(S_T4)}, {s(S_T3)}, 7')
I(f's_min_u32 {s(S_T4)}, {s(S_T4)}, 47')
I(f's_mul_i32 {s(S_T5)}, {s(S_NT)}, 5120')
I(f's_add_u32 {s(S_T5)}, {s(S_T5)}, {W_T + 20 * 40960}')
I(f's_mul_i32 {s(S_W2A)}, {s(S_T3)}, 40960')
I(f's_add_u32 {s(S_W2A)}, {s(S_W2A)}, {s(S_T5)}')
I(f's_mul_i32 {s(S_W2B)}, {s(S_T4)}, 40960')
I(f's_add_u32 {s(S_W2B)}, {s(S_W2B)}, {s(S_T5)}')
I(f's_lshr_b32 {s(S_T3)}, {s(S_M2)}, 1')
I(f's_lshl_b32 {s(S_T3)}, {s(S_T3)}, {4 + FS}')
I(f's_lshl_b32 {s(S_T4)}, {s(S_WAVE)}, {1 + FS}')
I(f's_add_u32 {s(S_T3)}, {s(S_T3)}, {s(S_T4)}')
I(f's_add_u32 {s(S_T3)}, {s(S_T3)}, {P1H + (8 << FS)}')
I(f'v_and_b32 {v(T)}, 1, {v(V_LANE)}')
I(f'v_lshl_add_u32 {v(V_PF)}, {v(T)}, {FS}, {s(S_T3)}')

I(f's_mov_b32 {s(54)}, {OOB}')
I(f's_cmp_lt_u32 {s(S_WAVE)}, 2')
I('s_cbranch_scc1 L_pro_join')

RT_A, RT_B, RT_K0, RT_SCR, VW_M0, VW_SO = 46, 47, 48, 49, 50, 52
I(f's_cmp_lt_u32 {s(S_T1)}, 20')
csel(RT_A, 8 * 1280, 4 * 1280)
csel(RT_B, 4 * 1280, 16 * 1280)
I(f's_cselect_b32 {s(RT_K0)}, 0, 20')
I(f's_sub_u32 {s(RT_K0)}, {s(S_T1)}, {s(RT_K0)}')
I(f's_mul_i32 {s(RT_K0)}, {s(RT_K0)}, {32 * 1280}')
I(f's_lshl_b32 {s(S_T3)}, {s(S_T2)}, 8')
I(f's_add_u32 {s(RT_K0)}, {s(RT_K0)}, {s(S_T3)}')
I(f's_and_b32 {s(S_T3)}, {s(S_WAVE)}, 1')
I(f's_mul_i32 {s(VW_M0)}, {s(S_T3)}, {8 * RROW}')
I(f's_add_u32 {s(RT_SCR)}, {s(VW_M0)}, {7 * SLOT}')
I(f's_add_u32 {s(VW_M0 + 1)}, {s(VW_M0)}, {4 * RROW}')
I(f's_lshl_b32 {s(S_T4)}, {s(S_PITCH)}, 4')
I(f's_mul_i32 {s(VW_SO)}, {s(S_T3)}, {s(S_T4)}')
I(f's_lshl_b32 {s(S_T4)}, {s(S_PITCH)}, 3')
I(f's_add_u32 {s(VW_SO + 1)}, {s(VW_SO)}, {s(S_T4)}')
RTV, RTL = T + 8, T + 9
I(f'v_lshrrev_b32 {v(RTV)}, 4, {v(V_LANE)}')
I(f'v_mul_u32_u24 {v(RTV)}, 1280, {v(RTV)}')
I(f'v_and_b32 {v(T)}, 15, {v(V_LANE)}')
I(f'v_lshl_add_u32 {v(RTV)}, {v(T)}, 4, {v(RTV)}')
I(f'v_lshlrev_b32 {v(RTL)}, 8, {v(LP)}')
I(f'v_and_b32 {v(T)}, 3, {v(V_LANE)}')
I(f'v_lshl_add_u32 {v(RTL)}, {v(T)}, 3, {v(RTL)}')
I(f'v_add_u32 {v(RTL)}, {s(RT_SCR)}, {v(RTL)}')
stamp(2, 2)
for t in range(0 if '--nort' in sys.argv else 8):
    hf_, g = t >> 2, t & 3
    I(f's_mul_i32 {s(S_T3)}, {s(RT_A)}, {g}')
    I(f's_add_u32 {s(S_T3)}, {s(S_T3)}, {s(RT_K0)}')
    if hf_:
        I(f's_add_u32 {s(S_T3)}, {s(S_T3)}, {s(RT_B)}')
    I(f's_add_u32 m0, {s(RT_SCR)}, {1024 * t}')
    I(f'buffer_load_dwordx4 {v(RTV)}, {s(SRD_RT, 4)}, {s(S_T3)} offen lds', tag='rt')
I(f's_mul_i32 {s(S_T3)}, {s(S_T1)}, 40960')
I(f's_lshl_b32 {s(S_T4)}, {s(S_T2)}, 13')
I(f's_add_u32 {s(S_T3)}, {s(S_T3)}, {s(S_T4)}')
I(f's_add_u32 {s(S_T3)}, {s(S_T3)}, {W_T}')
I(f's_cmp_lt_u32 {s(S_T1)}, 74')
I(f's_cselect_b32 {s(S_T3)}, {s(S_T3)}, {OOB}')
k.wait_vm_tag('pf')
GATE = opt('gate', 1)
if GATE:
    I(f'v_mov_b32 {v(T + 1)}, {CNT}')
    k.label('L_gate')
    I(f'ds_read_b32 {v(T)}, {v(T + 1)} offset:{0 if GATE == 1 else 8}')
    I(f'v_readfirstlane_b32 {s(S_T4)}, {v(T)}')
    I(f's_cmp_ge_u32 {s(S_T4)}, 2')
    I('s_cbranch_scc0 L_gate')
stamp(3, 2)
for sl in range(NPRE):
    for h in range(2):
        I(f's_add_u32 m0, {s(VW_M0 + h)}, {sl * SLOT}')
        for j in range(4):
            dma1(j, VW_SO + h, ('ring', sl))
        I(f's_add_u32 {s(VW_SO + h)}, {s(VW_SO + h)}, {s(S_KSTR)}')
    if sl >= 1:
        k.wait_vm_tag(('ring', sl - 1))
    if sl == 1:
        stamp(4, 2)
        RF = ACC
        for nb in range(8):
            I(f'ds_read_b64_tr_b16 {v(RF + 4 * nb, 2)}, {v(RTL)} offset:{32 * nb}')
            I(f'ds_read_b64_tr_b16 {v(RF + 4 * nb + 2, 2)}, {v(RTL)} offset:{32 * nb + 4096}')
RTLATE = opt('rtlate', 0)
RT_DST = 54


def rt_stores():
    for nb in range(8):
        I(f'buffer_store_dwordx4 {v(RF + 4 * nb, 4)}, {v(V_L16 if nb < 4 else V_L16B)}, {s(SRD_WS, 4)}, {s(RT_DST)} offen offset:{1024 * (nb & 3)} sc1', tag='rts')


I(f's_mov_b32 {s(RT_DST)}, {s(S_T3)}')
if not RTLATE:
    rt_stores()
k.wait_vm_tag(('ring', NPRE - 1))
stamp(5, 2)
stamp(1)
k.wait_all(vm=False, lg=True)

k.label('L_pro_join')
k.vmq = [(regs_of(v(BIAS, 2)), 'pf')]
k.lgq = []
I('s_nop 4')
I(f's_mul_i32 {s(S_WOB)}, {s(S_WAVE)}, 40960')
I(f's_mul_i32 {s(S_T3)}, {s(S_NT)}, 5120')
I(f's_add_u32 {s(S_WOB)}, {s(S_WOB)}, {s(S_T3)}')
I(f's_add_u32 {s(S_WOB)}, {s(S_WOB)}, {W_T}')
I(f's_mul_i32 {s(S_WOM)}, {s(S_WAVE)}, {5 * 1024}')
if '--noW' in sys.argv:
    for r_ in (S_W2A, S_W2B, S_WOB):
        I(f's_mov_b32 {s(r_)}, {OOB // 2}')
I(f's_cmp_eq_u32 {s(S_WAVE)}, 3')
I(f's_cselect_b32 {s(S_LAST)}, {OOB}, 0')
I(f's_cmp_eq_u32 {s(S_TYPE)}, 1')
I('s_cbranch_scc1 L_ffn')
st_join = k.state()


def ln_wait():
    lab = k.newlabel('L_lnw')
    I(f's_cmp_eq_u32 {s(S_WAVE)}, 0')
    I(f's_cbranch_scc0 {lab}')
    st_ = k.state()
    stamp(6, 2)
    poll(V_PA, 'ln')
    k.label(lab)
    k.set_state(st_)
    k.wait_all(vm=False, lg=True)
    stamp(7, 2)
    I('s_barrier')
    stamp(8, 2)


def wt_flag():
    I(f's_lshl_b32 {s(S_T3)}, {s(S_WG)}, {FS}')
    I(f's_add_u32 {s(S_T3)}, {s(S_T3)}, {WTF}')
    I(f's_cmp_eq_u32 {s(S_WAVE)}, 1')
    I(f's_cselect_b32 {s(S_T3)}, {s(S_T3)}, {OOB}')
    I(f'v_mov_b32 {v(T)}, {s(S_TAG)}')
    I(f'v_lshlrev_b32 {v(T + 1)}, 24, {v(V_LANE)}')
    I(f'buffer_store_dword {v(T)}, {v(T + 1)}, {s(SRD_WS, 4)}, {s(S_T3)} offen sc1')


def tag_fetch():
    I(f'v_mov_b32 {v(T + 1)}, {CNT}')
    I(f'ds_read_b32 {v(T)}, {v(T + 1)} offset:4')
    I(f'v_readfirstlane_b32 {s(S_TAG)}, {v(T)}')


AWN = 6


def areg_att(ks, rb):
    return a((28 + (ks % AWN) * 2 + rb) * 4, 4)


def areg_ffn(ks, rb):
    return a((ks * 2 + rb) * 4, 4)


def load_A(areg, ks, rb):
    I(f'buffer_load_dwordx4 {areg(ks, rb)}, {v(V_AO)}, {s(SRD_WS, 4)}, {s(S_AO + rb * 5 + ks // 4)} offen offset:{(ks & 3) * 1024} sc1')


def pre_loads():
    for ks in range(4):
        if ks >= NPRE:
            I(f's_add_u32 m0, {s(S_M0B)}, {ks * SLOT}')
            for j in range(4):
                dma1(j, S_SOFF, ('dma', ks))
            I(f's_add_u32 {s(S_SOFF)}, {s(S_SOFF)}, {s(S_KSTR)}')
        for rb in range(2):
            load_A(areg_att, ks, rb)


W2ORDER = list(range(40, 64)) + list(range(28))
NW2E = len(W2ORDER)
YSTEP = [(0, p) for p in range(4)] + [(1, p) for p in range(4)] + [(0, p) for p in range(4, 7)] + [(1, p) for p in range(4, 7)]


def w2reg(st, nb):
    f = st * 5 + nb
    return a(4 * W2ORDER[f % NW2E], 4)


def w2load(f):
    st, nb = divmod(f, 5)
    ab, p = YSTEP[st]
    sb = S_W2B if ab else S_W2A
    if (ab, p) == (0, 5) and nb == 0:
        I(f's_add_u32 {s(sb)}, {s(sb)}, {s(S_LAST)}')
    I(f'buffer_load_dwordx4 {w2reg(st, nb)}, {v(V_L16 if nb < 4 else V_L16B)}, {s(SRD_WS, 4)}, {s(sb)} offen offset:{(nb & 3) * 1024} sc1')
    if nb == 4:
        I(f's_add_u32 {s(sb)}, {s(sb)}, 40960')


def wodma(i, nb):
    if nb == 0:
        I(f's_add_u32 {s(S_T5)}, {s(S_WOB)}, {i * 4 * 40960}')
    if nb == 0 or nb == 4:
        I(f's_add_u32 m0, {s(S_WOM)}, {LDS_WO + (i * 20 + (4 if nb == 4 else 0)) * 1024}')
    I(f'buffer_load_dwordx4 {v(V_L16 if nb < 4 else V_L16B)}, {s(SRD_WS, 4)}, {s(S_T5)} offen offset:{(nb & 3) * 1024} sc1 lds')


def cost(e):
    if e[0].startswith(('buffer_', 'global_', 'v_pk_') + TRANS):
        return 8
    return 4


def mainloop(steps, areg, aloads, first_c_zero, w2plan, dma_pre, extra_fill, at_sync):
    LA = 7
    halo = any(it[1] >= 100 for it in steps[0])
    items = [(t_, pos) + it for t_ in range(20) for pos, it in enumerate(steps[t_])]
    N = len(items)
    aux = [[] for _ in range(20)]
    for t_ in range(20):
        kn = t_ + 4
        al = [lambda kk=kk, rb=rb: load_A(areg, kk, rb) for kk in aloads[t_] for rb in range(2)]
        dm = []
        if NPRE <= kn < 20:
            for j in range(4):
                def f(j=j, kn=kn):
                    if j == 0:
                        dma_pre(kn)
                        I(f's_add_u32 m0, {s(S_M0B)}, {(kn % NSLOT) * SLOT}')
                    dma1(j, S_SOFF, ('dma', kn))
                    if j == 3:
                        I(f's_add_u32 {s(S_SOFF)}, {s(S_SOFF)}, {s(S_KSTR)}')
                dm.append(f)
        h_ = len(al) // 2
        aux[t_] = al[:h_] + dm[:2] + al[h_:] + dm[2:]
    WTK = opt('wtk', 10)
    assert WTK % 2 == 0
    aux[WTK - 3].append(lambda: chk_issue(V_PA, 4))
    WFK = opt('wfk', 4) if RTLATE else 2
    aux[WFK].insert(0, wt_flag)
    aux[0].append(lambda: I(f'buffer_load_dword {v(T + 3)}, {v(PFL)}, {s(SRD_B, 4)}, 0 offen'))

    def pf2b():
        I(f's_lshl_b32 {s(S_T3)}, {s(S_PITCH)}, 8')
        I(f'buffer_load_dword {v(T + 2)}, {v(PFL)}, {s(SRD_B, 4)}, {s(S_T3)} offen')
    aux[1].append(pf2b)
    f = 0
    for t_ in range(WTK, 20):
        for _ in range(w2plan(t_, f)):
            if f < NW2E:
                aux[t_].append(lambda f=f: w2load(f))
                f += 1
    w2done = f
    fill = []
    for t_ in range(20):
        mem = [e for fn in aux[t_] for e in k.record(fn)]
        oth = extra_fill(t_)
        mix, i, j = [], 0, 0
        while i < len(mem) or j < len(oth):
            if j >= len(oth) or (i < len(mem) and i * len(oth) <= j * len(mem)):
                mix.append(mem[i])
                i += 1
            else:
                mix.append(oth[j])
                j += 1
        fill.append(mix)

    def rd(n):
        t_, pos, ks, blk, off = items[n]
        sl = t_ % NSLOT
        w = WIN + 4 * (n % 8)
        if blk < 100:
            base = V_TR0 if sl < 4 else V_TR1
        else:
            base = V_TRH0 if sl < 4 else V_TRH1
        o = (sl % 4) * SLOT + off
        I(f'ds_read_b64_tr_b16 {v(w, 2)}, {v(base)} offset:{o}')
        I(f'ds_read_b64_tr_b16 {v(w + 2, 2)}, {v(base)} offset:{o + 512}')

    def sync(t_):
        if t_ + 1 >= NPRE:
            assert ('dma', t_ + 1) in k.seen_tags
            k.wait_vm_tag(('dma', t_ + 1))
        if t_ == WFK:
            k.wait_vm_tag('rts')
        if t_ == WTK:
            lab = k.newlabel('L_wtw')
            k._need(regs_of(v(P4, 4)))
            I(f's_cmp_eq_u32 {s(S_WAVE)}, 0')
            I(f's_cbranch_scc0 {lab}')
            poll(V_PA, 'wt', 4, preissued=True, sleep=8)
            k.label(lab)
        at_sync(t_, 0)
        I('s_barrier')
        at_sync(t_, 1)

    def hxread(ks):
        I(f'ds_read_b128 {v(HX + 4 * (ks & 1), 4)}, {v(V_X)} offset:{ks * 1024}')

    k.seen_tags = {('dma', 3)}
    if halo:
        hxread(0)
        for ks in range(19):
            fill[ks] = fill[ks][:2] + k.record(lambda: hxread(ks + 1)) + fill[ks][2:]
    for n in range(LA):
        rd(n)
    I(f's_cmp_eq_u32 {s(S_WAVE)}, 0')
    csel(S_T3, WTF, OOB)
    I(f'v_lshl_add_u32 {v(V_PA)}, {v(V_LANE)}, {FS}, {s(S_T3)}')
    waited = -1
    prev_halo = False
    seen_blk = set()
    for n in range(N):
        t_, pos, ks, blk, off = items[n]
        NF = len(steps[t_])
        w = WIN + 4 * (n % 8)
        if pos == 0:
            q = list(fill[t_])
            ngaps = sum(1 for it in steps[t_] if it[1] < 100)
            tot = sum(cost(e) for e in q) + 4 * (NF // 2 + 1)
            budget = max(8, -(-tot // ngaps))
            budget2 = 0
            if budget > 12:
                budget = -(-(tot + 8 * ngaps) // (2 * ngaps))
                budget2 = budget - 8
            if t_ in (0, 1, 2, 4, 8, 12, 16, 18):
                stamp(1 + (0, 1, 2, 4, 8, 12, 16, 18).index(t_), 1)
        used = 8 if prev_halo else 0
        if n + LA < N and items[n + LA][1] == 0 and items[n + LA][0] >= 2 and items[n + LA][0] % 2 == 0:
            sync(items[n + LA][0])
            used += 8
        if waited < n:
            need = regs_of(v(w, 4))
            waited = n
            for m in (n + 1, n + 2):
                if m < N and (m == n + 1 or items[m - 1][3] >= 100):
                    need |= regs_of(v(WIN + 4 * (m % 8), 4))
                    waited = m
            for m in range(n, waited + 1):
                kk, bb = items[m][2], items[m][3]
                need |= (regs_of(areg(kk, 0)) | regs_of(areg(kk, 1))) if bb < 100 else regs_of(v(HX + 4 * (kk & 1), 4))
            k._need(need)
            used += 4
        while q and (used + cost(q[0]) <= budget + 2 or pos == NF - 1):
            used += cost(q[0])
            k.play(q.pop(0))
        first = blk not in seen_blk
        seen_blk.add(blk)
        if blk < 100:
            for rb in range(2):
                d = ACC + (blk * 2 + rb) * 4
                c_ = '0' if (first and first_c_zero) else v(d, 4)
                I(f'v_mfma_f32_16x16x32_bf16 {v(d, 4)}, {v(w, 4)}, {areg(ks, rb)}, {c_}')
                if rb == 0:
                    u2 = 0
                    if n + LA < N:
                        rd(n + LA)
                    else:
                        u2 = -8
                    while q and u2 + cost(q[0]) <= budget2 + 2:
                        u2 += cost(q[0])
                        k.play(q.pop(0))
        else:
            d = HACC + (blk - 100) * 4
            c_ = '0' if first else v(d, 4)
            I(f'v_mfma_f32_16x16x32_bf16 {v(d, 4)}, {v(w, 4)}, {v(HX + 4 * (ks & 1), 4)}, {c_}')
            if n + LA < N:
                rd(n + LA)
        prev_halo = blk >= 100
    return w2done


YACC = 16
SACC = 96
HW = 116
HWN = 5
XIN = 196
B2V = 206
T2 = 216
S_HO = 24
S_EARLY = 19
V_HE = V_TR0


def h_scalars():
    I(f's_mul_i32 {s(S_T3)}, {s(S_M2)}, {4 * ACT_MB}')
    I(f's_add_u32 {s(S_T3)}, {s(S_T3)}, {ACT_T + 20 * 1024}')
    I(f's_mul_i32 {s(S_T4)}, {s(S_WAVE)}, 14')
    I(f's_add_u32 {s(S_T5)}, {s(S_T4)}, 7')
    I(f's_min_u32 {s(S_T5)}, {s(S_T5)}, 47')
    for ab, r in ((0, S_T4), (1, S_T5)):
        I(f's_lshl_b32 {s(r)}, {s(r)}, 10')
        I(f's_add_u32 {s(S_HO + 4 * ab)}, {s(S_T3)}, {s(r)}')
        for mb in range(1, 4):
            I(f's_add_u32 {s(S_HO + 4 * ab + mb)}, {s(S_HO + 4 * ab)}, {mb * ACT_MB}')


def hreg(st, mb):
    if st < 3:
        return a((28 + 4 * st + mb) * 4, 4)
    if st == 3:
        return v(W2V + 4 * mb, 4)
    return v(HW + 16 * ((st - 4) % HWN) + 4 * mb, 4)


def hload(st, mb, early=False):
    ab, p = YSTEP[st]
    so = S_HO + 4 * ab + mb
    if (ab, p) == (0, 5):
        I(f's_add_u32 {s(so)}, {s(so)}, {s(S_LAST)}')
    va = V_HE if early else (V_L16 if p < 4 else V_L16B)
    I(f'buffer_load_dwordx4 {hreg(st, mb)}, {v(va)}, {s(SRD_WS, 4)}, {s(so)} offen offset:{(p & 3) * 1024} sc1')


def early_eval():
    chk_eval()
    I(f's_cmp_eq_u64 vcc, 0')
    I(f's_cselect_b32 {s(S_EARLY)}, 1, 0')
    I(f's_cselect_b32 {s(S_T0)}, 0, {OOB}')
    I(f'v_add_u32 {v(V_HE)}, {s(S_T0)}, {v(V_L16)}')


def p1_flag():
    k.wait_all(vm=False, lg=True)
    I('s_barrier')
    lab = k.newlabel('L_np')
    I(f's_cmp_eq_u32 {s(S_WAVE)}, 0')
    I(f's_cbranch_scc0 {lab}')
    flag_store(P1F, S_FOFF, T2)
    k.label(lab)


I(f's_lshl_b32 {s(S_T3)}, {s(S_MT)}, 3')
I(f's_sub_u32 {s(S_T3)}, {s(S_T3)}, 1')
I(f's_mul_i32 {s(S_T3)}, {s(S_T3)}, 20480')
I(f's_mul_i32 {s(S_T4)}, {s(S_WAVE)}, 5120')
I(f's_add_u32 {s(S_T3)}, {s(S_T3)}, {s(S_T4)}')
I(f's_cmp_eq_u32 {s(S_MT)}, 0')
I(f's_cselect_b32 {s(S_T5)}, {OOB}, {s(S_T3)}')
I(f'v_add_u32 {v(T + 2)}, {s(S_T4)}, {v(V_X)}')
SA = T + 28
SH = T + 33
tm, tg, tn, tq = T + 4, T + 5, T + 6, T + 7
I(f'v_and_b32 {v(tm)}, 15, {v(V_LANE)}')
I(f'v_lshrrev_b32 {v(tg)}, 4, {v(V_LANE)}')
I(f's_lshl_b32 {s(S_T3)}, {s(S_WAVE)}, 5')
I(f's_add_u32 {s(S_T3)}, {s(S_T3)}, 16')
I(f'v_add_u32 {v(tq)}, {s(S_T3)}, {v(tm)}')
I(f'v_mul_u32_u24 {v(tq)}, {RS}, {v(tq)}')
for cb in range(5):
    I(f'v_lshl_add_u32 {v(tn)}, {v(tg)}, 2, {16 * cb}')
    I(f'v_mul_u32_u24 {v(SA + cb)}, 205, {v(tn)}')
    I(f'v_lshrrev_b32 {v(SA + cb)}, 12, {v(SA + cb)}')
    I(f'v_lshl_add_u32 {v(SA + cb)}, {v(SA + cb)}, 2, {v(tn)}')
    I(f'v_lshl_add_u32 {v(SA + cb)}, {v(SA + cb)}, 1, {v(tq)}')
assert all((n * 205) >> 12 == n // 20 for n in range(0, 240, 4))
I(f'v_mul_u32_u24 {v(tq)}, {RS}, {v(tm)}')
for j in range(3):
    I(f's_add_u32 {s(S_T3)}, {s(S_HB)}, {j}')
    I(f's_lshl_b32 {s(S_T3)}, {s(S_T3)}, 4')
    I(f'v_lshl_add_u32 {v(tn)}, {v(tg)}, 2, {s(S_T3)}')
    I(f'v_mul_u32_u24 {v(SH + j)}, 205, {v(tn)}')
    I(f'v_lshrrev_b32 {v(SH + j)}, 12, {v(SH + j)}')
    I(f'v_lshl_add_u32 {v(SH + j)}, {v(SH + j)}, 2, {v(tn)}')
    I(f'v_lshl_add_u32 {v(SH + j)}, {v(SH + j)}, 1, {v(tq)}')
I(f's_mov_b32 {s(S_T2)}, {s(S_T5)}')
h_scalars()
ln_wait()
stamp(2)
for i in range(5):
    I(f'buffer_load_dwordx4 {v(T + 8 + 4 * i, 4)}, {v(V_AO if i < 4 else V_AO + 1)}, {s(SRD_WS, 4)}, {s(S_T2)} offen offset:{(i & 3) * 1024} sc1')
pre_loads()
if RTLATE:
    rt_stores()
tag_fetch()
for i in range(5):
    I(f'ds_write_b128 {v(T + 2)}, {v(T + 8 + 4 * i, 4)} offset:{i * 1024}')
k.wait_all(vm=False, lg=True)
I('s_barrier')
stamp(3)
att_order = [0, 1, 2, 3, 4, 100, 5, 6, 7, 8, 9, 101, 10, 11, 12, 13, 102, 14]
w2done = mainloop([[(ks, b, 32 * (b % 100)) for b in att_order] for ks in range(20)], areg_att,
                  [[ks + 4] if ks + 4 < 20 else [] for ks in range(20)], True,
                  lambda t_, f: opt('ra0', 2) if t_ < 16 else opt('ra1', 10), lambda kn: None,
                  lambda t_: [], lambda t_, ph: None)
stamp(4)
stamp(1, 4)
w2rest = [lambda f=f: w2load(f) for f in range(w2done, NW2E)]
w2rest += [lambda i=i, nb=nb: wodma(i, nb) for i in (2, 3, 4) for nb in range(5)]
VA, VB, VO, K2M0, K2M1, NEG = T, T + 1, T + 2, T + 3, 224, 225
t1, t2, t3 = T + 4, T + 5, T + 6
I(f's_mul_i32 {s(S_T3)}, {s(S_WAVE)}, 48')
I(f'v_and_b32 {v(t1)}, 0x38, {v(V_LANE)}')
I(f'v_bfe_u32 {v(t2)}, {v(V_LANE)}, 2, 1')
I(f'v_add_u32 {v(t1)}, {v(t1)}, {v(t2)}')
I(f'v_and_b32 {v(t2)}, 3, {v(V_LANE)}')
I(f'v_lshl_add_u32 {v(t1)}, {v(t2)}, 1, {v(t1)}')
I(f'v_mul_u32_u24 {v(VA)}, {RS}, {v(t1)}')
I(f'v_add_u32 {v(VA)}, {s(S_T3)}, {v(VA)}')
I('s_barrier')
PK = T + 8
n = 0
for cbg in list(range(5, 15)) + list(range(5)):
    sec, cb = divmod(cbg, 5)
    for rb in range(2):
        d = ACC + (cbg * 2 + rb) * 4
        p = PK + 2 * (n % 4)
        n += 1
        I(f'v_cvt_pk_bf16_f32 {v(p)}, {v(d)}, {v(d + 1)}')
        I(f'v_cvt_pk_bf16_f32 {v(p + 1)}, {v(d + 2)}, {v(d + 3)}')
        I(f'ds_write_b64 {v(SA + cb)}, {v(p, 2)} offset:{sec * 192 + rb * 16 * RS}')
        if w2rest and n % 2 == 0:
            w2rest.pop(0)()
for j in range(3):
    d = HACC + 4 * j
    p = PK + 2 * (n % 4)
    n += 1
    I(f'v_cvt_pk_bf16_f32 {v(p)}, {v(d)}, {v(d + 1)}')
    I(f'v_cvt_pk_bf16_f32 {v(p + 1)}, {v(d + 2)}, {v(d + 3)}')
    I(f'ds_write_b64 {v(SH + j)}, {v(p, 2)}')
I(f'v_and_b32 {v(VB)}, 0x30, {v(V_LANE)}')
I(f'v_bfe_u32 {v(t3)}, {v(V_LANE)}, 1, 1')
I(f'v_lshl_add_u32 {v(VB)}, {v(t3)}, 3, {v(VB)}')
I(f'v_and_b32 {v(t3)}, 1, {v(V_LANE)}')
I(f'v_add_u32 {v(VB)}, {v(VB)}, {v(t3)}')
I(f'v_bfe_u32 {v(t3)}, {v(V_LANE)}, 2, 2')
I(f'v_lshl_add_u32 {v(VB)}, {v(t3)}, 1, {v(VB)}')
I(f'v_mul_u32_u24 {v(VB)}, {RS}, {v(VB)}')
I(f'v_add_u32 {v(VB)}, {s(S_T3)}, {v(VB)}')
stamp(2, 4)
k.wait_all(vm=False, lg=True)
I('s_barrier')
stamp(3, 4)

TASKR = [16, 102]
for hf_ in range(2):
    R = TASKR[hf_]
    Q, Kr, Vr = R, R + 12, R + 48
    hb = hf_ * 64 * RS
    I(f'ds_read_b128 {v(Q, 4)}, {v(VA)} offset:{hb + 16 * RS}')
    I(f'ds_read_b128 {v(Q + 4, 4)}, {v(VA)} offset:{hb + 16 * RS + 16}')
    I(f'ds_read_b64 {v(Q + 8, 2)}, {v(VA)} offset:{hb + 16 * RS + 32}')
    for kg in range(3):
        o = hb + kg * 8 * RS + 192
        I(f'ds_read_b128 {v(Kr + 12 * kg, 4)}, {v(VA)} offset:{o}')
        I(f'ds_read_b128 {v(Kr + 12 * kg + 4, 4)}, {v(VA)} offset:{o + 16}')
        I(f'ds_read_b64 {v(Kr + 12 * kg + 8, 2)}, {v(VA)} offset:{o + 32}')
I(f'v_lshrrev_b32 {v(t3)}, 4, {v(t1)}')
I(f'v_mul_u32_u24 {v(VO)}, {ACT_MB}, {v(t3)}')
I(f'v_and_b32 {v(t3)}, 15, {v(t1)}')
I(f'v_lshl_add_u32 {v(VO)}, {v(t3)}, 4, {v(VO)}')
M1, M2, M3, INV1, INV01, INV02, INV03, SC_HI, SC_SCALE, SC_L2E, S_OB = 36, 38, 40, 42, 44, 46, 48, 50, 52, 54, 35
for reg, pat in ((M1, 0xeeeeeeee), (M2, 0xcccccccc), (M3, 0x88888888)):
    I(f's_mov_b32 {s(reg)}, {hex(pat)}')
    I(f's_mov_b32 {s(reg + 1)}, {hex(pat)}')
I(f'v_mov_b32 {v(t3)}, 0xffff')
I(f'v_cndmask_b32 {v(K2M0)}, {v(t3)}, -1, {s(M1, 2)}')
I(f'v_cndmask_b32 {v(K2M1)}, 0, {v(t3)}, {s(M2, 2)}')
I(f'v_cndmask_b32 {v(K2M1)}, {v(K2M1)}, -1, {s(M3, 2)}')
I(f'v_mov_b32 {v(NEG)}, {f32(-1e9)}')
I(f's_cmp_eq_u32 {s(S_MT)}, 0')
I(f's_cselect_b32 {s(INV1)}, 0xff, 0')
I(f's_cselect_b32 {s(INV01)}, 0x1111, 0')
I(f's_cselect_b32 {s(INV02)}, 0x3333, 0')
I(f's_cselect_b32 {s(INV03)}, 0x7777, 0')
for reg in (INV1, INV01, INV02, INV03):
    I(f's_mov_b32 {s(reg + 1)}, 0')
I(f's_mov_b32 {s(SC_HI)}, 0xffff0000')
I(f's_mov_b32 {s(SC_SCALE)}, {f32(20 ** -0.5)}')
I(f's_mov_b32 {s(SC_SCALE + 1)}, {f32(20 ** -0.5)}')
I(f's_mov_b32 {s(SC_L2E)}, {f32(1.4426950408889634)}')
I(f's_mov_b32 {s(SC_L2E + 1)}, {f32(1.4426950408889634)}')
SREG = [T + 4, T + 16]
for hf_ in range(2):
    R = TASKR[hf_]
    Q, Kr, Vr = R, R + 12, R + 48
    Sx = SREG[hf_]
    hb = hf_ * 64 * RS
    for dc in range(5):
        for kg in range(3):
            c_ = '0' if dc == 0 else v(Sx + 4 * kg, 4)
            I(f'v_mfma_f32_4x4x4_16b_bf16 {v(Sx + 4 * kg, 4)}, {v(Kr + 12 * kg + 2 * dc, 2)}, {v(Q + 2 * dc, 2)}, {c_}')
            I(f'ds_read_b64_tr_b16 {v(Vr + 2 * (kg * 5 + dc), 2)}, {v(VB)} offset:{hb + kg * 8 * RS + 384 + 8 * dc}')
            if kg == 2 and w2rest:
                w2rest.pop(0)()
stamp(4, 4)
I(f's_mul_i32 {s(S_OB)}, {s(S_MT)}, {8 * ACT_MB}')
I(f's_add_u32 {s(S_OB)}, {s(S_OB)}, {ACT_T}')
I(f's_mul_i32 {s(S_T3)}, {s(S_IDX)}, 2560')
I(f's_add_u32 {s(S_OB)}, {s(S_OB)}, {s(S_T3)}')
I(f's_lshr_b32 {s(S_T3)}, {s(S_WAVE)}, 1')
I(f's_mul_i32 {s(S_T3)}, {s(S_T3)}, 1280')
I(f's_add_u32 {s(S_OB)}, {s(S_OB)}, {s(S_T3)}')
I(f's_add_u32 {s(S_T4)}, {s(S_OB)}, {4 * ACT_MB}')
for hf_ in range(2):
    R = TASKR[hf_]
    Q, Kr, Vr = R, R + 12, R + 48
    Sx = SREG[hf_]
    Lg = Sx + 4
    if hf_ == opt('chkhf', 0):
        while w2rest:
            w2rest.pop(0)()
        chk_issue(V_PF)
    for r, M in ((1, M1), (2, M2), (3, M3)):
        I(f'v_cndmask_b32 {v(Sx + 8 + r)}, {v(Sx + r)}, {v(Sx + 8 + r)}, {s(M, 2)}')
    P = Sx
    for i in range(4):
        I(f'v_cvt_pk_bf16_f32 {v(P + i)}, {v(Lg + 2 * i)}, {v(Lg + 2 * i + 1)}')
    for i in range(4):
        I(f'v_lshlrev_b32 {v(Lg + 2 * i)}, 16, {v(P + i)}')
        I(f'v_and_b32 {v(Lg + 2 * i + 1)}, {s(SC_HI)}, {v(P + i)}')
    for i in range(4):
        I(f'v_pk_mul_f32 {v(Lg + 2 * i, 2)}, {v(Lg + 2 * i, 2)}, {s(SC_SCALE, 2)}')
    if w2rest:
        w2rest.pop(0)()
    for i in range(4):
        I(f'v_cvt_pk_bf16_f32 {v(P + i)}, {v(Lg + 2 * i)}, {v(Lg + 2 * i + 1)}')
    for i in range(4):
        I(f'v_lshlrev_b32 {v(Lg + 2 * i)}, 16, {v(P + i)}')
        I(f'v_and_b32 {v(Lg + 2 * i + 1)}, {s(SC_HI)}, {v(P + i)}')
    if w2rest:
        w2rest.pop(0)()
    if hf_ == 0:
        for r in range(4):
            I(f'v_cndmask_b32 {v(Lg + r)}, {v(Lg + r)}, {v(NEG)}, {s(INV1, 2)}')
        for r, M in ((1, INV01), (2, INV02), (3, INV03)):
            I(f'v_cndmask_b32 {v(Lg + 4 + r)}, {v(Lg + 4 + r)}, {v(NEG)}, {s(M, 2)}')
    mx = P
    I(f'v_max3_f32 {v(mx)}, {v(Lg)}, {v(Lg + 1)}, {v(Lg + 2)}')
    I(f'v_max3_f32 {v(mx + 1)}, {v(Lg + 3)}, {v(Lg + 4)}, {v(Lg + 5)}')
    I(f'v_max3_f32 {v(mx)}, {v(mx)}, {v(Lg + 6)}, {v(Lg + 7)}')
    I(f'v_max_f32 {v(mx)}, {v(mx)}, {v(mx + 1)}')
    I(f'v_mov_b32 {v(mx + 1)}, {v(mx)}')
    for i in range(4):
        I(f'v_pk_add_f32 {v(Lg + 2 * i, 2)}, {v(Lg + 2 * i, 2)}, {v(mx, 2)} neg_lo:[0,1] neg_hi:[0,1]')
    for i in range(4):
        I(f'v_pk_mul_f32 {v(Lg + 2 * i, 2)}, {v(Lg + 2 * i, 2)}, {s(SC_L2E, 2)}')
    if w2rest:
        w2rest.pop(0)()
    for i in range(8):
        I(f'v_exp_f32 {v(Lg + i)}, {v(Lg + i)}')
    I(f'v_pk_add_f32 {v(P, 2)}, {v(Lg, 2)}, {v(Lg + 2, 2)}')
    I(f'v_pk_add_f32 {v(P + 2, 2)}, {v(Lg + 4, 2)}, {v(Lg + 6, 2)}')
    I(f'v_pk_add_f32 {v(P, 2)}, {v(P, 2)}, {v(P + 2, 2)}')
    I(f'v_add_f32 {v(P)}, {v(P)}, {v(P + 1)}')
    I(f'v_rcp_f32 {v(P)}, {v(P)}')
    if w2rest:
        w2rest.pop(0)()
    I(f'v_mov_b32 {v(P + 1)}, {v(P)}')
    for i in range(4):
        I(f'v_pk_mul_f32 {v(Lg + 2 * i, 2)}, {v(Lg + 2 * i, 2)}, {v(P, 2)}')
    PB = Kr
    if hf_ == 1:
        early_eval()
    I(f'v_cvt_pk_bf16_f32 {v(PB + 2)}, {v(Lg)}, {v(Lg + 1)}')
    I(f'v_cvt_pk_bf16_f32 {v(PB + 3)}, {v(Lg + 2)}, {v(Lg + 3)}')
    I(f'v_cvt_pk_bf16_f32 {v(PB)}, {v(Lg + 4)}, {v(Lg + 5)}')
    I(f'v_cvt_pk_bf16_f32 {v(PB + 1)}, {v(Lg + 6)}, {v(Lg + 7)}')
    I(f'v_and_b32 {v(PB + 4)}, {v(PB)}, {v(K2M0)}')
    I(f'v_and_b32 {v(PB + 5)}, {v(PB + 1)}, {v(K2M1)}')
    I(f'v_xor_b32 {v(PB)}, {v(PB)}, {v(PB + 4)}')
    I(f'v_xor_b32 {v(PB + 1)}, {v(PB + 1)}, {v(PB + 5)}')
    O = Kr + 8
    for kg in (1, 2, 0):
        for dc in range(5):
            c_ = '0' if kg == 1 else v(O + 4 * dc, 4)
            I(f'v_mfma_f32_4x4x4_16b_bf16 {v(O + 4 * dc, 4)}, {v(Vr + 2 * (kg * 5 + dc), 2)}, {v(PB + 2 * kg, 2)}, {c_}')
stamp(5, 4)
for hf_ in range(2):
    R = TASKR[hf_]
    O = R + 12 + 8
    for i in range(10):
        I(f'v_cvt_pk_bf16_f32 {v(R + i)}, {v(O + 2 * i)}, {v(O + 2 * i + 1)}')
lodd, ldone = k.newlabel('L_oodd'), k.newlabel('L_odone')
I(f's_bitcmp1_b32 {s(S_WAVE)}, 0')
I(f's_cbranch_scc1 {lodd}')
sto = k.state()
for hf_ in range(2):
    OP = TASKR[hf_]
    so = s(S_OB if hf_ == 0 else S_T4)
    I(f'buffer_store_dwordx4 {v(OP, 4)}, {v(VO)}, {s(SRD_WS, 4)}, {so} offen sc1')
    I(f'buffer_store_dwordx4 {v(OP + 4, 4)}, {v(VO)}, {s(SRD_WS, 4)}, {so} offen offset:256 sc1')
    I(f'buffer_store_dwordx2 {v(OP + 8, 2)}, {v(VO)}, {s(SRD_WS, 4)}, {so} offen offset:512 sc1')
I(f's_branch {ldone}')
k.set_state(sto)
k.label(lodd)
for hf_ in range(2):
    OP = TASKR[hf_]
    so = s(S_OB if hf_ == 0 else S_T4)
    I(f'buffer_store_dwordx2 {v(OP, 2)}, {v(VO)}, {s(SRD_WS, 4)}, {so} offen offset:520 sc1')
    I(f'buffer_store_dwordx4 {v(OP + 2, 4)}, {v(VO)}, {s(SRD_WS, 4)}, {so} offen offset:768 sc1')
    I(f'buffer_store_dwordx4 {v(OP + 6, 4)}, {v(VO)}, {s(SRD_WS, 4)}, {so} offen offset:1024 sc1')
k.label(ldone)
stamp(5)
I('s_branch L_phase2')

k.set_state(st_join)
k.label('L_ffn')
h_scalars()
ln_wait()
stamp(2)
pre_loads()
if RTLATE:
    rt_stores()
tag_fetch()
I(f's_lshl_b32 {s(S_T3)}, {s(S_WAVE)}, 9')
I(f's_add_u32 {s(S_T3)}, {s(S_T3)}, {HALO}')
I(f'v_lshl_add_u32 {v(T)}, {v(V_LANE)}, 3, {s(S_T3)}')
I(f'ds_write_b64 {v(T)}, {v(BIAS, 2)}')
I(f'v_lshrrev_b32 {v(T)}, 4, {v(V_LANE)}')
I(f'v_lshl_add_u32 {v(T)}, {v(T)}, 3, {s(S_T3)}')
for cb in range(14):
    I(f'ds_read_b64 {v(T + 8 + 2 * cb, 2)}, {v(T)} offset:{32 * cb}')
I(f's_mov_b32 {s(S_T4)}, 0xffff0000')
for cb in range(14):
    for rb in range(2):
        d = ACC + (cb * 2 + rb) * 4
        for h in range(2):
            I(f'v_lshlrev_b32 {v(d + 2 * h)}, 16, {v(T + 8 + 2 * cb + h)}')
            I(f'v_and_b32 {v(d + 2 * h + 1)}, {s(S_T4)}, {v(T + 8 + 2 * cb + h)}')
C0 = -2.0 * 0.7978845608028654 * 1.4426950408889634
C1 = C0 * 0.044715
GC0 = 128
GS1, S_HB2 = 46, 48
I(f'v_mov_b32 {v(GC0)}, {f32(C0)}')
I(f's_mov_b32 {s(GS1)}, {f32(C1)}')
I(f's_mul_i32 {s(S_HB2)}, {s(S_MB0)}, {ACT_MB}')
I(f's_lshl_b32 {s(S_T3)}, {s(S_START)}, 10')
I(f's_add_u32 {s(S_HB2)}, {s(S_HB2)}, {s(S_T3)}')
I(f's_add_u32 {s(S_HB2)}, {s(S_HB2)}, {ACT_T + 20 * 1024}')
I(f's_add_u32 {s(S_HB2 + 1)}, {s(S_HB2)}, {ACT_MB}')


def gelu_group(pr, rb, hook=None):
    n = pr * 2 + rb
    tmp = T + 4 + 8 * (n % 2)
    out = T + 20 + 4 * (n % 4)
    xs = [ACC + ((2 * pr + c2) * 2 + rb) * 4 + r for c2 in range(2) for r in range(4)]
    for i, x in enumerate(xs):
        I(f'v_mul_f32 {v(tmp + i)}, {v(x)}, {v(x)}')
    for i, x in enumerate(xs):
        I(f'v_fma_f32 {v(tmp + i)}, {v(tmp + i)}, {s(GS1)}, {v(GC0)}')
    if hook:
        hook()
    for i, x in enumerate(xs):
        I(f'v_mul_f32 {v(tmp + i)}, {v(tmp + i)}, {v(x)}')
    if hook:
        hook()
    for i in range(8):
        I(f'v_exp_f32 {v(tmp + i)}, {v(tmp + i)}')
    if hook:
        hook()
    for i in range(8):
        I(f'v_add_f32 {v(tmp + i)}, 1.0, {v(tmp + i)}')
    if hook:
        hook()
    for i in range(8):
        I(f'v_rcp_f32 {v(tmp + i)}, {v(tmp + i)}')
    if hook:
        hook()
    for i, x in enumerate(xs):
        I(f'v_mul_f32 {v(tmp + i)}, {v(tmp + i)}, {v(x)}')
    if hook:
        hook()
    for i in range(4):
        I(f'v_cvt_pk_bf16_f32 {v(out + i)}, {v(tmp + 2 * i)}, {v(tmp + 2 * i + 1)}')
    I(f'buffer_store_dwordx4 {v(out, 4)}, {v(V_L16 if pr < 4 else V_L16B)}, {s(SRD_WS, 4)}, {s(S_HB2 + rb)} offen offset:{(pr & 3) * 1024} sc1', tag=('h', pr))


stamp(3)
w2done = mainloop([[(ks, j, 32 * j) for j in range(14)] for ks in range(20)], areg_att,
                  [[ks + 4] if ks + 4 < 20 else [] for ks in range(20)], False,
                  lambda t_, f: opt('rf0', 3) if t_ < 16 else opt('rf1', 8), lambda kn: None, lambda t_: [], lambda t_, ph: None)
stamp(4)
stamp(1, 4)
I('s_barrier')
w2rest = [lambda f=f: w2load(f) for f in range(w2done, NW2E)]
w2rest += [lambda i=i, nb=nb: wodma(i, nb) for i in (2, 3, 4) for nb in range(5)]
w2rest = [x for fn in w2rest for x in (fn, None, None)]


def hook():
    if w2rest:
        fn = w2rest.pop(0)
        if fn:
            fn()


HSPLIT = 4
for pr in range(7):
    for rb in range(2):
        gelu_group(pr, rb, hook)
        if pr == HSPLIT and rb == 1:
            k.wait_vm_tag(('h', HSPLIT - 1))
            I('s_barrier')
            lab = k.newlabel('L_nh')
            I(f's_cmp_eq_u32 {s(S_WAVE)}, 0')
            I(f's_cbranch_scc0 {lab}')
            flag_store(P1H, S_FOFF, 224)
            k.label(lab)
        if pr == 6 and rb == 0:
            while w2rest:
                hook()
            chk_issue(V_PF)
early_eval()
stamp(5)

k.label('L_phase2')
k.vmq = [(set(), 'p1st')]
k.lgq = []
stamp(6)
HE = opt('he', 2)
for st in range(HE):
    for mb in range(4):
        hload(st, mb, True)
k.wait_vm_tag('p1st')
p1_flag()
lab = k.newlabel('L_haveh')
I(f's_cmp_eq_u32 {s(S_EARLY)}, 1')
I(f's_cbranch_scc1 {lab}')
k.wait_all()
poll(V_PF, 'ffn')
for st in range(HE):
    for mb in range(4):
        hload(st, mb)
k.label(lab)
for st in range(HE, 4):
    for mb in range(4):
        hload(st, mb)
stamp(7)


def p2_setup():
    global S_OBASE, S_OOK, S_HI, S_NL2E, VXO, VB2, VPA2, VRED2, VWO1, VWO2
    S_OBASE, S_OOK, S_HI, S_NL2E = 36, 39, 40, 41
    I(f's_lshl_b32 {s(S_T3)}, {s(S_M2)}, 2')
    I(f's_add_u32 {s(S_T3)}, {s(S_T3)}, {s(S_WAVE)}')
    I(f's_mul_i32 {s(S_OBASE)}, {s(S_T3)}, {ACT_MB}')
    I(f's_add_u32 {s(S_OBASE)}, {s(S_OBASE)}, {ACT_T + (OOB // 2 if "--noH" in sys.argv else 0)}')
    I(f's_mov_b32 {s(S_HI)}, 0xffff0000')
    I(f's_mov_b32 {s(S_NL2E)}, {f32(-1.4426950408889634)}')
    VXO, VB2, VPA2, VRED2, VWO1, VWO2 = T2 + 2, T2 + 3, T2 + 4, T2 + 5, T2 + 6, T2 + 7
    I(f'v_and_b32 {v(VB2)}, 15, {v(V_LANE)}')
    I(f's_lshl_b32 {s(S_T3)}, {s(S_T3)}, 4')
    I(f'v_add_u32 {v(VB2)}, {s(S_T3)}, {v(VB2)}')
    I(f'v_mul_u32_u24 {v(VXO)}, 1280, {v(VB2)}')
    I(f'v_lshrrev_b32 {v(VB2)}, 4, {v(V_LANE)}')
    I(f's_mul_i32 {s(S_T3)}, {s(S_NT)}, 160')
    I(f'v_lshl_add_u32 {v(VB2)}, {v(VB2)}, 3, {s(S_T3)}')
    I(f'v_add_u32 {v(VXO)}, {v(VXO)}, {v(VB2)}')
    I(f'v_subrev_u32 {v(V_PF)}, {P1H - P1F}, {v(V_PF)}')
    I(f's_lshr_b32 {s(S_T3)}, {s(S_M2)}, 1')
    I(f's_lshl_b32 {s(S_T3)}, {s(S_T3)}, {4 + FS}')
    I(f's_add_u32 {s(S_T3)}, {s(S_T3)}, {P1F}')
    I(f'v_and_b32 {v(VPA2)}, 7, {v(V_LANE)}')
    I(f'v_lshl_add_u32 {v(VPA2)}, {v(VPA2)}, {FS}, {s(S_T3)}')
    I(f's_mul_i32 {s(S_T3)}, {s(S_WAVE)}, {15 * 1024}')
    I(f'v_add_u32 {v(VRED2)}, {s(S_T3)}, {v(V_L16)}')
    I(f'v_add_u32 {v(VWO1)}, {LDS_WO}, {v(V_L16)}')
    I(f'v_add_u32 {v(VWO2)}, {LDS_WO + 65536}, {v(V_L16)}')


setup2 = k.record(p2_setup)


def oreg(ks):
    return a(4 * W2ORDER[20 + ks], 4)


def oload(ks):
    if ks % 8 == 0 and ks:
        I(f's_add_u32 {s(S_OBASE)}, {s(S_OBASE)}, 8192')
    I(f'buffer_load_dwordx4 {oreg(ks)}, {v(V_L16 if (ks & 7) < 4 else V_L16B)}, {s(SRD_WS, 4)}, {s(S_OBASE)} offen offset:{(ks & 3) * 1024} sc1')


R_ = k.record
fl = {st: [] for st in range(13)}
fl[0] = R_(lambda: [hload(st, mb) for st in (4, 5) for mb in range(4)]) + setup2
fl[1] = R_(lambda: chk_issue(V_PF)) + R_(lambda: [hload(st, mb) for st in (6, 7) for mb in range(4)])
fl[2] = R_(lambda: [w2load(f) for f in range(NW2E, NW2E + 5)])
fl[3] = R_(lambda: [hload(8, mb) for mb in range(4)]) + R_(lambda: [wodma(0, nb) for nb in range(5)])
fl[4] = R_(lambda: [w2load(f) for f in range(NW2E + 5, NW2E + 10)])
fl[5] = R_(lambda: [wodma(1, nb) for nb in range(5)])
fl[6] = R_(lambda: [w2load(f) for f in range(NW2E + 10, NW2E + 14)])
fl[7] = R_(lambda: [w2load(f) for f in range(NW2E + 14, 70)]) + R_(lambda: chk_issue(VPA2))
late = R_(lambda: [oload(ks) for ks in range(8)])
late += R_(lambda: [I(f'buffer_load_dwordx2 {v(B2V + 2 * nb, 2)}, {v(VB2)}, {s(SRD_B2, 4)}, 0 offen offset:{32 * nb}') for nb in range(5)])
late += R_(lambda: [oload(ks) for ks in range(8, 20)])
late += R_(lambda: [I(f'buffer_load_dwordx2 {v(XIN + 2 * nb, 2)}, {v(VXO)}, {s(SRD_X, 4)}, 0 offen offset:{32 * nb}') for nb in range(5)])
for i, st in enumerate(range(9, 13)):
    fl[st] = late[8 * i:8 * i + 8]
I(f's_mov_b32 {s(39)}, 1')
PUBST = opt('pubst', 3)
for st in range(13):
    if st in (0, 1, 3, 5, 8, 12):
        stamp(1 + (0, 1, 3, 5, 8, 12).index(st), 3)
    if st == 3:
        poll(V_PF, 'ffn2', preissued=True)
    if st == 9:
        poll(VPA2, 'att', preissued=True)
    q = fl[st]
    per = max(8, -(-sum(cost(e) for e in q) // 16))
    for mb in range(4):
        for nb in range(5):
            d = YACC + (mb * 5 + nb) * 4
            c_ = '0' if st == 0 else v(d, 4)
            I(f'v_mfma_f32_16x16x32_bf16 {v(d, 4)}, {w2reg(st, nb)}, {hreg(st, mb)}, {c_}')
            u = 0
            while q and nb < 4 and (u + cost(q[0]) <= per) and (nb % 2 == 0 or len(q) > 2 * (4 - mb)):
                u += cost(q[0])
                k.play(q.pop(0))
        if 4 <= st and st + HWN < 14:
            hload(st + HWN, mb)
    while q:
        k.play(q.pop(0))
labs = [k.newlabel('L_red') for _ in range(4)]
lend = k.newlabel('L_redend')
k._need(set().union(*[regs_of(hreg(13, mb)) for mb in range(4)] + [regs_of(w2reg(13, nb)) for nb in range(5)]))
stw = k.state()
YOWN = HW
for w in range(4):
    k.set_state(stw)
    if w:
        k.label(labs[w])
    if w < 3:
        I(f's_cmp_eq_u32 {s(S_WAVE)}, {w}')
        I(f's_cbranch_scc0 {labs[w + 1]}')
    wr = []
    for i in (1, 2, 3, 0):
        mb = (w + i) & 3
        for nb in range(5):
            d = YACC + (mb * 5 + nb) * 4
            dd = d if i else YOWN + 4 * nb
            I(f'v_mfma_f32_16x16x32_bf16 {v(dd, 4)}, {w2reg(13, nb)}, {hreg(13, mb)}, {v(d, 4)}')
            if len(wr) >= 4:
                I(wr.pop(0))
            if i:
                wr.append(f'ds_write_b128 {v(V_L16)}, {v(d, 4)} offset:{LDS_RED + ((mb * 3 + i - 1) * 5 + nb) * 1024}')
            elif wr and len(wr) < 4:
                I(wr.pop(0))
    while wr:
        I(wr.pop(0))
    if w < 3:
        I(f's_branch {lend}')
k.label(lend)
stamp(8)
stamp(7, 3)
k.wait_all(vm=False, lg=True)
I('s_barrier')
YT = HW + 20
for i in range(3):
    for nb in range(5):
        I(f'ds_read_b128 {v(YT + 20 * i + 4 * nb, 4)}, {v(VRED2)} offset:{LDS_RED + (i * 5 + nb) * 1024}')
WOW = YACC
LA2 = 12


def woread(n):
    off = n * 1024
    if off < 65536:
        I(f'ds_read_b128 {v(WOW + 4 * (n % 16), 4)}, {v(VWO1)} offset:{off}')
    else:
        I(f'ds_read_b128 {v(WOW + 4 * (n % 16), 4)}, {v(VWO2)} offset:{off - 65536}')


for n in range(LA2):
    woread(n)
G1 = YT
valu = []
for i in range(3):
    for r in range(20):
        valu.append(f'v_add_f32 {v(YOWN + r)}, {v(YOWN + r)}, {v(YT + 20 * i + r)}')
seq = [
    lambda y, p, r: f'v_cvt_pk_bf16_f32 {v(p)}, {v(y)}, {v(y + 1)}',
    lambda y, p, r: f'v_lshlrev_b32 {v(y)}, 16, {v(p)}',
    lambda y, p, r: f'v_and_b32 {v(y + 1)}, {s(S_HI)}, {v(p)}',
    lambda y, p, r: f'v_lshlrev_b32 {v(p)}, 16, {v(B2V + r)}',
    lambda y, p, r: f'v_and_b32 {v(p + 1)}, {s(S_HI)}, {v(B2V + r)}',
    lambda y, p, r: f'v_add_f32 {v(y)}, {v(y)}, {v(p)}',
    lambda y, p, r: f'v_add_f32 {v(y + 1)}, {v(y + 1)}, {v(p + 1)}',
    lambda y, p, r: f'v_cvt_pk_bf16_f32 {v(p)}, {v(y)}, {v(y + 1)}',
    lambda y, p, r: f'v_lshlrev_b32 {v(y)}, 16, {v(p)}',
    lambda y, p, r: f'v_and_b32 {v(y + 1)}, {s(S_HI)}, {v(p)}',
    lambda y, p, r: f'v_mul_f32 {v(p)}, {s(S_NL2E)}, {v(y)}',
    lambda y, p, r: f'v_mul_f32 {v(p + 1)}, {s(S_NL2E)}, {v(y + 1)}',
    lambda y, p, r: f'v_exp_f32 {v(p)}, {v(p)}',
    lambda y, p, r: f'v_exp_f32 {v(p + 1)}, {v(p + 1)}',
    lambda y, p, r: f'v_add_f32 {v(p)}, 1.0, {v(p)}',
    lambda y, p, r: f'v_add_f32 {v(p + 1)}, 1.0, {v(p + 1)}',
    lambda y, p, r: f'v_rcp_f32 {v(p)}, {v(p)}',
    lambda y, p, r: f'v_rcp_f32 {v(p + 1)}, {v(p + 1)}',
    lambda y, p, r: f'v_mul_f32 {v(y)}, {v(y)}, {v(p)}',
    lambda y, p, r: f'v_mul_f32 {v(y + 1)}, {v(y + 1)}, {v(p + 1)}',
    lambda y, p, r: f'v_cvt_pk_bf16_f32 {v(p)}, {v(y)}, {v(y + 1)}',
    lambda y, p, r: f'v_lshlrev_b32 {v(y)}, 16, {v(p)}',
    lambda y, p, r: f'v_and_b32 {v(y + 1)}, {s(S_HI)}, {v(p)}',
    lambda y, p, r: f'v_lshlrev_b32 {v(p)}, 16, {v(XIN + r)}',
    lambda y, p, r: f'v_and_b32 {v(p + 1)}, {s(S_HI)}, {v(XIN + r)}',
]
for fn in seq:
    for r in range(10):
        valu.append(fn(YOWN + 2 * r, G1 + 2 * r, r))
nv = len(valu)
stamp(8, 3)
vi = 0
for n in range(100):
    ks, nb = divmod(n, 5)
    d = SACC + 4 * nb
    c_ = '0' if ks == 0 else v(d, 4)
    if n % 2 == 0:
        k._need(regs_of(v(WOW + 4 * (n % 16), 8)))
    I(f'v_mfma_f32_16x16x32_bf16 {v(d, 4)}, {v(WOW + 4 * (n % 16), 4)}, {oreg(ks)}, {c_}')
    if n + LA2 < 100:
        woread(n + LA2)
    while vi < nv and vi * 100 < (n + 1) * nv:
        I(valu[vi])
        vi += 1
PT = YT + 20
seq = [
    lambda sx, y, p, r: f'v_cvt_pk_bf16_f32 {v(p)}, {v(sx)}, {v(sx + 1)}',
    lambda sx, y, p, r: f'v_lshlrev_b32 {v(sx)}, 16, {v(p)}',
    lambda sx, y, p, r: f'v_and_b32 {v(sx + 1)}, {s(S_HI)}, {v(p)}',
    lambda sx, y, p, r: f'v_mul_f32 {v(sx)}, {v(sx)}, {v(y)}',
    lambda sx, y, p, r: f'v_mul_f32 {v(sx + 1)}, {v(sx + 1)}, {v(y + 1)}',
    lambda sx, y, p, r: f'v_cvt_pk_bf16_f32 {v(p)}, {v(sx)}, {v(sx + 1)}',
    lambda sx, y, p, r: f'v_lshlrev_b32 {v(sx)}, 16, {v(p)}',
    lambda sx, y, p, r: f'v_and_b32 {v(sx + 1)}, {s(S_HI)}, {v(p)}',
    lambda sx, y, p, r: f'v_add_f32 {v(sx)}, {v(sx)}, {v(G1 + 2 * r)}',
    lambda sx, y, p, r: f'v_add_f32 {v(sx + 1)}, {v(sx + 1)}, {v(G1 + 2 * r + 1)}',
    lambda sx, y, p, r: f'v_cvt_pk_bf16_f32 {v(XIN + r)}, {v(sx)}, {v(sx + 1)}',
]
for nb in range(5):
    for fn in seq:
        for r in (2 * nb, 2 * nb + 1):
            I(fn(SACC + 2 * r, YOWN + 2 * r, PT + r, r))
    I(f'buffer_store_dwordx2 {v(XIN + 2 * nb, 2)}, {v(VXO)}, {s(SRD_OUT, 4)}, 0 offen offset:{32 * nb}' + (' sc1' if '--outsc1' in sys.argv else '') + (' nt' if '--outnt' in sys.argv else ''))
ECHO = opt('echo', -1)
if ECHO >= 0:
    stamp(9, -1)
    k.wait_all()
    I(f's_sub_u32 {s(S_T3)}, {s(S_STAMP + 2 * ECHO)}, {s(S_STAMP)}')
    I(f's_min_u32 {s(S_T3)}, {s(S_T3)}, 10000')
    k.label('L_echo')
    I(f's_memrealtime {s(S_T4, 2)}')
    k.wait_all()
    I(f's_sub_u32 {s(S_T4)}, {s(S_T4)}, {s(S_STAMP + 18)}')
    I(f's_cmp_lt_u32 {s(S_T4)}, {s(S_T3)}')
    I('s_cbranch_scc1 L_echo')
elif STAMPS:
    stamp(9, -1)
    k.wait_all()
    I(f's_lshl_b32 {s(S_T3)}, {s(S_WG)}, 8')
    I(f's_lshl_b32 {s(S_T4)}, {s(S_WAVE)}, 6')
    I(f's_add_u32 {s(S_T3)}, {s(S_T3)}, {s(S_T4)}')
    I(f's_add_u32 {s(S_T3)}, {s(S_T3)}, {STAMP_OFF}')
    I(f'v_mov_b32 {v(T2)}, 0')
    I('s_mov_b64 exec, 1')
    for i in range(10):
        I(f'v_mov_b32 {v(T2 + 1)}, {s(S_STAMP + 2 * i)}')
        I(f'buffer_store_dword {v(T2 + 1)}, {v(T2)}, {s(SRD_WS, 4)}, {s(S_T3)} offen offset:{4 * i}')
    I(f'v_mov_b32 {v(T2 + 1)}, {s(S_EARLY)}')
    I(f'buffer_store_dword {v(T2 + 1)}, {v(T2)}, {s(SRD_WS, 4)}, {s(S_T3)} offen offset:52')
    I(f'v_mov_b32 {v(T2 + 1)}, {s(S_OOK)}')
    I(f'buffer_store_dword {v(T2 + 1)}, {v(T2)}, {s(SRD_WS, 4)}, {s(S_T3)} offen offset:56')
    I(f'v_mov_b32 {v(T2 + 1)}, {s(S_TYPE)}')
    I(f'buffer_store_dword {v(T2 + 1)}, {v(T2)}, {s(SRD_WS, 4)}, {s(S_T3)} offen offset:60')
if '--padx' in sys.argv:
    for i in range(2048):
        I(f'v_add3_u32 {v(16 + i % 8)}, {v(16 + i % 8)}, v2, v3')
if '--pady' in sys.argv:
    I(f's_mov_b32 {s(S_T3)}, 0')
    k.label('L_pady')
    for i in range(64):
        I(f'v_add3_u32 {v(16 + i % 8)}, {v(16 + i % 8)}, v2, v3')
    I(f's_add_u32 {s(S_T3)}, {s(S_T3)}, 1')
    I(f's_cmp_lt_u32 {s(S_T3)}, 32')
    I('s_cbranch_scc1 L_pady')
k.label('L_end')
I('s_endpgm')

hdr = open('recurrent_scan__sliding_local_dilated__dense_activation_gelu__prompt.s.ref').read().split('\n')
head = [l for l in hdr if l.startswith(';') and '@launch' not in l and 'Override' not in l and 'grid=ceil' not in l]
print('\n'.join(head))
print(f'; @launch grid=(256,1,1) block=(256,1,1) lds={LDS_TOTAL}')
print(f'''.amdgcn_target "amdgcn-amd-amdhsa--gfx950"
.text
.globl {KNAME}
.p2align 8
.type {KNAME},@function
{KNAME}:''')
print(k.text())
print(f'''.section .rodata,"a"
.p2align 6
.amdhsa_kernel {KNAME}
  .amdhsa_next_free_vgpr 512
  .amdhsa_next_free_sgpr 102
  .amdhsa_accum_offset 256
  .amdhsa_group_segment_fixed_size 0
  .amdhsa_kernarg_size 88
  .amdhsa_user_sgpr_count 2
  .amdhsa_user_sgpr_kernarg_segment_ptr 1
  .amdhsa_system_sgpr_workgroup_id_x 1
  .amdhsa_float_denorm_mode_32 3
.end_amdhsa_kernel''')
```

```python
import sys, struct
from asmlib import *

KNAME = 'recurrent_scan__sliding_local_dilated__dense_activation_gelu__prompt_kernel'
STAMPS = '--stamps' in sys.argv


def opt(name, default):
    for x in sys.argv:
        if x.startswith(f'--{name}='):
            return int(x.split('=')[1])
    return default


SMODE = opt('smode', 0)

XN_T = 0
ACT_T = 128 * 20 * 1024
ACT_MB = 74 * 1024
W_T = ACT_T + 128 * ACT_MB
FS = opt('fs', 6)
WS_ = opt('ws', 6)
LNF = W_T + 74 * 40 * 1024
P1F = LNF + (256 << FS)
P1H = P1F + (256 << FS)
WTF = P1H + (256 << FS)
WS_USED = LNF + (1024 << 7)
STAMP_OFF = WS_USED
WS_REC = WS_USED + (256 * 4 * 64 if STAMPS else 0)
OOB = 0x40000000

RROW = 1056
SLOT = 16 * RROW
NSLOT = 8
HALO = NSLOT * SLOT
CNT = HALO + 20 * 1024
RS = 496
STG = 4 * SLOT
LDS_WO = 0
LDS_RED = 100 * 1024
LDS_TOTAL = 163840


def f32(x):
    return '0x%08x' % struct.unpack('<I', struct.pack('<f', x))[0]


S_WG, S_FOFF = 2, 3
SRD_X, SRD_B, SRD_WS, SRD_DBG, SRD_OUT, SRD_RT, SRD_B1, SRD_B2 = 4, 8, 12, 16, 20, 24, 28, 56
P_X, P_WQKV, P_WO, P_BX, P_W1, P_B1, P_W2, P_B2, P_OUT, P_DBG, P_WS = 32, 34, 36, 38, 40, 42, 44, 46, 48, 50, 52
S_WAVE, S_MT, S_TYPE, S_IDX, S_FB, S_PITCH, S_KSTR, S_START = 60, 61, 62, 63, 64, 65, 66, 67
S_T0, S_T1, S_T2, S_T3, S_T4, S_T5 = 68, 69, 70, 71, 72, 73
S_M0B, S_SOFF, S_M2, S_NT, S_SPIN, S_TAG = 74, 75, 76, 77, 78, 79
S_STAMP = 80
S_W2A, S_W2B = 100, 101
S_WOB, S_WOM, S_LAST = 16, 17, 18
S_HB, S_MB0 = 32, 33
S_AO = 36

V_LANE = 1
V_DMA = 2
V_TR0, V_TR1 = 6, 7
V_TRH0, V_TRH1 = 8, 9
V_L16 = 10
V_L16B = 11
V_PA = 12
V_POLL = 13
V_X = 14
V_PF = 15
ACC = 16
HACC = 136
WIN = 148
HX = 180
T = 188
BIAS = 226
W2V = 228
P4 = 252

k = K()
I = k.I


def stamp(idx, mode=0):
    if STAMPS and (mode == SMODE or mode == -1):
        I(f'{"s_memtime" if "--cyc" in sys.argv else "s_memrealtime"} {s(S_STAMP + 2 * idx, 2)}')


def srd(base, plo, nbytes):
    I(f's_mov_b32 {s(base)}, {s(plo)}')
    I(f's_mov_b32 {s(base + 1)}, {s(plo + 1)}')
    I(f's_mov_b32 {s(base + 2)}, {nbytes}')
    I(f's_mov_b32 {s(base + 3)}, 0x00020000')


def csel(dst, x, y):
    I(f's_mov_b32 {s(dst)}, {y}')
    I(f's_cselect_b32 {s(dst)}, {x}, {s(dst)}')


def chk_issue(addrv, n=1):
    if n == 1:
        I(f'buffer_load_dword {v(V_POLL)}, {v(addrv)}, {s(SRD_WS, 4)}, 0 offen sc1')
    else:
        I(f'buffer_load_dwordx4 {v(P4, 4)}, {v(addrv)}, {s(SRD_WS, 4)}, 0 offen sc1')


def chk_eval(n=1):
    if n == 1:
        I(f'v_cmp_ne_u32 vcc, {s(S_TAG)}, {v(V_POLL)}')
    else:
        for i in range(4):
            I(f'v_xor_b32 {v(P4 + i)}, {s(S_TAG)}, {v(P4 + i)}')
        I(f'v_or3_b32 {v(P4)}, {v(P4)}, {v(P4 + 1)}, {v(P4 + 2)}')
        I(f'v_or_b32 {v(P4)}, {v(P4)}, {v(P4 + 3)}')
        I(f'v_cmp_ne_u32 vcc, 0, {v(P4)}')


def poll(addrv, name, n=1, preissued=False, sleep=1):
    lab = k.newlabel('L_poll_' + name)
    done = k.newlabel('L_polled_' + name)
    if not preissued:
        chk_issue(addrv, n)
    chk_eval(n)
    I(f's_mov_b32 {s(S_SPIN)}, 0')
    I(f's_cbranch_vccz {done}')
    st = k.state()
    k.label(lab)
    I(f's_sleep {sleep}')
    chk_issue(addrv, n)
    k.wait_all(vm=True, lg=False)
    chk_eval(n)
    I(f's_add_u32 {s(S_SPIN)}, {s(S_SPIN)}, 1')
    I(f's_cbranch_vccz {done}')
    I(f's_cmp_lt_u32 {s(S_SPIN)}, 0x40000')
    I(f's_cbranch_scc1 {lab}')
    k.label(done)
    k.set_state(st)


def flag_store(base, offs, t0):
    I(f'v_mov_b32 {v(t0)}, {s(S_TAG)}')
    I(f'v_mov_b32 {v(t0 + 1)}, {base}')
    I('s_mov_b64 exec, 1')
    I(f'buffer_store_dword {v(t0)}, {v(t0 + 1)}, {s(SRD_WS, 4)}, {s(offs)} offen sc1')
    I('s_mov_b64 exec, -1')
    k.vmq.pop()


def dma1(j, soff_reg, tag):
    I(f'buffer_load_dwordx4 {v(V_DMA + j)}, {s(SRD_B, 4)}, {s(soff_reg)} offen offset:{j * RROW} lds', tag=tag)


def bf16r(dst, src):
    I(f'v_cvt_pk_bf16_f32 {v(dst)}, {v(src)}, {v(src)}')
    I(f'v_lshlrev_b32 {v(dst)}, 16, {v(dst)}')


def prow(dst, tmp, mask):
    I(f'v_and_b32 {v(dst)}, {mask & ~7}, {v(V_LANE)}')
    I(f'v_bfe_u32 {v(tmp)}, {v(V_LANE)}, 2, 1')
    I(f'v_add_u32 {v(dst)}, {v(dst)}, {v(tmp)}')
    I(f'v_and_b32 {v(tmp)}, 3, {v(V_LANE)}')
    I(f'v_lshl_add_u32 {v(dst)}, {v(tmp)}, 1, {v(dst)}')


def row_sum(r, t1):
    for sh in (4, 8):
        I(f'v_add_f32_dpp {v(r)}, {v(r)}, {v(r)} row_ror:{sh} row_mask:0xf bank_mask:0xf')
    for op in ('v_permlane16_swap_b32', 'v_permlane32_swap_b32'):
        I(f'v_mov_b32 {v(t1)}, {v(r)}')
        I(f'{op} {v(r)}, {v(t1)}')
        I(f'v_add_f32 {v(r)}, {v(r)}, {v(t1)}')


I(f's_cmp_ge_u32 {s(S_WG)}, 256')
I('s_cbranch_scc1 L_end')
I(f's_load_dwordx16 {s(32, 16)}, s[0:1], 0')
I(f's_load_dwordx4 {s(48, 4)}, s[0:1], 64')
I(f's_load_dwordx2 {s(52, 2)}, s[0:1], 80')
stamp(0, -1)
I(f'v_lshrrev_b32 {v(T)}, 6, v0')
I(f'v_and_b32 {v(V_LANE)}, 63, v0')
I(f'v_readfirstlane_b32 {s(S_WAVE)}, {v(T)}')
I(f'v_mov_b32 {v(T + 2)}, 0')
I(f'v_mov_b32 {v(T + 3)}, 0')
I(f'v_mov_b32 {v(T + 1)}, {CNT}')
I(f'ds_write_b64 {v(T + 1)}, {v(T + 2, 2)}')
I(f'ds_write_b64 {v(T + 1)}, {v(T + 2, 2)} offset:8')
I(f's_cmp_lt_u32 {s(S_WAVE)}, 2')
I('s_cbranch_scc1 L_nocp')
CPV = T + 35
I(f's_getpc_b64 {s(S_TAG - 1, 2)}')
k.label('L_pc')
I(f's_lshr_b32 {s(S_T3)}, {s(S_WG)}, 2')
I(f's_and_b32 {s(S_T3)}, {s(S_T3)}, 6')
I(f's_and_b32 {s(S_T4)}, {s(S_WAVE)}, 1')
I(f's_add_u32 {s(S_T3)}, {s(S_T3)}, {s(S_T4)}')
I(f's_lshl_b32 {s(S_T3)}, {s(S_T3)}, 13')
I(f'v_lshl_add_u32 {v(CPV)}, {v(V_LANE)}, 7, {s(S_T3)}')
I(f'v_min_u32 {v(CPV)}, L_end-L_pc, {v(CPV)}')
I(f'global_load_dword {v(T + 17)}, {v(CPV)}, {s(S_TAG - 1, 2)}')
k.vmq.pop()
k.label('L_nocp')
I(f's_and_b32 {s(S_T0)}, {s(S_WG)}, 7')
I(f's_lshr_b32 {s(S_T1)}, {s(S_WG)}, 3')
I(f's_and_b32 {s(S_MT)}, {s(S_T0)}, 1')
I(f's_lshl_b32 {s(S_MT)}, {s(S_MT)}, 3')
I(f's_and_b32 {s(S_T2)}, {s(S_T1)}, 7')
I(f's_add_u32 {s(S_MT)}, {s(S_MT)}, {s(S_T2)}')
I(f's_lshr_b32 {s(S_T2)}, {s(S_T1)}, 3')
I(f's_and_b32 {s(S_TYPE)}, {s(S_T2)}, 1')
I(f's_lshr_b32 {s(S_T2)}, {s(S_T2)}, 1')
I(f's_and_b32 {s(S_IDX)}, {s(S_T0)}, 6')
I(f's_add_u32 {s(S_IDX)}, {s(S_IDX)}, {s(S_T2)}')
I(f's_lshl_b32 {s(S_FB)}, {s(S_MT)}, 4')
I(f's_lshl_b32 {s(S_T2)}, {s(S_TYPE)}, 3')
I(f's_add_u32 {s(S_FB)}, {s(S_FB)}, {s(S_T2)}')
I(f's_add_u32 {s(S_FB)}, {s(S_FB)}, {s(S_IDX)}')
I(f's_cmp_eq_u32 {s(S_TYPE)}, 0')
csel(S_PITCH, 3840, 3456)
LR, LP, LXA = T + 4, T + 5, T + 6
I(f'v_and_b32 {v(LR)}, 3, {v(V_LANE)}')
I(f'v_lshrrev_b32 {v(LP)}, 2, {v(V_LANE)}')
I(f's_lshl_b32 {s(S_T3)}, {s(S_FB)}, 3')
I(f's_add_u32 {s(S_T3)}, {s(S_T3)}, {s(S_WAVE)}')
I(f'v_lshl_add_u32 {v(LR)}, {v(LR)}, 1, {s(S_T3)}')
I(f'v_mul_u32_u24 {v(LXA)}, 1280, {v(LR)}')
I(f'v_lshl_add_u32 {v(LXA)}, {v(LP)}, 4, {v(LXA)}')
PFL = 0
I(f'v_and_b32 {v(T + 32)}, 15, {v(V_LANE)}')
I(f's_cmp_eq_u32 {s(S_TYPE)}, 0')
I(f's_cselect_b32 {s(S_T3)}, 8, 6')
I(f's_cselect_b32 {s(S_T4)}, {1280 - 384}, 0')
csel(S_M0B, 160, 448)
I(f'v_min_u32 {v(T + 32)}, {s(S_T3)}, {v(T + 32)}')
I(f'v_mul_u32_u24 {v(T + 33)}, 11, {v(T + 32)}')
I(f'v_lshrrev_b32 {v(T + 33)}, 5, {v(T + 33)}')
I(f'v_mul_u32_u24 {v(T + 33)}, {s(S_T4)}, {v(T + 33)}')
I(f'v_lshl_add_u32 {v(PFL)}, {v(T + 32)}, 7, {v(T + 33)}')
I(f'v_lshrrev_b32 {v(T + 32)}, 4, {v(V_LANE)}')
I(f'v_mad_u32_u24 {v(PFL)}, {v(T + 32)}, {s(S_PITCH)}, {v(PFL)}')
I(f's_and_b32 {s(S_T3)}, {s(S_IDX)}, 6')
I(f's_mul_i32 {s(S_M0B)}, {s(S_M0B)}, {s(S_T3)}')
I(f'v_add_u32 {v(PFL)}, {s(S_M0B)}, {v(PFL)}')
I(f's_and_b32 {s(S_KSTR)}, {s(S_MT)}, 7')
I(f's_lshl_b32 {s(S_KSTR)}, {s(S_KSTR)}, 1')
I(f's_and_b32 {s(S_T4)}, {s(S_IDX)}, 1')
I(f's_add_u32 {s(S_KSTR)}, {s(S_KSTR)}, {s(S_T4)}')
assert all((x * 11) >> 5 == x // 3 for x in range(9))
k.wait_all(vm=False, lg=True)
stamp(1, 2)
I('s_barrier')
srd(SRD_X, P_X, 2048 * 1280)
srd(SRD_DBG, P_DBG, 256)
XR = T + 8
TAGV = T + 36
I(f's_cmp_ge_u32 {s(S_WAVE)}, 2')
I('s_cbranch_scc1 L_pf')

for i in range(5):
    I(f'buffer_load_dwordx4 {v(XR + 4 * i, 4)}, {v(LXA)}, {s(SRD_X, 4)}, 0 offen offset:{256 * i}', tag='x')
I(f'buffer_load_dword {v(TAGV)}, {v(T + 2)}, {s(SRD_DBG, 4)}, 0 offen sc1')
srd(SRD_WS, P_WS, WS_REC)
I(f's_lshl_b32 {s(S_FOFF)}, {s(S_FB)}, {FS}')
XF = ACC
SA_ = T + 3
I(f'v_lshrrev_b32 {v(SA_)}, 4, {v(LR)}')
I(f'v_mul_u32_u24 {v(SA_)}, 20480, {v(SA_)}')
I(f'v_lshrrev_b32 {v(T)}, 4, {v(V_LANE)}')
I(f'v_lshl_add_u32 {v(SA_)}, {v(T)}, 10, {v(SA_)}')
I(f's_and_b32 {s(S_T4)}, {s(S_FB)}, 1')
I(f's_lshl_b32 {s(S_T4)}, {s(S_T4)}, 1')
I(f's_add_u32 {s(S_T4)}, {s(S_T4)}, {s(S_WAVE)}')
I(f's_lshl_b32 {s(S_T4)}, {s(S_T4)}, 8')
I(f'v_add_u32 {v(SA_)}, {s(S_T4)}, {v(SA_)}')
I(f'v_and_b32 {v(T)}, 15, {v(V_LANE)}')
I(f'v_lshl_add_u32 {v(SA_)}, {v(T)}, 4, {v(SA_)}')
I(f's_mov_b32 {s(S_T3)}, 0xffff0000')
stamp(2, 2)
if STAMPS and SMODE == 2:
    k.wait_vm_tag('x')
stamp(3, 2)
SUM = T + 4
for i in range(20):
    I(f'v_lshlrev_b32 {v(XF + 2 * i)}, 16, {v(XR + i)}')
    I(f'v_and_b32 {v(XF + 2 * i + 1)}, {s(S_T3)}, {v(XR + i)}')
    if i == 1:
        I(f'v_pk_add_f32 {v(SUM, 2)}, {v(XF, 2)}, {v(XF + 2, 2)}')
    elif i > 1:
        I(f'v_pk_add_f32 {v(SUM, 2)}, {v(SUM, 2)}, {v(XF + 2 * i, 2)}')
I(f'v_add_f32 {v(SUM)}, {v(SUM)}, {v(SUM + 1)}')
row_sum(SUM, SUM + 1)
MEAN = T + 6
I(f'v_mul_f32 {v(MEAN)}, {f32(1.0 / 640)}, {v(SUM)}')
I(f'v_mov_b32 {v(MEAN + 1)}, {v(MEAN)}')
SQ = T + 4
DV = T + 28
for i in range(20):
    d = DV + 2 * (i & 1)
    I(f'v_pk_add_f32 {v(d, 2)}, {v(XF + 2 * i, 2)}, {v(MEAN, 2)} neg_lo:[0,1] neg_hi:[0,1]')
    if i == 0:
        I(f'v_pk_mul_f32 {v(SQ, 2)}, {v(d, 2)}, {v(d, 2)}')
    else:
        I(f'v_pk_fma_f32 {v(SQ, 2)}, {v(d, 2)}, {v(d, 2)}, {v(SQ, 2)}')
I(f'v_add_f32 {v(SQ)}, {v(SQ)}, {v(SQ + 1)}')
row_sum(SQ, SQ + 1)
I(f'v_mul_f32 {v(SQ)}, {f32(1.0 / 640)}, {v(SQ)}')
bf16r(SQ, SQ)
I(f'v_add_f32 {v(SQ)}, {f32(1e-5)}, {v(SQ)}')
bf16r(SQ, SQ)
I(f'v_sqrt_f32 {v(SQ)}, {v(SQ)}')
bf16r(MEAN, MEAN)
bf16r(SQ, SQ)
I(f'v_rcp_f32 {v(SQ + 1)}, {v(SQ)}')
I(f'v_mov_b32 {v(MEAN + 1)}, {v(MEAN)}')
I(f'v_fma_f32 {v(SQ)}, -{v(SQ)}, {v(SQ + 1)}, 1.0')
I(f'v_fma_f32 {v(SQ)}, {v(SQ)}, {v(SQ + 1)}, {v(SQ + 1)}')
I(f'v_mov_b32 {v(SQ + 1)}, {v(SQ)}')
for i in range(20):
    x2 = XF + 2 * i
    I(f'v_pk_add_f32 {v(x2, 2)}, {v(x2, 2)}, {v(MEAN, 2)} neg_lo:[0,1] neg_hi:[0,1]')
    I(f'v_cvt_pk_bf16_f32 {v(XR + i)}, {v(x2)}, {v(x2 + 1)}')
    I(f'v_lshlrev_b32 {v(x2)}, 16, {v(XR + i)}')
    I(f'v_and_b32 {v(x2 + 1)}, {s(S_T3)}, {v(XR + i)}')
    I(f'v_pk_mul_f32 {v(x2, 2)}, {v(x2, 2)}, {v(SQ, 2)}')
    I(f'v_cvt_pk_bf16_f32 {v(XR + i)}, {v(x2)}, {v(x2 + 1)}')
    if i % 4 == 3:
        ii = i // 4
        I(f's_mov_b32 {s(S_T4)}, {XN_T + 4096 * ii}')
        I(f'buffer_store_dwordx4 {v(XR + 4 * ii, 4)}, {v(SA_)}, {s(SRD_WS, 4)}, {s(S_T4)} offen sc1')
stamp(1)
stamp(4, 2)
if opt('gate', 1) == 2:
    I(f'v_mov_b32 {v(T + 1)}, {CNT}')
    I(f'v_mov_b32 {v(T)}, 1')
    I('s_mov_b64 exec, 1')
    I(f'ds_add_u32 {v(T + 1)}, {v(T)} offset:8')
    I('s_mov_b64 exec, -1')
I(f'v_readfirstlane_b32 {s(S_TAG)}, {v(TAGV)}')
I(f'v_mov_b32 {v(T + 1)}, 0')
I(f's_mov_b32 {s(S_SPIN)}, 0')
I(f's_cmp_lg_u32 {s(S_TAG)}, 0')
I('s_cbranch_scc1 L_tagok')
k.label('L_tagpoll')
I(f'buffer_load_dword {v(TAGV)}, {v(T + 1)}, {s(SRD_DBG, 4)}, 0 offen sc1')
k.wait_all()
I(f'v_readfirstlane_b32 {s(S_TAG)}, {v(TAGV)}')
I(f's_add_u32 {s(S_SPIN)}, {s(S_SPIN)}, 1')
I(f's_cmp_lg_u32 {s(S_TAG)}, 0')
I('s_cbranch_scc1 L_tagok')
I(f's_cmp_lt_u32 {s(S_SPIN)}, 0x40000')
I('s_cbranch_scc1 L_tagpoll')
k.label('L_tagok')
I(f'v_mov_b32 {v(T + 1)}, {CNT}')
I(f'ds_write_b32 {v(T + 1)}, {v(TAGV)} offset:4')
I(f'v_mov_b32 {v(T)}, 1')
k.wait_all()
stamp(5, 2)
I('s_mov_b64 exec, 1')
I(f'ds_add_rtn_u32 {v(T + 2)}, {v(T + 1)}, {v(T)}')
I('s_mov_b64 exec, -1')
I(f'v_readfirstlane_b32 {s(S_T3)}, {v(T + 2)}')
I(f's_cmp_eq_u32 {s(S_T3)}, 1')
I('s_cbranch_scc0 L_common')
flag_store(LNF, S_FOFF, T)
I('s_branch L_common')

k.vmq = []
k.lgq = []
k.label('L_pf')
I(f's_cmp_lt_u32 {s(S_WG)}, 8')
I('s_cbranch_scc0 L_notag')
I(f's_cmp_eq_u32 {s(S_WAVE)}, 2')
I('s_cbranch_scc0 L_notag')
I(f's_memrealtime {s(S_T4, 2)}')
I(f's_or_b32 {s(S_T4)}, {s(S_T4)}, 1')
I(f'v_mov_b32 {v(T + 2)}, {s(S_T4)}')
I('s_mov_b64 exec, 1')
I(f'buffer_atomic_cmpswap {v(T + 2, 2)}, {v(T + 3)}, {s(SRD_DBG, 4)}, 0 offen sc1')
I('s_mov_b64 exec, -1')
k.label('L_notag')


def srd_b():
    I(f's_cmp_eq_u32 {s(S_TYPE)}, 0')
    I(f's_cselect_b32 {s(SRD_B)}, {s(P_WQKV)}, {s(P_W1)}')
    I(f's_cselect_b32 {s(SRD_B + 1)}, {s(P_WQKV + 1)}, {s(P_W1 + 1)}')
    csel(SRD_B + 2, 640 * 3840, 640 * 3456)
    I(f's_mov_b32 {s(SRD_B + 3)}, 0x00020000')


srd_b()
I(f's_lshl_b32 {s(S_T3)}, {s(S_KSTR)}, 1')
I(f's_and_b32 {s(S_T4)}, {s(S_WAVE)}, 1')
I(f's_add_u32 {s(S_T3)}, {s(S_T3)}, {s(S_T4)}')
I(f's_lshl_b32 {s(S_T4)}, {s(S_PITCH)}, 2')
I(f's_mul_i32 {s(S_SOFF)}, {s(S_T3)}, {s(S_T4)}')
I(f's_lshl_b32 {s(S_T4)}, {s(S_PITCH)}, 7')
I(f'buffer_load_dword {v(T + 12)}, {v(PFL)}, {s(SRD_B, 4)}, {s(S_SOFF)} offen')
I(f's_add_u32 {s(S_SOFF)}, {s(S_SOFF)}, {s(S_T4)}')
I(f'buffer_load_dword {v(T + 13)}, {v(PFL)}, {s(SRD_B, 4)}, {s(S_SOFF)} offen')

k.label('L_common')
k.vmq = [(set(), 'unknown')]
k.lgq = []
I('s_nop 4')
I(f's_lshl_b32 {s(S_FOFF)}, {s(S_FB)}, {FS}')
if '--map84' in sys.argv:
    I(f's_lshr_b32 {s(S_M2)}, {s(S_T0)}, 1')
    I(f's_lshl_b32 {s(S_M2)}, {s(S_M2)}, 3')
    I(f's_and_b32 {s(S_T2)}, {s(S_T1)}, 7')
    I(f's_add_u32 {s(S_M2)}, {s(S_M2)}, {s(S_T2)}')
    I(f's_and_b32 {s(S_NT)}, {s(S_T0)}, 1')
    I(f's_lshl_b32 {s(S_NT)}, {s(S_NT)}, 2')
    I(f's_lshr_b32 {s(S_T2)}, {s(S_T1)}, 3')
    I(f's_add_u32 {s(S_NT)}, {s(S_NT)}, {s(S_T2)}')
else:
    I(f's_lshl_b32 {s(S_M2)}, {s(S_T0)}, 2')
    I(f's_and_b32 {s(S_T2)}, {s(S_T1)}, 3')
    I(f's_add_u32 {s(S_M2)}, {s(S_M2)}, {s(S_T2)}')
    I(f's_lshr_b32 {s(S_NT)}, {s(S_T1)}, 2')
I(f's_mul_i32 {s(S_START)}, {s(S_IDX)}, 7')
I(f's_min_u32 {s(S_START)}, {s(S_START)}, 47')
I(f's_lshl_b32 {s(S_T3)}, {s(S_KSTR)}, 2')
I(f's_add_u32 {s(S_T3)}, {s(S_T3)}, {s(S_WAVE)}')
I(f's_add_u32 {s(S_T3)}, {s(S_T3)}, 64')
I(f's_lshl_b32 {s(S_T4)}, {s(S_PITCH)}, 2')
I(f's_mul_i32 {s(S_T3)}, {s(S_T3)}, {s(S_T4)}')
I(f'v_add_u32 {v(PFL)}, {s(S_T3)}, {v(PFL)}')
I(f's_lshl_b32 {s(S_KSTR)}, {s(S_PITCH)}, 5')
I(f'v_lshlrev_b32 {v(V_L16)}, 4, {v(V_LANE)}')
I(f'v_add_u32 {v(V_L16B)}, 4096, {v(V_L16)}')
srd(SRD_B1, P_B1, 1728 * 2)
I(f'v_lshlrev_b32 {v(T + 7)}, 3, {v(V_LANE)}')
I(f's_lshl_b32 {s(S_T5)}, {s(S_START)}, 6')
I(f'buffer_load_dwordx2 {v(BIAS, 2)}, {v(T + 7)}, {s(SRD_B1, 4)}, {s(S_T5)} offen', tag='pf')
I(f's_lshl_b32 {s(S_T0)}, {s(S_WG)}, 1')
I(f's_and_b32 {s(S_T1)}, {s(S_WAVE)}, 1')
I(f's_add_u32 {s(S_T0)}, {s(S_T0)}, {s(S_T1)}')
I(f's_mul_i32 {s(S_T1)}, {s(S_T0)}, 13108')
I(f's_lshr_b32 {s(S_T1)}, {s(S_T1)}, 16')
I(f's_mul_i32 {s(S_T2)}, {s(S_T1)}, 5')
I(f's_sub_u32 {s(S_T2)}, {s(S_T0)}, {s(S_T2)}')
assert all((u * 13108) >> 16 == u // 5 for u in range(512))
srd(SRD_WS, P_WS, WS_REC)
srd(SRD_OUT, P_OUT, 2048 * 1280)
srd(SRD_B2, P_B2, 640 * 2)
srd_b()
I(f's_cmp_lt_u32 {s(S_T1)}, 20')
I(f's_cselect_b32 {s(SRD_RT)}, {s(P_WO)}, {s(P_W2)}')
I(f's_cselect_b32 {s(SRD_RT + 1)}, {s(P_WO + 1)}, {s(P_W2 + 1)}')
csel(SRD_RT + 2, 640 * 1280, 1728 * 1280)
I(f's_mov_b32 {s(SRD_RT + 3)}, 0x00020000')
c, hf, sg = T, T + 1, T + 2
I(f'v_and_b32 {v(c)}, 31, {v(V_LANE)}')
I(f'v_lshrrev_b32 {v(hf)}, 5, {v(V_LANE)}')
S_CB = 34
I(f's_cmp_eq_u32 {s(S_TYPE)}, 0')
I(f's_cselect_b32 {s(S_T3)}, 29, 27')
I(f's_cselect_b32 {s(S_T4)}, 1120, 0')
I(f's_mul_i32 {s(S_CB)}, {s(S_IDX)}, 160')
I(f's_lshl_b32 {s(S_T5)}, {s(S_START)}, 6')
I(f's_cmp_eq_u32 {s(S_TYPE)}, 0')
I(f's_cselect_b32 {s(S_CB)}, {s(S_CB)}, {s(S_T5)}')
I(f'v_min_u32 {v(c)}, {s(S_T3)}, {v(c)}')
I(f'v_mul_u32_u24 {v(sg)}, 205, {v(c)}')
I(f'v_lshrrev_b32 {v(sg)}, 11, {v(sg)}')
I(f'v_mul_u32_u24 {v(sg)}, {s(S_T4)}, {v(sg)}')
I(f'v_lshl_add_u32 {v(sg)}, {v(c)}, 4, {v(sg)}')
I(f'v_add_u32 {v(sg)}, {s(S_CB)}, {v(sg)}')
I(f's_lshl_b32 {s(S_T3)}, {s(S_PITCH)}, 2')
I(f'v_mad_u32_u24 {v(V_DMA)}, {v(hf)}, {s(S_T3)}, {v(sg)}')
I(f's_sub_u32 {s(S_T3)}, {s(S_PITCH)}, {RROW}')
for j in range(1, 4):
    I(f'v_add_u32 {v(V_DMA + j)}, {s(S_T3)}, {v(V_DMA + j - 1)}')
assert all((c_ * 205) >> 11 == c_ // 10 for c_ in range(32))
NPRE = opt('npre', 4)
I(f's_mul_i32 {s(S_M0B)}, {s(S_WAVE)}, {4 * RROW}')
I(f's_lshl_b32 {s(S_T3)}, {s(S_PITCH)}, 3')
I(f's_mul_i32 {s(S_SOFF)}, {s(S_WAVE)}, {s(S_T3)}')
I(f's_mul_i32 {s(S_T3)}, {s(S_KSTR)}, {NPRE}')
I(f's_add_u32 {s(S_SOFF)}, {s(S_SOFF)}, {s(S_T3)}')
if '--noD' in sys.argv:
    I(f's_mov_b32 {s(S_SOFF)}, {OOB // 2}')
I(f'v_lshrrev_b32 {v(LP)}, 2, {v(V_LANE)}')
I(f'v_mul_u32_u24 {v(V_TR0)}, {RROW}, {v(LP)}')
I(f'v_and_b32 {v(T)}, 3, {v(V_LANE)}')
I(f'v_lshl_add_u32 {v(V_TR0)}, {v(T)}, 3, {v(V_TR0)}')
I(f'v_add_u32 {v(V_TR1)}, {4 * SLOT}, {v(V_TR0)}')
I(f's_mul_i32 {s(S_HB)}, {s(S_WAVE)}, 3')
I(f's_min_u32 {s(S_HB)}, {s(S_HB)}, 7')
I(f's_add_u32 {s(S_HB)}, {s(S_HB)}, 5')
I(f's_lshl_b32 {s(S_T3)}, {s(S_HB)}, 5')
I(f'v_add_u32 {v(V_TRH0)}, {s(S_T3)}, {v(V_TR0)}')
I(f'v_add_u32 {v(V_TRH1)}, {s(S_T3)}, {v(V_TR1)}')
I(f'v_add_u32 {v(V_X)}, {HALO}, {v(V_L16)}')
V_AO = 250
I(f'v_bfe_u32 {v(T)}, {v(V_LANE)}, 2, 2')
I(f'v_lshlrev_b32 {v(V_AO)}, 8, {v(T)}')
I(f'v_lshrrev_b32 {v(T)}, 4, {v(V_LANE)}')
I(f'v_lshl_add_u32 {v(V_AO)}, {v(T)}, 6, {v(V_AO)}')
I(f'v_and_b32 {v(T)}, 3, {v(V_LANE)}')
I(f'v_lshl_add_u32 {v(V_AO)}, {v(T)}, 4, {v(V_AO)}')
I(f'v_add_u32 {v(V_AO + 1)}, 4096, {v(V_AO)}')
I(f's_lshl_b32 {s(S_MB0)}, {s(S_MT)}, 3')
I(f's_lshl_b32 {s(S_T3)}, {s(S_WAVE)}, 1')
I(f's_add_u32 {s(S_MB0)}, {s(S_MB0)}, {s(S_T3)}')
I(f's_mul_i32 {s(S_AO)}, {s(S_MB0)}, 20480')
if '--noA' in sys.argv:
    I(f's_mov_b32 {s(S_AO)}, {OOB // 2}')
for q in range(1, 10):
    I(f's_add_u32 {s(S_AO + q)}, {s(S_AO)}, {XN_T + 4096 * q}')
I(f'v_and_b32 {v(T)}, 15, {v(V_LANE)}')
I(f's_lshl_b32 {s(S_T3)}, {s(S_MT)}, {4 + FS}')
I(f's_add_u32 {s(S_T3)}, {s(S_T3)}, {LNF}')
I(f'v_lshl_add_u32 {v(V_PA)}, {v(T)}, {FS}, {s(S_T3)}')
I(f's_cmp_eq_u32 {s(S_TYPE)}, 0')
I(f's_cselect_b32 {s(S_T3)}, {2 << FS}, 0')
I(f's_cmp_eq_u32 {s(S_MT)}, 0')
I(f's_cselect_b32 {s(S_T3)}, 0, {s(S_T3)}')
I(f'v_subrev_u32 {v(T + 1)}, {s(S_T3)}, {v(V_PA)}')
I(f'v_lshrrev_b32 {v(T)}, 1, {v(V_LANE)}')
I(f'v_cmp_eq_u32 vcc, 8, {v(T)}')
I(f'v_cndmask_b32 {v(V_PA)}, {v(V_PA)}, {v(T + 1)}, vcc')
I(f's_mul_i32 {s(S_T3)}, {s(S_WAVE)}, 14')
I(f's_add_u32 {s(S_T4)}, {s(S_T3)}, 7')
I(f's_min_u32 {s(S_T4)}, {s(S_T4)}, 47')
I(f's_mul_i32 {s(S_T5)}, {s(S_NT)}, 5120')
I(f's_add_u32 {s(S_T5)}, {s(S_T5)}, {W_T + 20 * 40960}')
I(f's_mul_i32 {s(S_W2A)}, {s(S_T3)}, 40960')
I(f's_add_u32 {s(S_W2A)}, {s(S_W2A)}, {s(S_T5)}')
I(f's_mul_i32 {s(S_W2B)}, {s(S_T4)}, 40960')
I(f's_add_u32 {s(S_W2B)}, {s(S_W2B)}, {s(S_T5)}')
I(f's_lshr_b32 {s(S_T3)}, {s(S_M2)}, 1')
I(f's_lshl_b32 {s(S_T3)}, {s(S_T3)}, {4 + FS}')
I(f's_lshl_b32 {s(S_T4)}, {s(S_WAVE)}, {1 + FS}')
I(f's_add_u32 {s(S_T3)}, {s(S_T3)}, {s(S_T4)}')
I(f's_add_u32 {s(S_T3)}, {s(S_T3)}, {P1H + (8 << FS)}')
I(f'v_and_b32 {v(T)}, 1, {v(V_LANE)}')
I(f'v_lshl_add_u32 {v(V_PF)}, {v(T)}, {FS}, {s(S_T3)}')

I(f's_mov_b32 {s(54)}, {OOB}')
I(f's_cmp_lt_u32 {s(S_WAVE)}, 2')
I('s_cbranch_scc1 L_pro_join')

RT_A, RT_B, RT_K0, RT_SCR, VW_M0, VW_SO = 46, 47, 48, 49, 50, 52
TLBW = opt('tlbw', 0)
if TLBW:
    I(f'v_lshlrev_b32 {v(T + 20)}, {TLBW}, {v(V_LANE)}')
    I(f'buffer_load_dword {v(T + 21)}, {v(T + 20)}, {s(SRD_WS, 4)}, 0 offen')
    I(f'buffer_load_dword {v(T + 22)}, {v(T + 20)}, {s(SRD_B, 4)}, 0 offen')
    I(f'buffer_load_dword {v(T + 23)}, {v(T + 20)}, {s(SRD_X, 4)}, 0 offen')
I(f's_cmp_lt_u32 {s(S_T1)}, 20')
csel(RT_A, 8 * 1280, 4 * 1280)
csel(RT_B, 4 * 1280, 16 * 1280)
I(f's_cselect_b32 {s(RT_K0)}, 0, 20')
I(f's_sub_u32 {s(RT_K0)}, {s(S_T1)}, {s(RT_K0)}')
I(f's_mul_i32 {s(RT_K0)}, {s(RT_K0)}, {32 * 1280}')
I(f's_lshl_b32 {s(S_T3)}, {s(S_T2)}, 8')
I(f's_add_u32 {s(RT_K0)}, {s(RT_K0)}, {s(S_T3)}')
I(f's_and_b32 {s(S_T3)}, {s(S_WAVE)}, 1')
I(f's_mul_i32 {s(VW_M0)}, {s(S_T3)}, {8 * RROW}')
I(f's_add_u32 {s(RT_SCR)}, {s(VW_M0)}, {7 * SLOT}')
I(f's_add_u32 {s(VW_M0 + 1)}, {s(VW_M0)}, {4 * RROW}')
I(f's_lshl_b32 {s(S_T4)}, {s(S_PITCH)}, 4')
I(f's_mul_i32 {s(VW_SO)}, {s(S_T3)}, {s(S_T4)}')
I(f's_lshl_b32 {s(S_T4)}, {s(S_PITCH)}, 3')
I(f's_add_u32 {s(VW_SO + 1)}, {s(VW_SO)}, {s(S_T4)}')
RTV, RTL = T + 8, T + 9
I(f'v_lshrrev_b32 {v(RTV)}, 4, {v(V_LANE)}')
I(f'v_mul_u32_u24 {v(RTV)}, 1280, {v(RTV)}')
I(f'v_and_b32 {v(T)}, 15, {v(V_LANE)}')
I(f'v_lshl_add_u32 {v(RTV)}, {v(T)}, 4, {v(RTV)}')
I(f'v_lshlrev_b32 {v(RTL)}, 8, {v(LP)}')
I(f'v_and_b32 {v(T)}, 3, {v(V_LANE)}')
I(f'v_lshl_add_u32 {v(RTL)}, {v(T)}, 3, {v(RTL)}')
I(f'v_add_u32 {v(RTL)}, {s(RT_SCR)}, {v(RTL)}')
stamp(2, 2)
for t in range(0 if '--nort' in sys.argv else 8):
    hf_, g = t >> 2, t & 3
    I(f's_mul_i32 {s(S_T3)}, {s(RT_A)}, {g}')
    I(f's_add_u32 {s(S_T3)}, {s(S_T3)}, {s(RT_K0)}')
    if hf_:
        I(f's_add_u32 {s(S_T3)}, {s(S_T3)}, {s(RT_B)}')
    I(f's_add_u32 m0, {s(RT_SCR)}, {1024 * t}')
    I(f'buffer_load_dwordx4 {v(RTV)}, {s(SRD_RT, 4)}, {s(S_T3)} offen lds', tag='rt')
I(f's_mul_i32 {s(S_T3)}, {s(S_T1)}, 40960')
I(f's_lshl_b32 {s(S_T4)}, {s(S_T2)}, 13')
I(f's_add_u32 {s(S_T3)}, {s(S_T3)}, {s(S_T4)}')
I(f's_add_u32 {s(S_T3)}, {s(S_T3)}, {W_T}')
I(f's_cmp_lt_u32 {s(S_T1)}, 74')
I(f's_cselect_b32 {s(S_T3)}, {s(S_T3)}, {OOB}')
k.wait_vm_tag('pf')
GATE = opt('gate', 1)
if GATE:
    I(f'v_mov_b32 {v(T + 1)}, {CNT}')
    k.label('L_gate')
    I(f'ds_read_b32 {v(T)}, {v(T + 1)} offset:{0 if GATE == 1 else 8}')
    I(f'v_readfirstlane_b32 {s(S_T4)}, {v(T)}')
    I(f's_cmp_ge_u32 {s(S_T4)}, 2')
    I('s_cbranch_scc0 L_gate')
stamp(3, 2)
for sl in range(NPRE):
    for h in range(2):
        I(f's_add_u32 m0, {s(VW_M0 + h)}, {sl * SLOT}')
        for j in range(4):
            dma1(j, VW_SO + h, ('ring', sl))
        I(f's_add_u32 {s(VW_SO + h)}, {s(VW_SO + h)}, {s(S_KSTR)}')
    if sl >= 1:
        k.wait_vm_tag(('ring', sl - 1))
    if sl == 1:
        stamp(4, 2)
        RF = ACC
        for nb in range(8):
            I(f'ds_read_b64_tr_b16 {v(RF + 4 * nb, 2)}, {v(RTL)} offset:{32 * nb}')
            I(f'ds_read_b64_tr_b16 {v(RF + 4 * nb + 2, 2)}, {v(RTL)} offset:{32 * nb + 4096}')
RTLATE = opt('rtlate', 0)
RT_DST = 54


def rt_stores():
    for nb in range(8):
        I(f'buffer_store_dwordx4 {v(RF + 4 * nb, 4)}, {v(V_L16 if nb < 4 else V_L16B)}, {s(SRD_WS, 4)}, {s(RT_DST)} offen offset:{1024 * (nb & 3)} sc1', tag='rts')


I(f's_mov_b32 {s(RT_DST)}, {s(S_T3)}')
if not RTLATE:
    rt_stores()
k.wait_vm_tag(('ring', NPRE - 1))
stamp(5, 2)
stamp(1)
k.wait_all(vm=False, lg=True)

k.label('L_pro_join')
k.vmq = [(regs_of(v(BIAS, 2)), 'pf')]
k.lgq = []
I('s_nop 4')
I(f's_mul_i32 {s(S_WOB)}, {s(S_WAVE)}, 40960')
I(f's_mul_i32 {s(S_T3)}, {s(S_NT)}, 5120')
I(f's_add_u32 {s(S_WOB)}, {s(S_WOB)}, {s(S_T3)}')
I(f's_add_u32 {s(S_WOB)}, {s(S_WOB)}, {W_T}')
I(f's_mul_i32 {s(S_WOM)}, {s(S_WAVE)}, {5 * 1024}')
if '--noW' in sys.argv:
    for r_ in (S_W2A, S_W2B, S_WOB):
        I(f's_mov_b32 {s(r_)}, {OOB // 2}')
I(f's_cmp_eq_u32 {s(S_WAVE)}, 3')
I(f's_cselect_b32 {s(S_LAST)}, {OOB}, 0')
I(f's_cmp_eq_u32 {s(S_TYPE)}, 1')
I('s_cbranch_scc1 L_ffn')
st_join = k.state()


def ln_wait():
    lab = k.newlabel('L_lnw')
    I(f's_cmp_eq_u32 {s(S_WAVE)}, 0')
    I(f's_cbranch_scc0 {lab}')
    st_ = k.state()
    stamp(6, 2)
    poll(V_PA, 'ln')
    k.label(lab)
    k.set_state(st_)
    k.wait_all(vm=False, lg=True)
    stamp(7, 2)
    I('s_barrier')
    stamp(8, 2)


def wt_flag():
    I(f's_lshr_b32 {s(S_T3)}, {s(S_WG)}, 2')
    I(f's_lshl_b32 {s(S_T3)}, {s(S_T3)}, {WS_}')
    I(f's_and_b32 {s(S_T4)}, {s(S_WG)}, 3')
    I(f's_lshl_b32 {s(S_T4)}, {s(S_T4)}, 2')
    I(f's_add_u32 {s(S_T3)}, {s(S_T3)}, {s(S_T4)}')
    I(f's_add_u32 {s(S_T3)}, {s(S_T3)}, {WTF}')
    I(f's_cmp_eq_u32 {s(S_WAVE)}, 1')
    I(f's_cselect_b32 {s(S_T3)}, {s(S_T3)}, {OOB}')
    I(f'v_mov_b32 {v(T)}, {s(S_TAG)}')
    I(f'v_lshlrev_b32 {v(T + 1)}, 24, {v(V_LANE)}')
    I(f'buffer_store_dword {v(T)}, {v(T + 1)}, {s(SRD_WS, 4)}, {s(S_T3)} offen sc1')


def tag_fetch():
    I(f'v_mov_b32 {v(T + 1)}, {CNT}')
    I(f'ds_read_b32 {v(T)}, {v(T + 1)} offset:4')
    I(f'v_readfirstlane_b32 {s(S_TAG)}, {v(T)}')


AWN = 6


def areg_att(ks, rb):
    return a((28 + (ks % AWN) * 2 + rb) * 4, 4)


def areg_ffn(ks, rb):
    return a((ks * 2 + rb) * 4, 4)


def load_A(areg, ks, rb):
    I(f'buffer_load_dwordx4 {areg(ks, rb)}, {v(V_AO)}, {s(SRD_WS, 4)}, {s(S_AO + rb * 5 + ks // 4)} offen offset:{(ks & 3) * 1024} sc1')


def pre_loads():
    for ks in range(4):
        if ks >= NPRE:
            I(f's_add_u32 m0, {s(S_M0B)}, {ks * SLOT}')
            for j in range(4):
                dma1(j, S_SOFF, ('dma', ks))
            I(f's_add_u32 {s(S_SOFF)}, {s(S_SOFF)}, {s(S_KSTR)}')
        for rb in range(2):
            load_A(areg_att, ks, rb)


W2ORDER = list(range(40, 64)) + list(range(28))
NW2E = len(W2ORDER)
W2ALL = opt('w2all', 1)
NW2X = 69 if W2ALL else NW2E
WO_EARLY, WO_LATE = (0, 1, 2), (3, 4)
YSTEP = [(0, p) for p in range(4)] + [(1, p) for p in range(4)] + [(0, p) for p in range(4, 7)] + [(1, p) for p in range(4, 7)]


def w2reg(st, nb):
    f = st * 5 + nb
    if W2ALL:
        if f < NW2E:
            return a(4 * W2ORDER[f], 4)
        if f < 64:
            return a(4 * (28 + f - NW2E), 4)
        return v(W2V + 4 * (f - 64), 4) if f < 69 else a(4 * W2ORDER[0], 4)
    return a(4 * W2ORDER[f % NW2E], 4)


def w2load(f):
    st, nb = divmod(f, 5)
    ab, p = YSTEP[st]
    sb = S_W2B if ab else S_W2A
    if (ab, p) == (0, 5) and nb == 0:
        I(f's_add_u32 {s(sb)}, {s(sb)}, {s(S_LAST)}')
    I(f'buffer_load_dwordx4 {w2reg(st, nb)}, {v(V_L16 if nb < 4 else V_L16B)}, {s(SRD_WS, 4)}, {s(sb)} offen offset:{(nb & 3) * 1024} sc1')
    if nb == 4:
        I(f's_add_u32 {s(sb)}, {s(sb)}, 40960')


def wodma(i, nb):
    if nb == 0:
        I(f's_add_u32 {s(S_T5)}, {s(S_WOB)}, {i * 4 * 40960}')
    if nb == 0 or nb == 4:
        I(f's_add_u32 m0, {s(S_WOM)}, {LDS_WO + (i * 20 + (4 if nb == 4 else 0)) * 1024}')
    I(f'buffer_load_dwordx4 {v(V_L16 if nb < 4 else V_L16B)}, {s(SRD_WS, 4)}, {s(S_T5)} offen offset:{(nb & 3) * 1024} sc1 lds')


def cost(e):
    if e[0].startswith(('buffer_', 'global_', 'v_pk_') + TRANS):
        return 8
    return 4


def mainloop(steps, areg, aloads, first_c_zero, w2plan, dma_pre, extra_fill, at_sync):
    LA = 7
    halo = any(it[1] >= 100 for it in steps[0])
    items = [(t_, pos) + it for t_ in range(20) for pos, it in enumerate(steps[t_])]
    N = len(items)
    aux = [[] for _ in range(20)]
    for t_ in range(20):
        kn = t_ + 4
        al = [lambda kk=kk, rb=rb: load_A(areg, kk, rb) for kk in aloads[t_] for rb in range(2)]
        dm = []
        if NPRE <= kn < 20:
            for j in range(4):
                def f(j=j, kn=kn):
                    if j == 0:
                        dma_pre(kn)
                        I(f's_add_u32 m0, {s(S_M0B)}, {(kn % NSLOT) * SLOT}')
                    dma1(j, S_SOFF, ('dma', kn))
                    if j == 3:
                        I(f's_add_u32 {s(S_SOFF)}, {s(S_SOFF)}, {s(S_KSTR)}')
                dm.append(f)
        h_ = len(al) // 2
        aux[t_] = al[:h_] + dm[:2] + al[h_:] + dm[2:]
    WTK = opt('wtk', 12)
    assert WTK % 2 == 0
    aux[WTK - 3].append(lambda: chk_issue(V_PA, 4))
    WFK = opt('wfk', 4) if RTLATE else 2
    aux[WFK].insert(0, wt_flag)
    aux[0].append(lambda: I(f'buffer_load_dword {v(T + 3)}, {v(PFL)}, {s(SRD_B, 4)}, 0 offen'))

    def pf2b():
        I(f's_lshl_b32 {s(S_T3)}, {s(S_PITCH)}, 8')
        I(f'buffer_load_dword {v(T + 2)}, {v(PFL)}, {s(SRD_B, 4)}, {s(S_T3)} offen')
    aux[1].append(pf2b)
    f = 0
    for t_ in range(WTK, 20):
        for _ in range(w2plan(t_, f)):
            if f < NW2E:
                aux[t_].append(lambda f=f: w2load(f))
                f += 1
    w2done = f
    fill = []
    for t_ in range(20):
        mem = [e for fn in aux[t_] for e in k.record(fn)]
        oth = extra_fill(t_)
        mix, i, j = [], 0, 0
        while i < len(mem) or j < len(oth):
            if j >= len(oth) or (i < len(mem) and i * len(oth) <= j * len(mem)):
                mix.append(mem[i])
                i += 1
            else:
                mix.append(oth[j])
                j += 1
        fill.append(mix)

    def rd(n):
        t_, pos, ks, blk, off = items[n]
        sl = t_ % NSLOT
        w = WIN + 4 * (n % 8)
        if blk < 100:
            base = V_TR0 if sl < 4 else V_TR1
        else:
            base = V_TRH0 if sl < 4 else V_TRH1
        o = (sl % 4) * SLOT + off
        I(f'ds_read_b64_tr_b16 {v(w, 2)}, {v(base)} offset:{o}')
        I(f'ds_read_b64_tr_b16 {v(w + 2, 2)}, {v(base)} offset:{o + 512}')

    def sync(t_):
        if t_ + 1 >= NPRE:
            assert ('dma', t_ + 1) in k.seen_tags
            k.wait_vm_tag(('dma', t_ + 1))
        if t_ == WFK:
            k.wait_vm_tag('rts')
        if t_ == WTK:
            lab = k.newlabel('L_wtw')
            k._need(regs_of(v(P4, 4)))
            I(f's_cmp_eq_u32 {s(S_WAVE)}, 0')
            I(f's_cbranch_scc0 {lab}')
            poll(V_PA, 'wt', 4, preissued=True, sleep=8)
            k.label(lab)
        at_sync(t_, 0)
        I('s_barrier')
        at_sync(t_, 1)

    def hxread(ks):
        I(f'ds_read_b128 {v(HX + 4 * (ks & 1), 4)}, {v(V_X)} offset:{ks * 1024}')

    k.seen_tags = {('dma', 3)}
    if halo:
        hxread(0)
        for ks in range(19):
            fill[ks] = fill[ks][:2] + k.record(lambda: hxread(ks + 1)) + fill[ks][2:]
    for n in range(LA):
        rd(n)
    I(f's_cmp_eq_u32 {s(S_WAVE)}, 0')
    csel(S_T3, WTF, OOB)
    I(f'v_lshl_add_u32 {v(V_PA)}, {v(V_LANE)}, {WS_}, {s(S_T3)}')
    waited = -1
    prev_halo = False
    seen_blk = set()
    for n in range(N):
        t_, pos, ks, blk, off = items[n]
        NF = len(steps[t_])
        w = WIN + 4 * (n % 8)
        if pos == 0:
            q = list(fill[t_])
            ngaps = sum(1 for it in steps[t_] if it[1] < 100)
            tot = sum(cost(e) for e in q) + 4 * (NF // 2 + 1)
            budget = max(8, -(-tot // ngaps))
            budget2 = 0
            if budget > 12:
                budget = -(-(tot + 8 * ngaps) // (2 * ngaps))
                budget2 = budget - 8
            if t_ in (0, 1, 2, 4, 8, 12, 16, 18):
                stamp(1 + (0, 1, 2, 4, 8, 12, 16, 18).index(t_), 1)
        used = 8 if prev_halo else 0
        if n + LA < N and items[n + LA][1] == 0 and items[n + LA][0] >= 2 and items[n + LA][0] % 2 == 0:
            sync(items[n + LA][0])
            used += 8
        if waited < n:
            need = regs_of(v(w, 4))
            waited = n
            for m in (n + 1, n + 2):
                if m < N and (m == n + 1 or items[m - 1][3] >= 100):
                    need |= regs_of(v(WIN + 4 * (m % 8), 4))
                    waited = m
            for m in range(n, waited + 1):
                kk, bb = items[m][2], items[m][3]
                need |= (regs_of(areg(kk, 0)) | regs_of(areg(kk, 1))) if bb < 100 else regs_of(v(HX + 4 * (kk & 1), 4))
            k._need(need)
            used += 4
        while q and (used + cost(q[0]) <= budget + 2 or pos == NF - 1):
            used += cost(q[0])
            k.play(q.pop(0))
        first = blk not in seen_blk
        seen_blk.add(blk)
        if blk < 100:
            for rb in range(2):
                d = ACC + (blk * 2 + rb) * 4
                c_ = '0' if (first and first_c_zero) else v(d, 4)
                I(f'v_mfma_f32_16x16x32_bf16 {v(d, 4)}, {v(w, 4)}, {areg(ks, rb)}, {c_}')
                if rb == 0:
                    u2 = 0
                    if n + LA < N:
                        rd(n + LA)
                    else:
                        u2 = -8
                    while q and u2 + cost(q[0]) <= budget2 + 2:
                        u2 += cost(q[0])
                        k.play(q.pop(0))
        else:
            d = HACC + (blk - 100) * 4
            c_ = '0' if first else v(d, 4)
            I(f'v_mfma_f32_16x16x32_bf16 {v(d, 4)}, {v(w, 4)}, {v(HX + 4 * (ks & 1), 4)}, {c_}')
            if n + LA < N:
                rd(n + LA)
        prev_halo = blk >= 100
    return w2done


YACC = 16
SACC = 96
HW = 116
HWN = 5
XIN = 196
B2V = 206
T2 = 216
S_HO = 24
S_EARLY = 19
V_HE = V_TR0


def h_scalars():
    I(f's_mul_i32 {s(S_T3)}, {s(S_M2)}, {4 * ACT_MB}')
    I(f's_add_u32 {s(S_T3)}, {s(S_T3)}, {ACT_T + 20 * 1024}')
    I(f's_mul_i32 {s(S_T4)}, {s(S_WAVE)}, 14')
    I(f's_add_u32 {s(S_T5)}, {s(S_T4)}, 7')
    I(f's_min_u32 {s(S_T5)}, {s(S_T5)}, 47')
    for ab, r in ((0, S_T4), (1, S_T5)):
        I(f's_lshl_b32 {s(r)}, {s(r)}, 10')
        I(f's_add_u32 {s(S_HO + 4 * ab)}, {s(S_T3)}, {s(r)}')
        for mb in range(1, 4):
            I(f's_add_u32 {s(S_HO + 4 * ab + mb)}, {s(S_HO + 4 * ab)}, {mb * ACT_MB}')


def hreg(st, mb):
    if W2ALL:
        return v(HW + 16 * (st % HWN) + 4 * mb, 4)
    if st < 3:
        return a((28 + 4 * st + mb) * 4, 4)
    if st == 3:
        return v(W2V + 4 * mb, 4)
    return v(HW + 16 * ((st - 4) % HWN) + 4 * mb, 4)


def hload(st, mb, early=False):
    ab, p = YSTEP[st]
    so = S_HO + 4 * ab + mb
    if (ab, p) == (0, 5):
        I(f's_add_u32 {s(so)}, {s(so)}, {s(S_LAST)}')
    va = V_HE if early else (V_L16 if p < 4 else V_L16B)
    I(f'buffer_load_dwordx4 {hreg(st, mb)}, {v(va)}, {s(SRD_WS, 4)}, {s(so)} offen offset:{(p & 3) * 1024} sc1')


def early_eval():
    chk_eval()
    I(f's_cmp_eq_u64 vcc, 0')
    I(f's_cselect_b32 {s(S_EARLY)}, 1, 0')
    I(f's_cselect_b32 {s(S_T0)}, 0, {OOB}')
    I(f'v_add_u32 {v(V_HE)}, {s(S_T0)}, {v(V_L16)}')


def p1_flag():
    k.wait_all(vm=False, lg=True)
    I('s_barrier')
    lab = k.newlabel('L_np')
    I(f's_cmp_eq_u32 {s(S_WAVE)}, 0')
    I(f's_cbranch_scc0 {lab}')
    flag_store(P1F, S_FOFF, T2)
    k.label(lab)


I(f's_lshl_b32 {s(S_T3)}, {s(S_MT)}, 3')
I(f's_sub_u32 {s(S_T3)}, {s(S_T3)}, 1')
I(f's_mul_i32 {s(S_T3)}, {s(S_T3)}, 20480')
I(f's_mul_i32 {s(S_T4)}, {s(S_WAVE)}, 5120')
I(f's_add_u32 {s(S_T3)}, {s(S_T3)}, {s(S_T4)}')
I(f's_cmp_eq_u32 {s(S_MT)}, 0')
I(f's_cselect_b32 {s(S_T5)}, {OOB}, {s(S_T3)}')
I(f'v_add_u32 {v(T + 2)}, {s(S_T4)}, {v(V_X)}')
SA, SH, VA, VB, VO, K2M0, K2M1 = T + 28, T + 29, T + 30, T + 31, T + 32, T + 33, T + 34
tm, tg = T + 4, T + 5
prow(tm, tg, 15)
I(f'v_mul_u32_u24 {v(SH)}, {RS}, {v(tm)}')
I(f'v_lshrrev_b32 {v(tg)}, 4, {v(V_LANE)}')
I(f'v_lshl_add_u32 {v(SH)}, {v(tg)}, 3, {v(SH)}')
I(f's_mul_i32 {s(S_T3)}, {s(S_WAVE)}, {32 * RS}')
I(f's_add_u32 {s(S_T3)}, {s(S_T3)}, {STG + 16 * RS}')
I(f'v_add_u32 {v(SA)}, {s(S_T3)}, {v(SH)}')
I(f's_lshl_b32 {s(S_T3)}, {s(S_HB)}, 5')
I(f's_add_u32 {s(S_T3)}, {s(S_T3)}, {STG}')
I(f'v_add_u32 {v(SH)}, {s(S_T3)}, {v(SH)}')
I(f's_lshr_b32 {s(S_T3)}, {s(S_WAVE)}, 1')
I(f's_mul_i32 {s(S_T3)}, {s(S_T3)}, 80')
I(f's_and_b32 {s(S_T0)}, {s(S_WAVE)}, 1')
I(f's_mul_i32 {s(S_T0)}, {s(S_T0)}, {64 * RS}')
I(f's_add_u32 {s(S_T3)}, {s(S_T3)}, {s(S_T0)}')
I(f's_add_u32 {s(S_T3)}, {s(S_T3)}, {STG}')
prow(tm, tg, 63)
I(f'v_mul_u32_u24 {v(VA)}, {RS}, {v(tm)}')
I(f'v_add_u32 {v(VA)}, {s(S_T3)}, {v(VA)}')
I(f'v_and_b32 {v(VB)}, 0x30, {v(V_LANE)}')
I(f'v_bfe_u32 {v(tg)}, {v(V_LANE)}, 1, 1')
I(f'v_lshl_add_u32 {v(VB)}, {v(tg)}, 3, {v(VB)}')
I(f'v_and_b32 {v(tg)}, 1, {v(V_LANE)}')
I(f'v_add_u32 {v(VB)}, {v(VB)}, {v(tg)}')
I(f'v_bfe_u32 {v(tg)}, {v(V_LANE)}, 2, 2')
I(f'v_lshl_add_u32 {v(VB)}, {v(tg)}, 1, {v(VB)}')
I(f'v_mul_u32_u24 {v(VB)}, {RS}, {v(VB)}')
I(f'v_add_u32 {v(VB)}, {s(S_T3)}, {v(VB)}')
I(f'v_lshrrev_b32 {v(tg)}, 4, {v(V_LANE)}')
I(f'v_mul_u32_u24 {v(VO)}, {ACT_MB}, {v(tg)}')
I(f'v_and_b32 {v(tg)}, 15, {v(V_LANE)}')
I(f'v_lshl_add_u32 {v(VO)}, {v(tg)}, 4, {v(VO)}')
I(f'v_and_b32 {v(tg)}, 3, {v(V_LANE)}')
I(f'v_mov_b32 {v(tm)}, 0xffff')
I(f'v_cmp_le_u32 vcc, 1, {v(tg)}')
I(f'v_cndmask_b32 {v(K2M0)}, {v(tm)}, -1, vcc')
I(f'v_cmp_le_u32 vcc, 2, {v(tg)}')
I(f'v_cndmask_b32 {v(K2M1)}, 0, {v(tm)}, vcc')
I(f'v_cmp_le_u32 vcc, 3, {v(tg)}')
I(f'v_cndmask_b32 {v(K2M1)}, {v(K2M1)}, -1, vcc')
S_OB = 35
I(f's_lshl_b32 {s(S_OB)}, {s(S_MT)}, 1')
I(f's_and_b32 {s(S_T0)}, {s(S_WAVE)}, 1')
I(f's_add_u32 {s(S_OB)}, {s(S_OB)}, {s(S_T0)}')
I(f's_mul_i32 {s(S_OB)}, {s(S_OB)}, {4 * ACT_MB}')
I(f's_add_u32 {s(S_OB)}, {s(S_OB)}, {ACT_T}')
I(f's_mul_i32 {s(S_T3)}, {s(S_IDX)}, 2560')
I(f's_add_u32 {s(S_OB)}, {s(S_OB)}, {s(S_T3)}')
I(f's_lshr_b32 {s(S_T3)}, {s(S_WAVE)}, 1')
I(f's_mul_i32 {s(S_T3)}, {s(S_T3)}, 1280')
I(f's_add_u32 {s(S_OB)}, {s(S_OB)}, {s(S_T3)}')
I(f's_mov_b32 {s(S_T2)}, {s(S_T5)}')
h_scalars()
ln_wait()
stamp(2)
for i in range(5):
    I(f'buffer_load_dwordx4 {v(T + 8 + 4 * i, 4)}, {v(V_AO if i < 4 else V_AO + 1)}, {s(SRD_WS, 4)}, {s(S_T2)} offen offset:{(i & 3) * 1024} sc1')
pre_loads()
if RTLATE:
    rt_stores()
tag_fetch()
for i in range(5):
    I(f'ds_write_b128 {v(T + 2)}, {v(T + 8 + 4 * i, 4)} offset:{i * 1024}')
k.wait_all(vm=False, lg=True)
I('s_barrier')
stamp(3)
att_order = [0, 1, 2, 3, 4, 100, 5, 6, 7, 8, 9, 101, 10, 11, 12, 13, 102, 14]
w2done = mainloop([[(ks, b, 32 * (b % 100)) for b in att_order] for ks in range(20)], areg_att,
                  [[ks + 4] if ks + 4 < 20 else [] for ks in range(20)], True,
                  lambda t_, f: opt('ra0', 2) if t_ < 16 else opt('ra1', 10), lambda kn: None,
                  lambda t_: [], lambda t_, ph: None)
stamp(4)
stamp(1, 4)
w2rest = [lambda f=f: w2load(f) for f in range(w2done, NW2X)]
PK = T + 8
n = 0
for blk in att_order:
    for rb in range(2 if blk < 100 else 1):
        d = ACC + (blk * 2 + rb) * 4 if blk < 100 else HACC + 4 * (blk - 100)
        p = PK + 2 * (n % 4)
        n += 1
        I(f'v_cvt_pk_bf16_f32 {v(p)}, {v(d)}, {v(d + 1)}')
        I(f'v_cvt_pk_bf16_f32 {v(p + 1)}, {v(d + 2)}, {v(d + 3)}')
        if blk < 100:
            I(f'ds_write_b64 {v(SA)}, {v(p, 2)} offset:{32 * blk + rb * 16 * RS}')
        else:
            I(f'ds_write_b64 {v(SH)}, {v(p, 2)} offset:{32 * (blk - 100)}')
        if w2rest and n % 2 == 0:
            w2rest.pop(0)()
M1, M2, M3, INV1, INV01, INV02, INV03, SC_HI, SC_SCALE, SC_L2E = 36, 38, 40, 42, 44, 46, 48, 50, 51, 52
for reg, pat in ((M1, 0xeeeeeeee), (M2, 0xcccccccc), (M3, 0x88888888)):
    I(f's_mov_b32 {s(reg)}, {hex(pat)}')
    I(f's_mov_b32 {s(reg + 1)}, {hex(pat)}')
stamp(2, 4)
k.wait_all(vm=False, lg=True)
I('s_barrier')
stamp(3, 4)
w2rest += [lambda i=i, nb=nb: wodma(i, nb) for i in WO_EARLY for nb in range(5)]
Q, Kr, Vr = 16, 36, 96
for i in range(5):
    I(f'ds_read_b128 {v(Q + 4 * i, 4)}, {v(VA)} offset:{16 * RS + 16 * i}')
    for kg in range(3):
        I(f'ds_read_b128 {v(Kr + 20 * kg + 4 * i, 4)}, {v(VA)} offset:{kg * 8 * RS + 160 + 16 * i}')
for reg, pat in ((INV1, 0xff), (INV01, 0x1111), (INV02, 0x3333), (INV03, 0x7777)):
    I(f's_mov_b64 {s(reg, 2)}, {hex(pat)}')
I(f's_mov_b32 {s(SC_HI)}, 0xffff0000')
I(f's_mov_b32 {s(SC_SCALE)}, {f32(20 ** -0.5)}')
I(f's_mov_b32 {s(SC_L2E)}, {f32(1.4426950408889634)}')
I(f's_and_b32 {s(S_T4)}, {s(S_WAVE)}, 1')
I(f's_or_b32 {s(S_T4)}, {s(S_T4)}, {s(S_MT)}')
NEG = T + 2
SREG = [T + 4, T + 16]
for hd in range(2):
    Sx = SREG[hd]
    for dc in range(5):
        for kg in range(3):
            c_ = '0' if dc == 0 else v(Sx + 4 * kg, 4)
            I(f'v_mfma_f32_4x4x4_16b_bf16 {v(Sx + 4 * kg, 4)}, {v(Kr + 20 * kg + 10 * hd + 2 * dc, 2)}, {v(Q + 10 * hd + 2 * dc, 2)}, {c_}')
            I(f'ds_read_b64_tr_b16 {v(Vr + 30 * hd + 2 * (kg * 5 + dc), 2)}, {v(VB)} offset:{kg * 8 * RS + 320 + 40 * hd + 8 * dc}')
            if kg == 2 and w2rest:
                w2rest.pop(0)()
stamp(4, 4)


def hk():
    if w2rest:
        w2rest.pop(0)()


OP = Q
for hd in range(2):
    Sx = SREG[hd]
    Lg = Sx + 4
    if hd == 1:
        while w2rest:
            hk()
        chk_issue(V_PF)
    for r, M in ((1, M1), (2, M2), (3, M3)):
        I(f'v_cndmask_b32 {v(Sx + 8 + r)}, {v(Sx + r)}, {v(Sx + 8 + r)}, {s(M, 2)}')
    P = Sx
    for i in range(4):
        I(f'v_cvt_pk_bf16_f32 {v(P + i)}, {v(Lg + 2 * i)}, {v(Lg + 2 * i + 1)}')
    hk()
    for i in range(4):
        I(f'v_lshlrev_b32 {v(Lg + 2 * i)}, 16, {v(P + i)}')
        I(f'v_and_b32 {v(Lg + 2 * i + 1)}, {s(SC_HI)}, {v(P + i)}')
    hk()
    for i in range(8):
        I(f'v_mul_f32 {v(Lg + i)}, {s(SC_SCALE)}, {v(Lg + i)}')
    hk()
    for i in range(4):
        I(f'v_cvt_pk_bf16_f32 {v(P + i)}, {v(Lg + 2 * i)}, {v(Lg + 2 * i + 1)}')
    for i in range(4):
        I(f'v_lshlrev_b32 {v(Lg + 2 * i)}, 16, {v(P + i)}')
        I(f'v_and_b32 {v(Lg + 2 * i + 1)}, {s(SC_HI)}, {v(P + i)}')
    hk()
    lab = k.newlabel('L_nomask')
    I(f's_cmp_eq_u32 {s(S_T4)}, 0')
    I(f's_cbranch_scc0 {lab}')
    I(f'v_mov_b32 {v(NEG)}, {f32(-1e9)}')
    for r in range(4):
        I(f'v_cndmask_b32 {v(Lg + r)}, {v(Lg + r)}, {v(NEG)}, {s(INV1, 2)}')
    for r, M in ((1, INV01), (2, INV02), (3, INV03)):
        I(f'v_cndmask_b32 {v(Lg + 4 + r)}, {v(Lg + 4 + r)}, {v(NEG)}, {s(M, 2)}')
    k.label(lab)
    mx = P
    I(f'v_max3_f32 {v(mx)}, {v(Lg)}, {v(Lg + 1)}, {v(Lg + 2)}')
    I(f'v_max3_f32 {v(mx + 1)}, {v(Lg + 3)}, {v(Lg + 4)}, {v(Lg + 5)}')
    I(f'v_max3_f32 {v(mx)}, {v(mx)}, {v(Lg + 6)}, {v(Lg + 7)}')
    I(f'v_max_f32 {v(mx)}, {v(mx)}, {v(mx + 1)}')
    I(f'v_mul_f32 {v(mx)}, {s(SC_L2E)}, {v(mx)}')
    hk()
    for i in range(8):
        I(f'v_fma_f32 {v(Lg + i)}, {v(Lg + i)}, {s(SC_L2E)}, -{v(mx)}')
    hk()
    for i in range(8):
        I(f'v_exp_f32 {v(Lg + i)}, {v(Lg + i)}')
    hk()
    for i in range(4):
        I(f'v_add_f32 {v(P + i)}, {v(Lg + 2 * i)}, {v(Lg + 2 * i + 1)}')
    I(f'v_add_f32 {v(P)}, {v(P)}, {v(P + 1)}')
    I(f'v_add_f32 {v(P + 2)}, {v(P + 2)}, {v(P + 3)}')
    I(f'v_add_f32 {v(P)}, {v(P)}, {v(P + 2)}')
    I(f'v_rcp_f32 {v(P)}, {v(P)}')
    if hd == 1:
        for i in range(10):
            I(f'v_cvt_pk_bf16_f32 {v(OP + i)}, {v(Kr + 8 + 2 * i)}, {v(Kr + 8 + 2 * i + 1)}')
        for i in range(2):
            I(f'buffer_store_dwordx4 {v(OP + 4 * i, 4)}, {v(VO)}, {s(SRD_WS, 4)}, {s(S_OB)} offen offset:{256 * i} sc1')
    hk()
    for i in range(8):
        I(f'v_mul_f32 {v(Lg + i)}, {v(Lg + i)}, {v(P)}')
    PB = Kr + 30 * hd
    I(f'v_cvt_pk_bf16_f32 {v(PB + 2)}, {v(Lg)}, {v(Lg + 1)}')
    I(f'v_cvt_pk_bf16_f32 {v(PB + 3)}, {v(Lg + 2)}, {v(Lg + 3)}')
    I(f'v_cvt_pk_bf16_f32 {v(PB)}, {v(Lg + 4)}, {v(Lg + 5)}')
    I(f'v_cvt_pk_bf16_f32 {v(PB + 1)}, {v(Lg + 6)}, {v(Lg + 7)}')
    I(f'v_and_b32 {v(PB + 4)}, {v(PB)}, {v(K2M0)}')
    I(f'v_and_b32 {v(PB + 5)}, {v(PB + 1)}, {v(K2M1)}')
    I(f'v_xor_b32 {v(PB)}, {v(PB)}, {v(PB + 4)}')
    I(f'v_xor_b32 {v(PB + 1)}, {v(PB + 1)}, {v(PB + 5)}')
    O = PB + 8
    for kg in (1, 2, 0):
        for dc in range(5):
            c_ = '0' if kg == 1 else v(O + 4 * dc, 4)
            I(f'v_mfma_f32_4x4x4_16b_bf16 {v(O + 4 * dc, 4)}, {v(Vr + 30 * hd + 2 * (kg * 5 + dc), 2)}, {v(PB + 2 * kg, 2)}, {c_}')
stamp(5, 4)
for i in range(10):
    I(f'v_cvt_pk_bf16_f32 {v(OP + 10 + i)}, {v(Kr + 38 + 2 * i)}, {v(Kr + 38 + 2 * i + 1)}')
    if i in (1, 5, 9):
        j = 2 + (i - 1) // 4
        I(f'buffer_store_dwordx4 {v(OP + 4 * j, 4)}, {v(VO)}, {s(SRD_WS, 4)}, {s(S_OB)} offen offset:{256 * j} sc1')
early_eval()
stamp(5)
I('s_branch L_phase2')

k.set_state(st_join)
k.label('L_ffn')
h_scalars()
ln_wait()
stamp(2)
pre_loads()
if RTLATE:
    rt_stores()
tag_fetch()
I(f's_lshl_b32 {s(S_T3)}, {s(S_WAVE)}, 9')
I(f's_add_u32 {s(S_T3)}, {s(S_T3)}, {HALO}')
I(f'v_lshl_add_u32 {v(T)}, {v(V_LANE)}, 3, {s(S_T3)}')
I(f'ds_write_b64 {v(T)}, {v(BIAS, 2)}')
I(f'v_lshrrev_b32 {v(T)}, 4, {v(V_LANE)}')
I(f'v_lshl_add_u32 {v(T)}, {v(T)}, 3, {s(S_T3)}')
for cb in range(14):
    I(f'ds_read_b64 {v(T + 8 + 2 * cb, 2)}, {v(T)} offset:{32 * cb}')
I(f's_mov_b32 {s(S_T4)}, 0xffff0000')
for cb in range(14):
    for rb in range(2):
        d = ACC + (cb * 2 + rb) * 4
        for h in range(2):
            I(f'v_lshlrev_b32 {v(d + 2 * h)}, 16, {v(T + 8 + 2 * cb + h)}')
            I(f'v_and_b32 {v(d + 2 * h + 1)}, {s(S_T4)}, {v(T + 8 + 2 * cb + h)}')
C0 = -2.0 * 0.7978845608028654 * 1.4426950408889634
C1 = C0 * 0.044715
GC0 = 128
GS1, S_HB2 = 46, 48
I(f'v_mov_b32 {v(GC0)}, {f32(C0)}')
I(f's_mov_b32 {s(GS1)}, {f32(C1)}')
I(f's_mul_i32 {s(S_HB2)}, {s(S_MB0)}, {ACT_MB}')
I(f's_lshl_b32 {s(S_T3)}, {s(S_START)}, 10')
I(f's_add_u32 {s(S_HB2)}, {s(S_HB2)}, {s(S_T3)}')
I(f's_add_u32 {s(S_HB2)}, {s(S_HB2)}, {ACT_T + 20 * 1024}')
I(f's_add_u32 {s(S_HB2 + 1)}, {s(S_HB2)}, {ACT_MB}')


def gelu_group(pr, rb, hook=None):
    n = pr * 2 + rb
    tmp = T + 4 + 8 * (n % 2)
    out = T + 20 + 4 * (n % 4)
    xs = [ACC + ((2 * pr + c2) * 2 + rb) * 4 + r for c2 in range(2) for r in range(4)]
    for i, x in enumerate(xs):
        I(f'v_mul_f32 {v(tmp + i)}, {v(x)}, {v(x)}')
    for i, x in enumerate(xs):
        I(f'v_fma_f32 {v(tmp + i)}, {v(tmp + i)}, {s(GS1)}, {v(GC0)}')
    if hook:
        hook()
    for i, x in enumerate(xs):
        I(f'v_mul_f32 {v(tmp + i)}, {v(tmp + i)}, {v(x)}')
    if hook:
        hook()
    for i in range(8):
        I(f'v_exp_f32 {v(tmp + i)}, {v(tmp + i)}')
    if hook:
        hook()
    for i in range(8):
        I(f'v_add_f32 {v(tmp + i)}, 1.0, {v(tmp + i)}')
    if hook:
        hook()
    for i in range(8):
        I(f'v_rcp_f32 {v(tmp + i)}, {v(tmp + i)}')
    if hook:
        hook()
    for i, x in enumerate(xs):
        I(f'v_mul_f32 {v(tmp + i)}, {v(tmp + i)}, {v(x)}')
    if hook:
        hook()
    for i in range(4):
        I(f'v_cvt_pk_bf16_f32 {v(out + i)}, {v(tmp + 2 * i)}, {v(tmp + 2 * i + 1)}')
    I(f'buffer_store_dwordx4 {v(out, 4)}, {v(V_L16 if pr < 4 else V_L16B)}, {s(SRD_WS, 4)}, {s(S_HB2 + rb)} offen offset:{(pr & 3) * 1024} sc1', tag=('h', pr))


stamp(3)
w2done = mainloop([[(ks, j, 32 * j) for j in range(14)] for ks in range(20)], areg_att,
                  [[ks + 4] if ks + 4 < 20 else [] for ks in range(20)], False,
                  lambda t_, f: opt('rf0', 3) if t_ < 16 else opt('rf1', 8), lambda kn: None, lambda t_: [], lambda t_, ph: None)
stamp(4)
stamp(1, 4)
I('s_barrier')
w2rest = [lambda f=f: w2load(f) for f in range(w2done, NW2X)]
w2rest += [lambda i=i, nb=nb: wodma(i, nb) for i in WO_EARLY for nb in range(5)]
w2rest = [x for fn in w2rest for x in (fn, None)]


def hook():
    if w2rest:
        fn = w2rest.pop(0)
        if fn:
            fn()


HSPLIT = 4
for pr in range(7):
    for rb in range(2):
        gelu_group(pr, rb, hook)
        if pr == HSPLIT and rb == 1:
            k.wait_vm_tag(('h', HSPLIT - 1))
            I('s_barrier')
            lab = k.newlabel('L_nh')
            I(f's_cmp_eq_u32 {s(S_WAVE)}, 0')
            I(f's_cbranch_scc0 {lab}')
            flag_store(P1H, S_FOFF, 224)
            k.label(lab)
        if pr == 6 and rb == 0:
            while w2rest:
                hook()
            chk_issue(V_PF)
early_eval()
stamp(5)

k.label('L_phase2')
k.vmq = [(set(), 'p1st')]
k.lgq = []
stamp(6)
HE = opt('he', 2)
for st in range(HE):
    for mb in range(4):
        hload(st, mb, True)
k.wait_vm_tag('p1st')
p1_flag()
lab = k.newlabel('L_haveh')
I(f's_cmp_eq_u32 {s(S_EARLY)}, 1')
I(f's_cbranch_scc1 {lab}')
k.wait_all()
poll(V_PF, 'ffn')
for st in range(HE):
    for mb in range(4):
        hload(st, mb)
k.label(lab)
for st in range(HE, 4):
    for mb in range(4):
        hload(st, mb)
stamp(7)


def p2_setup():
    global S_OBASE, S_OOK, S_HI, S_NL2E, VXO, VB2, VPA2, VRED2, VWO1, VWO2
    S_OBASE, S_OOK, S_HI, S_NL2E = 36, 39, 40, 41
    I(f's_lshl_b32 {s(S_T3)}, {s(S_M2)}, 2')
    I(f's_add_u32 {s(S_T3)}, {s(S_T3)}, {s(S_WAVE)}')
    I(f's_mul_i32 {s(S_OBASE)}, {s(S_T3)}, {ACT_MB}')
    I(f's_add_u32 {s(S_OBASE)}, {s(S_OBASE)}, {ACT_T + (OOB // 2 if "--noH" in sys.argv else 0)}')
    I(f's_mov_b32 {s(S_HI)}, 0xffff0000')
    I(f's_mov_b32 {s(S_NL2E)}, {f32(-1.4426950408889634)}')
    VXO, VB2, VPA2, VRED2, VWO1, VWO2 = T2 + 2, T2 + 3, T2 + 4, T2 + 5, T2 + 6, T2 + 7
    prow(VB2, VXO, 15)
    I(f's_lshl_b32 {s(S_T3)}, {s(S_T3)}, 4')
    I(f'v_add_u32 {v(VB2)}, {s(S_T3)}, {v(VB2)}')
    I(f'v_mul_u32_u24 {v(VXO)}, 1280, {v(VB2)}')
    I(f'v_lshrrev_b32 {v(VB2)}, 4, {v(V_LANE)}')
    I(f's_mul_i32 {s(S_T3)}, {s(S_NT)}, 160')
    I(f'v_lshl_add_u32 {v(VB2)}, {v(VB2)}, 3, {s(S_T3)}')
    I(f'v_add_u32 {v(VXO)}, {v(VXO)}, {v(VB2)}')
    I(f'v_subrev_u32 {v(V_PF)}, {P1H - P1F}, {v(V_PF)}')
    I(f's_lshr_b32 {s(S_T3)}, {s(S_M2)}, 1')
    I(f's_lshl_b32 {s(S_T3)}, {s(S_T3)}, {4 + FS}')
    I(f's_add_u32 {s(S_T3)}, {s(S_T3)}, {P1F}')
    I(f'v_and_b32 {v(VPA2)}, 7, {v(V_LANE)}')
    I(f'v_lshl_add_u32 {v(VPA2)}, {v(VPA2)}, {FS}, {s(S_T3)}')
    I(f's_mul_i32 {s(S_T3)}, {s(S_WAVE)}, {15 * 1024}')
    I(f'v_add_u32 {v(VWO1)}, {LDS_RED}, {v(V_L16)}')
    I(f'v_add_u32 {v(VRED2)}, {s(S_T3)}, {v(VWO1)}')
    I(f'v_add_u32 {v(VWO2)}, {LDS_WO + 65536}, {v(V_L16)}')


setup2 = k.record(p2_setup)


def oreg(ks):
    return a(4 * W2ORDER[20 + ks], 4)


def oload(ks):
    if ks % 8 == 0 and ks:
        I(f's_add_u32 {s(S_OBASE)}, {s(S_OBASE)}, 8192')
    I(f'buffer_load_dwordx4 {oreg(ks)}, {v(V_L16 if (ks & 7) < 4 else V_L16B)}, {s(SRD_WS, 4)}, {s(S_OBASE)} offen offset:{(ks & 3) * 1024} sc1')


R_ = k.record
fl = {st: [] for st in range(13)}
if W2ALL:
    fl[0] = R_(lambda: [hload(4, mb) for mb in range(4)]) + setup2
    fl[1] = R_(lambda: chk_issue(V_PF))
    fl[2] = R_(lambda: w2load(69))
    fl[4] = R_(lambda: [wodma(WO_LATE[0], nb) for nb in range(3)])
    fl[5] = R_(lambda: [wodma(WO_LATE[0], nb) for nb in range(3, 5)])
    fl[6] = R_(lambda: [wodma(WO_LATE[1], nb) for nb in range(3)])
    fl[7] = R_(lambda: [wodma(WO_LATE[1], nb) for nb in range(3, 5)]) + R_(lambda: chk_issue(VPA2))
else:
    fl[0] = R_(lambda: [hload(st, mb) for st in (4, 5) for mb in range(4)]) + setup2
    fl[1] = R_(lambda: chk_issue(V_PF)) + R_(lambda: [hload(st, mb) for st in (6, 7) for mb in range(4)])
    fl[2] = R_(lambda: [w2load(f) for f in range(NW2E, NW2E + 5)])
    fl[3] = R_(lambda: [hload(8, mb) for mb in range(4)]) + R_(lambda: [wodma(WO_LATE[0], nb) for nb in range(5)])
    fl[4] = R_(lambda: [w2load(f) for f in range(NW2E + 5, NW2E + 10)])
    fl[5] = R_(lambda: [wodma(WO_LATE[1], nb) for nb in range(5)])
    fl[6] = R_(lambda: [w2load(f) for f in range(NW2E + 10, NW2E + 14)])
    fl[7] = R_(lambda: [w2load(f) for f in range(NW2E + 14, 70)]) + R_(lambda: chk_issue(VPA2))
late = R_(lambda: [oload(ks) for ks in range(8)])
late += R_(lambda: [I(f'buffer_load_dwordx2 {v(B2V + 2 * nb, 2)}, {v(VB2)}, {s(SRD_B2, 4)}, 0 offen offset:{32 * nb}') for nb in range(5)])
late += R_(lambda: [oload(ks) for ks in range(8, 20)])
late += R_(lambda: [I(f'buffer_load_dwordx2 {v(XIN + 2 * nb, 2)}, {v(VXO)}, {s(SRD_X, 4)}, 0 offen offset:{32 * nb}') for nb in range(5)])
for i, st in enumerate(range(9, 13)):
    fl[st] = late[8 * i:8 * i + 8]
I(f's_mov_b32 {s(39)}, 1')
PUBST = opt('pubst', 3)
for st in range(13):
    if st in (0, 1, 3, 5, 8, 12):
        stamp(1 + (0, 1, 3, 5, 8, 12).index(st), 3)
    if st == 3:
        poll(V_PF, 'ffn2', preissued=True)
    if st == 9:
        poll(VPA2, 'att', preissued=True)
    q = fl[st]
    per = max(8, -(-sum(cost(e) for e in q) // 16))
    for mb in range(4):
        for nb in range(5):
            d = YACC + (mb * 5 + nb) * 4
            c_ = '0' if st == 0 else v(d, 4)
            I(f'v_mfma_f32_16x16x32_bf16 {v(d, 4)}, {w2reg(st, nb)}, {hreg(st, mb)}, {c_}')
            u = 0
            while q and nb < 4 and (u + cost(q[0]) <= per) and (nb % 2 == 0 or len(q) > 2 * (4 - mb)):
                u += cost(q[0])
                k.play(q.pop(0))
        if (W2ALL or 4 <= st) and st + HWN < 14:
            hload(st + HWN, mb)
    while q:
        k.play(q.pop(0))
labs = [k.newlabel('L_red') for _ in range(4)]
lend = k.newlabel('L_redend')
k._need(set().union(*[regs_of(hreg(13, mb)) for mb in range(4)] + [regs_of(w2reg(13, nb)) for nb in range(5)]))
stw = k.state()
YOWN = HW
for w in range(4):
    k.set_state(stw)
    if w:
        k.label(labs[w])
    if w < 3:
        I(f's_cmp_eq_u32 {s(S_WAVE)}, {w}')
        I(f's_cbranch_scc0 {labs[w + 1]}')
    wr = []
    for i in (1, 2, 3, 0):
        mb = (w + i) & 3
        for nb in range(5):
            d = YACC + (mb * 5 + nb) * 4
            dd = d if i else YOWN + 4 * nb
            I(f'v_mfma_f32_16x16x32_bf16 {v(dd, 4)}, {w2reg(13, nb)}, {hreg(13, mb)}, {v(d, 4)}')
            if len(wr) >= 4:
                I(wr.pop(0))
            if i:
                wr.append(f'ds_write_b128 {v(VWO1)}, {v(d, 4)} offset:{((mb * 3 + i - 1) * 5 + nb) * 1024}')
            elif wr and len(wr) < 4:
                I(wr.pop(0))
    while wr:
        I(wr.pop(0))
    if w < 3:
        I(f's_branch {lend}')
k.label(lend)
stamp(8)
stamp(7, 3)
k.wait_all(vm=False, lg=True)
I('s_barrier')
YT = HW + 20
for i in range(3):
    for nb in range(5):
        I(f'ds_read_b128 {v(YT + 20 * i + 4 * nb, 4)}, {v(VRED2)} offset:{(i * 5 + nb) * 1024}')
WOW = YACC
LA2 = 12


def woread(n):
    off = n * 1024
    if off < 65536:
        I(f'ds_read_b128 {v(WOW + 4 * (n % 16), 4)}, {v(V_L16)} offset:{off}')
    else:
        I(f'ds_read_b128 {v(WOW + 4 * (n % 16), 4)}, {v(VWO2)} offset:{off - 65536}')


for n in range(LA2):
    woread(n)
G1 = YT
valu = []
for i in range(3):
    for r in range(20):
        valu.append(f'v_add_f32 {v(YOWN + r)}, {v(YOWN + r)}, {v(YT + 20 * i + r)}')
seq = [
    lambda y, p, r: f'v_cvt_pk_bf16_f32 {v(p)}, {v(y)}, {v(y + 1)}',
    lambda y, p, r: f'v_lshlrev_b32 {v(y)}, 16, {v(p)}',
    lambda y, p, r: f'v_and_b32 {v(y + 1)}, {s(S_HI)}, {v(p)}',
    lambda y, p, r: f'v_lshlrev_b32 {v(p)}, 16, {v(B2V + r)}',
    lambda y, p, r: f'v_and_b32 {v(p + 1)}, {s(S_HI)}, {v(B2V + r)}',
    lambda y, p, r: f'v_add_f32 {v(y)}, {v(y)}, {v(p)}',
    lambda y, p, r: f'v_add_f32 {v(y + 1)}, {v(y + 1)}, {v(p + 1)}',
    lambda y, p, r: f'v_cvt_pk_bf16_f32 {v(p)}, {v(y)}, {v(y + 1)}',
    lambda y, p, r: f'v_lshlrev_b32 {v(y)}, 16, {v(p)}',
    lambda y, p, r: f'v_and_b32 {v(y + 1)}, {s(S_HI)}, {v(p)}',
    lambda y, p, r: f'v_mul_f32 {v(p)}, {s(S_NL2E)}, {v(y)}',
    lambda y, p, r: f'v_mul_f32 {v(p + 1)}, {s(S_NL2E)}, {v(y + 1)}',
    lambda y, p, r: f'v_exp_f32 {v(p)}, {v(p)}',
    lambda y, p, r: f'v_exp_f32 {v(p + 1)}, {v(p + 1)}',
    lambda y, p, r: f'v_add_f32 {v(p)}, 1.0, {v(p)}',
    lambda y, p, r: f'v_add_f32 {v(p + 1)}, 1.0, {v(p + 1)}',
    lambda y, p, r: f'v_rcp_f32 {v(p)}, {v(p)}',
    lambda y, p, r: f'v_rcp_f32 {v(p + 1)}, {v(p + 1)}',
    lambda y, p, r: f'v_mul_f32 {v(y)}, {v(y)}, {v(p)}',
    lambda y, p, r: f'v_mul_f32 {v(y + 1)}, {v(y + 1)}, {v(p + 1)}',
    lambda y, p, r: f'v_cvt_pk_bf16_f32 {v(p)}, {v(y)}, {v(y + 1)}',
    lambda y, p, r: f'v_lshlrev_b32 {v(y)}, 16, {v(p)}',
    lambda y, p, r: f'v_and_b32 {v(y + 1)}, {s(S_HI)}, {v(p)}',
    lambda y, p, r: f'v_lshlrev_b32 {v(p)}, 16, {v(XIN + r)}',
    lambda y, p, r: f'v_and_b32 {v(p + 1)}, {s(S_HI)}, {v(XIN + r)}',
]
for fn in seq:
    for r in range(10):
        valu.append(fn(YOWN + 2 * r, G1 + 2 * r, r))
nv = len(valu)
stamp(8, 3)
vi = 0
for n in range(100):
    ks, nb = divmod(n, 5)
    d = SACC + 4 * nb
    c_ = '0' if ks == 0 else v(d, 4)
    if n % 2 == 0:
        k._need(regs_of(v(WOW + 4 * (n % 16), 8)))
    I(f'v_mfma_f32_16x16x32_bf16 {v(d, 4)}, {v(WOW + 4 * (n % 16), 4)}, {oreg(ks)}, {c_}')
    if n + LA2 < 100:
        woread(n + LA2)
    while vi < nv and vi * 100 < (n + 1) * nv:
        I(valu[vi])
        vi += 1
PT = YT + 20
seq = [
    lambda sx, y, p, r: f'v_cvt_pk_bf16_f32 {v(p)}, {v(sx)}, {v(sx + 1)}',
    lambda sx, y, p, r: f'v_lshlrev_b32 {v(sx)}, 16, {v(p)}',
    lambda sx, y, p, r: f'v_and_b32 {v(sx + 1)}, {s(S_HI)}, {v(p)}',
    lambda sx, y, p, r: f'v_mul_f32 {v(sx)}, {v(sx)}, {v(y)}',
    lambda sx, y, p, r: f'v_mul_f32 {v(sx + 1)}, {v(sx + 1)}, {v(y + 1)}',
    lambda sx, y, p, r: f'v_cvt_pk_bf16_f32 {v(p)}, {v(sx)}, {v(sx + 1)}',
    lambda sx, y, p, r: f'v_lshlrev_b32 {v(sx)}, 16, {v(p)}',
    lambda sx, y, p, r: f'v_and_b32 {v(sx + 1)}, {s(S_HI)}, {v(p)}',
    lambda sx, y, p, r: f'v_add_f32 {v(sx)}, {v(sx)}, {v(G1 + 2 * r)}',
    lambda sx, y, p, r: f'v_add_f32 {v(sx + 1)}, {v(sx + 1)}, {v(G1 + 2 * r + 1)}',
    lambda sx, y, p, r: f'v_cvt_pk_bf16_f32 {v(XIN + r)}, {v(sx)}, {v(sx + 1)}',
]
for nb in range(5):
    for fn in seq:
        for r in (2 * nb, 2 * nb + 1):
            I(fn(SACC + 2 * r, YOWN + 2 * r, PT + r, r))
    I(f'buffer_store_dwordx2 {v(XIN + 2 * nb, 2)}, {v(VXO)}, {s(SRD_OUT, 4)}, 0 offen offset:{32 * nb}' + (' sc1' if '--outsc1' in sys.argv else '') + (' nt' if '--outnt' in sys.argv else ''))
ECHO = opt('echo', -1)
if ECHO >= 0:
    stamp(9, -1)
    k.wait_all()
    I(f's_sub_u32 {s(S_T3)}, {s(S_STAMP + 2 * ECHO)}, {s(S_STAMP)}')
    I(f's_min_u32 {s(S_T3)}, {s(S_T3)}, 10000')
    k.label('L_echo')
    I(f's_memrealtime {s(S_T4, 2)}')
    k.wait_all()
    I(f's_sub_u32 {s(S_T4)}, {s(S_T4)}, {s(S_STAMP + 18)}')
    I(f's_cmp_lt_u32 {s(S_T4)}, {s(S_T3)}')
    I('s_cbranch_scc1 L_echo')
elif STAMPS:
    stamp(9, -1)
    k.wait_all()
    I(f's_lshl_b32 {s(S_T3)}, {s(S_WG)}, 8')
    I(f's_lshl_b32 {s(S_T4)}, {s(S_WAVE)}, 6')
    I(f's_add_u32 {s(S_T3)}, {s(S_T3)}, {s(S_T4)}')
    I(f's_add_u32 {s(S_T3)}, {s(S_T3)}, {STAMP_OFF}')
    I(f'v_mov_b32 {v(T2)}, 0')
    I('s_mov_b64 exec, 1')
    for i in range(10):
        I(f'v_mov_b32 {v(T2 + 1)}, {s(S_STAMP + 2 * i)}')
        I(f'buffer_store_dword {v(T2 + 1)}, {v(T2)}, {s(SRD_WS, 4)}, {s(S_T3)} offen offset:{4 * i}')
    I(f'v_mov_b32 {v(T2 + 1)}, {s(S_EARLY)}')
    I(f'buffer_store_dword {v(T2 + 1)}, {v(T2)}, {s(SRD_WS, 4)}, {s(S_T3)} offen offset:52')
    I(f'v_mov_b32 {v(T2 + 1)}, {s(S_OOK)}')
    I(f'buffer_store_dword {v(T2 + 1)}, {v(T2)}, {s(SRD_WS, 4)}, {s(S_T3)} offen offset:56')
    I(f'v_mov_b32 {v(T2 + 1)}, {s(S_TYPE)}')
    I(f'buffer_store_dword {v(T2 + 1)}, {v(T2)}, {s(SRD_WS, 4)}, {s(S_T3)} offen offset:60')
if '--padx' in sys.argv:
    for i in range(2048):
        I(f'v_add3_u32 {v(16 + i % 8)}, {v(16 + i % 8)}, v2, v3')
if '--pady' in sys.argv:
    I(f's_mov_b32 {s(S_T3)}, 0')
    k.label('L_pady')
    for i in range(64):
        I(f'v_add3_u32 {v(16 + i % 8)}, {v(16 + i % 8)}, v2, v3')
    I(f's_add_u32 {s(S_T3)}, {s(S_T3)}, 1')
    I(f's_cmp_lt_u32 {s(S_T3)}, 32')
    I('s_cbranch_scc1 L_pady')
k.label('L_end')
I('s_endpgm')

hdr = open('recurrent_scan__sliding_local_dilated__dense_activation_gelu__prompt.s.ref').read().split('\n')
head = [l for l in hdr if l.startswith(';') and '@launch' not in l and 'Override' not in l and 'grid=ceil' not in l]
print('\n'.join(head))
print(f'; @launch grid=(256,1,1) block=(256,1,1) lds={LDS_TOTAL}')
print(f'''.amdgcn_target "amdgcn-amd-amdhsa--gfx950"
.text
.globl {KNAME}
.p2align 8
.type {KNAME},@function
{KNAME}:''')
print(k.text())
print(f'''.section .rodata,"a"
.p2align 6
.amdhsa_kernel {KNAME}
  .amdhsa_next_free_vgpr 512
  .amdhsa_next_free_sgpr 102
  .amdhsa_accum_offset 256
  .amdhsa_group_segment_fixed_size 0
  .amdhsa_kernarg_size 88
  .amdhsa_user_sgpr_count 2
  .amdhsa_user_sgpr_kernarg_segment_ptr 1
  .amdhsa_system_sgpr_workgroup_id_x 1
  .amdhsa_float_denorm_mode_32 3
.end_amdhsa_kernel''')
```

```python
import sys, struct
from asmlib import *

KNAME = 'recurrent_scan__sliding_local_dilated__dense_activation_gelu__prompt_kernel'
STAMPS = '--stamps' in sys.argv


def opt(name, default):
    for x in sys.argv:
        if x.startswith(f'--{name}='):
            return int(x.split('=')[1])
    return default


SMODE = opt('smode', 0)

XN_T = 0
ACT_T = 128 * 20 * 1024
ACT_MB = 74 * 1024
W_T = ACT_T + 128 * ACT_MB
FS = opt('fs', 6)
WS_ = opt('ws', 6)
LNF = W_T + 74 * 40 * 1024
P1F = LNF + (256 << FS)
P1H = P1F + (256 << FS)
WTF = P1H + (256 << FS)
WS_USED = LNF + (1024 << 7)
STAMP_OFF = WS_USED
WS_REC = WS_USED + (256 * 4 * 64 if STAMPS else 0)
OOB = 0x40000000

RROW = 1056
SLOT = 16 * RROW
NSLOT = 8
HALO = NSLOT * SLOT
CNT = HALO + 20 * 1024
RS = 496
STG = 4 * SLOT
LDS_WO = 0
LDS_RED = 100 * 1024
LDS_TOTAL = 163840


def f32(x):
    return '0x%08x' % struct.unpack('<I', struct.pack('<f', x))[0]


S_WG, S_FOFF = 2, 3
SRD_X, SRD_B, SRD_WS, SRD_DBG, SRD_OUT, SRD_RT, SRD_B1, SRD_B2 = 4, 8, 12, 16, 20, 24, 28, 56
P_X, P_WQKV, P_WO, P_BX, P_W1, P_B1, P_W2, P_B2, P_OUT, P_DBG, P_WS = 32, 34, 36, 38, 40, 42, 44, 46, 48, 50, 52
S_WAVE, S_MT, S_TYPE, S_IDX, S_FB, S_PITCH, S_KSTR, S_START = 60, 61, 62, 63, 64, 65, 66, 67
S_T0, S_T1, S_T2, S_T3, S_T4, S_T5 = 68, 69, 70, 71, 72, 73
S_M0B, S_SOFF, S_M2, S_NT, S_SPIN, S_TAG = 74, 75, 76, 77, 78, 79
S_STAMP = 80
S_W2A, S_W2B = 100, 101
S_WOB, S_WOM, S_LAST = 16, 17, 18
S_HB, S_MB0 = 32, 33
S_AO = 36

V_LANE = 1
V_DMA = 2
V_TR0, V_TR1 = 6, 7
V_TRH0, V_TRH1 = 8, 9
V_L16 = 10
V_L16B = 11
V_PA = 12
V_POLL = 13
V_X = 14
V_PF = 15
ACC = 16
HACC = 136
WIN = 148
HX = 180
T = 188
BIAS = 226
W2V = 228
P4 = 252

k = K()
I = k.I


def stamp(idx, mode=0):
    if STAMPS and (mode == SMODE or mode == -1):
        I(f'{"s_memtime" if "--cyc" in sys.argv else "s_memrealtime"} {s(S_STAMP + 2 * idx, 2)}')


def srd(base, plo, nbytes):
    I(f's_mov_b32 {s(base)}, {s(plo)}')
    I(f's_mov_b32 {s(base + 1)}, {s(plo + 1)}')
    I(f's_mov_b32 {s(base + 2)}, {nbytes}')
    I(f's_mov_b32 {s(base + 3)}, 0x00020000')


def csel(dst, x, y):
    I(f's_mov_b32 {s(dst)}, {y}')
    I(f's_cselect_b32 {s(dst)}, {x}, {s(dst)}')


def chk_issue(addrv, n=1):
    if n == 1:
        I(f'buffer_load_dword {v(V_POLL)}, {v(addrv)}, {s(SRD_WS, 4)}, 0 offen sc1')
    else:
        I(f'buffer_load_dwordx4 {v(P4, 4)}, {v(addrv)}, {s(SRD_WS, 4)}, 0 offen sc1')


def chk_eval(n=1):
    if n == 1:
        I(f'v_cmp_ne_u32 vcc, {s(S_TAG)}, {v(V_POLL)}')
    else:
        for i in range(4):
            I(f'v_xor_b32 {v(P4 + i)}, {s(S_TAG)}, {v(P4 + i)}')
        I(f'v_or3_b32 {v(P4)}, {v(P4)}, {v(P4 + 1)}, {v(P4 + 2)}')
        I(f'v_or_b32 {v(P4)}, {v(P4)}, {v(P4 + 3)}')
        I(f'v_cmp_ne_u32 vcc, 0, {v(P4)}')


def poll(addrv, name, n=1, preissued=False, sleep=1):
    lab = k.newlabel('L_poll_' + name)
    done = k.newlabel('L_polled_' + name)
    if not preissued:
        chk_issue(addrv, n)
    chk_eval(n)
    I(f's_mov_b32 {s(S_SPIN)}, 0')
    I(f's_cbranch_vccz {done}')
    st = k.state()
    k.label(lab)
    I(f's_sleep {sleep}')
    chk_issue(addrv, n)
    k.wait_all(vm=True, lg=False)
    chk_eval(n)
    I(f's_add_u32 {s(S_SPIN)}, {s(S_SPIN)}, 1')
    I(f's_cbranch_vccz {done}')
    I(f's_cmp_lt_u32 {s(S_SPIN)}, 0x40000')
    I(f's_cbranch_scc1 {lab}')
    k.label(done)
    k.set_state(st)


def flag_store(base, offs, t0):
    I(f'v_mov_b32 {v(t0)}, {s(S_TAG)}')
    I(f'v_mov_b32 {v(t0 + 1)}, {base}')
    I('s_mov_b64 exec, 1')
    I(f'buffer_store_dword {v(t0)}, {v(t0 + 1)}, {s(SRD_WS, 4)}, {s(offs)} offen sc1')
    I('s_mov_b64 exec, -1')
    k.vmq.pop()


def dma1(j, soff_reg, tag):
    I(f'buffer_load_dwordx4 {v(V_DMA + j)}, {s(SRD_B, 4)}, {s(soff_reg)} offen offset:{j * RROW} lds', tag=tag)


def bf16r(dst, src):
    I(f'v_cvt_pk_bf16_f32 {v(dst)}, {v(src)}, {v(src)}')
    I(f'v_lshlrev_b32 {v(dst)}, 16, {v(dst)}')


def prow(dst, tmp, mask):
    I(f'v_and_b32 {v(dst)}, {mask & ~7}, {v(V_LANE)}')
    I(f'v_bfe_u32 {v(tmp)}, {v(V_LANE)}, 2, 1')
    I(f'v_add_u32 {v(dst)}, {v(dst)}, {v(tmp)}')
    I(f'v_and_b32 {v(tmp)}, 3, {v(V_LANE)}')
    I(f'v_lshl_add_u32 {v(dst)}, {v(tmp)}, 1, {v(dst)}')


def row_sum(r, t1):
    for sh in (4, 8):
        I(f'v_add_f32_dpp {v(r)}, {v(r)}, {v(r)} row_ror:{sh} row_mask:0xf bank_mask:0xf')
    for op in ('v_permlane16_swap_b32', 'v_permlane32_swap_b32'):
        I(f'v_mov_b32 {v(t1)}, {v(r)}')
        I(f'{op} {v(r)}, {v(t1)}')
        I(f'v_add_f32 {v(r)}, {v(r)}, {v(t1)}')


I(f's_cmp_ge_u32 {s(S_WG)}, 256')
I('s_cbranch_scc1 L_end')
I(f's_load_dwordx16 {s(32, 16)}, s[0:1], 0')
I(f's_load_dwordx4 {s(48, 4)}, s[0:1], 64')
I(f's_load_dwordx2 {s(52, 2)}, s[0:1], 80')
stamp(0, -1)
I(f'v_lshrrev_b32 {v(T)}, 6, v0')
I(f'v_and_b32 {v(V_LANE)}, 63, v0')
I(f'v_readfirstlane_b32 {s(S_WAVE)}, {v(T)}')
I(f'v_mov_b32 {v(T + 2)}, 0')
I(f'v_mov_b32 {v(T + 3)}, 0')
I(f'v_mov_b32 {v(T + 1)}, {CNT}')
I(f'ds_write_b64 {v(T + 1)}, {v(T + 2, 2)}')
I(f'ds_write_b64 {v(T + 1)}, {v(T + 2, 2)} offset:8')
I(f's_cmp_lt_u32 {s(S_WAVE)}, 2')
I('s_cbranch_scc1 L_nocp')
CPV = T + 35
I(f's_getpc_b64 {s(S_TAG - 1, 2)}')
k.label('L_pc')
I(f's_lshr_b32 {s(S_T3)}, {s(S_WG)}, 2')
I(f's_and_b32 {s(S_T3)}, {s(S_T3)}, 6')
I(f's_and_b32 {s(S_T4)}, {s(S_WAVE)}, 1')
I(f's_add_u32 {s(S_T3)}, {s(S_T3)}, {s(S_T4)}')
I(f's_lshl_b32 {s(S_T3)}, {s(S_T3)}, 13')
I(f'v_lshl_add_u32 {v(CPV)}, {v(V_LANE)}, 7, {s(S_T3)}')
I(f'v_min_u32 {v(CPV)}, L_end-L_pc, {v(CPV)}')
I(f'global_load_dword {v(T + 17)}, {v(CPV)}, {s(S_TAG - 1, 2)}')
k.vmq.pop()
k.label('L_nocp')
I(f's_and_b32 {s(S_T0)}, {s(S_WG)}, 7')
I(f's_lshr_b32 {s(S_T1)}, {s(S_WG)}, 3')
I(f's_and_b32 {s(S_MT)}, {s(S_T0)}, 1')
I(f's_lshl_b32 {s(S_MT)}, {s(S_MT)}, 3')
I(f's_and_b32 {s(S_T2)}, {s(S_T1)}, 7')
I(f's_add_u32 {s(S_MT)}, {s(S_MT)}, {s(S_T2)}')
I(f's_lshr_b32 {s(S_T2)}, {s(S_T1)}, 3')
I(f's_and_b32 {s(S_TYPE)}, {s(S_T2)}, 1')
I(f's_lshr_b32 {s(S_T2)}, {s(S_T2)}, 1')
I(f's_and_b32 {s(S_IDX)}, {s(S_T0)}, 6')
I(f's_add_u32 {s(S_IDX)}, {s(S_IDX)}, {s(S_T2)}')
I(f's_lshl_b32 {s(S_FB)}, {s(S_MT)}, 4')
I(f's_lshl_b32 {s(S_T2)}, {s(S_TYPE)}, 3')
I(f's_add_u32 {s(S_FB)}, {s(S_FB)}, {s(S_T2)}')
I(f's_add_u32 {s(S_FB)}, {s(S_FB)}, {s(S_IDX)}')
I(f's_cmp_eq_u32 {s(S_TYPE)}, 0')
csel(S_PITCH, 3840, 3456)
LR, LP, LXA = T + 4, T + 5, T + 6
I(f'v_and_b32 {v(LR)}, 3, {v(V_LANE)}')
I(f'v_lshrrev_b32 {v(LP)}, 2, {v(V_LANE)}')
I(f's_lshl_b32 {s(S_T3)}, {s(S_FB)}, 3')
I(f's_add_u32 {s(S_T3)}, {s(S_T3)}, {s(S_WAVE)}')
I(f'v_lshl_add_u32 {v(LR)}, {v(LR)}, 1, {s(S_T3)}')
I(f'v_mul_u32_u24 {v(LXA)}, 1280, {v(LR)}')
I(f'v_lshl_add_u32 {v(LXA)}, {v(LP)}, 4, {v(LXA)}')
PFL = 0
I(f'v_and_b32 {v(T + 32)}, 15, {v(V_LANE)}')
I(f's_cmp_eq_u32 {s(S_TYPE)}, 0')
I(f's_cselect_b32 {s(S_T3)}, 8, 6')
I(f's_cselect_b32 {s(S_T4)}, {1280 - 384}, 0')
csel(S_M0B, 160, 448)
I(f'v_min_u32 {v(T + 32)}, {s(S_T3)}, {v(T + 32)}')
I(f'v_mul_u32_u24 {v(T + 33)}, 11, {v(T + 32)}')
I(f'v_lshrrev_b32 {v(T + 33)}, 5, {v(T + 33)}')
I(f'v_mul_u32_u24 {v(T + 33)}, {s(S_T4)}, {v(T + 33)}')
I(f'v_lshl_add_u32 {v(PFL)}, {v(T + 32)}, 7, {v(T + 33)}')
I(f'v_lshrrev_b32 {v(T + 32)}, 4, {v(V_LANE)}')
I(f'v_mad_u32_u24 {v(PFL)}, {v(T + 32)}, {s(S_PITCH)}, {v(PFL)}')
I(f's_and_b32 {s(S_T3)}, {s(S_IDX)}, 6')
I(f's_mul_i32 {s(S_M0B)}, {s(S_M0B)}, {s(S_T3)}')
I(f'v_add_u32 {v(PFL)}, {s(S_M0B)}, {v(PFL)}')
I(f's_and_b32 {s(S_KSTR)}, {s(S_MT)}, 7')
I(f's_lshl_b32 {s(S_KSTR)}, {s(S_KSTR)}, 1')
I(f's_and_b32 {s(S_T4)}, {s(S_IDX)}, 1')
I(f's_add_u32 {s(S_KSTR)}, {s(S_KSTR)}, {s(S_T4)}')
assert all((x * 11) >> 5 == x // 3 for x in range(9))
k.wait_all(vm=False, lg=True)
stamp(1, 2)
I('s_barrier')
srd(SRD_X, P_X, 2048 * 1280)
srd(SRD_DBG, P_DBG, 256)
XR = T + 8
TAGV = T + 36
I(f's_cmp_ge_u32 {s(S_WAVE)}, 2')
I('s_cbranch_scc1 L_pf')

for i in range(5):
    I(f'buffer_load_dwordx4 {v(XR + 4 * i, 4)}, {v(LXA)}, {s(SRD_X, 4)}, 0 offen offset:{256 * i}', tag='x')
I(f'buffer_load_dword {v(TAGV)}, {v(T + 2)}, {s(SRD_DBG, 4)}, 0 offen sc1')
srd(SRD_WS, P_WS, WS_REC)
I(f's_lshl_b32 {s(S_FOFF)}, {s(S_FB)}, {FS}')
XF = ACC
SA_ = T + 3
I(f'v_lshrrev_b32 {v(SA_)}, 4, {v(LR)}')
I(f'v_mul_u32_u24 {v(SA_)}, 20480, {v(SA_)}')
I(f'v_lshrrev_b32 {v(T)}, 4, {v(V_LANE)}')
I(f'v_lshl_add_u32 {v(SA_)}, {v(T)}, 10, {v(SA_)}')
I(f's_and_b32 {s(S_T4)}, {s(S_FB)}, 1')
I(f's_lshl_b32 {s(S_T4)}, {s(S_T4)}, 1')
I(f's_add_u32 {s(S_T4)}, {s(S_T4)}, {s(S_WAVE)}')
I(f's_lshl_b32 {s(S_T4)}, {s(S_T4)}, 8')
I(f'v_add_u32 {v(SA_)}, {s(S_T4)}, {v(SA_)}')
I(f'v_and_b32 {v(T)}, 15, {v(V_LANE)}')
I(f'v_lshl_add_u32 {v(SA_)}, {v(T)}, 4, {v(SA_)}')
I(f's_mov_b32 {s(S_T3)}, 0xffff0000')
stamp(2, 2)
if STAMPS and SMODE == 2:
    k.wait_vm_tag('x')
stamp(3, 2)
SUM = T + 4
for i in range(20):
    I(f'v_lshlrev_b32 {v(XF + 2 * i)}, 16, {v(XR + i)}')
    I(f'v_and_b32 {v(XF + 2 * i + 1)}, {s(S_T3)}, {v(XR + i)}')
    if i == 1:
        I(f'v_pk_add_f32 {v(SUM, 2)}, {v(XF, 2)}, {v(XF + 2, 2)}')
    elif i > 1:
        I(f'v_pk_add_f32 {v(SUM, 2)}, {v(SUM, 2)}, {v(XF + 2 * i, 2)}')
I(f'v_add_f32 {v(SUM)}, {v(SUM)}, {v(SUM + 1)}')
row_sum(SUM, SUM + 1)
MEAN = T + 6
I(f'v_mul_f32 {v(MEAN)}, {f32(1.0 / 640)}, {v(SUM)}')
I(f'v_mov_b32 {v(MEAN + 1)}, {v(MEAN)}')
SQ = T + 4
DV = T + 28
for i in range(20):
    d = DV + 2 * (i & 1)
    I(f'v_pk_add_f32 {v(d, 2)}, {v(XF + 2 * i, 2)}, {v(MEAN, 2)} neg_lo:[0,1] neg_hi:[0,1]')
    if i == 0:
        I(f'v_pk_mul_f32 {v(SQ, 2)}, {v(d, 2)}, {v(d, 2)}')
    else:
        I(f'v_pk_fma_f32 {v(SQ, 2)}, {v(d, 2)}, {v(d, 2)}, {v(SQ, 2)}')
I(f'v_add_f32 {v(SQ)}, {v(SQ)}, {v(SQ + 1)}')
row_sum(SQ, SQ + 1)
I(f'v_mul_f32 {v(SQ)}, {f32(1.0 / 640)}, {v(SQ)}')
bf16r(SQ, SQ)
I(f'v_add_f32 {v(SQ)}, {f32(1e-5)}, {v(SQ)}')
bf16r(SQ, SQ)
I(f'v_sqrt_f32 {v(SQ)}, {v(SQ)}')
bf16r(MEAN, MEAN)
bf16r(SQ, SQ)
I(f'v_rcp_f32 {v(SQ + 1)}, {v(SQ)}')
I(f'v_mov_b32 {v(MEAN + 1)}, {v(MEAN)}')
I(f'v_fma_f32 {v(SQ)}, -{v(SQ)}, {v(SQ + 1)}, 1.0')
I(f'v_fma_f32 {v(SQ)}, {v(SQ)}, {v(SQ + 1)}, {v(SQ + 1)}')
I(f'v_mov_b32 {v(SQ + 1)}, {v(SQ)}')
for i in range(20):
    x2 = XF + 2 * i
    I(f'v_pk_add_f32 {v(x2, 2)}, {v(x2, 2)}, {v(MEAN, 2)} neg_lo:[0,1] neg_hi:[0,1]')
    I(f'v_cvt_pk_bf16_f32 {v(XR + i)}, {v(x2)}, {v(x2 + 1)}')
    I(f'v_lshlrev_b32 {v(x2)}, 16, {v(XR + i)}')
    I(f'v_and_b32 {v(x2 + 1)}, {s(S_T3)}, {v(XR + i)}')
    I(f'v_pk_mul_f32 {v(x2, 2)}, {v(x2, 2)}, {v(SQ, 2)}')
    I(f'v_cvt_pk_bf16_f32 {v(XR + i)}, {v(x2)}, {v(x2 + 1)}')
    if i % 4 == 3:
        ii = i // 4
        I(f's_mov_b32 {s(S_T4)}, {XN_T + 4096 * ii}')
        I(f'buffer_store_dwordx4 {v(XR + 4 * ii, 4)}, {v(SA_)}, {s(SRD_WS, 4)}, {s(S_T4)} offen sc1')
stamp(1)
stamp(4, 2)
if opt('gate', 1) == 2:
    I(f'v_mov_b32 {v(T + 1)}, {CNT}')
    I(f'v_mov_b32 {v(T)}, 1')
    I('s_mov_b64 exec, 1')
    I(f'ds_add_u32 {v(T + 1)}, {v(T)} offset:8')
    I('s_mov_b64 exec, -1')
I(f'v_readfirstlane_b32 {s(S_TAG)}, {v(TAGV)}')
I(f'v_mov_b32 {v(T + 1)}, 0')
I(f's_mov_b32 {s(S_SPIN)}, 0')
I(f's_cmp_lg_u32 {s(S_TAG)}, 0')
I('s_cbranch_scc1 L_tagok')
k.label('L_tagpoll')
I(f'buffer_load_dword {v(TAGV)}, {v(T + 1)}, {s(SRD_DBG, 4)}, 0 offen sc1')
k.wait_all()
I(f'v_readfirstlane_b32 {s(S_TAG)}, {v(TAGV)}')
I(f's_add_u32 {s(S_SPIN)}, {s(S_SPIN)}, 1')
I(f's_cmp_lg_u32 {s(S_TAG)}, 0')
I('s_cbranch_scc1 L_tagok')
I(f's_cmp_lt_u32 {s(S_SPIN)}, 0x40000')
I('s_cbranch_scc1 L_tagpoll')
k.label('L_tagok')
I(f'v_mov_b32 {v(T + 1)}, {CNT}')
I(f'ds_write_b32 {v(T + 1)}, {v(TAGV)} offset:4')
I(f'v_mov_b32 {v(T)}, 1')
k.wait_all()
stamp(5, 2)
I('s_mov_b64 exec, 1')
I(f'ds_add_rtn_u32 {v(T + 2)}, {v(T + 1)}, {v(T)}')
I('s_mov_b64 exec, -1')
I(f'v_readfirstlane_b32 {s(S_T3)}, {v(T + 2)}')
I(f's_cmp_eq_u32 {s(S_T3)}, 1')
I('s_cbranch_scc0 L_common')
flag_store(LNF, S_FOFF, T)
I('s_branch L_common')

k.vmq = []
k.lgq = []
k.label('L_pf')
I(f's_cmp_lt_u32 {s(S_WG)}, 8')
I('s_cbranch_scc0 L_notag')
I(f's_cmp_eq_u32 {s(S_WAVE)}, 2')
I('s_cbranch_scc0 L_notag')
I(f's_memrealtime {s(S_T4, 2)}')
I(f's_or_b32 {s(S_T4)}, {s(S_T4)}, 1')
I(f'v_mov_b32 {v(T + 2)}, {s(S_T4)}')
I('s_mov_b64 exec, 1')
I(f'buffer_atomic_cmpswap {v(T + 2, 2)}, {v(T + 3)}, {s(SRD_DBG, 4)}, 0 offen sc1')
I('s_mov_b64 exec, -1')
k.label('L_notag')


def srd_b():
    I(f's_cmp_eq_u32 {s(S_TYPE)}, 0')
    I(f's_cselect_b32 {s(SRD_B)}, {s(P_WQKV)}, {s(P_W1)}')
    I(f's_cselect_b32 {s(SRD_B + 1)}, {s(P_WQKV + 1)}, {s(P_W1 + 1)}')
    csel(SRD_B + 2, 640 * 3840, 640 * 3456)
    I(f's_mov_b32 {s(SRD_B + 3)}, 0x00020000')


srd_b()
I(f's_lshl_b32 {s(S_T3)}, {s(S_KSTR)}, 1')
I(f's_and_b32 {s(S_T4)}, {s(S_WAVE)}, 1')
I(f's_add_u32 {s(S_T3)}, {s(S_T3)}, {s(S_T4)}')
I(f's_lshl_b32 {s(S_T4)}, {s(S_PITCH)}, 2')
I(f's_mul_i32 {s(S_SOFF)}, {s(S_T3)}, {s(S_T4)}')
I(f's_lshl_b32 {s(S_T4)}, {s(S_PITCH)}, 7')
I(f'buffer_load_dword {v(T + 12)}, {v(PFL)}, {s(SRD_B, 4)}, {s(S_SOFF)} offen')
I(f's_add_u32 {s(S_SOFF)}, {s(S_SOFF)}, {s(S_T4)}')
I(f'buffer_load_dword {v(T + 13)}, {v(PFL)}, {s(SRD_B, 4)}, {s(S_SOFF)} offen')

k.label('L_common')
k.vmq = [(set(), 'unknown')]
k.lgq = []
I('s_nop 4')
I(f's_lshl_b32 {s(S_FOFF)}, {s(S_FB)}, {FS}')
if '--map84' in sys.argv:
    I(f's_lshr_b32 {s(S_M2)}, {s(S_T0)}, 1')
    I(f's_lshl_b32 {s(S_M2)}, {s(S_M2)}, 3')
    I(f's_and_b32 {s(S_T2)}, {s(S_T1)}, 7')
    I(f's_add_u32 {s(S_M2)}, {s(S_M2)}, {s(S_T2)}')
    I(f's_and_b32 {s(S_NT)}, {s(S_T0)}, 1')
    I(f's_lshl_b32 {s(S_NT)}, {s(S_NT)}, 2')
    I(f's_lshr_b32 {s(S_T2)}, {s(S_T1)}, 3')
    I(f's_add_u32 {s(S_NT)}, {s(S_NT)}, {s(S_T2)}')
elif opt('map', 0) in (1, 2):
    I(f's_lshl_b32 {s(S_M2)}, {s(S_T0)}, 2')
    I(f's_lshr_b32 {s(S_T2)}, {s(S_T1)}, 3')
    if opt('map', 0) == 2:
        I(f's_add_u32 {s(S_T2)}, {s(S_T2)}, {s(S_T1)}')
        I(f's_and_b32 {s(S_T2)}, {s(S_T2)}, 3')
    I(f's_add_u32 {s(S_M2)}, {s(S_M2)}, {s(S_T2)}')
    I(f's_and_b32 {s(S_NT)}, {s(S_T1)}, 7')
else:
    I(f's_lshl_b32 {s(S_M2)}, {s(S_T0)}, 2')
    I(f's_and_b32 {s(S_T2)}, {s(S_T1)}, 3')
    I(f's_add_u32 {s(S_M2)}, {s(S_M2)}, {s(S_T2)}')
    I(f's_lshr_b32 {s(S_NT)}, {s(S_T1)}, 2')
I(f's_mul_i32 {s(S_START)}, {s(S_IDX)}, 7')
I(f's_min_u32 {s(S_START)}, {s(S_START)}, 47')
I(f's_lshl_b32 {s(S_T3)}, {s(S_KSTR)}, 2')
I(f's_add_u32 {s(S_T3)}, {s(S_T3)}, {s(S_WAVE)}')
I(f's_add_u32 {s(S_T3)}, {s(S_T3)}, 64')
I(f's_lshl_b32 {s(S_T4)}, {s(S_PITCH)}, 2')
I(f's_mul_i32 {s(S_T3)}, {s(S_T3)}, {s(S_T4)}')
I(f'v_add_u32 {v(PFL)}, {s(S_T3)}, {v(PFL)}')
I(f's_lshl_b32 {s(S_KSTR)}, {s(S_PITCH)}, 5')
I(f'v_lshlrev_b32 {v(V_L16)}, 4, {v(V_LANE)}')
I(f'v_add_u32 {v(V_L16B)}, 4096, {v(V_L16)}')
srd(SRD_B1, P_B1, 1728 * 2)
I(f'v_lshlrev_b32 {v(T + 7)}, 3, {v(V_LANE)}')
I(f's_lshl_b32 {s(S_T5)}, {s(S_START)}, 6')
I(f'buffer_load_dwordx2 {v(BIAS, 2)}, {v(T + 7)}, {s(SRD_B1, 4)}, {s(S_T5)} offen', tag='pf')
I(f's_lshl_b32 {s(S_T0)}, {s(S_WG)}, 1')
I(f's_and_b32 {s(S_T1)}, {s(S_WAVE)}, 1')
I(f's_add_u32 {s(S_T0)}, {s(S_T0)}, {s(S_T1)}')
I(f's_mul_i32 {s(S_T1)}, {s(S_T0)}, 13108')
I(f's_lshr_b32 {s(S_T1)}, {s(S_T1)}, 16')
I(f's_mul_i32 {s(S_T2)}, {s(S_T1)}, 5')
I(f's_sub_u32 {s(S_T2)}, {s(S_T0)}, {s(S_T2)}')
assert all((u * 13108) >> 16 == u // 5 for u in range(512))
srd(SRD_WS, P_WS, WS_REC)
srd(SRD_OUT, P_OUT, 2048 * 1280)
srd(SRD_B2, P_B2, 640 * 2)
srd_b()
I(f's_cmp_lt_u32 {s(S_T1)}, 20')
I(f's_cselect_b32 {s(SRD_RT)}, {s(P_WO)}, {s(P_W2)}')
I(f's_cselect_b32 {s(SRD_RT + 1)}, {s(P_WO + 1)}, {s(P_W2 + 1)}')
csel(SRD_RT + 2, 640 * 1280, 1728 * 1280)
I(f's_mov_b32 {s(SRD_RT + 3)}, 0x00020000')
c, hf, sg = T, T + 1, T + 2
I(f'v_and_b32 {v(c)}, 31, {v(V_LANE)}')
I(f'v_lshrrev_b32 {v(hf)}, 5, {v(V_LANE)}')
S_CB = 34
I(f's_cmp_eq_u32 {s(S_TYPE)}, 0')
I(f's_cselect_b32 {s(S_T3)}, 29, 27')
I(f's_cselect_b32 {s(S_T4)}, 1120, 0')
I(f's_mul_i32 {s(S_CB)}, {s(S_IDX)}, 160')
I(f's_lshl_b32 {s(S_T5)}, {s(S_START)}, 6')
I(f's_cmp_eq_u32 {s(S_TYPE)}, 0')
I(f's_cselect_b32 {s(S_CB)}, {s(S_CB)}, {s(S_T5)}')
I(f'v_min_u32 {v(c)}, {s(S_T3)}, {v(c)}')
I(f'v_mul_u32_u24 {v(sg)}, 205, {v(c)}')
I(f'v_lshrrev_b32 {v(sg)}, 11, {v(sg)}')
I(f'v_mul_u32_u24 {v(sg)}, {s(S_T4)}, {v(sg)}')
I(f'v_lshl_add_u32 {v(sg)}, {v(c)}, 4, {v(sg)}')
I(f'v_add_u32 {v(sg)}, {s(S_CB)}, {v(sg)}')
I(f's_lshl_b32 {s(S_T3)}, {s(S_PITCH)}, 2')
I(f'v_mad_u32_u24 {v(V_DMA)}, {v(hf)}, {s(S_T3)}, {v(sg)}')
I(f's_sub_u32 {s(S_T3)}, {s(S_PITCH)}, {RROW}')
for j in range(1, 4):
    I(f'v_add_u32 {v(V_DMA + j)}, {s(S_T3)}, {v(V_DMA + j - 1)}')
assert all((c_ * 205) >> 11 == c_ // 10 for c_ in range(32))
NPRE = opt('npre', 4)
I(f's_mul_i32 {s(S_M0B)}, {s(S_WAVE)}, {4 * RROW}')
I(f's_lshl_b32 {s(S_T3)}, {s(S_PITCH)}, 3')
I(f's_mul_i32 {s(S_SOFF)}, {s(S_WAVE)}, {s(S_T3)}')
I(f's_mul_i32 {s(S_T3)}, {s(S_KSTR)}, {NPRE}')
I(f's_add_u32 {s(S_SOFF)}, {s(S_SOFF)}, {s(S_T3)}')
if '--noD' in sys.argv:
    I(f's_mov_b32 {s(S_SOFF)}, {OOB // 2}')
I(f'v_lshrrev_b32 {v(LP)}, 2, {v(V_LANE)}')
I(f'v_mul_u32_u24 {v(V_TR0)}, {RROW}, {v(LP)}')
I(f'v_and_b32 {v(T)}, 3, {v(V_LANE)}')
I(f'v_lshl_add_u32 {v(V_TR0)}, {v(T)}, 3, {v(V_TR0)}')
I(f'v_add_u32 {v(V_TR1)}, {4 * SLOT}, {v(V_TR0)}')
I(f's_mul_i32 {s(S_HB)}, {s(S_WAVE)}, 3')
I(f's_min_u32 {s(S_HB)}, {s(S_HB)}, 7')
I(f's_add_u32 {s(S_HB)}, {s(S_HB)}, 5')
I(f's_lshl_b32 {s(S_T3)}, {s(S_HB)}, 5')
I(f'v_add_u32 {v(V_TRH0)}, {s(S_T3)}, {v(V_TR0)}')
I(f'v_add_u32 {v(V_TRH1)}, {s(S_T3)}, {v(V_TR1)}')
I(f'v_add_u32 {v(V_X)}, {HALO}, {v(V_L16)}')
V_AO = 250
I(f'v_bfe_u32 {v(T)}, {v(V_LANE)}, 2, 2')
I(f'v_lshlrev_b32 {v(V_AO)}, 8, {v(T)}')
I(f'v_lshrrev_b32 {v(T)}, 4, {v(V_LANE)}')
I(f'v_lshl_add_u32 {v(V_AO)}, {v(T)}, 6, {v(V_AO)}')
I(f'v_and_b32 {v(T)}, 3, {v(V_LANE)}')
I(f'v_lshl_add_u32 {v(V_AO)}, {v(T)}, 4, {v(V_AO)}')
I(f'v_add_u32 {v(V_AO + 1)}, 4096, {v(V_AO)}')
I(f's_lshl_b32 {s(S_MB0)}, {s(S_MT)}, 3')
I(f's_lshl_b32 {s(S_T3)}, {s(S_WAVE)}, 1')
I(f's_add_u32 {s(S_MB0)}, {s(S_MB0)}, {s(S_T3)}')
I(f's_mul_i32 {s(S_AO)}, {s(S_MB0)}, 20480')
if '--noA' in sys.argv:
    I(f's_mov_b32 {s(S_AO)}, {OOB // 2}')
for q in range(1, 10):
    I(f's_add_u32 {s(S_AO + q)}, {s(S_AO)}, {XN_T + 4096 * q}')
I(f'v_and_b32 {v(T)}, 15, {v(V_LANE)}')
I(f's_lshl_b32 {s(S_T3)}, {s(S_MT)}, {4 + FS}')
I(f's_add_u32 {s(S_T3)}, {s(S_T3)}, {LNF}')
I(f'v_lshl_add_u32 {v(V_PA)}, {v(T)}, {FS}, {s(S_T3)}')
I(f's_cmp_eq_u32 {s(S_TYPE)}, 0')
I(f's_cselect_b32 {s(S_T3)}, {2 << FS}, 0')
I(f's_cmp_eq_u32 {s(S_MT)}, 0')
I(f's_cselect_b32 {s(S_T3)}, 0, {s(S_T3)}')
I(f'v_subrev_u32 {v(T + 1)}, {s(S_T3)}, {v(V_PA)}')
I(f'v_lshrrev_b32 {v(T)}, 1, {v(V_LANE)}')
I(f'v_cmp_eq_u32 vcc, 8, {v(T)}')
I(f'v_cndmask_b32 {v(V_PA)}, {v(V_PA)}, {v(T + 1)}, vcc')
I(f's_mul_i32 {s(S_T3)}, {s(S_WAVE)}, 14')
I(f's_add_u32 {s(S_T4)}, {s(S_T3)}, 7')
I(f's_min_u32 {s(S_T4)}, {s(S_T4)}, 47')
I(f's_mul_i32 {s(S_T5)}, {s(S_NT)}, 5120')
I(f's_add_u32 {s(S_T5)}, {s(S_T5)}, {W_T + 20 * 40960}')
I(f's_mul_i32 {s(S_W2A)}, {s(S_T3)}, 40960')
I(f's_add_u32 {s(S_W2A)}, {s(S_W2A)}, {s(S_T5)}')
I(f's_mul_i32 {s(S_W2B)}, {s(S_T4)}, 40960')
I(f's_add_u32 {s(S_W2B)}, {s(S_W2B)}, {s(S_T5)}')
I(f's_lshr_b32 {s(S_T3)}, {s(S_M2)}, 1')
I(f's_lshl_b32 {s(S_T3)}, {s(S_T3)}, {4 + FS}')
I(f's_lshl_b32 {s(S_T4)}, {s(S_WAVE)}, {1 + FS}')
I(f's_add_u32 {s(S_T3)}, {s(S_T3)}, {s(S_T4)}')
I(f's_add_u32 {s(S_T3)}, {s(S_T3)}, {P1H + (8 << FS)}')
I(f'v_and_b32 {v(T)}, 1, {v(V_LANE)}')
I(f'v_lshl_add_u32 {v(V_PF)}, {v(T)}, {FS}, {s(S_T3)}')

I(f's_mov_b32 {s(54)}, {OOB}')
I(f's_cmp_lt_u32 {s(S_WAVE)}, 2')
I('s_cbranch_scc1 L_pro_join')

RT_A, RT_B, RT_K0, RT_SCR, VW_M0, VW_SO = 46, 47, 48, 49, 50, 52
I(f's_cmp_lt_u32 {s(S_T1)}, 20')
csel(RT_A, 8 * 1280, 4 * 1280)
csel(RT_B, 4 * 1280, 16 * 1280)
I(f's_cselect_b32 {s(RT_K0)}, 0, 20')
I(f's_sub_u32 {s(RT_K0)}, {s(S_T1)}, {s(RT_K0)}')
I(f's_mul_i32 {s(RT_K0)}, {s(RT_K0)}, {32 * 1280}')
I(f's_lshl_b32 {s(S_T3)}, {s(S_T2)}, 8')
I(f's_add_u32 {s(RT_K0)}, {s(RT_K0)}, {s(S_T3)}')
I(f's_and_b32 {s(S_T3)}, {s(S_WAVE)}, 1')
I(f's_mul_i32 {s(VW_M0)}, {s(S_T3)}, {8 * RROW}')
I(f's_add_u32 {s(RT_SCR)}, {s(VW_M0)}, {7 * SLOT}')
I(f's_add_u32 {s(VW_M0 + 1)}, {s(VW_M0)}, {4 * RROW}')
I(f's_lshl_b32 {s(S_T4)}, {s(S_PITCH)}, 4')
I(f's_mul_i32 {s(VW_SO)}, {s(S_T3)}, {s(S_T4)}')
I(f's_lshl_b32 {s(S_T4)}, {s(S_PITCH)}, 3')
I(f's_add_u32 {s(VW_SO + 1)}, {s(VW_SO)}, {s(S_T4)}')
RTV, RTL = T + 8, T + 9
I(f'v_lshrrev_b32 {v(RTV)}, 4, {v(V_LANE)}')
I(f'v_mul_u32_u24 {v(RTV)}, 1280, {v(RTV)}')
I(f'v_and_b32 {v(T)}, 15, {v(V_LANE)}')
I(f'v_lshl_add_u32 {v(RTV)}, {v(T)}, 4, {v(RTV)}')
I(f'v_lshlrev_b32 {v(RTL)}, 8, {v(LP)}')
I(f'v_and_b32 {v(T)}, 3, {v(V_LANE)}')
I(f'v_lshl_add_u32 {v(RTL)}, {v(T)}, 3, {v(RTL)}')
I(f'v_add_u32 {v(RTL)}, {s(RT_SCR)}, {v(RTL)}')
stamp(2, 2)
for t in range(0 if '--nort' in sys.argv else 8):
    hf_, g = t >> 2, t & 3
    I(f's_mul_i32 {s(S_T3)}, {s(RT_A)}, {g}')
    I(f's_add_u32 {s(S_T3)}, {s(S_T3)}, {s(RT_K0)}')
    if hf_:
        I(f's_add_u32 {s(S_T3)}, {s(S_T3)}, {s(RT_B)}')
    I(f's_add_u32 m0, {s(RT_SCR)}, {1024 * t}')
    I(f'buffer_load_dwordx4 {v(RTV)}, {s(SRD_RT, 4)}, {s(S_T3)} offen lds', tag='rt')
I(f's_mul_i32 {s(S_T3)}, {s(S_T1)}, 40960')
I(f's_lshl_b32 {s(S_T4)}, {s(S_T2)}, 13')
I(f's_add_u32 {s(S_T3)}, {s(S_T3)}, {s(S_T4)}')
I(f's_add_u32 {s(S_T3)}, {s(S_T3)}, {W_T}')
I(f's_cmp_lt_u32 {s(S_T1)}, 74')
I(f's_cselect_b32 {s(S_T3)}, {s(S_T3)}, {OOB}')
k.wait_vm_tag('pf')
GATE = opt('gate', 1)
if GATE:
    I(f'v_mov_b32 {v(T + 1)}, {CNT}')
    k.label('L_gate')
    I(f'ds_read_b32 {v(T)}, {v(T + 1)} offset:{0 if GATE == 1 else 8}')
    I(f'v_readfirstlane_b32 {s(S_T4)}, {v(T)}')
    I(f's_cmp_ge_u32 {s(S_T4)}, 2')
    I('s_cbranch_scc0 L_gate')
stamp(3, 2)
for sl in range(NPRE):
    for h in range(2):
        I(f's_add_u32 m0, {s(VW_M0 + h)}, {sl * SLOT}')
        for j in range(4):
            dma1(j, VW_SO + h, ('ring', sl))
        I(f's_add_u32 {s(VW_SO + h)}, {s(VW_SO + h)}, {s(S_KSTR)}')
    if sl >= 1:
        k.wait_vm_tag(('ring', sl - 1))
    if sl == 1:
        stamp(4, 2)
        RF = ACC
        for nb in range(8):
            I(f'ds_read_b64_tr_b16 {v(RF + 4 * nb, 2)}, {v(RTL)} offset:{32 * nb}')
            I(f'ds_read_b64_tr_b16 {v(RF + 4 * nb + 2, 2)}, {v(RTL)} offset:{32 * nb + 4096}')
RTLATE = opt('rtlate', 0)
RT_DST = 54


def rt_stores():
    for nb in range(8):
        I(f'buffer_store_dwordx4 {v(RF + 4 * nb, 4)}, {v(V_L16 if nb < 4 else V_L16B)}, {s(SRD_WS, 4)}, {s(RT_DST)} offen offset:{1024 * (nb & 3)} sc1', tag='rts')


I(f's_mov_b32 {s(RT_DST)}, {s(S_T3)}')
if not RTLATE:
    rt_stores()
k.wait_vm_tag(('ring', NPRE - 1))
stamp(5, 2)
stamp(1)
k.wait_all(vm=False, lg=True)

k.label('L_pro_join')
k.vmq = [(regs_of(v(BIAS, 2)), 'pf')]
k.lgq = []
I('s_nop 4')
I(f's_mul_i32 {s(S_WOB)}, {s(S_WAVE)}, 40960')
I(f's_mul_i32 {s(S_T3)}, {s(S_NT)}, 5120')
I(f's_add_u32 {s(S_WOB)}, {s(S_WOB)}, {s(S_T3)}')
I(f's_add_u32 {s(S_WOB)}, {s(S_WOB)}, {W_T}')
I(f's_mul_i32 {s(S_WOM)}, {s(S_WAVE)}, {5 * 1024}')
if '--noW' in sys.argv:
    for r_ in (S_W2A, S_W2B, S_WOB):
        I(f's_mov_b32 {s(r_)}, {OOB // 2}')
I(f's_cmp_eq_u32 {s(S_WAVE)}, 3')
I(f's_cselect_b32 {s(S_LAST)}, {OOB}, 0')
I(f's_cmp_eq_u32 {s(S_TYPE)}, 1')
I('s_cbranch_scc1 L_ffn')
st_join = k.state()


def ln_wait():
    lab = k.newlabel('L_lnw')
    I(f's_cmp_eq_u32 {s(S_WAVE)}, 0')
    I(f's_cbranch_scc0 {lab}')
    st_ = k.state()
    stamp(6, 2)
    poll(V_PA, 'ln')
    k.label(lab)
    k.set_state(st_)
    k.wait_all(vm=False, lg=True)
    stamp(7, 2)
    I('s_barrier')
    stamp(8, 2)


def wt_flag():
    I(f's_lshr_b32 {s(S_T3)}, {s(S_WG)}, 2')
    I(f's_lshl_b32 {s(S_T3)}, {s(S_T3)}, {WS_}')
    I(f's_and_b32 {s(S_T4)}, {s(S_WG)}, 3')
    I(f's_lshl_b32 {s(S_T4)}, {s(S_T4)}, 2')
    I(f's_add_u32 {s(S_T3)}, {s(S_T3)}, {s(S_T4)}')
    I(f's_add_u32 {s(S_T3)}, {s(S_T3)}, {WTF}')
    I(f's_cmp_eq_u32 {s(S_WAVE)}, 1')
    I(f's_cselect_b32 {s(S_T3)}, {s(S_T3)}, {OOB}')
    I(f'v_mov_b32 {v(T)}, {s(S_TAG)}')
    I(f'v_lshlrev_b32 {v(T + 1)}, 24, {v(V_LANE)}')
    I(f'buffer_store_dword {v(T)}, {v(T + 1)}, {s(SRD_WS, 4)}, {s(S_T3)} offen sc1')


def tag_fetch():
    I(f'v_mov_b32 {v(T + 1)}, {CNT}')
    I(f'ds_read_b32 {v(T)}, {v(T + 1)} offset:4')
    I(f'v_readfirstlane_b32 {s(S_TAG)}, {v(T)}')


AWN = 6


def areg_att(ks, rb):
    return a((28 + (ks % AWN) * 2 + rb) * 4, 4)


def areg_ffn(ks, rb):
    return a((ks * 2 + rb) * 4, 4)


def load_A(areg, ks, rb):
    I(f'buffer_load_dwordx4 {areg(ks, rb)}, {v(V_AO)}, {s(SRD_WS, 4)}, {s(S_AO + rb * 5 + ks // 4)} offen offset:{(ks & 3) * 1024} sc1')


def pre_loads():
    for ks in range(4):
        if ks >= NPRE:
            I(f's_add_u32 m0, {s(S_M0B)}, {ks * SLOT}')
            for j in range(4):
                dma1(j, S_SOFF, ('dma', ks))
            I(f's_add_u32 {s(S_SOFF)}, {s(S_SOFF)}, {s(S_KSTR)}')
        for rb in range(2):
            load_A(areg_att, ks, rb)


W2ORDER = list(range(40, 64)) + list(range(28))
NW2E = len(W2ORDER)
W2ALL = opt('w2all', 1)
NW2X = 69 if W2ALL else NW2E
WO_EARLY, WO_LATE = (0, 1, 2), (3, 4)
YSTEP = [(0, p) for p in range(4)] + [(1, p) for p in range(4)] + [(0, p) for p in range(4, 7)] + [(1, p) for p in range(4, 7)]


def w2reg(st, nb):
    f = st * 5 + nb
    if W2ALL:
        if f < NW2E:
            return a(4 * W2ORDER[f], 4)
        if f < 64:
            return a(4 * (28 + f - NW2E), 4)
        return v(W2V + 4 * (f - 64), 4) if f < 69 else a(4 * W2ORDER[0], 4)
    return a(4 * W2ORDER[f % NW2E], 4)


def w2load(f):
    st, nb = divmod(f, 5)
    ab, p = YSTEP[st]
    sb = S_W2B if ab else S_W2A
    if (ab, p) == (0, 5) and nb == 0:
        I(f's_add_u32 {s(sb)}, {s(sb)}, {s(S_LAST)}')
    I(f'buffer_load_dwordx4 {w2reg(st, nb)}, {v(V_L16 if nb < 4 else V_L16B)}, {s(SRD_WS, 4)}, {s(sb)} offen offset:{(nb & 3) * 1024} sc1')
    if nb == 4:
        I(f's_add_u32 {s(sb)}, {s(sb)}, 40960')


def wodma(i, nb):
    if nb == 0:
        I(f's_add_u32 {s(S_T5)}, {s(S_WOB)}, {i * 4 * 40960}')
    if nb == 0 or nb == 4:
        I(f's_add_u32 m0, {s(S_WOM)}, {LDS_WO + (i * 20 + (4 if nb == 4 else 0)) * 1024}')
    I(f'buffer_load_dwordx4 {v(V_L16 if nb < 4 else V_L16B)}, {s(SRD_WS, 4)}, {s(S_T5)} offen offset:{(nb & 3) * 1024} sc1 lds')


def cost(e):
    if e[0].startswith(('buffer_', 'global_', 'v_pk_') + TRANS):
        return 8
    return 4


def mainloop(steps, areg, aloads, first_c_zero, w2plan, dma_pre, extra_fill, at_sync):
    LA = 7
    halo = any(it[1] >= 100 for it in steps[0])
    items = [(t_, pos) + it for t_ in range(20) for pos, it in enumerate(steps[t_])]
    N = len(items)
    aux = [[] for _ in range(20)]
    for t_ in range(20):
        kn = t_ + 4
        al = [lambda kk=kk, rb=rb: load_A(areg, kk, rb) for kk in aloads[t_] for rb in range(2)]
        dm = []
        if NPRE <= kn < 20:
            for j in range(4):
                def f(j=j, kn=kn):
                    if j == 0:
                        dma_pre(kn)
                        I(f's_add_u32 m0, {s(S_M0B)}, {(kn % NSLOT) * SLOT}')
                    dma1(j, S_SOFF, ('dma', kn))
                    if j == 3:
                        I(f's_add_u32 {s(S_SOFF)}, {s(S_SOFF)}, {s(S_KSTR)}')
                dm.append(f)
        h_ = len(al) // 2
        aux[t_] = al[:h_] + dm[:2] + al[h_:] + dm[2:]
    WTK = opt('wtk', 12)
    assert WTK % 2 == 0
    aux[WTK - 3].append(lambda: chk_issue(V_PA, 4))
    WFK = opt('wfk', 4) if RTLATE else 2
    aux[WFK].insert(0, wt_flag)
    aux[0].append(lambda: I(f'buffer_load_dword {v(T + 3)}, {v(PFL)}, {s(SRD_B, 4)}, 0 offen'))

    def pf2b():
        I(f's_lshl_b32 {s(S_T3)}, {s(S_PITCH)}, 8')
        I(f'buffer_load_dword {v(T + 2)}, {v(PFL)}, {s(SRD_B, 4)}, {s(S_T3)} offen')
    aux[1].append(pf2b)
    f = 0
    for t_ in range(WTK, 20):
        for _ in range(w2plan(t_, f)):
            if f < NW2E:
                aux[t_].append(lambda f=f: w2load(f))
                f += 1
    w2done = f
    fill = []
    for t_ in range(20):
        mem = [e for fn in aux[t_] for e in k.record(fn)]
        oth = extra_fill(t_)
        mix, i, j = [], 0, 0
        while i < len(mem) or j < len(oth):
            if j >= len(oth) or (i < len(mem) and i * len(oth) <= j * len(mem)):
                mix.append(mem[i])
                i += 1
            else:
                mix.append(oth[j])
                j += 1
        fill.append(mix)

    def rd(n):
        t_, pos, ks, blk, off = items[n]
        sl = t_ % NSLOT
        w = WIN + 4 * (n % 8)
        if blk < 100:
            base = V_TR0 if sl < 4 else V_TR1
        else:
            base = V_TRH0 if sl < 4 else V_TRH1
        o = (sl % 4) * SLOT + off
        I(f'ds_read_b64_tr_b16 {v(w, 2)}, {v(base)} offset:{o}')
        I(f'ds_read_b64_tr_b16 {v(w + 2, 2)}, {v(base)} offset:{o + 512}')

    def sync(t_):
        if t_ + 1 >= NPRE:
            assert ('dma', t_ + 1) in k.seen_tags
            k.wait_vm_tag(('dma', t_ + 1))
        if t_ == WFK:
            k.wait_vm_tag('rts')
        if t_ == WTK:
            lab = k.newlabel('L_wtw')
            k._need(regs_of(v(P4, 4)))
            I(f's_cmp_eq_u32 {s(S_WAVE)}, 0')
            I(f's_cbranch_scc0 {lab}')
            poll(V_PA, 'wt', 4, preissued=True, sleep=8)
            k.label(lab)
        at_sync(t_, 0)
        I('s_barrier')
        at_sync(t_, 1)

    def hxread(ks):
        I(f'ds_read_b128 {v(HX + 4 * (ks & 1), 4)}, {v(V_X)} offset:{ks * 1024}')

    k.seen_tags = {('dma', 3)}
    if halo:
        hxread(0)
        for ks in range(19):
            fill[ks] = fill[ks][:2] + k.record(lambda: hxread(ks + 1)) + fill[ks][2:]
    for n in range(LA):
        rd(n)
    I(f's_cmp_eq_u32 {s(S_WAVE)}, 0')
    csel(S_T3, WTF, OOB)
    I(f'v_lshl_add_u32 {v(V_PA)}, {v(V_LANE)}, {WS_}, {s(S_T3)}')
    waited = -1
    prev_halo = False
    seen_blk = set()
    for n in range(N):
        t_, pos, ks, blk, off = items[n]
        NF = len(steps[t_])
        w = WIN + 4 * (n % 8)
        if pos == 0:
            q = list(fill[t_])
            ngaps = sum(1 for it in steps[t_] if it[1] < 100)
            tot = sum(cost(e) for e in q) + 4 * (NF // 2 + 1)
            budget = max(8, -(-tot // ngaps))
            budget2 = 0
            if budget > 12:
                budget = -(-(tot + 8 * ngaps) // (2 * ngaps))
                budget2 = budget - 8
            if t_ in (0, 1, 2, 4, 8, 12, 16, 18):
                stamp(1 + (0, 1, 2, 4, 8, 12, 16, 18).index(t_), 1)
        used = 8 if prev_halo else 0
        if n + LA < N and items[n + LA][1] == 0 and items[n + LA][0] >= 2 and items[n + LA][0] % 2 == 0:
            sync(items[n + LA][0])
            used += 8
        if waited < n:
            need = regs_of(v(w, 4))
            waited = n
            for m in (n + 1, n + 2):
                if m < N and (m == n + 1 or items[m - 1][3] >= 100):
                    need |= regs_of(v(WIN + 4 * (m % 8), 4))
                    waited = m
            for m in range(n, waited + 1):
                kk, bb = items[m][2], items[m][3]
                need |= (regs_of(areg(kk, 0)) | regs_of(areg(kk, 1))) if bb < 100 else regs_of(v(HX + 4 * (kk & 1), 4))
            k._need(need)
            used += 4
        while q and (used + cost(q[0]) <= budget + 2 or pos == NF - 1):
            used += cost(q[0])
            k.play(q.pop(0))
        first = blk not in seen_blk
        seen_blk.add(blk)
        if blk < 100:
            for rb in range(2):
                d = ACC + (blk * 2 + rb) * 4
                c_ = '0' if (first and first_c_zero) else v(d, 4)
                I(f'v_mfma_f32_16x16x32_bf16 {v(d, 4)}, {v(w, 4)}, {areg(ks, rb)}, {c_}')
                if rb == 0:
                    u2 = 0
                    if n + LA < N:
                        rd(n + LA)
                    else:
                        u2 = -8
                    while q and u2 + cost(q[0]) <= budget2 + 2:
                        u2 += cost(q[0])
                        k.play(q.pop(0))
        else:
            d = HACC + (blk - 100) * 4
            c_ = '0' if first else v(d, 4)
            I(f'v_mfma_f32_16x16x32_bf16 {v(d, 4)}, {v(w, 4)}, {v(HX + 4 * (ks & 1), 4)}, {c_}')
            if n + LA < N:
                rd(n + LA)
        prev_halo = blk >= 100
    return w2done


YACC = 16
SACC = 96
HW = 116
HWN = 5
XIN = 196
B2V = 208
T2 = 218
VXG = 2
VRW = (5, 8, 9)
S_HO = 24
S_EARLY = 19
V_HE = V_TR0


def h_scalars():
    I(f's_mul_i32 {s(S_T3)}, {s(S_M2)}, {4 * ACT_MB}')
    I(f's_add_u32 {s(S_T3)}, {s(S_T3)}, {ACT_T + 20 * 1024}')
    I(f's_mul_i32 {s(S_T4)}, {s(S_WAVE)}, 14')
    I(f's_add_u32 {s(S_T5)}, {s(S_T4)}, 7')
    I(f's_min_u32 {s(S_T5)}, {s(S_T5)}, 47')
    for ab, r in ((0, S_T4), (1, S_T5)):
        I(f's_lshl_b32 {s(r)}, {s(r)}, 10')
        I(f's_add_u32 {s(r)}, {s(S_T3)}, {s(r)}')
    for i in range(4):
        I(f's_add_u32 {s(S_T3)}, {s(S_WAVE)}, {1 + i}')
        I(f's_and_b32 {s(S_T3)}, {s(S_T3)}, 3')
        I(f's_mul_i32 {s(S_T3)}, {s(S_T3)}, {ACT_MB}')
        I(f's_add_u32 {s(S_HO + i)}, {s(S_T4)}, {s(S_T3)}')
        I(f's_add_u32 {s(S_HO + 4 + i)}, {s(S_T5)}, {s(S_T3)}')


def hreg(st, mb):
    if W2ALL:
        return v(HW + 16 * (st % HWN) + 4 * mb, 4)
    if st < 3:
        return a((28 + 4 * st + mb) * 4, 4)
    if st == 3:
        return v(W2V + 4 * mb, 4)
    return v(HW + 16 * ((st - 4) % HWN) + 4 * mb, 4)


def hload(st, mb, early=False):
    ab, p = YSTEP[st]
    so = S_HO + 4 * ab + mb
    if (ab, p) == (0, 5):
        I(f's_add_u32 {s(so)}, {s(so)}, {s(S_LAST)}')
    va = V_HE if early else (V_L16 if p < 4 else V_L16B)
    I(f'buffer_load_dwordx4 {hreg(st, mb)}, {v(va)}, {s(SRD_WS, 4)}, {s(so)} offen offset:{(p & 3) * 1024} sc1')


def early_eval():
    chk_eval()
    I(f's_cmp_eq_u64 vcc, 0')
    I(f's_cselect_b32 {s(S_EARLY)}, 1, 0')
    I(f's_cselect_b32 {s(S_T0)}, 0, {OOB}')
    I(f'v_add_u32 {v(V_HE)}, {s(S_T0)}, {v(V_L16)}')


def p1_flag():
    k.wait_all(vm=False, lg=True)
    I('s_barrier')
    lab = k.newlabel('L_np')
    I(f's_cmp_eq_u32 {s(S_WAVE)}, 0')
    I(f's_cbranch_scc0 {lab}')
    flag_store(P1F, S_FOFF, T2)
    k.label(lab)


I(f's_lshl_b32 {s(S_T3)}, {s(S_MT)}, 3')
I(f's_sub_u32 {s(S_T3)}, {s(S_T3)}, 1')
I(f's_mul_i32 {s(S_T3)}, {s(S_T3)}, 20480')
I(f's_mul_i32 {s(S_T4)}, {s(S_WAVE)}, 5120')
I(f's_add_u32 {s(S_T3)}, {s(S_T3)}, {s(S_T4)}')
I(f's_cmp_eq_u32 {s(S_MT)}, 0')
I(f's_cselect_b32 {s(S_T5)}, {OOB}, {s(S_T3)}')
I(f'v_add_u32 {v(T + 2)}, {s(S_T4)}, {v(V_X)}')
SA, SH, VA, VB, VO, K2M0, K2M1 = T + 28, T + 29, T + 30, T + 31, T + 32, T + 33, T + 34
tm, tg = T + 4, T + 5
prow(tm, tg, 15)
I(f'v_mul_u32_u24 {v(SH)}, {RS}, {v(tm)}')
I(f'v_lshrrev_b32 {v(tg)}, 4, {v(V_LANE)}')
I(f'v_lshl_add_u32 {v(SH)}, {v(tg)}, 3, {v(SH)}')
I(f's_mul_i32 {s(S_T3)}, {s(S_WAVE)}, {32 * RS}')
I(f's_add_u32 {s(S_T3)}, {s(S_T3)}, {STG + 16 * RS}')
I(f'v_add_u32 {v(SA)}, {s(S_T3)}, {v(SH)}')
I(f's_lshl_b32 {s(S_T3)}, {s(S_HB)}, 5')
I(f's_add_u32 {s(S_T3)}, {s(S_T3)}, {STG}')
I(f'v_add_u32 {v(SH)}, {s(S_T3)}, {v(SH)}')
I(f's_lshr_b32 {s(S_T3)}, {s(S_WAVE)}, 1')
I(f's_mul_i32 {s(S_T3)}, {s(S_T3)}, 80')
I(f's_and_b32 {s(S_T0)}, {s(S_WAVE)}, 1')
I(f's_mul_i32 {s(S_T0)}, {s(S_T0)}, {64 * RS}')
I(f's_add_u32 {s(S_T3)}, {s(S_T3)}, {s(S_T0)}')
I(f's_add_u32 {s(S_T3)}, {s(S_T3)}, {STG}')
prow(tm, tg, 63)
I(f'v_mul_u32_u24 {v(VA)}, {RS}, {v(tm)}')
I(f'v_add_u32 {v(VA)}, {s(S_T3)}, {v(VA)}')
I(f'v_and_b32 {v(VB)}, 0x30, {v(V_LANE)}')
I(f'v_bfe_u32 {v(tg)}, {v(V_LANE)}, 1, 1')
I(f'v_lshl_add_u32 {v(VB)}, {v(tg)}, 3, {v(VB)}')
I(f'v_and_b32 {v(tg)}, 1, {v(V_LANE)}')
I(f'v_add_u32 {v(VB)}, {v(VB)}, {v(tg)}')
I(f'v_bfe_u32 {v(tg)}, {v(V_LANE)}, 2, 2')
I(f'v_lshl_add_u32 {v(VB)}, {v(tg)}, 1, {v(VB)}')
I(f'v_mul_u32_u24 {v(VB)}, {RS}, {v(VB)}')
I(f'v_add_u32 {v(VB)}, {s(S_T3)}, {v(VB)}')
I(f'v_lshrrev_b32 {v(tg)}, 4, {v(V_LANE)}')
I(f'v_mul_u32_u24 {v(VO)}, {ACT_MB}, {v(tg)}')
I(f'v_and_b32 {v(tg)}, 15, {v(V_LANE)}')
I(f'v_lshl_add_u32 {v(VO)}, {v(tg)}, 4, {v(VO)}')
I(f'v_and_b32 {v(tg)}, 3, {v(V_LANE)}')
I(f'v_mov_b32 {v(tm)}, 0xffff')
I(f'v_cmp_le_u32 vcc, 1, {v(tg)}')
I(f'v_cndmask_b32 {v(K2M0)}, {v(tm)}, -1, vcc')
I(f'v_cmp_le_u32 vcc, 2, {v(tg)}')
I(f'v_cndmask_b32 {v(K2M1)}, 0, {v(tm)}, vcc')
I(f'v_cmp_le_u32 vcc, 3, {v(tg)}')
I(f'v_cndmask_b32 {v(K2M1)}, {v(K2M1)}, -1, vcc')
S_OB = 35
I(f's_lshl_b32 {s(S_OB)}, {s(S_MT)}, 1')
I(f's_and_b32 {s(S_T0)}, {s(S_WAVE)}, 1')
I(f's_add_u32 {s(S_OB)}, {s(S_OB)}, {s(S_T0)}')
I(f's_mul_i32 {s(S_OB)}, {s(S_OB)}, {4 * ACT_MB}')
I(f's_add_u32 {s(S_OB)}, {s(S_OB)}, {ACT_T}')
I(f's_mul_i32 {s(S_T3)}, {s(S_IDX)}, 2560')
I(f's_add_u32 {s(S_OB)}, {s(S_OB)}, {s(S_T3)}')
I(f's_lshr_b32 {s(S_T3)}, {s(S_WAVE)}, 1')
I(f's_mul_i32 {s(S_T3)}, {s(S_T3)}, 1280')
I(f's_add_u32 {s(S_OB)}, {s(S_OB)}, {s(S_T3)}')
I(f's_mov_b32 {s(S_T2)}, {s(S_T5)}')
h_scalars()
ln_wait()
stamp(2)
for i in range(5):
    I(f'buffer_load_dwordx4 {v(T + 8 + 4 * i, 4)}, {v(V_AO if i < 4 else V_AO + 1)}, {s(SRD_WS, 4)}, {s(S_T2)} offen offset:{(i & 3) * 1024} sc1')
pre_loads()
if RTLATE:
    rt_stores()
tag_fetch()
for i in range(5):
    I(f'ds_write_b128 {v(T + 2)}, {v(T + 8 + 4 * i, 4)} offset:{i * 1024}')
k.wait_all(vm=False, lg=True)
I('s_barrier')
stamp(3)
att_order = [0, 1, 2, 3, 4, 100, 5, 6, 7, 8, 9, 101, 10, 11, 12, 13, 102, 14]
w2done = mainloop([[(ks, b, 32 * (b % 100)) for b in att_order] for ks in range(20)], areg_att,
                  [[ks + 4] if ks + 4 < 20 else [] for ks in range(20)], True,
                  lambda t_, f: opt('ra0', 2) if t_ < 16 else opt('ra1', 10), lambda kn: None,
                  lambda t_: [], lambda t_, ph: None)
stamp(4)
stamp(1, 4)
w2rest = [lambda f=f: w2load(f) for f in range(w2done, NW2X)]
PK = T + 8
n = 0
for blk in att_order:
    for rb in range(2 if blk < 100 else 1):
        d = ACC + (blk * 2 + rb) * 4 if blk < 100 else HACC + 4 * (blk - 100)
        p = PK + 2 * (n % 4)
        n += 1
        I(f'v_cvt_pk_bf16_f32 {v(p)}, {v(d)}, {v(d + 1)}')
        I(f'v_cvt_pk_bf16_f32 {v(p + 1)}, {v(d + 2)}, {v(d + 3)}')
        if blk < 100:
            I(f'ds_write_b64 {v(SA)}, {v(p, 2)} offset:{32 * blk + rb * 16 * RS}')
        else:
            I(f'ds_write_b64 {v(SH)}, {v(p, 2)} offset:{32 * (blk - 100)}')
        if w2rest and n % 2 == 0:
            w2rest.pop(0)()
M1, M2, M3, INV1, INV01, INV02, INV03, SC_HI, SC_SCALE, SC_L2E = 36, 38, 40, 42, 44, 46, 48, 50, 51, 52
for reg, pat in ((M1, 0xeeeeeeee), (M2, 0xcccccccc), (M3, 0x88888888)):
    I(f's_mov_b32 {s(reg)}, {hex(pat)}')
    I(f's_mov_b32 {s(reg + 1)}, {hex(pat)}')
stamp(2, 4)
k.wait_all(vm=False, lg=True)
I('s_barrier')
stamp(3, 4)
w2rest += [lambda i=i, nb=nb: wodma(i, nb) for i in WO_EARLY for nb in range(5)]
Q, Kr, Vr = 16, 36, 96
for i in range(5):
    I(f'ds_read_b128 {v(Q + 4 * i, 4)}, {v(VA)} offset:{16 * RS + 16 * i}')
    for kg in range(3):
        I(f'ds_read_b128 {v(Kr + 20 * kg + 4 * i, 4)}, {v(VA)} offset:{kg * 8 * RS + 160 + 16 * i}')
for reg, pat in ((INV1, 0xff), (INV01, 0x1111), (INV02, 0x3333), (INV03, 0x7777)):
    I(f's_mov_b64 {s(reg, 2)}, {hex(pat)}')
I(f's_mov_b32 {s(SC_HI)}, 0xffff0000')
I(f's_mov_b32 {s(SC_SCALE)}, {f32(20 ** -0.5)}')
I(f's_mov_b32 {s(SC_L2E)}, {f32(1.4426950408889634)}')
I(f's_and_b32 {s(S_T4)}, {s(S_WAVE)}, 1')
I(f's_or_b32 {s(S_T4)}, {s(S_T4)}, {s(S_MT)}')
NEG = T + 2
SREG = [T + 4, T + 16]
for hd in range(2):
    Sx = SREG[hd]
    for dc in range(5):
        for kg in range(3):
            c_ = '0' if dc == 0 else v(Sx + 4 * kg, 4)
            I(f'v_mfma_f32_4x4x4_16b_bf16 {v(Sx + 4 * kg, 4)}, {v(Kr + 20 * kg + 10 * hd + 2 * dc, 2)}, {v(Q + 10 * hd + 2 * dc, 2)}, {c_}')
            I(f'ds_read_b64_tr_b16 {v(Vr + 30 * hd + 2 * (kg * 5 + dc), 2)}, {v(VB)} offset:{kg * 8 * RS + 320 + 40 * hd + 8 * dc}')
            if kg == 2 and w2rest:
                w2rest.pop(0)()
stamp(4, 4)


def hk():
    if w2rest:
        w2rest.pop(0)()


OP = Q
for hd in range(2):
    Sx = SREG[hd]
    Lg = Sx + 4
    if hd == 1:
        while w2rest:
            hk()
        chk_issue(V_PF)
    for r, M in ((1, M1), (2, M2), (3, M3)):
        I(f'v_cndmask_b32 {v(Sx + 8 + r)}, {v(Sx + r)}, {v(Sx + 8 + r)}, {s(M, 2)}')
    P = Sx
    for i in range(4):
        I(f'v_cvt_pk_bf16_f32 {v(P + i)}, {v(Lg + 2 * i)}, {v(Lg + 2 * i + 1)}')
    hk()
    for i in range(4):
        I(f'v_lshlrev_b32 {v(Lg + 2 * i)}, 16, {v(P + i)}')
        I(f'v_and_b32 {v(Lg + 2 * i + 1)}, {s(SC_HI)}, {v(P + i)}')
    hk()
    for i in range(8):
        I(f'v_mul_f32 {v(Lg + i)}, {s(SC_SCALE)}, {v(Lg + i)}')
    hk()
    for i in range(4):
        I(f'v_cvt_pk_bf16_f32 {v(P + i)}, {v(Lg + 2 * i)}, {v(Lg + 2 * i + 1)}')
    for i in range(4):
        I(f'v_lshlrev_b32 {v(Lg + 2 * i)}, 16, {v(P + i)}')
        I(f'v_and_b32 {v(Lg + 2 * i + 1)}, {s(SC_HI)}, {v(P + i)}')
    hk()
    lab = k.newlabel('L_nomask')
    I(f's_cmp_eq_u32 {s(S_T4)}, 0')
    I(f's_cbranch_scc0 {lab}')
    I(f'v_mov_b32 {v(NEG)}, {f32(-1e9)}')
    for r in range(4):
        I(f'v_cndmask_b32 {v(Lg + r)}, {v(Lg + r)}, {v(NEG)}, {s(INV1, 2)}')
    for r, M in ((1, INV01), (2, INV02), (3, INV03)):
        I(f'v_cndmask_b32 {v(Lg + 4 + r)}, {v(Lg + 4 + r)}, {v(NEG)}, {s(M, 2)}')
    k.label(lab)
    mx = P
    I(f'v_max3_f32 {v(mx)}, {v(Lg)}, {v(Lg + 1)}, {v(Lg + 2)}')
    I(f'v_max3_f32 {v(mx + 1)}, {v(Lg + 3)}, {v(Lg + 4)}, {v(Lg + 5)}')
    I(f'v_max3_f32 {v(mx)}, {v(mx)}, {v(Lg + 6)}, {v(Lg + 7)}')
    I(f'v_max_f32 {v(mx)}, {v(mx)}, {v(mx + 1)}')
    I(f'v_mul_f32 {v(mx)}, {s(SC_L2E)}, {v(mx)}')
    hk()
    for i in range(8):
        I(f'v_fma_f32 {v(Lg + i)}, {v(Lg + i)}, {s(SC_L2E)}, -{v(mx)}')
    hk()
    for i in range(8):
        I(f'v_exp_f32 {v(Lg + i)}, {v(Lg + i)}')
    hk()
    for i in range(4):
        I(f'v_add_f32 {v(P + i)}, {v(Lg + 2 * i)}, {v(Lg + 2 * i + 1)}')
    I(f'v_add_f32 {v(P)}, {v(P)}, {v(P + 1)}')
    I(f'v_add_f32 {v(P + 2)}, {v(P + 2)}, {v(P + 3)}')
    I(f'v_add_f32 {v(P)}, {v(P)}, {v(P + 2)}')
    I(f'v_rcp_f32 {v(P)}, {v(P)}')
    if hd == 1:
        for i in range(10):
            I(f'v_cvt_pk_bf16_f32 {v(OP + i)}, {v(Kr + 8 + 2 * i)}, {v(Kr + 8 + 2 * i + 1)}')
        for i in range(2):
            I(f'buffer_store_dwordx4 {v(OP + 4 * i, 4)}, {v(VO)}, {s(SRD_WS, 4)}, {s(S_OB)} offen offset:{256 * i} sc1')
    hk()
    for i in range(8):
        I(f'v_mul_f32 {v(Lg + i)}, {v(Lg + i)}, {v(P)}')
    PB = Kr + 30 * hd
    I(f'v_cvt_pk_bf16_f32 {v(PB + 2)}, {v(Lg)}, {v(Lg + 1)}')
    I(f'v_cvt_pk_bf16_f32 {v(PB + 3)}, {v(Lg + 2)}, {v(Lg + 3)}')
    I(f'v_cvt_pk_bf16_f32 {v(PB)}, {v(Lg + 4)}, {v(Lg + 5)}')
    I(f'v_cvt_pk_bf16_f32 {v(PB + 1)}, {v(Lg + 6)}, {v(Lg + 7)}')
    I(f'v_and_b32 {v(PB + 4)}, {v(PB)}, {v(K2M0)}')
    I(f'v_and_b32 {v(PB + 5)}, {v(PB + 1)}, {v(K2M1)}')
    I(f'v_xor_b32 {v(PB)}, {v(PB)}, {v(PB + 4)}')
    I(f'v_xor_b32 {v(PB + 1)}, {v(PB + 1)}, {v(PB + 5)}')
    O = PB + 8
    for kg in (1, 2, 0):
        for dc in range(5):
            c_ = '0' if kg == 1 else v(O + 4 * dc, 4)
            I(f'v_mfma_f32_4x4x4_16b_bf16 {v(O + 4 * dc, 4)}, {v(Vr + 30 * hd + 2 * (kg * 5 + dc), 2)}, {v(PB + 2 * kg, 2)}, {c_}')
stamp(5, 4)
for i in range(10):
    I(f'v_cvt_pk_bf16_f32 {v(OP + 10 + i)}, {v(Kr + 38 + 2 * i)}, {v(Kr + 38 + 2 * i + 1)}')
    if i in (1, 5, 9):
        j = 2 + (i - 1) // 4
        I(f'buffer_store_dwordx4 {v(OP + 4 * j, 4)}, {v(VO)}, {s(SRD_WS, 4)}, {s(S_OB)} offen offset:{256 * j} sc1')
early_eval()
stamp(5)
I('s_branch L_phase2')

k.set_state(st_join)
k.label('L_ffn')
h_scalars()
ln_wait()
stamp(2)
pre_loads()
if RTLATE:
    rt_stores()
tag_fetch()
I(f's_lshl_b32 {s(S_T3)}, {s(S_WAVE)}, 9')
I(f's_add_u32 {s(S_T3)}, {s(S_T3)}, {HALO}')
I(f'v_lshl_add_u32 {v(T)}, {v(V_LANE)}, 3, {s(S_T3)}')
I(f'ds_write_b64 {v(T)}, {v(BIAS, 2)}')
I(f'v_lshrrev_b32 {v(T)}, 4, {v(V_LANE)}')
I(f'v_lshl_add_u32 {v(T)}, {v(T)}, 3, {s(S_T3)}')
for cb in range(14):
    I(f'ds_read_b64 {v(T + 8 + 2 * cb, 2)}, {v(T)} offset:{32 * cb}')
I(f's_mov_b32 {s(S_T4)}, 0xffff0000')
for cb in range(14):
    for rb in range(2):
        d = ACC + (cb * 2 + rb) * 4
        for h in range(2):
            I(f'v_lshlrev_b32 {v(d + 2 * h)}, 16, {v(T + 8 + 2 * cb + h)}')
            I(f'v_and_b32 {v(d + 2 * h + 1)}, {s(S_T4)}, {v(T + 8 + 2 * cb + h)}')
C0 = -2.0 * 0.7978845608028654 * 1.4426950408889634
C1 = C0 * 0.044715
GC0 = 128
GS1, S_HB2 = 46, 48
I(f'v_mov_b32 {v(GC0)}, {f32(C0)}')
I(f's_mov_b32 {s(GS1)}, {f32(C1)}')
I(f's_mul_i32 {s(S_HB2)}, {s(S_MB0)}, {ACT_MB}')
I(f's_lshl_b32 {s(S_T3)}, {s(S_START)}, 10')
I(f's_add_u32 {s(S_HB2)}, {s(S_HB2)}, {s(S_T3)}')
I(f's_add_u32 {s(S_HB2)}, {s(S_HB2)}, {ACT_T + 20 * 1024}')
I(f's_add_u32 {s(S_HB2 + 1)}, {s(S_HB2)}, {ACT_MB}')


def gelu_group(pr, rb, hook=None):
    n = pr * 2 + rb
    tmp = T + 4 + 8 * (n % 2)
    out = T + 20 + 4 * (n % 4)
    xs = [ACC + ((2 * pr + c2) * 2 + rb) * 4 + r for c2 in range(2) for r in range(4)]
    for i, x in enumerate(xs):
        I(f'v_mul_f32 {v(tmp + i)}, {v(x)}, {v(x)}')
    for i, x in enumerate(xs):
        I(f'v_fma_f32 {v(tmp + i)}, {v(tmp + i)}, {s(GS1)}, {v(GC0)}')
    if hook:
        hook()
    for i, x in enumerate(xs):
        I(f'v_mul_f32 {v(tmp + i)}, {v(tmp + i)}, {v(x)}')
    if hook:
        hook()
    for i in range(8):
        I(f'v_exp_f32 {v(tmp + i)}, {v(tmp + i)}')
    if hook:
        hook()
    for i in range(8):
        I(f'v_add_f32 {v(tmp + i)}, 1.0, {v(tmp + i)}')
    if hook:
        hook()
    for i in range(8):
        I(f'v_rcp_f32 {v(tmp + i)}, {v(tmp + i)}')
    if hook:
        hook()
    for i, x in enumerate(xs):
        I(f'v_mul_f32 {v(tmp + i)}, {v(tmp + i)}, {v(x)}')
    if hook:
        hook()
    for i in range(4):
        I(f'v_cvt_pk_bf16_f32 {v(out + i)}, {v(tmp + 2 * i)}, {v(tmp + 2 * i + 1)}')
    I(f'buffer_store_dwordx4 {v(out, 4)}, {v(V_L16 if pr < 4 else V_L16B)}, {s(SRD_WS, 4)}, {s(S_HB2 + rb)} offen offset:{(pr & 3) * 1024} sc1', tag=('h', pr))


stamp(3)
w2done = mainloop([[(ks, j, 32 * j) for j in range(14)] for ks in range(20)], areg_att,
                  [[ks + 4] if ks + 4 < 20 else [] for ks in range(20)], False,
                  lambda t_, f: opt('rf0', 3) if t_ < 16 else opt('rf1', 8), lambda kn: None, lambda t_: [], lambda t_, ph: None)
stamp(4)
stamp(1, 4)
I('s_barrier')
w2rest = [lambda f=f: w2load(f) for f in range(w2done, NW2X)]
w2rest += [lambda i=i, nb=nb: wodma(i, nb) for i in WO_EARLY for nb in range(5)]
FM = opt('fm', 0)
if FM == 0:
    w2rest = [x for fn in w2rest for x in (fn, None)]
elif FM == 1:
    w2rest = [None] * 48 + w2rest
elif FM == 2:
    pass
elif FM == 3:
    w2tail = w2rest[-15:]
    w2rest = [x for fn in w2rest[:-15] for x in (fn, None, None)]


def hook():
    if w2rest:
        fn = w2rest.pop(0)
        if fn:
            fn()


HSPLIT = 4
for pr in range(7):
    for rb in range(2):
        gelu_group(pr, rb, hook)
        if pr == HSPLIT and rb == opt('hrb', 1):
            k.wait_vm_tag(('h', HSPLIT - 1))
            I('s_barrier')
            lab = k.newlabel('L_nh')
            I(f's_cmp_eq_u32 {s(S_WAVE)}, 0')
            I(f's_cbranch_scc0 {lab}')
            flag_store(P1H, S_FOFF, 224)
            k.label(lab)
        if pr == 6 and rb == 0:
            while w2rest:
                hook()
            chk_issue(V_PF)
early_eval()
stamp(5)

k.label('L_phase2')
k.vmq = [(set(), 'p1st')]
k.lgq = []
stamp(6)
HE = opt('he', 2)
for st in range(HE):
    for mb in range(4):
        hload(st, mb, True)
k.wait_vm_tag('p1st')
p1_flag()
lab = k.newlabel('L_haveh')
I(f's_cmp_eq_u32 {s(S_EARLY)}, 1')
I(f's_cbranch_scc1 {lab}')
k.wait_all()
poll(V_PF, 'ffn')
for st in range(HE):
    for mb in range(4):
        hload(st, mb)
k.label(lab)
for st in range(HE, 4):
    for mb in range(4):
        hload(st, mb)
stamp(7)


def p2_setup():
    global S_OBASE, S_OOK, S_HI, S_NL2E, VXO, VB2, VPA2, VRED2, VWO1, VWO2
    S_OBASE, S_OOK, S_HI, S_NL2E = 36, 39, 40, 41
    I(f's_lshl_b32 {s(S_T3)}, {s(S_M2)}, 2')
    I(f's_add_u32 {s(S_T3)}, {s(S_T3)}, {s(S_WAVE)}')
    I(f's_mul_i32 {s(S_OBASE)}, {s(S_T3)}, {ACT_MB}')
    I(f's_add_u32 {s(S_OBASE)}, {s(S_OBASE)}, {ACT_T + (OOB // 2 if "--noH" in sys.argv else 0)}')
    I(f's_mov_b32 {s(S_HI)}, 0xffff0000')
    I(f's_mov_b32 {s(S_NL2E)}, {f32(-1.4426950408889634)}')
    VXO, VB2, VPA2, VRED2, VWO1, VWO2 = T2 + 2, T2 + 3, T2 + 4, T2 + 5, T2 + 6, T2 + 7
    I(f's_mul_i32 {s(S_T3)}, {s(S_T3)}, {16 * 1280}')
    I(f's_mul_i32 {s(S_T4)}, {s(S_NT)}, 160')
    I(f's_add_u32 {s(S_T3)}, {s(S_T3)}, {s(S_T4)}')
    for i in range(3):
        I(f'v_add_u32 {v(VB2)}, {64 * i}, {v(V_LANE)}')
        I(f'v_mul_u32_u24 {v(VXO)}, 205, {v(VB2)}')
        I(f'v_lshrrev_b32 {v(VXO)}, 11, {v(VXO)}')
        I(f'v_mul_u32_u24 {v(VXO)}, {1280 - 160}, {v(VXO)}')
        I(f'v_lshl_add_u32 {v(VXO)}, {v(VB2)}, 4, {v(VXO)}')
        I(f'v_add_u32 {v(VXG + i)}, {s(S_T3)}, {v(VXO)}')
    I(f'v_lshrrev_b32 {v(VB2)}, 5, {v(V_LANE)}')
    I(f'v_lshl_or_b32 {v(VXG + 2)}, {v(VB2)}, 30, {v(VXG + 2)}')
    prow(VB2, VXO, 15)
    I(f'v_mul_u32_u24 {v(VXO)}, 160, {v(VB2)}')
    I(f'v_lshrrev_b32 {v(VB2)}, 4, {v(V_LANE)}')
    I(f'v_lshl_add_u32 {v(VXO)}, {v(VB2)}, 3, {v(VXO)}')
    I(f'v_lshl_add_u32 {v(VB2)}, {v(VB2)}, 3, {s(S_T4)}')
    I(f's_mul_i32 {s(S_T3)}, {s(S_WAVE)}, {15 * 1024}')
    I(f's_add_u32 {s(S_T3)}, {s(S_T3)}, {LDS_RED}')
    I(f'v_add_u32 {v(VXO)}, {s(S_T3)}, {v(VXO)}')
    I(f'v_subrev_u32 {v(V_PF)}, {P1H - P1F}, {v(V_PF)}')
    I(f's_lshr_b32 {s(S_T3)}, {s(S_M2)}, 1')
    I(f's_lshl_b32 {s(S_T3)}, {s(S_T3)}, {4 + FS}')
    I(f's_add_u32 {s(S_T3)}, {s(S_T3)}, {P1F}')
    I(f'v_and_b32 {v(VPA2)}, 7, {v(V_LANE)}')
    I(f'v_lshl_add_u32 {v(VPA2)}, {v(VPA2)}, {FS}, {s(S_T3)}')
    I(f's_mul_i32 {s(S_T3)}, {s(S_WAVE)}, {15 * 1024}')
    I(f'v_add_u32 {v(VWO1)}, {LDS_RED}, {v(V_L16)}')
    I(f'v_add_u32 {v(VRED2)}, {s(S_T3)}, {v(VWO1)}')
    I(f'v_add_u32 {v(VWO2)}, {LDS_WO + 65536}, {v(V_L16)}')
    for i in range(3):
        I(f's_add_u32 {s(S_T3)}, {s(S_WAVE)}, {1 + i}')
        I(f's_and_b32 {s(S_T3)}, {s(S_T3)}, 3')
        I(f's_mul_i32 {s(S_T3)}, {s(S_T3)}, {15 * 1024}')
        I(f'v_add_u32 {v(VRW[i])}, {s(S_T3)}, {v(VWO1)}')


setup2 = k.record(p2_setup)


def oreg(ks):
    return a(4 * W2ORDER[20 + ks], 4)


def oload(ks):
    if ks % 8 == 0 and ks:
        I(f's_add_u32 {s(S_OBASE)}, {s(S_OBASE)}, 8192')
    I(f'buffer_load_dwordx4 {oreg(ks)}, {v(V_L16 if (ks & 7) < 4 else V_L16B)}, {s(SRD_WS, 4)}, {s(S_OBASE)} offen offset:{(ks & 3) * 1024} sc1')


R_ = k.record
fl = {st: [] for st in range(13)}
if W2ALL:
    pfi = [i for i, e in enumerate(setup2) if 'v_subrev_u32' in e[0]][0]
    fl[0] = R_(lambda: [hload(4, mb) for mb in range(4)]) + setup2[pfi:]
    fl[1] = R_(lambda: chk_issue(V_PF)) + setup2[:pfi // 2]
    fl[2] = R_(lambda: w2load(69)) + setup2[pfi // 2:pfi]
    fl[4] = R_(lambda: [wodma(WO_LATE[0], nb) for nb in range(3)])
    fl[5] = R_(lambda: [wodma(WO_LATE[0], nb) for nb in range(3, 5)])
    fl[6] = R_(lambda: [wodma(WO_LATE[1], nb) for nb in range(3)])
    fl[7] = R_(lambda: [wodma(WO_LATE[1], nb) for nb in range(3, 5)]) + R_(lambda: chk_issue(VPA2))
else:
    fl[0] = R_(lambda: [hload(st, mb) for st in (4, 5) for mb in range(4)]) + setup2
    fl[1] = R_(lambda: chk_issue(V_PF)) + R_(lambda: [hload(st, mb) for st in (6, 7) for mb in range(4)])
    fl[2] = R_(lambda: [w2load(f) for f in range(NW2E, NW2E + 5)])
    fl[3] = R_(lambda: [hload(8, mb) for mb in range(4)]) + R_(lambda: [wodma(WO_LATE[0], nb) for nb in range(5)])
    fl[4] = R_(lambda: [w2load(f) for f in range(NW2E + 5, NW2E + 10)])
    fl[5] = R_(lambda: [wodma(WO_LATE[1], nb) for nb in range(5)])
    fl[6] = R_(lambda: [w2load(f) for f in range(NW2E + 10, NW2E + 14)])
    fl[7] = R_(lambda: [w2load(f) for f in range(NW2E + 14, 70)]) + R_(lambda: chk_issue(VPA2))
NOY = opt('noy', 12)
late = R_(lambda: [oload(ks) for ks in range(4)])
late += R_(lambda: [I(f'buffer_load_dwordx2 {v(B2V + 2 * nb, 2)}, {v(VB2)}, {s(SRD_B2, 4)}, 0 offen offset:{32 * nb}') for nb in range(5)])
late += R_(lambda: [oload(ks) for ks in range(4, NOY)])
olate = R_(lambda: [oload(ks) for ks in range(NOY, 20)])
olate += R_(lambda: [I(f'buffer_load_dwordx4 {v(XIN + 4 * i, 4)}, {v(VXG + i)}, {s(SRD_X, 4)}, 0 offen') for i in range(3)])
TS = 11
ATK = opt('atk', 9)
nl = len(late)
for i, st in enumerate(range(ATK, TS)):
    fl[st] = fl[st] + late[i * nl // (14 - ATK):(i + 1) * nl // (14 - ATK)]
late = late[(TS - ATK) * nl // (14 - ATK):]
I(f's_mov_b32 {s(39)}, 1')
for st in range(TS):
    if st in (0, 1, 3, 5, 8):
        stamp(1 + (0, 1, 3, 5, 8).index(st), 3)
    if st == 3:
        poll(V_PF, 'ffn2', preissued=True)
    if st == ATK:
        poll(VPA2, 'att', preissued=True)
    q = fl[st]
    per = max(8, -(-sum(cost(e) for e in q) // 16))
    for mb in range(4):
        for nb in range(5):
            d = YACC + (mb * 5 + nb) * 4
            c_ = '0' if st == 0 else v(d, 4)
            I(f'v_mfma_f32_16x16x32_bf16 {v(d, 4)}, {w2reg(st, nb)}, {hreg(st, mb)}, {c_}')
            u = 0
            while q and nb < 4 and (u + cost(q[0]) <= per) and (nb % 2 == 0 or len(q) > 2 * (4 - mb)):
                u += cost(q[0])
                k.play(q.pop(0))
        if st + HWN < 14:
            hload(st + HWN, mb)
    while q:
        k.play(q.pop(0))
stamp(6, 3)
YOWN = YACC + 60
n = 0
for mb in range(4):
    for st in range(TS, 14):
        for nb in range(5):
            d = YACC + (mb * 5 + nb) * 4
            I(f'v_mfma_f32_16x16x32_bf16 {v(d, 4)}, {w2reg(st, nb)}, {hreg(st, mb)}, {v(d, 4)}')
            j = (st - TS) * 5 + nb
            if mb and j >= 3 and j % 2 == 1 and (j - 3) // 2 < 5:
                nw = (j - 3) // 2
                I(f'ds_write_b128 {v(VRW[mb - 1])}, {v(YACC + ((mb - 1) * 5 + nw) * 4, 4)} offset:{((mb - 1) * 5 + nw) * 1024}')
            elif late and n % 4 == 0:
                k.play(late.pop(0))
            n += 1
while late:
    k.play(late.pop(0))
stamp(8)
stamp(7, 3)
k.wait_all(vm=False, lg=True)
I('s_barrier')
YT = HW + 20
for i in range(3):
    for nb in range(5):
        I(f'ds_read_b128 {v(YT + 20 * i + 4 * nb, 4)}, {v(VRED2)} offset:{(i * 5 + nb) * 1024}')
WOW = YACC
NWW = 14
LA2 = 11


def woread(n):
    off = n * 1024
    if off < 65536:
        I(f'ds_read_b128 {v(WOW + 4 * (n % NWW), 4)}, {v(V_L16)} offset:{off}')
    else:
        I(f'ds_read_b128 {v(WOW + 4 * (n % NWW), 4)}, {v(VWO2)} offset:{off - 65536}')


for n in range(LA2):
    woread(n)
G1 = YT
valu = []
for i in range(3):
    for r in range(20):
        valu.append(f'v_add_f32 {v(YOWN + r)}, {v(YOWN + r)}, {v(YT + 20 * i + r)}')
seq = [
    lambda y, p, r: f'v_cvt_pk_bf16_f32 {v(p)}, {v(y)}, {v(y + 1)}',
    lambda y, p, r: f'v_lshlrev_b32 {v(y)}, 16, {v(p)}',
    lambda y, p, r: f'v_and_b32 {v(y + 1)}, {s(S_HI)}, {v(p)}',
    lambda y, p, r: f'v_lshlrev_b32 {v(p)}, 16, {v(B2V + r)}',
    lambda y, p, r: f'v_and_b32 {v(p + 1)}, {s(S_HI)}, {v(B2V + r)}',
    lambda y, p, r: f'v_add_f32 {v(y)}, {v(y)}, {v(p)}',
    lambda y, p, r: f'v_add_f32 {v(y + 1)}, {v(y + 1)}, {v(p + 1)}',
    lambda y, p, r: f'v_cvt_pk_bf16_f32 {v(p)}, {v(y)}, {v(y + 1)}',
    lambda y, p, r: f'v_lshlrev_b32 {v(y)}, 16, {v(p)}',
    lambda y, p, r: f'v_and_b32 {v(y + 1)}, {s(S_HI)}, {v(p)}',
    lambda y, p, r: f'v_mul_f32 {v(p)}, {s(S_NL2E)}, {v(y)}',
    lambda y, p, r: f'v_mul_f32 {v(p + 1)}, {s(S_NL2E)}, {v(y + 1)}',
    lambda y, p, r: f'v_exp_f32 {v(p)}, {v(p)}',
    lambda y, p, r: f'v_exp_f32 {v(p + 1)}, {v(p + 1)}',
    lambda y, p, r: f'v_add_f32 {v(p)}, 1.0, {v(p)}',
    lambda y, p, r: f'v_add_f32 {v(p + 1)}, 1.0, {v(p + 1)}',
    lambda y, p, r: f'v_rcp_f32 {v(p)}, {v(p)}',
    lambda y, p, r: f'v_rcp_f32 {v(p + 1)}, {v(p + 1)}',
    lambda y, p, r: f'v_mul_f32 {v(y)}, {v(y)}, {v(p)}',
    lambda y, p, r: f'v_mul_f32 {v(y + 1)}, {v(y + 1)}, {v(p + 1)}',
    lambda y, p, r: f'v_cvt_pk_bf16_f32 {v(p)}, {v(y)}, {v(y + 1)}',
    lambda y, p, r: f'v_lshlrev_b32 {v(y)}, 16, {v(p)}',
    lambda y, p, r: f'v_and_b32 {v(y + 1)}, {s(S_HI)}, {v(p)}',
]
for fn in seq:
    for r in range(10):
        valu.append(fn(YOWN + 2 * r, G1 + 2 * r, r))
for r in range(12):
    valu.append(f'v_lshlrev_b32 {v(G1 + 2 * r)}, 16, {v(XIN + r)}')
    valu.append(f'v_and_b32 {v(G1 + 2 * r + 1)}, {s(S_HI)}, {v(XIN + r)}')
nv = len(valu)
stamp(8, 3)
vi = 0
for n in range(100):
    ks, nb = divmod(n, 5)
    d = SACC + 4 * nb
    c_ = '0' if ks == 0 else v(d, 4)
    if n % 2 == 0:
        k._need(regs_of(v(WOW + 4 * (n % NWW), 8)))
    I(f'v_mfma_f32_16x16x32_bf16 {v(d, 4)}, {v(WOW + 4 * (n % NWW), 4)}, {oreg(ks)}, {c_}')
    if n + LA2 < 100:
        woread(n + LA2)
    if olate and n % 2 == 1:
        k.play(olate.pop(0))
    while vi < nv and vi * 100 < (n + 1) * nv:
        I(valu[vi])
        vi += 1
PT = YT + 24
seq = [
    lambda sx, y, p, r: f'v_cvt_pk_bf16_f32 {v(p)}, {v(sx)}, {v(sx + 1)}',
    lambda sx, y, p, r: f'v_lshlrev_b32 {v(sx)}, 16, {v(p)}',
    lambda sx, y, p, r: f'v_and_b32 {v(sx + 1)}, {s(S_HI)}, {v(p)}',
    lambda sx, y, p, r: f'v_mul_f32 {v(sx)}, {v(sx)}, {v(y)}',
    lambda sx, y, p, r: f'v_mul_f32 {v(sx + 1)}, {v(sx + 1)}, {v(y + 1)}',
    lambda sx, y, p, r: f'v_cvt_pk_bf16_f32 {v(p)}, {v(sx)}, {v(sx + 1)}',
]
for nb in range(5):
    for fn in seq:
        for r in (2 * nb, 2 * nb + 1):
            I(fn(SACC + 2 * r, YOWN + 2 * r, PT + r, r))
    I(f'ds_write_b64 {v(VXO)}, {v(PT + 2 * nb, 2)} offset:{32 * nb}')
for i in range(3):
    I(f'ds_read_b128 {v(XIN + 4 * i, 4)}, {v(VRED2)} offset:{1024 * i}')
U = YACC
for i in range(3):
    rr = range(4 * i, 4 * i + 4)
    for r in rr:
        I(f'v_lshlrev_b32 {v(U + 2 * r)}, 16, {v(XIN + r)}')
        I(f'v_and_b32 {v(U + 2 * r + 1)}, {s(S_HI)}, {v(XIN + r)}')
    for r in rr:
        I(f'v_add_f32 {v(U + 2 * r)}, {v(U + 2 * r)}, {v(G1 + 2 * r)}')
        I(f'v_add_f32 {v(U + 2 * r + 1)}, {v(U + 2 * r + 1)}, {v(G1 + 2 * r + 1)}')
    for r in rr:
        I(f'v_cvt_pk_bf16_f32 {v(XIN + r)}, {v(U + 2 * r)}, {v(U + 2 * r + 1)}')
    I(f'buffer_store_dwordx4 {v(XIN + 4 * i, 4)}, {v(VXG + i)}, {s(SRD_OUT, 4)}, 0 offen')
ECHO = opt('echo', -1)
if ECHO >= 0:
    stamp(9, -1)
    k.wait_all()
    I(f's_sub_u32 {s(S_T3)}, {s(S_STAMP + 2 * ECHO)}, {s(S_STAMP)}')
    I(f's_min_u32 {s(S_T3)}, {s(S_T3)}, 10000')
    k.label('L_echo')
    I(f's_memrealtime {s(S_T4, 2)}')
    k.wait_all()
    I(f's_sub_u32 {s(S_T4)}, {s(S_T4)}, {s(S_STAMP + 18)}')
    I(f's_cmp_lt_u32 {s(S_T4)}, {s(S_T3)}')
    I('s_cbranch_scc1 L_echo')
elif STAMPS:
    stamp(9, -1)
    k.wait_all()
    I(f's_lshl_b32 {s(S_T3)}, {s(S_WG)}, 8')
    I(f's_lshl_b32 {s(S_T4)}, {s(S_WAVE)}, 6')
    I(f's_add_u32 {s(S_T3)}, {s(S_T3)}, {s(S_T4)}')
    I(f's_add_u32 {s(S_T3)}, {s(S_T3)}, {STAMP_OFF}')
    I(f'v_mov_b32 {v(T2)}, 0')
    I('s_mov_b64 exec, 1')
    for i in range(10):
        I(f'v_mov_b32 {v(T2 + 1)}, {s(S_STAMP + 2 * i)}')
        I(f'buffer_store_dword {v(T2 + 1)}, {v(T2)}, {s(SRD_WS, 4)}, {s(S_T3)} offen offset:{4 * i}')
    I(f'v_mov_b32 {v(T2 + 1)}, {s(S_EARLY)}')
    I(f'buffer_store_dword {v(T2 + 1)}, {v(T2)}, {s(SRD_WS, 4)}, {s(S_T3)} offen offset:52')
    I(f'v_mov_b32 {v(T2 + 1)}, {s(S_OOK)}')
    I(f'buffer_store_dword {v(T2 + 1)}, {v(T2)}, {s(SRD_WS, 4)}, {s(S_T3)} offen offset:56')
    I(f'v_mov_b32 {v(T2 + 1)}, {s(S_TYPE)}')
    I(f'buffer_store_dword {v(T2 + 1)}, {v(T2)}, {s(SRD_WS, 4)}, {s(S_T3)} offen offset:60')
if '--padx' in sys.argv:
    for i in range(2048):
        I(f'v_add3_u32 {v(16 + i % 8)}, {v(16 + i % 8)}, v2, v3')
if '--pady' in sys.argv:
    I(f's_mov_b32 {s(S_T3)}, 0')
    k.label('L_pady')
    for i in range(64):
        I(f'v_add3_u32 {v(16 + i % 8)}, {v(16 + i % 8)}, v2, v3')
    I(f's_add_u32 {s(S_T3)}, {s(S_T3)}, 1')
    I(f's_cmp_lt_u32 {s(S_T3)}, 32')
    I('s_cbranch_scc1 L_pady')
k.label('L_end')
I('s_endpgm')

hdr = open('recurrent_scan__sliding_local_dilated__dense_activation_gelu__prompt.s.ref').read().split('\n')
head = [l for l in hdr if l.startswith(';') and '@launch' not in l and 'Override' not in l and 'grid=ceil' not in l]
print('\n'.join(head))
print(f'; @launch grid=(256,1,1) block=(256,1,1) lds={LDS_TOTAL}')
print(f'''.amdgcn_target "amdgcn-amd-amdhsa--gfx950"
.text
.globl {KNAME}
.p2align 8
.type {KNAME},@function
{KNAME}:''')
print(k.text())
print(f'''.section .rodata,"a"
.p2align 6
.amdhsa_kernel {KNAME}
  .amdhsa_next_free_vgpr 512
  .amdhsa_next_free_sgpr 102
  .amdhsa_accum_offset 256
  .amdhsa_group_segment_fixed_size 0
  .amdhsa_kernarg_size 88
  .amdhsa_user_sgpr_count 2
  .amdhsa_user_sgpr_kernarg_segment_ptr 1
  .amdhsa_system_sgpr_workgroup_id_x 1
  .amdhsa_float_denorm_mode_32 3
.end_amdhsa_kernel''')
```

```python
import sys, struct
from asmlib import *

KNAME = 'recurrent_scan__sliding_local_dilated__dense_activation_gelu__prompt_kernel'
STAMPS = '--stamps' in sys.argv


def opt(name, default):
    for x in sys.argv:
        if x.startswith(f'--{name}='):
            return int(x.split('=')[1])
    return default


SMODE = opt('smode', 0)

XN_T = 0
ACT_T = 128 * 20 * 1024
ACT_MB = 74 * 1024
W_T = ACT_T + 128 * ACT_MB
FS = opt('fs', 6)
WS_ = opt('ws', 6)
LNF = W_T + 74 * 40 * 1024
P1F = LNF + (256 << FS)
P1H = P1F + (256 << FS)
WTF = P1H + (256 << FS)
WS_USED = LNF + (1024 << 7)
STAMP_OFF = WS_USED
WS_REC = WS_USED + (256 * 4 * 64 if STAMPS else 0)
OOB = 0x40000000

RROW = 1056
SLOT = 16 * RROW
NSLOT = 8
HALO = NSLOT * SLOT
CNT = HALO + 20 * 1024
RS = 496
STG = 4 * SLOT
LDS_WO = 0
LDS_RED = 100 * 1024
LDS_TOTAL = 163840


def f32(x):
    return '0x%08x' % struct.unpack('<I', struct.pack('<f', x))[0]


S_WG, S_FOFF = 2, 3
SRD_X, SRD_B, SRD_WS, SRD_DBG, SRD_OUT, SRD_RT, SRD_B1, SRD_B2 = 4, 8, 12, 16, 20, 24, 28, 56
P_X, P_WQKV, P_WO, P_BX, P_W1, P_B1, P_W2, P_B2, P_OUT, P_DBG, P_WS = 32, 34, 36, 38, 40, 42, 44, 46, 48, 50, 52
S_WAVE, S_MT, S_TYPE, S_IDX, S_FB, S_PITCH, S_KSTR, S_START = 60, 61, 62, 63, 64, 65, 66, 67
S_T0, S_T1, S_T2, S_T3, S_T4, S_T5 = 68, 69, 70, 71, 72, 73
S_M0B, S_SOFF, S_M2, S_NT, S_SPIN, S_TAG = 74, 75, 76, 77, 78, 79
S_STAMP = 80
S_W2A, S_W2B = 100, 101
S_WOB, S_WOM, S_LAST = 16, 17, 18
S_HB, S_MB0 = 32, 33
S_AO = 36

V_LANE = 1
V_DMA = 2
V_TR0, V_TR1 = 6, 7
V_TRH0, V_TRH1 = 8, 9
V_L16 = 10
V_L16B = 11
V_PA = 12
V_POLL = 13
V_X = 14
V_PF = 15
ACC = 16
HACC = 136
WIN = 148
HX = 180
T = 188
BIAS = 226
W2V = 228
P4 = 252

k = K()
I = k.I


def stamp(idx, mode=0):
    if STAMPS and (mode == SMODE or mode == -1):
        I(f'{"s_memtime" if "--cyc" in sys.argv else "s_memrealtime"} {s(S_STAMP + 2 * idx, 2)}')


def srd(base, plo, nbytes):
    I(f's_mov_b32 {s(base)}, {s(plo)}')
    I(f's_mov_b32 {s(base + 1)}, {s(plo + 1)}')
    I(f's_mov_b32 {s(base + 2)}, {nbytes}')
    I(f's_mov_b32 {s(base + 3)}, 0x00020000')


def csel(dst, x, y):
    I(f's_mov_b32 {s(dst)}, {y}')
    I(f's_cselect_b32 {s(dst)}, {x}, {s(dst)}')


def chk_issue(addrv, n=1):
    if n == 1:
        I(f'buffer_load_dword {v(V_POLL)}, {v(addrv)}, {s(SRD_WS, 4)}, 0 offen sc1')
    else:
        I(f'buffer_load_dwordx4 {v(P4, 4)}, {v(addrv)}, {s(SRD_WS, 4)}, 0 offen sc1')


def chk_eval(n=1):
    if n == 1:
        I(f'v_cmp_ne_u32 vcc, {s(S_TAG)}, {v(V_POLL)}')
    else:
        for i in range(4):
            I(f'v_xor_b32 {v(P4 + i)}, {s(S_TAG)}, {v(P4 + i)}')
        I(f'v_or3_b32 {v(P4)}, {v(P4)}, {v(P4 + 1)}, {v(P4 + 2)}')
        I(f'v_or_b32 {v(P4)}, {v(P4)}, {v(P4 + 3)}')
        I(f'v_cmp_ne_u32 vcc, 0, {v(P4)}')


def poll(addrv, name, n=1, preissued=False, sleep=1):
    lab = k.newlabel('L_poll_' + name)
    done = k.newlabel('L_polled_' + name)
    if not preissued:
        chk_issue(addrv, n)
    chk_eval(n)
    I(f's_mov_b32 {s(S_SPIN)}, 0')
    I(f's_cbranch_vccz {done}')
    st = k.state()
    k.label(lab)
    I(f's_sleep {sleep}')
    chk_issue(addrv, n)
    k.wait_all(vm=True, lg=False)
    chk_eval(n)
    I(f's_add_u32 {s(S_SPIN)}, {s(S_SPIN)}, 1')
    I(f's_cbranch_vccz {done}')
    I(f's_cmp_lt_u32 {s(S_SPIN)}, 0x40000')
    I(f's_cbranch_scc1 {lab}')
    k.label(done)
    k.set_state(st)


def flag_store(base, offs, t0):
    I(f'v_mov_b32 {v(t0)}, {s(S_TAG)}')
    I(f'v_mov_b32 {v(t0 + 1)}, {base}')
    I('s_mov_b64 exec, 1')
    I(f'buffer_store_dword {v(t0)}, {v(t0 + 1)}, {s(SRD_WS, 4)}, {s(offs)} offen sc1')
    I('s_mov_b64 exec, -1')
    k.vmq.pop()


def dma1(j, soff_reg, tag):
    I(f'buffer_load_dwordx4 {v(V_DMA + j)}, {s(SRD_B, 4)}, {s(soff_reg)} offen offset:{j * RROW} lds', tag=tag)


def bf16r(dst, src):
    I(f'v_cvt_pk_bf16_f32 {v(dst)}, {v(src)}, {v(src)}')
    I(f'v_lshlrev_b32 {v(dst)}, 16, {v(dst)}')


def prow(dst, tmp, mask):
    I(f'v_and_b32 {v(dst)}, {mask & ~7}, {v(V_LANE)}')
    I(f'v_bfe_u32 {v(tmp)}, {v(V_LANE)}, 2, 1')
    I(f'v_add_u32 {v(dst)}, {v(dst)}, {v(tmp)}')
    I(f'v_and_b32 {v(tmp)}, 3, {v(V_LANE)}')
    I(f'v_lshl_add_u32 {v(dst)}, {v(tmp)}, 1, {v(dst)}')


def row_sum(r, t1):
    for sh in (4, 8):
        I(f'v_add_f32_dpp {v(r)}, {v(r)}, {v(r)} row_ror:{sh} row_mask:0xf bank_mask:0xf')
    for op in ('v_permlane16_swap_b32', 'v_permlane32_swap_b32'):
        I(f'v_mov_b32 {v(t1)}, {v(r)}')
        I(f'{op} {v(r)}, {v(t1)}')
        I(f'v_add_f32 {v(r)}, {v(r)}, {v(t1)}')


I(f's_cmp_ge_u32 {s(S_WG)}, 256')
I('s_cbranch_scc1 L_end')
I(f's_load_dwordx16 {s(32, 16)}, s[0:1], 0')
I(f's_load_dwordx4 {s(48, 4)}, s[0:1], 64')
I(f's_load_dwordx2 {s(52, 2)}, s[0:1], 80')
stamp(0, -1)
I(f'v_lshrrev_b32 {v(T)}, 6, v0')
I(f'v_and_b32 {v(V_LANE)}, 63, v0')
I(f'v_readfirstlane_b32 {s(S_WAVE)}, {v(T)}')
I(f'v_mov_b32 {v(T + 2)}, 0')
I(f'v_mov_b32 {v(T + 3)}, 0')
I(f'v_mov_b32 {v(T + 1)}, {CNT}')
I(f'ds_write_b64 {v(T + 1)}, {v(T + 2, 2)}')
I(f'ds_write_b64 {v(T + 1)}, {v(T + 2, 2)} offset:8')
I(f's_cmp_lt_u32 {s(S_WAVE)}, 2')
I('s_cbranch_scc1 L_nocp')
CPV = T + 35
I(f's_getpc_b64 {s(S_TAG - 1, 2)}')
k.label('L_pc')
I(f's_lshr_b32 {s(S_T3)}, {s(S_WG)}, 2')
I(f's_and_b32 {s(S_T3)}, {s(S_T3)}, 6')
I(f's_and_b32 {s(S_T4)}, {s(S_WAVE)}, 1')
I(f's_add_u32 {s(S_T3)}, {s(S_T3)}, {s(S_T4)}')
I(f's_lshl_b32 {s(S_T3)}, {s(S_T3)}, 13')
I(f'v_lshl_add_u32 {v(CPV)}, {v(V_LANE)}, 7, {s(S_T3)}')
I(f'v_min_u32 {v(CPV)}, L_end-L_pc, {v(CPV)}')
I(f'global_load_dword {v(T + 17)}, {v(CPV)}, {s(S_TAG - 1, 2)}')
k.vmq.pop()
k.label('L_nocp')
I(f's_and_b32 {s(S_T0)}, {s(S_WG)}, 7')
I(f's_lshr_b32 {s(S_T1)}, {s(S_WG)}, 3')
I(f's_and_b32 {s(S_MT)}, {s(S_T0)}, 1')
I(f's_lshl_b32 {s(S_MT)}, {s(S_MT)}, 3')
I(f's_and_b32 {s(S_T2)}, {s(S_T1)}, 7')
I(f's_add_u32 {s(S_MT)}, {s(S_MT)}, {s(S_T2)}')
I(f's_lshr_b32 {s(S_T2)}, {s(S_T1)}, 3')
I(f's_and_b32 {s(S_TYPE)}, {s(S_T2)}, 1')
I(f's_lshr_b32 {s(S_T2)}, {s(S_T2)}, 1')
I(f's_and_b32 {s(S_IDX)}, {s(S_T0)}, 6')
I(f's_add_u32 {s(S_IDX)}, {s(S_IDX)}, {s(S_T2)}')
I(f's_lshl_b32 {s(S_FB)}, {s(S_MT)}, 4')
I(f's_lshl_b32 {s(S_T2)}, {s(S_TYPE)}, 3')
I(f's_add_u32 {s(S_FB)}, {s(S_FB)}, {s(S_T2)}')
I(f's_add_u32 {s(S_FB)}, {s(S_FB)}, {s(S_IDX)}')
I(f's_cmp_eq_u32 {s(S_TYPE)}, 0')
csel(S_PITCH, 3840, 3456)
LR, LP, LXA = T + 4, T + 5, T + 6
I(f'v_and_b32 {v(LR)}, 3, {v(V_LANE)}')
I(f'v_lshrrev_b32 {v(LP)}, 2, {v(V_LANE)}')
I(f's_lshl_b32 {s(S_T3)}, {s(S_FB)}, 3')
I(f's_add_u32 {s(S_T3)}, {s(S_T3)}, {s(S_WAVE)}')
I(f'v_lshl_add_u32 {v(LR)}, {v(LR)}, 1, {s(S_T3)}')
I(f'v_mul_u32_u24 {v(LXA)}, 1280, {v(LR)}')
I(f'v_lshl_add_u32 {v(LXA)}, {v(LP)}, 4, {v(LXA)}')
PFL = 0
I(f'v_and_b32 {v(T + 32)}, 15, {v(V_LANE)}')
I(f's_cmp_eq_u32 {s(S_TYPE)}, 0')
if '--attc' in sys.argv:
    I(f's_cmp_eq_u32 {s(S_TYPE)}, 5')
I(f's_cselect_b32 {s(S_T3)}, 8, 6')
I(f's_cselect_b32 {s(S_T4)}, {1280 - 384}, 0')
csel(S_M0B, 160, 448)
I(f'v_min_u32 {v(T + 32)}, {s(S_T3)}, {v(T + 32)}')
I(f'v_mul_u32_u24 {v(T + 33)}, 11, {v(T + 32)}')
I(f'v_lshrrev_b32 {v(T + 33)}, 5, {v(T + 33)}')
I(f'v_mul_u32_u24 {v(T + 33)}, {s(S_T4)}, {v(T + 33)}')
I(f'v_lshl_add_u32 {v(PFL)}, {v(T + 32)}, 7, {v(T + 33)}')
I(f'v_lshrrev_b32 {v(T + 32)}, 4, {v(V_LANE)}')
I(f'v_mad_u32_u24 {v(PFL)}, {v(T + 32)}, {s(S_PITCH)}, {v(PFL)}')
I(f's_and_b32 {s(S_T3)}, {s(S_IDX)}, 6')
I(f's_mul_i32 {s(S_M0B)}, {s(S_M0B)}, {s(S_T3)}')
I(f'v_add_u32 {v(PFL)}, {s(S_M0B)}, {v(PFL)}')
I(f's_and_b32 {s(S_KSTR)}, {s(S_MT)}, 7')
I(f's_lshl_b32 {s(S_KSTR)}, {s(S_KSTR)}, 1')
I(f's_and_b32 {s(S_T4)}, {s(S_IDX)}, 1')
I(f's_add_u32 {s(S_KSTR)}, {s(S_KSTR)}, {s(S_T4)}')
assert all((x * 11) >> 5 == x // 3 for x in range(9))
k.wait_all(vm=False, lg=True)
stamp(1, 2)
I('s_barrier')
srd(SRD_X, P_X, 2048 * 1280)
srd(SRD_DBG, P_DBG, 256)
XR = T + 8
TAGV = T + 36
I(f's_cmp_ge_u32 {s(S_WAVE)}, 2')
I('s_cbranch_scc1 L_pf')

for i in range(5):
    I(f'buffer_load_dwordx4 {v(XR + 4 * i, 4)}, {v(LXA)}, {s(SRD_X, 4)}, 0 offen offset:{256 * i}', tag='x')
I(f'buffer_load_dword {v(TAGV)}, {v(T + 2)}, {s(SRD_DBG, 4)}, 0 offen sc1')
srd(SRD_WS, P_WS, WS_REC)
I(f's_lshl_b32 {s(S_FOFF)}, {s(S_FB)}, {FS}')
XF = ACC
SA_ = T + 3
I(f'v_lshrrev_b32 {v(SA_)}, 4, {v(LR)}')
I(f'v_mul_u32_u24 {v(SA_)}, 20480, {v(SA_)}')
I(f'v_lshrrev_b32 {v(T)}, 4, {v(V_LANE)}')
I(f'v_lshl_add_u32 {v(SA_)}, {v(T)}, 10, {v(SA_)}')
I(f's_and_b32 {s(S_T4)}, {s(S_FB)}, 1')
I(f's_lshl_b32 {s(S_T4)}, {s(S_T4)}, 1')
I(f's_add_u32 {s(S_T4)}, {s(S_T4)}, {s(S_WAVE)}')
I(f's_lshl_b32 {s(S_T4)}, {s(S_T4)}, 8')
I(f'v_add_u32 {v(SA_)}, {s(S_T4)}, {v(SA_)}')
I(f'v_and_b32 {v(T)}, 15, {v(V_LANE)}')
I(f'v_lshl_add_u32 {v(SA_)}, {v(T)}, 4, {v(SA_)}')
I(f's_mov_b32 {s(S_T3)}, 0xffff0000')
stamp(2, 2)
if STAMPS and SMODE == 2:
    k.wait_vm_tag('x')
stamp(3, 2)
SUM = T + 4
for i in range(20):
    I(f'v_lshlrev_b32 {v(XF + 2 * i)}, 16, {v(XR + i)}')
    I(f'v_and_b32 {v(XF + 2 * i + 1)}, {s(S_T3)}, {v(XR + i)}')
    if i == 1:
        I(f'v_pk_add_f32 {v(SUM, 2)}, {v(XF, 2)}, {v(XF + 2, 2)}')
    elif i > 1:
        I(f'v_pk_add_f32 {v(SUM, 2)}, {v(SUM, 2)}, {v(XF + 2 * i, 2)}')
I(f'v_add_f32 {v(SUM)}, {v(SUM)}, {v(SUM + 1)}')
row_sum(SUM, SUM + 1)
MEAN = T + 6
I(f'v_mul_f32 {v(MEAN)}, {f32(1.0 / 640)}, {v(SUM)}')
I(f'v_mov_b32 {v(MEAN + 1)}, {v(MEAN)}')
SQ = T + 4
DV = T + 28
for i in range(20):
    d = DV + 2 * (i & 1)
    I(f'v_pk_add_f32 {v(d, 2)}, {v(XF + 2 * i, 2)}, {v(MEAN, 2)} neg_lo:[0,1] neg_hi:[0,1]')
    if i == 0:
        I(f'v_pk_mul_f32 {v(SQ, 2)}, {v(d, 2)}, {v(d, 2)}')
    else:
        I(f'v_pk_fma_f32 {v(SQ, 2)}, {v(d, 2)}, {v(d, 2)}, {v(SQ, 2)}')
I(f'v_add_f32 {v(SQ)}, {v(SQ)}, {v(SQ + 1)}')
row_sum(SQ, SQ + 1)
I(f'v_mul_f32 {v(SQ)}, {f32(1.0 / 640)}, {v(SQ)}')
bf16r(SQ, SQ)
I(f'v_add_f32 {v(SQ)}, {f32(1e-5)}, {v(SQ)}')
bf16r(SQ, SQ)
I(f'v_sqrt_f32 {v(SQ)}, {v(SQ)}')
bf16r(MEAN, MEAN)
bf16r(SQ, SQ)
I(f'v_rcp_f32 {v(SQ + 1)}, {v(SQ)}')
I(f'v_mov_b32 {v(MEAN + 1)}, {v(MEAN)}')
I(f'v_fma_f32 {v(SQ)}, -{v(SQ)}, {v(SQ + 1)}, 1.0')
I(f'v_fma_f32 {v(SQ)}, {v(SQ)}, {v(SQ + 1)}, {v(SQ + 1)}')
I(f'v_mov_b32 {v(SQ + 1)}, {v(SQ)}')
for i in range(20):
    x2 = XF + 2 * i
    I(f'v_pk_add_f32 {v(x2, 2)}, {v(x2, 2)}, {v(MEAN, 2)} neg_lo:[0,1] neg_hi:[0,1]')
    I(f'v_cvt_pk_bf16_f32 {v(XR + i)}, {v(x2)}, {v(x2 + 1)}')
    I(f'v_lshlrev_b32 {v(x2)}, 16, {v(XR + i)}')
    I(f'v_and_b32 {v(x2 + 1)}, {s(S_T3)}, {v(XR + i)}')
    I(f'v_pk_mul_f32 {v(x2, 2)}, {v(x2, 2)}, {v(SQ, 2)}')
    I(f'v_cvt_pk_bf16_f32 {v(XR + i)}, {v(x2)}, {v(x2 + 1)}')
    if i % 4 == 3:
        ii = i // 4
        I(f's_mov_b32 {s(S_T4)}, {XN_T + 4096 * ii}')
        I(f'buffer_store_dwordx4 {v(XR + 4 * ii, 4)}, {v(SA_)}, {s(SRD_WS, 4)}, {s(S_T4)} offen sc1')
stamp(1)
stamp(4, 2)
if opt('gate', 1) == 2:
    I(f'v_mov_b32 {v(T + 1)}, {CNT}')
    I(f'v_mov_b32 {v(T)}, 1')
    I('s_mov_b64 exec, 1')
    I(f'ds_add_u32 {v(T + 1)}, {v(T)} offset:8')
    I('s_mov_b64 exec, -1')
I(f'v_readfirstlane_b32 {s(S_TAG)}, {v(TAGV)}')
I(f'v_mov_b32 {v(T + 1)}, 0')
I(f's_mov_b32 {s(S_SPIN)}, 0')
I(f's_cmp_lg_u32 {s(S_TAG)}, 0')
I('s_cbranch_scc1 L_tagok')
k.label('L_tagpoll')
I(f'buffer_load_dword {v(TAGV)}, {v(T + 1)}, {s(SRD_DBG, 4)}, 0 offen sc1')
k.wait_all()
I(f'v_readfirstlane_b32 {s(S_TAG)}, {v(TAGV)}')
I(f's_add_u32 {s(S_SPIN)}, {s(S_SPIN)}, 1')
I(f's_cmp_lg_u32 {s(S_TAG)}, 0')
I('s_cbranch_scc1 L_tagok')
I(f's_cmp_lt_u32 {s(S_SPIN)}, 0x40000')
I('s_cbranch_scc1 L_tagpoll')
k.label('L_tagok')
I(f'v_mov_b32 {v(T + 1)}, {CNT}')
I(f'ds_write_b32 {v(T + 1)}, {v(TAGV)} offset:4')
I(f'v_mov_b32 {v(T)}, 1')
k.wait_all()
stamp(5, 2)
I('s_mov_b64 exec, 1')
I(f'ds_add_rtn_u32 {v(T + 2)}, {v(T + 1)}, {v(T)}')
I('s_mov_b64 exec, -1')
I(f'v_readfirstlane_b32 {s(S_T3)}, {v(T + 2)}')
I(f's_cmp_eq_u32 {s(S_T3)}, 1')
I('s_cbranch_scc0 L_common')
flag_store(LNF, S_FOFF, T)
I('s_branch L_common')

k.vmq = []
k.lgq = []
k.label('L_pf')
I(f's_cmp_lt_u32 {s(S_WG)}, 8')
I('s_cbranch_scc0 L_notag')
I(f's_cmp_eq_u32 {s(S_WAVE)}, 2')
I('s_cbranch_scc0 L_notag')
I(f's_memrealtime {s(S_T4, 2)}')
I(f's_or_b32 {s(S_T4)}, {s(S_T4)}, 1')
I(f'v_mov_b32 {v(T + 2)}, {s(S_T4)}')
I('s_mov_b64 exec, 1')
I(f'buffer_atomic_cmpswap {v(T + 2, 2)}, {v(T + 3)}, {s(SRD_DBG, 4)}, 0 offen sc1')
I('s_mov_b64 exec, -1')
k.label('L_notag')


def srd_b():
    I(f's_cmp_eq_u32 {s(S_TYPE)}, 0')
    I(f's_cselect_b32 {s(SRD_B)}, {s(P_WQKV)}, {s(P_W1)}')
    I(f's_cselect_b32 {s(SRD_B + 1)}, {s(P_WQKV + 1)}, {s(P_W1 + 1)}')
    csel(SRD_B + 2, 640 * 3840, 640 * 3456)
    I(f's_mov_b32 {s(SRD_B + 3)}, 0x00020000')


if opt('pf0', 0):
    I(f's_cmp_eq_u32 {s(S_WAVE)}, 2')
    I(f's_cselect_b32 {s(SRD_B)}, {s(P_WQKV)}, {s(P_W1)}')
    I(f's_cselect_b32 {s(SRD_B + 1)}, {s(P_WQKV + 1)}, {s(P_W1 + 1)}')
    csel(SRD_B + 2, 640 * 3840, 640 * 3456)
    I(f's_mov_b32 {s(SRD_B + 3)}, 0x00020000')
    csel(S_T3, 9600, 8704)
    I(f's_mul_i32 {s(S_T3)}, {s(S_T3)}, {s(S_WG)}')
    I(f'v_lshlrev_b32 {v(T + 20)}, 7, {v(V_LANE)}')
    I(f'buffer_load_dword {v(T + 21)}, {v(T + 20)}, {s(SRD_B, 4)}, {s(S_T3)} offen')
    I(f'v_min_u32 {v(T + 20)}, {10 * 128}, {v(T + 20)}')
    I(f's_add_u32 {s(S_T3)}, {s(S_T3)}, 8192')
    I(f'buffer_load_dword {v(T + 22)}, {v(T + 20)}, {s(SRD_B, 4)}, {s(S_T3)} offen')
    if opt('pf0', 0) == 2:
        k.wait_all(vm=True, lg=False)
srd_b()
I(f's_lshl_b32 {s(S_T3)}, {s(S_KSTR)}, 1')
I(f's_and_b32 {s(S_T4)}, {s(S_WAVE)}, 1')
I(f's_add_u32 {s(S_T3)}, {s(S_T3)}, {s(S_T4)}')
I(f's_lshl_b32 {s(S_T4)}, {s(S_PITCH)}, 2')
I(f's_mul_i32 {s(S_SOFF)}, {s(S_T3)}, {s(S_T4)}')
I(f's_lshl_b32 {s(S_T4)}, {s(S_PITCH)}, 7')
I(f'buffer_load_dword {v(T + 12)}, {v(PFL)}, {s(SRD_B, 4)}, {s(S_SOFF)} offen')
I(f's_add_u32 {s(S_SOFF)}, {s(S_SOFF)}, {s(S_T4)}')
I(f'buffer_load_dword {v(T + 13)}, {v(PFL)}, {s(SRD_B, 4)}, {s(S_SOFF)} offen')
for i in range(2, opt('pf1', 3)):
    I(f's_add_u32 {s(S_SOFF)}, {s(S_SOFF)}, {s(S_T4)}')
    I(f'buffer_load_dword {v(T + 12 + i)}, {v(PFL)}, {s(SRD_B, 4)}, {s(S_SOFF)} offen')
RT_U, RT_KS, RT_CQ, RT_A, RT_B, RT_K0, RT_SCR, RT_DST = 28, 29, 30, 31, 56, 57, 55, 54
I(f's_lshl_b32 {s(RT_U)}, {s(S_WG)}, 1')
I(f's_and_b32 {s(S_T3)}, {s(S_WAVE)}, 1')
I(f's_add_u32 {s(RT_U)}, {s(RT_U)}, {s(S_T3)}')
I(f's_mul_i32 {s(RT_SCR)}, {s(S_T3)}, {8 * RROW}')
I(f's_add_u32 {s(RT_SCR)}, {s(RT_SCR)}, {7 * SLOT}')
I(f's_mul_i32 {s(RT_KS)}, {s(RT_U)}, 13108')
I(f's_lshr_b32 {s(RT_KS)}, {s(RT_KS)}, 16')
I(f's_mul_i32 {s(RT_CQ)}, {s(RT_KS)}, 5')
I(f's_sub_u32 {s(RT_CQ)}, {s(RT_U)}, {s(RT_CQ)}')
assert all((u * 13108) >> 16 == u // 5 for u in range(512))
I(f's_cmp_lt_u32 {s(RT_KS)}, 20')
I(f's_cselect_b32 {s(SRD_RT)}, {s(P_WO)}, {s(P_W2)}')
I(f's_cselect_b32 {s(SRD_RT + 1)}, {s(P_WO + 1)}, {s(P_W2 + 1)}')
csel(SRD_RT + 2, 640 * 1280, 1728 * 1280)
I(f's_mov_b32 {s(SRD_RT + 3)}, 0x00020000')
csel(RT_A, 8 * 1280, 4 * 1280)
csel(RT_B, 4 * 1280, 16 * 1280)
I(f's_cselect_b32 {s(RT_K0)}, 0, 20')
I(f's_sub_u32 {s(RT_K0)}, {s(RT_KS)}, {s(RT_K0)}')
I(f's_mul_i32 {s(RT_K0)}, {s(RT_K0)}, {32 * 1280}')
I(f's_lshl_b32 {s(S_T3)}, {s(RT_CQ)}, 8')
I(f's_add_u32 {s(RT_K0)}, {s(RT_K0)}, {s(S_T3)}')
RTV, RTL = T + 8, T + 9
I(f'v_lshrrev_b32 {v(RTV)}, 4, {v(V_LANE)}')
I(f'v_mul_u32_u24 {v(RTV)}, 1280, {v(RTV)}')
I(f'v_and_b32 {v(T)}, 15, {v(V_LANE)}')
I(f'v_lshl_add_u32 {v(RTV)}, {v(T)}, 4, {v(RTV)}')
for t_ in range(8):
    if t_ == 4:
        I(f's_add_u32 {s(S_T3)}, {s(RT_K0)}, {s(RT_B)}')
    elif t_ == 0:
        I(f's_mov_b32 {s(S_T3)}, {s(RT_K0)}')
    else:
        I(f's_add_u32 {s(S_T3)}, {s(S_T3)}, {s(RT_A)}')
    I(f's_add_u32 m0, {s(RT_SCR)}, {1024 * t_}')
    I(f'buffer_load_dwordx4 {v(RTV)}, {s(SRD_RT, 4)}, {s(S_T3)} offen lds')
I(f's_mul_i32 {s(RT_DST)}, {s(RT_KS)}, 40960')
I(f's_lshl_b32 {s(S_T4)}, {s(RT_CQ)}, 13')
I(f's_add_u32 {s(RT_DST)}, {s(RT_DST)}, {s(S_T4)}')
I(f's_add_u32 {s(RT_DST)}, {s(RT_DST)}, {W_T}')
I(f's_cmp_lt_u32 {s(RT_KS)}, 74')
I(f's_cselect_b32 {s(RT_DST)}, {s(RT_DST)}, {OOB}')

k.label('L_common')
k.vmq = [(set(), 'unknown')]
k.lgq = []
I('s_nop 4')
I(f's_lshl_b32 {s(S_FOFF)}, {s(S_FB)}, {FS}')
if '--map84' in sys.argv:
    I(f's_lshr_b32 {s(S_M2)}, {s(S_T0)}, 1')
    I(f's_lshl_b32 {s(S_M2)}, {s(S_M2)}, 3')
    I(f's_and_b32 {s(S_T2)}, {s(S_T1)}, 7')
    I(f's_add_u32 {s(S_M2)}, {s(S_M2)}, {s(S_T2)}')
    I(f's_and_b32 {s(S_NT)}, {s(S_T0)}, 1')
    I(f's_lshl_b32 {s(S_NT)}, {s(S_NT)}, 2')
    I(f's_lshr_b32 {s(S_T2)}, {s(S_T1)}, 3')
    I(f's_add_u32 {s(S_NT)}, {s(S_NT)}, {s(S_T2)}')
elif opt('map', 0) in (1, 2):
    I(f's_lshl_b32 {s(S_M2)}, {s(S_T0)}, 2')
    I(f's_lshr_b32 {s(S_T2)}, {s(S_T1)}, 3')
    if opt('map', 0) == 2:
        I(f's_add_u32 {s(S_T2)}, {s(S_T2)}, {s(S_T1)}')
        I(f's_and_b32 {s(S_T2)}, {s(S_T2)}, 3')
    I(f's_add_u32 {s(S_M2)}, {s(S_M2)}, {s(S_T2)}')
    I(f's_and_b32 {s(S_NT)}, {s(S_T1)}, 7')
else:
    I(f's_lshl_b32 {s(S_M2)}, {s(S_T0)}, 2')
    I(f's_and_b32 {s(S_T2)}, {s(S_T1)}, 3')
    I(f's_add_u32 {s(S_M2)}, {s(S_M2)}, {s(S_T2)}')
    I(f's_lshr_b32 {s(S_NT)}, {s(S_T1)}, 2')
I(f's_mul_i32 {s(S_START)}, {s(S_IDX)}, 7')
I(f's_min_u32 {s(S_START)}, {s(S_START)}, 47')
I(f's_lshl_b32 {s(S_T3)}, {s(S_KSTR)}, 2')
I(f's_add_u32 {s(S_T3)}, {s(S_T3)}, {s(S_WAVE)}')
I(f's_add_u32 {s(S_T3)}, {s(S_T3)}, 64')
I(f's_lshl_b32 {s(S_T4)}, {s(S_PITCH)}, 2')
I(f's_mul_i32 {s(S_T3)}, {s(S_T3)}, {s(S_T4)}')
I(f'v_add_u32 {v(PFL)}, {s(S_T3)}, {v(PFL)}')
I(f's_lshl_b32 {s(S_KSTR)}, {s(S_PITCH)}, 5')
I(f'v_lshlrev_b32 {v(V_L16)}, 4, {v(V_LANE)}')
I(f'v_add_u32 {v(V_L16B)}, 4096, {v(V_L16)}')
srd(SRD_B1, P_B1, 1728 * 2)
I(f'v_lshlrev_b32 {v(T + 7)}, 3, {v(V_LANE)}')
I(f's_lshl_b32 {s(S_T5)}, {s(S_START)}, 6')
I(f'buffer_load_dwordx2 {v(BIAS, 2)}, {v(T + 7)}, {s(SRD_B1, 4)}, {s(S_T5)} offen', tag='pf')
srd(SRD_WS, P_WS, WS_REC)
srd(SRD_OUT, P_OUT, 2048 * 1280)
srd(SRD_B2, P_B2, 640 * 2)
srd_b()
c, hf, sg = T, T + 1, T + 2
I(f'v_and_b32 {v(c)}, 31, {v(V_LANE)}')
I(f'v_lshrrev_b32 {v(hf)}, 5, {v(V_LANE)}')
S_CB = 34
I(f's_cmp_eq_u32 {s(S_TYPE)}, 0')
if '--attc' in sys.argv:
    I(f's_cmp_eq_u32 {s(S_TYPE)}, 5')
I(f's_cselect_b32 {s(S_T3)}, 29, 27')
I(f's_cselect_b32 {s(S_T4)}, 1120, 0')
I(f's_mul_i32 {s(S_CB)}, {s(S_IDX)}, 160')
I(f's_lshl_b32 {s(S_T5)}, {s(S_START)}, 6')
I(f's_cmp_eq_u32 {s(S_TYPE)}, {5 if "--attc" in sys.argv else 0}')
I(f's_cselect_b32 {s(S_CB)}, {s(S_CB)}, {s(S_T5)}')
I(f'v_min_u32 {v(c)}, {s(S_T3)}, {v(c)}')
I(f'v_mul_u32_u24 {v(sg)}, 205, {v(c)}')
I(f'v_lshrrev_b32 {v(sg)}, 11, {v(sg)}')
I(f'v_mul_u32_u24 {v(sg)}, {s(S_T4)}, {v(sg)}')
I(f'v_lshl_add_u32 {v(sg)}, {v(c)}, 4, {v(sg)}')
I(f'v_add_u32 {v(sg)}, {s(S_CB)}, {v(sg)}')
I(f's_lshl_b32 {s(S_T3)}, {s(S_PITCH)}, 2')
I(f'v_mad_u32_u24 {v(V_DMA)}, {v(hf)}, {s(S_T3)}, {v(sg)}')
I(f's_sub_u32 {s(S_T3)}, {s(S_PITCH)}, {RROW}')
for j in range(1, 4):
    I(f'v_add_u32 {v(V_DMA + j)}, {s(S_T3)}, {v(V_DMA + j - 1)}')
assert all((c_ * 205) >> 11 == c_ // 10 for c_ in range(32))
NPRE = opt('npre', 4)
I(f's_mul_i32 {s(S_M0B)}, {s(S_WAVE)}, {4 * RROW}')
I(f's_lshl_b32 {s(S_T3)}, {s(S_PITCH)}, 3')
I(f's_mul_i32 {s(S_SOFF)}, {s(S_WAVE)}, {s(S_T3)}')
I(f's_mul_i32 {s(S_T3)}, {s(S_KSTR)}, {NPRE}')
I(f's_add_u32 {s(S_SOFF)}, {s(S_SOFF)}, {s(S_T3)}')
if '--noD' in sys.argv:
    I(f's_mov_b32 {s(S_SOFF)}, {OOB // 2}')
I(f'v_lshrrev_b32 {v(LP)}, 2, {v(V_LANE)}')
I(f'v_mul_u32_u24 {v(V_TR0)}, {RROW}, {v(LP)}')
I(f'v_and_b32 {v(T)}, 3, {v(V_LANE)}')
I(f'v_lshl_add_u32 {v(V_TR0)}, {v(T)}, 3, {v(V_TR0)}')
I(f'v_add_u32 {v(V_TR1)}, {4 * SLOT}, {v(V_TR0)}')
I(f's_mul_i32 {s(S_HB)}, {s(S_WAVE)}, 3')
I(f's_min_u32 {s(S_HB)}, {s(S_HB)}, 7')
I(f's_add_u32 {s(S_HB)}, {s(S_HB)}, 5')
I(f's_lshl_b32 {s(S_T3)}, {s(S_HB)}, 5')
I(f'v_add_u32 {v(V_TRH0)}, {s(S_T3)}, {v(V_TR0)}')
I(f'v_add_u32 {v(V_TRH1)}, {s(S_T3)}, {v(V_TR1)}')
I(f'v_add_u32 {v(V_X)}, {HALO}, {v(V_L16)}')
V_AO = 250
I(f'v_bfe_u32 {v(T)}, {v(V_LANE)}, 2, 2')
I(f'v_lshlrev_b32 {v(V_AO)}, 8, {v(T)}')
I(f'v_lshrrev_b32 {v(T)}, 4, {v(V_LANE)}')
I(f'v_lshl_add_u32 {v(V_AO)}, {v(T)}, 6, {v(V_AO)}')
I(f'v_and_b32 {v(T)}, 3, {v(V_LANE)}')
I(f'v_lshl_add_u32 {v(V_AO)}, {v(T)}, 4, {v(V_AO)}')
I(f'v_add_u32 {v(V_AO + 1)}, 4096, {v(V_AO)}')
I(f's_lshl_b32 {s(S_MB0)}, {s(S_MT)}, 3')
I(f's_lshl_b32 {s(S_T3)}, {s(S_WAVE)}, 1')
I(f's_add_u32 {s(S_MB0)}, {s(S_MB0)}, {s(S_T3)}')
I(f's_mul_i32 {s(S_AO)}, {s(S_MB0)}, 20480')
if '--noA' in sys.argv:
    I(f's_mov_b32 {s(S_AO)}, {OOB // 2}')
for q in range(1, 10):
    I(f's_add_u32 {s(S_AO + q)}, {s(S_AO)}, {XN_T + 4096 * q}')
I(f'v_and_b32 {v(T)}, 15, {v(V_LANE)}')
I(f's_lshl_b32 {s(S_T3)}, {s(S_MT)}, {4 + FS}')
I(f's_add_u32 {s(S_T3)}, {s(S_T3)}, {LNF}')
I(f'v_lshl_add_u32 {v(V_PA)}, {v(T)}, {FS}, {s(S_T3)}')
I(f's_cmp_eq_u32 {s(S_TYPE)}, 0')
I(f's_cselect_b32 {s(S_T3)}, {2 << FS}, 0')
I(f's_cmp_eq_u32 {s(S_MT)}, 0')
I(f's_cselect_b32 {s(S_T3)}, 0, {s(S_T3)}')
I(f'v_subrev_u32 {v(T + 1)}, {s(S_T3)}, {v(V_PA)}')
I(f'v_lshrrev_b32 {v(T)}, 1, {v(V_LANE)}')
I(f'v_cmp_eq_u32 vcc, 8, {v(T)}')
I(f'v_cndmask_b32 {v(V_PA)}, {v(V_PA)}, {v(T + 1)}, vcc')
I(f's_mul_i32 {s(S_T3)}, {s(S_WAVE)}, 14')
I(f's_add_u32 {s(S_T4)}, {s(S_T3)}, 7')
I(f's_min_u32 {s(S_T4)}, {s(S_T4)}, 47')
I(f's_mul_i32 {s(S_T5)}, {s(S_NT)}, 5120')
I(f's_add_u32 {s(S_T5)}, {s(S_T5)}, {W_T + 20 * 40960}')
I(f's_mul_i32 {s(S_W2A)}, {s(S_T3)}, 40960')
I(f's_add_u32 {s(S_W2A)}, {s(S_W2A)}, {s(S_T5)}')
I(f's_mul_i32 {s(S_W2B)}, {s(S_T4)}, 40960')
I(f's_add_u32 {s(S_W2B)}, {s(S_W2B)}, {s(S_T5)}')
I(f's_lshr_b32 {s(S_T3)}, {s(S_M2)}, 1')
I(f's_lshl_b32 {s(S_T3)}, {s(S_T3)}, {4 + FS}')
I(f's_lshl_b32 {s(S_T4)}, {s(S_WAVE)}, {1 + FS}')
I(f's_add_u32 {s(S_T3)}, {s(S_T3)}, {s(S_T4)}')
I(f's_add_u32 {s(S_T3)}, {s(S_T3)}, {P1H + (8 << FS)}')
I(f'v_and_b32 {v(T)}, 1, {v(V_LANE)}')
I(f'v_lshl_add_u32 {v(V_PF)}, {v(T)}, {FS}, {s(S_T3)}')

I(f's_cmp_lt_u32 {s(S_WAVE)}, 2')
I('s_cbranch_scc1 L_pro_join')

VW_M0, VW_SO = 50, 52
I(f's_and_b32 {s(S_T3)}, {s(S_WAVE)}, 1')
I(f's_mul_i32 {s(VW_M0)}, {s(S_T3)}, {8 * RROW}')
I(f's_add_u32 {s(VW_M0 + 1)}, {s(VW_M0)}, {4 * RROW}')
I(f's_lshl_b32 {s(S_T4)}, {s(S_PITCH)}, 4')
I(f's_mul_i32 {s(VW_SO)}, {s(S_T3)}, {s(S_T4)}')
I(f's_lshl_b32 {s(S_T4)}, {s(S_PITCH)}, 3')
I(f's_add_u32 {s(VW_SO + 1)}, {s(VW_SO)}, {s(S_T4)}')
I(f'v_lshlrev_b32 {v(RTL)}, 8, {v(LP)}')
I(f'v_and_b32 {v(T)}, 3, {v(V_LANE)}')
I(f'v_lshl_add_u32 {v(RTL)}, {v(T)}, 3, {v(RTL)}')
I(f'v_add_u32 {v(RTL)}, {s(RT_SCR)}, {v(RTL)}')
stamp(2, 2)
k.wait_vm_tag('pf')
GATE = opt('gate', 1)
if GATE:
    I(f'v_mov_b32 {v(T + 1)}, {CNT}')
    k.label('L_gate')
    I(f'ds_read_b32 {v(T)}, {v(T + 1)} offset:{0 if GATE == 1 else 8}')
    I(f'v_readfirstlane_b32 {s(S_T4)}, {v(T)}')
    I(f's_cmp_ge_u32 {s(S_T4)}, 2')
    I('s_cbranch_scc0 L_gate')
stamp(3, 2)
for sl in range(NPRE):
    for h in range(2):
        I(f's_add_u32 m0, {s(VW_M0 + h)}, {sl * SLOT}')
        for j in range(4):
            dma1(j, VW_SO + h, ('ring', sl))
        I(f's_add_u32 {s(VW_SO + h)}, {s(VW_SO + h)}, {s(S_KSTR)}')
    if sl >= 1:
        k.wait_vm_tag(('ring', sl - 1))
    if sl == 1:
        stamp(4, 2)
        RF = ACC
        for nb in range(8):
            I(f'ds_read_b64_tr_b16 {v(RF + 4 * nb, 2)}, {v(RTL)} offset:{32 * nb}')
            I(f'ds_read_b64_tr_b16 {v(RF + 4 * nb + 2, 2)}, {v(RTL)} offset:{32 * nb + 4096}')
RTLATE = 0


def rt_stores():
    for nb in range(8):
        I(f'buffer_store_dwordx4 {v(RF + 4 * nb, 4)}, {v(V_L16 if nb < 4 else V_L16B)}, {s(SRD_WS, 4)}, {s(RT_DST)} offen offset:{1024 * (nb & 3)} sc1', tag='rts')


if not RTLATE:
    rt_stores()
k.wait_vm_tag(('ring', NPRE - 1))
stamp(5, 2)
stamp(1)
k.wait_all(vm=False, lg=True)

k.label('L_pro_join')
k.vmq = [(regs_of(v(BIAS, 2)), 'pf')]
k.lgq = []
I('s_nop 4')
I(f's_mul_i32 {s(S_WOB)}, {s(S_WAVE)}, 40960')
I(f's_mul_i32 {s(S_T3)}, {s(S_NT)}, 5120')
I(f's_add_u32 {s(S_WOB)}, {s(S_WOB)}, {s(S_T3)}')
I(f's_add_u32 {s(S_WOB)}, {s(S_WOB)}, {W_T}')
I(f's_mul_i32 {s(S_WOM)}, {s(S_WAVE)}, {5 * 1024}')
if '--noW' in sys.argv:
    for r_ in (S_W2A, S_W2B, S_WOB):
        I(f's_mov_b32 {s(r_)}, {OOB // 2}')
I(f's_cmp_eq_u32 {s(S_WAVE)}, 3')
I(f's_cselect_b32 {s(S_LAST)}, {OOB}, 0')
I(f's_cmp_eq_u32 {s(S_TYPE)}, 1')
I('s_cbranch_scc1 L_ffn')
st_join = k.state()


def ln_wait():
    lab = k.newlabel('L_lnw')
    I(f's_cmp_eq_u32 {s(S_WAVE)}, 0')
    I(f's_cbranch_scc0 {lab}')
    st_ = k.state()
    stamp(6, 2)
    poll(V_PA, 'ln')
    k.label(lab)
    k.set_state(st_)
    k.wait_all(vm=False, lg=True)
    stamp(7, 2)
    I('s_barrier')
    stamp(8, 2)


def wt_flag():
    I(f's_lshr_b32 {s(S_T3)}, {s(S_WG)}, 2')
    I(f's_lshl_b32 {s(S_T3)}, {s(S_T3)}, {WS_}')
    I(f's_and_b32 {s(S_T4)}, {s(S_WG)}, 3')
    I(f's_lshl_b32 {s(S_T4)}, {s(S_T4)}, 2')
    I(f's_add_u32 {s(S_T3)}, {s(S_T3)}, {s(S_T4)}')
    I(f's_add_u32 {s(S_T3)}, {s(S_T3)}, {WTF}')
    I(f's_cmp_eq_u32 {s(S_WAVE)}, 1')
    I(f's_cselect_b32 {s(S_T3)}, {s(S_T3)}, {OOB}')
    I(f'v_mov_b32 {v(T)}, {s(S_TAG)}')
    I(f'v_lshlrev_b32 {v(T + 1)}, 24, {v(V_LANE)}')
    I(f'buffer_store_dword {v(T)}, {v(T + 1)}, {s(SRD_WS, 4)}, {s(S_T3)} offen sc1')


def tag_fetch():
    I(f'v_mov_b32 {v(T + 1)}, {CNT}')
    I(f'ds_read_b32 {v(T)}, {v(T + 1)} offset:4')
    I(f'v_readfirstlane_b32 {s(S_TAG)}, {v(T)}')


AWN = 6


def areg_att(ks, rb):
    return a((28 + (ks % AWN) * 2 + rb) * 4, 4)


def areg_ffn(ks, rb):
    return a((ks * 2 + rb) * 4, 4)


def load_A(areg, ks, rb):
    I(f'buffer_load_dwordx4 {areg(ks, rb)}, {v(V_AO)}, {s(SRD_WS, 4)}, {s(S_AO + rb * 5 + ks // 4)} offen offset:{(ks & 3) * 1024} sc1')


LAK = opt('lak', 4)
BAR1 = opt('bar1', 0)


def pre_loads():
    for ks in range(LAK):
        if ks >= NPRE:
            I(f's_add_u32 m0, {s(S_M0B)}, {ks * SLOT}')
            for j in range(4):
                dma1(j, S_SOFF, ('dma', ks))
            I(f's_add_u32 {s(S_SOFF)}, {s(S_SOFF)}, {s(S_KSTR)}')
        for rb in range(2):
            load_A(areg_att, ks, rb)


W2ORDER = list(range(40, 64)) + list(range(28))
NW2E = len(W2ORDER)
W2ALL = opt('w2all', 1)
NW2X = 69 if W2ALL else NW2E
WO_EARLY, WO_LATE = (0, 1, 2), (3, 4)
YSTEP = [(0, p) for p in range(4)] + [(1, p) for p in range(4)] + [(0, p) for p in range(4, 7)] + [(1, p) for p in range(4, 7)]


def w2reg(st, nb):
    f = st * 5 + nb
    if W2ALL:
        if f < NW2E:
            return a(4 * W2ORDER[f], 4)
        if f < 64:
            return a(4 * (28 + f - NW2E), 4)
        return v(W2V + 4 * (f - 64), 4) if f < 69 else a(4 * W2ORDER[0], 4)
    return a(4 * W2ORDER[f % NW2E], 4)


def w2load(f):
    st, nb = divmod(f, 5)
    ab, p = YSTEP[st]
    sb = S_W2B if ab else S_W2A
    if (ab, p) == (0, 5) and nb == 0:
        I(f's_add_u32 {s(sb)}, {s(sb)}, {s(S_LAST)}')
    I(f'buffer_load_dwordx4 {w2reg(st, nb)}, {v(V_L16 if nb < 4 else V_L16B)}, {s(SRD_WS, 4)}, {s(sb)} offen offset:{(nb & 3) * 1024} sc1')
    if nb == 4:
        I(f's_add_u32 {s(sb)}, {s(sb)}, 40960')


def wodma(i, nb):
    if nb == 0:
        I(f's_add_u32 {s(S_T5)}, {s(S_WOB)}, {i * 4 * 40960}')
    if nb == 0 or nb == 4:
        I(f's_add_u32 m0, {s(S_WOM)}, {LDS_WO + (i * 20 + (4 if nb == 4 else 0)) * 1024}')
    I(f'buffer_load_dwordx4 {v(V_L16 if nb < 4 else V_L16B)}, {s(SRD_WS, 4)}, {s(S_T5)} offen offset:{(nb & 3) * 1024} sc1 lds')


def cost(e):
    if e[0].startswith(('buffer_', 'global_', 'v_pk_') + TRANS):
        return 8
    return 4


def mainloop(steps, areg, aloads, first_c_zero, w2plan, dma_pre, extra_fill, at_sync):
    LA = 7
    halo = any(it[1] >= 100 for it in steps[0])
    items = [(t_, pos) + it for t_ in range(20) for pos, it in enumerate(steps[t_])]
    N = len(items)
    aux = [[] for _ in range(20)]
    for t_ in range(20):
        kn = t_ + LAK
        al = [lambda kk=kk, rb=rb: load_A(areg, kk, rb) for kk in aloads[t_] for rb in range(2)]
        dm = []
        if NPRE <= kn < 20:
            for j in range(4):
                def f(j=j, kn=kn):
                    if j == 0:
                        dma_pre(kn)
                        I(f's_add_u32 m0, {s(S_M0B)}, {(kn % NSLOT) * SLOT}')
                    dma1(j, S_SOFF, ('dma', kn))
                    if j == 3:
                        I(f's_add_u32 {s(S_SOFF)}, {s(S_SOFF)}, {s(S_KSTR)}')
                dm.append(f)
        h_ = len(al) // 2
        aux[t_] = al[:h_] + dm[:2] + al[h_:] + dm[2:]
    WTK = opt('wtka', 10) if halo else opt('wtkf', 14)
    assert WTK % 2 == 0
    aux[WTK - 3].append(lambda: chk_issue(V_PA, 4))
    WFK = opt('wfk', 4) if RTLATE else 2
    aux[WFK].insert(0, wt_flag)
    if opt('pf1', 3) < 4:
        aux[0].append(lambda: I(f'buffer_load_dword {v(T + 3)}, {v(PFL)}, {s(SRD_B, 4)}, 0 offen'))

    def pf2b():
        I(f's_lshl_b32 {s(S_T3)}, {s(S_PITCH)}, 8')
        I(f'buffer_load_dword {v(T + 2)}, {v(PFL)}, {s(SRD_B, 4)}, {s(S_T3)} offen')
    if opt('pf1', 3) < 5:
        aux[opt('pf2k', 1)].append(pf2b)
    f = 0
    for t_ in range(WTK, 20):
        for _ in range(w2plan(t_, f)):
            if f < NW2E:
                aux[t_].append(lambda f=f: w2load(f))
                f += 1
    w2done = f
    fill = []
    for t_ in range(20):
        mem = [e for fn in aux[t_] for e in k.record(fn)]
        oth = extra_fill(t_)
        mix, i, j = [], 0, 0
        while i < len(mem) or j < len(oth):
            if j >= len(oth) or (i < len(mem) and i * len(oth) <= j * len(mem)):
                mix.append(mem[i])
                i += 1
            else:
                mix.append(oth[j])
                j += 1
        fill.append(mix)

    def rd(n):
        t_, pos, ks, blk, off = items[n]
        sl = t_ % NSLOT
        w = WIN + 4 * (n % 8)
        if blk < 100:
            base = V_TR0 if sl < 4 else V_TR1
        else:
            base = V_TRH0 if sl < 4 else V_TRH1
        o = (sl % 4) * SLOT + off
        if '--halfrd' in sys.argv and n >= 8 and (n // 8) % 2 == 1:
            return
        I(f'ds_read_b64_tr_b16 {v(w, 2)}, {v(base)} offset:{o}')
        I(f'ds_read_b64_tr_b16 {v(w + 2, 2)}, {v(base)} offset:{o + 512}')

    def sync(t_):
        tn = t_ if BAR1 else t_ + 1
        if tn >= NPRE:
            assert ('dma', tn) in k.seen_tags
            k.wait_vm_tag(('dma', tn))
        if t_ == WFK:
            k.wait_vm_tag('rts')
        if t_ == WTK:
            lab = k.newlabel('L_wtw')
            k._need(regs_of(v(P4, 4)))
            I(f's_cmp_eq_u32 {s(S_WAVE)}, 0')
            I(f's_cbranch_scc0 {lab}')
            poll(V_PA, 'wt', 4, preissued=True, sleep=8)
            k.label(lab)
        at_sync(t_, 0)
        I('s_barrier')
        at_sync(t_, 1)

    def hxread(ks):
        I(f'ds_read_b128 {v(HX + 4 * (ks & 1), 4)}, {v(V_X)} offset:{ks * 1024}')

    k.seen_tags = {('dma', i) for i in range(LAK)}
    if halo:
        hxread(0)
        for ks in range(19):
            fill[ks] = fill[ks][:2] + k.record(lambda: hxread(ks + 1)) + fill[ks][2:]
    for n in range(LA):
        rd(n)
    I(f's_cmp_eq_u32 {s(S_WAVE)}, 0')
    csel(S_T3, WTF, OOB)
    I(f'v_lshl_add_u32 {v(V_PA)}, {v(V_LANE)}, {WS_}, {s(S_T3)}')
    waited = -1
    prev_halo = False
    seen_blk = set()
    for n in range(N):
        t_, pos, ks, blk, off = items[n]
        NF = len(steps[t_])
        w = WIN + 4 * (n % 8)
        if pos == 0:
            q = list(fill[t_])
            ngaps = sum(1 for it in steps[t_] if it[1] < 100)
            tot = sum(cost(e) for e in q) + 4 * (NF // 2 + 1)
            budget = max(8, -(-tot // ngaps))
            budget2 = 0
            if budget > 12:
                budget = -(-(tot + 8 * ngaps) // (2 * ngaps))
                budget2 = budget - 8
            if t_ in (0, 1, 2, 4, 8, 12, 16, 18):
                stamp(1 + (0, 1, 2, 4, 8, 12, 16, 18).index(t_), 1)
        used = 8 if prev_halo else 0
        if n + LA < N and items[n + LA][1] == 0 and items[n + LA][0] >= 2 and (BAR1 or items[n + LA][0] % 2 == 0):
            sync(items[n + LA][0])
            used += 8
        if waited < n:
            need = regs_of(v(w, 4))
            waited = n
            for m in (n + 1, n + 2):
                if m < N and (m == n + 1 or items[m - 1][3] >= 100):
                    need |= regs_of(v(WIN + 4 * (m % 8), 4))
                    waited = m
            for m in range(n, waited + 1):
                kk, bb = items[m][2], items[m][3]
                need |= (regs_of(areg(kk, 0)) | regs_of(areg(kk, 1))) if bb < 100 else regs_of(v(HX + 4 * (kk & 1), 4))
            k._need(need)
            used += 4
        while q and (used + cost(q[0]) <= budget + 2 or pos == NF - 1):
            used += cost(q[0])
            k.play(q.pop(0))
        first = blk not in seen_blk
        seen_blk.add(blk)
        if blk < 100:
            for ri in range(2):
                rb = ri ^ (blk & 1) if '--snake' in sys.argv else ri
                d = ACC + (blk * 2 + rb) * 4
                c_ = '0' if (first and first_c_zero) else v(d, 4)
                I(f'v_mfma_f32_16x16x32_bf16 {v(d, 4)}, {v(w, 4)}, {areg(ks, rb)}, {c_}')
                if ri == 0:
                    u2 = 0
                    if n + LA < N:
                        rd(n + LA)
                    else:
                        u2 = -8
                    while q and u2 + cost(q[0]) <= budget2 + 2:
                        u2 += cost(q[0])
                        k.play(q.pop(0))
        else:
            d = HACC + (blk - 100) * 4
            c_ = '0' if first else v(d, 4)
            I(f'v_mfma_f32_16x16x32_bf16 {v(d, 4)}, {v(w, 4)}, {v(HX + 4 * (ks & 1), 4)}, {c_}')
            if n + LA < N:
                rd(n + LA)
        prev_halo = blk >= 100
    return w2done


YACC = 16
SACC = 96
HW = 116
HWN = 5
XIN = 196
B2V = 208
T2 = 218
VXG = 2
VRW = (5, 8, 9)
S_HO = 24
S_EARLY = 19
V_HE = V_TR0


def h_scalars():
    I(f's_mul_i32 {s(S_T3)}, {s(S_M2)}, {4 * ACT_MB}')
    I(f's_add_u32 {s(S_T3)}, {s(S_T3)}, {ACT_T + 20 * 1024}')
    I(f's_mul_i32 {s(S_T4)}, {s(S_WAVE)}, 14')
    I(f's_add_u32 {s(S_T5)}, {s(S_T4)}, 7')
    I(f's_min_u32 {s(S_T5)}, {s(S_T5)}, 47')
    for ab, r in ((0, S_T4), (1, S_T5)):
        I(f's_lshl_b32 {s(r)}, {s(r)}, 10')
        I(f's_add_u32 {s(r)}, {s(S_T3)}, {s(r)}')
    for i in range(4):
        I(f's_add_u32 {s(S_T3)}, {s(S_WAVE)}, {1 + i}')
        I(f's_and_b32 {s(S_T3)}, {s(S_T3)}, 3')
        I(f's_mul_i32 {s(S_T3)}, {s(S_T3)}, {ACT_MB}')
        I(f's_add_u32 {s(S_HO + i)}, {s(S_T4)}, {s(S_T3)}')
        I(f's_add_u32 {s(S_HO + 4 + i)}, {s(S_T5)}, {s(S_T3)}')


def hreg(st, mb):
    if W2ALL:
        return v(HW + 16 * (st % HWN) + 4 * mb, 4)
    if st < 3:
        return a((28 + 4 * st + mb) * 4, 4)
    if st == 3:
        return v(W2V + 4 * mb, 4)
    return v(HW + 16 * ((st - 4) % HWN) + 4 * mb, 4)


def hload(st, mb, early=False):
    ab, p = YSTEP[st]
    so = S_HO + 4 * ab + mb
    if (ab, p) == (0, 5):
        I(f's_add_u32 {s(so)}, {s(so)}, {s(S_LAST)}')
    va = V_HE if early else (V_L16 if p < 4 else V_L16B)
    I(f'buffer_load_dwordx4 {hreg(st, mb)}, {v(va)}, {s(SRD_WS, 4)}, {s(so)} offen offset:{(p & 3) * 1024} sc1')


def early_eval():
    chk_eval()
    I(f's_cmp_eq_u64 vcc, 0')
    I(f's_cselect_b32 {s(S_EARLY)}, 1, 0')
    I(f's_cselect_b32 {s(S_T0)}, 0, {OOB}')
    I(f'v_add_u32 {v(V_HE)}, {s(S_T0)}, {v(V_L16)}')


def p1_flag():
    k.wait_all(vm=False, lg=True)
    I('s_barrier')
    lab = k.newlabel('L_np')
    I(f's_cmp_eq_u32 {s(S_WAVE)}, 0')
    I(f's_cbranch_scc0 {lab}')
    flag_store(P1F, S_FOFF, T2)
    k.label(lab)


I(f's_lshl_b32 {s(S_T3)}, {s(S_MT)}, 3')
I(f's_sub_u32 {s(S_T3)}, {s(S_T3)}, 1')
I(f's_mul_i32 {s(S_T3)}, {s(S_T3)}, 20480')
I(f's_mul_i32 {s(S_T4)}, {s(S_WAVE)}, 5120')
I(f's_add_u32 {s(S_T3)}, {s(S_T3)}, {s(S_T4)}')
I(f's_cmp_eq_u32 {s(S_MT)}, 0')
I(f's_cselect_b32 {s(S_T5)}, {OOB}, {s(S_T3)}')
I(f'v_add_u32 {v(T + 2)}, {s(S_T4)}, {v(V_X)}')
SA, SH, VA, VB, VO, K2M0, K2M1 = T + 28, T + 29, T + 30, T + 31, T + 32, T + 33, T + 34
tm, tg = T + 4, T + 5
prow(tm, tg, 15)
I(f'v_mul_u32_u24 {v(SH)}, {RS}, {v(tm)}')
I(f'v_lshrrev_b32 {v(tg)}, 4, {v(V_LANE)}')
I(f'v_lshl_add_u32 {v(SH)}, {v(tg)}, 3, {v(SH)}')
I(f's_mul_i32 {s(S_T3)}, {s(S_WAVE)}, {32 * RS}')
I(f's_add_u32 {s(S_T3)}, {s(S_T3)}, {STG + 16 * RS}')
I(f'v_add_u32 {v(SA)}, {s(S_T3)}, {v(SH)}')
I(f's_lshl_b32 {s(S_T3)}, {s(S_HB)}, 5')
I(f's_add_u32 {s(S_T3)}, {s(S_T3)}, {STG}')
I(f'v_add_u32 {v(SH)}, {s(S_T3)}, {v(SH)}')
I(f's_lshr_b32 {s(S_T3)}, {s(S_WAVE)}, 1')
I(f's_mul_i32 {s(S_T3)}, {s(S_T3)}, 80')
I(f's_and_b32 {s(S_T0)}, {s(S_WAVE)}, 1')
I(f's_mul_i32 {s(S_T0)}, {s(S_T0)}, {64 * RS}')
I(f's_add_u32 {s(S_T3)}, {s(S_T3)}, {s(S_T0)}')
I(f's_add_u32 {s(S_T3)}, {s(S_T3)}, {STG}')
prow(tm, tg, 63)
I(f'v_mul_u32_u24 {v(VA)}, {RS}, {v(tm)}')
I(f'v_add_u32 {v(VA)}, {s(S_T3)}, {v(VA)}')
I(f'v_and_b32 {v(VB)}, 0x30, {v(V_LANE)}')
I(f'v_bfe_u32 {v(tg)}, {v(V_LANE)}, 1, 1')
I(f'v_lshl_add_u32 {v(VB)}, {v(tg)}, 3, {v(VB)}')
I(f'v_and_b32 {v(tg)}, 1, {v(V_LANE)}')
I(f'v_add_u32 {v(VB)}, {v(VB)}, {v(tg)}')
I(f'v_bfe_u32 {v(tg)}, {v(V_LANE)}, 2, 2')
I(f'v_lshl_add_u32 {v(VB)}, {v(tg)}, 1, {v(VB)}')
I(f'v_mul_u32_u24 {v(VB)}, {RS}, {v(VB)}')
I(f'v_add_u32 {v(VB)}, {s(S_T3)}, {v(VB)}')
I(f'v_lshrrev_b32 {v(tg)}, 4, {v(V_LANE)}')
I(f'v_mul_u32_u24 {v(VO)}, {ACT_MB}, {v(tg)}')
I(f'v_and_b32 {v(tg)}, 15, {v(V_LANE)}')
I(f'v_lshl_add_u32 {v(VO)}, {v(tg)}, 4, {v(VO)}')
I(f'v_and_b32 {v(tg)}, 3, {v(V_LANE)}')
I(f'v_mov_b32 {v(tm)}, 0xffff')
I(f'v_cmp_le_u32 vcc, 1, {v(tg)}')
I(f'v_cndmask_b32 {v(K2M0)}, {v(tm)}, -1, vcc')
I(f'v_cmp_le_u32 vcc, 2, {v(tg)}')
I(f'v_cndmask_b32 {v(K2M1)}, 0, {v(tm)}, vcc')
I(f'v_cmp_le_u32 vcc, 3, {v(tg)}')
I(f'v_cndmask_b32 {v(K2M1)}, {v(K2M1)}, -1, vcc')
S_OB = 35
I(f's_lshl_b32 {s(S_OB)}, {s(S_MT)}, 1')
I(f's_and_b32 {s(S_T0)}, {s(S_WAVE)}, 1')
I(f's_add_u32 {s(S_OB)}, {s(S_OB)}, {s(S_T0)}')
I(f's_mul_i32 {s(S_OB)}, {s(S_OB)}, {4 * ACT_MB}')
I(f's_add_u32 {s(S_OB)}, {s(S_OB)}, {ACT_T}')
I(f's_mul_i32 {s(S_T3)}, {s(S_IDX)}, 2560')
I(f's_add_u32 {s(S_OB)}, {s(S_OB)}, {s(S_T3)}')
I(f's_lshr_b32 {s(S_T3)}, {s(S_WAVE)}, 1')
I(f's_mul_i32 {s(S_T3)}, {s(S_T3)}, 1280')
I(f's_add_u32 {s(S_OB)}, {s(S_OB)}, {s(S_T3)}')
I(f's_mov_b32 {s(S_T2)}, {s(S_T5)}')
h_scalars()
ln_wait()
stamp(2)
for i in range(5):
    I(f'buffer_load_dwordx4 {v(T + 8 + 4 * i, 4)}, {v(V_AO if i < 4 else V_AO + 1)}, {s(SRD_WS, 4)}, {s(S_T2)} offen offset:{(i & 3) * 1024} sc1')
pre_loads()
if RTLATE:
    rt_stores()
tag_fetch()
for i in range(5):
    I(f'ds_write_b128 {v(T + 2)}, {v(T + 8 + 4 * i, 4)} offset:{i * 1024}')
k.wait_all(vm=False, lg=True)
I('s_barrier')
stamp(3)
att_order = [0, 1, 2, 3, 4, 100, 5, 6, 7, 8, 9, 101, 10, 11, 12, 13, 102, 14]
w2done = mainloop([[(ks, b, 32 * (b % 100)) for b in att_order] for ks in range(20)], areg_att,
                  [[ks + LAK] if ks + LAK < 20 else [] for ks in range(20)], True,
                  lambda t_, f: opt('ra0', 3) if t_ < 20 - LAK else opt('ra1', 8), lambda kn: None,
                  lambda t_: [], lambda t_, ph: None)
stamp(4)
stamp(1, 4)
w2rest = [lambda f=f: w2load(f) for f in range(w2done, NW2X)]
PK = T + 8
n = 0
for blk in att_order:
    for rb in range(2 if blk < 100 else 1):
        d = ACC + (blk * 2 + rb) * 4 if blk < 100 else HACC + 4 * (blk - 100)
        p = PK + 2 * (n % 4)
        n += 1
        I(f'v_cvt_pk_bf16_f32 {v(p)}, {v(d)}, {v(d + 1)}')
        I(f'v_cvt_pk_bf16_f32 {v(p + 1)}, {v(d + 2)}, {v(d + 3)}')
        if blk < 100:
            I(f'ds_write_b64 {v(SA)}, {v(p, 2)} offset:{32 * blk + rb * 16 * RS}')
        else:
            I(f'ds_write_b64 {v(SH)}, {v(p, 2)} offset:{32 * (blk - 100)}')
        if w2rest and n % 2 == 0:
            w2rest.pop(0)()
M1, M2, M3, INV1, INV01, INV02, INV03, SC_HI, SC_SCALE, SC_L2E = 36, 38, 40, 42, 44, 46, 48, 50, 52, 54
for reg, pat in ((M1, 0xeeeeeeee), (M2, 0xcccccccc), (M3, 0x88888888)):
    I(f's_mov_b32 {s(reg)}, {hex(pat)}')
    I(f's_mov_b32 {s(reg + 1)}, {hex(pat)}')
stamp(2, 4)
k.wait_all(vm=False, lg=True)
I('s_barrier')
stamp(3, 4)
w2rest += [lambda i=i, nb=nb: wodma(i, nb) for i in WO_EARLY for nb in range(5)]
Q, Kr, Vr = 16, 36, 96
for i in range(5):
    I(f'ds_read_b128 {v(Q + 4 * i, 4)}, {v(VA)} offset:{16 * RS + 16 * i}')
    for kg in range(3):
        I(f'ds_read_b128 {v(Kr + 20 * kg + 4 * i, 4)}, {v(VA)} offset:{kg * 8 * RS + 160 + 16 * i}')
for reg, pat in ((INV1, 0xff), (INV01, 0x1111), (INV02, 0x3333), (INV03, 0x7777)):
    I(f's_mov_b64 {s(reg, 2)}, {hex(pat)}')
I(f's_mov_b32 {s(SC_HI)}, 0xffff0000')
for h_ in range(2):
    I(f's_mov_b32 {s(SC_SCALE + h_)}, {f32(20 ** -0.5)}')
    I(f's_mov_b32 {s(SC_L2E + h_)}, {f32(1.4426950408889634)}')
I(f's_and_b32 {s(S_T4)}, {s(S_WAVE)}, 1')
I(f's_or_b32 {s(S_T4)}, {s(S_T4)}, {s(S_MT)}')
NEG = T + 2
SREG = [T + 4, T + 16]
for hd in range(2):
    Sx = SREG[hd]
    for dc in range(5):
        for kg in range(3):
            c_ = '0' if dc == 0 else v(Sx + 4 * kg, 4)
            I(f'v_mfma_f32_4x4x4_16b_bf16 {v(Sx + 4 * kg, 4)}, {v(Kr + 20 * kg + 10 * hd + 2 * dc, 2)}, {v(Q + 10 * hd + 2 * dc, 2)}, {c_}')
            I(f'ds_read_b64_tr_b16 {v(Vr + 30 * hd + 2 * (kg * 5 + dc), 2)}, {v(VB)} offset:{kg * 8 * RS + 320 + 40 * hd + 8 * dc}')
            if kg == 2 and w2rest:
                w2rest.pop(0)()
stamp(4, 4)


def hk():
    if w2rest:
        w2rest.pop(0)()


OP = Q
for hd in range(2):
    Sx = SREG[hd]
    Lg = Sx + 4
    if hd == 1:
        while w2rest:
            hk()
        chk_issue(V_PF)
    for r, M in ((1, M1), (2, M2), (3, M3)):
        I(f'v_cndmask_b32 {v(Sx + 8 + r)}, {v(Sx + r)}, {v(Sx + 8 + r)}, {s(M, 2)}')
    P = Sx
    for i in range(4):
        I(f'v_cvt_pk_bf16_f32 {v(P + i)}, {v(Lg + 2 * i)}, {v(Lg + 2 * i + 1)}')
    hk()
    for i in range(4):
        I(f'v_lshlrev_b32 {v(Lg + 2 * i)}, 16, {v(P + i)}')
        I(f'v_and_b32 {v(Lg + 2 * i + 1)}, {s(SC_HI)}, {v(P + i)}')
    hk()
    for i in range(4):
        I(f'v_pk_mul_f32 {v(Lg + 2 * i, 2)}, {v(Lg + 2 * i, 2)}, {s(SC_SCALE, 2)}')
    hk()
    for i in range(4):
        I(f'v_cvt_pk_bf16_f32 {v(P + i)}, {v(Lg + 2 * i)}, {v(Lg + 2 * i + 1)}')
    for i in range(4):
        I(f'v_lshlrev_b32 {v(Lg + 2 * i)}, 16, {v(P + i)}')
        I(f'v_and_b32 {v(Lg + 2 * i + 1)}, {s(SC_HI)}, {v(P + i)}')
    hk()
    lab = k.newlabel('L_nomask')
    I(f's_cmp_eq_u32 {s(S_T4)}, 0')
    I(f's_cbranch_scc0 {lab}')
    I(f'v_mov_b32 {v(NEG)}, {f32(-1e9)}')
    for r in range(4):
        I(f'v_cndmask_b32 {v(Lg + r)}, {v(Lg + r)}, {v(NEG)}, {s(INV1, 2)}')
    for r, M in ((1, INV01), (2, INV02), (3, INV03)):
        I(f'v_cndmask_b32 {v(Lg + 4 + r)}, {v(Lg + 4 + r)}, {v(NEG)}, {s(M, 2)}')
    k.label(lab)
    mx = P
    I(f'v_max3_f32 {v(mx)}, {v(Lg)}, {v(Lg + 1)}, {v(Lg + 2)}')
    I(f'v_max3_f32 {v(mx + 1)}, {v(Lg + 3)}, {v(Lg + 4)}, {v(Lg + 5)}')
    I(f'v_max3_f32 {v(mx)}, {v(mx)}, {v(Lg + 6)}, {v(Lg + 7)}')
    I(f'v_max_f32 {v(mx)}, {v(mx)}, {v(mx + 1)}')
    I(f'v_mul_f32 {v(mx)}, {s(SC_L2E)}, {v(mx)}')
    hk()
    for i in range(4):
        I(f'v_pk_fma_f32 {v(Lg + 2 * i, 2)}, {v(Lg + 2 * i, 2)}, {s(SC_L2E, 2)}, {v(mx, 2)} op_sel_hi:[1,1,0] neg_lo:[0,0,1] neg_hi:[0,0,1]')
    hk()
    for i in range(8):
        I(f'v_exp_f32 {v(Lg + i)}, {v(Lg + i)}')
    hk()
    I(f'v_pk_add_f32 {v(P, 2)}, {v(Lg, 2)}, {v(Lg + 2, 2)}')
    I(f'v_pk_add_f32 {v(P + 2, 2)}, {v(Lg + 4, 2)}, {v(Lg + 6, 2)}')
    I(f'v_pk_add_f32 {v(P, 2)}, {v(P, 2)}, {v(P + 2, 2)}')
    I(f'v_add_f32 {v(P)}, {v(P)}, {v(P + 1)}')
    I(f'v_rcp_f32 {v(P)}, {v(P)}')
    if hd == 1:
        for i in range(10):
            I(f'v_cvt_pk_bf16_f32 {v(OP + i)}, {v(Kr + 8 + 2 * i)}, {v(Kr + 8 + 2 * i + 1)}')
        for i in range(2):
            I(f'buffer_store_dwordx4 {v(OP + 4 * i, 4)}, {v(VO)}, {s(SRD_WS, 4)}, {s(S_OB)} offen offset:{256 * i} sc1')
    hk()
    for i in range(4):
        I(f'v_pk_mul_f32 {v(Lg + 2 * i, 2)}, {v(Lg + 2 * i, 2)}, {v(P, 2)} op_sel_hi:[1,0]')
    PB = Kr + 30 * hd
    I(f'v_cvt_pk_bf16_f32 {v(PB + 2)}, {v(Lg)}, {v(Lg + 1)}')
    I(f'v_cvt_pk_bf16_f32 {v(PB + 3)}, {v(Lg + 2)}, {v(Lg + 3)}')
    I(f'v_cvt_pk_bf16_f32 {v(PB)}, {v(Lg + 4)}, {v(Lg + 5)}')
    I(f'v_cvt_pk_bf16_f32 {v(PB + 1)}, {v(Lg + 6)}, {v(Lg + 7)}')
    I(f'v_and_b32 {v(PB + 4)}, {v(PB)}, {v(K2M0)}')
    I(f'v_and_b32 {v(PB + 5)}, {v(PB + 1)}, {v(K2M1)}')
    I(f'v_xor_b32 {v(PB)}, {v(PB)}, {v(PB + 4)}')
    I(f'v_xor_b32 {v(PB + 1)}, {v(PB + 1)}, {v(PB + 5)}')
    O = PB + 8
    for kg in (1, 2, 0):
        for dc in range(5):
            c_ = '0' if kg == 1 else v(O + 4 * dc, 4)
            I(f'v_mfma_f32_4x4x4_16b_bf16 {v(O + 4 * dc, 4)}, {v(Vr + 30 * hd + 2 * (kg * 5 + dc), 2)}, {v(PB + 2 * kg, 2)}, {c_}')
stamp(5, 4)
for i in range(10):
    I(f'v_cvt_pk_bf16_f32 {v(OP + 10 + i)}, {v(Kr + 38 + 2 * i)}, {v(Kr + 38 + 2 * i + 1)}')
    if i in (1, 5, 9):
        j = 2 + (i - 1) // 4
        I(f'buffer_store_dwordx4 {v(OP + 4 * j, 4)}, {v(VO)}, {s(SRD_WS, 4)}, {s(S_OB)} offen offset:{256 * j} sc1')
early_eval()
stamp(5)
I('s_branch L_phase2')

k.set_state(st_join)
k.label('L_ffn')
h_scalars()
ln_wait()
stamp(2)
pre_loads()
if RTLATE:
    rt_stores()
tag_fetch()
I(f's_lshl_b32 {s(S_T3)}, {s(S_WAVE)}, 9')
I(f's_add_u32 {s(S_T3)}, {s(S_T3)}, {HALO}')
I(f'v_lshl_add_u32 {v(T)}, {v(V_LANE)}, 3, {s(S_T3)}')
I(f'ds_write_b64 {v(T)}, {v(BIAS, 2)}')
I(f'v_lshrrev_b32 {v(T)}, 4, {v(V_LANE)}')
I(f'v_lshl_add_u32 {v(T)}, {v(T)}, 3, {s(S_T3)}')
for cb in range(14):
    I(f'ds_read_b64 {v(T + 8 + 2 * cb, 2)}, {v(T)} offset:{32 * cb}')
I(f's_mov_b32 {s(S_T4)}, 0xffff0000')
for cb in range(14):
    for rb in range(2):
        d = ACC + (cb * 2 + rb) * 4
        for h in range(2):
            I(f'v_lshlrev_b32 {v(d + 2 * h)}, 16, {v(T + 8 + 2 * cb + h)}')
            I(f'v_and_b32 {v(d + 2 * h + 1)}, {s(S_T4)}, {v(T + 8 + 2 * cb + h)}')
C0 = -2.0 * 0.7978845608028654 * 1.4426950408889634
C1 = C0 * 0.044715
GC0 = 128
GS1, S_HB2 = 46, 48
I(f'v_mov_b32 {v(GC0)}, {f32(C0)}')
I(f'v_mov_b32 {v(GC0 + 1)}, {f32(C0)}')
I(f'v_mov_b32 {v(GC0 + 2)}, 1.0')
I(f'v_mov_b32 {v(GC0 + 3)}, 1.0')
I(f's_mov_b32 {s(GS1)}, {f32(C1)}')
I(f's_mov_b32 {s(GS1 + 1)}, {f32(C1)}')
I(f's_mul_i32 {s(S_HB2)}, {s(S_MB0)}, {ACT_MB}')
I(f's_lshl_b32 {s(S_T3)}, {s(S_START)}, 10')
I(f's_add_u32 {s(S_HB2)}, {s(S_HB2)}, {s(S_T3)}')
I(f's_add_u32 {s(S_HB2)}, {s(S_HB2)}, {ACT_T + 20 * 1024}')
I(f's_add_u32 {s(S_HB2 + 1)}, {s(S_HB2)}, {ACT_MB}')


def gelu_group(pr, rb, hook=None):
    n = pr * 2 + rb
    tmp = T + 4 + 8 * (n % 2)
    out = T + 20 + 4 * (n % 4)
    xs = [ACC + ((2 * pr + c2) * 2 + rb) * 4 + 2 * h for c2 in range(2) for h in range(2)]
    for i, x in enumerate(xs):
        I(f'v_pk_mul_f32 {v(tmp + 2 * i, 2)}, {v(x, 2)}, {v(x, 2)}')
    for i, x in enumerate(xs):
        I(f'v_pk_fma_f32 {v(tmp + 2 * i, 2)}, {v(tmp + 2 * i, 2)}, {s(GS1, 2)}, {v(GC0, 2)}')
    hook()
    for i, x in enumerate(xs):
        I(f'v_pk_mul_f32 {v(tmp + 2 * i, 2)}, {v(tmp + 2 * i, 2)}, {v(x, 2)}')
    hook()
    for i in range(8):
        I(f'v_exp_f32 {v(tmp + i)}, {v(tmp + i)}')
        if i % 2 == 0 and i >= 2:
            I(f'v_pk_add_f32 {v(tmp + i - 2, 2)}, {v(tmp + i - 2, 2)}, {v(GC0 + 2, 2)}')
    hook()
    I(f'v_rcp_f32 {v(tmp)}, {v(tmp)}')
    I(f'v_pk_add_f32 {v(tmp + 6, 2)}, {v(tmp + 6, 2)}, {v(GC0 + 2, 2)}')
    hook()
    for i in range(1, 8):
        I(f'v_rcp_f32 {v(tmp + i)}, {v(tmp + i)}')
        if i % 2 == 0:
            I(f'v_pk_mul_f32 {v(tmp + i - 2, 2)}, {v(tmp + i - 2, 2)}, {v(xs[i // 2 - 1], 2)}')
    hook()
    I(f'v_cvt_pk_bf16_f32 {v(out)}, {v(tmp)}, {v(tmp + 1)}')
    I(f'v_pk_mul_f32 {v(tmp + 6, 2)}, {v(tmp + 6, 2)}, {v(xs[3], 2)}')
    hook()
    for i in range(1, 4):
        I(f'v_cvt_pk_bf16_f32 {v(out + i)}, {v(tmp + 2 * i)}, {v(tmp + 2 * i + 1)}')
    I(f'buffer_store_dwordx4 {v(out, 4)}, {v(V_L16 if pr < 4 else V_L16B)}, {s(SRD_WS, 4)}, {s(S_HB2 + rb)} offen offset:{(pr & 3) * 1024} sc1', tag=('h', pr))


stamp(3)
w2done = mainloop([[(ks, j, 32 * j) for j in range(14)] for ks in range(20)], areg_att,
                  [[ks + LAK] if ks + LAK < 20 else [] for ks in range(20)], False,
                  lambda t_, f: opt('rf0', 3) if t_ < 20 - LAK else opt('rf1', 8), lambda kn: None, lambda t_: [], lambda t_, ph: None)
stamp(4)
stamp(1, 4)
I('s_barrier')
w2rest = [lambda f=f: w2load(f) for f in range(w2done, NW2X)]
w2rest += [lambda i=i, nb=nb: wodma(i, nb) for i in WO_EARLY for nb in range(5)]
FM = opt('fm', 0)
if FM == 0:
    w2rest = [x for fn in w2rest for x in (fn, None)]
elif FM == 1:
    w2rest = [None] * 48 + w2rest
elif FM == 2:
    pass
elif FM == 3:
    w2tail = w2rest[-15:]
    w2rest = [x for fn in w2rest[:-15] for x in (fn, None, None)]


def hook():
    if w2rest:
        fn = w2rest.pop(0)
        if fn:
            fn()


HSPLIT = 4
for pr in range(7):
    for rb in range(2):
        gelu_group(pr, rb, hook)
        if rb == 1 and pr in (1, 3, 4, 6):
            stamp(2 + (1, 3, 4, 6).index(pr), 4)
        if pr == HSPLIT and rb == opt('hrb', 1):
            k.wait_vm_tag(('h', HSPLIT - 1))
            I('s_barrier')
            lab = k.newlabel('L_nh')
            I(f's_cmp_eq_u32 {s(S_WAVE)}, 0')
            I(f's_cbranch_scc0 {lab}')
            flag_store(P1H, S_FOFF, 224)
            k.label(lab)
        if pr == 6 and rb == 0:
            while w2rest:
                hook()
            chk_issue(V_PF)
early_eval()
stamp(5)

k.label('L_phase2')
k.vmq = [(set(), 'p1st')]
k.lgq = []
stamp(6)
stamp(6, 4)
HE = opt('he', 2)
for st in range(HE):
    for mb in range(4):
        hload(st, mb, True)
k.wait_vm_tag('p1st')
stamp(7, 4)
p1_flag()
lab = k.newlabel('L_haveh')
I(f's_cmp_eq_u32 {s(S_EARLY)}, 1')
I(f's_cbranch_scc1 {lab}')
k.wait_all()
poll(V_PF, 'ffn')
for st in range(HE):
    for mb in range(4):
        hload(st, mb)
k.label(lab)
for st in range(HE, 4):
    for mb in range(4):
        hload(st, mb)
stamp(7)
stamp(8, 4)


def p2_setup():
    global S_OBASE, S_OOK, S_HI, S_NL2E, VXO, VB2, VPA2, VRED2, VWO1, VWO2
    S_OBASE, S_OOK, S_HI, S_NL2E = 36, 39, 40, 41
    I(f's_lshl_b32 {s(S_T3)}, {s(S_M2)}, 2')
    I(f's_add_u32 {s(S_T3)}, {s(S_T3)}, {s(S_WAVE)}')
    I(f's_mul_i32 {s(S_OBASE)}, {s(S_T3)}, {ACT_MB}')
    I(f's_add_u32 {s(S_OBASE)}, {s(S_OBASE)}, {ACT_T + (OOB // 2 if "--noH" in sys.argv else 0)}')
    I(f's_mov_b32 {s(S_HI)}, 0xffff0000')
    I(f's_mov_b32 {s(S_NL2E)}, {f32(-1.4426950408889634)}')
    VXO, VB2, VPA2, VRED2, VWO1, VWO2 = T2 + 2, T2 + 3, T2 + 4, T2 + 5, T2 + 6, T2 + 7
    I(f's_mul_i32 {s(S_T3)}, {s(S_T3)}, {16 * 1280}')
    I(f's_mul_i32 {s(S_T4)}, {s(S_NT)}, 160')
    I(f's_add_u32 {s(S_T3)}, {s(S_T3)}, {s(S_T4)}')
    for i in range(3):
        I(f'v_add_u32 {v(VB2)}, {64 * i}, {v(V_LANE)}')
        I(f'v_mul_u32_u24 {v(VXO)}, 205, {v(VB2)}')
        I(f'v_lshrrev_b32 {v(VXO)}, 11, {v(VXO)}')
        I(f'v_mul_u32_u24 {v(VXO)}, {1280 - 160}, {v(VXO)}')
        I(f'v_lshl_add_u32 {v(VXO)}, {v(VB2)}, 4, {v(VXO)}')
        I(f'v_add_u32 {v(VXG + i)}, {s(S_T3)}, {v(VXO)}')
    I(f'v_lshrrev_b32 {v(VB2)}, 5, {v(V_LANE)}')
    I(f'v_lshl_or_b32 {v(VXG + 2)}, {v(VB2)}, 30, {v(VXG + 2)}')
    prow(VB2, VXO, 15)
    I(f'v_mul_u32_u24 {v(VXO)}, 160, {v(VB2)}')
    I(f'v_lshrrev_b32 {v(VB2)}, 4, {v(V_LANE)}')
    I(f'v_lshl_add_u32 {v(VXO)}, {v(VB2)}, 3, {v(VXO)}')
    I(f'v_lshl_add_u32 {v(VB2)}, {v(VB2)}, 3, {s(S_T4)}')
    I(f's_mul_i32 {s(S_T3)}, {s(S_WAVE)}, {15 * 1024}')
    I(f's_add_u32 {s(S_T3)}, {s(S_T3)}, {LDS_RED}')
    I(f'v_add_u32 {v(VXO)}, {s(S_T3)}, {v(VXO)}')
    I(f'v_subrev_u32 {v(V_PF)}, {P1H - P1F}, {v(V_PF)}')
    I(f's_lshr_b32 {s(S_T3)}, {s(S_M2)}, 1')
    I(f's_lshl_b32 {s(S_T3)}, {s(S_T3)}, {4 + FS}')
    I(f's_add_u32 {s(S_T3)}, {s(S_T3)}, {P1F}')
    I(f'v_and_b32 {v(VPA2)}, 7, {v(V_LANE)}')
    I(f'v_lshl_add_u32 {v(VPA2)}, {v(VPA2)}, {FS}, {s(S_T3)}')
    I(f's_mul_i32 {s(S_T3)}, {s(S_WAVE)}, {15 * 1024}')
    I(f'v_add_u32 {v(VWO1)}, {LDS_RED}, {v(V_L16)}')
    I(f'v_add_u32 {v(VRED2)}, {s(S_T3)}, {v(VWO1)}')
    I(f'v_add_u32 {v(VWO2)}, {LDS_WO + 65536}, {v(V_L16)}')
    for i in range(3):
        I(f's_add_u32 {s(S_T3)}, {s(S_WAVE)}, {1 + i}')
        I(f's_and_b32 {s(S_T3)}, {s(S_T3)}, 3')
        I(f's_mul_i32 {s(S_T3)}, {s(S_T3)}, {15 * 1024}')
        I(f'v_add_u32 {v(VRW[i])}, {s(S_T3)}, {v(VWO1)}')


setup2 = k.record(p2_setup)


def oreg(ks):
    return a(4 * W2ORDER[20 + ks], 4)


def oload(ks):
    if ks % 8 == 0 and ks:
        I(f's_add_u32 {s(S_OBASE)}, {s(S_OBASE)}, 8192')
    I(f'buffer_load_dwordx4 {oreg(ks)}, {v(V_L16 if (ks & 7) < 4 else V_L16B)}, {s(SRD_WS, 4)}, {s(S_OBASE)} offen offset:{(ks & 3) * 1024} sc1')


R_ = k.record
fl = {st: [] for st in range(13)}
if W2ALL:
    pfi = [i for i, e in enumerate(setup2) if 'v_subrev_u32' in e[0]][0]
    fl[0] = R_(lambda: [hload(4, mb) for mb in range(4)]) + setup2[pfi:]
    fl[1] = R_(lambda: chk_issue(V_PF)) + setup2[:pfi // 2]
    fl[2] = R_(lambda: w2load(69)) + setup2[pfi // 2:pfi]
    fl[4] = R_(lambda: [wodma(WO_LATE[0], nb) for nb in range(3)])
    fl[5] = R_(lambda: [wodma(WO_LATE[0], nb) for nb in range(3, 5)])
    fl[6] = R_(lambda: [wodma(WO_LATE[1], nb) for nb in range(3)])
    fl[7] = R_(lambda: [wodma(WO_LATE[1], nb) for nb in range(3, 5)]) + R_(lambda: chk_issue(VPA2))
else:
    fl[0] = R_(lambda: [hload(st, mb) for st in (4, 5) for mb in range(4)]) + setup2
    fl[1] = R_(lambda: chk_issue(V_PF)) + R_(lambda: [hload(st, mb) for st in (6, 7) for mb in range(4)])
    fl[2] = R_(lambda: [w2load(f) for f in range(NW2E, NW2E + 5)])
    fl[3] = R_(lambda: [hload(8, mb) for mb in range(4)]) + R_(lambda: [wodma(WO_LATE[0], nb) for nb in range(5)])
    fl[4] = R_(lambda: [w2load(f) for f in range(NW2E + 5, NW2E + 10)])
    fl[5] = R_(lambda: [wodma(WO_LATE[1], nb) for nb in range(5)])
    fl[6] = R_(lambda: [w2load(f) for f in range(NW2E + 10, NW2E + 14)])
    fl[7] = R_(lambda: [w2load(f) for f in range(NW2E + 14, 70)]) + R_(lambda: chk_issue(VPA2))
WOW = YACC
NWW = 14
LA2 = 11
WOPRE = W2ORDER[1:20] + W2ORDER[40:49]
NPW = len(WOPRE) if opt('wopre', 1) else 0


def woreg(n):
    return a(4 * WOPRE[n], 4) if n < NPW else v(WOW + 4 * (n % NWW), 4)


def woread(n):
    off = n * 1024
    if off < 65536:
        I(f'ds_read_b128 {woreg(n)}, {v(V_L16)} offset:{off}')
    else:
        I(f'ds_read_b128 {woreg(n)}, {v(VWO2)} offset:{off - 65536}')


if NPW:
    for j in range(19):
        fl.setdefault(4 + j // 3, [])
        fl[4 + j // 3] = fl[4 + j // 3] + R_(lambda: woread(j))
wotail = [j for j in range(19, NPW)]
NOY = opt('noy', 12)
late = R_(lambda: [oload(ks) for ks in range(4)])
late += R_(lambda: [I(f'buffer_load_dwordx2 {v(B2V + 2 * nb, 2)}, {v(VB2)}, {s(SRD_B2, 4)}, 0 offen offset:{32 * nb}') for nb in range(5)])
late += R_(lambda: [oload(ks) for ks in range(4, NOY)])
olate = R_(lambda: [oload(ks) for ks in range(NOY, 20)])
olate += R_(lambda: [I(f'buffer_load_dwordx4 {v(XIN + 4 * i, 4)}, {v(VXG + i)}, {s(SRD_X, 4)}, 0 offen') for i in range(3)])
TS = 11
ATK = opt('atk', 9)
nl = len(late)
for i, st in enumerate(range(ATK, TS)):
    fl[st] = fl[st] + late[i * nl // (14 - ATK):(i + 1) * nl // (14 - ATK)]
late = late[(TS - ATK) * nl // (14 - ATK):]
I(f's_mov_b32 {s(39)}, 1')
for st in range(TS):
    if st in (0, 1, 3, 5, 8):
        stamp(1 + (0, 1, 3, 5, 8).index(st), 3)
    if st == 3:
        poll(V_PF, 'ffn2', preissued=True)
    if st == ATK:
        poll(VPA2, 'att', preissued=True)
    q = fl[st]
    per = max(8, -(-sum(cost(e) for e in q) // 16))
    for mb in range(4):
        for nb in range(5):
            nn = 4 - nb if (mb & 1 and '--snake' in sys.argv) else nb
            d = YACC + (mb * 5 + nn) * 4
            c_ = '0' if st == 0 else v(d, 4)
            I(f'v_mfma_f32_16x16x32_bf16 {v(d, 4)}, {w2reg(st, nn)}, {hreg(st, mb)}, {c_}')
            u = 0
            while q and nb < 4 and (u + cost(q[0]) <= per) and (nb % 2 == 0 or len(q) > 2 * (4 - mb)):
                u += cost(q[0])
                k.play(q.pop(0))
        if st + HWN < 14:
            hload(st + HWN, mb)
    while q:
        k.play(q.pop(0))
stamp(6, 3)
YOWN = YACC + 60
n = 0
for mb in range(4):
    for st in range(TS, 14):
        for nb in range(5):
            d = YACC + (mb * 5 + nb) * 4
            I(f'v_mfma_f32_16x16x32_bf16 {v(d, 4)}, {w2reg(st, nb)}, {hreg(st, mb)}, {v(d, 4)}')
            j = (st - TS) * 5 + nb
            if mb and j >= 3 and j % 2 == 1 and (j - 3) // 2 < 5:
                nw = (j - 3) // 2
                I(f'ds_write_b128 {v(VRW[mb - 1])}, {v(YACC + ((mb - 1) * 5 + nw) * 4, 4)} offset:{((mb - 1) * 5 + nw) * 1024}')
            elif late and n % 4 == 0:
                k.play(late.pop(0))
            elif wotail and n % 4 == 2:
                woread(wotail.pop(0))
            n += 1
while late:
    k.play(late.pop(0))
stamp(8)
stamp(7, 3)
stamp(1, 5)
k.wait_all(vm=False, lg=True)
I('s_barrier')
stamp(2, 5)
YT = HW + 20
for i in range(3):
    for nb in range(5):
        I(f'ds_read_b128 {v(YT + 20 * i + 4 * nb, 4)}, {v(VRED2)} offset:{(i * 5 + nb) * 1024}')
for n in range(NPW, LA2):
    woread(n)
G1 = YT
valu = []
GPK = opt('gpk', 1)
for i in range(3):
    if GPK:
        for r in range(10):
            valu.append(f'v_pk_add_f32 {v(YOWN + 2 * r, 2)}, {v(YOWN + 2 * r, 2)}, {v(YT + 20 * i + 2 * r, 2)}')
    else:
        for r in range(20):
            valu.append(f'v_add_f32 {v(YOWN + r)}, {v(YOWN + r)}, {v(YT + 20 * i + r)}')
seq = [
    lambda y, p, r: f'v_cvt_pk_bf16_f32 {v(p)}, {v(y)}, {v(y + 1)}',
    lambda y, p, r: f'v_lshlrev_b32 {v(y)}, 16, {v(p)}',
    lambda y, p, r: f'v_and_b32 {v(y + 1)}, {s(S_HI)}, {v(p)}',
    lambda y, p, r: f'v_lshlrev_b32 {v(p)}, 16, {v(B2V + r)}',
    lambda y, p, r: f'v_and_b32 {v(p + 1)}, {s(S_HI)}, {v(B2V + r)}',
    lambda y, p, r: f'v_add_f32 {v(y)}, {v(y)}, {v(p)}',
    lambda y, p, r: f'v_add_f32 {v(y + 1)}, {v(y + 1)}, {v(p + 1)}',
    lambda y, p, r: f'v_cvt_pk_bf16_f32 {v(p)}, {v(y)}, {v(y + 1)}',
    lambda y, p, r: f'v_lshlrev_b32 {v(y)}, 16, {v(p)}',
    lambda y, p, r: f'v_and_b32 {v(y + 1)}, {s(S_HI)}, {v(p)}',
    lambda y, p, r: f'v_mul_f32 {v(p)}, {s(S_NL2E)}, {v(y)}',
    lambda y, p, r: f'v_mul_f32 {v(p + 1)}, {s(S_NL2E)}, {v(y + 1)}',
    lambda y, p, r: f'v_exp_f32 {v(p)}, {v(p)}',
    lambda y, p, r: f'v_exp_f32 {v(p + 1)}, {v(p + 1)}',
    lambda y, p, r: f'v_add_f32 {v(p)}, 1.0, {v(p)}',
    lambda y, p, r: f'v_add_f32 {v(p + 1)}, 1.0, {v(p + 1)}',
    lambda y, p, r: f'v_rcp_f32 {v(p)}, {v(p)}',
    lambda y, p, r: f'v_rcp_f32 {v(p + 1)}, {v(p + 1)}',
    lambda y, p, r: f'v_mul_f32 {v(y)}, {v(y)}, {v(p)}',
    lambda y, p, r: f'v_mul_f32 {v(y + 1)}, {v(y + 1)}, {v(p + 1)}',
    lambda y, p, r: f'v_cvt_pk_bf16_f32 {v(p)}, {v(y)}, {v(y + 1)}',
    lambda y, p, r: f'v_lshlrev_b32 {v(y)}, 16, {v(p)}',
    lambda y, p, r: f'v_and_b32 {v(y + 1)}, {s(S_HI)}, {v(p)}',
]
if GPK:
    seq[5:7] = [lambda y, p, r: f'v_pk_add_f32 {v(y, 2)}, {v(y, 2)}, {v(p, 2)}']
    seq[-5:-3] = [lambda y, p, r: f'v_pk_mul_f32 {v(y, 2)}, {v(y, 2)}, {v(p, 2)}']
for fn in seq:
    for r in range(10):
        valu.append(fn(YOWN + 2 * r, G1 + 2 * r, r))
for r in range(12):
    valu.append(f'v_lshlrev_b32 {v(G1 + 2 * r)}, 16, {v(XIN + r)}')
    valu.append(f'v_and_b32 {v(G1 + 2 * r + 1)}, {s(S_HI)}, {v(XIN + r)}')
nv = len(valu)
stamp(8, 3)
stamp(3, 5)
vi = 0
for n in range(100):
    ks, nb = divmod(n, 5)
    if n in (24, 50, 74):
        stamp(4 + (24, 50, 74).index(n), 5)
    d = SACC + 4 * nb
    c_ = '0' if ks == 0 else v(d, 4)
    if n % 3 == 0:
        k._need(set().union(*[regs_of(woreg(m)) for m in range(n, min(n + 3, 100))]))
    I(f'v_mfma_f32_16x16x32_bf16 {v(d, 4)}, {woreg(n)}, {oreg(ks)}, {c_}')
    if NPW <= n + LA2 < 100:
        woread(n + LA2)
    if olate and n % 2 == 1:
        k.play(olate.pop(0))
    while vi < nv and vi * 100 < (n + 1) * nv:
        I(valu[vi])
        vi += 1
PT = YT + 24
stamp(7, 5)
seq = [
    lambda sx, y, p, r: f'v_cvt_pk_bf16_f32 {v(p)}, {v(sx)}, {v(sx + 1)}',
    lambda sx, y, p, r: f'v_lshlrev_b32 {v(sx)}, 16, {v(p)}',
    lambda sx, y, p, r: f'v_and_b32 {v(sx + 1)}, {s(S_HI)}, {v(p)}',
    lambda sx, y, p, r: f'v_pk_mul_f32 {v(sx, 2)}, {v(sx, 2)}, {v(y, 2)}',
    lambda sx, y, p, r: f'v_cvt_pk_bf16_f32 {v(p)}, {v(sx)}, {v(sx + 1)}',
]
for nb in range(5):
    for fn in seq:
        for r in (2 * nb, 2 * nb + 1):
            I(fn(SACC + 2 * r, YOWN + 2 * r, PT + r, r))
    I(f'ds_write_b64 {v(VXO)}, {v(PT + 2 * nb, 2)} offset:{32 * nb}')
for i in range(3):
    I(f'ds_read_b128 {v(XIN + 4 * i, 4)}, {v(VRED2)} offset:{1024 * i}')
U = YACC
stamp(8, 5)
for i in range(3):
    rr = range(4 * i, 4 * i + 4)
    for r in rr:
        I(f'v_lshlrev_b32 {v(U + 2 * r)}, 16, {v(XIN + r)}')
        I(f'v_and_b32 {v(U + 2 * r + 1)}, {s(S_HI)}, {v(XIN + r)}')
    for r in rr:
        I(f'v_pk_add_f32 {v(U + 2 * r, 2)}, {v(U + 2 * r, 2)}, {v(G1 + 2 * r, 2)}')
    for r in rr:
        I(f'v_cvt_pk_bf16_f32 {v(XIN + r)}, {v(U + 2 * r)}, {v(U + 2 * r + 1)}')
    I(f'buffer_store_dwordx4 {v(XIN + 4 * i, 4)}, {v(VXG + i)}, {s(SRD_OUT, 4)}, 0 offen')
ECHO = opt('echo', -1)
if ECHO >= 0:
    stamp(9, -1)
    k.wait_all()
    I(f's_sub_u32 {s(S_T3)}, {s(S_STAMP + 2 * ECHO)}, {s(S_STAMP)}')
    I(f's_min_u32 {s(S_T3)}, {s(S_T3)}, 10000')
    k.label('L_echo')
    I(f's_memrealtime {s(S_T4, 2)}')
    k.wait_all()
    I(f's_sub_u32 {s(S_T4)}, {s(S_T4)}, {s(S_STAMP + 18)}')
    I(f's_cmp_lt_u32 {s(S_T4)}, {s(S_T3)}')
    I('s_cbranch_scc1 L_echo')
elif STAMPS:
    stamp(9, -1)
    k.wait_all()
    I(f's_lshl_b32 {s(S_T3)}, {s(S_WG)}, 8')
    I(f's_lshl_b32 {s(S_T4)}, {s(S_WAVE)}, 6')
    I(f's_add_u32 {s(S_T3)}, {s(S_T3)}, {s(S_T4)}')
    I(f's_add_u32 {s(S_T3)}, {s(S_T3)}, {STAMP_OFF}')
    I(f'v_mov_b32 {v(T2)}, 0')
    I('s_mov_b64 exec, 1')
    for i in range(10):
        I(f'v_mov_b32 {v(T2 + 1)}, {s(S_STAMP + 2 * i)}')
        I(f'buffer_store_dword {v(T2 + 1)}, {v(T2)}, {s(SRD_WS, 4)}, {s(S_T3)} offen offset:{4 * i}')
    I(f'v_mov_b32 {v(T2 + 1)}, {s(S_EARLY)}')
    I(f'buffer_store_dword {v(T2 + 1)}, {v(T2)}, {s(SRD_WS, 4)}, {s(S_T3)} offen offset:52')
    I(f'v_mov_b32 {v(T2 + 1)}, {s(S_OOK)}')
    I(f'buffer_store_dword {v(T2 + 1)}, {v(T2)}, {s(SRD_WS, 4)}, {s(S_T3)} offen offset:56')
    I(f'v_mov_b32 {v(T2 + 1)}, {s(S_TYPE)}')
    I(f'buffer_store_dword {v(T2 + 1)}, {v(T2)}, {s(SRD_WS, 4)}, {s(S_T3)} offen offset:60')
if '--padx' in sys.argv:
    for i in range(2048):
        I(f'v_add3_u32 {v(16 + i % 8)}, {v(16 + i % 8)}, v2, v3')
if '--pady' in sys.argv:
    I(f's_mov_b32 {s(S_T3)}, 0')
    k.label('L_pady')
    for i in range(64):
        I(f'v_add3_u32 {v(16 + i % 8)}, {v(16 + i % 8)}, v2, v3')
    I(f's_add_u32 {s(S_T3)}, {s(S_T3)}, 1')
    I(f's_cmp_lt_u32 {s(S_T3)}, 32')
    I('s_cbranch_scc1 L_pady')
k.label('L_end')
I('s_endpgm')

hdr = open('recurrent_scan__sliding_local_dilated__dense_activation_gelu__prompt.s.ref').read().split('\n')
head = [l for l in hdr if l.startswith(';') and '@launch' not in l and 'Override' not in l and 'grid=ceil' not in l]
print('\n'.join(head))
print(f'; @launch grid=(256,1,1) block=(256,1,1) lds={LDS_TOTAL}')
print(""";
;   phase 2  : 64 x 80 output tile: y = h @ w2 (K split over the waves), s = o @ wo, out = x + s * silu(y + b2).""")
print(f'''.amdgcn_target "amdgcn-amd-amdhsa--gfx950"
.text
.globl {KNAME}
.p2align 8
.type {KNAME},@function
{KNAME}:''')
print(k.text())
print(f'''.section .rodata,"a"
.p2align 6
.amdhsa_kernel {KNAME}
  .amdhsa_next_free_vgpr 512
  .amdhsa_next_free_sgpr 102
  .amdhsa_accum_offset 256
  .amdhsa_group_segment_fixed_size 0
  .amdhsa_kernarg_size 88
  .amdhsa_user_sgpr_count 2
  .amdhsa_user_sgpr_kernarg_segment_ptr 1
  .amdhsa_system_sgpr_workgroup_id_x 1
  .amdhsa_float_denorm_mode_32 3
.end_amdhsa_kernel''')
```

```python
import sys, struct
from asmlib import *

KNAME = 'recurrent_scan__sliding_local_dilated__dense_activation_gelu__prompt_kernel'
STAMPS = '--stamps' in sys.argv


def opt(name, default):
    for x in sys.argv:
        if x.startswith(f'--{name}='):
            return int(x.split('=')[1])
    return default


SMODE = opt('smode', 0)

XN_T = 0
ACT_T = 128 * 20 * 1024
ACT_MB = 74 * 1024
W_T = ACT_T + 128 * ACT_MB
FS = opt('fs', 6)
WS_ = opt('ws', 6)
LNF = W_T + 74 * 40 * 1024
P1F = LNF + (256 << FS)
P1H = P1F + (256 << FS)
WTF = P1H + (256 << FS)
WS_USED = LNF + (1024 << 7)
STAMP_OFF = WS_USED
WS_REC = WS_USED + (256 * 4 * 64 if STAMPS else 0)
OOB = 0x40000000

RROW = 1056
SLOT = 16 * RROW
NSLOT = 8
HALO = NSLOT * SLOT
CNT = HALO + 20 * 1024
RS = 496
STG = 4 * SLOT
LDS_WO = 0
LDS_RED = 100 * 1024
LDS_TOTAL = 163840


def f32(x):
    return '0x%08x' % struct.unpack('<I', struct.pack('<f', x))[0]


S_WG, S_FOFF = 2, 3
SRD_X, SRD_B, SRD_WS, SRD_DBG, SRD_OUT, SRD_RT, SRD_B1, SRD_B2 = 4, 8, 12, 16, 20, 24, 28, 56
P_X, P_WQKV, P_WO, P_BX, P_W1, P_B1, P_W2, P_B2, P_OUT, P_DBG, P_WS = 32, 34, 36, 38, 40, 42, 44, 46, 48, 50, 52
S_WAVE, S_MT, S_TYPE, S_IDX, S_FB, S_PITCH, S_KSTR, S_START = 60, 61, 62, 63, 64, 65, 66, 67
S_T0, S_T1, S_T2, S_T3, S_T4, S_T5 = 68, 69, 70, 71, 72, 73
S_M0B, S_SOFF, S_M2, S_NT, S_SPIN, S_TAG = 74, 75, 76, 77, 78, 79
S_STAMP = 80
S_W2A, S_W2B = 100, 101
S_WOB, S_WOM, S_LAST = 16, 17, 18
S_HB, S_MB0 = 32, 33
S_AO = 36

V_LANE = 1
V_DMA = 2
V_TR0, V_TR1 = 6, 7
V_TRH0, V_TRH1 = 8, 9
V_L16 = 10
V_L16B = 11
V_PA = 12
V_POLL = 13
V_X = 14
V_PF = 15
ACC = 16
HACC = 136
WIN = 148
HX = 180
T = 188
BIAS = 226
W2V = 228
P4 = 252

k = K()
I = k.I


def stamp(idx, mode=0):
    if STAMPS and (mode == SMODE or mode == -1):
        I(f'{"s_memtime" if "--cyc" in sys.argv else "s_memrealtime"} {s(S_STAMP + 2 * idx, 2)}')


def srd(base, plo, nbytes):
    I(f's_mov_b32 {s(base)}, {s(plo)}')
    I(f's_mov_b32 {s(base + 1)}, {s(plo + 1)}')
    I(f's_mov_b32 {s(base + 2)}, {nbytes}')
    I(f's_mov_b32 {s(base + 3)}, 0x00020000')


def csel(dst, x, y):
    I(f's_mov_b32 {s(dst)}, {y}')
    I(f's_cselect_b32 {s(dst)}, {x}, {s(dst)}')


def chk_issue(addrv, n=1):
    if n == 1:
        I(f'buffer_load_dword {v(V_POLL)}, {v(addrv)}, {s(SRD_WS, 4)}, 0 offen sc1')
    else:
        I(f'buffer_load_dwordx4 {v(P4, 4)}, {v(addrv)}, {s(SRD_WS, 4)}, 0 offen sc1')


def chk_eval(n=1):
    if n == 1:
        I(f'v_cmp_ne_u32 vcc, {s(S_TAG)}, {v(V_POLL)}')
    else:
        for i in range(4):
            I(f'v_xor_b32 {v(P4 + i)}, {s(S_TAG)}, {v(P4 + i)}')
        I(f'v_or3_b32 {v(P4)}, {v(P4)}, {v(P4 + 1)}, {v(P4 + 2)}')
        I(f'v_or_b32 {v(P4)}, {v(P4)}, {v(P4 + 3)}')
        I(f'v_cmp_ne_u32 vcc, 0, {v(P4)}')


def poll(addrv, name, n=1, preissued=False, sleep=1):
    lab = k.newlabel('L_poll_' + name)
    done = k.newlabel('L_polled_' + name)
    if not preissued:
        chk_issue(addrv, n)
    chk_eval(n)
    I(f's_mov_b32 {s(S_SPIN)}, 0')
    I(f's_cbranch_vccz {done}')
    st = k.state()
    k.label(lab)
    I(f's_sleep {sleep}')
    chk_issue(addrv, n)
    k.wait_all(vm=True, lg=False)
    chk_eval(n)
    I(f's_add_u32 {s(S_SPIN)}, {s(S_SPIN)}, 1')
    I(f's_cbranch_vccz {done}')
    I(f's_cmp_lt_u32 {s(S_SPIN)}, 0x40000')
    I(f's_cbranch_scc1 {lab}')
    k.label(done)
    k.set_state(st)


def flag_store(base, offs, t0):
    I(f'v_mov_b32 {v(t0)}, {s(S_TAG)}')
    I(f'v_mov_b32 {v(t0 + 1)}, {base}')
    I('s_mov_b64 exec, 1')
    I(f'buffer_store_dword {v(t0)}, {v(t0 + 1)}, {s(SRD_WS, 4)}, {s(offs)} offen sc1')
    I('s_mov_b64 exec, -1')
    k.vmq.pop()


def dma1(j, soff_reg, tag):
    I(f'buffer_load_dwordx4 {v(V_DMA + j)}, {s(SRD_B, 4)}, {s(soff_reg)} offen offset:{j * RROW} lds', tag=tag)


def bf16r(dst, src):
    I(f'v_cvt_pk_bf16_f32 {v(dst)}, {v(src)}, {v(src)}')
    I(f'v_lshlrev_b32 {v(dst)}, 16, {v(dst)}')


def prow(dst, tmp, mask):
    I(f'v_and_b32 {v(dst)}, {mask & ~7}, {v(V_LANE)}')
    I(f'v_bfe_u32 {v(tmp)}, {v(V_LANE)}, 2, 1')
    I(f'v_add_u32 {v(dst)}, {v(dst)}, {v(tmp)}')
    I(f'v_and_b32 {v(tmp)}, 3, {v(V_LANE)}')
    I(f'v_lshl_add_u32 {v(dst)}, {v(tmp)}, 1, {v(dst)}')


def row_sum(r, t1):
    for sh in (4, 8):
        I(f'v_add_f32_dpp {v(r)}, {v(r)}, {v(r)} row_ror:{sh} row_mask:0xf bank_mask:0xf')
    for op in ('v_permlane16_swap_b32', 'v_permlane32_swap_b32'):
        I(f'v_mov_b32 {v(t1)}, {v(r)}')
        I(f'{op} {v(r)}, {v(t1)}')
        I(f'v_add_f32 {v(r)}, {v(r)}, {v(t1)}')


I(f's_cmp_ge_u32 {s(S_WG)}, 256')
I('s_cbranch_scc1 L_end')
I(f's_load_dwordx16 {s(32, 16)}, s[0:1], 0')
I(f's_load_dwordx4 {s(48, 4)}, s[0:1], 64')
I(f's_load_dwordx2 {s(52, 2)}, s[0:1], 80')
stamp(0, -1)
I(f'v_lshrrev_b32 {v(T)}, 6, v0')
I(f'v_and_b32 {v(V_LANE)}, 63, v0')
I(f'v_readfirstlane_b32 {s(S_WAVE)}, {v(T)}')
I(f'v_mov_b32 {v(T + 2)}, 0')
I(f'v_mov_b32 {v(T + 3)}, 0')
I(f'v_mov_b32 {v(T + 1)}, {CNT}')
I(f'ds_write_b64 {v(T + 1)}, {v(T + 2, 2)}')
I(f'ds_write_b64 {v(T + 1)}, {v(T + 2, 2)} offset:8')
I(f's_cmp_lt_u32 {s(S_WAVE)}, 2')
I('s_cbranch_scc1 L_nocp')
CPV = T + 35
I(f's_getpc_b64 {s(S_TAG - 1, 2)}')
k.label('L_pc')
I(f's_lshr_b32 {s(S_T3)}, {s(S_WG)}, 2')
I(f's_and_b32 {s(S_T3)}, {s(S_T3)}, 6')
I(f's_and_b32 {s(S_T4)}, {s(S_WAVE)}, 1')
I(f's_add_u32 {s(S_T3)}, {s(S_T3)}, {s(S_T4)}')
I(f's_lshl_b32 {s(S_T3)}, {s(S_T3)}, 13')
I(f'v_lshl_add_u32 {v(CPV)}, {v(V_LANE)}, 7, {s(S_T3)}')
I(f'v_min_u32 {v(CPV)}, L_end-L_pc, {v(CPV)}')
I(f'global_load_dword {v(T + 17)}, {v(CPV)}, {s(S_TAG - 1, 2)}')
k.vmq.pop()
k.label('L_nocp')
I(f's_and_b32 {s(S_T0)}, {s(S_WG)}, 7')
I(f's_lshr_b32 {s(S_T1)}, {s(S_WG)}, 3')
I(f's_and_b32 {s(S_MT)}, {s(S_T0)}, 1')
I(f's_lshl_b32 {s(S_MT)}, {s(S_MT)}, 3')
I(f's_and_b32 {s(S_T2)}, {s(S_T1)}, 7')
I(f's_add_u32 {s(S_MT)}, {s(S_MT)}, {s(S_T2)}')
I(f's_lshr_b32 {s(S_T2)}, {s(S_T1)}, 3')
I(f's_and_b32 {s(S_TYPE)}, {s(S_T2)}, 1')
I(f's_lshr_b32 {s(S_T2)}, {s(S_T2)}, 1')
I(f's_and_b32 {s(S_IDX)}, {s(S_T0)}, 6')
I(f's_add_u32 {s(S_IDX)}, {s(S_IDX)}, {s(S_T2)}')
I(f's_lshl_b32 {s(S_FB)}, {s(S_MT)}, 4')
I(f's_lshl_b32 {s(S_T2)}, {s(S_TYPE)}, 3')
I(f's_add_u32 {s(S_FB)}, {s(S_FB)}, {s(S_T2)}')
I(f's_add_u32 {s(S_FB)}, {s(S_FB)}, {s(S_IDX)}')
I(f's_cmp_eq_u32 {s(S_TYPE)}, 0')
csel(S_PITCH, 3840, 3456)
LR, LP, LXA = T + 4, T + 5, T + 6
I(f'v_and_b32 {v(LR)}, 3, {v(V_LANE)}')
I(f'v_lshrrev_b32 {v(LP)}, 2, {v(V_LANE)}')
I(f's_lshl_b32 {s(S_T3)}, {s(S_FB)}, 3')
I(f's_add_u32 {s(S_T3)}, {s(S_T3)}, {s(S_WAVE)}')
I(f'v_lshl_add_u32 {v(LR)}, {v(LR)}, 1, {s(S_T3)}')
I(f'v_mul_u32_u24 {v(LXA)}, 1280, {v(LR)}')
I(f'v_lshl_add_u32 {v(LXA)}, {v(LP)}, 4, {v(LXA)}')
PFL = 0
I(f'v_and_b32 {v(T + 32)}, 15, {v(V_LANE)}')
I(f's_cmp_eq_u32 {s(S_TYPE)}, 0')
if '--attc' in sys.argv:
    I(f's_cmp_eq_u32 {s(S_TYPE)}, 5')
I(f's_cselect_b32 {s(S_T3)}, 8, 6')
I(f's_cselect_b32 {s(S_T4)}, {1280 - 384}, 0')
csel(S_M0B, 160, 448)
I(f'v_min_u32 {v(T + 32)}, {s(S_T3)}, {v(T + 32)}')
I(f'v_mul_u32_u24 {v(T + 33)}, 11, {v(T + 32)}')
I(f'v_lshrrev_b32 {v(T + 33)}, 5, {v(T + 33)}')
I(f'v_mul_u32_u24 {v(T + 33)}, {s(S_T4)}, {v(T + 33)}')
I(f'v_lshl_add_u32 {v(PFL)}, {v(T + 32)}, 7, {v(T + 33)}')
I(f'v_lshrrev_b32 {v(T + 32)}, 4, {v(V_LANE)}')
I(f'v_mad_u32_u24 {v(PFL)}, {v(T + 32)}, {s(S_PITCH)}, {v(PFL)}')
I(f's_and_b32 {s(S_T3)}, {s(S_IDX)}, 6')
I(f's_mul_i32 {s(S_M0B)}, {s(S_M0B)}, {s(S_T3)}')
I(f'v_add_u32 {v(PFL)}, {s(S_M0B)}, {v(PFL)}')
I(f's_and_b32 {s(S_KSTR)}, {s(S_MT)}, 7')
I(f's_lshl_b32 {s(S_KSTR)}, {s(S_KSTR)}, 1')
I(f's_and_b32 {s(S_T4)}, {s(S_IDX)}, 1')
I(f's_add_u32 {s(S_KSTR)}, {s(S_KSTR)}, {s(S_T4)}')
assert all((x * 11) >> 5 == x // 3 for x in range(9))
k.wait_all(vm=False, lg=True)
stamp(1, 2)
I('s_barrier')
srd(SRD_X, P_X, 2048 * 1280)
srd(SRD_DBG, P_DBG, 256)
XR = T + 8
TAGV = T + 36
I(f's_cmp_ge_u32 {s(S_WAVE)}, 2')
I('s_cbranch_scc1 L_pf')

for i in range(5):
    I(f'buffer_load_dwordx4 {v(XR + 4 * i, 4)}, {v(LXA)}, {s(SRD_X, 4)}, 0 offen offset:{256 * i}', tag='x')
I(f'buffer_load_dword {v(TAGV)}, {v(T + 2)}, {s(SRD_DBG, 4)}, 0 offen sc1')
srd(SRD_WS, P_WS, WS_REC)
I(f's_lshl_b32 {s(S_FOFF)}, {s(S_FB)}, {FS}')
XF = ACC
SA_ = T + 3
I(f'v_lshrrev_b32 {v(SA_)}, 4, {v(LR)}')
I(f'v_mul_u32_u24 {v(SA_)}, 20480, {v(SA_)}')
I(f'v_lshrrev_b32 {v(T)}, 4, {v(V_LANE)}')
I(f'v_lshl_add_u32 {v(SA_)}, {v(T)}, 10, {v(SA_)}')
I(f's_and_b32 {s(S_T4)}, {s(S_FB)}, 1')
I(f's_lshl_b32 {s(S_T4)}, {s(S_T4)}, 1')
I(f's_add_u32 {s(S_T4)}, {s(S_T4)}, {s(S_WAVE)}')
I(f's_lshl_b32 {s(S_T4)}, {s(S_T4)}, 8')
I(f'v_add_u32 {v(SA_)}, {s(S_T4)}, {v(SA_)}')
I(f'v_and_b32 {v(T)}, 15, {v(V_LANE)}')
I(f'v_lshl_add_u32 {v(SA_)}, {v(T)}, 4, {v(SA_)}')
I(f's_mov_b32 {s(S_T3)}, 0xffff0000')
stamp(2, 2)
if STAMPS and SMODE == 2:
    k.wait_vm_tag('x')
stamp(3, 2)
SUM = T + 4
for i in range(20):
    I(f'v_lshlrev_b32 {v(XF + 2 * i)}, 16, {v(XR + i)}')
    I(f'v_and_b32 {v(XF + 2 * i + 1)}, {s(S_T3)}, {v(XR + i)}')
    if i == 1:
        I(f'v_pk_add_f32 {v(SUM, 2)}, {v(XF, 2)}, {v(XF + 2, 2)}')
    elif i > 1:
        I(f'v_pk_add_f32 {v(SUM, 2)}, {v(SUM, 2)}, {v(XF + 2 * i, 2)}')
I(f'v_add_f32 {v(SUM)}, {v(SUM)}, {v(SUM + 1)}')
row_sum(SUM, SUM + 1)
MEAN = T + 6
I(f'v_mul_f32 {v(MEAN)}, {f32(1.0 / 640)}, {v(SUM)}')
I(f'v_mov_b32 {v(MEAN + 1)}, {v(MEAN)}')
SQ = T + 4
DV = T + 28
for i in range(20):
    d = DV + 2 * (i & 1)
    I(f'v_pk_add_f32 {v(d, 2)}, {v(XF + 2 * i, 2)}, {v(MEAN, 2)} neg_lo:[0,1] neg_hi:[0,1]')
    if i == 0:
        I(f'v_pk_mul_f32 {v(SQ, 2)}, {v(d, 2)}, {v(d, 2)}')
    else:
        I(f'v_pk_fma_f32 {v(SQ, 2)}, {v(d, 2)}, {v(d, 2)}, {v(SQ, 2)}')
I(f'v_add_f32 {v(SQ)}, {v(SQ)}, {v(SQ + 1)}')
row_sum(SQ, SQ + 1)
I(f'v_mul_f32 {v(SQ)}, {f32(1.0 / 640)}, {v(SQ)}')
bf16r(SQ, SQ)
I(f'v_add_f32 {v(SQ)}, {f32(1e-5)}, {v(SQ)}')
bf16r(SQ, SQ)
I(f'v_sqrt_f32 {v(SQ)}, {v(SQ)}')
bf16r(MEAN, MEAN)
bf16r(SQ, SQ)
I(f'v_rcp_f32 {v(SQ + 1)}, {v(SQ)}')
I(f'v_mov_b32 {v(MEAN + 1)}, {v(MEAN)}')
I(f'v_fma_f32 {v(SQ)}, -{v(SQ)}, {v(SQ + 1)}, 1.0')
I(f'v_fma_f32 {v(SQ)}, {v(SQ)}, {v(SQ + 1)}, {v(SQ + 1)}')
I(f'v_mov_b32 {v(SQ + 1)}, {v(SQ)}')
for i in range(20):
    x2 = XF + 2 * i
    I(f'v_pk_add_f32 {v(x2, 2)}, {v(x2, 2)}, {v(MEAN, 2)} neg_lo:[0,1] neg_hi:[0,1]')
    I(f'v_cvt_pk_bf16_f32 {v(XR + i)}, {v(x2)}, {v(x2 + 1)}')
    I(f'v_lshlrev_b32 {v(x2)}, 16, {v(XR + i)}')
    I(f'v_and_b32 {v(x2 + 1)}, {s(S_T3)}, {v(XR + i)}')
    I(f'v_pk_mul_f32 {v(x2, 2)}, {v(x2, 2)}, {v(SQ, 2)}')
    I(f'v_cvt_pk_bf16_f32 {v(XR + i)}, {v(x2)}, {v(x2 + 1)}')
    if i % 4 == 3:
        ii = i // 4
        I(f's_mov_b32 {s(S_T4)}, {XN_T + 4096 * ii}')
        I(f'buffer_store_dwordx4 {v(XR + 4 * ii, 4)}, {v(SA_)}, {s(SRD_WS, 4)}, {s(S_T4)} offen sc1')
stamp(1)
stamp(4, 2)
if opt('gate', 1) == 2:
    I(f'v_mov_b32 {v(T + 1)}, {CNT}')
    I(f'v_mov_b32 {v(T)}, 1')
    I('s_mov_b64 exec, 1')
    I(f'ds_add_u32 {v(T + 1)}, {v(T)} offset:8')
    I('s_mov_b64 exec, -1')
I(f'v_readfirstlane_b32 {s(S_TAG)}, {v(TAGV)}')
I(f'v_mov_b32 {v(T + 1)}, 0')
I(f's_mov_b32 {s(S_SPIN)}, 0')
I(f's_cmp_lg_u32 {s(S_TAG)}, 0')
I('s_cbranch_scc1 L_tagok')
k.label('L_tagpoll')
I(f'buffer_load_dword {v(TAGV)}, {v(T + 1)}, {s(SRD_DBG, 4)}, 0 offen sc1')
k.wait_all()
I(f'v_readfirstlane_b32 {s(S_TAG)}, {v(TAGV)}')
I(f's_add_u32 {s(S_SPIN)}, {s(S_SPIN)}, 1')
I(f's_cmp_lg_u32 {s(S_TAG)}, 0')
I('s_cbranch_scc1 L_tagok')
I(f's_cmp_lt_u32 {s(S_SPIN)}, 0x40000')
I('s_cbranch_scc1 L_tagpoll')
k.label('L_tagok')
I(f'v_mov_b32 {v(T + 1)}, {CNT}')
I(f'ds_write_b32 {v(T + 1)}, {v(TAGV)} offset:4')
I(f'v_mov_b32 {v(T)}, 1')
k.wait_all()
stamp(5, 2)
I('s_mov_b64 exec, 1')
I(f'ds_add_rtn_u32 {v(T + 2)}, {v(T + 1)}, {v(T)}')
I('s_mov_b64 exec, -1')
I(f'v_readfirstlane_b32 {s(S_T3)}, {v(T + 2)}')
I(f's_cmp_eq_u32 {s(S_T3)}, 1')
I('s_cbranch_scc0 L_common')
flag_store(LNF, S_FOFF, T)
I('s_branch L_common')

k.vmq = []
k.lgq = []
k.label('L_pf')
I(f's_cmp_lt_u32 {s(S_WG)}, 8')
I('s_cbranch_scc0 L_notag')
I(f's_cmp_eq_u32 {s(S_WAVE)}, 2')
I('s_cbranch_scc0 L_notag')
I(f's_memrealtime {s(S_T4, 2)}')
I(f's_or_b32 {s(S_T4)}, {s(S_T4)}, 1')
I(f'v_mov_b32 {v(T + 2)}, {s(S_T4)}')
I('s_mov_b64 exec, 1')
I(f'buffer_atomic_cmpswap {v(T + 2, 2)}, {v(T + 3)}, {s(SRD_DBG, 4)}, 0 offen sc1')
I('s_mov_b64 exec, -1')
k.label('L_notag')


def srd_b():
    I(f's_cmp_eq_u32 {s(S_TYPE)}, 0')
    I(f's_cselect_b32 {s(SRD_B)}, {s(P_WQKV)}, {s(P_W1)}')
    I(f's_cselect_b32 {s(SRD_B + 1)}, {s(P_WQKV + 1)}, {s(P_W1 + 1)}')
    csel(SRD_B + 2, 640 * 3840, 640 * 3456)
    I(f's_mov_b32 {s(SRD_B + 3)}, 0x00020000')


if opt('pf0', 0):
    I(f's_cmp_eq_u32 {s(S_WAVE)}, 2')
    I(f's_cselect_b32 {s(SRD_B)}, {s(P_WQKV)}, {s(P_W1)}')
    I(f's_cselect_b32 {s(SRD_B + 1)}, {s(P_WQKV + 1)}, {s(P_W1 + 1)}')
    csel(SRD_B + 2, 640 * 3840, 640 * 3456)
    I(f's_mov_b32 {s(SRD_B + 3)}, 0x00020000')
    csel(S_T3, 9600, 8704)
    I(f's_mul_i32 {s(S_T3)}, {s(S_T3)}, {s(S_WG)}')
    I(f'v_lshlrev_b32 {v(T + 20)}, 7, {v(V_LANE)}')
    I(f'buffer_load_dword {v(T + 21)}, {v(T + 20)}, {s(SRD_B, 4)}, {s(S_T3)} offen')
    I(f'v_min_u32 {v(T + 20)}, {10 * 128}, {v(T + 20)}')
    I(f's_add_u32 {s(S_T3)}, {s(S_T3)}, 8192')
    I(f'buffer_load_dword {v(T + 22)}, {v(T + 20)}, {s(SRD_B, 4)}, {s(S_T3)} offen')
    if opt('pf0', 0) == 2:
        k.wait_all(vm=True, lg=False)
srd_b()
I(f's_lshl_b32 {s(S_T3)}, {s(S_KSTR)}, 1')
I(f's_and_b32 {s(S_T4)}, {s(S_WAVE)}, 1')
I(f's_add_u32 {s(S_T3)}, {s(S_T3)}, {s(S_T4)}')
I(f's_lshl_b32 {s(S_T4)}, {s(S_PITCH)}, 2')
I(f's_mul_i32 {s(S_SOFF)}, {s(S_T3)}, {s(S_T4)}')
I(f's_lshl_b32 {s(S_T4)}, {s(S_PITCH)}, 7')
I(f'buffer_load_dword {v(T + 12)}, {v(PFL)}, {s(SRD_B, 4)}, {s(S_SOFF)} offen')
I(f's_add_u32 {s(S_SOFF)}, {s(S_SOFF)}, {s(S_T4)}')
I(f'buffer_load_dword {v(T + 13)}, {v(PFL)}, {s(SRD_B, 4)}, {s(S_SOFF)} offen')
for i in range(2, opt('pf1', 3)):
    I(f's_add_u32 {s(S_SOFF)}, {s(S_SOFF)}, {s(S_T4)}')
    I(f'buffer_load_dword {v(T + 12 + i)}, {v(PFL)}, {s(SRD_B, 4)}, {s(S_SOFF)} offen')
RT_U, RT_KS, RT_CQ, RT_A, RT_B, RT_K0, RT_SCR, RT_DST = 28, 29, 30, 31, 56, 57, 55, 54
I(f's_lshl_b32 {s(RT_U)}, {s(S_WG)}, 1')
I(f's_and_b32 {s(S_T3)}, {s(S_WAVE)}, 1')
I(f's_add_u32 {s(RT_U)}, {s(RT_U)}, {s(S_T3)}')
I(f's_mul_i32 {s(RT_SCR)}, {s(S_T3)}, {8 * RROW}')
I(f's_add_u32 {s(RT_SCR)}, {s(RT_SCR)}, {7 * SLOT}')
I(f's_mul_i32 {s(RT_KS)}, {s(RT_U)}, 13108')
I(f's_lshr_b32 {s(RT_KS)}, {s(RT_KS)}, 16')
I(f's_mul_i32 {s(RT_CQ)}, {s(RT_KS)}, 5')
I(f's_sub_u32 {s(RT_CQ)}, {s(RT_U)}, {s(RT_CQ)}')
assert all((u * 13108) >> 16 == u // 5 for u in range(512))
I(f's_cmp_lt_u32 {s(RT_KS)}, 20')
I(f's_cselect_b32 {s(SRD_RT)}, {s(P_WO)}, {s(P_W2)}')
I(f's_cselect_b32 {s(SRD_RT + 1)}, {s(P_WO + 1)}, {s(P_W2 + 1)}')
csel(SRD_RT + 2, 640 * 1280, 1728 * 1280)
I(f's_mov_b32 {s(SRD_RT + 3)}, 0x00020000')
csel(RT_A, 8 * 1280, 4 * 1280)
csel(RT_B, 4 * 1280, 16 * 1280)
I(f's_cselect_b32 {s(RT_K0)}, 0, 20')
I(f's_sub_u32 {s(RT_K0)}, {s(RT_KS)}, {s(RT_K0)}')
I(f's_mul_i32 {s(RT_K0)}, {s(RT_K0)}, {32 * 1280}')
I(f's_lshl_b32 {s(S_T3)}, {s(RT_CQ)}, 8')
I(f's_add_u32 {s(RT_K0)}, {s(RT_K0)}, {s(S_T3)}')
RTV, RTL = T + 8, T + 9
I(f'v_lshrrev_b32 {v(RTV)}, 4, {v(V_LANE)}')
I(f'v_mul_u32_u24 {v(RTV)}, 1280, {v(RTV)}')
I(f'v_and_b32 {v(T)}, 15, {v(V_LANE)}')
I(f'v_lshl_add_u32 {v(RTV)}, {v(T)}, 4, {v(RTV)}')
for t_ in range(8):
    if t_ == 4:
        I(f's_add_u32 {s(S_T3)}, {s(RT_K0)}, {s(RT_B)}')
    elif t_ == 0:
        I(f's_mov_b32 {s(S_T3)}, {s(RT_K0)}')
    else:
        I(f's_add_u32 {s(S_T3)}, {s(S_T3)}, {s(RT_A)}')
    I(f's_add_u32 m0, {s(RT_SCR)}, {1024 * t_}')
    I(f'buffer_load_dwordx4 {v(RTV)}, {s(SRD_RT, 4)}, {s(S_T3)} offen lds')
I(f's_mul_i32 {s(RT_DST)}, {s(RT_KS)}, 40960')
I(f's_lshl_b32 {s(S_T4)}, {s(RT_CQ)}, 13')
I(f's_add_u32 {s(RT_DST)}, {s(RT_DST)}, {s(S_T4)}')
I(f's_add_u32 {s(RT_DST)}, {s(RT_DST)}, {W_T}')
I(f's_cmp_lt_u32 {s(RT_KS)}, 74')
I(f's_cselect_b32 {s(RT_DST)}, {s(RT_DST)}, {OOB}')

k.label('L_common')
k.vmq = [(set(), 'unknown')]
k.lgq = []
I('s_nop 4')
I(f's_lshl_b32 {s(S_FOFF)}, {s(S_FB)}, {FS}')
if '--map84' in sys.argv:
    I(f's_lshr_b32 {s(S_M2)}, {s(S_T0)}, 1')
    I(f's_lshl_b32 {s(S_M2)}, {s(S_M2)}, 3')
    I(f's_and_b32 {s(S_T2)}, {s(S_T1)}, 7')
    I(f's_add_u32 {s(S_M2)}, {s(S_M2)}, {s(S_T2)}')
    I(f's_and_b32 {s(S_NT)}, {s(S_T0)}, 1')
    I(f's_lshl_b32 {s(S_NT)}, {s(S_NT)}, 2')
    I(f's_lshr_b32 {s(S_T2)}, {s(S_T1)}, 3')
    I(f's_add_u32 {s(S_NT)}, {s(S_NT)}, {s(S_T2)}')
elif opt('map', 0) in (1, 2):
    I(f's_lshl_b32 {s(S_M2)}, {s(S_T0)}, 2')
    I(f's_lshr_b32 {s(S_T2)}, {s(S_T1)}, 3')
    if opt('map', 0) == 2:
        I(f's_add_u32 {s(S_T2)}, {s(S_T2)}, {s(S_T1)}')
        I(f's_and_b32 {s(S_T2)}, {s(S_T2)}, 3')
    I(f's_add_u32 {s(S_M2)}, {s(S_M2)}, {s(S_T2)}')
    I(f's_and_b32 {s(S_NT)}, {s(S_T1)}, 7')
else:
    I(f's_lshl_b32 {s(S_M2)}, {s(S_T0)}, 2')
    I(f's_and_b32 {s(S_T2)}, {s(S_T1)}, 3')
    I(f's_add_u32 {s(S_M2)}, {s(S_M2)}, {s(S_T2)}')
    I(f's_lshr_b32 {s(S_NT)}, {s(S_T1)}, 2')
I(f's_mul_i32 {s(S_START)}, {s(S_IDX)}, 7')
I(f's_min_u32 {s(S_START)}, {s(S_START)}, 47')
I(f's_lshl_b32 {s(S_T3)}, {s(S_KSTR)}, 2')
I(f's_add_u32 {s(S_T3)}, {s(S_T3)}, {s(S_WAVE)}')
I(f's_add_u32 {s(S_T3)}, {s(S_T3)}, 64')
I(f's_lshl_b32 {s(S_T4)}, {s(S_PITCH)}, 2')
I(f's_mul_i32 {s(S_T3)}, {s(S_T3)}, {s(S_T4)}')
I(f'v_add_u32 {v(PFL)}, {s(S_T3)}, {v(PFL)}')
I(f's_lshl_b32 {s(S_KSTR)}, {s(S_PITCH)}, 5')
I(f'v_lshlrev_b32 {v(V_L16)}, 4, {v(V_LANE)}')
I(f'v_add_u32 {v(V_L16B)}, 4096, {v(V_L16)}')
srd(SRD_B1, P_B1, 1728 * 2)
I(f'v_lshlrev_b32 {v(T + 7)}, 3, {v(V_LANE)}')
I(f's_lshl_b32 {s(S_T5)}, {s(S_START)}, 6')
I(f'buffer_load_dwordx2 {v(BIAS, 2)}, {v(T + 7)}, {s(SRD_B1, 4)}, {s(S_T5)} offen', tag='pf')
srd(SRD_WS, P_WS, WS_REC)
srd(SRD_OUT, P_OUT, 2048 * 1280)
srd(SRD_B2, P_B2, 640 * 2)
srd_b()
c, hf, sg = T, T + 1, T + 2
I(f'v_and_b32 {v(c)}, 31, {v(V_LANE)}')
I(f'v_lshrrev_b32 {v(hf)}, 5, {v(V_LANE)}')
S_CB = 34
I(f's_cmp_eq_u32 {s(S_TYPE)}, 0')
if '--attc' in sys.argv:
    I(f's_cmp_eq_u32 {s(S_TYPE)}, 5')
I(f's_cselect_b32 {s(S_T3)}, 29, 27')
I(f's_cselect_b32 {s(S_T4)}, 1120, 0')
I(f's_mul_i32 {s(S_CB)}, {s(S_IDX)}, 160')
I(f's_lshl_b32 {s(S_T5)}, {s(S_START)}, 6')
I(f's_cmp_eq_u32 {s(S_TYPE)}, {5 if "--attc" in sys.argv else 0}')
I(f's_cselect_b32 {s(S_CB)}, {s(S_CB)}, {s(S_T5)}')
I(f'v_min_u32 {v(c)}, {s(S_T3)}, {v(c)}')
I(f'v_mul_u32_u24 {v(sg)}, 205, {v(c)}')
I(f'v_lshrrev_b32 {v(sg)}, 11, {v(sg)}')
I(f'v_mul_u32_u24 {v(sg)}, {s(S_T4)}, {v(sg)}')
I(f'v_lshl_add_u32 {v(sg)}, {v(c)}, 4, {v(sg)}')
I(f'v_add_u32 {v(sg)}, {s(S_CB)}, {v(sg)}')
I(f's_lshl_b32 {s(S_T3)}, {s(S_PITCH)}, 2')
I(f'v_mad_u32_u24 {v(V_DMA)}, {v(hf)}, {s(S_T3)}, {v(sg)}')
I(f's_sub_u32 {s(S_T3)}, {s(S_PITCH)}, {RROW}')
for j in range(1, 4):
    I(f'v_add_u32 {v(V_DMA + j)}, {s(S_T3)}, {v(V_DMA + j - 1)}')
assert all((c_ * 205) >> 11 == c_ // 10 for c_ in range(32))
NPRE = opt('npre', 4)
I(f's_mul_i32 {s(S_M0B)}, {s(S_WAVE)}, {4 * RROW}')
I(f's_lshl_b32 {s(S_T3)}, {s(S_PITCH)}, 3')
I(f's_mul_i32 {s(S_SOFF)}, {s(S_WAVE)}, {s(S_T3)}')
I(f's_mul_i32 {s(S_T3)}, {s(S_KSTR)}, {NPRE}')
I(f's_add_u32 {s(S_SOFF)}, {s(S_SOFF)}, {s(S_T3)}')
if '--noD' in sys.argv:
    I(f's_mov_b32 {s(S_SOFF)}, {OOB // 2}')
I(f'v_lshrrev_b32 {v(LP)}, 2, {v(V_LANE)}')
I(f'v_mul_u32_u24 {v(V_TR0)}, {RROW}, {v(LP)}')
I(f'v_and_b32 {v(T)}, 3, {v(V_LANE)}')
I(f'v_lshl_add_u32 {v(V_TR0)}, {v(T)}, 3, {v(V_TR0)}')
I(f'v_add_u32 {v(V_TR1)}, {4 * SLOT}, {v(V_TR0)}')
I(f's_mul_i32 {s(S_HB)}, {s(S_WAVE)}, 3')
I(f's_min_u32 {s(S_HB)}, {s(S_HB)}, 7')
I(f's_add_u32 {s(S_HB)}, {s(S_HB)}, 5')
I(f's_lshl_b32 {s(S_T3)}, {s(S_HB)}, 5')
I(f'v_add_u32 {v(V_TRH0)}, {s(S_T3)}, {v(V_TR0)}')
I(f'v_add_u32 {v(V_TRH1)}, {s(S_T3)}, {v(V_TR1)}')
I(f'v_add_u32 {v(V_X)}, {HALO}, {v(V_L16)}')
V_AO = 250
I(f'v_bfe_u32 {v(T)}, {v(V_LANE)}, 2, 2')
I(f'v_lshlrev_b32 {v(V_AO)}, 8, {v(T)}')
I(f'v_lshrrev_b32 {v(T)}, 4, {v(V_LANE)}')
I(f'v_lshl_add_u32 {v(V_AO)}, {v(T)}, 6, {v(V_AO)}')
I(f'v_and_b32 {v(T)}, 3, {v(V_LANE)}')
I(f'v_lshl_add_u32 {v(V_AO)}, {v(T)}, 4, {v(V_AO)}')
I(f'v_add_u32 {v(V_AO + 1)}, 4096, {v(V_AO)}')
I(f's_lshl_b32 {s(S_MB0)}, {s(S_MT)}, 3')
I(f's_lshl_b32 {s(S_T3)}, {s(S_WAVE)}, 1')
I(f's_add_u32 {s(S_MB0)}, {s(S_MB0)}, {s(S_T3)}')
I(f's_mul_i32 {s(S_AO)}, {s(S_MB0)}, 20480')
if '--noA' in sys.argv:
    I(f's_mov_b32 {s(S_AO)}, {OOB // 2}')
for q in range(1, 10):
    I(f's_add_u32 {s(S_AO + q)}, {s(S_AO)}, {XN_T + 4096 * q}')
I(f'v_and_b32 {v(T)}, 15, {v(V_LANE)}')
I(f's_lshl_b32 {s(S_T3)}, {s(S_MT)}, {4 + FS}')
I(f's_add_u32 {s(S_T3)}, {s(S_T3)}, {LNF}')
I(f'v_lshl_add_u32 {v(V_PA)}, {v(T)}, {FS}, {s(S_T3)}')
I(f's_cmp_eq_u32 {s(S_TYPE)}, 0')
I(f's_cselect_b32 {s(S_T3)}, {2 << FS}, 0')
I(f's_cmp_eq_u32 {s(S_MT)}, 0')
I(f's_cselect_b32 {s(S_T3)}, 0, {s(S_T3)}')
I(f'v_subrev_u32 {v(T + 1)}, {s(S_T3)}, {v(V_PA)}')
I(f'v_lshrrev_b32 {v(T)}, 1, {v(V_LANE)}')
I(f'v_cmp_eq_u32 vcc, 8, {v(T)}')
I(f'v_cndmask_b32 {v(V_PA)}, {v(V_PA)}, {v(T + 1)}, vcc')
I(f's_mul_i32 {s(S_T3)}, {s(S_WAVE)}, 14')
I(f's_add_u32 {s(S_T4)}, {s(S_T3)}, 7')
I(f's_min_u32 {s(S_T4)}, {s(S_T4)}, 47')
I(f's_mul_i32 {s(S_T5)}, {s(S_NT)}, 5120')
I(f's_add_u32 {s(S_T5)}, {s(S_T5)}, {W_T + 20 * 40960}')
I(f's_mul_i32 {s(S_W2A)}, {s(S_T3)}, 40960')
I(f's_add_u32 {s(S_W2A)}, {s(S_W2A)}, {s(S_T5)}')
I(f's_mul_i32 {s(S_W2B)}, {s(S_T4)}, 40960')
I(f's_add_u32 {s(S_W2B)}, {s(S_W2B)}, {s(S_T5)}')
I(f's_lshr_b32 {s(S_T3)}, {s(S_M2)}, 1')
I(f's_lshl_b32 {s(S_T3)}, {s(S_T3)}, {4 + FS}')
I(f's_lshl_b32 {s(S_T4)}, {s(S_WAVE)}, {1 + FS}')
I(f's_add_u32 {s(S_T3)}, {s(S_T3)}, {s(S_T4)}')
I(f's_add_u32 {s(S_T3)}, {s(S_T3)}, {P1H + (8 << FS)}')
I(f'v_and_b32 {v(T)}, 1, {v(V_LANE)}')
I(f'v_lshl_add_u32 {v(V_PF)}, {v(T)}, {FS}, {s(S_T3)}')

I(f's_cmp_lt_u32 {s(S_WAVE)}, 2')
I('s_cbranch_scc1 L_pro_join')

VW_M0, VW_SO = 50, 52
I(f's_and_b32 {s(S_T3)}, {s(S_WAVE)}, 1')
I(f's_mul_i32 {s(VW_M0)}, {s(S_T3)}, {8 * RROW}')
I(f's_add_u32 {s(VW_M0 + 1)}, {s(VW_M0)}, {4 * RROW}')
I(f's_lshl_b32 {s(S_T4)}, {s(S_PITCH)}, 4')
I(f's_mul_i32 {s(VW_SO)}, {s(S_T3)}, {s(S_T4)}')
I(f's_lshl_b32 {s(S_T4)}, {s(S_PITCH)}, 3')
I(f's_add_u32 {s(VW_SO + 1)}, {s(VW_SO)}, {s(S_T4)}')
I(f'v_lshlrev_b32 {v(RTL)}, 8, {v(LP)}')
I(f'v_and_b32 {v(T)}, 3, {v(V_LANE)}')
I(f'v_lshl_add_u32 {v(RTL)}, {v(T)}, 3, {v(RTL)}')
I(f'v_add_u32 {v(RTL)}, {s(RT_SCR)}, {v(RTL)}')
stamp(2, 2)
k.wait_vm_tag('pf')
GATE = opt('gate', 1)
if GATE:
    I(f'v_mov_b32 {v(T + 1)}, {CNT}')
    k.label('L_gate')
    I(f'ds_read_b32 {v(T)}, {v(T + 1)} offset:{0 if GATE == 1 else 8}')
    I(f'v_readfirstlane_b32 {s(S_T4)}, {v(T)}')
    I(f's_cmp_ge_u32 {s(S_T4)}, 2')
    I('s_cbranch_scc0 L_gate')
stamp(3, 2)
for sl in range(NPRE):
    for h in range(2):
        I(f's_add_u32 m0, {s(VW_M0 + h)}, {sl * SLOT}')
        for j in range(4):
            dma1(j, VW_SO + h, ('ring', sl))
        I(f's_add_u32 {s(VW_SO + h)}, {s(VW_SO + h)}, {s(S_KSTR)}')
    if sl >= 1:
        k.wait_vm_tag(('ring', sl - 1))
    if sl == 1:
        stamp(4, 2)
        RF = ACC
        for nb in range(8):
            I(f'ds_read_b64_tr_b16 {v(RF + 4 * nb, 2)}, {v(RTL)} offset:{32 * nb}')
            I(f'ds_read_b64_tr_b16 {v(RF + 4 * nb + 2, 2)}, {v(RTL)} offset:{32 * nb + 4096}')
RTLATE = 0


def rt_stores():
    for nb in range(8):
        I(f'buffer_store_dwordx4 {v(RF + 4 * nb, 4)}, {v(V_L16 if nb < 4 else V_L16B)}, {s(SRD_WS, 4)}, {s(RT_DST)} offen offset:{1024 * (nb & 3)} sc1', tag='rts')


if not RTLATE:
    rt_stores()
k.wait_vm_tag(('ring', NPRE - 1))
stamp(5, 2)
stamp(1)
k.wait_all(vm=False, lg=True)

k.label('L_pro_join')
k.vmq = [(regs_of(v(BIAS, 2)), 'pf')]
k.lgq = []
I('s_nop 4')
I(f's_mul_i32 {s(S_WOB)}, {s(S_WAVE)}, 40960')
I(f's_mul_i32 {s(S_T3)}, {s(S_NT)}, 5120')
I(f's_add_u32 {s(S_WOB)}, {s(S_WOB)}, {s(S_T3)}')
I(f's_add_u32 {s(S_WOB)}, {s(S_WOB)}, {W_T}')
I(f's_mul_i32 {s(S_WOM)}, {s(S_WAVE)}, {5 * 1024}')
if '--noW' in sys.argv:
    for r_ in (S_W2A, S_W2B, S_WOB):
        I(f's_mov_b32 {s(r_)}, {OOB // 2}')
I(f's_cmp_eq_u32 {s(S_WAVE)}, 3')
I(f's_cselect_b32 {s(S_LAST)}, {OOB}, 0')
I(f's_cmp_eq_u32 {s(S_TYPE)}, 1')
I('s_cbranch_scc1 L_ffn')
st_join = k.state()


def ln_wait():
    lab = k.newlabel('L_lnw')
    I(f's_cmp_eq_u32 {s(S_WAVE)}, 0')
    I(f's_cbranch_scc0 {lab}')
    st_ = k.state()
    stamp(6, 2)
    poll(V_PA, 'ln')
    k.label(lab)
    k.set_state(st_)
    k.wait_all(vm=False, lg=True)
    stamp(7, 2)
    I('s_barrier')
    stamp(8, 2)


def wt_flag():
    I(f's_lshr_b32 {s(S_T3)}, {s(S_WG)}, 2')
    I(f's_lshl_b32 {s(S_T3)}, {s(S_T3)}, {WS_}')
    I(f's_and_b32 {s(S_T4)}, {s(S_WG)}, 3')
    I(f's_lshl_b32 {s(S_T4)}, {s(S_T4)}, 2')
    I(f's_add_u32 {s(S_T3)}, {s(S_T3)}, {s(S_T4)}')
    I(f's_add_u32 {s(S_T3)}, {s(S_T3)}, {WTF}')
    I(f's_cmp_eq_u32 {s(S_WAVE)}, 1')
    I(f's_cselect_b32 {s(S_T3)}, {s(S_T3)}, {OOB}')
    I(f'v_mov_b32 {v(T)}, {s(S_TAG)}')
    I(f'v_lshlrev_b32 {v(T + 1)}, 24, {v(V_LANE)}')
    I(f'buffer_store_dword {v(T)}, {v(T + 1)}, {s(SRD_WS, 4)}, {s(S_T3)} offen sc1')


def tag_fetch():
    I(f'v_mov_b32 {v(T + 1)}, {CNT}')
    I(f'ds_read_b32 {v(T)}, {v(T + 1)} offset:4')
    I(f'v_readfirstlane_b32 {s(S_TAG)}, {v(T)}')


AWN = 6


def areg_att(ks, rb):
    return a((28 + (ks % AWN) * 2 + rb) * 4, 4)


def areg_ffn(ks, rb):
    return a((ks * 2 + rb) * 4, 4)


def load_A(areg, ks, rb):
    I(f'buffer_load_dwordx4 {areg(ks, rb)}, {v(V_AO)}, {s(SRD_WS, 4)}, {s(S_AO + rb * 5 + ks // 4)} offen offset:{(ks & 3) * 1024} sc1')


LAK = opt('lak', 4)
BAR1 = opt('bar1', 0)


def pre_loads():
    for ks in range(LAK):
        if ks >= NPRE:
            I(f's_add_u32 m0, {s(S_M0B)}, {ks * SLOT}')
            for j in range(4):
                dma1(j, S_SOFF, ('dma', ks))
            I(f's_add_u32 {s(S_SOFF)}, {s(S_SOFF)}, {s(S_KSTR)}')
        for rb in range(2):
            load_A(areg_att, ks, rb)


W2ORDER = list(range(40, 64)) + list(range(28))
NW2E = len(W2ORDER)
W2ALL = opt('w2all', 1)
NW2X = 69 if W2ALL else NW2E
WO_EARLY, WO_LATE = (0, 1, 2), (3, 4)
YSTEP = [(0, p) for p in range(4)] + [(1, p) for p in range(4)] + [(0, p) for p in range(4, 7)] + [(1, p) for p in range(4, 7)]


def w2reg(st, nb):
    f = st * 5 + nb
    if W2ALL:
        if f < NW2E:
            return a(4 * W2ORDER[f], 4)
        if f < 64:
            return a(4 * (28 + f - NW2E), 4)
        return v(W2V + 4 * (f - 64), 4) if f < 69 else a(4 * W2ORDER[0], 4)
    return a(4 * W2ORDER[f % NW2E], 4)


def w2load(f):
    st, nb = divmod(f, 5)
    ab, p = YSTEP[st]
    sb = S_W2B if ab else S_W2A
    if (ab, p) == (0, 5) and nb == 0:
        I(f's_add_u32 {s(sb)}, {s(sb)}, {s(S_LAST)}')
    I(f'buffer_load_dwordx4 {w2reg(st, nb)}, {v(V_L16 if nb < 4 else V_L16B)}, {s(SRD_WS, 4)}, {s(sb)} offen offset:{(nb & 3) * 1024} sc1')
    if nb == 4:
        I(f's_add_u32 {s(sb)}, {s(sb)}, 40960')


def wodma(i, nb):
    if nb == 0:
        I(f's_add_u32 {s(S_T5)}, {s(S_WOB)}, {i * 4 * 40960}')
    if nb == 0 or nb == 4:
        I(f's_add_u32 m0, {s(S_WOM)}, {LDS_WO + (i * 20 + (4 if nb == 4 else 0)) * 1024}')
    I(f'buffer_load_dwordx4 {v(V_L16 if nb < 4 else V_L16B)}, {s(SRD_WS, 4)}, {s(S_T5)} offen offset:{(nb & 3) * 1024} sc1 lds')


def cost(e):
    if e[0].startswith(('buffer_', 'global_', 'v_pk_') + TRANS):
        return 8
    return 4


def mainloop(steps, areg, aloads, first_c_zero, w2plan, dma_pre, extra_fill, at_sync):
    LA = 7
    halo = any(it[1] >= 100 for it in steps[0])
    items = [(t_, pos) + it for t_ in range(20) for pos, it in enumerate(steps[t_])]
    N = len(items)
    aux = [[] for _ in range(20)]
    for t_ in range(20):
        kn = t_ + LAK
        al = [lambda kk=kk, rb=rb: load_A(areg, kk, rb) for kk in aloads[t_] for rb in range(2)]
        dm = []
        if NPRE <= kn < 20:
            for j in range(4):
                def f(j=j, kn=kn):
                    if j == 0:
                        dma_pre(kn)
                        I(f's_add_u32 m0, {s(S_M0B)}, {(kn % NSLOT) * SLOT}')
                    dma1(j, S_SOFF, ('dma', kn))
                    if j == 3:
                        I(f's_add_u32 {s(S_SOFF)}, {s(S_SOFF)}, {s(S_KSTR)}')
                dm.append(f)
        h_ = len(al) // 2
        aux[t_] = al[:h_] + dm[:2] + al[h_:] + dm[2:]
    WTK = opt('wtka', 10) if halo else opt('wtkf', 14)
    assert WTK % 2 == 0
    aux[WTK - 3].append(lambda: chk_issue(V_PA, 4))
    WFK = opt('wfk', 4) if RTLATE else 2
    aux[WFK].insert(0, wt_flag)
    if opt('pf1', 3) < 4:
        aux[0].append(lambda: I(f'buffer_load_dword {v(T + 3)}, {v(PFL)}, {s(SRD_B, 4)}, 0 offen'))

    def pf2b():
        I(f's_lshl_b32 {s(S_T3)}, {s(S_PITCH)}, 8')
        I(f'buffer_load_dword {v(T + 2)}, {v(PFL)}, {s(SRD_B, 4)}, {s(S_T3)} offen')
    if opt('pf1', 3) < 5:
        aux[opt('pf2k', 1)].append(pf2b)
    f = 0
    for t_ in range(WTK, 20):
        for _ in range(w2plan(t_, f)):
            if f < NW2E:
                aux[t_].append(lambda f=f: w2load(f))
                f += 1
    w2done = f
    fill = []
    for t_ in range(20):
        mem = [e for fn in aux[t_] for e in k.record(fn)]
        oth = extra_fill(t_)
        mix, i, j = [], 0, 0
        while i < len(mem) or j < len(oth):
            if j >= len(oth) or (i < len(mem) and i * len(oth) <= j * len(mem)):
                mix.append(mem[i])
                i += 1
            else:
                mix.append(oth[j])
                j += 1
        fill.append(mix)

    def rd(n):
        t_, pos, ks, blk, off = items[n]
        sl = t_ % NSLOT
        w = WIN + 4 * (n % 8)
        if blk < 100:
            base = V_TR0 if sl < 4 else V_TR1
        else:
            base = V_TRH0 if sl < 4 else V_TRH1
        o = (sl % 4) * SLOT + off
        if '--halfrd' in sys.argv and n >= 8 and (n // 8) % 2 == 1:
            return
        I(f'ds_read_b64_tr_b16 {v(w, 2)}, {v(base)} offset:{o}')
        I(f'ds_read_b64_tr_b16 {v(w + 2, 2)}, {v(base)} offset:{o + 512}')

    def sync(t_):
        tn = t_ if BAR1 else t_ + 1
        if tn >= NPRE:
            assert ('dma', tn) in k.seen_tags
            k.wait_vm_tag(('dma', tn))
        if t_ == WFK:
            k.wait_vm_tag('rts')
        if t_ == WTK:
            lab = k.newlabel('L_wtw')
            k._need(regs_of(v(P4, 4)))
            I(f's_cmp_eq_u32 {s(S_WAVE)}, 0')
            I(f's_cbranch_scc0 {lab}')
            poll(V_PA, 'wt', 4, preissued=True, sleep=8)
            k.label(lab)
        at_sync(t_, 0)
        I('s_barrier')
        at_sync(t_, 1)

    def hxread(ks):
        I(f'ds_read_b128 {v(HX + 4 * (ks & 1), 4)}, {v(V_X)} offset:{ks * 1024}')

    k.seen_tags = {('dma', i) for i in range(LAK)}
    if halo:
        hxread(0)
        for ks in range(19):
            fill[ks] = fill[ks][:2] + k.record(lambda: hxread(ks + 1)) + fill[ks][2:]
    for n in range(LA):
        rd(n)
    I(f's_cmp_eq_u32 {s(S_WAVE)}, 0')
    csel(S_T3, WTF, OOB)
    I(f'v_lshl_add_u32 {v(V_PA)}, {v(V_LANE)}, {WS_}, {s(S_T3)}')
    waited = -1
    prev_halo = False
    seen_blk = set()
    for n in range(N):
        t_, pos, ks, blk, off = items[n]
        NF = len(steps[t_])
        w = WIN + 4 * (n % 8)
        if pos == 0:
            q = list(fill[t_])
            ngaps = sum(1 for it in steps[t_] if it[1] < 100)
            tot = sum(cost(e) for e in q) + 4 * (NF // 2 + 1)
            budget = max(8, -(-tot // ngaps))
            budget2 = 0
            if budget > 12:
                budget = -(-(tot + 8 * ngaps) // (2 * ngaps))
                budget2 = budget - 8
            if t_ in (0, 1, 2, 4, 8, 12, 16, 18):
                stamp(1 + (0, 1, 2, 4, 8, 12, 16, 18).index(t_), 1)
        used = 8 if prev_halo else 0
        if n + LA < N and items[n + LA][1] == 0 and items[n + LA][0] >= 2 and (BAR1 or items[n + LA][0] % 2 == 0):
            sync(items[n + LA][0])
            used += 8
        if waited < n:
            need = regs_of(v(w, 4))
            waited = n
            for m in (n + 1, n + 2):
                if m < N and (m == n + 1 or items[m - 1][3] >= 100):
                    need |= regs_of(v(WIN + 4 * (m % 8), 4))
                    waited = m
            for m in range(n, waited + 1):
                kk, bb = items[m][2], items[m][3]
                need |= (regs_of(areg(kk, 0)) | regs_of(areg(kk, 1))) if bb < 100 else regs_of(v(HX + 4 * (kk & 1), 4))
            k._need(need)
            used += 4
        while q and (used + cost(q[0]) <= budget + 2 or pos == NF - 1):
            used += cost(q[0])
            k.play(q.pop(0))
        first = blk not in seen_blk
        seen_blk.add(blk)
        if blk < 100:
            for ri in range(2):
                rb = ri ^ (blk & 1) if '--snake' in sys.argv else ri
                d = ACC + (blk * 2 + rb) * 4
                c_ = '0' if (first and first_c_zero) else v(d, 4)
                I(f'v_mfma_f32_16x16x32_bf16 {v(d, 4)}, {v(w, 4)}, {areg(ks, rb)}, {c_}')
                if ri == 0:
                    u2 = 0
                    if n + LA < N:
                        rd(n + LA)
                    else:
                        u2 = -8
                    while q and u2 + cost(q[0]) <= budget2 + 2:
                        u2 += cost(q[0])
                        k.play(q.pop(0))
        else:
            d = HACC + (blk - 100) * 4
            c_ = '0' if first else v(d, 4)
            I(f'v_mfma_f32_16x16x32_bf16 {v(d, 4)}, {v(w, 4)}, {v(HX + 4 * (ks & 1), 4)}, {c_}')
            if n + LA < N:
                rd(n + LA)
        prev_halo = blk >= 100
    return w2done


YACC = 16
SACC = 96
HW = 116
HWN = 5
XIN = 196
B2V = 208
T2 = 218
VXG = 2
VRW = (5, 8, 9)
S_HO = 24
S_EARLY = 19
V_HE = V_TR0


def h_scalars():
    I(f's_mul_i32 {s(S_T3)}, {s(S_M2)}, {4 * ACT_MB}')
    I(f's_add_u32 {s(S_T3)}, {s(S_T3)}, {ACT_T + 20 * 1024}')
    I(f's_mul_i32 {s(S_T4)}, {s(S_WAVE)}, 14')
    I(f's_add_u32 {s(S_T5)}, {s(S_T4)}, 7')
    I(f's_min_u32 {s(S_T5)}, {s(S_T5)}, 47')
    for ab, r in ((0, S_T4), (1, S_T5)):
        I(f's_lshl_b32 {s(r)}, {s(r)}, 10')
        I(f's_add_u32 {s(r)}, {s(S_T3)}, {s(r)}')
    for i in range(4):
        I(f's_add_u32 {s(S_T3)}, {s(S_WAVE)}, {1 + i}')
        I(f's_and_b32 {s(S_T3)}, {s(S_T3)}, 3')
        I(f's_mul_i32 {s(S_T3)}, {s(S_T3)}, {ACT_MB}')
        I(f's_add_u32 {s(S_HO + i)}, {s(S_T4)}, {s(S_T3)}')
        I(f's_add_u32 {s(S_HO + 4 + i)}, {s(S_T5)}, {s(S_T3)}')


def hreg(st, mb):
    if W2ALL:
        return v(HW + 16 * (st % HWN) + 4 * mb, 4)
    if st < 3:
        return a((28 + 4 * st + mb) * 4, 4)
    if st == 3:
        return v(W2V + 4 * mb, 4)
    return v(HW + 16 * ((st - 4) % HWN) + 4 * mb, 4)


def hload(st, mb, early=False):
    ab, p = YSTEP[st]
    so = S_HO + 4 * ab + mb
    if (ab, p) == (0, 5):
        I(f's_add_u32 {s(so)}, {s(so)}, {s(S_LAST)}')
    va = V_HE if early else (V_L16 if p < 4 else V_L16B)
    I(f'buffer_load_dwordx4 {hreg(st, mb)}, {v(va)}, {s(SRD_WS, 4)}, {s(so)} offen offset:{(p & 3) * 1024} sc1')


def early_eval():
    chk_eval()
    I(f's_cmp_eq_u64 vcc, 0')
    I(f's_cselect_b32 {s(S_EARLY)}, 1, 0')
    I(f's_cselect_b32 {s(S_T0)}, 0, {OOB}')
    I(f'v_add_u32 {v(V_HE)}, {s(S_T0)}, {v(V_L16)}')


def p1_flag():
    k.wait_all(vm=False, lg=True)
    I('s_barrier')
    lab = k.newlabel('L_np')
    I(f's_cmp_eq_u32 {s(S_WAVE)}, 0')
    I(f's_cbranch_scc0 {lab}')
    flag_store(P1F, S_FOFF, T2)
    k.label(lab)


I(f's_lshl_b32 {s(S_T3)}, {s(S_MT)}, 3')
I(f's_sub_u32 {s(S_T3)}, {s(S_T3)}, 1')
I(f's_mul_i32 {s(S_T3)}, {s(S_T3)}, 20480')
I(f's_mul_i32 {s(S_T4)}, {s(S_WAVE)}, 5120')
I(f's_add_u32 {s(S_T3)}, {s(S_T3)}, {s(S_T4)}')
I(f's_cmp_eq_u32 {s(S_MT)}, 0')
I(f's_cselect_b32 {s(S_T5)}, {OOB}, {s(S_T3)}')
I(f'v_add_u32 {v(T + 2)}, {s(S_T4)}, {v(V_X)}')
SA, SH, VA, VB, VO, K2M0, K2M1 = T + 28, T + 29, T + 30, T + 31, T + 32, T + 33, T + 34
tm, tg = T + 4, T + 5
prow(tm, tg, 15)
I(f'v_mul_u32_u24 {v(SH)}, {RS}, {v(tm)}')
I(f'v_lshrrev_b32 {v(tg)}, 4, {v(V_LANE)}')
I(f'v_lshl_add_u32 {v(SH)}, {v(tg)}, 3, {v(SH)}')
I(f's_mul_i32 {s(S_T3)}, {s(S_WAVE)}, {32 * RS}')
I(f's_add_u32 {s(S_T3)}, {s(S_T3)}, {STG + 16 * RS}')
I(f'v_add_u32 {v(SA)}, {s(S_T3)}, {v(SH)}')
I(f's_lshl_b32 {s(S_T3)}, {s(S_HB)}, 5')
I(f's_add_u32 {s(S_T3)}, {s(S_T3)}, {STG}')
I(f'v_add_u32 {v(SH)}, {s(S_T3)}, {v(SH)}')
I(f's_lshr_b32 {s(S_T3)}, {s(S_WAVE)}, 1')
I(f's_mul_i32 {s(S_T3)}, {s(S_T3)}, 80')
I(f's_and_b32 {s(S_T0)}, {s(S_WAVE)}, 1')
I(f's_mul_i32 {s(S_T0)}, {s(S_T0)}, {64 * RS}')
I(f's_add_u32 {s(S_T3)}, {s(S_T3)}, {s(S_T0)}')
I(f's_add_u32 {s(S_T3)}, {s(S_T3)}, {STG}')
prow(tm, tg, 63)
I(f'v_mul_u32_u24 {v(VA)}, {RS}, {v(tm)}')
I(f'v_add_u32 {v(VA)}, {s(S_T3)}, {v(VA)}')
I(f'v_and_b32 {v(VB)}, 0x30, {v(V_LANE)}')
I(f'v_bfe_u32 {v(tg)}, {v(V_LANE)}, 1, 1')
I(f'v_lshl_add_u32 {v(VB)}, {v(tg)}, 3, {v(VB)}')
I(f'v_and_b32 {v(tg)}, 1, {v(V_LANE)}')
I(f'v_add_u32 {v(VB)}, {v(VB)}, {v(tg)}')
I(f'v_bfe_u32 {v(tg)}, {v(V_LANE)}, 2, 2')
I(f'v_lshl_add_u32 {v(VB)}, {v(tg)}, 1, {v(VB)}')
I(f'v_mul_u32_u24 {v(VB)}, {RS}, {v(VB)}')
I(f'v_add_u32 {v(VB)}, {s(S_T3)}, {v(VB)}')
I(f'v_lshrrev_b32 {v(tg)}, 4, {v(V_LANE)}')
I(f'v_mul_u32_u24 {v(VO)}, {ACT_MB}, {v(tg)}')
I(f'v_and_b32 {v(tg)}, 15, {v(V_LANE)}')
I(f'v_lshl_add_u32 {v(VO)}, {v(tg)}, 4, {v(VO)}')
I(f'v_and_b32 {v(tg)}, 3, {v(V_LANE)}')
I(f'v_mov_b32 {v(tm)}, 0xffff')
I(f'v_cmp_le_u32 vcc, 1, {v(tg)}')
I(f'v_cndmask_b32 {v(K2M0)}, {v(tm)}, -1, vcc')
I(f'v_cmp_le_u32 vcc, 2, {v(tg)}')
I(f'v_cndmask_b32 {v(K2M1)}, 0, {v(tm)}, vcc')
I(f'v_cmp_le_u32 vcc, 3, {v(tg)}')
I(f'v_cndmask_b32 {v(K2M1)}, {v(K2M1)}, -1, vcc')
S_OB = 35
I(f's_lshl_b32 {s(S_OB)}, {s(S_MT)}, 1')
I(f's_and_b32 {s(S_T0)}, {s(S_WAVE)}, 1')
I(f's_add_u32 {s(S_OB)}, {s(S_OB)}, {s(S_T0)}')
I(f's_mul_i32 {s(S_OB)}, {s(S_OB)}, {4 * ACT_MB}')
I(f's_add_u32 {s(S_OB)}, {s(S_OB)}, {ACT_T}')
I(f's_mul_i32 {s(S_T3)}, {s(S_IDX)}, 2560')
I(f's_add_u32 {s(S_OB)}, {s(S_OB)}, {s(S_T3)}')
I(f's_lshr_b32 {s(S_T3)}, {s(S_WAVE)}, 1')
I(f's_mul_i32 {s(S_T3)}, {s(S_T3)}, 1280')
I(f's_add_u32 {s(S_OB)}, {s(S_OB)}, {s(S_T3)}')
I(f's_mov_b32 {s(S_T2)}, {s(S_T5)}')
h_scalars()
ln_wait()
stamp(2)
for i in range(5):
    I(f'buffer_load_dwordx4 {v(T + 8 + 4 * i, 4)}, {v(V_AO if i < 4 else V_AO + 1)}, {s(SRD_WS, 4)}, {s(S_T2)} offen offset:{(i & 3) * 1024} sc1')
pre_loads()
if RTLATE:
    rt_stores()
tag_fetch()
for i in range(5):
    I(f'ds_write_b128 {v(T + 2)}, {v(T + 8 + 4 * i, 4)} offset:{i * 1024}')
k.wait_all(vm=False, lg=True)
I('s_barrier')
stamp(3)
att_order = [0, 1, 2, 3, 4, 100, 5, 6, 7, 8, 9, 101, 10, 11, 12, 13, 102, 14]
w2done = mainloop([[(ks, b, 32 * (b % 100)) for b in att_order] for ks in range(20)], areg_att,
                  [[ks + LAK] if ks + LAK < 20 else [] for ks in range(20)], True,
                  lambda t_, f: opt('ra0', 3) if t_ < 20 - LAK else opt('ra1', 8), lambda kn: None,
                  lambda t_: [], lambda t_, ph: None)
stamp(4)
stamp(1, 4)
w2rest = [lambda f=f: w2load(f) for f in range(w2done, NW2X)]
PK = T + 8
n = 0
for blk in att_order:
    for rb in range(2 if blk < 100 else 1):
        d = ACC + (blk * 2 + rb) * 4 if blk < 100 else HACC + 4 * (blk - 100)
        p = PK + 2 * (n % 4)
        n += 1
        I(f'v_cvt_pk_bf16_f32 {v(p)}, {v(d)}, {v(d + 1)}')
        I(f'v_cvt_pk_bf16_f32 {v(p + 1)}, {v(d + 2)}, {v(d + 3)}')
        if blk < 100:
            I(f'ds_write_b64 {v(SA)}, {v(p, 2)} offset:{32 * blk + rb * 16 * RS}')
        else:
            I(f'ds_write_b64 {v(SH)}, {v(p, 2)} offset:{32 * (blk - 100)}')
        if w2rest and n % 2 == 0:
            w2rest.pop(0)()
M1, M2, M3, INV1, INV01, INV02, INV03, SC_HI, SC_SCALE, SC_L2E = 36, 38, 40, 42, 44, 46, 48, 50, 52, 54
for reg, pat in ((M1, 0xeeeeeeee), (M2, 0xcccccccc), (M3, 0x88888888)):
    I(f's_mov_b32 {s(reg)}, {hex(pat)}')
    I(f's_mov_b32 {s(reg + 1)}, {hex(pat)}')
stamp(2, 4)
k.wait_all(vm=False, lg=True)
I('s_barrier')
stamp(3, 4)
w2rest += [lambda i=i, nb=nb: wodma(i, nb) for i in WO_EARLY for nb in range(5)]
Q, Kr, Vr = 16, 36, 96
for i in range(5):
    I(f'ds_read_b128 {v(Q + 4 * i, 4)}, {v(VA)} offset:{16 * RS + 16 * i}')
    for kg in range(3):
        I(f'ds_read_b128 {v(Kr + 20 * kg + 4 * i, 4)}, {v(VA)} offset:{kg * 8 * RS + 160 + 16 * i}')
for reg, pat in ((INV1, 0xff), (INV01, 0x1111), (INV02, 0x3333), (INV03, 0x7777)):
    I(f's_mov_b64 {s(reg, 2)}, {hex(pat)}')
I(f's_mov_b32 {s(SC_HI)}, 0xffff0000')
for h_ in range(2):
    I(f's_mov_b32 {s(SC_SCALE + h_)}, {f32(20 ** -0.5)}')
    I(f's_mov_b32 {s(SC_L2E + h_)}, {f32(1.4426950408889634)}')
I(f's_and_b32 {s(S_T4)}, {s(S_WAVE)}, 1')
I(f's_or_b32 {s(S_T4)}, {s(S_T4)}, {s(S_MT)}')
NEG = T + 2
SREG = [T + 4, T + 16]
for hd in range(2):
    Sx = SREG[hd]
    for dc in range(5):
        for kg in range(3):
            c_ = '0' if dc == 0 else v(Sx + 4 * kg, 4)
            I(f'v_mfma_f32_4x4x4_16b_bf16 {v(Sx + 4 * kg, 4)}, {v(Kr + 20 * kg + 10 * hd + 2 * dc, 2)}, {v(Q + 10 * hd + 2 * dc, 2)}, {c_}')
            I(f'ds_read_b64_tr_b16 {v(Vr + 30 * hd + 2 * (kg * 5 + dc), 2)}, {v(VB)} offset:{kg * 8 * RS + 320 + 40 * hd + 8 * dc}')
            if kg == 2 and w2rest:
                w2rest.pop(0)()
stamp(4, 4)


def hk():
    if w2rest:
        w2rest.pop(0)()


OP = Q
for hd in range(2):
    Sx = SREG[hd]
    Lg = Sx + 4
    if hd == 1:
        while w2rest:
            hk()
        chk_issue(V_PF)
    for r, M in ((1, M1), (2, M2), (3, M3)):
        I(f'v_cndmask_b32 {v(Sx + 8 + r)}, {v(Sx + r)}, {v(Sx + 8 + r)}, {s(M, 2)}')
    P = Sx
    for i in range(4):
        I(f'v_cvt_pk_bf16_f32 {v(P + i)}, {v(Lg + 2 * i)}, {v(Lg + 2 * i + 1)}')
    hk()
    for i in range(4):
        I(f'v_lshlrev_b32 {v(Lg + 2 * i)}, 16, {v(P + i)}')
        I(f'v_and_b32 {v(Lg + 2 * i + 1)}, {s(SC_HI)}, {v(P + i)}')
    hk()
    for i in range(4):
        I(f'v_pk_mul_f32 {v(Lg + 2 * i, 2)}, {v(Lg + 2 * i, 2)}, {s(SC_SCALE, 2)}')
    hk()
    for i in range(4):
        I(f'v_cvt_pk_bf16_f32 {v(P + i)}, {v(Lg + 2 * i)}, {v(Lg + 2 * i + 1)}')
    for i in range(4):
        I(f'v_lshlrev_b32 {v(Lg + 2 * i)}, 16, {v(P + i)}')
        I(f'v_and_b32 {v(Lg + 2 * i + 1)}, {s(SC_HI)}, {v(P + i)}')
    hk()
    lab = k.newlabel('L_nomask')
    I(f's_cmp_eq_u32 {s(S_T4)}, 0')
    I(f's_cbranch_scc0 {lab}')
    I(f'v_mov_b32 {v(NEG)}, {f32(-1e9)}')
    for r in range(4):
        I(f'v_cndmask_b32 {v(Lg + r)}, {v(Lg + r)}, {v(NEG)}, {s(INV1, 2)}')
    for r, M in ((1, INV01), (2, INV02), (3, INV03)):
        I(f'v_cndmask_b32 {v(Lg + 4 + r)}, {v(Lg + 4 + r)}, {v(NEG)}, {s(M, 2)}')
    k.label(lab)
    mx = P
    I(f'v_max3_f32 {v(mx)}, {v(Lg)}, {v(Lg + 1)}, {v(Lg + 2)}')
    I(f'v_max3_f32 {v(mx + 1)}, {v(Lg + 3)}, {v(Lg + 4)}, {v(Lg + 5)}')
    I(f'v_max3_f32 {v(mx)}, {v(mx)}, {v(Lg + 6)}, {v(Lg + 7)}')
    I(f'v_max_f32 {v(mx)}, {v(mx)}, {v(mx + 1)}')
    I(f'v_mul_f32 {v(mx)}, {s(SC_L2E)}, {v(mx)}')
    hk()
    for i in range(4):
        I(f'v_pk_fma_f32 {v(Lg + 2 * i, 2)}, {v(Lg + 2 * i, 2)}, {s(SC_L2E, 2)}, {v(mx, 2)} op_sel_hi:[1,1,0] neg_lo:[0,0,1] neg_hi:[0,0,1]')
    hk()
    for i in range(8):
        I(f'v_exp_f32 {v(Lg + i)}, {v(Lg + i)}')
    hk()
    I(f'v_pk_add_f32 {v(P, 2)}, {v(Lg, 2)}, {v(Lg + 2, 2)}')
    I(f'v_pk_add_f32 {v(P + 2, 2)}, {v(Lg + 4, 2)}, {v(Lg + 6, 2)}')
    I(f'v_pk_add_f32 {v(P, 2)}, {v(P, 2)}, {v(P + 2, 2)}')
    I(f'v_add_f32 {v(P)}, {v(P)}, {v(P + 1)}')
    I(f'v_rcp_f32 {v(P)}, {v(P)}')
    if hd == 1:
        for i in range(10):
            I(f'v_cvt_pk_bf16_f32 {v(OP + i)}, {v(Kr + 8 + 2 * i)}, {v(Kr + 8 + 2 * i + 1)}')
        for i in range(2):
            I(f'buffer_store_dwordx4 {v(OP + 4 * i, 4)}, {v(VO)}, {s(SRD_WS, 4)}, {s(S_OB)} offen offset:{256 * i} sc1')
    hk()
    for i in range(4):
        I(f'v_pk_mul_f32 {v(Lg + 2 * i, 2)}, {v(Lg + 2 * i, 2)}, {v(P, 2)} op_sel_hi:[1,0]')
    PB = Kr + 30 * hd
    I(f'v_cvt_pk_bf16_f32 {v(PB + 2)}, {v(Lg)}, {v(Lg + 1)}')
    I(f'v_cvt_pk_bf16_f32 {v(PB + 3)}, {v(Lg + 2)}, {v(Lg + 3)}')
    I(f'v_cvt_pk_bf16_f32 {v(PB)}, {v(Lg + 4)}, {v(Lg + 5)}')
    I(f'v_cvt_pk_bf16_f32 {v(PB + 1)}, {v(Lg + 6)}, {v(Lg + 7)}')
    I(f'v_and_b32 {v(PB + 4)}, {v(PB)}, {v(K2M0)}')
    I(f'v_and_b32 {v(PB + 5)}, {v(PB + 1)}, {v(K2M1)}')
    I(f'v_xor_b32 {v(PB)}, {v(PB)}, {v(PB + 4)}')
    I(f'v_xor_b32 {v(PB + 1)}, {v(PB + 1)}, {v(PB + 5)}')
    O = PB + 8
    for kg in (1, 2, 0):
        for dc in range(5):
            c_ = '0' if kg == 1 else v(O + 4 * dc, 4)
            I(f'v_mfma_f32_4x4x4_16b_bf16 {v(O + 4 * dc, 4)}, {v(Vr + 30 * hd + 2 * (kg * 5 + dc), 2)}, {v(PB + 2 * kg, 2)}, {c_}')
stamp(5, 4)
for i in range(10):
    I(f'v_cvt_pk_bf16_f32 {v(OP + 10 + i)}, {v(Kr + 38 + 2 * i)}, {v(Kr + 38 + 2 * i + 1)}')
    if i in (1, 5, 9):
        j = 2 + (i - 1) // 4
        I(f'buffer_store_dwordx4 {v(OP + 4 * j, 4)}, {v(VO)}, {s(SRD_WS, 4)}, {s(S_OB)} offen offset:{256 * j} sc1')
early_eval()
stamp(5)
I('s_branch L_phase2')

k.set_state(st_join)
k.label('L_ffn')
h_scalars()
ln_wait()
stamp(2)
pre_loads()
if RTLATE:
    rt_stores()
tag_fetch()
I(f's_lshl_b32 {s(S_T3)}, {s(S_WAVE)}, 9')
I(f's_add_u32 {s(S_T3)}, {s(S_T3)}, {HALO}')
I(f'v_lshl_add_u32 {v(T)}, {v(V_LANE)}, 3, {s(S_T3)}')
I(f'ds_write_b64 {v(T)}, {v(BIAS, 2)}')
I(f'v_lshrrev_b32 {v(T)}, 4, {v(V_LANE)}')
I(f'v_lshl_add_u32 {v(T)}, {v(T)}, 3, {s(S_T3)}')
for cb in range(14):
    I(f'ds_read_b64 {v(T + 8 + 2 * cb, 2)}, {v(T)} offset:{32 * cb}')
I(f's_mov_b32 {s(S_T4)}, 0xffff0000')
for cb in range(14):
    for rb in range(2):
        d = ACC + (cb * 2 + rb) * 4
        for h in range(2):
            I(f'v_lshlrev_b32 {v(d + 2 * h)}, 16, {v(T + 8 + 2 * cb + h)}')
            I(f'v_and_b32 {v(d + 2 * h + 1)}, {s(S_T4)}, {v(T + 8 + 2 * cb + h)}')
C0 = -2.0 * 0.7978845608028654 * 1.4426950408889634
C1 = C0 * 0.044715
GC0 = 128
GS1, S_HB2 = 46, 48
I(f'v_mov_b32 {v(GC0)}, {f32(C0)}')
I(f'v_mov_b32 {v(GC0 + 1)}, {f32(C0)}')
I(f'v_mov_b32 {v(GC0 + 2)}, 1.0')
I(f'v_mov_b32 {v(GC0 + 3)}, 1.0')
I(f's_mov_b32 {s(GS1)}, {f32(C1)}')
I(f's_mov_b32 {s(GS1 + 1)}, {f32(C1)}')
I(f's_mul_i32 {s(S_HB2)}, {s(S_MB0)}, {ACT_MB}')
I(f's_lshl_b32 {s(S_T3)}, {s(S_START)}, 10')
I(f's_add_u32 {s(S_HB2)}, {s(S_HB2)}, {s(S_T3)}')
I(f's_add_u32 {s(S_HB2)}, {s(S_HB2)}, {ACT_T + 20 * 1024}')
I(f's_add_u32 {s(S_HB2 + 1)}, {s(S_HB2)}, {ACT_MB}')


def gelu_group(pr, rb, hook=None):
    n = pr * 2 + rb
    tmp = T + 4 + 8 * (n % 2)
    out = T + 20 + 4 * (n % 4)
    xs = [ACC + ((2 * pr + c2) * 2 + rb) * 4 + 2 * h for c2 in range(2) for h in range(2)]
    for i, x in enumerate(xs):
        I(f'v_pk_mul_f32 {v(tmp + 2 * i, 2)}, {v(x, 2)}, {v(x, 2)}')
    for i, x in enumerate(xs):
        I(f'v_pk_fma_f32 {v(tmp + 2 * i, 2)}, {v(tmp + 2 * i, 2)}, {s(GS1, 2)}, {v(GC0, 2)}')
    hook()
    for i, x in enumerate(xs):
        I(f'v_pk_mul_f32 {v(tmp + 2 * i, 2)}, {v(tmp + 2 * i, 2)}, {v(x, 2)}')
    hook()
    for i in range(8):
        I(f'v_exp_f32 {v(tmp + i)}, {v(tmp + i)}')
        if i % 2 == 0 and i >= 2:
            I(f'v_pk_add_f32 {v(tmp + i - 2, 2)}, {v(tmp + i - 2, 2)}, {v(GC0 + 2, 2)}')
    hook()
    I(f'v_rcp_f32 {v(tmp)}, {v(tmp)}')
    I(f'v_pk_add_f32 {v(tmp + 6, 2)}, {v(tmp + 6, 2)}, {v(GC0 + 2, 2)}')
    hook()
    for i in range(1, 8):
        I(f'v_rcp_f32 {v(tmp + i)}, {v(tmp + i)}')
        if i % 2 == 0:
            I(f'v_pk_mul_f32 {v(tmp + i - 2, 2)}, {v(tmp + i - 2, 2)}, {v(xs[i // 2 - 1], 2)}')
    hook()
    I(f'v_cvt_pk_bf16_f32 {v(out)}, {v(tmp)}, {v(tmp + 1)}')
    I(f'v_pk_mul_f32 {v(tmp + 6, 2)}, {v(tmp + 6, 2)}, {v(xs[3], 2)}')
    hook()
    for i in range(1, 4):
        I(f'v_cvt_pk_bf16_f32 {v(out + i)}, {v(tmp + 2 * i)}, {v(tmp + 2 * i + 1)}')
    I(f'buffer_store_dwordx4 {v(out, 4)}, {v(V_L16 if pr < 4 else V_L16B)}, {s(SRD_WS, 4)}, {s(S_HB2 + rb)} offen offset:{(pr & 3) * 1024} sc1', tag=('h', pr))


stamp(3)
w2done = mainloop([[(ks, j, 32 * j) for j in range(14)] for ks in range(20)], areg_att,
                  [[ks + LAK] if ks + LAK < 20 else [] for ks in range(20)], False,
                  lambda t_, f: opt('rf0', 3) if t_ < 20 - LAK else opt('rf1', 8), lambda kn: None, lambda t_: [], lambda t_, ph: None)
stamp(4)
stamp(1, 4)
I('s_barrier')
w2rest = [lambda f=f: w2load(f) for f in range(w2done, NW2X)]
w2rest += [lambda i=i, nb=nb: wodma(i, nb) for i in WO_EARLY for nb in range(5)]
FM = opt('fm', 0)
if FM == 0:
    w2rest = [x for fn in w2rest for x in (fn, None)]
elif FM == 1:
    w2rest = [None] * 48 + w2rest
elif FM == 2:
    pass
elif FM == 3:
    w2tail = w2rest[-15:]
    w2rest = [x for fn in w2rest[:-15] for x in (fn, None, None)]


def hook():
    if w2rest:
        fn = w2rest.pop(0)
        if fn:
            fn()


HSPLIT = 4
for pr in range(7):
    for rb in range(2):
        gelu_group(pr, rb, hook)
        if rb == 1 and pr in (1, 3, 4, 6):
            stamp(2 + (1, 3, 4, 6).index(pr), 4)
        if pr == HSPLIT and rb == opt('hrb', 1):
            k.wait_vm_tag(('h', HSPLIT - 1))
            I('s_barrier')
            lab = k.newlabel('L_nh')
            I(f's_cmp_eq_u32 {s(S_WAVE)}, 0')
            I(f's_cbranch_scc0 {lab}')
            flag_store(P1H, S_FOFF, 224)
            k.label(lab)
        if pr == 6 and rb == 0:
            while w2rest:
                hook()
            chk_issue(V_PF)
early_eval()
stamp(5)

k.label('L_phase2')
k.vmq = [(set(), 'p1st')]
k.lgq = []
stamp(6)
stamp(6, 4)
HE = opt('he', 2)
for st in range(HE):
    for mb in range(4):
        hload(st, mb, True)
k.wait_vm_tag('p1st')
stamp(7, 4)
p1_flag()
lab = k.newlabel('L_haveh')
I(f's_cmp_eq_u32 {s(S_EARLY)}, 1')
I(f's_cbranch_scc1 {lab}')
k.wait_all()
poll(V_PF, 'ffn')
for st in range(HE):
    for mb in range(4):
        hload(st, mb)
k.label(lab)
for st in range(HE, 4):
    for mb in range(4):
        hload(st, mb)
stamp(7)
stamp(8, 4)


def p2_setup():
    global S_OBASE, S_OOK, S_HI, S_NL2E, VXO, VB2, VPA2, VRED2, VWO1, VWO2
    S_OBASE, S_OOK, S_HI, S_NL2E = 36, 39, 40, 41
    I(f's_lshl_b32 {s(S_T3)}, {s(S_M2)}, 2')
    I(f's_add_u32 {s(S_T3)}, {s(S_T3)}, {s(S_WAVE)}')
    I(f's_mul_i32 {s(S_OBASE)}, {s(S_T3)}, {ACT_MB}')
    I(f's_add_u32 {s(S_OBASE)}, {s(S_OBASE)}, {ACT_T + (OOB // 2 if "--noH" in sys.argv else 0)}')
    I(f's_mov_b32 {s(S_HI)}, 0xffff0000')
    I(f's_mov_b32 {s(S_NL2E)}, {f32(-1.4426950408889634)}')
    VXO, VB2, VPA2, VRED2, VWO1, VWO2 = T2 + 2, T2 + 3, T2 + 4, T2 + 5, T2 + 6, T2 + 7
    I(f's_mul_i32 {s(S_T3)}, {s(S_T3)}, {16 * 1280}')
    I(f's_mul_i32 {s(S_T4)}, {s(S_NT)}, 160')
    I(f's_add_u32 {s(S_T3)}, {s(S_T3)}, {s(S_T4)}')
    for i in range(3):
        I(f'v_add_u32 {v(VB2)}, {64 * i}, {v(V_LANE)}')
        I(f'v_mul_u32_u24 {v(VXO)}, 205, {v(VB2)}')
        I(f'v_lshrrev_b32 {v(VXO)}, 11, {v(VXO)}')
        I(f'v_mul_u32_u24 {v(VXO)}, {1280 - 160}, {v(VXO)}')
        I(f'v_lshl_add_u32 {v(VXO)}, {v(VB2)}, 4, {v(VXO)}')
        I(f'v_add_u32 {v(VXG + i)}, {s(S_T3)}, {v(VXO)}')
    I(f'v_lshrrev_b32 {v(VB2)}, 5, {v(V_LANE)}')
    I(f'v_lshl_or_b32 {v(VXG + 2)}, {v(VB2)}, 30, {v(VXG + 2)}')
    prow(VB2, VXO, 15)
    I(f'v_mul_u32_u24 {v(VXO)}, 160, {v(VB2)}')
    I(f'v_lshrrev_b32 {v(VB2)}, 4, {v(V_LANE)}')
    I(f'v_lshl_add_u32 {v(VXO)}, {v(VB2)}, 3, {v(VXO)}')
    I(f'v_lshl_add_u32 {v(VB2)}, {v(VB2)}, 3, {s(S_T4)}')
    I(f's_mul_i32 {s(S_T3)}, {s(S_WAVE)}, {15 * 1024}')
    I(f's_add_u32 {s(S_T3)}, {s(S_T3)}, {LDS_RED}')
    I(f'v_add_u32 {v(VXO)}, {s(S_T3)}, {v(VXO)}')
    I(f'v_subrev_u32 {v(V_PF)}, {P1H - P1F}, {v(V_PF)}')
    I(f's_lshr_b32 {s(S_T3)}, {s(S_M2)}, 1')
    I(f's_lshl_b32 {s(S_T3)}, {s(S_T3)}, {4 + FS}')
    I(f's_add_u32 {s(S_T3)}, {s(S_T3)}, {P1F}')
    I(f'v_and_b32 {v(VPA2)}, 7, {v(V_LANE)}')
    I(f'v_lshl_add_u32 {v(VPA2)}, {v(VPA2)}, {FS}, {s(S_T3)}')
    I(f's_mul_i32 {s(S_T3)}, {s(S_WAVE)}, {15 * 1024}')
    I(f'v_add_u32 {v(VWO1)}, {LDS_RED}, {v(V_L16)}')
    I(f'v_add_u32 {v(VRED2)}, {s(S_T3)}, {v(VWO1)}')
    I(f'v_add_u32 {v(VWO2)}, {LDS_WO + 65536}, {v(V_L16)}')
    for i in range(3):
        I(f's_add_u32 {s(S_T3)}, {s(S_WAVE)}, {1 + i}')
        I(f's_and_b32 {s(S_T3)}, {s(S_T3)}, 3')
        I(f's_mul_i32 {s(S_T3)}, {s(S_T3)}, {15 * 1024}')
        I(f'v_add_u32 {v(VRW[i])}, {s(S_T3)}, {v(VWO1)}')


setup2 = k.record(p2_setup)


def oreg(ks):
    return a(4 * W2ORDER[20 + ks], 4)


def oload(ks):
    if ks % 8 == 0 and ks:
        I(f's_add_u32 {s(S_OBASE)}, {s(S_OBASE)}, 8192')
    I(f'buffer_load_dwordx4 {oreg(ks)}, {v(V_L16 if (ks & 7) < 4 else V_L16B)}, {s(SRD_WS, 4)}, {s(S_OBASE)} offen offset:{(ks & 3) * 1024} sc1')


R_ = k.record
fl = {st: [] for st in range(13)}
if W2ALL:
    pfi = [i for i, e in enumerate(setup2) if 'v_subrev_u32' in e[0]][0]
    fl[0] = R_(lambda: [hload(4, mb) for mb in range(4)]) + setup2[pfi:]
    fl[1] = R_(lambda: chk_issue(V_PF)) + setup2[:pfi // 2]
    fl[2] = R_(lambda: w2load(69)) + setup2[pfi // 2:pfi]
    fl[4] = R_(lambda: [wodma(WO_LATE[0], nb) for nb in range(3)])
    fl[5] = R_(lambda: [wodma(WO_LATE[0], nb) for nb in range(3, 5)])
    fl[6] = R_(lambda: [wodma(WO_LATE[1], nb) for nb in range(3)])
    fl[7] = R_(lambda: [wodma(WO_LATE[1], nb) for nb in range(3, 5)]) + R_(lambda: chk_issue(VPA2))
else:
    fl[0] = R_(lambda: [hload(st, mb) for st in (4, 5) for mb in range(4)]) + setup2
    fl[1] = R_(lambda: chk_issue(V_PF)) + R_(lambda: [hload(st, mb) for st in (6, 7) for mb in range(4)])
    fl[2] = R_(lambda: [w2load(f) for f in range(NW2E, NW2E + 5)])
    fl[3] = R_(lambda: [hload(8, mb) for mb in range(4)]) + R_(lambda: [wodma(WO_LATE[0], nb) for nb in range(5)])
    fl[4] = R_(lambda: [w2load(f) for f in range(NW2E + 5, NW2E + 10)])
    fl[5] = R_(lambda: [wodma(WO_LATE[1], nb) for nb in range(5)])
    fl[6] = R_(lambda: [w2load(f) for f in range(NW2E + 10, NW2E + 14)])
    fl[7] = R_(lambda: [w2load(f) for f in range(NW2E + 14, 70)]) + R_(lambda: chk_issue(VPA2))
WOW = YACC
NWW = 14
LA2 = 11
WOPRE = W2ORDER[1:20] + W2ORDER[40:49]
NPW = len(WOPRE) if opt('wopre', 1) else 0


def woreg(n):
    return a(4 * WOPRE[n], 4) if n < NPW else v(WOW + 4 * (n % NWW), 4)


def woread(n):
    off = n * 1024
    if off < 65536:
        I(f'ds_read_b128 {woreg(n)}, {v(V_L16)} offset:{off}')
    else:
        I(f'ds_read_b128 {woreg(n)}, {v(VWO2)} offset:{off - 65536}')


if NPW:
    for j in range(19):
        fl.setdefault(4 + j // 3, [])
        fl[4 + j // 3] = fl[4 + j // 3] + R_(lambda: woread(j))
wotail = [j for j in range(19, NPW)]
NOY = opt('noy', 12)
late = R_(lambda: [oload(ks) for ks in range(4)])
late += R_(lambda: [I(f'buffer_load_dwordx2 {v(B2V + 2 * nb, 2)}, {v(VB2)}, {s(SRD_B2, 4)}, 0 offen offset:{32 * nb}') for nb in range(5)])
late += R_(lambda: [oload(ks) for ks in range(4, NOY)])
olate = R_(lambda: [oload(ks) for ks in range(NOY, 20)])
olate += R_(lambda: [I(f'buffer_load_dwordx4 {v(XIN + 4 * i, 4)}, {v(VXG + i)}, {s(SRD_X, 4)}, 0 offen') for i in range(3)])
TS = 11
ATK = opt('atk', 9)
nl = len(late)
for i, st in enumerate(range(ATK, TS)):
    fl[st] = fl[st] + late[i * nl // (14 - ATK):(i + 1) * nl // (14 - ATK)]
late = late[(TS - ATK) * nl // (14 - ATK):]
I(f's_mov_b32 {s(39)}, 1')
for st in range(TS):
    if st in (0, 1, 3, 5, 8):
        stamp(1 + (0, 1, 3, 5, 8).index(st), 3)
    if st == 3:
        poll(V_PF, 'ffn2', preissued=True)
    if st == ATK:
        poll(VPA2, 'att', preissued=True)
    q = fl[st]
    per = max(8, -(-sum(cost(e) for e in q) // 16))
    for mb in range(4):
        for nb in range(5):
            nn = 4 - nb if (mb & 1 and '--snake' in sys.argv) else nb
            d = YACC + (mb * 5 + nn) * 4
            c_ = '0' if st == 0 else v(d, 4)
            I(f'v_mfma_f32_16x16x32_bf16 {v(d, 4)}, {w2reg(st, nn)}, {hreg(st, mb)}, {c_}')
            u = 0
            while q and nb < 4 and (u + cost(q[0]) <= per) and (nb % 2 == 0 or len(q) > 2 * (4 - mb)):
                u += cost(q[0])
                k.play(q.pop(0))
        if st + HWN < 14:
            hload(st + HWN, mb)
    while q:
        k.play(q.pop(0))
stamp(6, 3)
YOWN = YACC + 60
n = 0
for mb in range(4):
    for st in range(TS, 14):
        for nb in range(5):
            d = YACC + (mb * 5 + nb) * 4
            I(f'v_mfma_f32_16x16x32_bf16 {v(d, 4)}, {w2reg(st, nb)}, {hreg(st, mb)}, {v(d, 4)}')
            j = (st - TS) * 5 + nb
            if mb and j >= 3 and j % 2 == 1 and (j - 3) // 2 < 5:
                nw = (j - 3) // 2
                I(f'ds_write_b128 {v(VRW[mb - 1])}, {v(YACC + ((mb - 1) * 5 + nw) * 4, 4)} offset:{((mb - 1) * 5 + nw) * 1024}')
            elif late and n % 4 == 0:
                k.play(late.pop(0))
            elif wotail and n % 4 == 2:
                woread(wotail.pop(0))
            n += 1
while late:
    k.play(late.pop(0))
stamp(8)
stamp(7, 3)
stamp(1, 5)
k.wait_all(vm=False, lg=True)
I('s_barrier')
stamp(2, 5)
YT = HW + 20
for i in range(3):
    for nb in range(5):
        I(f'ds_read_b128 {v(YT + 20 * i + 4 * nb, 4)}, {v(VRED2)} offset:{(i * 5 + nb) * 1024}')
for n in range(NPW, LA2):
    woread(n)
G1 = YT
valu = []
GPK = opt('gpk', 1)
for i in range(3):
    if GPK:
        for r in range(10):
            valu.append(f'v_pk_add_f32 {v(YOWN + 2 * r, 2)}, {v(YOWN + 2 * r, 2)}, {v(YT + 20 * i + 2 * r, 2)}')
    else:
        for r in range(20):
            valu.append(f'v_add_f32 {v(YOWN + r)}, {v(YOWN + r)}, {v(YT + 20 * i + r)}')
seq = [
    lambda y, p, r: f'v_cvt_pk_bf16_f32 {v(p)}, {v(y)}, {v(y + 1)}',
    lambda y, p, r: f'v_lshlrev_b32 {v(y)}, 16, {v(p)}',
    lambda y, p, r: f'v_and_b32 {v(y + 1)}, {s(S_HI)}, {v(p)}',
    lambda y, p, r: f'v_lshlrev_b32 {v(p)}, 16, {v(B2V + r)}',
    lambda y, p, r: f'v_and_b32 {v(p + 1)}, {s(S_HI)}, {v(B2V + r)}',
    lambda y, p, r: f'v_add_f32 {v(y)}, {v(y)}, {v(p)}',
    lambda y, p, r: f'v_add_f32 {v(y + 1)}, {v(y + 1)}, {v(p + 1)}',
    lambda y, p, r: f'v_cvt_pk_bf16_f32 {v(p)}, {v(y)}, {v(y + 1)}',
    lambda y, p, r: f'v_lshlrev_b32 {v(y)}, 16, {v(p)}',
    lambda y, p, r: f'v_and_b32 {v(y + 1)}, {s(S_HI)}, {v(p)}',
    lambda y, p, r: f'v_mul_f32 {v(p)}, {s(S_NL2E)}, {v(y)}',
    lambda y, p, r: f'v_mul_f32 {v(p + 1)}, {s(S_NL2E)}, {v(y + 1)}',
    lambda y, p, r: f'v_exp_f32 {v(p)}, {v(p)}',
    lambda y, p, r: f'v_exp_f32 {v(p + 1)}, {v(p + 1)}',
    lambda y, p, r: f'v_add_f32 {v(p)}, 1.0, {v(p)}',
    lambda y, p, r: f'v_add_f32 {v(p + 1)}, 1.0, {v(p + 1)}',
    lambda y, p, r: f'v_rcp_f32 {v(p)}, {v(p)}',
    lambda y, p, r: f'v_rcp_f32 {v(p + 1)}, {v(p + 1)}',
    lambda y, p, r: f'v_mul_f32 {v(y)}, {v(y)}, {v(p)}',
    lambda y, p, r: f'v_mul_f32 {v(y + 1)}, {v(y + 1)}, {v(p + 1)}',
    lambda y, p, r: f'v_cvt_pk_bf16_f32 {v(p)}, {v(y)}, {v(y + 1)}',
    lambda y, p, r: f'v_lshlrev_b32 {v(y)}, 16, {v(p)}',
    lambda y, p, r: f'v_and_b32 {v(y + 1)}, {s(S_HI)}, {v(p)}',
]
if GPK:
    seq[5:7] = [lambda y, p, r: f'v_pk_add_f32 {v(y, 2)}, {v(y, 2)}, {v(p, 2)}']
    seq[-5:-3] = [lambda y, p, r: f'v_pk_mul_f32 {v(y, 2)}, {v(y, 2)}, {v(p, 2)}']
for fn in seq:
    for r in range(10):
        valu.append(fn(YOWN + 2 * r, G1 + 2 * r, r))
for r in range(12):
    valu.append(f'v_lshlrev_b32 {v(G1 + 2 * r)}, 16, {v(XIN + r)}')
    valu.append(f'v_and_b32 {v(G1 + 2 * r + 1)}, {s(S_HI)}, {v(XIN + r)}')
nv = len(valu)
stamp(8, 3)
stamp(3, 5)
vi = 0
for n in range(100):
    ks, nb = divmod(n, 5)
    if n in (24, 50, 74):
        stamp(4 + (24, 50, 74).index(n), 5)
    d = SACC + 4 * nb
    c_ = '0' if ks == 0 else v(d, 4)
    if n % 3 == 0:
        k._need(set().union(*[regs_of(woreg(m)) for m in range(n, min(n + 3, 100))]))
    I(f'v_mfma_f32_16x16x32_bf16 {v(d, 4)}, {woreg(n)}, {oreg(ks)}, {c_}')
    if NPW <= n + LA2 < 100:
        woread(n + LA2)
    if olate and n % 2 == 1:
        k.play(olate.pop(0))
    while vi < nv and vi * 100 < (n + 1) * nv:
        I(valu[vi])
        vi += 1
PT = YT + 24
stamp(7, 5)
seq = [
    lambda sx, y, p, r: f'v_cvt_pk_bf16_f32 {v(p)}, {v(sx)}, {v(sx + 1)}',
    lambda sx, y, p, r: f'v_lshlrev_b32 {v(sx)}, 16, {v(p)}',
    lambda sx, y, p, r: f'v_and_b32 {v(sx + 1)}, {s(S_HI)}, {v(p)}',
    lambda sx, y, p, r: f'v_pk_mul_f32 {v(sx, 2)}, {v(sx, 2)}, {v(y, 2)}',
    lambda sx, y, p, r: f'v_cvt_pk_bf16_f32 {v(p)}, {v(sx)}, {v(sx + 1)}',
]
for nb in range(5):
    for fn in seq:
        for r in (2 * nb, 2 * nb + 1):
            I(fn(SACC + 2 * r, YOWN + 2 * r, PT + r, r))
    I(f'ds_write_b64 {v(VXO)}, {v(PT + 2 * nb, 2)} offset:{32 * nb}')
for i in range(3):
    I(f'ds_read_b128 {v(XIN + 4 * i, 4)}, {v(VRED2)} offset:{1024 * i}')
U = YACC
stamp(8, 5)
for i in range(3):
    rr = range(4 * i, 4 * i + 4)
    for r in rr:
        I(f'v_lshlrev_b32 {v(U + 2 * r)}, 16, {v(XIN + r)}')
        I(f'v_and_b32 {v(U + 2 * r + 1)}, {s(S_HI)}, {v(XIN + r)}')
    for r in rr:
        I(f'v_pk_add_f32 {v(U + 2 * r, 2)}, {v(U + 2 * r, 2)}, {v(G1 + 2 * r, 2)}')
    for r in rr:
        I(f'v_cvt_pk_bf16_f32 {v(XIN + r)}, {v(U + 2 * r)}, {v(U + 2 * r + 1)}')
    I(f'buffer_store_dwordx4 {v(XIN + 4 * i, 4)}, {v(VXG + i)}, {s(SRD_OUT, 4)}, 0 offen')
ECHO = opt('echo', -1)
if ECHO >= 0:
    stamp(9, -1)
    k.wait_all()
    if ECHO == 50:
        I(f'v_mov_b32 {v(T2)}, {STAMP_OFF}')
        I(f'buffer_load_dword {v(T2 + 1)}, {v(T2)}, {s(SRD_WS, 4)}, 0 offen sc1')
        I(f'v_readfirstlane_b32 {s(S_T4)}, {v(T2 + 1)}')
        I(f's_sub_u32 {s(S_T3)}, {s(S_STAMP)}, {s(S_T4)}')
    else:
        I(f's_sub_u32 {s(S_T3)}, {s(S_STAMP + 2 * ECHO)}, {s(S_STAMP)}')
    I(f's_min_u32 {s(S_T3)}, {s(S_T3)}, 10000')
    k.label('L_echo')
    I(f's_memrealtime {s(S_T4, 2)}')
    k.wait_all()
    I(f's_sub_u32 {s(S_T4)}, {s(S_T4)}, {s(S_STAMP + 18)}')
    I(f's_cmp_lt_u32 {s(S_T4)}, {s(S_T3)}')
    I('s_cbranch_scc1 L_echo')
elif STAMPS:
    stamp(9, -1)
    k.wait_all()
    I(f's_lshl_b32 {s(S_T3)}, {s(S_WG)}, 8')
    I(f's_lshl_b32 {s(S_T4)}, {s(S_WAVE)}, 6')
    I(f's_add_u32 {s(S_T3)}, {s(S_T3)}, {s(S_T4)}')
    I(f's_add_u32 {s(S_T3)}, {s(S_T3)}, {STAMP_OFF}')
    I(f'v_mov_b32 {v(T2)}, 0')
    I('s_mov_b64 exec, 1')
    for i in range(10):
        I(f'v_mov_b32 {v(T2 + 1)}, {s(S_STAMP + 2 * i)}')
        I(f'buffer_store_dword {v(T2 + 1)}, {v(T2)}, {s(SRD_WS, 4)}, {s(S_T3)} offen offset:{4 * i}')
    I(f'v_mov_b32 {v(T2 + 1)}, {s(S_EARLY)}')
    I(f'buffer_store_dword {v(T2 + 1)}, {v(T2)}, {s(SRD_WS, 4)}, {s(S_T3)} offen offset:52')
    I(f'v_mov_b32 {v(T2 + 1)}, {s(S_OOK)}')
    I(f'buffer_store_dword {v(T2 + 1)}, {v(T2)}, {s(SRD_WS, 4)}, {s(S_T3)} offen offset:56')
    I(f'v_mov_b32 {v(T2 + 1)}, {s(S_TYPE)}')
    I(f'buffer_store_dword {v(T2 + 1)}, {v(T2)}, {s(SRD_WS, 4)}, {s(S_T3)} offen offset:60')
if '--padx' in sys.argv:
    for i in range(2048):
        I(f'v_add3_u32 {v(16 + i % 8)}, {v(16 + i % 8)}, v2, v3')
if '--pady' in sys.argv:
    I(f's_mov_b32 {s(S_T3)}, 0')
    k.label('L_pady')
    for i in range(64):
        I(f'v_add3_u32 {v(16 + i % 8)}, {v(16 + i % 8)}, v2, v3')
    I(f's_add_u32 {s(S_T3)}, {s(S_T3)}, 1')
    I(f's_cmp_lt_u32 {s(S_T3)}, 32')
    I('s_cbranch_scc1 L_pady')
k.label('L_end')
I('s_endpgm')

hdr = open('recurrent_scan__sliding_local_dilated__dense_activation_gelu__prompt.s.ref').read().split('\n')
head = [l for l in hdr if l.startswith(';') and '@launch' not in l and 'Override' not in l and 'grid=ceil' not in l]
print('\n'.join(head))
if '--list' in sys.argv:
    print(f'; @launch kernel=pre_kernel grid=({opt("preg", 1)},1,1) block=(64,1,1) lds=0')
    print(f'; @launch kernel={KNAME} grid=(256,1,1) block=(256,1,1) lds={LDS_TOTAL}')
else:
    print(f'; @launch grid=(256,1,1) block=(256,1,1) lds={LDS_TOTAL}')
print(""";
;   phase 2  : 64 x 80 output tile: y = h @ w2 (K split over the waves), s = o @ wo, out = x + s * silu(y + b2).""")
print(f'''.amdgcn_target "amdgcn-amd-amdhsa--gfx950"
.text
.globl {KNAME}
.p2align 8
.type {KNAME},@function
{KNAME}:''')
print(k.text())
if '--list' in sys.argv:
    print(f'''.globl pre_kernel
.p2align 8
.type pre_kernel,@function
pre_kernel:
    s_cmp_ge_u32 s2, 1
    s_cbranch_scc1 L_pre_end
    s_load_dwordx2 s[4:5], s[0:1], 80
    s_waitcnt lgkmcnt(0)
    s_mov_b32 s8, s4
    s_mov_b32 s9, s5
    s_mov_b32 s10, {WS_REC}
    s_mov_b32 s11, 0x00020000
    s_memrealtime s[12:13]
    s_waitcnt lgkmcnt(0)
    v_mov_b32 v1, s12
    v_mov_b32 v2, {STAMP_OFF}
    s_mov_b64 exec, 1
    buffer_store_dword v1, v2, s[8:11], 0 offen sc1
L_pre_end:
    s_endpgm''')
print(f'''.section .rodata,"a"
.p2align 6
.amdhsa_kernel {KNAME}
  .amdhsa_next_free_vgpr 512
  .amdhsa_next_free_sgpr 102
  .amdhsa_accum_offset 256
  .amdhsa_group_segment_fixed_size 0
  .amdhsa_kernarg_size 88
  .amdhsa_user_sgpr_count 2
  .amdhsa_user_sgpr_kernarg_segment_ptr 1
  .amdhsa_system_sgpr_workgroup_id_x 1
  .amdhsa_float_denorm_mode_32 3
.end_amdhsa_kernel''')
if '--list' in sys.argv:
    print('''.p2align 6
.amdhsa_kernel pre_kernel
  .amdhsa_next_free_vgpr 8
  .amdhsa_next_free_sgpr 16
  .amdhsa_accum_offset 8
  .amdhsa_group_segment_fixed_size 0
  .amdhsa_kernarg_size 88
  .amdhsa_user_sgpr_count 2
  .amdhsa_user_sgpr_kernarg_segment_ptr 1
  .amdhsa_system_sgpr_workgroup_id_x 1
.end_amdhsa_kernel''')
```

```python
import sys, struct
from asmlib import *

KNAME = 'recurrent_scan__sliding_local_dilated__dense_activation_gelu__prompt_kernel'
STAMPS = '--stamps' in sys.argv


def opt(name, default):
    for x in sys.argv:
        if x.startswith(f'--{name}='):
            return int(x.split('=')[1])
    return default


SMODE = opt('smode', 0)

XN_T = 0
ACT_T = 128 * 20 * 1024
ACT_MB = 74 * 1024
W_T = ACT_T + 128 * ACT_MB
FS = opt('fs', 6)
WS_ = opt('ws', 6)
LNF = W_T + 74 * 40 * 1024
P1F = LNF + (256 << FS)
P1H = P1F + (256 << FS)
WTF = P1H + (256 << FS)
WS_USED = LNF + (1024 << 7)
STAMP_OFF = WS_USED
WS_REC = WS_USED + (256 * 4 * 64 if STAMPS else 0)
OOB = 0x40000000

RROW = 1056
SLOT = 16 * RROW
NSLOT = 8
HALO = NSLOT * SLOT
CNT = HALO + 20 * 1024
RS = 496
STG = 4 * SLOT
LDS_WO = 0
LDS_RED = 100 * 1024
LDS_TOTAL = 163840


def f32(x):
    return '0x%08x' % struct.unpack('<I', struct.pack('<f', x))[0]


S_WG, S_FOFF = 2, 3
SRD_X, SRD_B, SRD_WS, SRD_DBG, SRD_OUT, SRD_RT, SRD_B1, SRD_B2 = 4, 8, 12, 16, 20, 24, 28, 56
P_X, P_WQKV, P_WO, P_BX, P_W1, P_B1, P_W2, P_B2, P_OUT, P_DBG, P_WS = 32, 34, 36, 38, 40, 42, 44, 46, 48, 50, 52
S_WAVE, S_MT, S_TYPE, S_IDX, S_FB, S_PITCH, S_KSTR, S_START = 60, 61, 62, 63, 64, 65, 66, 67
S_T0, S_T1, S_T2, S_T3, S_T4, S_T5 = 68, 69, 70, 71, 72, 73
S_M0B, S_SOFF, S_M2, S_NT, S_SPIN, S_TAG = 74, 75, 76, 77, 78, 79
S_STAMP = 80
S_W2A, S_W2B = 100, 101
S_WOB, S_WOM, S_LAST = 16, 17, 18
S_HB, S_MB0 = 32, 33
S_AO = 36

V_LANE = 1
V_DMA = 2
V_TR0, V_TR1 = 6, 7
V_TRH0, V_TRH1 = 8, 9
V_L16 = 10
V_L16B = 11
V_PA = 12
V_POLL = 13
V_X = 14
V_PF = 15
ACC = 16
HACC = 136
WIN = 148
HX = 180
T = 188
BIAS = 226
W2V = 228
P4 = 252

k = K()
I = k.I


def stamp(idx, mode=0):
    if STAMPS and (mode == SMODE or mode == -1):
        I(f'{"s_memtime" if "--cyc" in sys.argv else "s_memrealtime"} {s(S_STAMP + 2 * idx, 2)}')


def srd(base, plo, nbytes):
    I(f's_mov_b32 {s(base)}, {s(plo)}')
    I(f's_mov_b32 {s(base + 1)}, {s(plo + 1)}')
    I(f's_mov_b32 {s(base + 2)}, {nbytes}')
    I(f's_mov_b32 {s(base + 3)}, 0x00020000')


def csel(dst, x, y):
    I(f's_mov_b32 {s(dst)}, {y}')
    I(f's_cselect_b32 {s(dst)}, {x}, {s(dst)}')


def chk_issue(addrv, n=1):
    if n == 1:
        I(f'buffer_load_dword {v(V_POLL)}, {v(addrv)}, {s(SRD_WS, 4)}, 0 offen sc1')
    else:
        I(f'buffer_load_dwordx4 {v(P4, 4)}, {v(addrv)}, {s(SRD_WS, 4)}, 0 offen sc1')


def chk_eval(n=1):
    if n == 1:
        I(f'v_cmp_ne_u32 vcc, {s(S_TAG)}, {v(V_POLL)}')
    else:
        for i in range(4):
            I(f'v_xor_b32 {v(P4 + i)}, {s(S_TAG)}, {v(P4 + i)}')
        I(f'v_or3_b32 {v(P4)}, {v(P4)}, {v(P4 + 1)}, {v(P4 + 2)}')
        I(f'v_or_b32 {v(P4)}, {v(P4)}, {v(P4 + 3)}')
        I(f'v_cmp_ne_u32 vcc, 0, {v(P4)}')


def poll(addrv, name, n=1, preissued=False, sleep=1):
    lab = k.newlabel('L_poll_' + name)
    done = k.newlabel('L_polled_' + name)
    if not preissued:
        chk_issue(addrv, n)
    chk_eval(n)
    I(f's_mov_b32 {s(S_SPIN)}, 0')
    I(f's_cbranch_vccz {done}')
    st = k.state()
    k.label(lab)
    I(f's_sleep {sleep}')
    chk_issue(addrv, n)
    k.wait_all(vm=True, lg=False)
    chk_eval(n)
    I(f's_add_u32 {s(S_SPIN)}, {s(S_SPIN)}, 1')
    I(f's_cbranch_vccz {done}')
    I(f's_cmp_lt_u32 {s(S_SPIN)}, 0x40000')
    I(f's_cbranch_scc1 {lab}')
    k.label(done)
    k.set_state(st)


def flag_store(base, offs, t0):
    I(f'v_mov_b32 {v(t0)}, {s(S_TAG)}')
    I(f'v_mov_b32 {v(t0 + 1)}, {base}')
    I('s_mov_b64 exec, 1')
    I(f'buffer_store_dword {v(t0)}, {v(t0 + 1)}, {s(SRD_WS, 4)}, {s(offs)} offen sc1')
    I('s_mov_b64 exec, -1')
    k.vmq.pop()


def dma1(j, soff_reg, tag):
    I(f'buffer_load_dwordx4 {v(V_DMA + j)}, {s(SRD_B, 4)}, {s(soff_reg)} offen offset:{j * RROW} lds', tag=tag)


def bf16r(dst, src):
    I(f'v_cvt_pk_bf16_f32 {v(dst)}, {v(src)}, {v(src)}')
    I(f'v_lshlrev_b32 {v(dst)}, 16, {v(dst)}')


def prow(dst, tmp, mask):
    I(f'v_and_b32 {v(dst)}, {mask & ~7}, {v(V_LANE)}')
    I(f'v_bfe_u32 {v(tmp)}, {v(V_LANE)}, 2, 1')
    I(f'v_add_u32 {v(dst)}, {v(dst)}, {v(tmp)}')
    I(f'v_and_b32 {v(tmp)}, 3, {v(V_LANE)}')
    I(f'v_lshl_add_u32 {v(dst)}, {v(tmp)}, 1, {v(dst)}')


def row_sum(r, t1):
    for sh in (4, 8):
        I(f'v_add_f32_dpp {v(r)}, {v(r)}, {v(r)} row_ror:{sh} row_mask:0xf bank_mask:0xf')
    for op in ('v_permlane16_swap_b32', 'v_permlane32_swap_b32'):
        I(f'v_mov_b32 {v(t1)}, {v(r)}')
        I(f'{op} {v(r)}, {v(t1)}')
        I(f'v_add_f32 {v(r)}, {v(r)}, {v(t1)}')


I(f's_cmp_ge_u32 {s(S_WG)}, 256')
I('s_cbranch_scc1 L_end')
I(f's_load_dwordx16 {s(32, 16)}, s[0:1], 0')
I(f's_load_dwordx4 {s(48, 4)}, s[0:1], 64')
I(f's_load_dwordx2 {s(52, 2)}, s[0:1], 80')
stamp(0, -1)
I(f'v_lshrrev_b32 {v(T)}, 6, v0')
I(f'v_and_b32 {v(V_LANE)}, 63, v0')
I(f'v_readfirstlane_b32 {s(S_WAVE)}, {v(T)}')
I(f'v_mov_b32 {v(T + 2)}, 0')
I(f'v_mov_b32 {v(T + 3)}, 0')
I(f'v_mov_b32 {v(T + 1)}, {CNT}')
I(f'ds_write_b64 {v(T + 1)}, {v(T + 2, 2)}')
I(f'ds_write_b64 {v(T + 1)}, {v(T + 2, 2)} offset:8')
I(f's_cmp_lt_u32 {s(S_WAVE)}, 2')
I('s_cbranch_scc1 L_nocp')
CPV = T + 35
I(f's_getpc_b64 {s(S_TAG - 1, 2)}')
k.label('L_pc')
I(f's_lshr_b32 {s(S_T3)}, {s(S_WG)}, 2')
I(f's_and_b32 {s(S_T3)}, {s(S_T3)}, 6')
I(f's_and_b32 {s(S_T4)}, {s(S_WAVE)}, 1')
I(f's_add_u32 {s(S_T3)}, {s(S_T3)}, {s(S_T4)}')
I(f's_lshl_b32 {s(S_T3)}, {s(S_T3)}, 13')
I(f'v_lshl_add_u32 {v(CPV)}, {v(V_LANE)}, 7, {s(S_T3)}')
I(f'v_min_u32 {v(CPV)}, L_end-L_pc, {v(CPV)}')
I(f'global_load_dword {v(T + 17)}, {v(CPV)}, {s(S_TAG - 1, 2)}')
k.vmq.pop()
k.label('L_nocp')
I(f's_and_b32 {s(S_T0)}, {s(S_WG)}, 7')
I(f's_lshr_b32 {s(S_T1)}, {s(S_WG)}, 3')
I(f's_and_b32 {s(S_MT)}, {s(S_T0)}, 1')
I(f's_lshl_b32 {s(S_MT)}, {s(S_MT)}, 3')
I(f's_and_b32 {s(S_T2)}, {s(S_T1)}, 7')
I(f's_add_u32 {s(S_MT)}, {s(S_MT)}, {s(S_T2)}')
I(f's_lshr_b32 {s(S_T2)}, {s(S_T1)}, 3')
I(f's_and_b32 {s(S_TYPE)}, {s(S_T2)}, 1')
I(f's_lshr_b32 {s(S_T2)}, {s(S_T2)}, 1')
I(f's_and_b32 {s(S_IDX)}, {s(S_T0)}, 6')
I(f's_add_u32 {s(S_IDX)}, {s(S_IDX)}, {s(S_T2)}')
I(f's_lshl_b32 {s(S_FB)}, {s(S_MT)}, 4')
I(f's_lshl_b32 {s(S_T2)}, {s(S_TYPE)}, 3')
I(f's_add_u32 {s(S_FB)}, {s(S_FB)}, {s(S_T2)}')
I(f's_add_u32 {s(S_FB)}, {s(S_FB)}, {s(S_IDX)}')
I(f's_cmp_eq_u32 {s(S_TYPE)}, 0')
csel(S_PITCH, 3840, 3456)
LR, LP, LXA = T + 4, T + 5, T + 6
I(f'v_and_b32 {v(LR)}, 3, {v(V_LANE)}')
I(f'v_lshrrev_b32 {v(LP)}, 2, {v(V_LANE)}')
I(f's_lshl_b32 {s(S_T3)}, {s(S_FB)}, 3')
I(f's_add_u32 {s(S_T3)}, {s(S_T3)}, {s(S_WAVE)}')
I(f'v_lshl_add_u32 {v(LR)}, {v(LR)}, 1, {s(S_T3)}')
I(f'v_mul_u32_u24 {v(LXA)}, 1280, {v(LR)}')
I(f'v_lshl_add_u32 {v(LXA)}, {v(LP)}, 4, {v(LXA)}')
PFL = 0
I(f'v_and_b32 {v(T + 32)}, 15, {v(V_LANE)}')
I(f's_cmp_eq_u32 {s(S_TYPE)}, 0')
if '--attc' in sys.argv:
    I(f's_cmp_eq_u32 {s(S_TYPE)}, 5')
I(f's_cselect_b32 {s(S_T3)}, 8, 6')
I(f's_cselect_b32 {s(S_T4)}, {1280 - 384}, 0')
csel(S_M0B, 160, 448)
I(f'v_min_u32 {v(T + 32)}, {s(S_T3)}, {v(T + 32)}')
I(f'v_mul_u32_u24 {v(T + 33)}, 11, {v(T + 32)}')
I(f'v_lshrrev_b32 {v(T + 33)}, 5, {v(T + 33)}')
I(f'v_mul_u32_u24 {v(T + 33)}, {s(S_T4)}, {v(T + 33)}')
I(f'v_lshl_add_u32 {v(PFL)}, {v(T + 32)}, 7, {v(T + 33)}')
I(f'v_lshrrev_b32 {v(T + 32)}, 4, {v(V_LANE)}')
I(f'v_mad_u32_u24 {v(PFL)}, {v(T + 32)}, {s(S_PITCH)}, {v(PFL)}')
I(f's_and_b32 {s(S_T3)}, {s(S_IDX)}, 6')
I(f's_mul_i32 {s(S_M0B)}, {s(S_M0B)}, {s(S_T3)}')
I(f'v_add_u32 {v(PFL)}, {s(S_M0B)}, {v(PFL)}')
I(f's_and_b32 {s(S_KSTR)}, {s(S_MT)}, 7')
I(f's_lshl_b32 {s(S_KSTR)}, {s(S_KSTR)}, 1')
I(f's_and_b32 {s(S_T4)}, {s(S_IDX)}, 1')
I(f's_add_u32 {s(S_KSTR)}, {s(S_KSTR)}, {s(S_T4)}')
assert all((x * 11) >> 5 == x // 3 for x in range(9))
k.wait_all(vm=False, lg=True)
stamp(1, 2)
I('s_barrier')
srd(SRD_X, P_X, 2048 * 1280)
srd(SRD_DBG, P_DBG, 256)
XR = T + 8
TAGV = T + 36
I(f's_cmp_ge_u32 {s(S_WAVE)}, 2')
I('s_cbranch_scc1 L_pf')

for i in range(5):
    I(f'buffer_load_dwordx4 {v(XR + 4 * i, 4)}, {v(LXA)}, {s(SRD_X, 4)}, 0 offen offset:{256 * i}', tag='x')
I(f'buffer_load_dword {v(TAGV)}, {v(T + 2)}, {s(SRD_DBG, 4)}, 0 offen sc1')
srd(SRD_WS, P_WS, WS_REC)
I(f's_lshl_b32 {s(S_FOFF)}, {s(S_FB)}, {FS}')
XF = ACC
SA_ = T + 3
I(f'v_lshrrev_b32 {v(SA_)}, 4, {v(LR)}')
I(f'v_mul_u32_u24 {v(SA_)}, 20480, {v(SA_)}')
I(f'v_lshrrev_b32 {v(T)}, 4, {v(V_LANE)}')
I(f'v_lshl_add_u32 {v(SA_)}, {v(T)}, 10, {v(SA_)}')
I(f's_and_b32 {s(S_T4)}, {s(S_FB)}, 1')
I(f's_lshl_b32 {s(S_T4)}, {s(S_T4)}, 1')
I(f's_add_u32 {s(S_T4)}, {s(S_T4)}, {s(S_WAVE)}')
I(f's_lshl_b32 {s(S_T4)}, {s(S_T4)}, 8')
I(f'v_add_u32 {v(SA_)}, {s(S_T4)}, {v(SA_)}')
I(f'v_and_b32 {v(T)}, 15, {v(V_LANE)}')
I(f'v_lshl_add_u32 {v(SA_)}, {v(T)}, 4, {v(SA_)}')
I(f's_mov_b32 {s(S_T3)}, 0xffff0000')
stamp(2, 2)
if STAMPS and SMODE == 2:
    k.wait_vm_tag('x')
stamp(3, 2)
SUM = T + 4
for i in range(20):
    I(f'v_lshlrev_b32 {v(XF + 2 * i)}, 16, {v(XR + i)}')
    I(f'v_and_b32 {v(XF + 2 * i + 1)}, {s(S_T3)}, {v(XR + i)}')
    if i == 1:
        I(f'v_pk_add_f32 {v(SUM, 2)}, {v(XF, 2)}, {v(XF + 2, 2)}')
    elif i > 1:
        I(f'v_pk_add_f32 {v(SUM, 2)}, {v(SUM, 2)}, {v(XF + 2 * i, 2)}')
I(f'v_add_f32 {v(SUM)}, {v(SUM)}, {v(SUM + 1)}')
row_sum(SUM, SUM + 1)
MEAN = T + 6
I(f'v_mul_f32 {v(MEAN)}, {f32(1.0 / 640)}, {v(SUM)}')
I(f'v_mov_b32 {v(MEAN + 1)}, {v(MEAN)}')
SQ = T + 4
DV = T + 28
for i in range(20):
    d = DV + 2 * (i & 1)
    I(f'v_pk_add_f32 {v(d, 2)}, {v(XF + 2 * i, 2)}, {v(MEAN, 2)} neg_lo:[0,1] neg_hi:[0,1]')
    if i == 0:
        I(f'v_pk_mul_f32 {v(SQ, 2)}, {v(d, 2)}, {v(d, 2)}')
    else:
        I(f'v_pk_fma_f32 {v(SQ, 2)}, {v(d, 2)}, {v(d, 2)}, {v(SQ, 2)}')
I(f'v_add_f32 {v(SQ)}, {v(SQ)}, {v(SQ + 1)}')
row_sum(SQ, SQ + 1)
I(f'v_mul_f32 {v(SQ)}, {f32(1.0 / 640)}, {v(SQ)}')
bf16r(SQ, SQ)
I(f'v_add_f32 {v(SQ)}, 0x37280000, {v(SQ)}')
bf16r(SQ, SQ)
I(f'v_sqrt_f32 {v(SQ)}, {v(SQ)}')
bf16r(MEAN, MEAN)
bf16r(SQ, SQ)
I(f'v_rcp_f32 {v(SQ + 1)}, {v(SQ)}')
I(f'v_mov_b32 {v(MEAN + 1)}, {v(MEAN)}')
I(f'v_fma_f32 {v(SQ)}, -{v(SQ)}, {v(SQ + 1)}, 1.0')
I(f'v_fma_f32 {v(SQ)}, {v(SQ)}, {v(SQ + 1)}, {v(SQ + 1)}')
I(f'v_mov_b32 {v(SQ + 1)}, {v(SQ)}')
for i in range(20):
    x2 = XF + 2 * i
    I(f'v_pk_add_f32 {v(x2, 2)}, {v(x2, 2)}, {v(MEAN, 2)} neg_lo:[0,1] neg_hi:[0,1]')
    I(f'v_cvt_pk_bf16_f32 {v(XR + i)}, {v(x2)}, {v(x2 + 1)}')
    I(f'v_lshlrev_b32 {v(x2)}, 16, {v(XR + i)}')
    I(f'v_and_b32 {v(x2 + 1)}, {s(S_T3)}, {v(XR + i)}')
    I(f'v_pk_mul_f32 {v(x2, 2)}, {v(x2, 2)}, {v(SQ, 2)}')
    I(f'v_cvt_pk_bf16_f32 {v(XR + i)}, {v(x2)}, {v(x2 + 1)}')
    if i % 4 == 3:
        ii = i // 4
        I(f's_mov_b32 {s(S_T4)}, {XN_T + 4096 * ii}')
        I(f'buffer_store_dwordx4 {v(XR + 4 * ii, 4)}, {v(SA_)}, {s(SRD_WS, 4)}, {s(S_T4)} offen sc1')
stamp(1)
stamp(4, 2)
if opt('gate', 1) == 2:
    I(f'v_mov_b32 {v(T + 1)}, {CNT}')
    I(f'v_mov_b32 {v(T)}, 1')
    I('s_mov_b64 exec, 1')
    I(f'ds_add_u32 {v(T + 1)}, {v(T)} offset:8')
    I('s_mov_b64 exec, -1')
I(f'v_readfirstlane_b32 {s(S_TAG)}, {v(TAGV)}')
I(f'v_mov_b32 {v(T + 1)}, 0')
I(f's_mov_b32 {s(S_SPIN)}, 0')
I(f's_cmp_lg_u32 {s(S_TAG)}, 0')
I('s_cbranch_scc1 L_tagok')
k.label('L_tagpoll')
I(f'buffer_load_dword {v(TAGV)}, {v(T + 1)}, {s(SRD_DBG, 4)}, 0 offen sc1')
k.wait_all()
I(f'v_readfirstlane_b32 {s(S_TAG)}, {v(TAGV)}')
I(f's_add_u32 {s(S_SPIN)}, {s(S_SPIN)}, 1')
I(f's_cmp_lg_u32 {s(S_TAG)}, 0')
I('s_cbranch_scc1 L_tagok')
I(f's_cmp_lt_u32 {s(S_SPIN)}, 0x40000')
I('s_cbranch_scc1 L_tagpoll')
k.label('L_tagok')
I(f'v_mov_b32 {v(T + 1)}, {CNT}')
I(f'ds_write_b32 {v(T + 1)}, {v(TAGV)} offset:4')
I(f'v_mov_b32 {v(T)}, 1')
k.wait_all()
stamp(5, 2)
I('s_mov_b64 exec, 1')
I(f'ds_add_rtn_u32 {v(T + 2)}, {v(T + 1)}, {v(T)}')
I('s_mov_b64 exec, -1')
I(f'v_readfirstlane_b32 {s(S_T3)}, {v(T + 2)}')
I(f's_cmp_eq_u32 {s(S_T3)}, 1')
I('s_cbranch_scc0 L_common')
flag_store(LNF, S_FOFF, T)
I('s_branch L_common')

k.vmq = []
k.lgq = []
k.label('L_pf')
I(f's_cmp_lt_u32 {s(S_WG)}, 8')
I('s_cbranch_scc0 L_notag')
I(f's_cmp_eq_u32 {s(S_WAVE)}, 2')
I('s_cbranch_scc0 L_notag')
I(f's_memrealtime {s(S_T4, 2)}')
I(f's_or_b32 {s(S_T4)}, {s(S_T4)}, 1')
I(f'v_mov_b32 {v(T + 2)}, {s(S_T4)}')
I('s_mov_b64 exec, 1')
I(f'buffer_atomic_cmpswap {v(T + 2, 2)}, {v(T + 3)}, {s(SRD_DBG, 4)}, 0 offen sc1')
I('s_mov_b64 exec, -1')
k.label('L_notag')


def srd_b():
    I(f's_cmp_eq_u32 {s(S_TYPE)}, 0')
    I(f's_cselect_b32 {s(SRD_B)}, {s(P_WQKV)}, {s(P_W1)}')
    I(f's_cselect_b32 {s(SRD_B + 1)}, {s(P_WQKV + 1)}, {s(P_W1 + 1)}')
    csel(SRD_B + 2, 640 * 3840, 640 * 3456)
    I(f's_mov_b32 {s(SRD_B + 3)}, 0x00020000')


if opt('pf0', 0):
    I(f's_cmp_eq_u32 {s(S_WAVE)}, 2')
    I(f's_cselect_b32 {s(SRD_B)}, {s(P_WQKV)}, {s(P_W1)}')
    I(f's_cselect_b32 {s(SRD_B + 1)}, {s(P_WQKV + 1)}, {s(P_W1 + 1)}')
    csel(SRD_B + 2, 640 * 3840, 640 * 3456)
    I(f's_mov_b32 {s(SRD_B + 3)}, 0x00020000')
    csel(S_T3, 9600, 8704)
    I(f's_mul_i32 {s(S_T3)}, {s(S_T3)}, {s(S_WG)}')
    I(f'v_lshlrev_b32 {v(T + 20)}, 7, {v(V_LANE)}')
    I(f'buffer_load_dword {v(T + 21)}, {v(T + 20)}, {s(SRD_B, 4)}, {s(S_T3)} offen')
    I(f'v_min_u32 {v(T + 20)}, {10 * 128}, {v(T + 20)}')
    I(f's_add_u32 {s(S_T3)}, {s(S_T3)}, 8192')
    I(f'buffer_load_dword {v(T + 22)}, {v(T + 20)}, {s(SRD_B, 4)}, {s(S_T3)} offen')
    if opt('pf0', 0) == 2:
        k.wait_all(vm=True, lg=False)
srd_b()
I(f's_lshl_b32 {s(S_T3)}, {s(S_KSTR)}, 1')
I(f's_and_b32 {s(S_T4)}, {s(S_WAVE)}, 1')
I(f's_add_u32 {s(S_T3)}, {s(S_T3)}, {s(S_T4)}')
I(f's_lshl_b32 {s(S_T4)}, {s(S_PITCH)}, 2')
I(f's_mul_i32 {s(S_SOFF)}, {s(S_T3)}, {s(S_T4)}')
I(f's_lshl_b32 {s(S_T4)}, {s(S_PITCH)}, 7')
I(f'buffer_load_dword {v(T + 12)}, {v(PFL)}, {s(SRD_B, 4)}, {s(S_SOFF)} offen')
I(f's_add_u32 {s(S_SOFF)}, {s(S_SOFF)}, {s(S_T4)}')
I(f'buffer_load_dword {v(T + 13)}, {v(PFL)}, {s(SRD_B, 4)}, {s(S_SOFF)} offen')
for i in range(2, opt('pf1', 3)):
    I(f's_add_u32 {s(S_SOFF)}, {s(S_SOFF)}, {s(S_T4)}')
    I(f'buffer_load_dword {v(T + 12 + i)}, {v(PFL)}, {s(SRD_B, 4)}, {s(S_SOFF)} offen')
RT_U, RT_KS, RT_CQ, RT_A, RT_B, RT_K0, RT_SCR, RT_DST = 28, 29, 30, 31, 56, 57, 55, 54
I(f's_lshl_b32 {s(RT_U)}, {s(S_WG)}, 1')
I(f's_and_b32 {s(S_T3)}, {s(S_WAVE)}, 1')
I(f's_add_u32 {s(RT_U)}, {s(RT_U)}, {s(S_T3)}')
I(f's_mul_i32 {s(RT_SCR)}, {s(S_T3)}, {8 * RROW}')
I(f's_add_u32 {s(RT_SCR)}, {s(RT_SCR)}, {7 * SLOT}')
I(f's_mul_i32 {s(RT_KS)}, {s(RT_U)}, 13108')
I(f's_lshr_b32 {s(RT_KS)}, {s(RT_KS)}, 16')
I(f's_mul_i32 {s(RT_CQ)}, {s(RT_KS)}, 5')
I(f's_sub_u32 {s(RT_CQ)}, {s(RT_U)}, {s(RT_CQ)}')
assert all((u * 13108) >> 16 == u // 5 for u in range(512))
I(f's_cmp_lt_u32 {s(RT_KS)}, 20')
I(f's_cselect_b32 {s(SRD_RT)}, {s(P_WO)}, {s(P_W2)}')
I(f's_cselect_b32 {s(SRD_RT + 1)}, {s(P_WO + 1)}, {s(P_W2 + 1)}')
csel(SRD_RT + 2, 640 * 1280, 1728 * 1280)
I(f's_mov_b32 {s(SRD_RT + 3)}, 0x00020000')
csel(RT_A, 8 * 1280, 4 * 1280)
csel(RT_B, 4 * 1280, 16 * 1280)
I(f's_cselect_b32 {s(RT_K0)}, 0, 20')
I(f's_sub_u32 {s(RT_K0)}, {s(RT_KS)}, {s(RT_K0)}')
I(f's_mul_i32 {s(RT_K0)}, {s(RT_K0)}, {32 * 1280}')
I(f's_lshl_b32 {s(S_T3)}, {s(RT_CQ)}, 8')
I(f's_add_u32 {s(RT_K0)}, {s(RT_K0)}, {s(S_T3)}')
RTV, RTL = T + 8, T + 9
I(f'v_lshrrev_b32 {v(RTV)}, 4, {v(V_LANE)}')
I(f'v_mul_u32_u24 {v(RTV)}, 1280, {v(RTV)}')
I(f'v_and_b32 {v(T)}, 15, {v(V_LANE)}')
I(f'v_lshl_add_u32 {v(RTV)}, {v(T)}, 4, {v(RTV)}')
for t_ in range(8):
    if t_ == 4:
        I(f's_add_u32 {s(S_T3)}, {s(RT_K0)}, {s(RT_B)}')
    elif t_ == 0:
        I(f's_mov_b32 {s(S_T3)}, {s(RT_K0)}')
    else:
        I(f's_add_u32 {s(S_T3)}, {s(S_T3)}, {s(RT_A)}')
    I(f's_add_u32 m0, {s(RT_SCR)}, {1024 * t_}')
    I(f'buffer_load_dwordx4 {v(RTV)}, {s(SRD_RT, 4)}, {s(S_T3)} offen lds')
I(f's_mul_i32 {s(RT_DST)}, {s(RT_KS)}, 40960')
I(f's_lshl_b32 {s(S_T4)}, {s(RT_CQ)}, 13')
I(f's_add_u32 {s(RT_DST)}, {s(RT_DST)}, {s(S_T4)}')
I(f's_add_u32 {s(RT_DST)}, {s(RT_DST)}, {W_T}')
I(f's_cmp_lt_u32 {s(RT_KS)}, 74')
I(f's_cselect_b32 {s(RT_DST)}, {s(RT_DST)}, {OOB}')

k.label('L_common')
k.vmq = [(set(), 'unknown')]
k.lgq = []
I('s_nop 4')
I(f's_lshl_b32 {s(S_FOFF)}, {s(S_FB)}, {FS}')
if '--map84' in sys.argv:
    I(f's_lshr_b32 {s(S_M2)}, {s(S_T0)}, 1')
    I(f's_lshl_b32 {s(S_M2)}, {s(S_M2)}, 3')
    I(f's_and_b32 {s(S_T2)}, {s(S_T1)}, 7')
    I(f's_add_u32 {s(S_M2)}, {s(S_M2)}, {s(S_T2)}')
    I(f's_and_b32 {s(S_NT)}, {s(S_T0)}, 1')
    I(f's_lshl_b32 {s(S_NT)}, {s(S_NT)}, 2')
    I(f's_lshr_b32 {s(S_T2)}, {s(S_T1)}, 3')
    I(f's_add_u32 {s(S_NT)}, {s(S_NT)}, {s(S_T2)}')
elif opt('map', 0) in (1, 2):
    I(f's_lshl_b32 {s(S_M2)}, {s(S_T0)}, 2')
    I(f's_lshr_b32 {s(S_T2)}, {s(S_T1)}, 3')
    if opt('map', 0) == 2:
        I(f's_add_u32 {s(S_T2)}, {s(S_T2)}, {s(S_T1)}')
        I(f's_and_b32 {s(S_T2)}, {s(S_T2)}, 3')
    I(f's_add_u32 {s(S_M2)}, {s(S_M2)}, {s(S_T2)}')
    I(f's_and_b32 {s(S_NT)}, {s(S_T1)}, 7')
else:
    I(f's_lshl_b32 {s(S_M2)}, {s(S_T0)}, 2')
    I(f's_and_b32 {s(S_T2)}, {s(S_T1)}, 3')
    I(f's_add_u32 {s(S_M2)}, {s(S_M2)}, {s(S_T2)}')
    I(f's_lshr_b32 {s(S_NT)}, {s(S_T1)}, 2')
I(f's_mul_i32 {s(S_START)}, {s(S_IDX)}, 7')
I(f's_min_u32 {s(S_START)}, {s(S_START)}, 47')
I(f's_lshl_b32 {s(S_T3)}, {s(S_KSTR)}, 2')
I(f's_add_u32 {s(S_T3)}, {s(S_T3)}, {s(S_WAVE)}')
I(f's_add_u32 {s(S_T3)}, {s(S_T3)}, 64')
I(f's_lshl_b32 {s(S_T4)}, {s(S_PITCH)}, 2')
I(f's_mul_i32 {s(S_T3)}, {s(S_T3)}, {s(S_T4)}')
I(f'v_add_u32 {v(PFL)}, {s(S_T3)}, {v(PFL)}')
I(f's_lshl_b32 {s(S_KSTR)}, {s(S_PITCH)}, 5')
I(f'v_lshlrev_b32 {v(V_L16)}, 4, {v(V_LANE)}')
I(f'v_add_u32 {v(V_L16B)}, 4096, {v(V_L16)}')
srd(SRD_B1, P_B1, 1728 * 2)
I(f'v_lshlrev_b32 {v(T + 7)}, 3, {v(V_LANE)}')
I(f's_lshl_b32 {s(S_T5)}, {s(S_START)}, 6')
I(f'buffer_load_dwordx2 {v(BIAS, 2)}, {v(T + 7)}, {s(SRD_B1, 4)}, {s(S_T5)} offen', tag='pf')
srd(SRD_WS, P_WS, WS_REC)
srd(SRD_OUT, P_OUT, 2048 * 1280)
srd(SRD_B2, P_B2, 640 * 2)
srd_b()
c, hf, sg = T, T + 1, T + 2
I(f'v_and_b32 {v(c)}, 31, {v(V_LANE)}')
I(f'v_lshrrev_b32 {v(hf)}, 5, {v(V_LANE)}')
S_CB = 34
I(f's_cmp_eq_u32 {s(S_TYPE)}, 0')
if '--attc' in sys.argv:
    I(f's_cmp_eq_u32 {s(S_TYPE)}, 5')
I(f's_cselect_b32 {s(S_T3)}, 29, 27')
I(f's_cselect_b32 {s(S_T4)}, 1120, 0')
I(f's_mul_i32 {s(S_CB)}, {s(S_IDX)}, 160')
I(f's_lshl_b32 {s(S_T5)}, {s(S_START)}, 6')
I(f's_cmp_eq_u32 {s(S_TYPE)}, {5 if "--attc" in sys.argv else 0}')
I(f's_cselect_b32 {s(S_CB)}, {s(S_CB)}, {s(S_T5)}')
I(f'v_min_u32 {v(c)}, {s(S_T3)}, {v(c)}')
I(f'v_mul_u32_u24 {v(sg)}, 205, {v(c)}')
I(f'v_lshrrev_b32 {v(sg)}, 11, {v(sg)}')
I(f'v_mul_u32_u24 {v(sg)}, {s(S_T4)}, {v(sg)}')
I(f'v_lshl_add_u32 {v(sg)}, {v(c)}, 4, {v(sg)}')
I(f'v_add_u32 {v(sg)}, {s(S_CB)}, {v(sg)}')
I(f's_lshl_b32 {s(S_T3)}, {s(S_PITCH)}, 2')
I(f'v_mad_u32_u24 {v(V_DMA)}, {v(hf)}, {s(S_T3)}, {v(sg)}')
ZD = opt('zd', 0)
if ZD:
    I(f's_and_b32 {s(S_T3)}, {s(S_FB)}, 15')
    I(f's_cmp_eq_u32 {s(S_T3)}, 14')
    I(f's_cselect_b32 {s(S_T3)}, 19, 64')
    I(f'v_cmp_lt_u32 vcc, {s(S_T3)}, {v(c)}')
    I(f'v_mov_b32 {v(sg)}, {OOB}')
    I(f'v_cndmask_b32 {v(V_DMA)}, {v(V_DMA)}, {v(sg)}, vcc')
I(f's_sub_u32 {s(S_T3)}, {s(S_PITCH)}, {RROW}')
for j in range(1, 4):
    I(f'v_add_u32 {v(V_DMA + j)}, {s(S_T3)}, {v(V_DMA + j - 1)}')
assert all((c_ * 205) >> 11 == c_ // 10 for c_ in range(32))
NPRE = opt('npre', 4)
I(f's_mul_i32 {s(S_M0B)}, {s(S_WAVE)}, {4 * RROW}')
I(f's_lshl_b32 {s(S_T3)}, {s(S_PITCH)}, 3')
I(f's_mul_i32 {s(S_SOFF)}, {s(S_WAVE)}, {s(S_T3)}')
I(f's_mul_i32 {s(S_T3)}, {s(S_KSTR)}, {NPRE}')
I(f's_add_u32 {s(S_SOFF)}, {s(S_SOFF)}, {s(S_T3)}')
if '--noD' in sys.argv:
    I(f's_mov_b32 {s(S_SOFF)}, {OOB // 2}')
I(f'v_lshrrev_b32 {v(LP)}, 2, {v(V_LANE)}')
I(f'v_mul_u32_u24 {v(V_TR0)}, {RROW}, {v(LP)}')
I(f'v_and_b32 {v(T)}, 3, {v(V_LANE)}')
I(f'v_lshl_add_u32 {v(V_TR0)}, {v(T)}, 3, {v(V_TR0)}')
I(f'v_add_u32 {v(V_TR1)}, {4 * SLOT}, {v(V_TR0)}')
I(f's_mul_i32 {s(S_HB)}, {s(S_WAVE)}, 3')
I(f's_min_u32 {s(S_HB)}, {s(S_HB)}, 7')
I(f's_add_u32 {s(S_HB)}, {s(S_HB)}, 5')
I(f's_lshl_b32 {s(S_T3)}, {s(S_HB)}, 5')
I(f'v_add_u32 {v(V_TRH0)}, {s(S_T3)}, {v(V_TR0)}')
I(f'v_add_u32 {v(V_TRH1)}, {s(S_T3)}, {v(V_TR1)}')
I(f'v_add_u32 {v(V_X)}, {HALO}, {v(V_L16)}')
V_AO = 250
I(f'v_bfe_u32 {v(T)}, {v(V_LANE)}, 2, 2')
I(f'v_lshlrev_b32 {v(V_AO)}, 8, {v(T)}')
I(f'v_lshrrev_b32 {v(T)}, 4, {v(V_LANE)}')
I(f'v_lshl_add_u32 {v(V_AO)}, {v(T)}, 6, {v(V_AO)}')
I(f'v_and_b32 {v(T)}, 3, {v(V_LANE)}')
I(f'v_lshl_add_u32 {v(V_AO)}, {v(T)}, 4, {v(V_AO)}')
I(f'v_add_u32 {v(V_AO + 1)}, 4096, {v(V_AO)}')
I(f's_lshl_b32 {s(S_MB0)}, {s(S_MT)}, 3')
I(f's_lshl_b32 {s(S_T3)}, {s(S_WAVE)}, 1')
I(f's_add_u32 {s(S_MB0)}, {s(S_MB0)}, {s(S_T3)}')
I(f's_mul_i32 {s(S_AO)}, {s(S_MB0)}, 20480')
if '--noA' in sys.argv:
    I(f's_mov_b32 {s(S_AO)}, {OOB // 2}')
for q in range(1, 10):
    I(f's_add_u32 {s(S_AO + q)}, {s(S_AO)}, {XN_T + 4096 * q}')
I(f'v_and_b32 {v(T)}, 15, {v(V_LANE)}')
I(f's_lshl_b32 {s(S_T3)}, {s(S_MT)}, {4 + FS}')
I(f's_add_u32 {s(S_T3)}, {s(S_T3)}, {LNF}')
I(f'v_lshl_add_u32 {v(V_PA)}, {v(T)}, {FS}, {s(S_T3)}')
I(f's_cmp_eq_u32 {s(S_TYPE)}, 0')
I(f's_cselect_b32 {s(S_T3)}, {2 << FS}, 0')
I(f's_cmp_eq_u32 {s(S_MT)}, 0')
I(f's_cselect_b32 {s(S_T3)}, 0, {s(S_T3)}')
I(f'v_subrev_u32 {v(T + 1)}, {s(S_T3)}, {v(V_PA)}')
I(f'v_lshrrev_b32 {v(T)}, 1, {v(V_LANE)}')
I(f'v_cmp_eq_u32 vcc, 8, {v(T)}')
I(f'v_cndmask_b32 {v(V_PA)}, {v(V_PA)}, {v(T + 1)}, vcc')
I(f's_mul_i32 {s(S_T3)}, {s(S_WAVE)}, 14')
I(f's_add_u32 {s(S_T4)}, {s(S_T3)}, 7')
I(f's_min_u32 {s(S_T4)}, {s(S_T4)}, 47')
I(f's_mul_i32 {s(S_T5)}, {s(S_NT)}, 5120')
I(f's_add_u32 {s(S_T5)}, {s(S_T5)}, {W_T + 20 * 40960}')
I(f's_mul_i32 {s(S_W2A)}, {s(S_T3)}, 40960')
I(f's_add_u32 {s(S_W2A)}, {s(S_W2A)}, {s(S_T5)}')
I(f's_mul_i32 {s(S_W2B)}, {s(S_T4)}, 40960')
I(f's_add_u32 {s(S_W2B)}, {s(S_W2B)}, {s(S_T5)}')
I(f's_lshr_b32 {s(S_T3)}, {s(S_M2)}, 1')
I(f's_lshl_b32 {s(S_T3)}, {s(S_T3)}, {4 + FS}')
I(f's_lshl_b32 {s(S_T4)}, {s(S_WAVE)}, {1 + FS}')
I(f's_add_u32 {s(S_T3)}, {s(S_T3)}, {s(S_T4)}')
I(f's_add_u32 {s(S_T3)}, {s(S_T3)}, {P1H + (8 << FS)}')
I(f'v_and_b32 {v(T)}, 1, {v(V_LANE)}')
I(f'v_lshl_add_u32 {v(V_PF)}, {v(T)}, {FS}, {s(S_T3)}')

I(f's_cmp_lt_u32 {s(S_WAVE)}, 2')
I('s_cbranch_scc1 L_pro_join')

VW_M0, VW_SO = 50, 52
I(f's_and_b32 {s(S_T3)}, {s(S_WAVE)}, 1')
I(f's_mul_i32 {s(VW_M0)}, {s(S_T3)}, {8 * RROW}')
I(f's_add_u32 {s(VW_M0 + 1)}, {s(VW_M0)}, {4 * RROW}')
I(f's_lshl_b32 {s(S_T4)}, {s(S_PITCH)}, 4')
I(f's_mul_i32 {s(VW_SO)}, {s(S_T3)}, {s(S_T4)}')
I(f's_lshl_b32 {s(S_T4)}, {s(S_PITCH)}, 3')
I(f's_add_u32 {s(VW_SO + 1)}, {s(VW_SO)}, {s(S_T4)}')
I(f'v_lshlrev_b32 {v(RTL)}, 8, {v(LP)}')
I(f'v_and_b32 {v(T)}, 3, {v(V_LANE)}')
I(f'v_lshl_add_u32 {v(RTL)}, {v(T)}, 3, {v(RTL)}')
I(f'v_add_u32 {v(RTL)}, {s(RT_SCR)}, {v(RTL)}')
stamp(2, 2)
k.wait_vm_tag('pf')
GATE = opt('gate', 1)
if GATE:
    I(f'v_mov_b32 {v(T + 1)}, {CNT}')
    k.label('L_gate')
    I(f'ds_read_b32 {v(T)}, {v(T + 1)} offset:{0 if GATE == 1 else 8}')
    I(f'v_readfirstlane_b32 {s(S_T4)}, {v(T)}')
    I(f's_cmp_ge_u32 {s(S_T4)}, 2')
    I('s_cbranch_scc0 L_gate')
stamp(3, 2)
for sl in range(NPRE):
    for h in range(2):
        I(f's_add_u32 m0, {s(VW_M0 + h)}, {sl * SLOT}')
        for j in range(4):
            dma1(j, VW_SO + h, ('ring', sl))
        I(f's_add_u32 {s(VW_SO + h)}, {s(VW_SO + h)}, {s(S_KSTR)}')
    if sl >= 1:
        k.wait_vm_tag(('ring', sl - 1))
    if sl == 1:
        stamp(4, 2)
        RF = ACC
        for nb in range(8):
            I(f'ds_read_b64_tr_b16 {v(RF + 4 * nb, 2)}, {v(RTL)} offset:{32 * nb}')
            I(f'ds_read_b64_tr_b16 {v(RF + 4 * nb + 2, 2)}, {v(RTL)} offset:{32 * nb + 4096}')
RTLATE = 0


def rt_stores():
    for nb in range(8):
        I(f'buffer_store_dwordx4 {v(RF + 4 * nb, 4)}, {v(V_L16 if nb < 4 else V_L16B)}, {s(SRD_WS, 4)}, {s(RT_DST)} offen offset:{1024 * (nb & 3)} sc1', tag='rts')


if not RTLATE:
    rt_stores()
k.wait_vm_tag(('ring', NPRE - 1))
stamp(5, 2)
stamp(1)
k.wait_all(vm=False, lg=True)

k.label('L_pro_join')
k.vmq = [(regs_of(v(BIAS, 2)), 'pf')]
k.lgq = []
I('s_nop 4')
I(f's_mul_i32 {s(S_WOB)}, {s(S_WAVE)}, 40960')
I(f's_mul_i32 {s(S_T3)}, {s(S_NT)}, 5120')
I(f's_add_u32 {s(S_WOB)}, {s(S_WOB)}, {s(S_T3)}')
I(f's_add_u32 {s(S_WOB)}, {s(S_WOB)}, {W_T}')
I(f's_mul_i32 {s(S_WOM)}, {s(S_WAVE)}, {5 * 1024}')
if '--noW' in sys.argv:
    for r_ in (S_W2A, S_W2B, S_WOB):
        I(f's_mov_b32 {s(r_)}, {OOB // 2}')
I(f's_cmp_eq_u32 {s(S_WAVE)}, 3')
I(f's_cselect_b32 {s(S_LAST)}, {OOB}, 0')
I(f's_cmp_eq_u32 {s(S_TYPE)}, 1')
I('s_cbranch_scc1 L_ffn')
st_join = k.state()


def ln_wait():
    lab = k.newlabel('L_lnw')
    I(f's_cmp_eq_u32 {s(S_WAVE)}, 0')
    I(f's_cbranch_scc0 {lab}')
    st_ = k.state()
    stamp(6, 2)
    poll(V_PA, 'ln')
    k.label(lab)
    k.set_state(st_)
    k.wait_all(vm=False, lg=True)
    stamp(7, 2)
    I('s_barrier')
    stamp(8, 2)


def wt_flag():
    I(f's_lshr_b32 {s(S_T3)}, {s(S_WG)}, 2')
    I(f's_lshl_b32 {s(S_T3)}, {s(S_T3)}, {WS_}')
    I(f's_and_b32 {s(S_T4)}, {s(S_WG)}, 3')
    I(f's_lshl_b32 {s(S_T4)}, {s(S_T4)}, 2')
    I(f's_add_u32 {s(S_T3)}, {s(S_T3)}, {s(S_T4)}')
    I(f's_add_u32 {s(S_T3)}, {s(S_T3)}, {WTF}')
    I(f's_cmp_eq_u32 {s(S_WAVE)}, 1')
    I(f's_cselect_b32 {s(S_T3)}, {s(S_T3)}, {OOB}')
    I(f'v_mov_b32 {v(T)}, {s(S_TAG)}')
    I(f'v_lshlrev_b32 {v(T + 1)}, 24, {v(V_LANE)}')
    I(f'buffer_store_dword {v(T)}, {v(T + 1)}, {s(SRD_WS, 4)}, {s(S_T3)} offen sc1')


def tag_fetch():
    I(f'v_mov_b32 {v(T + 1)}, {CNT}')
    I(f'ds_read_b32 {v(T)}, {v(T + 1)} offset:4')
    I(f'v_readfirstlane_b32 {s(S_TAG)}, {v(T)}')


AWN = 6


def areg_att(ks, rb):
    return a((28 + (ks % AWN) * 2 + rb) * 4, 4)


def areg_ffn(ks, rb):
    return a((ks * 2 + rb) * 4, 4)


def load_A(areg, ks, rb):
    I(f'buffer_load_dwordx4 {areg(ks, rb)}, {v(V_AO)}, {s(SRD_WS, 4)}, {s(S_AO + rb * 5 + ks // 4)} offen offset:{(ks & 3) * 1024} sc1')


LAK = opt('lak', 4)
BAR1 = opt('bar1', 0)


def pre_loads():
    for ks in range(LAK):
        if ks >= NPRE:
            I(f's_add_u32 m0, {s(S_M0B)}, {ks * SLOT}')
            for j in range(4):
                dma1(j, S_SOFF, ('dma', ks))
            I(f's_add_u32 {s(S_SOFF)}, {s(S_SOFF)}, {s(S_KSTR)}')
        for rb in range(2):
            load_A(areg_att, ks, rb)


W2ORDER = list(range(40, 64)) + list(range(28))
NW2E = len(W2ORDER)
W2ALL = opt('w2all', 1)
NW2X = 69 if W2ALL else NW2E
WO_EARLY, WO_LATE = (0, 1, 2), (3, 4)
YSTEP = [(0, p) for p in range(4)] + [(1, p) for p in range(4)] + [(0, p) for p in range(4, 7)] + [(1, p) for p in range(4, 7)]


def w2reg(st, nb):
    f = st * 5 + nb
    if W2ALL:
        if f < NW2E:
            return a(4 * W2ORDER[f], 4)
        if f < 64:
            return a(4 * (28 + f - NW2E), 4)
        return v(W2V + 4 * (f - 64), 4) if f < 69 else a(4 * W2ORDER[0], 4)
    return a(4 * W2ORDER[f % NW2E], 4)


def w2load(f):
    st, nb = divmod(f, 5)
    ab, p = YSTEP[st]
    sb = S_W2B if ab else S_W2A
    if (ab, p) == (0, 5) and nb == 0:
        I(f's_add_u32 {s(sb)}, {s(sb)}, {s(S_LAST)}')
    I(f'buffer_load_dwordx4 {w2reg(st, nb)}, {v(V_L16 if nb < 4 else V_L16B)}, {s(SRD_WS, 4)}, {s(sb)} offen offset:{(nb & 3) * 1024} sc1')
    if nb == 4:
        I(f's_add_u32 {s(sb)}, {s(sb)}, 40960')


def wodma(i, nb):
    if nb == 0:
        I(f's_add_u32 {s(S_T5)}, {s(S_WOB)}, {i * 4 * 40960}')
    if nb == 0 or nb == 4:
        I(f's_add_u32 m0, {s(S_WOM)}, {LDS_WO + (i * 20 + (4 if nb == 4 else 0)) * 1024}')
    I(f'buffer_load_dwordx4 {v(V_L16 if nb < 4 else V_L16B)}, {s(SRD_WS, 4)}, {s(S_T5)} offen offset:{(nb & 3) * 1024} sc1 lds')


def cost(e):
    if e[0].startswith(('buffer_', 'global_', 'v_pk_') + TRANS):
        return 8
    return 4


def mainloop(steps, areg, aloads, first_c_zero, w2plan, dma_pre, extra_fill, at_sync):
    LA = 7
    halo = any(it[1] >= 100 for it in steps[0])
    items = [(t_, pos) + it for t_ in range(20) for pos, it in enumerate(steps[t_])]
    N = len(items)
    aux = [[] for _ in range(20)]
    for t_ in range(20):
        kn = t_ + LAK
        al = [lambda kk=kk, rb=rb: load_A(areg, kk, rb) for kk in aloads[t_] for rb in range(2)]
        dm = []
        if NPRE <= kn < 20:
            for j in range(4):
                def f(j=j, kn=kn):
                    if j == 0:
                        dma_pre(kn)
                        I(f's_add_u32 m0, {s(S_M0B)}, {(kn % NSLOT) * SLOT}')
                    dma1(j, S_SOFF, ('dma', kn))
                    if j == 3:
                        I(f's_add_u32 {s(S_SOFF)}, {s(S_SOFF)}, {s(S_KSTR)}')
                dm.append(f)
        h_ = len(al) // 2
        aux[t_] = al[:h_] + dm[:2] + al[h_:] + dm[2:]
    WTK = opt('wtka', 10) if halo else opt('wtkf', 14)
    assert WTK % 2 == 0
    aux[WTK - 3].append(lambda: chk_issue(V_PA, 4))
    WFK = opt('wfk', 4) if RTLATE else 2
    aux[WFK].insert(0, wt_flag)
    if opt('pf1', 3) < 4:
        aux[0].append(lambda: I(f'buffer_load_dword {v(T + 3)}, {v(PFL)}, {s(SRD_B, 4)}, 0 offen'))

    def pf2b():
        I(f's_lshl_b32 {s(S_T3)}, {s(S_PITCH)}, 8')
        I(f'buffer_load_dword {v(T + 2)}, {v(PFL)}, {s(SRD_B, 4)}, {s(S_T3)} offen')
    if opt('pf1', 3) < 5:
        aux[opt('pf2k', 1)].append(pf2b)
    f = 0
    for t_ in range(WTK, 20):
        for _ in range(w2plan(t_, f)):
            if f < NW2E:
                aux[t_].append(lambda f=f: w2load(f))
                f += 1
    w2done = f
    fill = []
    for t_ in range(20):
        mem = [e for fn in aux[t_] for e in k.record(fn)]
        oth = extra_fill(t_)
        mix, i, j = [], 0, 0
        while i < len(mem) or j < len(oth):
            if j >= len(oth) or (i < len(mem) and i * len(oth) <= j * len(mem)):
                mix.append(mem[i])
                i += 1
            else:
                mix.append(oth[j])
                j += 1
        fill.append(mix)

    def rd(n):
        t_, pos, ks, blk, off = items[n]
        sl = t_ % NSLOT
        w = WIN + 4 * (n % 8)
        if blk < 100:
            base = V_TR0 if sl < 4 else V_TR1
        else:
            base = V_TRH0 if sl < 4 else V_TRH1
        o = (sl % 4) * SLOT + off
        if '--halfrd' in sys.argv and n >= 8 and (n // 8) % 2 == 1:
            return
        I(f'ds_read_b64_tr_b16 {v(w, 2)}, {v(base)} offset:{o}')
        I(f'ds_read_b64_tr_b16 {v(w + 2, 2)}, {v(base)} offset:{o + 512}')

    def sync(t_):
        tn = t_ if BAR1 else t_ + 1
        if tn >= NPRE:
            assert ('dma', tn) in k.seen_tags
            k.wait_vm_tag(('dma', tn))
        if t_ == WFK:
            k.wait_vm_tag('rts')
        if t_ == WTK:
            lab = k.newlabel('L_wtw')
            k._need(regs_of(v(P4, 4)))
            I(f's_cmp_eq_u32 {s(S_WAVE)}, 0')
            I(f's_cbranch_scc0 {lab}')
            poll(V_PA, 'wt', 4, preissued=True, sleep=8)
            k.label(lab)
        at_sync(t_, 0)
        I('s_barrier')
        at_sync(t_, 1)

    def hxread(ks):
        I(f'ds_read_b128 {v(HX + 4 * (ks & 1), 4)}, {v(V_X)} offset:{ks * 1024}')

    k.seen_tags = {('dma', i) for i in range(LAK)}
    if halo:
        hxread(0)
        for ks in range(19):
            fill[ks] = fill[ks][:2] + k.record(lambda: hxread(ks + 1)) + fill[ks][2:]
    for n in range(LA):
        rd(n)
    I(f's_cmp_eq_u32 {s(S_WAVE)}, 0')
    csel(S_T3, WTF, OOB)
    I(f'v_lshl_add_u32 {v(V_PA)}, {v(V_LANE)}, {WS_}, {s(S_T3)}')
    waited = -1
    prev_halo = False
    seen_blk = set()
    for n in range(N):
        t_, pos, ks, blk, off = items[n]
        NF = len(steps[t_])
        w = WIN + 4 * (n % 8)
        if pos == 0:
            q = list(fill[t_])
            ngaps = sum(1 for it in steps[t_] if it[1] < 100)
            tot = sum(cost(e) for e in q) + 4 * (NF // 2 + 1)
            budget = max(8, -(-tot // ngaps))
            budget2 = 0
            if budget > 12:
                budget = -(-(tot + 8 * ngaps) // (2 * ngaps))
                budget2 = budget - 8
            if t_ in (0, 1, 2, 4, 8, 12, 16, 18):
                stamp(1 + (0, 1, 2, 4, 8, 12, 16, 18).index(t_), 1)
        used = 8 if prev_halo else 0
        if n + LA < N and items[n + LA][1] == 0 and items[n + LA][0] >= 2 and (BAR1 or items[n + LA][0] % 2 == 0):
            sync(items[n + LA][0])
            used += 8
        if waited < n:
            need = regs_of(v(w, 4))
            waited = n
            for m in (n + 1, n + 2):
                if m < N and (m == n + 1 or items[m - 1][3] >= 100):
                    need |= regs_of(v(WIN + 4 * (m % 8), 4))
                    waited = m
            for m in range(n, waited + 1):
                kk, bb = items[m][2], items[m][3]
                need |= (regs_of(areg(kk, 0)) | regs_of(areg(kk, 1))) if bb < 100 else regs_of(v(HX + 4 * (kk & 1), 4))
            k._need(need)
            used += 4
        while q and (used + cost(q[0]) <= budget + 2 or pos == NF - 1):
            used += cost(q[0])
            k.play(q.pop(0))
        first = blk not in seen_blk
        seen_blk.add(blk)
        if blk < 100:
            for ri in range(2):
                rb = ri ^ (blk & 1) if '--snake' in sys.argv else ri
                d = ACC + (blk * 2 + rb) * 4
                c_ = '0' if (first and first_c_zero) else v(d, 4)
                I(f'v_mfma_f32_16x16x32_bf16 {v(d, 4)}, {v(w, 4)}, {areg(ks, rb)}, {c_}')
                if ri == 0:
                    u2 = 0
                    if n + LA < N:
                        rd(n + LA)
                    else:
                        u2 = -8
                    while q and u2 + cost(q[0]) <= budget2 + 2:
                        u2 += cost(q[0])
                        k.play(q.pop(0))
        else:
            d = HACC + (blk - 100) * 4
            c_ = '0' if first else v(d, 4)
            I(f'v_mfma_f32_16x16x32_bf16 {v(d, 4)}, {v(w, 4)}, {v(HX + 4 * (ks & 1), 4)}, {c_}')
            if n + LA < N:
                rd(n + LA)
        prev_halo = blk >= 100
    return w2done


YACC = 16
SACC = 96
HW = 116
HWN = 5
XIN = 196
B2V = 208
T2 = 218
VXG = 2
VRW = (5, 8, 9)
S_HO = 24
S_EARLY = 19
V_HE = V_TR0


def h_scalars():
    I(f's_mul_i32 {s(S_T3)}, {s(S_M2)}, {4 * ACT_MB}')
    I(f's_add_u32 {s(S_T3)}, {s(S_T3)}, {ACT_T + 20 * 1024}')
    I(f's_mul_i32 {s(S_T4)}, {s(S_WAVE)}, 14')
    I(f's_add_u32 {s(S_T5)}, {s(S_T4)}, 7')
    I(f's_min_u32 {s(S_T5)}, {s(S_T5)}, 47')
    for ab, r in ((0, S_T4), (1, S_T5)):
        I(f's_lshl_b32 {s(r)}, {s(r)}, 10')
        I(f's_add_u32 {s(r)}, {s(S_T3)}, {s(r)}')
    for i in range(4):
        I(f's_add_u32 {s(S_T3)}, {s(S_WAVE)}, {1 + i}')
        I(f's_and_b32 {s(S_T3)}, {s(S_T3)}, 3')
        I(f's_mul_i32 {s(S_T3)}, {s(S_T3)}, {ACT_MB}')
        I(f's_add_u32 {s(S_HO + i)}, {s(S_T4)}, {s(S_T3)}')
        I(f's_add_u32 {s(S_HO + 4 + i)}, {s(S_T5)}, {s(S_T3)}')


def hreg(st, mb):
    if W2ALL:
        return v(HW + 16 * (st % HWN) + 4 * mb, 4)
    if st < 3:
        return a((28 + 4 * st + mb) * 4, 4)
    if st == 3:
        return v(W2V + 4 * mb, 4)
    return v(HW + 16 * ((st - 4) % HWN) + 4 * mb, 4)


def hload(st, mb, early=False):
    ab, p = YSTEP[st]
    so = S_HO + 4 * ab + mb
    if (ab, p) == (0, 5):
        I(f's_add_u32 {s(so)}, {s(so)}, {s(S_LAST)}')
    va = V_HE if early else (V_L16 if p < 4 else V_L16B)
    I(f'buffer_load_dwordx4 {hreg(st, mb)}, {v(va)}, {s(SRD_WS, 4)}, {s(so)} offen offset:{(p & 3) * 1024} sc1')


def early_eval():
    chk_eval()
    I(f's_cmp_eq_u64 vcc, 0')
    I(f's_cselect_b32 {s(S_EARLY)}, 1, 0')
    I(f's_cselect_b32 {s(S_T0)}, 0, {OOB}')
    I(f'v_add_u32 {v(V_HE)}, {s(S_T0)}, {v(V_L16)}')


def p1_flag():
    k.wait_all(vm=False, lg=True)
    I('s_barrier')
    lab = k.newlabel('L_np')
    I(f's_cmp_eq_u32 {s(S_WAVE)}, 0')
    I(f's_cbranch_scc0 {lab}')
    flag_store(P1F, S_FOFF, T2)
    k.label(lab)


I(f's_lshl_b32 {s(S_T3)}, {s(S_MT)}, 3')
I(f's_sub_u32 {s(S_T3)}, {s(S_T3)}, 1')
I(f's_mul_i32 {s(S_T3)}, {s(S_T3)}, 20480')
I(f's_mul_i32 {s(S_T4)}, {s(S_WAVE)}, 5120')
I(f's_add_u32 {s(S_T3)}, {s(S_T3)}, {s(S_T4)}')
I(f's_cmp_eq_u32 {s(S_MT)}, 0')
I(f's_cselect_b32 {s(S_T5)}, {OOB}, {s(S_T3)}')
I(f'v_add_u32 {v(T + 2)}, {s(S_T4)}, {v(V_X)}')
SA, SH, VA, VB, VO, K2M0, K2M1 = T + 28, T + 29, T + 30, T + 31, T + 32, T + 33, T + 34
tm, tg = T + 4, T + 5
prow(tm, tg, 15)
I(f'v_mul_u32_u24 {v(SH)}, {RS}, {v(tm)}')
I(f'v_lshrrev_b32 {v(tg)}, 4, {v(V_LANE)}')
I(f'v_lshl_add_u32 {v(SH)}, {v(tg)}, 3, {v(SH)}')
I(f's_mul_i32 {s(S_T3)}, {s(S_WAVE)}, {32 * RS}')
I(f's_add_u32 {s(S_T3)}, {s(S_T3)}, {STG + 16 * RS}')
I(f'v_add_u32 {v(SA)}, {s(S_T3)}, {v(SH)}')
I(f's_lshl_b32 {s(S_T3)}, {s(S_HB)}, 5')
I(f's_add_u32 {s(S_T3)}, {s(S_T3)}, {STG}')
I(f'v_add_u32 {v(SH)}, {s(S_T3)}, {v(SH)}')
I(f's_lshr_b32 {s(S_T3)}, {s(S_WAVE)}, 1')
I(f's_mul_i32 {s(S_T3)}, {s(S_T3)}, 80')
I(f's_and_b32 {s(S_T0)}, {s(S_WAVE)}, 1')
I(f's_mul_i32 {s(S_T0)}, {s(S_T0)}, {64 * RS}')
I(f's_add_u32 {s(S_T3)}, {s(S_T3)}, {s(S_T0)}')
I(f's_add_u32 {s(S_T3)}, {s(S_T3)}, {STG}')
prow(tm, tg, 63)
I(f'v_mul_u32_u24 {v(VA)}, {RS}, {v(tm)}')
I(f'v_add_u32 {v(VA)}, {s(S_T3)}, {v(VA)}')
I(f'v_and_b32 {v(VB)}, 0x30, {v(V_LANE)}')
I(f'v_bfe_u32 {v(tg)}, {v(V_LANE)}, 1, 1')
I(f'v_lshl_add_u32 {v(VB)}, {v(tg)}, 3, {v(VB)}')
I(f'v_and_b32 {v(tg)}, 1, {v(V_LANE)}')
I(f'v_add_u32 {v(VB)}, {v(VB)}, {v(tg)}')
I(f'v_bfe_u32 {v(tg)}, {v(V_LANE)}, 2, 2')
I(f'v_lshl_add_u32 {v(VB)}, {v(tg)}, 1, {v(VB)}')
I(f'v_mul_u32_u24 {v(VB)}, {RS}, {v(VB)}')
I(f'v_add_u32 {v(VB)}, {s(S_T3)}, {v(VB)}')
I(f'v_lshrrev_b32 {v(tg)}, 4, {v(V_LANE)}')
I(f'v_mul_u32_u24 {v(VO)}, {ACT_MB}, {v(tg)}')
I(f'v_and_b32 {v(tg)}, 15, {v(V_LANE)}')
I(f'v_lshl_add_u32 {v(VO)}, {v(tg)}, 4, {v(VO)}')
I(f'v_and_b32 {v(tg)}, 3, {v(V_LANE)}')
I(f'v_mov_b32 {v(tm)}, 0xffff')
I(f'v_cmp_le_u32 vcc, 1, {v(tg)}')
I(f'v_cndmask_b32 {v(K2M0)}, {v(tm)}, -1, vcc')
I(f'v_cmp_le_u32 vcc, 2, {v(tg)}')
I(f'v_cndmask_b32 {v(K2M1)}, 0, {v(tm)}, vcc')
I(f'v_cmp_le_u32 vcc, 3, {v(tg)}')
I(f'v_cndmask_b32 {v(K2M1)}, {v(K2M1)}, -1, vcc')
S_OB = 35
I(f's_lshl_b32 {s(S_OB)}, {s(S_MT)}, 1')
I(f's_and_b32 {s(S_T0)}, {s(S_WAVE)}, 1')
I(f's_add_u32 {s(S_OB)}, {s(S_OB)}, {s(S_T0)}')
I(f's_mul_i32 {s(S_OB)}, {s(S_OB)}, {4 * ACT_MB}')
I(f's_add_u32 {s(S_OB)}, {s(S_OB)}, {ACT_T}')
I(f's_mul_i32 {s(S_T3)}, {s(S_IDX)}, 2560')
I(f's_add_u32 {s(S_OB)}, {s(S_OB)}, {s(S_T3)}')
I(f's_lshr_b32 {s(S_T3)}, {s(S_WAVE)}, 1')
I(f's_mul_i32 {s(S_T3)}, {s(S_T3)}, 1280')
I(f's_add_u32 {s(S_OB)}, {s(S_OB)}, {s(S_T3)}')
I(f's_mov_b32 {s(S_T2)}, {s(S_T5)}')
h_scalars()
ln_wait()
stamp(2)
for i in range(5):
    I(f'buffer_load_dwordx4 {v(T + 8 + 4 * i, 4)}, {v(V_AO if i < 4 else V_AO + 1)}, {s(SRD_WS, 4)}, {s(S_T2)} offen offset:{(i & 3) * 1024} sc1')
pre_loads()
if RTLATE:
    rt_stores()
tag_fetch()
for i in range(5):
    I(f'ds_write_b128 {v(T + 2)}, {v(T + 8 + 4 * i, 4)} offset:{i * 1024}')
k.wait_all(vm=False, lg=True)
I('s_barrier')
stamp(3)
att_order = [0, 1, 2, 3, 4, 100, 5, 6, 7, 8, 9, 101, 10, 11, 12, 13, 102, 14]
w2done = mainloop([[(ks, b, 32 * (b % 100)) for b in att_order] for ks in range(20)], areg_att,
                  [[ks + LAK] if ks + LAK < 20 else [] for ks in range(20)], True,
                  lambda t_, f: opt('ra0', 3) if t_ < 20 - LAK else opt('ra1', 8), lambda kn: None,
                  lambda t_: [], lambda t_, ph: None)
stamp(4)
stamp(1, 4)
w2rest = [lambda f=f: w2load(f) for f in range(w2done, NW2X)]
PK = T + 8
n = 0
for blk in att_order:
    for rb in range(2 if blk < 100 else 1):
        d = ACC + (blk * 2 + rb) * 4 if blk < 100 else HACC + 4 * (blk - 100)
        p = PK + 2 * (n % 4)
        n += 1
        I(f'v_cvt_pk_bf16_f32 {v(p)}, {v(d)}, {v(d + 1)}')
        I(f'v_cvt_pk_bf16_f32 {v(p + 1)}, {v(d + 2)}, {v(d + 3)}')
        if blk < 100:
            I(f'ds_write_b64 {v(SA)}, {v(p, 2)} offset:{32 * blk + rb * 16 * RS}')
        else:
            I(f'ds_write_b64 {v(SH)}, {v(p, 2)} offset:{32 * (blk - 100)}')
        if w2rest and n % 2 == 0:
            w2rest.pop(0)()
M1, M2, M3, INV1, INV01, INV02, INV03, SC_HI, SC_SCALE, SC_L2E = 36, 38, 40, 42, 44, 46, 48, 50, 52, 54
for reg, pat in ((M1, 0xeeeeeeee), (M2, 0xcccccccc), (M3, 0x88888888)):
    I(f's_mov_b32 {s(reg)}, {hex(pat)}')
    I(f's_mov_b32 {s(reg + 1)}, {hex(pat)}')
stamp(2, 4)
k.wait_all(vm=False, lg=True)
I('s_barrier')
stamp(3, 4)
w2rest += [lambda i=i, nb=nb: wodma(i, nb) for i in WO_EARLY for nb in range(5)]
Q, Kr, Vr = 16, 36, 96
for i in range(5):
    I(f'ds_read_b128 {v(Q + 4 * i, 4)}, {v(VA)} offset:{16 * RS + 16 * i}')
    for kg in range(3):
        I(f'ds_read_b128 {v(Kr + 20 * kg + 4 * i, 4)}, {v(VA)} offset:{kg * 8 * RS + 160 + 16 * i}')
for reg, pat in ((INV1, 0xff), (INV01, 0x1111), (INV02, 0x3333), (INV03, 0x7777)):
    I(f's_mov_b64 {s(reg, 2)}, {hex(pat)}')
I(f's_mov_b32 {s(SC_HI)}, 0xffff0000')
for h_ in range(2):
    I(f's_mov_b32 {s(SC_SCALE + h_)}, {f32(20 ** -0.5)}')
    I(f's_mov_b32 {s(SC_L2E + h_)}, {f32(1.4426950408889634)}')
I(f's_and_b32 {s(S_T4)}, {s(S_WAVE)}, 1')
I(f's_or_b32 {s(S_T4)}, {s(S_T4)}, {s(S_MT)}')
NEG = T + 2
SREG = [T + 4, T + 16]
for hd in range(2):
    Sx = SREG[hd]
    for dc in range(5):
        for kg in range(3):
            c_ = '0' if dc == 0 else v(Sx + 4 * kg, 4)
            I(f'v_mfma_f32_4x4x4_16b_bf16 {v(Sx + 4 * kg, 4)}, {v(Kr + 20 * kg + 10 * hd + 2 * dc, 2)}, {v(Q + 10 * hd + 2 * dc, 2)}, {c_}')
            I(f'ds_read_b64_tr_b16 {v(Vr + 30 * hd + 2 * (kg * 5 + dc), 2)}, {v(VB)} offset:{kg * 8 * RS + 320 + 40 * hd + 8 * dc}')
            if kg == 2 and w2rest:
                w2rest.pop(0)()
stamp(4, 4)


def hk():
    if w2rest:
        w2rest.pop(0)()


OP = Q
for hd in range(2):
    Sx = SREG[hd]
    Lg = Sx + 4
    if hd == 1:
        while w2rest:
            hk()
        chk_issue(V_PF)
    for r, M in ((1, M1), (2, M2), (3, M3)):
        I(f'v_cndmask_b32 {v(Sx + 8 + r)}, {v(Sx + r)}, {v(Sx + 8 + r)}, {s(M, 2)}')
    P = Sx
    for i in range(4):
        I(f'v_cvt_pk_bf16_f32 {v(P + i)}, {v(Lg + 2 * i)}, {v(Lg + 2 * i + 1)}')
    hk()
    for i in range(4):
        I(f'v_lshlrev_b32 {v(Lg + 2 * i)}, 16, {v(P + i)}')
        I(f'v_and_b32 {v(Lg + 2 * i + 1)}, {s(SC_HI)}, {v(P + i)}')
    hk()
    for i in range(4):
        I(f'v_pk_mul_f32 {v(Lg + 2 * i, 2)}, {v(Lg + 2 * i, 2)}, {s(SC_SCALE, 2)}')
    hk()
    for i in range(4):
        I(f'v_cvt_pk_bf16_f32 {v(P + i)}, {v(Lg + 2 * i)}, {v(Lg + 2 * i + 1)}')
    for i in range(4):
        I(f'v_lshlrev_b32 {v(Lg + 2 * i)}, 16, {v(P + i)}')
        I(f'v_and_b32 {v(Lg + 2 * i + 1)}, {s(SC_HI)}, {v(P + i)}')
    hk()
    lab = k.newlabel('L_nomask')
    I(f's_cmp_eq_u32 {s(S_T4)}, 0')
    I(f's_cbranch_scc0 {lab}')
    I(f'v_mov_b32 {v(NEG)}, {f32(-1e9)}')
    for r in range(4):
        I(f'v_cndmask_b32 {v(Lg + r)}, {v(Lg + r)}, {v(NEG)}, {s(INV1, 2)}')
    for r, M in ((1, INV01), (2, INV02), (3, INV03)):
        I(f'v_cndmask_b32 {v(Lg + 4 + r)}, {v(Lg + 4 + r)}, {v(NEG)}, {s(M, 2)}')
    k.label(lab)
    mx = P
    I(f'v_max3_f32 {v(mx)}, {v(Lg)}, {v(Lg + 1)}, {v(Lg + 2)}')
    I(f'v_max3_f32 {v(mx + 1)}, {v(Lg + 3)}, {v(Lg + 4)}, {v(Lg + 5)}')
    I(f'v_max3_f32 {v(mx)}, {v(mx)}, {v(Lg + 6)}, {v(Lg + 7)}')
    I(f'v_max_f32 {v(mx)}, {v(mx)}, {v(mx + 1)}')
    I(f'v_mul_f32 {v(mx)}, {s(SC_L2E)}, {v(mx)}')
    hk()
    for i in range(4):
        I(f'v_pk_fma_f32 {v(Lg + 2 * i, 2)}, {v(Lg + 2 * i, 2)}, {s(SC_L2E, 2)}, {v(mx, 2)} op_sel_hi:[1,1,0] neg_lo:[0,0,1] neg_hi:[0,0,1]')
    hk()
    for i in range(8):
        I(f'v_exp_f32 {v(Lg + i)}, {v(Lg + i)}')
    hk()
    I(f'v_pk_add_f32 {v(P, 2)}, {v(Lg, 2)}, {v(Lg + 2, 2)}')
    I(f'v_pk_add_f32 {v(P + 2, 2)}, {v(Lg + 4, 2)}, {v(Lg + 6, 2)}')
    I(f'v_pk_add_f32 {v(P, 2)}, {v(P, 2)}, {v(P + 2, 2)}')
    I(f'v_add_f32 {v(P)}, {v(P)}, {v(P + 1)}')
    I(f'v_rcp_f32 {v(P)}, {v(P)}')
    if hd == 1:
        for i in range(10):
            I(f'v_cvt_pk_bf16_f32 {v(OP + i)}, {v(Kr + 8 + 2 * i)}, {v(Kr + 8 + 2 * i + 1)}')
        for i in range(2):
            I(f'buffer_store_dwordx4 {v(OP + 4 * i, 4)}, {v(VO)}, {s(SRD_WS, 4)}, {s(S_OB)} offen offset:{256 * i} sc1')
    hk()
    for i in range(4):
        I(f'v_pk_mul_f32 {v(Lg + 2 * i, 2)}, {v(Lg + 2 * i, 2)}, {v(P, 2)} op_sel_hi:[1,0]')
    PB = Kr + 30 * hd
    I(f'v_cvt_pk_bf16_f32 {v(PB + 2)}, {v(Lg)}, {v(Lg + 1)}')
    I(f'v_cvt_pk_bf16_f32 {v(PB + 3)}, {v(Lg + 2)}, {v(Lg + 3)}')
    I(f'v_cvt_pk_bf16_f32 {v(PB)}, {v(Lg + 4)}, {v(Lg + 5)}')
    I(f'v_cvt_pk_bf16_f32 {v(PB + 1)}, {v(Lg + 6)}, {v(Lg + 7)}')
    I(f'v_and_b32 {v(PB + 4)}, {v(PB)}, {v(K2M0)}')
    I(f'v_and_b32 {v(PB + 5)}, {v(PB + 1)}, {v(K2M1)}')
    I(f'v_xor_b32 {v(PB)}, {v(PB)}, {v(PB + 4)}')
    I(f'v_xor_b32 {v(PB + 1)}, {v(PB + 1)}, {v(PB + 5)}')
    O = PB + 8
    for kg in (1, 2, 0):
        for dc in range(5):
            c_ = '0' if kg == 1 else v(O + 4 * dc, 4)
            I(f'v_mfma_f32_4x4x4_16b_bf16 {v(O + 4 * dc, 4)}, {v(Vr + 30 * hd + 2 * (kg * 5 + dc), 2)}, {v(PB + 2 * kg, 2)}, {c_}')
stamp(5, 4)
for i in range(10):
    I(f'v_cvt_pk_bf16_f32 {v(OP + 10 + i)}, {v(Kr + 38 + 2 * i)}, {v(Kr + 38 + 2 * i + 1)}')
    if i in (1, 5, 9):
        j = 2 + (i - 1) // 4
        I(f'buffer_store_dwordx4 {v(OP + 4 * j, 4)}, {v(VO)}, {s(SRD_WS, 4)}, {s(S_OB)} offen offset:{256 * j} sc1')
early_eval()
stamp(5)
I('s_branch L_phase2')

k.set_state(st_join)
k.label('L_ffn')
h_scalars()
ln_wait()
stamp(2)
pre_loads()
if RTLATE:
    rt_stores()
tag_fetch()
I(f's_lshl_b32 {s(S_T3)}, {s(S_WAVE)}, 9')
I(f's_add_u32 {s(S_T3)}, {s(S_T3)}, {HALO}')
I(f'v_lshl_add_u32 {v(T)}, {v(V_LANE)}, 3, {s(S_T3)}')
I(f'ds_write_b64 {v(T)}, {v(BIAS, 2)}')
I(f'v_lshrrev_b32 {v(T)}, 4, {v(V_LANE)}')
I(f'v_lshl_add_u32 {v(T)}, {v(T)}, 3, {s(S_T3)}')
for cb in range(14):
    I(f'ds_read_b64 {v(T + 8 + 2 * cb, 2)}, {v(T)} offset:{32 * cb}')
I(f's_mov_b32 {s(S_T4)}, 0xffff0000')
for cb in range(14):
    for rb in range(2):
        d = ACC + (cb * 2 + rb) * 4
        for h in range(2):
            I(f'v_lshlrev_b32 {v(d + 2 * h)}, 16, {v(T + 8 + 2 * cb + h)}')
            I(f'v_and_b32 {v(d + 2 * h + 1)}, {s(S_T4)}, {v(T + 8 + 2 * cb + h)}')
C0 = -2.0 * 0.7978845608028654 * 1.4426950408889634
C1 = C0 * 0.044715
GC0 = 128
GS1, S_HB2 = 46, 48
I(f'v_mov_b32 {v(GC0)}, {f32(C0)}')
I(f'v_mov_b32 {v(GC0 + 1)}, {f32(C0)}')
I(f'v_mov_b32 {v(GC0 + 2)}, 1.0')
I(f'v_mov_b32 {v(GC0 + 3)}, 1.0')
I(f's_mov_b32 {s(GS1)}, {f32(C1)}')
I(f's_mov_b32 {s(GS1 + 1)}, {f32(C1)}')
I(f's_mul_i32 {s(S_HB2)}, {s(S_MB0)}, {ACT_MB}')
I(f's_lshl_b32 {s(S_T3)}, {s(S_START)}, 10')
I(f's_add_u32 {s(S_HB2)}, {s(S_HB2)}, {s(S_T3)}')
I(f's_add_u32 {s(S_HB2)}, {s(S_HB2)}, {ACT_T + 20 * 1024}')
I(f's_add_u32 {s(S_HB2 + 1)}, {s(S_HB2)}, {ACT_MB}')


def gelu_group(pr, rb, hook=None):
    n = pr * 2 + rb
    tmp = T + 4 + 8 * (n % 2)
    out = T + 20 + 4 * (n % 4)
    xs = [ACC + ((2 * pr + c2) * 2 + rb) * 4 + 2 * h for c2 in range(2) for h in range(2)]
    for i, x in enumerate(xs):
        I(f'v_pk_mul_f32 {v(tmp + 2 * i, 2)}, {v(x, 2)}, {v(x, 2)}')
    for i, x in enumerate(xs):
        I(f'v_pk_fma_f32 {v(tmp + 2 * i, 2)}, {v(tmp + 2 * i, 2)}, {s(GS1, 2)}, {v(GC0, 2)}')
    hook()
    for i, x in enumerate(xs):
        I(f'v_pk_mul_f32 {v(tmp + 2 * i, 2)}, {v(tmp + 2 * i, 2)}, {v(x, 2)}')
    hook()
    for i in range(8):
        I(f'v_exp_f32 {v(tmp + i)}, {v(tmp + i)}')
        if i % 2 == 0 and i >= 2:
            I(f'v_pk_add_f32 {v(tmp + i - 2, 2)}, {v(tmp + i - 2, 2)}, {v(GC0 + 2, 2)}')
    hook()
    I(f'v_rcp_f32 {v(tmp)}, {v(tmp)}')
    I(f'v_pk_add_f32 {v(tmp + 6, 2)}, {v(tmp + 6, 2)}, {v(GC0 + 2, 2)}')
    hook()
    for i in range(1, 8):
        I(f'v_rcp_f32 {v(tmp + i)}, {v(tmp + i)}')
        if i % 2 == 0:
            I(f'v_pk_mul_f32 {v(tmp + i - 2, 2)}, {v(tmp + i - 2, 2)}, {v(xs[i // 2 - 1], 2)}')
    hook()
    I(f'v_cvt_pk_bf16_f32 {v(out)}, {v(tmp)}, {v(tmp + 1)}')
    I(f'v_pk_mul_f32 {v(tmp + 6, 2)}, {v(tmp + 6, 2)}, {v(xs[3], 2)}')
    hook()
    for i in range(1, 4):
        I(f'v_cvt_pk_bf16_f32 {v(out + i)}, {v(tmp + 2 * i)}, {v(tmp + 2 * i + 1)}')
    I(f'buffer_store_dwordx4 {v(out, 4)}, {v(V_L16 if pr < 4 else V_L16B)}, {s(SRD_WS, 4)}, {s(S_HB2 + rb)} offen offset:{(pr & 3) * 1024} sc1', tag=('h', pr))


stamp(3)
w2done = mainloop([[(ks, j, 32 * j) for j in range(14)] for ks in range(20)], areg_att,
                  [[ks + LAK] if ks + LAK < 20 else [] for ks in range(20)], False,
                  lambda t_, f: opt('rf0', 3) if t_ < 20 - LAK else opt('rf1', 8), lambda kn: None, lambda t_: [], lambda t_, ph: None)
stamp(4)
stamp(1, 4)
I('s_barrier')
w2rest = [lambda f=f: w2load(f) for f in range(w2done, NW2X)]
w2rest += [lambda i=i, nb=nb: wodma(i, nb) for i in WO_EARLY for nb in range(5)]
FM = opt('fm', 0)
if FM == 0:
    w2rest = [x for fn in w2rest for x in (fn, None)]
elif FM == 1:
    w2rest = [None] * 48 + w2rest
elif FM == 2:
    pass
elif FM == 3:
    w2tail = w2rest[-15:]
    w2rest = [x for fn in w2rest[:-15] for x in (fn, None, None)]


def hook():
    if w2rest:
        fn = w2rest.pop(0)
        if fn:
            fn()


HSPLIT = 4
for pr in range(7):
    for rb in range(2):
        if ZD and pr == 5 and rb == 0:
            I(f's_cmp_eq_u32 {s(S_IDX)}, 6')
            I(f's_cselect_b32 {s(S_HB2)}, {OOB}, {s(S_HB2)}')
            I(f's_cselect_b32 {s(S_HB2 + 1)}, {OOB}, {s(S_HB2 + 1)}')
        gelu_group(pr, rb, hook)
        if rb == 1 and pr in (1, 3, 4, 6):
            stamp(2 + (1, 3, 4, 6).index(pr), 4)
        if pr == HSPLIT and rb == opt('hrb', 1):
            k.wait_vm_tag(('h', HSPLIT - 1))
            I('s_barrier')
            lab = k.newlabel('L_nh')
            I(f's_cmp_eq_u32 {s(S_WAVE)}, 0')
            I(f's_cbranch_scc0 {lab}')
            flag_store(P1H, S_FOFF, 224)
            k.label(lab)
        if pr == 6 and rb == 0:
            while w2rest:
                hook()
            chk_issue(V_PF)
early_eval()
stamp(5)

k.label('L_phase2')
k.vmq = [(set(), 'p1st')]
k.lgq = []
stamp(6)
stamp(6, 4)
HE = opt('he', 2)
for st in range(HE):
    for mb in range(4):
        hload(st, mb, True)
k.wait_vm_tag('p1st')
stamp(7, 4)
p1_flag()
lab = k.newlabel('L_haveh')
I(f's_cmp_eq_u32 {s(S_EARLY)}, 1')
I(f's_cbranch_scc1 {lab}')
k.wait_all()
poll(V_PF, 'ffn')
for st in range(HE):
    for mb in range(4):
        hload(st, mb)
k.label(lab)
for st in range(HE, 4):
    for mb in range(4):
        hload(st, mb)
stamp(7)
stamp(8, 4)


def p2_setup():
    global S_OBASE, S_OOK, S_HI, S_NL2E, VXO, VB2, VPA2, VRED2, VWO1, VWO2
    S_OBASE, S_OOK, S_HI, S_NL2E = 36, 39, 40, 41
    I(f's_lshl_b32 {s(S_T3)}, {s(S_M2)}, 2')
    I(f's_add_u32 {s(S_T3)}, {s(S_T3)}, {s(S_WAVE)}')
    I(f's_mul_i32 {s(S_OBASE)}, {s(S_T3)}, {ACT_MB}')
    I(f's_add_u32 {s(S_OBASE)}, {s(S_OBASE)}, {ACT_T + (OOB // 2 if "--noH" in sys.argv else 0)}')
    I(f's_mov_b32 {s(S_HI)}, 0xffff0000')
    I(f's_mov_b32 {s(S_NL2E)}, {f32(-1.4426950408889634)}')
    VXO, VB2, VPA2, VRED2, VWO1, VWO2 = T2 + 2, T2 + 3, T2 + 4, T2 + 5, T2 + 6, T2 + 7
    I(f's_mul_i32 {s(S_T3)}, {s(S_T3)}, {16 * 1280}')
    I(f's_mul_i32 {s(S_T4)}, {s(S_NT)}, 160')
    I(f's_add_u32 {s(S_T3)}, {s(S_T3)}, {s(S_T4)}')
    for i in range(3):
        I(f'v_add_u32 {v(VB2)}, {64 * i}, {v(V_LANE)}')
        I(f'v_mul_u32_u24 {v(VXO)}, 205, {v(VB2)}')
        I(f'v_lshrrev_b32 {v(VXO)}, 11, {v(VXO)}')
        I(f'v_mul_u32_u24 {v(VXO)}, {1280 - 160}, {v(VXO)}')
        I(f'v_lshl_add_u32 {v(VXO)}, {v(VB2)}, 4, {v(VXO)}')
        I(f'v_add_u32 {v(VXG + i)}, {s(S_T3)}, {v(VXO)}')
    I(f'v_lshrrev_b32 {v(VB2)}, 5, {v(V_LANE)}')
    I(f'v_lshl_or_b32 {v(VXG + 2)}, {v(VB2)}, 30, {v(VXG + 2)}')
    prow(VB2, VXO, 15)
    I(f'v_mul_u32_u24 {v(VXO)}, 160, {v(VB2)}')
    I(f'v_lshrrev_b32 {v(VB2)}, 4, {v(V_LANE)}')
    I(f'v_lshl_add_u32 {v(VXO)}, {v(VB2)}, 3, {v(VXO)}')
    I(f'v_lshl_add_u32 {v(VB2)}, {v(VB2)}, 3, {s(S_T4)}')
    I(f's_mul_i32 {s(S_T3)}, {s(S_WAVE)}, {15 * 1024}')
    I(f's_add_u32 {s(S_T3)}, {s(S_T3)}, {LDS_RED}')
    I(f'v_add_u32 {v(VXO)}, {s(S_T3)}, {v(VXO)}')
    I(f'v_subrev_u32 {v(V_PF)}, {P1H - P1F}, {v(V_PF)}')
    I(f's_lshr_b32 {s(S_T3)}, {s(S_M2)}, 1')
    I(f's_lshl_b32 {s(S_T3)}, {s(S_T3)}, {4 + FS}')
    I(f's_add_u32 {s(S_T3)}, {s(S_T3)}, {P1F}')
    I(f'v_and_b32 {v(VPA2)}, 7, {v(V_LANE)}')
    I(f'v_lshl_add_u32 {v(VPA2)}, {v(VPA2)}, {FS}, {s(S_T3)}')
    I(f's_mul_i32 {s(S_T3)}, {s(S_WAVE)}, {15 * 1024}')
    I(f'v_add_u32 {v(VWO1)}, {LDS_RED}, {v(V_L16)}')
    I(f'v_add_u32 {v(VRED2)}, {s(S_T3)}, {v(VWO1)}')
    I(f'v_add_u32 {v(VWO2)}, {LDS_WO + 65536}, {v(V_L16)}')
    for i in range(3):
        I(f's_add_u32 {s(S_T3)}, {s(S_WAVE)}, {1 + i}')
        I(f's_and_b32 {s(S_T3)}, {s(S_T3)}, 3')
        I(f's_mul_i32 {s(S_T3)}, {s(S_T3)}, {15 * 1024}')
        I(f'v_add_u32 {v(VRW[i])}, {s(S_T3)}, {v(VWO1)}')


setup2 = k.record(p2_setup)


def oreg(ks):
    return a(4 * W2ORDER[20 + ks], 4)


def oload(ks):
    if ks % 8 == 0 and ks:
        I(f's_add_u32 {s(S_OBASE)}, {s(S_OBASE)}, 8192')
    I(f'buffer_load_dwordx4 {oreg(ks)}, {v(V_L16 if (ks & 7) < 4 else V_L16B)}, {s(SRD_WS, 4)}, {s(S_OBASE)} offen offset:{(ks & 3) * 1024} sc1')


R_ = k.record
fl = {st: [] for st in range(13)}
if W2ALL:
    pfi = [i for i, e in enumerate(setup2) if 'v_subrev_u32' in e[0]][0]
    fl[0] = R_(lambda: [hload(4, mb) for mb in range(4)]) + setup2[pfi:]
    fl[1] = R_(lambda: chk_issue(V_PF)) + setup2[:pfi // 2]
    fl[2] = R_(lambda: w2load(69)) + setup2[pfi // 2:pfi]
    fl[4] = R_(lambda: [wodma(WO_LATE[0], nb) for nb in range(3)])
    fl[5] = R_(lambda: [wodma(WO_LATE[0], nb) for nb in range(3, 5)])
    fl[6] = R_(lambda: [wodma(WO_LATE[1], nb) for nb in range(3)])
    fl[7] = R_(lambda: [wodma(WO_LATE[1], nb) for nb in range(3, 5)]) + R_(lambda: chk_issue(VPA2))
else:
    fl[0] = R_(lambda: [hload(st, mb) for st in (4, 5) for mb in range(4)]) + setup2
    fl[1] = R_(lambda: chk_issue(V_PF)) + R_(lambda: [hload(st, mb) for st in (6, 7) for mb in range(4)])
    fl[2] = R_(lambda: [w2load(f) for f in range(NW2E, NW2E + 5)])
    fl[3] = R_(lambda: [hload(8, mb) for mb in range(4)]) + R_(lambda: [wodma(WO_LATE[0], nb) for nb in range(5)])
    fl[4] = R_(lambda: [w2load(f) for f in range(NW2E + 5, NW2E + 10)])
    fl[5] = R_(lambda: [wodma(WO_LATE[1], nb) for nb in range(5)])
    fl[6] = R_(lambda: [w2load(f) for f in range(NW2E + 10, NW2E + 14)])
    fl[7] = R_(lambda: [w2load(f) for f in range(NW2E + 14, 70)]) + R_(lambda: chk_issue(VPA2))
WOW = YACC
NWW = 14
LA2 = 11
WOPRE = W2ORDER[1:20] + W2ORDER[40:49]
NPW = len(WOPRE) if opt('wopre', 1) else 0


def woreg(n):
    return a(4 * WOPRE[n], 4) if n < NPW else v(WOW + 4 * (n % NWW), 4)


def woread(n):
    off = n * 1024
    if off < 65536:
        I(f'ds_read_b128 {woreg(n)}, {v(V_L16)} offset:{off}')
    else:
        I(f'ds_read_b128 {woreg(n)}, {v(VWO2)} offset:{off - 65536}')


if NPW:
    for j in range(19):
        fl.setdefault(4 + j // 3, [])
        fl[4 + j // 3] = fl[4 + j // 3] + R_(lambda: woread(j))
wotail = [j for j in range(19, NPW)]
NOY = opt('noy', 12)
late = R_(lambda: [oload(ks) for ks in range(4)])
late += R_(lambda: [I(f'buffer_load_dwordx2 {v(B2V + 2 * nb, 2)}, {v(VB2)}, {s(SRD_B2, 4)}, 0 offen offset:{32 * nb}') for nb in range(5)])
late += R_(lambda: [oload(ks) for ks in range(4, NOY)])
olate = R_(lambda: [oload(ks) for ks in range(NOY, 20)])
olate += R_(lambda: [I(f'buffer_load_dwordx4 {v(XIN + 4 * i, 4)}, {v(VXG + i)}, {s(SRD_X, 4)}, 0 offen') for i in range(3)])
TS = 11
ATK = opt('atk', 9)
nl = len(late)
for i, st in enumerate(range(ATK, TS)):
    fl[st] = fl[st] + late[i * nl // (14 - ATK):(i + 1) * nl // (14 - ATK)]
late = late[(TS - ATK) * nl // (14 - ATK):]
I(f's_mov_b32 {s(39)}, 1')
for st in range(TS):
    if st in (0, 1, 3, 5, 8):
        stamp(1 + (0, 1, 3, 5, 8).index(st), 3)
    if st == 3:
        poll(V_PF, 'ffn2', preissued=True)
    if st == ATK:
        poll(VPA2, 'att', preissued=True)
    q = fl[st]
    per = max(8, -(-sum(cost(e) for e in q) // 16))
    for mb in range(4):
        for nb in range(5):
            nn = 4 - nb if (mb & 1 and '--snake' in sys.argv) else nb
            d = YACC + (mb * 5 + nn) * 4
            c_ = '0' if st == 0 else v(d, 4)
            I(f'v_mfma_f32_16x16x32_bf16 {v(d, 4)}, {w2reg(st, nn)}, {hreg(st, mb)}, {c_}')
            u = 0
            while q and nb < 4 and (u + cost(q[0]) <= per) and (nb % 2 == 0 or len(q) > 2 * (4 - mb)):
                u += cost(q[0])
                k.play(q.pop(0))
        if st + HWN < 14:
            hload(st + HWN, mb)
    while q:
        k.play(q.pop(0))
stamp(6, 3)
YOWN = YACC + 60
n = 0
for mb in range(4):
    for st in range(TS, 14):
        for nb in range(5):
            d = YACC + (mb * 5 + nb) * 4
            I(f'v_mfma_f32_16x16x32_bf16 {v(d, 4)}, {w2reg(st, nb)}, {hreg(st, mb)}, {v(d, 4)}')
            j = (st - TS) * 5 + nb
            if mb and j >= 3 and j % 2 == 1 and (j - 3) // 2 < 5:
                nw = (j - 3) // 2
                I(f'ds_write_b128 {v(VRW[mb - 1])}, {v(YACC + ((mb - 1) * 5 + nw) * 4, 4)} offset:{((mb - 1) * 5 + nw) * 1024}')
            elif late and n % 4 == 0:
                k.play(late.pop(0))
            elif wotail and n % 4 == 2:
                woread(wotail.pop(0))
            n += 1
while late:
    k.play(late.pop(0))
stamp(8)
stamp(7, 3)
stamp(1, 5)
k.wait_all(vm=False, lg=True)
I('s_barrier')
stamp(2, 5)
YT = HW + 20
for i in range(3):
    for nb in range(5):
        I(f'ds_read_b128 {v(YT + 20 * i + 4 * nb, 4)}, {v(VRED2)} offset:{(i * 5 + nb) * 1024}')
for n in range(NPW, LA2):
    woread(n)
G1 = YT
valu = []
GPK = opt('gpk', 1)
for i in range(3):
    if GPK:
        for r in range(10):
            valu.append(f'v_pk_add_f32 {v(YOWN + 2 * r, 2)}, {v(YOWN + 2 * r, 2)}, {v(YT + 20 * i + 2 * r, 2)}')
    else:
        for r in range(20):
            valu.append(f'v_add_f32 {v(YOWN + r)}, {v(YOWN + r)}, {v(YT + 20 * i + r)}')
seq = [
    lambda y, p, r: f'v_cvt_pk_bf16_f32 {v(p)}, {v(y)}, {v(y + 1)}',
    lambda y, p, r: f'v_lshlrev_b32 {v(y)}, 16, {v(p)}',
    lambda y, p, r: f'v_and_b32 {v(y + 1)}, {s(S_HI)}, {v(p)}',
    lambda y, p, r: f'v_lshlrev_b32 {v(p)}, 16, {v(B2V + r)}',
    lambda y, p, r: f'v_and_b32 {v(p + 1)}, {s(S_HI)}, {v(B2V + r)}',
    lambda y, p, r: f'v_add_f32 {v(y)}, {v(y)}, {v(p)}',
    lambda y, p, r: f'v_add_f32 {v(y + 1)}, {v(y + 1)}, {v(p + 1)}',
    lambda y, p, r: f'v_cvt_pk_bf16_f32 {v(p)}, {v(y)}, {v(y + 1)}',
    lambda y, p, r: f'v_lshlrev_b32 {v(y)}, 16, {v(p)}',
    lambda y, p, r: f'v_and_b32 {v(y + 1)}, {s(S_HI)}, {v(p)}',
    lambda y, p, r: f'v_mul_f32 {v(p)}, {s(S_NL2E)}, {v(y)}',
    lambda y, p, r: f'v_mul_f32 {v(p + 1)}, {s(S_NL2E)}, {v(y + 1)}',
    lambda y, p, r: f'v_exp_f32 {v(p)}, {v(p)}',
    lambda y, p, r: f'v_exp_f32 {v(p + 1)}, {v(p + 1)}',
    lambda y, p, r: f'v_add_f32 {v(p)}, 1.0, {v(p)}',
    lambda y, p, r: f'v_add_f32 {v(p + 1)}, 1.0, {v(p + 1)}',
    lambda y, p, r: f'v_rcp_f32 {v(p)}, {v(p)}',
    lambda y, p, r: f'v_rcp_f32 {v(p + 1)}, {v(p + 1)}',
    lambda y, p, r: f'v_mul_f32 {v(y)}, {v(y)}, {v(p)}',
    lambda y, p, r: f'v_mul_f32 {v(y + 1)}, {v(y + 1)}, {v(p + 1)}',
    lambda y, p, r: f'v_cvt_pk_bf16_f32 {v(p)}, {v(y)}, {v(y + 1)}',
    lambda y, p, r: f'v_lshlrev_b32 {v(y)}, 16, {v(p)}',
    lambda y, p, r: f'v_and_b32 {v(y + 1)}, {s(S_HI)}, {v(p)}',
]
if GPK:
    seq[5:7] = [lambda y, p, r: f'v_pk_add_f32 {v(y, 2)}, {v(y, 2)}, {v(p, 2)}']
    seq[-5:-3] = [lambda y, p, r: f'v_pk_mul_f32 {v(y, 2)}, {v(y, 2)}, {v(p, 2)}']
for fn in seq:
    for r in range(10):
        valu.append(fn(YOWN + 2 * r, G1 + 2 * r, r))
for r in range(12):
    valu.append(f'v_lshlrev_b32 {v(G1 + 2 * r)}, 16, {v(XIN + r)}')
    valu.append(f'v_and_b32 {v(G1 + 2 * r + 1)}, {s(S_HI)}, {v(XIN + r)}')
nv = len(valu)
stamp(8, 3)
stamp(3, 5)
vi = 0
for n in range(100):
    ks, nb = divmod(n, 5)
    if n in (24, 50, 74):
        stamp(4 + (24, 50, 74).index(n), 5)
    d = SACC + 4 * nb
    c_ = '0' if ks == 0 else v(d, 4)
    if n % 3 == 0:
        k._need(set().union(*[regs_of(woreg(m)) for m in range(n, min(n + 3, 100))]))
    I(f'v_mfma_f32_16x16x32_bf16 {v(d, 4)}, {woreg(n)}, {oreg(ks)}, {c_}')
    if NPW <= n + LA2 < 100:
        woread(n + LA2)
    if olate and n % 2 == 1:
        k.play(olate.pop(0))
    while vi < nv and vi * 100 < (n + 1) * nv:
        I(valu[vi])
        vi += 1
PT = YT + 24
stamp(7, 5)
seq = [
    lambda sx, y, p, r: f'v_cvt_pk_bf16_f32 {v(p)}, {v(sx)}, {v(sx + 1)}',
    lambda sx, y, p, r: f'v_lshlrev_b32 {v(sx)}, 16, {v(p)}',
    lambda sx, y, p, r: f'v_and_b32 {v(sx + 1)}, {s(S_HI)}, {v(p)}',
    lambda sx, y, p, r: f'v_pk_mul_f32 {v(sx, 2)}, {v(sx, 2)}, {v(y, 2)}',
    lambda sx, y, p, r: f'v_cvt_pk_bf16_f32 {v(p)}, {v(sx)}, {v(sx + 1)}',
]
for nb in range(5):
    for fn in seq:
        for r in (2 * nb, 2 * nb + 1):
            I(fn(SACC + 2 * r, YOWN + 2 * r, PT + r, r))
    I(f'ds_write_b64 {v(VXO)}, {v(PT + 2 * nb, 2)} offset:{32 * nb}')
for i in range(3):
    I(f'ds_read_b128 {v(XIN + 4 * i, 4)}, {v(VRED2)} offset:{1024 * i}')
U = YACC
stamp(8, 5)
for i in range(3):
    rr = range(4 * i, 4 * i + 4)
    for r in rr:
        I(f'v_lshlrev_b32 {v(U + 2 * r)}, 16, {v(XIN + r)}')
        I(f'v_and_b32 {v(U + 2 * r + 1)}, {s(S_HI)}, {v(XIN + r)}')
    for r in rr:
        I(f'v_pk_add_f32 {v(U + 2 * r, 2)}, {v(U + 2 * r, 2)}, {v(G1 + 2 * r, 2)}')
    for r in rr:
        I(f'v_cvt_pk_bf16_f32 {v(XIN + r)}, {v(U + 2 * r)}, {v(U + 2 * r + 1)}')
    I(f'buffer_store_dwordx4 {v(XIN + 4 * i, 4)}, {v(VXG + i)}, {s(SRD_OUT, 4)}, 0 offen')
ECHO = opt('echo', -1)
if ECHO >= 0:
    stamp(9, -1)
    k.wait_all()
    if ECHO == 50:
        I(f'v_mov_b32 {v(T2)}, {STAMP_OFF}')
        I(f'buffer_load_dword {v(T2 + 1)}, {v(T2)}, {s(SRD_WS, 4)}, 0 offen sc1')
        I(f'v_readfirstlane_b32 {s(S_T4)}, {v(T2 + 1)}')
        I(f's_sub_u32 {s(S_T3)}, {s(S_STAMP)}, {s(S_T4)}')
    else:
        I(f's_sub_u32 {s(S_T3)}, {s(S_STAMP + 2 * ECHO)}, {s(S_STAMP)}')
    I(f's_min_u32 {s(S_T3)}, {s(S_T3)}, 10000')
    k.label('L_echo')
    I(f's_memrealtime {s(S_T4, 2)}')
    k.wait_all()
    I(f's_sub_u32 {s(S_T4)}, {s(S_T4)}, {s(S_STAMP + 18)}')
    I(f's_cmp_lt_u32 {s(S_T4)}, {s(S_T3)}')
    I('s_cbranch_scc1 L_echo')
elif STAMPS:
    stamp(9, -1)
    k.wait_all()
    I(f's_lshl_b32 {s(S_T3)}, {s(S_WG)}, 8')
    I(f's_lshl_b32 {s(S_T4)}, {s(S_WAVE)}, 6')
    I(f's_add_u32 {s(S_T3)}, {s(S_T3)}, {s(S_T4)}')
    I(f's_add_u32 {s(S_T3)}, {s(S_T3)}, {STAMP_OFF}')
    I(f'v_mov_b32 {v(T2)}, 0')
    I('s_mov_b64 exec, 1')
    for i in range(10):
        I(f'v_mov_b32 {v(T2 + 1)}, {s(S_STAMP + 2 * i)}')
        I(f'buffer_store_dword {v(T2 + 1)}, {v(T2)}, {s(SRD_WS, 4)}, {s(S_T3)} offen offset:{4 * i}')
    I(f'v_mov_b32 {v(T2 + 1)}, {s(S_EARLY)}')
    I(f'buffer_store_dword {v(T2 + 1)}, {v(T2)}, {s(SRD_WS, 4)}, {s(S_T3)} offen offset:52')
    I(f'v_mov_b32 {v(T2 + 1)}, {s(S_OOK)}')
    I(f'buffer_store_dword {v(T2 + 1)}, {v(T2)}, {s(SRD_WS, 4)}, {s(S_T3)} offen offset:56')
    I(f'v_mov_b32 {v(T2 + 1)}, {s(S_TYPE)}')
    I(f'buffer_store_dword {v(T2 + 1)}, {v(T2)}, {s(SRD_WS, 4)}, {s(S_T3)} offen offset:60')
if '--padx' in sys.argv:
    for i in range(2048):
        I(f'v_add3_u32 {v(16 + i % 8)}, {v(16 + i % 8)}, v2, v3')
if '--pady' in sys.argv:
    I(f's_mov_b32 {s(S_T3)}, 0')
    k.label('L_pady')
    for i in range(64):
        I(f'v_add3_u32 {v(16 + i % 8)}, {v(16 + i % 8)}, v2, v3')
    I(f's_add_u32 {s(S_T3)}, {s(S_T3)}, 1')
    I(f's_cmp_lt_u32 {s(S_T3)}, 32')
    I('s_cbranch_scc1 L_pady')
k.label('L_end')
I('s_endpgm')

hdr = open('recurrent_scan__sliding_local_dilated__dense_activation_gelu__prompt.s.ref').read().split('\n')
head = [l for l in hdr if l.startswith(';') and '@launch' not in l and 'Override' not in l and 'grid=ceil' not in l]
print('\n'.join(head))
if '--list' in sys.argv:
    print(f'; @launch kernel=pre_kernel grid=({opt("preg", 1)},1,1) block=(64,1,1) lds=0')
    print(f'; @launch kernel={KNAME} grid=(256,1,1) block=(256,1,1) lds={LDS_TOTAL}')
else:
    print(f'; @launch grid=(256,1,1) block=(256,1,1) lds={LDS_TOTAL}')
print(""";
;   phase 2  : 64 x 80 output tile: y = h @ w2 (K split over the waves), s = o @ wo, out = x + s * silu(y + b2).""")
print(f'''.amdgcn_target "amdgcn-amd-amdhsa--gfx950"
.text
.globl {KNAME}
.p2align 8
.type {KNAME},@function
{KNAME}:''')
print(k.text())
if '--list' in sys.argv:
    print(f'''.globl pre_kernel
.p2align 8
.type pre_kernel,@function
pre_kernel:
    s_cmp_ge_u32 s2, 1
    s_cbranch_scc1 L_pre_end
    s_load_dwordx2 s[4:5], s[0:1], 80
    s_waitcnt lgkmcnt(0)
    s_mov_b32 s8, s4
    s_mov_b32 s9, s5
    s_mov_b32 s10, {WS_REC}
    s_mov_b32 s11, 0x00020000
    s_memrealtime s[12:13]
    s_waitcnt lgkmcnt(0)
    v_mov_b32 v1, s12
    v_mov_b32 v2, {STAMP_OFF}
    s_mov_b64 exec, 1
    buffer_store_dword v1, v2, s[8:11], 0 offen sc1
L_pre_end:
    s_endpgm''')
print(f'''.section .rodata,"a"
.p2align 6
.amdhsa_kernel {KNAME}
  .amdhsa_next_free_vgpr 512
  .amdhsa_next_free_sgpr 102
  .amdhsa_accum_offset 256
  .amdhsa_group_segment_fixed_size 0
  .amdhsa_kernarg_size 88
  .amdhsa_user_sgpr_count 2
  .amdhsa_user_sgpr_kernarg_segment_ptr 1
  .amdhsa_system_sgpr_workgroup_id_x 1
  .amdhsa_float_denorm_mode_32 3
.end_amdhsa_kernel''')
if '--list' in sys.argv:
    print('''.p2align 6
.amdhsa_kernel pre_kernel
  .amdhsa_next_free_vgpr 8
  .amdhsa_next_free_sgpr 16
  .amdhsa_accum_offset 8
  .amdhsa_group_segment_fixed_size 0
  .amdhsa_kernarg_size 88
  .amdhsa_user_sgpr_count 2
  .amdhsa_user_sgpr_kernarg_segment_ptr 1
  .amdhsa_system_sgpr_workgroup_id_x 1
.end_amdhsa_kernel''')
```
